```python
import torch

def _softmax(x, axis=-1):
    return torch.softmax(x, dim=axis)
def _gelu(x):
    return torch.nn.functional.gelu(x, approximate="tanh")
def _silu(x):
    return torch.nn.functional.silu(x)
def _sigmoid(x):
    return torch.sigmoid(x)
def _layernorm(x, axis=-1, eps=1e-5):
    m = x.mean(dim=axis, keepdim=True)
    v = x.var(dim=axis, keepdim=True, unbiased=False)
    return (x - m) / torch.sqrt(v + eps)
def _scatter_add(tgt, idx, src, axis=0):
    return tgt.clone().index_add_(axis, idx, src)
def _segment_sum(src, seg, n):
    out = torch.zeros((n,) + src.shape[1:], dtype=src.dtype)
    return out.index_add_(0, seg, src)
def _pad(x, pw):
    flat = tuple(v for pair in reversed(pw) for v in pair)
    return torch.nn.functional.pad(x, flat)

kernel_name = 'concat_heads__ssm_conv_s4__softmax_full_mha__prompt'

def setup_inputs():

    _w = (lambda a: (lambda t: t.to(torch.bfloat16) if t.is_floating_point() else t)(torch.as_tensor(a)))
    def _A_setup():
        B, L, D, N = 1, 2048, 512, 128
        A_re = -(lambda _x: torch.exp(torch.as_tensor(_x)))((lambda *s: torch.randn(*s, dtype=torch.bfloat16) * 6.4)(D, N))
        A_im = torch.pi * (lambda *s: torch.randn(*s, dtype=torch.bfloat16) * 0.1)(D, N)
        B_re = (lambda *s: torch.randn(*s, dtype=torch.bfloat16) * 0.2)(D, N)
        B_im = (lambda *s: torch.randn(*s, dtype=torch.bfloat16) * 0.2)(D, N)
        C_re = (lambda *s: torch.randn(*s, dtype=torch.bfloat16) * 0.2)(D, N)
        C_im = (lambda *s: torch.randn(*s, dtype=torch.bfloat16) * 0.2)(D, N)
        log_dt = (lambda *s: torch.randn(*s, dtype=torch.bfloat16) * 0.1)(D) * 0.5 - 4.0
        Dskip = (lambda *s: torch.randn(*s, dtype=torch.bfloat16) * 0.1)(D)
        return {
            "u": _w((lambda *s: torch.randn(*s, dtype=torch.bfloat16) * 0.05)(B, L, D)),
            "A_re": _w(A_re),
            "A_im": _w(A_im),
            "B_re": _w(B_re),
            "B_im": _w(B_im),
            "C_re": _w(C_re),
            "C_im": _w(C_im),
            "log_dt": _w(log_dt),
            "Dskip": _w(Dskip),
        }
    _A_in = _A_setup()

    def _B_setup():
        B, S, D = 1, 2048, 512
        return {
            "x": _w((lambda *s: torch.randn(*s, dtype=torch.bfloat16) * 0.2)(B, S, D)),
            "wqkv": _w((lambda *s: torch.randn(*s, dtype=torch.bfloat16) * 0.2)(D, 3 * D)),
            "wo": _w((lambda *s: torch.randn(*s, dtype=torch.bfloat16) * 0.05)(D, D)),
        }
    _B_in = _B_setup()

    return {
        "A_u": _A_in["u"],
        "A_A_re": _A_in["A_re"],
        "A_A_im": _A_in["A_im"],
        "A_B_re": _A_in["B_re"],
        "A_B_im": _A_in["B_im"],
        "A_C_re": _A_in["C_re"],
        "A_C_im": _A_in["C_im"],
        "A_log_dt": _A_in["log_dt"],
        "A_Dskip": _A_in["Dskip"],
        "B_x": _B_in["x"],
        "B_wqkv": _B_in["wqkv"],
        "B_wo": _B_in["wo"],
    }

def reference(A_u, A_A_re, A_A_im, A_B_re, A_B_im, A_C_re, A_C_im, A_log_dt, A_Dskip, B_x, B_wqkv, B_wo):
    def _A_ref(u, A_re, A_im, B_re, B_im, C_re, C_im, log_dt, Dskip):
        Bsz, L, D = u.shape
        dt = torch.exp(log_dt)[:, None]
        A = A_re + 1j * A_im
        Bc = B_re + 1j * B_im
        Cc = C_re + 1j * C_im
        logdA = dt * A
        dB = dt * Bc
        l = (lambda x, dt: x.to(dt))(torch.arange(L), A_re.dtype)
        P = torch.exp(logdA[:, :, None] * l[None, None, :])
        K = torch.einsum("dn,dnl,dn->dl", Cc, P, dB).real
        L2 = 2 * L
        Kp = _pad(K, ((0, 0), (0, L)))
        up = (lambda x, *d: x.permute(*d))(u, 0, 2, 1)
        up = _pad(up, ((0, 0), (0, 0), (0, L)))
        Kf = (lambda x, axes=(-2,-1): torch.fft.rfft2(x.float(), dim=axes))(Kp[:, None, :], axes=(-2, -1))
        Uf = (lambda x, axes=(-2,-1): torch.fft.rfft2(x.float(), dim=axes))(up[:, :, None, :], axes=(-2, -1))
        Yf = Uf * Kf[None, :, :, :]
        y = (lambda x, s, axes=(-2,-1): torch.fft.irfft2(x, s=s, dim=axes).to(torch.bfloat16))(Yf, (1, L2), axes=(-2, -1))[:, :, 0, :L]
        y = (lambda x, *d: x.permute(*d))(y, 0, 2, 1) + u * Dskip[None, None, :]
        return y

    def _B_ref(x, wqkv, wo):
        B, S, D = x.shape
        H = 32; Dh = D // H
        qkv = (lambda x, *d: x.permute(*d))((x @ wqkv).reshape(B, S, 3, H, Dh), 2, 0, 3, 1, 4)
        q, k, v = qkv[0], qkv[1], qkv[2]
        scale = Dh ** -0.5
        scores = torch.einsum("bhqd,bhkd->bhqk", q, k) * scale
        p = _softmax(scores, axis=-1)
        o = torch.einsum("bhqk,bhkd->bhqd", p, v)
        return (lambda x, *d: x.permute(*d))(o, 0, 2, 1, 3).reshape(B, S, D) @ wo

    a = _A_ref(A_u, A_A_re, A_A_im, A_B_re, A_B_im, A_C_re, A_C_im, A_log_dt, A_Dskip)
    b = _B_ref(B_x, B_wqkv, B_wo)
    return torch.concatenate([a, b], axis=-1)
```

```python
import sys, struct, math

NAME = "concat_heads__ssm_conv_s4__softmax_full_mha__prompt"
OPT = dict(stamps=0, dump=0, stop="", forceslow=0)
for a in sys.argv[2:]:
    k, v = a.split("=")
    OPT[k] = int(v) if v.lstrip("-").isdigit() else v

L = []
def e(s=""):
    L.append("    " + s if s and not s.endswith(":") and not s.startswith(";") else s)
def c(s): L.append("    ; " + s)
def f2u(x): return struct.unpack("<I", struct.pack("<f", x))[0]
def fl(x): return "0x%08x" % f2u(x)
def vr(a, n=1): return "v%d" % a if n == 1 else "v[%d:%d]" % (a, a + n - 1)
def sr(a, n=1): return "s%d" % a if n == 1 else "s[%d:%d]" % (a, a + n - 1)
def nop(n):
    while n > 0:
        k = min(n, 16); e("s_nop %d" % (k - 1)); n -= k

WS_EPOCH = 0
WS_F1 = 4096
WS_F2 = 40960
WS_Q = 0x100000
WS_K = 0x300000
WS_V = 0x500000
WS_O = 0x700000
WS_DBG = 0x1000000
WS_SIZE = 0x10000000
LDS_TOTAL = 163840
L_K = 0
L_V = 65536
L_MISC = 146240
L_KF = 146304
L_UP = 154624
L_TB = 0
L_TA = 33792
L_WO = 0
L_Z = 65536
ZS = 9360
L_O = 65536
S_U, S_ARE, S_AIM, S_BRE, S_BIM, S_CRE, S_CIM, S_LDT = 8, 10, 12, 14, 16, 18, 20, 22
S_DSK, S_X, S_W, S_WO, S_OUT, S_DBG, S_WS = 24, 26, 28, 30, 32, 34, 36
R_X, R_W, R_WS, R_U, R_OUT, R_WO = 40, 44, 48, 52, 56, 60
S_XQ, S_I5, S_WV, S_TAG, S_LD2, S_DS2 = 64, 65, 66, 67, 68, 69
S_H, S_J, S_C0 = 70, 71, 72
S_T0, S_T1, S_T2, S_T3, S_T4, S_T5 = 73, 74, 75, 76, 77, 78
S_CNT = 79
S_M0, S_M1 = 4, 6
S_D0, S_D1 = 38, 39
S_ST = 80
nstamp = [0]
def stamp():
    if OPT["stamps"]:
        e("s_waitcnt lgkmcnt(0)")
        e("s_memtime %s" % sr(S_ST + 2 * nstamp[0], 2))
        e("s_waitcnt lgkmcnt(0)")
        nstamp[0] += 1
def srd(r, base, size):
    e("s_mov_b32 %s, %s" % (sr(r), sr(base)))
    e("s_and_b32 %s, %s, 0xffff" % (sr(r + 1), sr(base + 1)))
    e("s_mov_b32 %s, 0x%x" % (sr(r + 2), size))
    e("s_mov_b32 %s, 0x00020000" % sr(r + 3))

def csel(dst, a, b):
    e("s_mov_b32 %s, %d" % (sr(dst), b))
    e("s_cselect_b32 %s, %d, %s" % (sr(dst), a, sr(dst)))

LOG2E = math.log2(math.e)

V_TID, V_L = 0, 1
V_L16 = 2
V_PAR = 4
V_U = 10
VT = 14

def header():
    L.append("; fused S4 long-conv (part A) + multi-head attention (part B), one persistent launch, 256 WGs x 8 waves")
    L.append("; @launch grid=(256,1,1) block=(512,1,1) lds=%d" % LDS_TOTAL)
    L.append('.amdgcn_target "amdgcn-amd-amdhsa--gfx950"')
    L.append(".text")
    L.append(".globl %s_kernel" % NAME)
    L.append(".p2align 8")
    L.append(".type %s_kernel,@function" % NAME)
    L.append("%s_kernel:" % NAME)

def footer(nv):
    L.append("L_end:")
    e("s_endpgm")
    L.append('.section .rodata,"a"')
    L.append(".p2align 6")
    L.append(".amdhsa_kernel %s_kernel" % NAME)
    L.append("  .amdhsa_next_free_vgpr %d" % nv)
    L.append("  .amdhsa_next_free_sgpr 102")
    L.append("  .amdhsa_accum_offset %d" % nv)
    L.append("  .amdhsa_group_segment_fixed_size 0")
    L.append("  .amdhsa_kernarg_size 120")
    L.append("  .amdhsa_user_sgpr_count 2")
    L.append("  .amdhsa_user_sgpr_kernarg_segment_ptr 1")
    L.append("  .amdhsa_system_sgpr_workgroup_id_x 1")
    L.append(".end_amdhsa_kernel")

def dma(vaddr, rsrc, soff, ldsaddr_s, sc1=False):
    e("s_mov_b32 m0, %s" % ldsaddr_s) if ldsaddr_s is not None else None
    e("s_nop 0")
    e("buffer_load_dwordx4 %s, %s, %s offen%s lds" % (vr(vaddr), sr(rsrc, 4), soff, " sc1" if sc1 else ""))

def setup():
    c("---- setup ----")
    e("s_cmp_ge_u32 s2, 256")
    e("s_cbranch_scc1 L_end")
    e("s_load_dwordx8 s[24:31], s[0:1], 64")
    e("s_load_dwordx16 s[8:23], s[0:1], 0")
    e("s_load_dwordx4 s[32:35], s[0:1], 96")
    e("s_load_dwordx2 s[36:37], s[0:1], 112")
    if OPT["stamps"]:
        e("s_memrealtime s[100:101]")
    e("v_and_b32 v%d, 63, v0" % V_L)
    e("v_lshrrev_b32 v%d, 6, v0" % VT)
    e("v_lshlrev_b32 v%d, 4, v%d" % (V_L16, V_L))
    e("v_readfirstlane_b32 %s, v%d" % (sr(S_WV), VT))
    e("s_and_b32 %s, s2, 7" % sr(S_XQ))
    e("s_lshr_b32 %s, s2, 3" % sr(S_I5))
    e("s_and_b32 %s, %s, 3" % (sr(S_T0), sr(S_I5)))
    e("s_lshl_b32 %s, %s, 2" % (sr(S_H), sr(S_XQ)))
    e("s_add_u32 %s, %s, %s" % (sr(S_H), sr(S_H), sr(S_T0)))
    e("s_lshr_b32 %s, %s, 2" % (sr(S_J), sr(S_I5)))
    e("s_lshl_b32 %s, %s, 5" % (sr(S_C0), sr(S_XQ)))
    e("s_add_u32 %s, %s, %s" % (sr(S_C0), sr(S_C0), sr(S_I5)))
    e("s_lshl_b32 %s, %s, 1" % (sr(S_C0), sr(S_C0)))

G_VX, G_VWQ, G_VWK, G_VWV = 32, 33, 34, 35
G_XA = 36
G_WA, G_VA = 40, 41
G_XC = 42
G_WC, G_VC = 46, 47
G_ACCQK = 48
G_ACCV = 64
G_XF = 80
G_WF = 96
G_VF = 112

def gemm_addr():
    t = VT
    c("GEMM DMA voffsets")
    e("v_lshrrev_b32 v%d, 3, v%d" % (t, V_L))
    e("v_and_b32 v%d, 7, v%d" % (t + 1, V_L))
    e("v_lshrrev_b32 v%d, 4, v%d" % (t + 2, V_L))
    e("s_lshl_b32 %s, %s, 3" % (sr(S_T0), sr(S_WV)))
    e("v_add_u32 v%d, %s, v%d" % (t + 3, sr(S_T0), t))
    e("v_bfe_u32 v%d, v%d, 1, 3" % (t + 4, t + 3))
    e("v_xor_b32 v%d, v%d, v%d" % (t + 4, t + 4, t + 1))
    e("v_lshlrev_b32 v%d, 4, v%d" % (t + 4, t + 4))
    e("s_lshl_b32 %s, %s, 16" % (sr(S_T1), sr(S_I5)))
    e("v_lshl_add_u32 v%d, v%d, 10, v%d" % (G_VX, t + 3, t + 4))
    e("v_add_u32 v%d, %s, v%d" % (G_VX, sr(S_T1), G_VX))
    e("v_and_b32 v%d, 1, v%d" % (t + 2, t + 2))
    e("v_mul_u32_u24 v%d, 3072, v%d" % (t + 5, t + 3))
    e("s_lshl_b32 %s, %s, 7" % (sr(S_T1), sr(S_XQ)))
    e("v_add_u32 v%d, %s, v%d" % (t + 5, sr(S_T1), t + 5))
    e("v_lshlrev_b32 v%d, 1, v%d" % (t + 6, t + 2))
    e("v_xor_b32 v%d, v%d, v%d" % (t + 6, t + 6, t + 1))
    e("v_lshl_add_u32 v%d, v%d, 4, v%d" % (G_VWQ, t + 6, t + 5))
    e("v_xor_b32 v%d, 4, v%d" % (t + 6, t + 6))
    e("v_lshl_add_u32 v%d, v%d, 4, v%d" % (G_VWK, t + 6, t + 5))
    e("v_add_u32 v%d, 1024, v%d" % (G_VWK, G_VWK))
    e("v_lshlrev_b32 v%d, 2, v%d" % (t + 6, t + 2))
    e("v_xor_b32 v%d, v%d, v%d" % (t + 6, t + 6, t + 1))
    e("v_lshl_add_u32 v%d, v%d, 4, v%d" % (G_VWV, t + 6, t + 5))
    e("v_add_u32 v%d, 2048, v%d" % (G_VWV, G_VWV))

def gemm_issue(cidx):
    slot = cidx % 5
    e("s_add_u32 %s, %s, %d" % (sr(S_T0), sr(S_I5), cidx))
    e("s_and_b32 %s, %s, 7" % (sr(S_T0), sr(S_T0)))
    e("s_lshl_b32 %s, %s, 7" % (sr(S_T1), sr(S_T0)))
    e("s_mul_i32 %s, %s, 196608" % (sr(S_T2), sr(S_T0)))
    e("s_lshl_b32 %s, %s, 10" % (sr(S_T3), sr(S_WV)))
    for g, (va, rs, so) in enumerate(((G_VX, R_X, S_T1), (G_VWQ, R_W, S_T2), (G_VWK, R_W, S_T2), (G_VWV, R_W, S_T2))):
        e("s_add_u32 m0, %s, %d" % (sr(S_T3), slot * 32768 + g * 8192))
        e("s_nop 0")
        e("buffer_load_dwordx4 %s, %s, %s offen lds" % (vr(va), sr(rs, 4), sr(so)))

def pi_tok(dst, src, t):
    e("v_and_b32 v%d, 0x13, v%d" % (dst, src))
    e("v_bfe_u32 v%d, v%d, 2, 1" % (t, src))
    e("v_lshl_or_b32 v%d, v%d, 3, v%d" % (dst, t, dst))
    e("v_bfe_u32 v%d, v%d, 3, 1" % (t, src))
    e("v_lshl_or_b32 v%d, v%d, 2, v%d" % (dst, t, dst))

def gemm_read_addr():
    t = VT
    c("GEMM LDS fragment read addresses")
    pi_tok(t, V_L, t + 1)
    e("s_and_b32 %s, %s, 1" % (sr(S_T0), sr(S_WV)))
    e("s_lshl_b32 %s, %s, 5" % (sr(S_T0), sr(S_T0)))
    e("v_add_u32 v%d, %s, v%d" % (t, sr(S_T0), t))
    e("v_lshrrev_b32 v%d, 5, v%d" % (t + 1, V_L))
    e("v_bfe_u32 v%d, v%d, 1, 3" % (t + 2, t))
    e("v_xor_b32 v%d, v%d, v%d" % (t + 2, t + 2, t + 1))
    e("v_lshlrev_b32 v%d, 4, v%d" % (t + 2, t + 2))
    e("v_lshl_add_u32 v%d, v%d, 7, v%d" % (G_XA, t, t + 2))
    for s in range(1, 4):
        e("v_xor_b32 v%d, %d, v%d" % (G_XA + s, 32 * s, G_XA))
    e("v_bfe_u32 v%d, v%d, 2, 2" % (t + 2, V_L))
    e("v_lshl_add_u32 v%d, v%d, 3, v%d" % (t + 3, t + 1, t + 2))
    e("v_lshlrev_b32 v%d, 7, v%d" % (t + 3, t + 3))
    e("v_bfe_u32 v%d, v%d, 4, 1" % (t + 4, V_L))
    e("v_bfe_u32 v%d, v%d, 3, 1" % (t + 5, V_L))
    e("v_and_b32 v%d, 1, v%d" % (t + 6, V_L))
    e("v_bfe_u32 v%d, v%d, 1, 1" % (t + 7, V_L))
    e("s_and_b32 %s, %s, 6" % (sr(S_T0), sr(S_WV)))
    e("v_or_b32 v%d, %s, v%d" % (t + 8, sr(S_T0), t + 6))
    e("v_lshl_or_b32 v%d, v%d, 1, v%d" % (t + 9, t + 4, t + 5))
    e("v_lshlrev_b32 v%d, 1, v%d" % (t + 9, t + 9))
    e("v_xor_b32 v%d, v%d, v%d" % (t + 8, t + 8, t + 9))
    e("v_lshl_add_u32 v%d, v%d, 4, v%d" % (t + 8, t + 8, t + 3))
    e("v_lshl_add_u32 v%d, v%d, 3, v%d" % (t + 8, t + 7, t + 8))
    e("v_lshl_add_u32 v%d, v%d, 13, v%d" % (t + 8, t + 4, t + 8))
    e("v_add_u32 v%d, 8192, v%d" % (G_WA, t + 8))
    e("s_and_b32 %s, %s, 2" % (sr(S_T0), sr(S_WV)))
    e("s_lshl_b32 %s, %s, 1" % (sr(S_T0), sr(S_T0)))
    e("v_lshl_or_b32 v%d, v%d, 1, v%d" % (t + 8, t + 4, t + 7))
    e("v_or_b32 v%d, %s, v%d" % (t + 8, sr(S_T0), t + 8))
    e("v_lshlrev_b32 v%d, 2, v%d" % (t + 9, t + 5))
    e("v_xor_b32 v%d, v%d, v%d" % (t + 8, t + 8, t + 9))
    e("v_lshl_add_u32 v%d, v%d, 4, v%d" % (t + 8, t + 8, t + 3))
    e("v_lshl_add_u32 v%d, v%d, 3, v%d" % (t + 8, t + 6, t + 8))
    e("v_add_u32 v%d, 24576, v%d" % (G_VA, t + 8))

def gemm_loop(withv):
    waits = [16, 12, 12, 12, 12, 8, 4, 0]
    for ci in range(8):
        slot = ci % 5
        base = slot * 32768
        c("chunk %d" % ci)
        for s in range(4):
            e("v_add_u32 v%d, 0x%x, v%d" % (G_XC + s, base, G_XA + s))
        e("v_add_u32 v%d, 0x%x, v%d" % (G_WC, base, G_WA))
        if withv:
            e("v_add_u32 v%d, 0x%x, v%d" % (G_VC, base, G_VA))
        e("s_waitcnt vmcnt(%d)" % waits[ci])
        e("s_barrier")
        def reads(s):
            e("ds_read_b128 %s, v%d" % (vr(G_XF + 4 * s, 4), G_XC + s))
            for t in range(2):
                e("ds_read_b64_tr_b16 %s, v%d offset:%d" % (vr(G_WF + 4 * s + 2 * t, 2), G_WC, (16 * s + 4 * t) * 128))
            if withv:
                for t in range(2):
                    e("ds_read_b64_tr_b16 %s, v%d offset:%d" % (vr(G_VF + 4 * s + 2 * t, 2), G_VC, (16 * s + 4 * t) * 128))
        n = 5 if withv else 3
        reads(0); reads(1)
        if 1 <= ci <= 3:
            gemm_issue(ci + 4)
        for s in range(4):
            if s + 2 < 4:
                reads(s + 2)
            rem = (min(s + 2, 3) - s) * n
            cq = "0" if (ci == 0 and s == 0) else vr(G_ACCQK, 16)
            cv = "0" if (ci == 0 and s == 0) else vr(G_ACCV, 16)
            e("s_waitcnt lgkmcnt(%d)" % rem)
            e("v_mfma_f32_32x32x16_bf16 %s, %s, %s, %s" % (vr(G_ACCQK, 16), vr(G_WF + 4 * s, 4), vr(G_XF + 4 * s, 4), cq))
            if withv:
                e("v_mfma_f32_32x32x16_bf16 %s, %s, %s, %s" % (vr(G_ACCV, 16), vr(G_XF + 4 * s, 4), vr(G_VF + 4 * s, 4), cv))

def gemm_epilogue(withv):
    t = VT
    c("GEMM epilogue: publish Q,K(,V)")
    pi_tok(t, V_L, t + 1)
    e("v_lshrrev_b32 v%d, 5, v%d" % (t + 1, V_L))
    e("v_lshlrev_b32 v%d, 4, v%d" % (t, t))
    e("v_lshl_add_u32 v%d, v%d, 9, v%d" % (t, t + 1, t))
    e("s_lshr_b32 %s, %s, 1" % (sr(S_T0), sr(S_WV)))
    e("s_lshl_b32 %s, %s, 2" % (sr(S_T1), sr(S_XQ)))
    e("s_add_u32 %s, %s, %s" % (sr(S_T0), sr(S_T0), sr(S_T1)))
    e("s_lshl_b32 %s, %s, 6" % (sr(S_T0), sr(S_T0)))
    e("s_and_b32 %s, %s, 1" % (sr(S_T2), sr(S_WV)))
    e("s_lshl_b32 %s, %s, 1" % (sr(S_T3), sr(S_I5)))
    e("s_add_u32 %s, %s, %s" % (sr(S_T2), sr(S_T2), sr(S_T3)))
    e("s_add_u32 %s, %s, %s" % (sr(S_T0), sr(S_T0), sr(S_T2)))
    e("s_lshl_b32 %s, %s, 10" % (sr(S_T0), sr(S_T0)))
    e("s_add_u32 %s, %s, 0x%x" % (sr(S_T3), sr(S_T0), WS_K))
    e("s_add_u32 %s, %s, 0x%x" % (sr(S_T0), sr(S_T0), WS_Q))
    if withv:
        e("v_and_b32 v%d, 15, v%d" % (t + 2, V_L))
        e("v_lshlrev_b32 v%d, 4, v%d" % (t + 2, t + 2))
        e("v_lshl_add_u32 v%d, v%d, 8, v%d" % (t + 2, t + 1, t + 2))
        e("v_bfe_u32 v%d, v%d, 4, 1" % (t + 3, V_L))
        e("v_lshl_add_u32 v%d, v%d, 16, v%d" % (t + 2, t + 3, t + 2))
        e("s_and_b32 %s, %s, 2" % (sr(S_T4), sr(S_WV)))
        e("s_add_u32 %s, %s, %s" % (sr(S_T4), sr(S_T4), sr(S_T1)))
        e("s_lshl_b32 %s, %s, 6" % (sr(S_T4), sr(S_T4)))
        e("s_add_u32 %s, %s, %s" % (sr(S_T4), sr(S_T4), sr(S_T2)))
        e("s_lshl_b32 %s, %s, 10" % (sr(S_T4), sr(S_T4)))
        e("s_add_u32 %s, %s, 0x%x" % (sr(S_T4), sr(S_T4), WS_V))
    else:
        nop(4)
    nop(2)
    P = G_XF
    for i in range(4):
        e("v_cvt_pk_bf16_f32 v%d, v%d, v%d" % (P + i, G_ACCQK + 8 + 2 * i, G_ACCQK + 9 + 2 * i))
    e("buffer_store_dwordx4 %s, v%d, %s, %s offen sc1" % (vr(P, 4), t, sr(R_WS, 4), sr(S_T3)))
    if withv:
        for i in range(8):
            e("v_cvt_pk_bf16_f32 v%d, v%d, v%d" % (P + 8 + i, G_ACCV + 2 * i, G_ACCV + 1 + 2 * i))
        e("buffer_store_dwordx4 %s, v%d, %s, %s offen sc1" % (vr(P + 8, 4), t + 2, sr(R_WS, 4), sr(S_T4)))
        e("buffer_store_dwordx4 %s, v%d, %s, %s offen offset:512 sc1" % (vr(P + 12, 4), t + 2, sr(R_WS, 4), sr(S_T4)))
    for i in range(8):
        e("v_mul_f32 v%d, %s, v%d" % (G_ACCQK + i, fl(0.25 * LOG2E), G_ACCQK + i))
    for i in range(4):
        e("v_cvt_pk_bf16_f32 v%d, v%d, v%d" % (P + 4 + i, G_ACCQK + 2 * i, G_ACCQK + 1 + 2 * i))
    e("buffer_store_dwordx4 %s, v%d, %s, %s offen sc1" % (vr(P + 4, 4), t, sr(R_WS, 4), sr(S_T0)))

def cmul(d, a, b):
    e("v_pk_mul_f32 %s, %s, %s op_sel:[0,0] op_sel_hi:[1,0]" % (vr(d, 2), vr(a, 2), vr(b, 2)))
    e("v_pk_fma_f32 %s, %s, %s, %s op_sel:[1,1,0] op_sel_hi:[0,1,1] neg_lo:[1,0,0]" % (vr(d, 2), vr(a, 2), vr(b, 2), vr(d, 2)))
def cmul_multi(lst):
    for d, a, b in lst:
        e("v_pk_mul_f32 %s, %s, %s op_sel:[0,0] op_sel_hi:[1,0]" % (vr(d, 2), vr(a, 2), vr(b, 2)))
    for d, a, b in lst:
        e("v_pk_fma_f32 %s, %s, %s, %s op_sel:[1,1,0] op_sel_hi:[0,1,1] neg_lo:[1,0,0]" % (vr(d, 2), vr(a, 2), vr(b, 2), vr(d, 2)))
def cexp(d, va, vb, Lf, t):
    e("v_mul_f32 v%d, %s, v%d" % (t, fl(Lf), va))
    e("v_mul_f32 v%d, %s, v%d" % (t + 1, fl(Lf), vb))
    e("v_fract_f32 v%d, v%d" % (t + 1, t + 1))
    e("v_exp_f32 v%d, v%d" % (t, t))
    e("v_cos_f32 v%d, v%d" % (d, t + 1))
    e("v_sin_f32 v%d, v%d" % (d + 1, t + 1))
    e("s_nop 0")
    e("v_pk_mul_f32 %s, %s, %s op_sel:[0,0] op_sel_hi:[1,0]" % (vr(d, 2), vr(d, 2), vr(t, 2)))

KB = 32
def kgen_tables():
    t = VT
    c("---- S4 kernel generation: mode tables ----")
    va, vb, vdt, vad = t, t + 1, t + 2, t + 3
    e("s_bitcmp1_b32 %s, 1" % sr(S_WV))
    e("s_cselect_b32 %s, 0, 16" % sr(S_T0))
    e("s_lshl_b32 %s, %s, %s" % (sr(S_T0), sr(S_LD2), sr(S_T0)))
    e("s_and_b32 %s, %s, 0xffff0000" % (sr(S_T0), sr(S_T0)))
    e("v_mov_b32 v%d, %s" % (vdt, fl(LOG2E)))
    e("v_mul_f32 v%d, %s, v%d" % (vdt, sr(S_T0), vdt))
    e("v_exp_f32 v%d, v%d" % (vdt, vdt))
    for i in range(6):
        e("v_lshlrev_b32 v%d, 16, v%d" % (V_PAR + i, V_PAR + i))
    e("v_cvt_pk_bf16_f32 v%d, v%d, v%d" % (vdt, vdt, vdt))
    e("v_and_b32 v%d, 0xffff0000, v%d" % (vdt, vdt))
    e("v_mul_f32 v%d, v%d, v%d" % (va, vdt, V_PAR + 0))
    e("v_mul_f32 v%d, v%d, v%d" % (vb, vdt, V_PAR + 1))
    e("v_mul_f32 v%d, %s, v%d" % (va, fl(LOG2E), va))
    e("s_and_b32 %s, %s, 1" % (sr(S_T1), sr(S_WV)))
    e("s_lshl_b32 %s, %s, 8" % (sr(S_T1), sr(S_T1)))
    e("v_lshl_add_u32 v%d, v%d, 2, %s" % (vad, V_L, sr(S_T1)))
    e("s_cmp_ge_u32 %s, 4" % sr(S_WV))
    e("s_cbranch_scc1 L_kg_A")
    e("v_mul_f32 v%d, %s, v%d" % (vb, fl(1.0 / (2 * math.pi)), vb))
    e("s_bitcmp1_b32 %s, 1" % sr(S_WV))
    csel(S_T1, L_TB + 16896, L_TB)
    e("v_add_u32 v%d, %s, v%d" % (vad, sr(S_T1), vad))
    P = lambda j: KB + 2 * j
    G = lambda g: KB + 16 + 2 * g
    X = KB + 24
    cv = KB + 40
    def put(row, pr, k):
        e("v_cvt_pk_bf16_f32 v%d, v%d, v%d" % (cv + k, pr, pr + 1))
        e("ds_write_b32 v%d, v%d offset:%d" % (vad, cv + k, row * 528))
    cexp(P(1), va, vb, 8.0, t + 4)
    cexp(G(1), va, vb, 64.0, t + 6)
    e("v_mov_b32 v%d, 0x3f80" % (cv + 7))
    e("ds_write_b32 v%d, v%d" % (vad, cv + 7))
    cmul_multi([(P(2), P(1), P(1)), (G(2), G(1), G(1))])
    put(1, P(1), 0); put(8, G(1), 1)
    cmul_multi([(P(3), P(2), P(1)), (P(4), P(2), P(2)), (G(3), G(2), G(1))])
    put(2, P(2), 2); put(16, G(2), 3)
    cmul_multi([(P(5), P(4), P(1)), (P(6), P(4), P(2)), (P(7), P(4), P(3))])
    put(3, P(3), 0); put(4, P(4), 1); put(24, G(3), 2)
    put(5, P(5), 3); put(6, P(6), 4); put(7, P(7), 5)
    for g in range(1, 4):
        cmul_multi([(X + 2 * j, P(j), G(g)) for j in range(1, 8)])
        for j in range(1, 8):
            put(8 * g + j, X + 2 * j, j)
    e("s_branch L_kg_done")
    L.append("L_kg_A:")
    e("v_mul_f32 v%d, %s, v%d" % (vb, fl(-1.0 / (2 * math.pi)), vb))
    e("s_bitcmp1_b32 %s, 1" % sr(S_WV))
    csel(S_T1, L_TA + 14256, L_TA)
    e("v_add_u32 v%d, %s, v%d" % (vad, sr(S_T1), vad))
    E = lambda j: KB + 2 * j
    Q = lambda j: KB + 18 + 2 * j
    H = lambda g: KB + 36 + 2 * g
    X = KB + 52
    cv = KB + 64
    cexp(E(1), va, vb, 1.0, t + 4)
    cexp(H(1), va, vb, 256.0, t + 6)
    e("v_mul_f32 v%d, v%d, v%d" % (X, vdt, V_PAR + 2))
    e("v_mul_f32 v%d, -v%d, v%d" % (X + 1, vdt, V_PAR + 3))
    e("v_mov_b32 v%d, v%d" % (X + 2, V_PAR + 4))
    e("v_mul_f32 v%d, -1.0, v%d" % (X + 3, V_PAR + 5))
    cmul_multi([(Q(0), X, X + 2), (E(2), E(1), E(1)), (H(2), H(1), H(1))])
    cmul_multi([(E(3), E(2), E(1)), (E(4), E(2), E(2)), (H(3), H(2), H(1)), (H(4), H(2), H(2))])
    put(0, Q(0), 0)
    cmul_multi([(E(5), E(4), E(1)), (E(6), E(4), E(2)), (E(7), E(4), E(3)), (E(8), E(4), E(4)),
                (H(5), H(4), H(1)), (H(6), H(4), H(2)), (H(7), H(4), H(3))])
    cmul_multi([(Q(j), Q(0), E(j)) for j in range(1, 9)])
    for j in range(1, 8):
        put(j, Q(j), j)
    cmul_multi([(X + 2 * i, H(1), Q(2 * i)) for i in range(5)])
    for i in range(5): put(8 + i, X + 2 * i, i)
    for g, r0 in ((2, 13), (3, 16)):
        cmul_multi([(X + 2 * i, H(g), Q(4 * i)) for i in range(3)])
        for i in range(3): put(r0 + i, X + 2 * i, i)
    for g in (4, 6):
        cmul_multi([(X, H(g), Q(0)), (X + 2, H(g), Q(8)), (X + 4, H(g + 1), Q(0)), (X + 6, H(g + 1), Q(8))])
        for i in range(4): put(19 + 2 * (g - 4) + i, X + 2 * i, i)
    L.append("L_kg_done:")

def rowmap(region, ei):
    if region == 0: return ei
    if region == 1: return 8 + [0, 0, 1, 2, 2, 2, 3, 4][ei]
    if region in (2, 3): return (13 if region == 2 else 16) + [0, 0, 0, 1, 1, 1, 2, 2][ei]
    return 19 + 2 * (region - 4) + [0, 0, 0, 0, 0, 1, 1, 1][ei]

def kgen_mfma():
    t = VT
    c("---- S4 kernel generation: K = A-table x B-table ----")
    vX, vY, vB = t, t + 1, t + 2
    def packs(rh, yy):
        return [sum(rowmap(4 * rh + g, 4 * yy + r) << (8 * r) for r in range(4)) for g in range(4)]
    e("v_bfe_u32 v%d, v%d, 2, 2" % (t + 3, V_L))
    e("v_and_b32 v%d, 3, v%d" % (t + 4, V_L))
    e("v_lshlrev_b32 v%d, 3, v%d" % (t + 4, t + 4))
    e("v_cmp_eq_u32 s[4:5], 1, v%d" % (t + 3))
    e("v_cmp_eq_u32 s[6:7], 2, v%d" % (t + 3))
    e("v_cmp_eq_u32 vcc, 3, v%d" % (t + 3))
    e("s_bitcmp1_b32 %s, 0" % sr(S_WV))
    for yy, dst in ((0, vX), (1, vY)):
        p0, p1 = packs(0, yy), packs(1, yy)
        for g in range(4):
            e("s_mov_b32 %s, 0x%x" % (sr(S_T1), p0[g]))
            e("s_cselect_b32 %s, 0x%x, %s" % (sr(S_T1), p1[g], sr(S_T1)))
            if g == 0:
                e("v_mov_b32 v%d, %s" % (dst, sr(S_T1)))
            else:
                e("v_mov_b32 v%d, %s" % (t + 5, sr(S_T1)))
                e("v_cndmask_b32 v%d, v%d, v%d, %s" % (dst, dst, t + 5, ["", "s[4:5]", "s[6:7]", "vcc"][g]))
        e("v_lshrrev_b32 v%d, v%d, v%d" % (dst, t + 4, dst))
        e("v_and_b32 v%d, 0xff, v%d" % (dst, dst))
        e("v_mul_u32_u24 v%d, 528, v%d" % (dst, dst))
    e("v_lshrrev_b32 v%d, 4, v%d" % (t + 3, V_L))
    e("s_cmp_ge_u32 %s, 4" % sr(S_WV))
    csel(S_T0, L_TA + 14256, L_TA)
    csel(S_T1, L_TB + 16896, L_TB)
    csel(S_T2, L_KF + 4160 + 64, L_KF + 64)
    e("v_lshl_add_u32 v%d, v%d, 4, %s" % (t + 5, t + 3, sr(S_T0)))
    e("v_add_u32 v%d, v%d, v%d" % (vX, vX, t + 5))
    e("v_add_u32 v%d, v%d, v%d" % (vY, vY, t + 5))
    e("s_bitcmp1_b32 %s, 1" % sr(S_WV))
    e("s_cselect_b32 %s, 16, 0" % sr(S_T3))
    e("v_and_b32 v%d, 15, v%d" % (t + 6, V_L))
    e("v_add_u32 v%d, %s, v%d" % (t + 6, sr(S_T3), t + 6))
    e("v_mul_u32_u24 v%d, 528, v%d" % (vB, t + 6))
    e("v_lshl_add_u32 v%d, v%d, 4, %s" % (t + 5, t + 3, sr(S_T1)))
    e("v_add_u32 v%d, v%d, v%d" % (vB, vB, t + 5))
    e("s_and_b32 %s, %s, 1" % (sr(S_T3), sr(S_WV)))
    e("s_lshl_b32 %s, %s, 11" % (sr(S_T3), sr(S_T3)))
    e("s_add_u32 %s, %s, %s" % (sr(S_T2), sr(S_T2), sr(S_T3)))
    e("v_lshl_add_u32 v%d, v%d, 9, %s" % (t + 7, t + 3, sr(S_T2)))
    e("v_lshl_add_u32 v%d, v%d, 4, v%d" % (t + 7, t + 6, t + 7))
    FX, FY, FB = KB, KB + 32, KB + 64
    AX, AY = KB + 96, KB + 100
    def rd(s):
        e("ds_read_b128 %s, v%d offset:%d" % (vr(FB + 4 * s, 4), vB, 64 * s))
        e("ds_read_b128 %s, v%d offset:%d" % (vr(FX + 4 * s, 4), vX, 64 * s))
        e("ds_read_b128 %s, v%d offset:%d" % (vr(FY + 4 * s, 4), vY, 64 * s))
    for s in range(4): rd(s)
    for s in range(8):
        ahead = min(s + 3, 7) - s
        e("s_waitcnt lgkmcnt(%d)" % (3 * ahead))
        e("v_mfma_f32_16x16x32_bf16 %s, %s, %s, %s" % (vr(AX, 4), vr(FX + 4 * s, 4), vr(FB + 4 * s, 4), "0" if s == 0 else vr(AX, 4)))
        e("v_mfma_f32_16x16x32_bf16 %s, %s, %s, %s" % (vr(AY, 4), vr(FY + 4 * s, 4), vr(FB + 4 * s, 4), "0" if s == 0 else vr(AY, 4)))
        if s + 4 < 8: rd(s + 4)
    c("pads: V ones, K front zeros, u front zeros")
    e("v_mov_b32 v%d, 0x3f803f80" % FB)
    e("v_mov_b32 v%d, 0x3f803f80" % (FB + 1))
    e("v_mov_b32 v%d, 0x3f803f80" % (FB + 2))
    e("v_mov_b32 v%d, 0x3f803f80" % (FB + 3))
    e("v_mov_b32 v%d, 0" % (FB + 4))
    e("v_mov_b32 v%d, 0" % (FB + 5))
    e("v_mov_b32 v%d, 0" % (FB + 6))
    e("v_mov_b32 v%d, 0" % (FB + 7))
    e("v_and_b32 v%d, 1, v%d" % (t + 8, V_L))
    e("v_cmp_eq_u32 vcc, 0, v%d" % (t + 8))
    e("s_bitcmp1_b32 %s, 0" % sr(S_WV))
    e("s_cbranch_scc0 L_kg_nofix")
    e("v_cndmask_b32 v%d, v%d, v%d, vcc" % (AY, AY + 1, AX + 3))
    L.append("L_kg_nofix:")
    e("v_cvt_pk_bf16_f32 v%d, v%d, v%d" % (FX, AX, AX + 1))
    e("v_cvt_pk_bf16_f32 v%d, v%d, v%d" % (FX + 1, AX + 2, AX + 3))
    e("v_cvt_pk_bf16_f32 v%d, v%d, v%d" % (FX + 2, AY, AY + 1))
    e("v_cvt_pk_bf16_f32 v%d, v%d, v%d" % (FX + 3, AY + 2, AY + 3))
    e("ds_write_b128 v%d, %s" % (t + 7, vr(FX, 4)))
    e("s_cmp_eq_u32 %s, 1" % sr(S_WV))
    e("s_cbranch_scc0 L_pad1")
    e("v_mul_u32_u24 v%d, 1040, v%d" % (t + 8, V_L))
    e("v_add_u32 v%d, 0x%x, v%d" % (t + 8, L_V + 1024, t + 8))
    e("ds_write_b128 v%d, %s" % (t + 8, vr(FB, 4)))
    L.append("L_pad1:")
    e("s_cmp_eq_u32 %s, 2" % sr(S_WV))
    e("s_cbranch_scc0 L_pad2")
    e("v_lshrrev_b32 v%d, 3, v%d" % (t + 8, V_L))
    e("v_mul_u32_u24 v%d, 1152, v%d" % (t + 8, t + 8))
    e("v_and_b32 v%d, 7, v%d" % (t + 9, V_L))
    e("v_lshl_add_u32 v%d, v%d, 4, v%d" % (t + 8, t + 9, t + 8))
    e("v_add_u32 v%d, 0x%x, v%d" % (t + 8, L_UP, t + 8))
    e("ds_write_b128 v%d, %s" % (t + 8, vr(FB + 4, 4)))
    L.append("L_pad2:")
    e("s_cmp_eq_u32 %s, 3" % sr(S_WV))
    e("s_cbranch_scc0 L_pad3")
    e("v_bfe_u32 v%d, v%d, 2, 1" % (t + 8, V_L))
    e("v_mul_u32_u24 v%d, 4160, v%d" % (t + 8, t + 8))
    e("v_and_b32 v%d, 3, v%d" % (t + 9, V_L))
    e("v_lshl_add_u32 v%d, v%d, 4, v%d" % (t + 8, t + 9, t + 8))
    e("v_add_u32 v%d, 0x%x, v%d" % (t + 8, L_KF, t + 8))
    e("ds_write_b128 v%d, %s" % (t + 8, vr(FB + 4, 4)))
    e("v_mov_b32 v%d, 0x%x" % (t + 8, L_MISC))
    e("ds_write_b128 v%d, %s" % (t + 8, vr(FB + 4, 4)))
    L.append("L_pad3:")

def flag_store(soff_s):
    t = VT
    e("v_mov_b32 v%d, 0" % t)
    e("v_mov_b32 v%d, %s" % (t + 1, sr(S_TAG)))
    e("s_mov_b64 exec, 1")
    e("buffer_store_dword v%d, v%d, %s, %s offen sc1" % (t + 1, t, sr(R_WS, 4), soff_s))
    e("s_mov_b64 exec, -1")

def poll(label, soff_s):
    t = VT
    e("v_lshlrev_b32 v%d, 7, v%d" % (t, V_L))
    e("s_mov_b32 %s, 0" % sr(S_CNT))
    e("s_mov_b32 exec_hi, 0")
    L.append(label + ":")
    e("buffer_load_dword v%d, v%d, %s, %s offen sc1" % (t + 1, t, sr(R_WS, 4), soff_s))
    e("s_add_u32 %s, %s, 1" % (sr(S_CNT), sr(S_CNT)))
    e("s_waitcnt vmcnt(0)")
    e("v_cmp_ne_u32 vcc, %s, v%d" % (sr(S_TAG), t + 1))
    e("s_cmp_gt_u32 %s, 0x4000" % sr(S_CNT))
    e("s_cbranch_scc1 %s_done" % label)
    e("s_cmp_lg_u64 vcc, 0")
    e("s_cbranch_scc1 %s" % label)
    L.append(label + "_done:")
    e("s_mov_b64 exec, -1")

A_Q = 32
A_S = [36, 52]
A_O = 68
A_KF = [84, 88]
A_VA = [92, 96]
A_VB = [100, 104]
A_IDX = 108
A_KA, A_V0, A_V1 = 109, 110, 111
A_NM = 112

def attn_loads():
    c("---- attention: loads ----")
    e("s_lshl_b32 %s, %s, 16" % (sr(S_T0), sr(S_H)))
    e("s_lshl_b32 %s, %s, 10" % (sr(S_T1), sr(S_WV)))
    e("s_add_u32 %s, %s, %s" % (sr(S_T0), sr(S_T0), sr(S_T1)))
    e("s_lshl_b32 %s, %s, 13" % (sr(S_T2), sr(S_J)))
    e("s_add_u32 %s, %s, %s" % (sr(S_T2), sr(S_T2), sr(S_T0)))
    e("s_add_u32 %s, %s, 0x%x" % (sr(S_T2), sr(S_T2), WS_Q))
    e("buffer_load_dwordx4 %s, v%d, %s, %s offen sc1" % (vr(A_Q, 4), V_L16, sr(R_WS, 4), sr(S_T2)))
    e("s_mul_i32 %s, %s, 1040" % (sr(S_T5), sr(S_WV)))
    for b in range(8):
        e("s_add_u32 %s, %s, %d" % (sr(S_T2), sr(S_J), b))
        e("s_and_b32 %s, %s, 7" % (sr(S_T2), sr(S_T2)))
        e("s_lshl_b32 %s, %s, 13" % (sr(S_T2), sr(S_T2)))
        e("s_add_u32 %s, %s, %s" % (sr(S_T2), sr(S_T2), sr(S_T0)))
        e("s_add_u32 %s, %s, 0x%x" % (sr(S_T3), sr(S_T2), WS_K))
        e("s_add_u32 %s, %s, 0x%x" % (sr(S_T4), sr(S_T2), WS_V))
        e("s_add_u32 m0, %s, %d" % (sr(S_T1), L_K + b * 8192))
        e("s_nop 0")
        e("buffer_load_dwordx4 v%d, %s, %s offen sc1 lds" % (V_L16, sr(R_WS, 4), sr(S_T3)))
        e("s_add_u32 m0, %s, %d" % (sr(S_T5), L_V + b * 8320))
        e("s_nop 0")
        e("buffer_load_dwordx4 v%d, %s, %s offen sc1 lds" % (V_L16, sr(R_WS, 4), sr(S_T4)))

def attn_addr():
    t = VT
    e("v_mov_b32 v%d, 0xdddddddd" % A_IDX)
    e("v_mov_b32 v%d, v%d" % (A_KA, V_L16))
    e("v_and_b32 v%d, 15, v%d" % (t, V_L))
    e("v_lshrrev_b32 v%d, 5, v%d" % (t + 1, V_L))
    e("v_lshlrev_b32 v%d, 4, v%d" % (t, t))
    e("v_lshl_add_u32 v%d, v%d, 8, v%d" % (t, t + 1, t))
    e("v_add_u32 v%d, 0x%x, v%d" % (t, L_V, t))
    e("v_add_u32 v%d, 512, v%d" % (t + 1, t))
    e("v_mov_b32 v%d, 0x%x" % (t + 2, L_V + 1024))
    e("v_and_b32 v%d, 16, v%d" % (t + 3, V_L))
    e("v_cmp_eq_u32 vcc, 0, v%d" % (t + 3))
    for i in range(16):
        e("v_mov_b32 v%d, 0" % (A_O + i))
    e("v_cndmask_b32 v%d, v%d, v%d, vcc" % (A_V0, t + 2, t))
    e("v_cndmask_b32 v%d, v%d, v%d, vcc" % (A_V1, t + 2, t + 1))

def u_loads():
    t = VT
    c("u loads (2 channels, t = 256w + 64i + l)")
    e("s_lshl_b32 %s, %s, 18" % (sr(S_T0), sr(S_WV)))
    e("s_lshl_b32 %s, %s, 1" % (sr(S_T1), sr(S_C0)))
    e("s_add_u32 %s, %s, %s" % (sr(S_T0), sr(S_T0), sr(S_T1)))
    e("v_lshlrev_b32 v%d, 10, v%d" % (t, V_L))
    for i in range(4):
        e("buffer_load_dword v%d, v%d, %s, %s offen" % (V_U + i, t, sr(R_U, 4), sr(S_T0)))
        if i < 3: e("s_add_u32 %s, %s, 0x10000" % (sr(S_T0), sr(S_T0)))

def attn_main():
    c("---- attention main loop ----")
    def rdK(i, off):
        e("ds_read_b128 %s, v%d offset:%d" % (vr(A_KF[i & 1], 4), A_KA, off * 1024))
    def rdVa(i, off):
        e("ds_read_b128 %s, v%d offset:%d" % (vr(A_VA[i & 1], 4), A_V0, off * 1040))
    def rdVb(i, off):
        e("ds_read_b128 %s, v%d offset:%d" % (vr(A_VB[i & 1], 4), A_V1, off * 1040))
    def qk(i):
        e("v_mfma_f32_32x32x16_bf16 %s, %s, %s, 0" % (vr(A_S[i & 1], 16), vr(A_KF[i & 1], 4), vr(A_Q, 4)))
    def pv(i, half):
        a = (A_VA if half == 0 else A_VB)[i & 1]
        e("v_smfmac_f32_32x32x32_bf16 %s, %s, %s, v%d" % (vr(A_O, 16), vr(a, 4), vr(A_S[i & 1] + 8 * half, 8), A_IDX))
    def ex(i, lo, hi):
        for k in range(lo, hi):
            e("v_exp_f32 v%d, v%d" % (A_S[i & 1] + k, A_S[i & 1] + k))
    rdK(0, 0); rdK(1, 1); rdVa(0, 0); rdVb(0, 0)
    for k in range(8): e("v_mov_b32 v%d, 0" % (A_S[1] + 8 + k))
    for k in range(4): e("v_mov_b32 v%d, 0" % (A_VB[1] + k))
    e("s_mov_b32 %s, 0" % sr(S_CNT))
    e("s_waitcnt lgkmcnt(3)")
    qk(0)
    nop(12)
    L.append("L_attn:")
    for i in range(8):
        c("tile %d" % i)
        if i == 6:
            e("s_cmp_lg_u32 %s, 0" % sr(S_CNT))
            e("s_cbranch_scc1 L_attn_nosync")
            e("s_waitcnt vmcnt(0)")
            e("s_barrier")
            u_loads()
            L.append("L_attn_nosync:")
        ex(i, 0, 2)
        pv(i - 1, 1)
        ex(i, 2, 5)
        e("s_waitcnt lgkmcnt(2)")
        qk(i + 1)
        rdK(i + 2, i + 2)
        ex(i, 5, 10)
        e("s_waitcnt lgkmcnt(2)")
        pv(i, 0)
        rdVa(i + 1, i + 1)
        rdVb(i + 1, i + 1)
        if i == 7:
            e("v_add_u32 v%d, 0x2000, v%d" % (A_KA, A_KA))
            e("v_add_u32 v%d, 8320, v%d" % (A_V0, A_V0))
            e("v_add_u32 v%d, 8320, v%d" % (A_V1, A_V1))
            e("s_add_u32 %s, %s, 1" % (sr(S_CNT), sr(S_CNT)))
            e("s_cmp_lt_u32 %s, 8" % sr(S_CNT))
        ex(i, 10, 16)
        e("s_waitcnt lgkmcnt(3)")
    e("s_cbranch_scc1 L_attn")
    e("s_nop 1")
    pv(7, 1)
    e("s_waitcnt lgkmcnt(0)")
    nop(12)

def attn_check_and_slow():
    t = VT
    c("---- softmax guard: the fast path used shift 0; fall back to the true row max if that was unsafe ----")
    e("v_mul_f32 v%d, 0, v%d" % (t, A_O))
    for i in range(1, 8):
        e("v_fma_f32 v%d, v%d, 0, v%d" % (t, A_O + i, t))
    e("v_cmp_nle_f32 vcc, %s, v%d" % (fl(2.0 ** -40), A_O + 8))
    e("v_mov_b32 v%d, %s" % (t + 1, fl(2.0 ** 100)))
    e("v_cmp_nle_f32 s[4:5], v%d, v%d" % (A_O + 8, t + 1))
    e("v_cmp_neq_f32 s[6:7], 0, v%d" % t)
    e("s_or_b64 vcc, vcc, s[4:5]")
    e("s_or_b64 vcc, vcc, s[6:7]")
    if OPT["forceslow"]:
        e("s_mov_b64 vcc, -1")
    e("s_cmp_eq_u64 vcc, 0")
    e("s_cbranch_scc1 L_attn_ok")
    c("slow path pass 1: true row max")
    S = A_S[0]
    e("v_mov_b32 v%d, v%d" % (A_KA, V_L16))
    e("v_mov_b32 v%d, 0xff800000" % t)
    e("s_mov_b32 %s, 0" % sr(S_CNT))
    L.append("L_slow1:")
    e("ds_read_b128 %s, v%d" % (vr(A_KF[0], 4), A_KA))
    e("v_add_u32 v%d, 1024, v%d" % (A_KA, A_KA))
    e("s_waitcnt lgkmcnt(0)")
    e("v_mfma_f32_32x32x16_bf16 %s, %s, %s, 0" % (vr(S, 16), vr(A_KF[0], 4), vr(A_Q, 4)))
    nop(12)
    for k in range(0, 16, 2):
        e("v_max3_f32 v%d, v%d, v%d, v%d" % (t, t, S + k, S + k + 1))
    e("s_add_u32 %s, %s, 1" % (sr(S_CNT), sr(S_CNT)))
    e("s_cmp_lt_u32 %s, 64" % sr(S_CNT))
    e("s_cbranch_scc1 L_slow1")
    e("v_mov_b32 v%d, v%d" % (t + 1, t))
    e("s_nop 1")
    e("v_permlane32_swap_b32 v%d, v%d" % (t, t + 1))
    e("s_nop 1")
    e("v_max_f32 v%d, v%d, v%d" % (t, t, t + 1))
    for k in range(16):
        e("v_mul_f32 v%d, -1.0, v%d" % (A_NM + k, t))
    c("slow path pass 2")
    attn_addr()
    e("s_mov_b32 %s, 0" % sr(S_CNT))
    L.append("L_slow2:")
    e("ds_read_b128 %s, v%d" % (vr(A_KF[0], 4), A_KA))
    e("ds_read_b128 %s, v%d" % (vr(A_VA[0], 4), A_V0))
    e("ds_read_b128 %s, v%d" % (vr(A_VB[0], 4), A_V1))
    e("v_add_u32 v%d, 1024, v%d" % (A_KA, A_KA))
    e("v_add_u32 v%d, 1040, v%d" % (A_V0, A_V0))
    e("v_add_u32 v%d, 1040, v%d" % (A_V1, A_V1))
    e("s_waitcnt lgkmcnt(0)")
    e("v_mfma_f32_32x32x16_bf16 %s, %s, %s, %s" % (vr(S, 16), vr(A_KF[0], 4), vr(A_Q, 4), vr(A_NM, 16)))
    nop(12)
    for k in range(16):
        e("v_exp_f32 v%d, v%d" % (S + k, S + k))
    e("s_nop 1")
    e("v_smfmac_f32_32x32x32_bf16 %s, %s, %s, v%d" % (vr(A_O, 16), vr(A_VA[0], 4), vr(S, 8), A_IDX))
    e("v_smfmac_f32_32x32x32_bf16 %s, %s, %s, v%d" % (vr(A_O, 16), vr(A_VB[0], 4), vr(S + 8, 8), A_IDX))
    e("s_add_u32 %s, %s, 1" % (sr(S_CNT), sr(S_CNT)))
    e("s_cmp_lt_u32 %s, 64" % sr(S_CNT))
    e("s_cbranch_scc1 L_slow2")
    nop(12)
    L.append("L_attn_ok:")

def attn_publish():
    t = VT
    c("normalise and publish O")
    e("v_rcp_f32 v%d, v%d" % (t, A_O + 8))
    e("s_lshl_b32 %s, %s, 3" % (sr(S_T0), sr(S_H)))
    e("s_add_u32 %s, %s, %s" % (sr(S_T0), sr(S_T0), sr(S_J)))
    e("s_lshl_b32 %s, %s, 3" % (sr(S_T0), sr(S_T0)))
    e("s_add_u32 %s, %s, %s" % (sr(S_T0), sr(S_T0), sr(S_WV)))
    e("s_lshl_b32 %s, %s, 10" % (sr(S_T0), sr(S_T0)))
    e("s_add_u32 %s, %s, 0x%x" % (sr(S_T0), sr(S_T0), WS_O))
    for i in range(8):
        e("v_mul_f32 v%d, v%d, v%d" % (A_O + i, A_O + i, t))
    P = A_S[0]
    for i in range(4):
        e("v_cvt_pk_bf16_f32 v%d, v%d, v%d" % (P + i, A_O + 2 * i, A_O + 2 * i + 1))
    e("s_nop 1")
    e("v_permlane32_swap_b32 v%d, v%d" % (P, P + 2))
    e("v_permlane32_swap_b32 v%d, v%d" % (P + 1, P + 3))
    e("buffer_store_dwordx4 %s, v%d, %s, %s offen sc1" % (vr(P, 4), V_L16, sr(R_WS, 4), sr(S_T0)))

def u_stage():
    t = VT
    c("u -> LDS polyphase-4")
    e("v_and_b32 v%d, 3, v%d" % (t, V_L))
    e("v_mul_u32_u24 v%d, 1152, v%d" % (t, t))
    e("v_lshrrev_b32 v%d, 2, v%d" % (t + 1, V_L))
    e("v_lshl_add_u32 v%d, v%d, 1, v%d" % (t, t + 1, t))
    e("s_lshl_b32 %s, %s, 7" % (sr(S_T0), sr(S_WV)))
    e("s_add_u32 %s, %s, %d" % (sr(S_T0), sr(S_T0), L_UP + 128))
    e("v_add_u32 v%d, %s, v%d" % (t, sr(S_T0), t))
    for i in range(4):
        e("ds_write_b16 v%d, v%d offset:%d" % (t, V_U + i, 32 * i))
        e("ds_write_b16_d16_hi v%d, v%d offset:%d" % (t, V_U + i, 4608 + 32 * i))

def wo_loads():
    t = VT
    c("Wo slice -> LDS")
    e("v_lshrrev_b32 v%d, 3, v%d" % (t, V_L))
    e("v_and_b32 v%d, 7, v%d" % (t + 1, V_L))
    e("v_bfe_u32 v%d, v%d, 4, 1" % (t + 2, V_L))
    e("v_lshlrev_b32 v%d, 2, v%d" % (t + 2, t + 2))
    e("v_xor_b32 v%d, v%d, v%d" % (t + 1, t + 1, t + 2))
    e("v_lshlrev_b32 v%d, 4, v%d" % (t + 1, t + 1))
    e("v_lshl_add_u32 v%d, v%d, 10, v%d" % (t, t, t + 1))
    e("s_and_b32 %s, %s, 7" % (sr(S_T0), sr(S_I5)))
    e("s_lshl_b32 %s, %s, 7" % (sr(S_T0), sr(S_T0)))
    e("s_lshl_b32 %s, %s, 13" % (sr(S_T1), sr(S_WV)))
    e("s_add_u32 %s, %s, %s" % (sr(S_T0), sr(S_T0), sr(S_T1)))
    e("s_lshl_b32 %s, %s, 10" % (sr(S_T1), sr(S_WV)))
    for n in range(8):
        e("s_add_u32 m0, %s, %d" % (sr(S_T1), L_WO + n * 8192))
        e("s_nop 0")
        e("buffer_load_dwordx4 v%d, %s, %s offen lds" % (t, sr(R_WO, 4), sr(S_T0)))
        if n < 7: e("s_add_u32 %s, %s, 0x10000" % (sr(S_T0), sr(S_T0)))

C_ACC = [32, 48]
C_A = 64
C_B = 80
C_B2 = 96
C_VA, C_VB, C_VB2 = 112, 113, 114

def o_signal():
    t = VT
    lab = "L_osig%d" % len(L)
    e("s_waitcnt vmcnt(8)")
    e("v_mov_b32 v%d, 0x%x" % (t + 2, L_MISC))
    e("v_mov_b32 v%d, 1" % (t + 3))
    e("s_mov_b64 exec, 1")
    e("ds_add_rtn_u32 v%d, v%d, v%d" % (t + 3, t + 2, t + 3))
    e("s_mov_b64 exec, -1")
    e("s_waitcnt lgkmcnt(0)")
    e("v_readfirstlane_b32 %s, v%d" % (sr(S_T0), t + 3))
    e("s_cmp_eq_u32 %s, 7" % sr(S_T0))
    e("s_cbranch_scc0 %s" % lab)
    e("s_lshl_b32 %s, %s, 5" % (sr(S_T0), sr(S_J)))
    e("s_add_u32 %s, %s, %s" % (sr(S_T0), sr(S_T0), sr(S_H)))
    e("s_lshl_b32 %s, %s, 7" % (sr(S_T0), sr(S_T0)))
    e("s_add_u32 %s, %s, %d" % (sr(S_T0), sr(S_T0), WS_F2))
    flag_store(sr(S_T0))
    L.append(lab + ":")

def conv():
    t = VT
    c("---- causal conv as Toeplitz MFMA ----")
    e("s_cmp_ge_u32 %s, 4" % sr(S_WV))
    csel(S_T0, L_KF + 4160 + 64 + 64 - 32, L_KF + 64 + 64 - 32)
    csel(S_T1, L_UP + 4608, L_UP)
    e("v_bfe_u32 v%d, v%d, 4, 1" % (t, V_L))
    e("v_and_b32 v%d, 3, v%d" % (t + 1, V_L))
    e("v_lshl_add_u32 v%d, v%d, 2, v%d" % (t, t, t + 1))
    e("v_lshrrev_b32 v%d, 5, v%d" % (t + 1, V_L))
    e("v_bfe_u32 v%d, v%d, 2, 2" % (t + 2, V_L))
    e("v_lshl_add_u32 v%d, v%d, 3, v%d" % (t + 2, t + 1, t + 2))
    e("v_sub_u32 v%d, v%d, v%d" % (t, t, t + 2))
    e("v_lshlrev_b32 v%d, 3, v%d" % (t, t))
    e("v_add_u32 v%d, %s, v%d" % (C_VA, sr(S_T0), t))
    e("v_bfe_u32 v%d, v%d, 3, 2" % (t, V_L))
    e("v_mul_u32_u24 v%d, 1152, v%d" % (t, t))
    e("v_and_b32 v%d, 7, v%d" % (t + 2, V_L))
    e("v_add_u32 v%d, v%d, v%d" % (t + 2, t + 2, t + 1))
    e("v_lshl_add_u32 v%d, v%d, 4, v%d" % (t, t + 2, t))
    e("s_add_u32 %s, %s, 16" % (sr(S_T1), sr(S_T1)))
    e("v_add_u32 v%d, %s, v%d" % (C_VB, sr(S_T1), t))
    e("s_and_b32 %s, %s, 3" % (sr(S_T2), sr(S_WV)))
    for q in range(1, 4):
        e("s_cmp_eq_u32 %s, %d" % (sr(S_T2), q))
        e("s_cbranch_scc1 L_conv%d" % q)
    for q in range(4):
        L.append("L_conv%d:" % q)
        TB_, TS = 7 - q, q
        nb, ns = 4 * TB_ + 4, 4 * TS + 4
        D = 3
        cnt = []
        def rd(s):
            k = s % 4
            e("ds_read_b64_tr_b16 %s, v%d offset:%d" % (vr(C_A + 4 * k, 2), C_VA, 128 * s + 32))
            e("ds_read_b64_tr_b16 %s, v%d offset:%d" % (vr(C_A + 4 * k + 2, 2), C_VA, 128 * s))
            e("ds_read_b128 %s, v%d offset:%d" % (vr(C_B + 4 * k, 4), C_VB, 32 * (nb - 1 - s)))
            if s < ns:
                e("ds_read_b128 %s, v%d offset:%d" % (vr(C_B2 + 4 * k, 4), C_VB, 32 * (ns - 1 - s)))
        nops_ = lambda s: (4 if s < ns else 3) if s < nb else 0
        for s in range(D): rd(s)
        done = 0
        signalled = False
        for s in range(nb):
            k = s % 4
            if not signalled and done >= 16:
                o_signal()
                signalled = True
            else:
                e("s_waitcnt lgkmcnt(%d)" % sum(nops_(x) for x in range(s + 1, s + D)))
            e("v_mfma_f32_32x32x16_bf16 %s, %s, %s, %s" % (vr(C_ACC[0], 16), vr(C_A + 4 * k, 4), vr(C_B + 4 * k, 4), "0" if s == 0 else vr(C_ACC[0], 16)))
            done += 1
            if s < ns:
                e("v_mfma_f32_32x32x16_bf16 %s, %s, %s, %s" % (vr(C_ACC[1], 16), vr(C_A + 4 * k, 4), vr(C_B2 + 4 * k, 4), "0" if s == 0 else vr(C_ACC[1], 16)))
                done += 1
            if s + D < nb: rd(s + D)
        if q < 3: e("s_branch L_conv_done")
    L.append("L_conv_done:")
    c("Z partials -> LDS")
    e("s_cmp_ge_u32 %s, 4" % sr(S_WV))
    csel(S_T0, L_Z + 4 * ZS + 144, L_Z + 144)
    e("v_bfe_u32 v%d, v%d, 3, 2" % (t, V_L))
    e("v_mul_u32_u24 v%d, %d, v%d" % (t, ZS, t))
    e("v_and_b32 v%d, 7, v%d" % (t + 2, V_L))
    e("v_mul_u32_u24 v%d, 144, v%d" % (t + 2, t + 2))
    e("v_lshrrev_b32 v%d, 5, v%d" % (t + 1, V_L))
    e("v_lshl_add_u32 v%d, v%d, 4, v%d" % (t + 2, t + 1, t + 2))
    e("v_add3_u32 v%d, v%d, v%d, %s" % (t, t, t + 2, sr(S_T0)))
    e("s_mul_i32 %s, %s, 1152" % (sr(S_T1), sr(S_T2)))
    e("v_add_u32 v%d, %s, v%d" % (t + 1, sr(S_T1), t))
    e("s_sub_u32 %s, %d, %s" % (sr(S_T1), 7 * 1152, sr(S_T1)))
    e("v_add_u32 v%d, %s, v%d" % (t, sr(S_T1), t))
    e("v_mov_b32 v%d, 0" % C_A); e("v_mov_b32 v%d, 0" % (C_A + 1)); e("v_mov_b32 v%d, 0" % (C_A + 2)); e("v_mov_b32 v%d, 0" % (C_A + 3))
    e("v_and_b32 v%d, 7, v%d" % (t + 2, V_L))
    e("v_mul_u32_u24 v%d, %d, v%d" % (t + 2, ZS, t + 2))
    e("v_add_u32 v%d, 0x%x, v%d" % (t + 2, L_Z + 112, t + 2))
    for k in range(4):
        e("ds_write_b128 v%d, %s offset:%d" % (t + 1, vr(C_ACC[1] + 4 * k, 4), 32 * k))
    for k in range(4):
        e("ds_write_b128 v%d, %s offset:%d" % (t, vr(C_ACC[0] + 4 * k, 4), 32 * k))
    e("s_cmp_eq_u32 %s, 0" % sr(S_WV))
    e("s_cbranch_scc0 L_zpad")
    e("ds_write_b128 v%d, %s" % (t + 2, vr(C_A, 4)))
    L.append("L_zpad:")

Y_R = 32
Y_OUT = 64
def conv_epilogue():
    t = VT
    c("y = sum_p Z_p[t-p] + u*D")
    e("s_lshl_b32 %s, %s, 8" % (sr(S_T0), sr(S_WV)))
    e("s_add_u32 %s, %s, 32" % (sr(S_T0), sr(S_T0)))
    for p in range(4):
        e("v_add_u32 v%d, %s, v%d" % (t + 4, sr(S_T0), V_L))
        if p: e("v_subrev_u32 v%d, %d, v%d" % (t + 4, p, t + 4))
        e("v_lshrrev_b32 v%d, 5, v%d" % (t + 5, t + 4))
        e("v_lshlrev_b32 v%d, 2, v%d" % (t + 4, t + 4))
        e("v_lshl_add_u32 v%d, v%d, 4, v%d" % (t + 4, t + 5, t + 4))
        e("v_add_u32 v%d, 0x%x, v%d" % (t + p, L_Z + p * ZS, t + 4))
    e("s_lshl_b32 %s, %s, 16" % (sr(S_D0), sr(S_DS2)))
    e("s_and_b32 %s, %s, 0xffff0000" % (sr(S_D1), sr(S_DS2)))
    e("s_waitcnt lgkmcnt(0)")
    e("s_barrier")
    order = [(i, cl) for i in range(4) for cl in range(2)]
    def rd(n):
        i, cl = order[n]
        for p in range(4):
            e("ds_read_b32 v%d, v%d offset:%d" % (Y_R + 4 * n + p, t + p, cl * 4 * ZS + 288 * i))
    rd(0); rd(1); rd(2)
    for n in range(8):
        i, cl = order[n]
        r = Y_R + 4 * n
        if cl == 0: e("v_lshlrev_b32 v%d, 16, v%d" % (t + 4, V_U + i))
        else: e("v_and_b32 v%d, 0xffff0000, v%d" % (t + 5, V_U + i))
        e("s_waitcnt lgkmcnt(%d)" % (4 * (min(n + 2, 7) - n)))
        if n + 3 < 8: rd(n + 3)
        e("v_add_f32 v%d, v%d, v%d" % (r, r, r + 1))
        e("v_add_f32 v%d, v%d, v%d" % (r + 2, r + 2, r + 3))
        e("v_fma_f32 v%d, v%d, %s, v%d" % (r, t + 4 + cl, sr(S_D0 + cl), r))
        e("v_add_f32 v%d, v%d, v%d" % (r, r, r + 2))
        if cl == 1:
            e("v_cvt_pk_bf16_f32 v%d, v%d, v%d" % (Y_OUT + i, r - 4, r))

def y_stores():
    t = VT + 8
    e("s_lshl_b32 %s, %s, 19" % (sr(S_T0), sr(S_WV)))
    e("s_lshl_b32 %s, %s, 1" % (sr(S_T1), sr(S_C0)))
    e("s_add_u32 %s, %s, %s" % (sr(S_T0), sr(S_T0), sr(S_T1)))
    e("v_lshlrev_b32 v%d, 11, v%d" % (t, V_L))
    for i in range(4):
        e("buffer_store_dword v%d, v%d, %s, %s offen" % (Y_OUT + i, t, sr(R_OUT, 4), sr(S_T0)))
        if i < 3: e("s_add_u32 %s, %s, 0x20000" % (sr(S_T0), sr(S_T0)))

P_W = 128
P_ACC = 72
P_OF = 88
def wo_frags():
    t = VT
    c("Wo fragments -> registers (waves 0..3)")
    e("v_lshrrev_b32 v%d, 5, v%d" % (t, V_L))
    e("v_bfe_u32 v%d, v%d, 2, 2" % (t + 1, V_L))
    e("v_lshl_add_u32 v%d, v%d, 3, v%d" % (t, t, t + 1))
    e("v_lshlrev_b32 v%d, 7, v%d" % (t, t))
    e("v_and_b32 v%d, 1, v%d" % (t + 1, V_L))
    e("v_bfe_u32 v%d, v%d, 4, 1" % (t + 2, V_L))
    e("v_lshl_or_b32 v%d, v%d, 1, v%d" % (t + 1, t + 1, t + 2))
    e("s_and_b32 %s, %s, 2" % (sr(S_T0), sr(S_WV)))
    e("s_lshl_b32 %s, %s, 1" % (sr(S_T0), sr(S_T0)))
    e("v_or_b32 v%d, %s, v%d" % (t + 1, sr(S_T0), t + 1))
    e("v_bfe_u32 v%d, v%d, 3, 1" % (t + 2, V_L))
    e("v_lshlrev_b32 v%d, 2, v%d" % (t + 2, t + 2))
    e("v_xor_b32 v%d, v%d, v%d" % (t + 1, t + 1, t + 2))
    e("v_lshl_add_u32 v%d, v%d, 4, v%d" % (t, t + 1, t))
    e("v_bfe_u32 v%d, v%d, 1, 1" % (t + 2, V_L))
    e("v_lshl_add_u32 v%d, v%d, 3, v%d" % (t, t + 2, t))
    for hh in range(32):
        for tt in range(2):
            e("ds_read_b64_tr_b16 %s, v%d offset:%d" % (vr(P_W + 4 * hh + 2 * tt, 2), t, L_WO + hh * 2048 + tt * 512))

def o_loads():
    c("O tiles -> LDS")
    e("s_lshr_b32 %s, %s, 1" % (sr(S_T0), sr(S_WV)))
    e("s_lshl_b32 %s, %s, 6" % (sr(S_T0), sr(S_T0)))
    e("s_lshl_b32 %s, %s, 3" % (sr(S_T1), sr(S_XQ)))
    e("s_add_u32 %s, %s, %s" % (sr(S_T0), sr(S_T0), sr(S_T1)))
    e("s_lshr_b32 %s, %s, 3" % (sr(S_T1), sr(S_I5)))
    e("s_lshl_b32 %s, %s, 1" % (sr(S_T1), sr(S_T1)))
    e("s_add_u32 %s, %s, %s" % (sr(S_T0), sr(S_T0), sr(S_T1)))
    e("s_and_b32 %s, %s, 1" % (sr(S_T1), sr(S_WV)))
    e("s_add_u32 %s, %s, %s" % (sr(S_T0), sr(S_T0), sr(S_T1)))
    e("s_lshl_b32 %s, %s, 10" % (sr(S_T0), sr(S_T0)))
    e("s_add_u32 %s, %s, 0x%x" % (sr(S_T0), sr(S_T0), WS_O))
    e("s_lshl_b32 %s, %s, 10" % (sr(S_T1), sr(S_WV)))
    for n in range(8):
        e("s_add_u32 m0, %s, %d" % (sr(S_T1), L_O + n * 8192))
        e("s_nop 0")
        e("buffer_load_dwordx4 v%d, %s, %s offen sc1 lds" % (V_L16, sr(R_WS, 4), sr(S_T0)))
        if n < 7: e("s_add_u32 %s, %s, 0x40000" % (sr(S_T0), sr(S_T0)))

def outproj_half(half, va):
    for k in range(8):
        e("ds_read_b128 %s, v%d offset:%d" % (vr(P_OF + 4 * k, 4), va, (16 * half + k) * 2048))
    for k in range(16):
        hh = 16 * half + k
        e("s_waitcnt lgkmcnt(%d)" % (min(k + 7, 15) - k))
        e("v_mfma_f32_32x32x16_bf16 %s, %s, %s, %s" % (vr(P_ACC, 16), vr(P_W + 4 * hh, 4), vr(P_OF + 4 * (k % 8), 4), "0" if hh == 0 else vr(P_ACC, 16)))
        if k + 8 < 16:
            e("ds_read_b128 %s, v%d offset:%d" % (vr(P_OF + 4 * (k % 8), 4), va, (hh + 8) * 2048))

def dump_lds(base, nbytes, wsoff):
    t = VT
    e("s_waitcnt lgkmcnt(0)"); e("s_barrier")
    e("v_lshlrev_b32 v%d, 4, v0" % t)
    e("s_lshl_b32 %s, s2, 18" % sr(S_T0))
    e("s_add_u32 %s, %s, 0x%x" % (sr(S_T0), sr(S_T0), WS_DBG + wsoff))
    for o in range(0, nbytes, 8192):
        e("v_add_u32 v%d, 0x%x, v%d" % (t + 1, base + o, t))
        e("ds_read_b128 %s, v%d" % (vr(t + 2, 4), t + 1))
        e("s_waitcnt lgkmcnt(0)")
        e("buffer_store_dwordx4 %s, v%d, %s, %s offen" % (vr(t + 2, 4), t, sr(R_WS, 4), sr(S_T0)))
        e("s_add_u32 %s, %s, 8192" % (sr(S_T0), sr(S_T0)))
        e("s_waitcnt vmcnt(0)")
    e("s_barrier")

def write_stamps():
    if not OPT["stamps"]: return
    t = VT
    e("s_waitcnt vmcnt(0)")
    stamp()
    e("s_lshl_b32 %s, s2, 3" % sr(S_T0))
    e("s_add_u32 %s, %s, %s" % (sr(S_T0), sr(S_T0), sr(S_WV)))
    e("s_lshl_b32 %s, %s, 7" % (sr(S_T0), sr(S_T0)))
    e("s_add_u32 %s, %s, 0x%x" % (sr(S_T0), sr(S_T0), 0x0c00000))
    e("s_mov_b64 exec, 1")
    e("v_mov_b32 v%d, 0" % t)
    for i in range(nstamp[0]):
        e("v_mov_b32 v%d, %s" % (t + 1, sr(S_ST + 2 * i)))
        e("buffer_store_dword v%d, v%d, %s, %s offen offset:%d" % (t + 1, t, sr(R_WS, 4), sr(S_T0), 4 * i))
        e("s_nop 1")
    e("v_mov_b32 v%d, s100" % (t + 1))
    e("buffer_store_dword v%d, v%d, %s, %s offen offset:%d" % (t + 1, t, sr(R_WS, 4), sr(S_T0), 64))
    e("s_mov_b64 exec, -1")

def main():
    header()
    setup()
    gemm_addr()
    t = VT
    e("s_bfe_u32 %s, %s, 0x10001" % (sr(S_T0), sr(S_WV)))
    e("s_add_u32 %s, %s, %s" % (sr(S_T0), sr(S_T0), sr(S_C0)))
    e("s_lshl_b32 %s, %s, 8" % (sr(S_T0), sr(S_T0)))
    e("s_and_b32 %s, %s, 1" % (sr(S_T1), sr(S_WV)))
    e("s_lshl_b32 %s, %s, 7" % (sr(S_T1), sr(S_T1)))
    e("s_add_u32 %s, %s, %s" % (sr(S_T0), sr(S_T0), sr(S_T1)))
    e("v_lshl_add_u32 v3, v%d, 1, %s" % (V_L, sr(S_T0)))
    e("s_waitcnt lgkmcnt(0)")
    stamp()
    srd(R_X, S_X, 2048 * 1024)
    srd(R_W, S_W, 512 * 3072)
    for i, s in enumerate((S_ARE, S_AIM, S_BRE, S_BIM, S_CRE, S_CIM)):
        e("global_load_ushort v%d, v3, %s" % (V_PAR + i, sr(s, 2)))
    for ci in range(2): gemm_issue(ci)
    e("s_lshl_b32 %s, %s, 1" % (sr(S_T4), sr(S_C0)))
    e("s_load_dword %s, %s, 0" % (sr(S_TAG), sr(S_WS, 2)))
    e("s_load_dword %s, %s, %s" % (sr(S_LD2), sr(S_LDT, 2), sr(S_T4)))
    e("s_load_dword %s, %s, %s" % (sr(S_DS2), sr(S_DSK, 2), sr(S_T4)))
    for ci in range(2, 5): gemm_issue(ci)
    srd(R_WS, S_WS, WS_SIZE)
    srd(R_U, S_U, 2048 * 1024)
    srd(R_OUT, S_OUT, 2048 * 2048)
    srd(R_WO, S_WO, 512 * 1024)
    gemm_read_addr()
    e("s_waitcnt lgkmcnt(0)")
    e("s_add_u32 %s, %s, 1" % (sr(S_TAG), sr(S_TAG)))
    e("s_cmp_ge_u32 %s, 4" % sr(S_WV))
    e("s_cbranch_scc1 L_gemm_nov")
    gemm_loop(True)
    gemm_epilogue(True)
    e("s_branch L_gemm_done")
    L.append("L_gemm_nov:")
    gemm_loop(False)
    gemm_epilogue(False)
    L.append("L_gemm_done:")
    stamp()
    kgen_tables()
    e("s_waitcnt vmcnt(0) lgkmcnt(0)")
    e("s_barrier")
    stamp()
    e("s_cmp_eq_u32 %s, 0" % sr(S_WV))
    e("s_cbranch_scc0 L_nof1")
    e("s_lshl_b32 %s, %s, 5" % (sr(S_T0), sr(S_XQ)))
    e("s_add_u32 %s, %s, %s" % (sr(S_T0), sr(S_T0), sr(S_I5)))
    e("s_lshl_b32 %s, %s, 7" % (sr(S_T0), sr(S_T0)))
    e("s_add_u32 %s, %s, %d" % (sr(S_T0), sr(S_T0), WS_F1))
    flag_store(sr(S_T0))
    L.append("L_nof1:")
    kgen_mfma()
    e("s_cmp_eq_u32 %s, 0" % sr(S_WV))
    e("s_cbranch_scc0 L_nopoll1")
    e("s_lshl_b32 %s, %s, 12" % (sr(S_T0), sr(S_XQ)))
    e("s_add_u32 %s, %s, %d" % (sr(S_T0), sr(S_T0), WS_F1))
    poll("L_poll1", sr(S_T0))
    L.append("L_nopoll1:")
    e("s_waitcnt lgkmcnt(0)")
    e("s_barrier")
    stamp()
    attn_loads()
    attn_addr()
    e("s_waitcnt vmcnt(14)")
    e("s_barrier")
    stamp()
    attn_main()
    attn_check_and_slow()
    stamp()
    attn_publish()
    e("s_waitcnt vmcnt(1)")
    u_stage()
    e("s_waitcnt lgkmcnt(0)")
    e("s_barrier")
    if OPT["dump"]:
        dump_lds(L_KF, 24576, 0)
    wo_loads()
    conv()
    stamp()
    conv_epilogue()
    e("s_waitcnt vmcnt(0)")
    e("s_cmp_eq_u32 %s, 7" % sr(S_WV))
    e("s_cbranch_scc0 L_nopoll2")
    e("s_lshl_b32 %s, %s, 12" % (sr(S_T0), sr(S_XQ)))
    e("s_add_u32 %s, %s, %d" % (sr(S_T0), sr(S_T0), WS_F2))
    poll("L_poll2", sr(S_T0))
    L.append("L_nopoll2:")
    e("s_barrier")
    stamp()
    o_loads()
    y_stores()
    e("s_cmp_ge_u32 %s, 4" % sr(S_WV))
    e("s_cbranch_scc1 L_op_idle")
    wo_frags()
    va = VT + 4
    e("s_and_b32 %s, %s, 1" % (sr(S_T0), sr(S_WV)))
    e("s_lshl_b32 %s, %s, 10" % (sr(S_T0), sr(S_T0)))
    e("s_add_u32 %s, %s, %d" % (sr(S_T0), sr(S_T0), L_O))
    e("v_add_u32 v%d, %s, v%d" % (va, sr(S_T0), V_L16))
    vo = VT + 5
    e("v_and_b32 v%d, 31, v%d" % (vo, V_L))
    e("v_lshlrev_b32 v%d, 11, v%d" % (vo, vo))
    e("v_lshrrev_b32 v%d, 5, v%d" % (vo + 1, V_L))
    e("v_lshl_add_u32 v%d, v%d, 5, v%d" % (vo, vo + 1, vo))
    e("s_lshl_b32 %s, %s, 2" % (sr(S_T0), sr(S_XQ)))
    e("s_lshr_b32 %s, %s, 3" % (sr(S_T1), sr(S_I5)))
    e("s_add_u32 %s, %s, %s" % (sr(S_T0), sr(S_T0), sr(S_T1)))
    e("s_lshl_b32 %s, %s, 1" % (sr(S_T0), sr(S_T0)))
    e("s_and_b32 %s, %s, 1" % (sr(S_T1), sr(S_WV)))
    e("s_add_u32 %s, %s, %s" % (sr(S_T0), sr(S_T0), sr(S_T1)))
    e("s_lshl_b32 %s, %s, 16" % (sr(S_T0), sr(S_T0)))
    e("s_and_b32 %s, %s, 7" % (sr(S_T1), sr(S_I5)))
    e("s_lshl_b32 %s, %s, 7" % (sr(S_T1), sr(S_T1)))
    e("s_add_u32 %s, %s, %s" % (sr(S_T0), sr(S_T0), sr(S_T1)))
    e("s_and_b32 %s, %s, 2" % (sr(S_T1), sr(S_WV)))
    e("s_lshl_b32 %s, %s, 5" % (sr(S_T1), sr(S_T1)))
    e("s_add_u32 %s, %s, %s" % (sr(S_T0), sr(S_T0), sr(S_T1)))
    e("s_add_u32 %s, %s, 1024" % (sr(S_T5), sr(S_T0)))
    e("s_waitcnt vmcnt(8) lgkmcnt(0)")
    e("s_barrier")
    outproj_half(0, va)
    e("s_waitcnt vmcnt(4)")
    e("s_barrier")
    outproj_half(1, va)
    nop(12)
    for i in range(8):
        e("v_cvt_pk_bf16_f32 v%d, v%d, v%d" % (P_OF + i, P_ACC + 2 * i, P_ACC + 2 * i + 1))
    e("buffer_store_dwordx4 %s, v%d, %s, %s offen" % (vr(P_OF, 4), vo, sr(R_OUT, 4), sr(S_T5)))
    e("buffer_store_dwordx4 %s, v%d, %s, %s offen offset:16" % (vr(P_OF + 4, 4), vo, sr(R_OUT, 4), sr(S_T5)))
    e("s_branch L_fin")
    L.append("L_op_idle:")
    e("s_waitcnt vmcnt(8)")
    e("s_barrier")
    e("s_waitcnt vmcnt(4)")
    e("s_barrier")
    e("s_cmp_eq_u32 s2, 0")
    e("s_cbranch_scc0 L_fin")
    e("s_cmp_eq_u32 %s, 7" % sr(S_WV))
    e("s_cbranch_scc0 L_fin")
    flag_store("0")
    L.append("L_fin:")
    write_stamps()
    footer(256)
    open(sys.argv[1], "w").write("\n".join(L) + "\n")

main()
```

```python
import sys, struct, math

NAME = "concat_heads__ssm_conv_s4__softmax_full_mha__prompt"
OPT = dict(stamps=0, dump=0, stop="", forceslow=0, dbgspan=0)
for a in sys.argv[2:]:
    k, v = a.split("=")
    OPT[k] = int(v) if v.lstrip("-").isdigit() else v

L = []
def e(s=""):
    L.append("    " + s if s and not s.endswith(":") and not s.startswith(";") else s)
def c(s): L.append("    ; " + s)
def f2u(x): return struct.unpack("<I", struct.pack("<f", x))[0]
def fl(x): return "0x%08x" % f2u(x)
def vr(a, n=1): return "v%d" % a if n == 1 else "v[%d:%d]" % (a, a + n - 1)
def sr(a, n=1): return "s%d" % a if n == 1 else "s[%d:%d]" % (a, a + n - 1)
def nop(n):
    while n > 0:
        k = min(n, 16); e("s_nop %d" % (k - 1)); n -= k

WS_EPOCH = 0
WS_F1 = 4096
WS_F2 = 40960
WS_Q = 0x100000
WS_K = 0x300000
WS_V = 0x500000
WS_O = 0x700000
WS_DBG = 0x1000000
WS_SIZE = 0x10000000
LDS_TOTAL = 163840
L_K = 0
L_V = 65536
L_MISC = 146240
L_KF = 146304
L_UP = 154624
L_TB = 0
L_TA = 33792
L_WO = 0
L_Z = 65536
ZS = 9360
L_O = 65536
S_U, S_ARE, S_AIM, S_BRE, S_BIM, S_CRE, S_CIM, S_LDT = 8, 10, 12, 14, 16, 18, 20, 22
S_DSK, S_X, S_W, S_WO, S_OUT, S_DBG, S_WS = 24, 26, 28, 30, 32, 34, 36
R_X, R_W, R_WS, R_U, R_OUT, R_WO = 40, 44, 48, 52, 56, 60
S_XQ, S_I5, S_WV, S_TAG, S_LD2, S_DS2 = 64, 65, 66, 67, 68, 69
S_H, S_J, S_C0 = 70, 71, 72
S_T0, S_T1, S_T2, S_T3, S_T4, S_T5 = 73, 74, 75, 76, 77, 78
S_CNT = 79
S_M0, S_M1 = 4, 6
S_D0, S_D1 = 38, 39
S_ST = 80
nstamp = [0]
def stamp():
    if OPT["stamps"]:
        e("s_waitcnt lgkmcnt(0)")
        e("s_memtime %s" % sr(S_ST + 2 * nstamp[0], 2))
        e("s_waitcnt lgkmcnt(0)")
        nstamp[0] += 1
def srd(r, base, size):
    e("s_mov_b32 %s, %s" % (sr(r), sr(base)))
    e("s_and_b32 %s, %s, 0xffff" % (sr(r + 1), sr(base + 1)))
    e("s_mov_b32 %s, 0x%x" % (sr(r + 2), size))
    e("s_mov_b32 %s, 0x00020000" % sr(r + 3))

def csel(dst, a, b):
    e("s_mov_b32 %s, %d" % (sr(dst), b))
    e("s_cselect_b32 %s, %d, %s" % (sr(dst), a, sr(dst)))

LOG2E = math.log2(math.e)

V_TID, V_L = 0, 1
V_L16 = 2
V_PAR = 4
V_U = 10
VT = 14

def header():
    L.append("; fused S4 long-conv (part A) + multi-head attention (part B), one persistent launch, 256 WGs x 8 waves")
    L.append("; @launch grid=(256,1,1) block=(512,1,1) lds=%d" % LDS_TOTAL)
    L.append('.amdgcn_target "amdgcn-amd-amdhsa--gfx950"')
    L.append(".text")
    L.append(".globl %s_kernel" % NAME)
    L.append(".p2align 8")
    L.append(".type %s_kernel,@function" % NAME)
    L.append("%s_kernel:" % NAME)

def footer(nv):
    L.append("L_end:")
    e("s_endpgm")
    L.append('.section .rodata,"a"')
    L.append(".p2align 6")
    L.append(".amdhsa_kernel %s_kernel" % NAME)
    L.append("  .amdhsa_next_free_vgpr %d" % nv)
    L.append("  .amdhsa_next_free_sgpr 102")
    L.append("  .amdhsa_accum_offset %d" % nv)
    L.append("  .amdhsa_group_segment_fixed_size 0")
    L.append("  .amdhsa_kernarg_size 120")
    L.append("  .amdhsa_user_sgpr_count 2")
    L.append("  .amdhsa_user_sgpr_kernarg_segment_ptr 1")
    L.append("  .amdhsa_system_sgpr_workgroup_id_x 1")
    L.append(".end_amdhsa_kernel")

def dma(vaddr, rsrc, soff, ldsaddr_s, sc1=False):
    e("s_mov_b32 m0, %s" % ldsaddr_s) if ldsaddr_s is not None else None
    e("s_nop 0")
    e("buffer_load_dwordx4 %s, %s, %s offen%s lds" % (vr(vaddr), sr(rsrc, 4), soff, " sc1" if sc1 else ""))

def setup():
    c("---- setup ----")
    e("s_cmp_ge_u32 s2, 256")
    e("s_cbranch_scc1 L_end")
    e("s_load_dwordx8 s[24:31], s[0:1], 64")
    e("s_load_dwordx16 s[8:23], s[0:1], 0")
    e("s_load_dwordx4 s[32:35], s[0:1], 96")
    e("s_load_dwordx2 s[36:37], s[0:1], 112")
    if OPT["stamps"] or OPT["dbgspan"]:
        e("s_memrealtime s[100:101]")
    if OPT["dbgspan"]:
        e("s_memtime s[98:99]")
    e("v_and_b32 v%d, 63, v0" % V_L)
    e("v_lshrrev_b32 v%d, 6, v0" % VT)
    e("v_lshlrev_b32 v%d, 4, v%d" % (V_L16, V_L))
    e("v_readfirstlane_b32 %s, v%d" % (sr(S_WV), VT))
    e("s_and_b32 %s, s2, 7" % sr(S_XQ))
    e("s_lshr_b32 %s, s2, 3" % sr(S_I5))
    e("s_and_b32 %s, %s, 3" % (sr(S_T0), sr(S_I5)))
    e("s_lshl_b32 %s, %s, 2" % (sr(S_H), sr(S_XQ)))
    e("s_add_u32 %s, %s, %s" % (sr(S_H), sr(S_H), sr(S_T0)))
    e("s_lshr_b32 %s, %s, 2" % (sr(S_J), sr(S_I5)))
    e("s_lshl_b32 %s, %s, 5" % (sr(S_C0), sr(S_XQ)))
    e("s_add_u32 %s, %s, %s" % (sr(S_C0), sr(S_C0), sr(S_I5)))
    e("s_lshl_b32 %s, %s, 1" % (sr(S_C0), sr(S_C0)))

G_VX, G_VWQ, G_VWK, G_VWV = 32, 33, 34, 35
G_XA = 36
G_WA, G_VA = 40, 41
G_XC = 42
G_WC, G_VC = 46, 47
G_ACCQK = 48
G_ACCV = 64
G_XF = 80
G_WF = 96
G_VF = 112

def gemm_addr():
    t = VT
    c("GEMM DMA voffsets")
    e("v_lshrrev_b32 v%d, 3, v%d" % (t, V_L))
    e("v_and_b32 v%d, 7, v%d" % (t + 1, V_L))
    e("v_lshrrev_b32 v%d, 4, v%d" % (t + 2, V_L))
    e("s_lshl_b32 %s, %s, 3" % (sr(S_T0), sr(S_WV)))
    e("v_add_u32 v%d, %s, v%d" % (t + 3, sr(S_T0), t))
    e("v_bfe_u32 v%d, v%d, 1, 3" % (t + 4, t + 3))
    e("v_xor_b32 v%d, v%d, v%d" % (t + 4, t + 4, t + 1))
    e("v_lshlrev_b32 v%d, 4, v%d" % (t + 4, t + 4))
    e("s_lshl_b32 %s, %s, 16" % (sr(S_T1), sr(S_I5)))
    e("v_lshl_add_u32 v%d, v%d, 10, v%d" % (G_VX, t + 3, t + 4))
    e("v_add_u32 v%d, %s, v%d" % (G_VX, sr(S_T1), G_VX))
    e("v_and_b32 v%d, 1, v%d" % (t + 2, t + 2))
    e("v_mul_u32_u24 v%d, 3072, v%d" % (t + 5, t + 3))
    e("s_lshl_b32 %s, %s, 7" % (sr(S_T1), sr(S_XQ)))
    e("v_add_u32 v%d, %s, v%d" % (t + 5, sr(S_T1), t + 5))
    e("v_lshlrev_b32 v%d, 1, v%d" % (t + 6, t + 2))
    e("v_xor_b32 v%d, v%d, v%d" % (t + 6, t + 6, t + 1))
    e("v_lshl_add_u32 v%d, v%d, 4, v%d" % (G_VWQ, t + 6, t + 5))
    e("v_xor_b32 v%d, 4, v%d" % (t + 6, t + 6))
    e("v_lshl_add_u32 v%d, v%d, 4, v%d" % (G_VWK, t + 6, t + 5))
    e("v_add_u32 v%d, 1024, v%d" % (G_VWK, G_VWK))
    e("v_lshlrev_b32 v%d, 2, v%d" % (t + 6, t + 2))
    e("v_xor_b32 v%d, v%d, v%d" % (t + 6, t + 6, t + 1))
    e("v_lshl_add_u32 v%d, v%d, 4, v%d" % (G_VWV, t + 6, t + 5))
    e("v_add_u32 v%d, 2048, v%d" % (G_VWV, G_VWV))

def gemm_issue(cidx):
    slot = cidx % 5
    e("s_add_u32 %s, %s, %d" % (sr(S_T0), sr(S_I5), cidx))
    e("s_and_b32 %s, %s, 7" % (sr(S_T0), sr(S_T0)))
    e("s_lshl_b32 %s, %s, 7" % (sr(S_T1), sr(S_T0)))
    e("s_mul_i32 %s, %s, 196608" % (sr(S_T2), sr(S_T0)))
    e("s_lshl_b32 %s, %s, 10" % (sr(S_T3), sr(S_WV)))
    for g, (va, rs, so) in enumerate(((G_VX, R_X, S_T1), (G_VWQ, R_W, S_T2), (G_VWK, R_W, S_T2), (G_VWV, R_W, S_T2))):
        e("s_add_u32 m0, %s, %d" % (sr(S_T3), slot * 32768 + g * 8192))
        e("s_nop 0")
        e("buffer_load_dwordx4 %s, %s, %s offen lds" % (vr(va), sr(rs, 4), sr(so)))

def pi_tok(dst, src, t):
    e("v_and_b32 v%d, 0x13, v%d" % (dst, src))
    e("v_bfe_u32 v%d, v%d, 2, 1" % (t, src))
    e("v_lshl_or_b32 v%d, v%d, 3, v%d" % (dst, t, dst))
    e("v_bfe_u32 v%d, v%d, 3, 1" % (t, src))
    e("v_lshl_or_b32 v%d, v%d, 2, v%d" % (dst, t, dst))

def gemm_read_addr():
    t = VT
    c("GEMM LDS fragment read addresses")
    pi_tok(t, V_L, t + 1)
    e("s_and_b32 %s, %s, 1" % (sr(S_T0), sr(S_WV)))
    e("s_lshl_b32 %s, %s, 5" % (sr(S_T0), sr(S_T0)))
    e("v_add_u32 v%d, %s, v%d" % (t, sr(S_T0), t))
    e("v_lshrrev_b32 v%d, 5, v%d" % (t + 1, V_L))
    e("v_bfe_u32 v%d, v%d, 1, 3" % (t + 2, t))
    e("v_xor_b32 v%d, v%d, v%d" % (t + 2, t + 2, t + 1))
    e("v_lshlrev_b32 v%d, 4, v%d" % (t + 2, t + 2))
    e("v_lshl_add_u32 v%d, v%d, 7, v%d" % (G_XA, t, t + 2))
    for s in range(1, 4):
        e("v_xor_b32 v%d, %d, v%d" % (G_XA + s, 32 * s, G_XA))
    e("v_bfe_u32 v%d, v%d, 2, 2" % (t + 2, V_L))
    e("v_lshl_add_u32 v%d, v%d, 3, v%d" % (t + 3, t + 1, t + 2))
    e("v_lshlrev_b32 v%d, 7, v%d" % (t + 3, t + 3))
    e("v_bfe_u32 v%d, v%d, 4, 1" % (t + 4, V_L))
    e("v_bfe_u32 v%d, v%d, 3, 1" % (t + 5, V_L))
    e("v_and_b32 v%d, 1, v%d" % (t + 6, V_L))
    e("v_bfe_u32 v%d, v%d, 1, 1" % (t + 7, V_L))
    e("s_and_b32 %s, %s, 6" % (sr(S_T0), sr(S_WV)))
    e("v_or_b32 v%d, %s, v%d" % (t + 8, sr(S_T0), t + 6))
    e("v_lshl_or_b32 v%d, v%d, 1, v%d" % (t + 9, t + 4, t + 5))
    e("v_lshlrev_b32 v%d, 1, v%d" % (t + 9, t + 9))
    e("v_xor_b32 v%d, v%d, v%d" % (t + 8, t + 8, t + 9))
    e("v_lshl_add_u32 v%d, v%d, 4, v%d" % (t + 8, t + 8, t + 3))
    e("v_lshl_add_u32 v%d, v%d, 3, v%d" % (t + 8, t + 7, t + 8))
    e("v_lshl_add_u32 v%d, v%d, 13, v%d" % (t + 8, t + 4, t + 8))
    e("v_add_u32 v%d, 8192, v%d" % (G_WA, t + 8))
    e("s_and_b32 %s, %s, 2" % (sr(S_T0), sr(S_WV)))
    e("s_lshl_b32 %s, %s, 1" % (sr(S_T0), sr(S_T0)))
    e("v_lshl_or_b32 v%d, v%d, 1, v%d" % (t + 8, t + 4, t + 7))
    e("v_or_b32 v%d, %s, v%d" % (t + 8, sr(S_T0), t + 8))
    e("v_lshlrev_b32 v%d, 2, v%d" % (t + 9, t + 5))
    e("v_xor_b32 v%d, v%d, v%d" % (t + 8, t + 8, t + 9))
    e("v_lshl_add_u32 v%d, v%d, 4, v%d" % (t + 8, t + 8, t + 3))
    e("v_lshl_add_u32 v%d, v%d, 3, v%d" % (t + 8, t + 6, t + 8))
    e("v_add_u32 v%d, 24576, v%d" % (G_VA, t + 8))

def gemm_loop(withv):
    waits = [16, 12, 12, 12, 12, 8, 4, 0]
    for ci in range(8):
        slot = ci % 5
        base = slot * 32768
        c("chunk %d" % ci)
        for s in range(4):
            e("v_add_u32 v%d, 0x%x, v%d" % (G_XC + s, base, G_XA + s))
        e("v_add_u32 v%d, 0x%x, v%d" % (G_WC, base, G_WA))
        if withv:
            e("v_add_u32 v%d, 0x%x, v%d" % (G_VC, base, G_VA))
        e("s_waitcnt vmcnt(%d)" % waits[ci])
        e("s_barrier")
        def reads(s):
            e("ds_read_b128 %s, v%d" % (vr(G_XF + 4 * s, 4), G_XC + s))
            for t in range(2):
                e("ds_read_b64_tr_b16 %s, v%d offset:%d" % (vr(G_WF + 4 * s + 2 * t, 2), G_WC, (16 * s + 4 * t) * 128))
            if withv:
                for t in range(2):
                    e("ds_read_b64_tr_b16 %s, v%d offset:%d" % (vr(G_VF + 4 * s + 2 * t, 2), G_VC, (16 * s + 4 * t) * 128))
        n = 5 if withv else 3
        reads(0); reads(1)
        if 1 <= ci <= 3:
            gemm_issue(ci + 4)
        for s in range(4):
            if s + 2 < 4:
                reads(s + 2)
            rem = (min(s + 2, 3) - s) * n
            cq = "0" if (ci == 0 and s == 0) else vr(G_ACCQK, 16)
            cv = "0" if (ci == 0 and s == 0) else vr(G_ACCV, 16)
            e("s_waitcnt lgkmcnt(%d)" % rem)
            e("v_mfma_f32_32x32x16_bf16 %s, %s, %s, %s" % (vr(G_ACCQK, 16), vr(G_WF + 4 * s, 4), vr(G_XF + 4 * s, 4), cq))
            if withv:
                e("v_mfma_f32_32x32x16_bf16 %s, %s, %s, %s" % (vr(G_ACCV, 16), vr(G_XF + 4 * s, 4), vr(G_VF + 4 * s, 4), cv))

def gemm_epilogue(withv):
    t = VT
    c("GEMM epilogue: publish Q,K(,V)")
    pi_tok(t, V_L, t + 1)
    e("v_lshrrev_b32 v%d, 5, v%d" % (t + 1, V_L))
    e("v_lshlrev_b32 v%d, 4, v%d" % (t, t))
    e("v_lshl_add_u32 v%d, v%d, 9, v%d" % (t, t + 1, t))
    e("s_lshr_b32 %s, %s, 1" % (sr(S_T0), sr(S_WV)))
    e("s_lshl_b32 %s, %s, 2" % (sr(S_T1), sr(S_XQ)))
    e("s_add_u32 %s, %s, %s" % (sr(S_T0), sr(S_T0), sr(S_T1)))
    e("s_lshl_b32 %s, %s, 6" % (sr(S_T0), sr(S_T0)))
    e("s_and_b32 %s, %s, 1" % (sr(S_T2), sr(S_WV)))
    e("s_lshl_b32 %s, %s, 1" % (sr(S_T3), sr(S_I5)))
    e("s_add_u32 %s, %s, %s" % (sr(S_T2), sr(S_T2), sr(S_T3)))
    e("s_add_u32 %s, %s, %s" % (sr(S_T0), sr(S_T0), sr(S_T2)))
    e("s_lshl_b32 %s, %s, 10" % (sr(S_T0), sr(S_T0)))
    e("s_add_u32 %s, %s, 0x%x" % (sr(S_T3), sr(S_T0), WS_K))
    e("s_add_u32 %s, %s, 0x%x" % (sr(S_T0), sr(S_T0), WS_Q))
    if withv:
        e("v_and_b32 v%d, 15, v%d" % (t + 2, V_L))
        e("v_lshlrev_b32 v%d, 4, v%d" % (t + 2, t + 2))
        e("v_lshl_add_u32 v%d, v%d, 8, v%d" % (t + 2, t + 1, t + 2))
        e("v_bfe_u32 v%d, v%d, 4, 1" % (t + 3, V_L))
        e("v_lshl_add_u32 v%d, v%d, 16, v%d" % (t + 2, t + 3, t + 2))
        e("s_and_b32 %s, %s, 2" % (sr(S_T4), sr(S_WV)))
        e("s_add_u32 %s, %s, %s" % (sr(S_T4), sr(S_T4), sr(S_T1)))
        e("s_lshl_b32 %s, %s, 6" % (sr(S_T4), sr(S_T4)))
        e("s_add_u32 %s, %s, %s" % (sr(S_T4), sr(S_T4), sr(S_T2)))
        e("s_lshl_b32 %s, %s, 10" % (sr(S_T4), sr(S_T4)))
        e("s_add_u32 %s, %s, 0x%x" % (sr(S_T4), sr(S_T4), WS_V))
    else:
        nop(4)
    nop(2)
    P = G_XF
    for i in range(4):
        e("v_cvt_pk_bf16_f32 v%d, v%d, v%d" % (P + i, G_ACCQK + 8 + 2 * i, G_ACCQK + 9 + 2 * i))
    e("buffer_store_dwordx4 %s, v%d, %s, %s offen sc1" % (vr(P, 4), t, sr(R_WS, 4), sr(S_T3)))
    if withv:
        for i in range(8):
            e("v_cvt_pk_bf16_f32 v%d, v%d, v%d" % (P + 8 + i, G_ACCV + 2 * i, G_ACCV + 1 + 2 * i))
        e("buffer_store_dwordx4 %s, v%d, %s, %s offen sc1" % (vr(P + 8, 4), t + 2, sr(R_WS, 4), sr(S_T4)))
        e("buffer_store_dwordx4 %s, v%d, %s, %s offen offset:512 sc1" % (vr(P + 12, 4), t + 2, sr(R_WS, 4), sr(S_T4)))
    for i in range(8):
        e("v_mul_f32 v%d, %s, v%d" % (G_ACCQK + i, fl(0.25 * LOG2E), G_ACCQK + i))
    for i in range(4):
        e("v_cvt_pk_bf16_f32 v%d, v%d, v%d" % (P + 4 + i, G_ACCQK + 2 * i, G_ACCQK + 1 + 2 * i))
    e("buffer_store_dwordx4 %s, v%d, %s, %s offen sc1" % (vr(P + 4, 4), t, sr(R_WS, 4), sr(S_T0)))

def cmul(d, a, b):
    e("v_pk_mul_f32 %s, %s, %s op_sel:[0,0] op_sel_hi:[1,0]" % (vr(d, 2), vr(a, 2), vr(b, 2)))
    e("v_pk_fma_f32 %s, %s, %s, %s op_sel:[1,1,0] op_sel_hi:[0,1,1] neg_lo:[1,0,0]" % (vr(d, 2), vr(a, 2), vr(b, 2), vr(d, 2)))
def cmul_multi(lst):
    for d, a, b in lst:
        e("v_pk_mul_f32 %s, %s, %s op_sel:[0,0] op_sel_hi:[1,0]" % (vr(d, 2), vr(a, 2), vr(b, 2)))
    for d, a, b in lst:
        e("v_pk_fma_f32 %s, %s, %s, %s op_sel:[1,1,0] op_sel_hi:[0,1,1] neg_lo:[1,0,0]" % (vr(d, 2), vr(a, 2), vr(b, 2), vr(d, 2)))
def cexp(d, va, vb, Lf, t):
    e("v_mul_f32 v%d, %s, v%d" % (t, fl(Lf), va))
    e("v_mul_f32 v%d, %s, v%d" % (t + 1, fl(Lf), vb))
    e("v_fract_f32 v%d, v%d" % (t + 1, t + 1))
    e("v_exp_f32 v%d, v%d" % (t, t))
    e("v_cos_f32 v%d, v%d" % (d, t + 1))
    e("v_sin_f32 v%d, v%d" % (d + 1, t + 1))
    e("s_nop 0")
    e("v_pk_mul_f32 %s, %s, %s op_sel:[0,0] op_sel_hi:[1,0]" % (vr(d, 2), vr(d, 2), vr(t, 2)))

KB = 32
def kgen_tables():
    t = VT
    c("---- S4 kernel generation: mode tables ----")
    va, vb, vdt, vad = t, t + 1, t + 2, t + 3
    e("s_bitcmp1_b32 %s, 1" % sr(S_WV))
    e("s_cselect_b32 %s, 0, 16" % sr(S_T0))
    e("s_lshl_b32 %s, %s, %s" % (sr(S_T0), sr(S_LD2), sr(S_T0)))
    e("s_and_b32 %s, %s, 0xffff0000" % (sr(S_T0), sr(S_T0)))
    e("v_mov_b32 v%d, %s" % (vdt, fl(LOG2E)))
    e("v_mul_f32 v%d, %s, v%d" % (vdt, sr(S_T0), vdt))
    e("v_exp_f32 v%d, v%d" % (vdt, vdt))
    for i in range(6):
        e("v_lshlrev_b32 v%d, 16, v%d" % (V_PAR + i, V_PAR + i))
    e("v_cvt_pk_bf16_f32 v%d, v%d, v%d" % (vdt, vdt, vdt))
    e("v_and_b32 v%d, 0xffff0000, v%d" % (vdt, vdt))
    e("v_mul_f32 v%d, v%d, v%d" % (va, vdt, V_PAR + 0))
    e("v_mul_f32 v%d, v%d, v%d" % (vb, vdt, V_PAR + 1))
    e("v_mul_f32 v%d, %s, v%d" % (va, fl(LOG2E), va))
    e("s_and_b32 %s, %s, 1" % (sr(S_T1), sr(S_WV)))
    e("s_lshl_b32 %s, %s, 8" % (sr(S_T1), sr(S_T1)))
    e("v_lshl_add_u32 v%d, v%d, 2, %s" % (vad, V_L, sr(S_T1)))
    e("s_cmp_ge_u32 %s, 4" % sr(S_WV))
    e("s_cbranch_scc1 L_kg_A")
    e("v_mul_f32 v%d, %s, v%d" % (vb, fl(1.0 / (2 * math.pi)), vb))
    e("s_bitcmp1_b32 %s, 1" % sr(S_WV))
    csel(S_T1, L_TB + 16896, L_TB)
    e("v_add_u32 v%d, %s, v%d" % (vad, sr(S_T1), vad))
    P = lambda j: KB + 2 * j
    G = lambda g: KB + 16 + 2 * g
    X = KB + 24
    cv = KB + 40
    def put(row, pr, k):
        e("v_cvt_pk_bf16_f32 v%d, v%d, v%d" % (cv + k, pr, pr + 1))
        e("ds_write_b32 v%d, v%d offset:%d" % (vad, cv + k, row * 528))
    cexp(P(1), va, vb, 8.0, t + 4)
    cexp(G(1), va, vb, 64.0, t + 6)
    e("v_mov_b32 v%d, 0x3f80" % (cv + 7))
    e("ds_write_b32 v%d, v%d" % (vad, cv + 7))
    cmul_multi([(P(2), P(1), P(1)), (G(2), G(1), G(1))])
    put(1, P(1), 0); put(8, G(1), 1)
    cmul_multi([(P(3), P(2), P(1)), (P(4), P(2), P(2)), (G(3), G(2), G(1))])
    put(2, P(2), 2); put(16, G(2), 3)
    cmul_multi([(P(5), P(4), P(1)), (P(6), P(4), P(2)), (P(7), P(4), P(3))])
    put(3, P(3), 0); put(4, P(4), 1); put(24, G(3), 2)
    put(5, P(5), 3); put(6, P(6), 4); put(7, P(7), 5)
    for g in range(1, 4):
        cmul_multi([(X + 2 * j, P(j), G(g)) for j in range(1, 8)])
        for j in range(1, 8):
            put(8 * g + j, X + 2 * j, j)
    e("s_branch L_kg_done")
    L.append("L_kg_A:")
    e("v_mul_f32 v%d, %s, v%d" % (vb, fl(-1.0 / (2 * math.pi)), vb))
    e("s_bitcmp1_b32 %s, 1" % sr(S_WV))
    csel(S_T1, L_TA + 14256, L_TA)
    e("v_add_u32 v%d, %s, v%d" % (vad, sr(S_T1), vad))
    E = lambda j: KB + 2 * j
    Q = lambda j: KB + 18 + 2 * j
    H = lambda g: KB + 36 + 2 * g
    X = KB + 52
    cv = KB + 64
    cexp(E(1), va, vb, 1.0, t + 4)
    cexp(H(1), va, vb, 256.0, t + 6)
    e("v_mul_f32 v%d, v%d, v%d" % (X, vdt, V_PAR + 2))
    e("v_mul_f32 v%d, -v%d, v%d" % (X + 1, vdt, V_PAR + 3))
    e("v_mov_b32 v%d, v%d" % (X + 2, V_PAR + 4))
    e("v_mul_f32 v%d, -1.0, v%d" % (X + 3, V_PAR + 5))
    cmul_multi([(Q(0), X, X + 2), (E(2), E(1), E(1)), (H(2), H(1), H(1))])
    cmul_multi([(E(3), E(2), E(1)), (E(4), E(2), E(2)), (H(3), H(2), H(1)), (H(4), H(2), H(2))])
    put(0, Q(0), 0)
    cmul_multi([(E(5), E(4), E(1)), (E(6), E(4), E(2)), (E(7), E(4), E(3)), (E(8), E(4), E(4)),
                (H(5), H(4), H(1)), (H(6), H(4), H(2)), (H(7), H(4), H(3))])
    cmul_multi([(Q(j), Q(0), E(j)) for j in range(1, 9)])
    for j in range(1, 8):
        put(j, Q(j), j)
    cmul_multi([(X + 2 * i, H(1), Q(2 * i)) for i in range(5)])
    for i in range(5): put(8 + i, X + 2 * i, i)
    for g, r0 in ((2, 13), (3, 16)):
        cmul_multi([(X + 2 * i, H(g), Q(4 * i)) for i in range(3)])
        for i in range(3): put(r0 + i, X + 2 * i, i)
    for g in (4, 6):
        cmul_multi([(X, H(g), Q(0)), (X + 2, H(g), Q(8)), (X + 4, H(g + 1), Q(0)), (X + 6, H(g + 1), Q(8))])
        for i in range(4): put(19 + 2 * (g - 4) + i, X + 2 * i, i)
    L.append("L_kg_done:")

def rowmap(region, ei):
    if region == 0: return ei
    if region == 1: return 8 + [0, 0, 1, 2, 2, 2, 3, 4][ei]
    if region in (2, 3): return (13 if region == 2 else 16) + [0, 0, 0, 1, 1, 1, 2, 2][ei]
    return 19 + 2 * (region - 4) + [0, 0, 0, 0, 0, 1, 1, 1][ei]

def kgen_mfma():
    t = VT
    c("---- S4 kernel generation: K = A-table x B-table ----")
    vX, vY, vB = t, t + 1, t + 2
    def packs(rh, yy):
        return [sum(rowmap(4 * rh + g, 4 * yy + r) << (8 * r) for r in range(4)) for g in range(4)]
    e("v_bfe_u32 v%d, v%d, 2, 2" % (t + 3, V_L))
    e("v_and_b32 v%d, 3, v%d" % (t + 4, V_L))
    e("v_lshlrev_b32 v%d, 3, v%d" % (t + 4, t + 4))
    e("v_cmp_eq_u32 s[4:5], 1, v%d" % (t + 3))
    e("v_cmp_eq_u32 s[6:7], 2, v%d" % (t + 3))
    e("v_cmp_eq_u32 vcc, 3, v%d" % (t + 3))
    e("s_bitcmp1_b32 %s, 0" % sr(S_WV))
    for yy, dst in ((0, vX), (1, vY)):
        p0, p1 = packs(0, yy), packs(1, yy)
        for g in range(4):
            e("s_mov_b32 %s, 0x%x" % (sr(S_T1), p0[g]))
            e("s_cselect_b32 %s, 0x%x, %s" % (sr(S_T1), p1[g], sr(S_T1)))
            if g == 0:
                e("v_mov_b32 v%d, %s" % (dst, sr(S_T1)))
            else:
                e("v_mov_b32 v%d, %s" % (t + 5, sr(S_T1)))
                e("v_cndmask_b32 v%d, v%d, v%d, %s" % (dst, dst, t + 5, ["", "s[4:5]", "s[6:7]", "vcc"][g]))
        e("v_lshrrev_b32 v%d, v%d, v%d" % (dst, t + 4, dst))
        e("v_and_b32 v%d, 0xff, v%d" % (dst, dst))
        e("v_mul_u32_u24 v%d, 528, v%d" % (dst, dst))
    e("v_lshrrev_b32 v%d, 4, v%d" % (t + 3, V_L))
    e("s_cmp_ge_u32 %s, 4" % sr(S_WV))
    csel(S_T0, L_TA + 14256, L_TA)
    csel(S_T1, L_TB + 16896, L_TB)
    csel(S_T2, L_KF + 4160 + 64, L_KF + 64)
    e("v_lshl_add_u32 v%d, v%d, 4, %s" % (t + 5, t + 3, sr(S_T0)))
    e("v_add_u32 v%d, v%d, v%d" % (vX, vX, t + 5))
    e("v_add_u32 v%d, v%d, v%d" % (vY, vY, t + 5))
    e("s_bitcmp1_b32 %s, 1" % sr(S_WV))
    e("s_cselect_b32 %s, 16, 0" % sr(S_T3))
    e("v_and_b32 v%d, 15, v%d" % (t + 6, V_L))
    e("v_add_u32 v%d, %s, v%d" % (t + 6, sr(S_T3), t + 6))
    e("v_mul_u32_u24 v%d, 528, v%d" % (vB, t + 6))
    e("v_lshl_add_u32 v%d, v%d, 4, %s" % (t + 5, t + 3, sr(S_T1)))
    e("v_add_u32 v%d, v%d, v%d" % (vB, vB, t + 5))
    e("s_and_b32 %s, %s, 1" % (sr(S_T3), sr(S_WV)))
    e("s_lshl_b32 %s, %s, 11" % (sr(S_T3), sr(S_T3)))
    e("s_add_u32 %s, %s, %s" % (sr(S_T2), sr(S_T2), sr(S_T3)))
    e("v_lshl_add_u32 v%d, v%d, 9, %s" % (t + 7, t + 3, sr(S_T2)))
    e("v_lshl_add_u32 v%d, v%d, 4, v%d" % (t + 7, t + 6, t + 7))
    FX, FY, FB = KB, KB + 32, KB + 64
    AX, AY = KB + 96, KB + 100
    def rd(s):
        e("ds_read_b128 %s, v%d offset:%d" % (vr(FB + 4 * s, 4), vB, 64 * s))
        e("ds_read_b128 %s, v%d offset:%d" % (vr(FX + 4 * s, 4), vX, 64 * s))
        e("ds_read_b128 %s, v%d offset:%d" % (vr(FY + 4 * s, 4), vY, 64 * s))
    for s in range(4): rd(s)
    for s in range(8):
        ahead = min(s + 3, 7) - s
        e("s_waitcnt lgkmcnt(%d)" % (3 * ahead))
        e("v_mfma_f32_16x16x32_bf16 %s, %s, %s, %s" % (vr(AX, 4), vr(FX + 4 * s, 4), vr(FB + 4 * s, 4), "0" if s == 0 else vr(AX, 4)))
        e("v_mfma_f32_16x16x32_bf16 %s, %s, %s, %s" % (vr(AY, 4), vr(FY + 4 * s, 4), vr(FB + 4 * s, 4), "0" if s == 0 else vr(AY, 4)))
        if s + 4 < 8: rd(s + 4)
    c("pads: V ones, K front zeros, u front zeros")
    e("v_mov_b32 v%d, 0x3f803f80" % FB)
    e("v_mov_b32 v%d, 0x3f803f80" % (FB + 1))
    e("v_mov_b32 v%d, 0x3f803f80" % (FB + 2))
    e("v_mov_b32 v%d, 0x3f803f80" % (FB + 3))
    e("v_mov_b32 v%d, 0" % (FB + 4))
    e("v_mov_b32 v%d, 0" % (FB + 5))
    e("v_mov_b32 v%d, 0" % (FB + 6))
    e("v_mov_b32 v%d, 0" % (FB + 7))
    e("v_and_b32 v%d, 1, v%d" % (t + 8, V_L))
    e("v_cmp_eq_u32 vcc, 0, v%d" % (t + 8))
    e("s_bitcmp1_b32 %s, 0" % sr(S_WV))
    e("s_cbranch_scc0 L_kg_nofix")
    e("v_cndmask_b32 v%d, v%d, v%d, vcc" % (AY, AY + 1, AX + 3))
    L.append("L_kg_nofix:")
    e("v_cvt_pk_bf16_f32 v%d, v%d, v%d" % (FX, AX, AX + 1))
    e("v_cvt_pk_bf16_f32 v%d, v%d, v%d" % (FX + 1, AX + 2, AX + 3))
    e("v_cvt_pk_bf16_f32 v%d, v%d, v%d" % (FX + 2, AY, AY + 1))
    e("v_cvt_pk_bf16_f32 v%d, v%d, v%d" % (FX + 3, AY + 2, AY + 3))
    e("ds_write_b128 v%d, %s" % (t + 7, vr(FX, 4)))
    e("s_cmp_eq_u32 %s, 1" % sr(S_WV))
    e("s_cbranch_scc0 L_pad1")
    e("v_mul_u32_u24 v%d, 1040, v%d" % (t + 8, V_L))
    e("v_add_u32 v%d, 0x%x, v%d" % (t + 8, L_V + 1024, t + 8))
    e("ds_write_b128 v%d, %s" % (t + 8, vr(FB, 4)))
    L.append("L_pad1:")
    e("s_cmp_eq_u32 %s, 2" % sr(S_WV))
    e("s_cbranch_scc0 L_pad2")
    e("v_lshrrev_b32 v%d, 3, v%d" % (t + 8, V_L))
    e("v_mul_u32_u24 v%d, 1152, v%d" % (t + 8, t + 8))
    e("v_and_b32 v%d, 7, v%d" % (t + 9, V_L))
    e("v_lshl_add_u32 v%d, v%d, 4, v%d" % (t + 8, t + 9, t + 8))
    e("v_add_u32 v%d, 0x%x, v%d" % (t + 8, L_UP, t + 8))
    e("ds_write_b128 v%d, %s" % (t + 8, vr(FB + 4, 4)))
    L.append("L_pad2:")
    e("s_cmp_eq_u32 %s, 3" % sr(S_WV))
    e("s_cbranch_scc0 L_pad3")
    e("v_bfe_u32 v%d, v%d, 2, 1" % (t + 8, V_L))
    e("v_mul_u32_u24 v%d, 4160, v%d" % (t + 8, t + 8))
    e("v_and_b32 v%d, 3, v%d" % (t + 9, V_L))
    e("v_lshl_add_u32 v%d, v%d, 4, v%d" % (t + 8, t + 9, t + 8))
    e("v_add_u32 v%d, 0x%x, v%d" % (t + 8, L_KF, t + 8))
    e("ds_write_b128 v%d, %s" % (t + 8, vr(FB + 4, 4)))
    e("v_mov_b32 v%d, 0x%x" % (t + 8, L_MISC))
    e("ds_write_b128 v%d, %s" % (t + 8, vr(FB + 4, 4)))
    L.append("L_pad3:")

def flag_store(soff_s):
    t = VT
    e("v_mov_b32 v%d, 0" % t)
    e("v_mov_b32 v%d, %s" % (t + 1, sr(S_TAG)))
    e("s_mov_b64 exec, 1")
    e("buffer_store_dword v%d, v%d, %s, %s offen sc1" % (t + 1, t, sr(R_WS, 4), soff_s))
    e("s_mov_b64 exec, -1")

def poll(label, soff_s):
    t = VT
    e("v_lshlrev_b32 v%d, 7, v%d" % (t, V_L))
    e("s_mov_b32 %s, 0" % sr(S_CNT))
    e("s_mov_b32 exec_hi, 0")
    L.append(label + ":")
    e("buffer_load_dword v%d, v%d, %s, %s offen sc1" % (t + 1, t, sr(R_WS, 4), soff_s))
    e("s_add_u32 %s, %s, 1" % (sr(S_CNT), sr(S_CNT)))
    e("s_waitcnt vmcnt(0)")
    e("v_cmp_ne_u32 vcc, %s, v%d" % (sr(S_TAG), t + 1))
    e("s_cmp_gt_u32 %s, 0x4000" % sr(S_CNT))
    e("s_cbranch_scc1 %s_done" % label)
    e("s_cmp_lg_u64 vcc, 0")
    e("s_cbranch_scc1 %s" % label)
    L.append(label + "_done:")
    e("s_mov_b64 exec, -1")

A_Q = 32
A_S = [36, 52]
A_O = 68
A_KF = [84, 88]
A_VA = [92, 96]
A_VB = [100, 104]
A_IDX = 108
A_KA, A_V0, A_V1 = 109, 110, 111
A_NM = 112

def attn_loads():
    c("---- attention: loads ----")
    e("s_lshl_b32 %s, %s, 16" % (sr(S_T0), sr(S_H)))
    e("s_lshl_b32 %s, %s, 10" % (sr(S_T1), sr(S_WV)))
    e("s_add_u32 %s, %s, %s" % (sr(S_T0), sr(S_T0), sr(S_T1)))
    e("s_lshl_b32 %s, %s, 13" % (sr(S_T2), sr(S_J)))
    e("s_add_u32 %s, %s, %s" % (sr(S_T2), sr(S_T2), sr(S_T0)))
    e("s_add_u32 %s, %s, 0x%x" % (sr(S_T2), sr(S_T2), WS_Q))
    e("buffer_load_dwordx4 %s, v%d, %s, %s offen sc1" % (vr(A_Q, 4), V_L16, sr(R_WS, 4), sr(S_T2)))
    e("s_mul_i32 %s, %s, 1040" % (sr(S_T5), sr(S_WV)))
    for b in range(8):
        e("s_add_u32 %s, %s, %d" % (sr(S_T2), sr(S_J), b))
        e("s_and_b32 %s, %s, 7" % (sr(S_T2), sr(S_T2)))
        e("s_lshl_b32 %s, %s, 13" % (sr(S_T2), sr(S_T2)))
        e("s_add_u32 %s, %s, %s" % (sr(S_T2), sr(S_T2), sr(S_T0)))
        e("s_add_u32 %s, %s, 0x%x" % (sr(S_T3), sr(S_T2), WS_K))
        e("s_add_u32 %s, %s, 0x%x" % (sr(S_T4), sr(S_T2), WS_V))
        e("s_add_u32 m0, %s, %d" % (sr(S_T1), L_K + b * 8192))
        e("s_nop 0")
        e("buffer_load_dwordx4 v%d, %s, %s offen sc1 lds" % (V_L16, sr(R_WS, 4), sr(S_T3)))
        e("s_add_u32 m0, %s, %d" % (sr(S_T5), L_V + b * 8320))
        e("s_nop 0")
        e("buffer_load_dwordx4 v%d, %s, %s offen sc1 lds" % (V_L16, sr(R_WS, 4), sr(S_T4)))

def attn_addr():
    t = VT
    e("v_mov_b32 v%d, 0xdddddddd" % A_IDX)
    e("v_mov_b32 v%d, v%d" % (A_KA, V_L16))
    e("v_and_b32 v%d, 15, v%d" % (t, V_L))
    e("v_lshrrev_b32 v%d, 5, v%d" % (t + 1, V_L))
    e("v_lshlrev_b32 v%d, 4, v%d" % (t, t))
    e("v_lshl_add_u32 v%d, v%d, 8, v%d" % (t, t + 1, t))
    e("v_add_u32 v%d, 0x%x, v%d" % (t, L_V, t))
    e("v_add_u32 v%d, 512, v%d" % (t + 1, t))
    e("v_mov_b32 v%d, 0x%x" % (t + 2, L_V + 1024))
    e("v_and_b32 v%d, 16, v%d" % (t + 3, V_L))
    e("v_cmp_eq_u32 vcc, 0, v%d" % (t + 3))
    for i in range(16):
        e("v_mov_b32 v%d, 0" % (A_O + i))
    e("v_cndmask_b32 v%d, v%d, v%d, vcc" % (A_V0, t + 2, t))
    e("v_cndmask_b32 v%d, v%d, v%d, vcc" % (A_V1, t + 2, t + 1))

def u_loads():
    t = VT
    c("u loads (2 channels, t = 256w + 64i + l)")
    e("s_lshl_b32 %s, %s, 18" % (sr(S_T0), sr(S_WV)))
    e("s_lshl_b32 %s, %s, 1" % (sr(S_T1), sr(S_C0)))
    e("s_add_u32 %s, %s, %s" % (sr(S_T0), sr(S_T0), sr(S_T1)))
    e("v_lshlrev_b32 v%d, 10, v%d" % (t, V_L))
    for i in range(4):
        e("buffer_load_dword v%d, v%d, %s, %s offen" % (V_U + i, t, sr(R_U, 4), sr(S_T0)))
        if i < 3: e("s_add_u32 %s, %s, 0x10000" % (sr(S_T0), sr(S_T0)))

def attn_main():
    c("---- attention main loop ----")
    def rdK(i, off):
        e("ds_read_b128 %s, v%d offset:%d" % (vr(A_KF[i & 1], 4), A_KA, off * 1024))
    def rdVa(i, off):
        e("ds_read_b128 %s, v%d offset:%d" % (vr(A_VA[i & 1], 4), A_V0, off * 1040))
    def rdVb(i, off):
        e("ds_read_b128 %s, v%d offset:%d" % (vr(A_VB[i & 1], 4), A_V1, off * 1040))
    def qk(i):
        e("v_mfma_f32_32x32x16_bf16 %s, %s, %s, 0" % (vr(A_S[i & 1], 16), vr(A_KF[i & 1], 4), vr(A_Q, 4)))
    def pv(i, half):
        a = (A_VA if half == 0 else A_VB)[i & 1]
        e("v_smfmac_f32_32x32x32_bf16 %s, %s, %s, v%d" % (vr(A_O, 16), vr(a, 4), vr(A_S[i & 1] + 8 * half, 8), A_IDX))
    def ex(i, lo, hi):
        for k in range(lo, hi):
            e("v_exp_f32 v%d, v%d" % (A_S[i & 1] + k, A_S[i & 1] + k))
    rdK(0, 0); rdK(1, 1); rdVa(0, 0); rdVb(0, 0)
    for k in range(8): e("v_mov_b32 v%d, 0" % (A_S[1] + 8 + k))
    for k in range(4): e("v_mov_b32 v%d, 0" % (A_VB[1] + k))
    e("s_mov_b32 %s, 0" % sr(S_CNT))
    e("s_waitcnt lgkmcnt(3)")
    qk(0)
    nop(12)
    L.append("L_attn:")
    for i in range(8):
        c("tile %d" % i)
        if i == 6:
            e("s_cmp_lg_u32 %s, 0" % sr(S_CNT))
            e("s_cbranch_scc1 L_attn_nosync")
            e("s_waitcnt vmcnt(0)")
            e("s_barrier")
            u_loads()
            L.append("L_attn_nosync:")
        ex(i, 0, 2)
        pv(i - 1, 1)
        ex(i, 2, 5)
        e("s_waitcnt lgkmcnt(2)")
        qk(i + 1)
        rdK(i + 2, i + 2)
        ex(i, 5, 10)
        e("s_waitcnt lgkmcnt(2)")
        pv(i, 0)
        rdVa(i + 1, i + 1)
        rdVb(i + 1, i + 1)
        if i == 7:
            e("v_add_u32 v%d, 0x2000, v%d" % (A_KA, A_KA))
            e("v_add_u32 v%d, 8320, v%d" % (A_V0, A_V0))
            e("v_add_u32 v%d, 8320, v%d" % (A_V1, A_V1))
            e("s_add_u32 %s, %s, 1" % (sr(S_CNT), sr(S_CNT)))
            e("s_cmp_lt_u32 %s, 8" % sr(S_CNT))
        ex(i, 10, 16)
        e("s_waitcnt lgkmcnt(3)")
    e("s_cbranch_scc1 L_attn")
    e("s_nop 1")
    pv(7, 1)
    e("s_waitcnt lgkmcnt(0)")
    nop(12)

def attn_check_and_slow():
    t = VT
    c("---- softmax guard: the fast path used shift 0; fall back to the true row max if that was unsafe ----")
    e("v_mul_f32 v%d, 0, v%d" % (t, A_O))
    for i in range(1, 8):
        e("v_fma_f32 v%d, v%d, 0, v%d" % (t, A_O + i, t))
    e("v_cmp_nle_f32 vcc, %s, v%d" % (fl(2.0 ** -40), A_O + 8))
    e("v_mov_b32 v%d, %s" % (t + 1, fl(2.0 ** 100)))
    e("v_cmp_nle_f32 s[4:5], v%d, v%d" % (A_O + 8, t + 1))
    e("v_cmp_neq_f32 s[6:7], 0, v%d" % t)
    e("s_or_b64 vcc, vcc, s[4:5]")
    e("s_or_b64 vcc, vcc, s[6:7]")
    if OPT["forceslow"]:
        e("s_mov_b64 vcc, -1")
    e("s_cmp_eq_u64 vcc, 0")
    e("s_cbranch_scc1 L_attn_ok")
    c("slow path pass 1: true row max")
    S = A_S[0]
    e("v_mov_b32 v%d, v%d" % (A_KA, V_L16))
    e("v_mov_b32 v%d, 0xff800000" % t)
    e("s_mov_b32 %s, 0" % sr(S_CNT))
    L.append("L_slow1:")
    e("ds_read_b128 %s, v%d" % (vr(A_KF[0], 4), A_KA))
    e("v_add_u32 v%d, 1024, v%d" % (A_KA, A_KA))
    e("s_waitcnt lgkmcnt(0)")
    e("v_mfma_f32_32x32x16_bf16 %s, %s, %s, 0" % (vr(S, 16), vr(A_KF[0], 4), vr(A_Q, 4)))
    nop(12)
    for k in range(0, 16, 2):
        e("v_max3_f32 v%d, v%d, v%d, v%d" % (t, t, S + k, S + k + 1))
    e("s_add_u32 %s, %s, 1" % (sr(S_CNT), sr(S_CNT)))
    e("s_cmp_lt_u32 %s, 64" % sr(S_CNT))
    e("s_cbranch_scc1 L_slow1")
    e("v_mov_b32 v%d, v%d" % (t + 1, t))
    e("s_nop 1")
    e("v_permlane32_swap_b32 v%d, v%d" % (t, t + 1))
    e("s_nop 1")
    e("v_max_f32 v%d, v%d, v%d" % (t, t, t + 1))
    for k in range(16):
        e("v_mul_f32 v%d, -1.0, v%d" % (A_NM + k, t))
    c("slow path pass 2")
    attn_addr()
    e("s_mov_b32 %s, 0" % sr(S_CNT))
    L.append("L_slow2:")
    e("ds_read_b128 %s, v%d" % (vr(A_KF[0], 4), A_KA))
    e("ds_read_b128 %s, v%d" % (vr(A_VA[0], 4), A_V0))
    e("ds_read_b128 %s, v%d" % (vr(A_VB[0], 4), A_V1))
    e("v_add_u32 v%d, 1024, v%d" % (A_KA, A_KA))
    e("v_add_u32 v%d, 1040, v%d" % (A_V0, A_V0))
    e("v_add_u32 v%d, 1040, v%d" % (A_V1, A_V1))
    e("s_waitcnt lgkmcnt(0)")
    e("v_mfma_f32_32x32x16_bf16 %s, %s, %s, %s" % (vr(S, 16), vr(A_KF[0], 4), vr(A_Q, 4), vr(A_NM, 16)))
    nop(12)
    for k in range(16):
        e("v_exp_f32 v%d, v%d" % (S + k, S + k))
    e("s_nop 1")
    e("v_smfmac_f32_32x32x32_bf16 %s, %s, %s, v%d" % (vr(A_O, 16), vr(A_VA[0], 4), vr(S, 8), A_IDX))
    e("v_smfmac_f32_32x32x32_bf16 %s, %s, %s, v%d" % (vr(A_O, 16), vr(A_VB[0], 4), vr(S + 8, 8), A_IDX))
    e("s_add_u32 %s, %s, 1" % (sr(S_CNT), sr(S_CNT)))
    e("s_cmp_lt_u32 %s, 64" % sr(S_CNT))
    e("s_cbranch_scc1 L_slow2")
    nop(12)
    L.append("L_attn_ok:")

def attn_publish():
    t = VT
    c("normalise and publish O")
    e("v_rcp_f32 v%d, v%d" % (t, A_O + 8))
    e("s_lshl_b32 %s, %s, 3" % (sr(S_T0), sr(S_H)))
    e("s_add_u32 %s, %s, %s" % (sr(S_T0), sr(S_T0), sr(S_J)))
    e("s_lshl_b32 %s, %s, 3" % (sr(S_T0), sr(S_T0)))
    e("s_add_u32 %s, %s, %s" % (sr(S_T0), sr(S_T0), sr(S_WV)))
    e("s_lshl_b32 %s, %s, 10" % (sr(S_T0), sr(S_T0)))
    e("s_add_u32 %s, %s, 0x%x" % (sr(S_T0), sr(S_T0), WS_O))
    for i in range(8):
        e("v_mul_f32 v%d, v%d, v%d" % (A_O + i, A_O + i, t))
    P = A_S[0]
    for i in range(4):
        e("v_cvt_pk_bf16_f32 v%d, v%d, v%d" % (P + i, A_O + 2 * i, A_O + 2 * i + 1))
    e("s_nop 1")
    e("v_permlane32_swap_b32 v%d, v%d" % (P, P + 2))
    e("v_permlane32_swap_b32 v%d, v%d" % (P + 1, P + 3))
    e("buffer_store_dwordx4 %s, v%d, %s, %s offen sc1" % (vr(P, 4), V_L16, sr(R_WS, 4), sr(S_T0)))

def u_stage():
    t = VT
    c("u -> LDS polyphase-4")
    e("v_and_b32 v%d, 3, v%d" % (t, V_L))
    e("v_mul_u32_u24 v%d, 1152, v%d" % (t, t))
    e("v_lshrrev_b32 v%d, 2, v%d" % (t + 1, V_L))
    e("v_lshl_add_u32 v%d, v%d, 1, v%d" % (t, t + 1, t))
    e("s_lshl_b32 %s, %s, 7" % (sr(S_T0), sr(S_WV)))
    e("s_add_u32 %s, %s, %d" % (sr(S_T0), sr(S_T0), L_UP + 128))
    e("v_add_u32 v%d, %s, v%d" % (t, sr(S_T0), t))
    for i in range(4):
        e("ds_write_b16 v%d, v%d offset:%d" % (t, V_U + i, 32 * i))
        e("ds_write_b16_d16_hi v%d, v%d offset:%d" % (t, V_U + i, 4608 + 32 * i))

def wo_loads():
    t = VT
    c("Wo slice -> LDS")
    e("v_lshrrev_b32 v%d, 3, v%d" % (t, V_L))
    e("v_and_b32 v%d, 7, v%d" % (t + 1, V_L))
    e("v_bfe_u32 v%d, v%d, 4, 1" % (t + 2, V_L))
    e("v_lshlrev_b32 v%d, 2, v%d" % (t + 2, t + 2))
    e("v_xor_b32 v%d, v%d, v%d" % (t + 1, t + 1, t + 2))
    e("v_lshlrev_b32 v%d, 4, v%d" % (t + 1, t + 1))
    e("v_lshl_add_u32 v%d, v%d, 10, v%d" % (t, t, t + 1))
    e("s_and_b32 %s, %s, 7" % (sr(S_T0), sr(S_I5)))
    e("s_lshl_b32 %s, %s, 7" % (sr(S_T0), sr(S_T0)))
    e("s_lshl_b32 %s, %s, 13" % (sr(S_T1), sr(S_WV)))
    e("s_add_u32 %s, %s, %s" % (sr(S_T0), sr(S_T0), sr(S_T1)))
    e("s_lshl_b32 %s, %s, 10" % (sr(S_T1), sr(S_WV)))
    for n in range(8):
        e("s_add_u32 m0, %s, %d" % (sr(S_T1), L_WO + n * 8192))
        e("s_nop 0")
        e("buffer_load_dwordx4 v%d, %s, %s offen lds" % (t, sr(R_WO, 4), sr(S_T0)))
        if n < 7: e("s_add_u32 %s, %s, 0x10000" % (sr(S_T0), sr(S_T0)))

C_ACC = [32, 48]
C_A = 64
C_B = 80
C_B2 = 96
C_VA, C_VB, C_VB2 = 112, 113, 114

def o_signal():
    t = VT
    lab = "L_osig%d" % len(L)
    e("s_waitcnt vmcnt(8)")
    e("v_mov_b32 v%d, 0x%x" % (t + 2, L_MISC))
    e("v_mov_b32 v%d, 1" % (t + 3))
    e("s_mov_b64 exec, 1")
    e("ds_add_rtn_u32 v%d, v%d, v%d" % (t + 3, t + 2, t + 3))
    e("s_mov_b64 exec, -1")
    e("s_waitcnt lgkmcnt(0)")
    e("v_readfirstlane_b32 %s, v%d" % (sr(S_T0), t + 3))
    e("s_cmp_eq_u32 %s, 7" % sr(S_T0))
    e("s_cbranch_scc0 %s" % lab)
    e("s_lshl_b32 %s, %s, 5" % (sr(S_T0), sr(S_J)))
    e("s_add_u32 %s, %s, %s" % (sr(S_T0), sr(S_T0), sr(S_H)))
    e("s_lshl_b32 %s, %s, 7" % (sr(S_T0), sr(S_T0)))
    e("s_add_u32 %s, %s, %d" % (sr(S_T0), sr(S_T0), WS_F2))
    flag_store(sr(S_T0))
    L.append(lab + ":")

def conv():
    t = VT
    c("---- causal conv as Toeplitz MFMA ----")
    e("s_cmp_ge_u32 %s, 4" % sr(S_WV))
    csel(S_T0, L_KF + 4160 + 64 + 64 - 32, L_KF + 64 + 64 - 32)
    csel(S_T1, L_UP + 4608, L_UP)
    e("v_bfe_u32 v%d, v%d, 4, 1" % (t, V_L))
    e("v_and_b32 v%d, 3, v%d" % (t + 1, V_L))
    e("v_lshl_add_u32 v%d, v%d, 2, v%d" % (t, t, t + 1))
    e("v_lshrrev_b32 v%d, 5, v%d" % (t + 1, V_L))
    e("v_bfe_u32 v%d, v%d, 2, 2" % (t + 2, V_L))
    e("v_lshl_add_u32 v%d, v%d, 3, v%d" % (t + 2, t + 1, t + 2))
    e("v_sub_u32 v%d, v%d, v%d" % (t, t, t + 2))
    e("v_lshlrev_b32 v%d, 3, v%d" % (t, t))
    e("v_add_u32 v%d, %s, v%d" % (C_VA, sr(S_T0), t))
    e("v_bfe_u32 v%d, v%d, 3, 2" % (t, V_L))
    e("v_mul_u32_u24 v%d, 1152, v%d" % (t, t))
    e("v_and_b32 v%d, 7, v%d" % (t + 2, V_L))
    e("v_add_u32 v%d, v%d, v%d" % (t + 2, t + 2, t + 1))
    e("v_lshl_add_u32 v%d, v%d, 4, v%d" % (t, t + 2, t))
    e("s_add_u32 %s, %s, 16" % (sr(S_T1), sr(S_T1)))
    e("v_add_u32 v%d, %s, v%d" % (C_VB, sr(S_T1), t))
    e("s_and_b32 %s, %s, 3" % (sr(S_T2), sr(S_WV)))
    for q in range(1, 4):
        e("s_cmp_eq_u32 %s, %d" % (sr(S_T2), q))
        e("s_cbranch_scc1 L_conv%d" % q)
    for q in range(4):
        L.append("L_conv%d:" % q)
        TB_, TS = 7 - q, q
        nb, ns = 4 * TB_ + 4, 4 * TS + 4
        D = 3
        cnt = []
        def rd(s):
            k = s % 4
            e("ds_read_b64_tr_b16 %s, v%d offset:%d" % (vr(C_A + 4 * k, 2), C_VA, 128 * s + 32))
            e("ds_read_b64_tr_b16 %s, v%d offset:%d" % (vr(C_A + 4 * k + 2, 2), C_VA, 128 * s))
            e("ds_read_b128 %s, v%d offset:%d" % (vr(C_B + 4 * k, 4), C_VB, 32 * (nb - 1 - s)))
            if s < ns:
                e("ds_read_b128 %s, v%d offset:%d" % (vr(C_B2 + 4 * k, 4), C_VB, 32 * (ns - 1 - s)))
        nops_ = lambda s: (4 if s < ns else 3) if s < nb else 0
        for s in range(D): rd(s)
        done = 0
        signalled = False
        for s in range(nb):
            k = s % 4
            if not signalled and done >= 16:
                o_signal()
                signalled = True
            else:
                e("s_waitcnt lgkmcnt(%d)" % sum(nops_(x) for x in range(s + 1, s + D)))
            e("v_mfma_f32_32x32x16_bf16 %s, %s, %s, %s" % (vr(C_ACC[0], 16), vr(C_A + 4 * k, 4), vr(C_B + 4 * k, 4), "0" if s == 0 else vr(C_ACC[0], 16)))
            done += 1
            if s < ns:
                e("v_mfma_f32_32x32x16_bf16 %s, %s, %s, %s" % (vr(C_ACC[1], 16), vr(C_A + 4 * k, 4), vr(C_B2 + 4 * k, 4), "0" if s == 0 else vr(C_ACC[1], 16)))
                done += 1
            if s + D < nb: rd(s + D)
        if q < 3: e("s_branch L_conv_done")
    L.append("L_conv_done:")
    c("Z partials -> LDS")
    e("s_cmp_ge_u32 %s, 4" % sr(S_WV))
    csel(S_T0, L_Z + 4 * ZS + 144, L_Z + 144)
    e("v_bfe_u32 v%d, v%d, 3, 2" % (t, V_L))
    e("v_mul_u32_u24 v%d, %d, v%d" % (t, ZS, t))
    e("v_and_b32 v%d, 7, v%d" % (t + 2, V_L))
    e("v_mul_u32_u24 v%d, 144, v%d" % (t + 2, t + 2))
    e("v_lshrrev_b32 v%d, 5, v%d" % (t + 1, V_L))
    e("v_lshl_add_u32 v%d, v%d, 4, v%d" % (t + 2, t + 1, t + 2))
    e("v_add3_u32 v%d, v%d, v%d, %s" % (t, t, t + 2, sr(S_T0)))
    e("s_mul_i32 %s, %s, 1152" % (sr(S_T1), sr(S_T2)))
    e("v_add_u32 v%d, %s, v%d" % (t + 1, sr(S_T1), t))
    e("s_sub_u32 %s, %d, %s" % (sr(S_T1), 7 * 1152, sr(S_T1)))
    e("v_add_u32 v%d, %s, v%d" % (t, sr(S_T1), t))
    e("v_mov_b32 v%d, 0" % C_A); e("v_mov_b32 v%d, 0" % (C_A + 1)); e("v_mov_b32 v%d, 0" % (C_A + 2)); e("v_mov_b32 v%d, 0" % (C_A + 3))
    e("v_and_b32 v%d, 7, v%d" % (t + 2, V_L))
    e("v_mul_u32_u24 v%d, %d, v%d" % (t + 2, ZS, t + 2))
    e("v_add_u32 v%d, 0x%x, v%d" % (t + 2, L_Z + 112, t + 2))
    for k in range(4):
        e("ds_write_b128 v%d, %s offset:%d" % (t + 1, vr(C_ACC[1] + 4 * k, 4), 32 * k))
    for k in range(4):
        e("ds_write_b128 v%d, %s offset:%d" % (t, vr(C_ACC[0] + 4 * k, 4), 32 * k))
    e("s_cmp_eq_u32 %s, 0" % sr(S_WV))
    e("s_cbranch_scc0 L_zpad")
    e("ds_write_b128 v%d, %s" % (t + 2, vr(C_A, 4)))
    L.append("L_zpad:")

Y_R = 32
Y_OUT = 64
def conv_epilogue():
    t = VT
    c("y = sum_p Z_p[t-p] + u*D")
    e("s_lshl_b32 %s, %s, 8" % (sr(S_T0), sr(S_WV)))
    e("s_add_u32 %s, %s, 32" % (sr(S_T0), sr(S_T0)))
    for p in range(4):
        e("v_add_u32 v%d, %s, v%d" % (t + 4, sr(S_T0), V_L))
        if p: e("v_subrev_u32 v%d, %d, v%d" % (t + 4, p, t + 4))
        e("v_lshrrev_b32 v%d, 5, v%d" % (t + 5, t + 4))
        e("v_lshlrev_b32 v%d, 2, v%d" % (t + 4, t + 4))
        e("v_lshl_add_u32 v%d, v%d, 4, v%d" % (t + 4, t + 5, t + 4))
        e("v_add_u32 v%d, 0x%x, v%d" % (t + p, L_Z + p * ZS, t + 4))
    e("s_lshl_b32 %s, %s, 16" % (sr(S_D0), sr(S_DS2)))
    e("s_and_b32 %s, %s, 0xffff0000" % (sr(S_D1), sr(S_DS2)))
    e("s_waitcnt lgkmcnt(0)")
    e("s_barrier")
    order = [(i, cl) for i in range(4) for cl in range(2)]
    def rd(n):
        i, cl = order[n]
        for p in range(4):
            e("ds_read_b32 v%d, v%d offset:%d" % (Y_R + 4 * n + p, t + p, cl * 4 * ZS + 288 * i))
    rd(0); rd(1); rd(2)
    for n in range(8):
        i, cl = order[n]
        r = Y_R + 4 * n
        if cl == 0: e("v_lshlrev_b32 v%d, 16, v%d" % (t + 4, V_U + i))
        else: e("v_and_b32 v%d, 0xffff0000, v%d" % (t + 5, V_U + i))
        e("s_waitcnt lgkmcnt(%d)" % (4 * (min(n + 2, 7) - n)))
        if n + 3 < 8: rd(n + 3)
        e("v_add_f32 v%d, v%d, v%d" % (r, r, r + 1))
        e("v_add_f32 v%d, v%d, v%d" % (r + 2, r + 2, r + 3))
        e("v_fma_f32 v%d, v%d, %s, v%d" % (r, t + 4 + cl, sr(S_D0 + cl), r))
        e("v_add_f32 v%d, v%d, v%d" % (r, r, r + 2))
        if cl == 1:
            e("v_cvt_pk_bf16_f32 v%d, v%d, v%d" % (Y_OUT + i, r - 4, r))

def y_stores():
    t = VT + 8
    e("s_lshl_b32 %s, %s, 19" % (sr(S_T0), sr(S_WV)))
    e("s_lshl_b32 %s, %s, 1" % (sr(S_T1), sr(S_C0)))
    e("s_add_u32 %s, %s, %s" % (sr(S_T0), sr(S_T0), sr(S_T1)))
    e("v_lshlrev_b32 v%d, 11, v%d" % (t, V_L))
    for i in range(4):
        e("buffer_store_dword v%d, v%d, %s, %s offen" % (Y_OUT + i, t, sr(R_OUT, 4), sr(S_T0)))
        if i < 3: e("s_add_u32 %s, %s, 0x20000" % (sr(S_T0), sr(S_T0)))

P_W = 128
P_ACC = 72
P_OF = 88
def wo_frags():
    t = VT
    c("Wo fragments -> registers (waves 0..3)")
    e("v_lshrrev_b32 v%d, 5, v%d" % (t, V_L))
    e("v_bfe_u32 v%d, v%d, 2, 2" % (t + 1, V_L))
    e("v_lshl_add_u32 v%d, v%d, 3, v%d" % (t, t, t + 1))
    e("v_lshlrev_b32 v%d, 7, v%d" % (t, t))
    e("v_and_b32 v%d, 1, v%d" % (t + 1, V_L))
    e("v_bfe_u32 v%d, v%d, 4, 1" % (t + 2, V_L))
    e("v_lshl_or_b32 v%d, v%d, 1, v%d" % (t + 1, t + 1, t + 2))
    e("s_and_b32 %s, %s, 2" % (sr(S_T0), sr(S_WV)))
    e("s_lshl_b32 %s, %s, 1" % (sr(S_T0), sr(S_T0)))
    e("v_or_b32 v%d, %s, v%d" % (t + 1, sr(S_T0), t + 1))
    e("v_bfe_u32 v%d, v%d, 3, 1" % (t + 2, V_L))
    e("v_lshlrev_b32 v%d, 2, v%d" % (t + 2, t + 2))
    e("v_xor_b32 v%d, v%d, v%d" % (t + 1, t + 1, t + 2))
    e("v_lshl_add_u32 v%d, v%d, 4, v%d" % (t, t + 1, t))
    e("v_bfe_u32 v%d, v%d, 1, 1" % (t + 2, V_L))
    e("v_lshl_add_u32 v%d, v%d, 3, v%d" % (t, t + 2, t))
    for hh in range(32):
        for tt in range(2):
            e("ds_read_b64_tr_b16 %s, v%d offset:%d" % (vr(P_W + 4 * hh + 2 * tt, 2), t, L_WO + hh * 2048 + tt * 512))

def o_loads():
    c("O tiles -> LDS")
    e("s_lshr_b32 %s, %s, 1" % (sr(S_T0), sr(S_WV)))
    e("s_lshl_b32 %s, %s, 6" % (sr(S_T0), sr(S_T0)))
    e("s_lshl_b32 %s, %s, 3" % (sr(S_T1), sr(S_XQ)))
    e("s_add_u32 %s, %s, %s" % (sr(S_T0), sr(S_T0), sr(S_T1)))
    e("s_lshr_b32 %s, %s, 3" % (sr(S_T1), sr(S_I5)))
    e("s_lshl_b32 %s, %s, 1" % (sr(S_T1), sr(S_T1)))
    e("s_add_u32 %s, %s, %s" % (sr(S_T0), sr(S_T0), sr(S_T1)))
    e("s_and_b32 %s, %s, 1" % (sr(S_T1), sr(S_WV)))
    e("s_add_u32 %s, %s, %s" % (sr(S_T0), sr(S_T0), sr(S_T1)))
    e("s_lshl_b32 %s, %s, 10" % (sr(S_T0), sr(S_T0)))
    e("s_add_u32 %s, %s, 0x%x" % (sr(S_T0), sr(S_T0), WS_O))
    e("s_lshl_b32 %s, %s, 10" % (sr(S_T1), sr(S_WV)))
    for n in range(8):
        e("s_add_u32 m0, %s, %d" % (sr(S_T1), L_O + n * 8192))
        e("s_nop 0")
        e("buffer_load_dwordx4 v%d, %s, %s offen sc1 lds" % (V_L16, sr(R_WS, 4), sr(S_T0)))
        if n < 7: e("s_add_u32 %s, %s, 0x40000" % (sr(S_T0), sr(S_T0)))

def outproj_half(half, va):
    for k in range(8):
        e("ds_read_b128 %s, v%d offset:%d" % (vr(P_OF + 4 * k, 4), va, (16 * half + k) * 2048))
    for k in range(16):
        hh = 16 * half + k
        e("s_waitcnt lgkmcnt(%d)" % (min(k + 7, 15) - k))
        e("v_mfma_f32_32x32x16_bf16 %s, %s, %s, %s" % (vr(P_ACC, 16), vr(P_W + 4 * hh, 4), vr(P_OF + 4 * (k % 8), 4), "0" if hh == 0 else vr(P_ACC, 16)))
        if k + 8 < 16:
            e("ds_read_b128 %s, v%d offset:%d" % (vr(P_OF + 4 * (k % 8), 4), va, (hh + 8) * 2048))

def dump_lds(base, nbytes, wsoff):
    t = VT
    e("s_waitcnt lgkmcnt(0)"); e("s_barrier")
    e("v_lshlrev_b32 v%d, 4, v0" % t)
    e("s_lshl_b32 %s, s2, 18" % sr(S_T0))
    e("s_add_u32 %s, %s, 0x%x" % (sr(S_T0), sr(S_T0), WS_DBG + wsoff))
    for o in range(0, nbytes, 8192):
        e("v_add_u32 v%d, 0x%x, v%d" % (t + 1, base + o, t))
        e("ds_read_b128 %s, v%d" % (vr(t + 2, 4), t + 1))
        e("s_waitcnt lgkmcnt(0)")
        e("buffer_store_dwordx4 %s, v%d, %s, %s offen" % (vr(t + 2, 4), t, sr(R_WS, 4), sr(S_T0)))
        e("s_add_u32 %s, %s, 8192" % (sr(S_T0), sr(S_T0)))
        e("s_waitcnt vmcnt(0)")
    e("s_barrier")

def write_stamps():
    if not OPT["stamps"]: return
    t = VT
    e("s_waitcnt vmcnt(0)")
    stamp()
    e("s_lshl_b32 %s, s2, 3" % sr(S_T0))
    e("s_add_u32 %s, %s, %s" % (sr(S_T0), sr(S_T0), sr(S_WV)))
    e("s_lshl_b32 %s, %s, 7" % (sr(S_T0), sr(S_T0)))
    e("s_add_u32 %s, %s, 0x%x" % (sr(S_T0), sr(S_T0), 0x0c00000))
    e("s_mov_b64 exec, 1")
    e("v_mov_b32 v%d, 0" % t)
    for i in range(nstamp[0]):
        e("v_mov_b32 v%d, %s" % (t + 1, sr(S_ST + 2 * i)))
        e("buffer_store_dword v%d, v%d, %s, %s offen offset:%d" % (t + 1, t, sr(R_WS, 4), sr(S_T0), 4 * i))
        e("s_nop 1")
    e("v_mov_b32 v%d, s100" % (t + 1))
    e("buffer_store_dword v%d, v%d, %s, %s offen offset:%d" % (t + 1, t, sr(R_WS, 4), sr(S_T0), 64))
    e("s_mov_b64 exec, -1")

def main():
    header()
    setup()
    gemm_addr()
    t = VT
    e("s_bfe_u32 %s, %s, 0x10001" % (sr(S_T0), sr(S_WV)))
    e("s_add_u32 %s, %s, %s" % (sr(S_T0), sr(S_T0), sr(S_C0)))
    e("s_lshl_b32 %s, %s, 8" % (sr(S_T0), sr(S_T0)))
    e("s_and_b32 %s, %s, 1" % (sr(S_T1), sr(S_WV)))
    e("s_lshl_b32 %s, %s, 7" % (sr(S_T1), sr(S_T1)))
    e("s_add_u32 %s, %s, %s" % (sr(S_T0), sr(S_T0), sr(S_T1)))
    e("v_lshl_add_u32 v3, v%d, 1, %s" % (V_L, sr(S_T0)))
    e("s_waitcnt lgkmcnt(0)")
    stamp()
    srd(R_X, S_X, 2048 * 1024)
    srd(R_W, S_W, 512 * 3072)
    for i, s in enumerate((S_ARE, S_AIM, S_BRE, S_BIM, S_CRE, S_CIM)):
        e("global_load_ushort v%d, v3, %s" % (V_PAR + i, sr(s, 2)))
    for ci in range(2): gemm_issue(ci)
    e("s_lshl_b32 %s, %s, 1" % (sr(S_T4), sr(S_C0)))
    e("s_load_dword %s, %s, 0" % (sr(S_TAG), sr(S_WS, 2)))
    e("s_load_dword %s, %s, %s" % (sr(S_LD2), sr(S_LDT, 2), sr(S_T4)))
    e("s_load_dword %s, %s, %s" % (sr(S_DS2), sr(S_DSK, 2), sr(S_T4)))
    for ci in range(2, 5): gemm_issue(ci)
    srd(R_WS, S_WS, WS_SIZE)
    srd(R_U, S_U, 2048 * 1024)
    srd(R_OUT, S_OUT, 2048 * 2048)
    srd(R_WO, S_WO, 512 * 1024)
    gemm_read_addr()
    e("s_waitcnt lgkmcnt(0)")
    e("s_add_u32 %s, %s, 1" % (sr(S_TAG), sr(S_TAG)))
    e("s_cmp_ge_u32 %s, 4" % sr(S_WV))
    e("s_cbranch_scc1 L_gemm_nov")
    gemm_loop(True)
    gemm_epilogue(True)
    e("s_branch L_gemm_done")
    L.append("L_gemm_nov:")
    gemm_loop(False)
    gemm_epilogue(False)
    L.append("L_gemm_done:")
    stamp()
    kgen_tables()
    e("s_waitcnt vmcnt(0) lgkmcnt(0)")
    e("s_barrier")
    stamp()
    e("s_cmp_eq_u32 %s, 0" % sr(S_WV))
    e("s_cbranch_scc0 L_nof1")
    e("s_lshl_b32 %s, %s, 5" % (sr(S_T0), sr(S_XQ)))
    e("s_add_u32 %s, %s, %s" % (sr(S_T0), sr(S_T0), sr(S_I5)))
    e("s_lshl_b32 %s, %s, 7" % (sr(S_T0), sr(S_T0)))
    e("s_add_u32 %s, %s, %d" % (sr(S_T0), sr(S_T0), WS_F1))
    flag_store(sr(S_T0))
    L.append("L_nof1:")
    kgen_mfma()
    e("s_cmp_eq_u32 %s, 0" % sr(S_WV))
    e("s_cbranch_scc0 L_nopoll1")
    e("s_lshl_b32 %s, %s, 12" % (sr(S_T0), sr(S_XQ)))
    e("s_add_u32 %s, %s, %d" % (sr(S_T0), sr(S_T0), WS_F1))
    poll("L_poll1", sr(S_T0))
    L.append("L_nopoll1:")
    e("s_waitcnt lgkmcnt(0)")
    e("s_barrier")
    stamp()
    attn_loads()
    attn_addr()
    e("s_waitcnt vmcnt(14)")
    e("s_barrier")
    stamp()
    attn_main()
    attn_check_and_slow()
    stamp()
    attn_publish()
    e("s_waitcnt vmcnt(1)")
    u_stage()
    e("s_waitcnt lgkmcnt(0)")
    e("s_barrier")
    if OPT["dump"]:
        dump_lds(L_KF, 24576, 0)
    wo_loads()
    conv()
    stamp()
    conv_epilogue()
    e("s_waitcnt vmcnt(0)")
    e("s_cmp_eq_u32 %s, 7" % sr(S_WV))
    e("s_cbranch_scc0 L_nopoll2")
    e("s_lshl_b32 %s, %s, 12" % (sr(S_T0), sr(S_XQ)))
    e("s_add_u32 %s, %s, %d" % (sr(S_T0), sr(S_T0), WS_F2))
    poll("L_poll2", sr(S_T0))
    L.append("L_nopoll2:")
    e("s_barrier")
    stamp()
    o_loads()
    y_stores()
    e("s_cmp_ge_u32 %s, 4" % sr(S_WV))
    e("s_cbranch_scc1 L_op_idle")
    wo_frags()
    va = VT + 4
    e("s_and_b32 %s, %s, 1" % (sr(S_T0), sr(S_WV)))
    e("s_lshl_b32 %s, %s, 10" % (sr(S_T0), sr(S_T0)))
    e("s_add_u32 %s, %s, %d" % (sr(S_T0), sr(S_T0), L_O))
    e("v_add_u32 v%d, %s, v%d" % (va, sr(S_T0), V_L16))
    vo = VT + 5
    e("v_and_b32 v%d, 31, v%d" % (vo, V_L))
    e("v_lshlrev_b32 v%d, 11, v%d" % (vo, vo))
    e("v_lshrrev_b32 v%d, 5, v%d" % (vo + 1, V_L))
    e("v_lshl_add_u32 v%d, v%d, 5, v%d" % (vo, vo + 1, vo))
    e("s_lshl_b32 %s, %s, 2" % (sr(S_T0), sr(S_XQ)))
    e("s_lshr_b32 %s, %s, 3" % (sr(S_T1), sr(S_I5)))
    e("s_add_u32 %s, %s, %s" % (sr(S_T0), sr(S_T0), sr(S_T1)))
    e("s_lshl_b32 %s, %s, 1" % (sr(S_T0), sr(S_T0)))
    e("s_and_b32 %s, %s, 1" % (sr(S_T1), sr(S_WV)))
    e("s_add_u32 %s, %s, %s" % (sr(S_T0), sr(S_T0), sr(S_T1)))
    e("s_lshl_b32 %s, %s, 16" % (sr(S_T0), sr(S_T0)))
    e("s_and_b32 %s, %s, 7" % (sr(S_T1), sr(S_I5)))
    e("s_lshl_b32 %s, %s, 7" % (sr(S_T1), sr(S_T1)))
    e("s_add_u32 %s, %s, %s" % (sr(S_T0), sr(S_T0), sr(S_T1)))
    e("s_and_b32 %s, %s, 2" % (sr(S_T1), sr(S_WV)))
    e("s_lshl_b32 %s, %s, 5" % (sr(S_T1), sr(S_T1)))
    e("s_add_u32 %s, %s, %s" % (sr(S_T0), sr(S_T0), sr(S_T1)))
    e("s_add_u32 %s, %s, 1024" % (sr(S_T5), sr(S_T0)))
    e("s_waitcnt vmcnt(8) lgkmcnt(0)")
    e("s_barrier")
    outproj_half(0, va)
    e("s_waitcnt vmcnt(4)")
    e("s_barrier")
    outproj_half(1, va)
    nop(12)
    for i in range(8):
        e("v_cvt_pk_bf16_f32 v%d, v%d, v%d" % (P_OF + i, P_ACC + 2 * i, P_ACC + 2 * i + 1))
    e("buffer_store_dwordx4 %s, v%d, %s, %s offen" % (vr(P_OF, 4), vo, sr(R_OUT, 4), sr(S_T5)))
    e("buffer_store_dwordx4 %s, v%d, %s, %s offen offset:16" % (vr(P_OF + 4, 4), vo, sr(R_OUT, 4), sr(S_T5)))
    e("s_branch L_fin")
    L.append("L_op_idle:")
    e("s_waitcnt vmcnt(8)")
    e("s_barrier")
    e("s_waitcnt vmcnt(4)")
    e("s_barrier")
    e("s_cmp_eq_u32 s2, 0")
    e("s_cbranch_scc0 L_fin")
    e("s_cmp_eq_u32 %s, 7" % sr(S_WV))
    e("s_cbranch_scc0 L_fin")
    flag_store("0")
    L.append("L_fin:")
    write_stamps()
    if OPT["dbgspan"]:
        t = VT
        e("s_waitcnt vmcnt(0)")
        e("s_memrealtime s[96:97]")
        e("s_memtime s[94:95]")
        srd(R_X, S_DBG, 256)
        e("s_waitcnt lgkmcnt(0)")
        e("s_mov_b64 exec, 1")
        e("v_mov_b32 v%d, 0" % t)
        e("s_not_b32 s100, s100")
        e("s_sub_u32 s94, s94, s98")
        e("v_mov_b32 v%d, s100" % (t + 1))
        e("v_mov_b32 v%d, s96" % (t + 2))
        e("v_mov_b32 v%d, s94" % (t + 3))
        e("buffer_atomic_umax v%d, v%d, %s, 0 offen" % (t + 1, t, sr(R_X, 4)))
        e("buffer_atomic_umax v%d, v%d, %s, 0 offen offset:4" % (t + 2, t, sr(R_X, 4)))
        e("buffer_atomic_umax v%d, v%d, %s, 0 offen offset:8" % (t + 3, t, sr(R_X, 4)))
    footer(256)
    open(sys.argv[1], "w").write("\n".join(L) + "\n")

main()
```

```python
import sys, struct, math

NAME = "concat_heads__ssm_conv_s4__softmax_full_mha__prompt"
OPT = dict(stamps=0, dump=0, stop="", forceslow=0, dbgspan=0)
for a in sys.argv[2:]:
    k, v = a.split("=")
    OPT[k] = int(v) if v.lstrip("-").isdigit() else v

L = []
def e(s=""):
    L.append("    " + s if s and not s.endswith(":") and not s.startswith(";") else s)
def c(s): L.append("    ; " + s)
def f2u(x): return struct.unpack("<I", struct.pack("<f", x))[0]
def fl(x): return "0x%08x" % f2u(x)
def vr(a, n=1): return "v%d" % a if n == 1 else "v[%d:%d]" % (a, a + n - 1)
def sr(a, n=1): return "s%d" % a if n == 1 else "s[%d:%d]" % (a, a + n - 1)
def nop(n):
    while n > 0:
        k = min(n, 16); e("s_nop %d" % (k - 1)); n -= k

WS_EPOCH = 0
WS_F1 = 4096
WS_F2 = 40960
WS_Q = 0x100000
WS_K = 0x300000
WS_V = 0x500000
WS_O = 0x700000
WS_DBG = 0x1000000
WS_SIZE = 0x10000000
LDS_TOTAL = 163840
L_K = 0
L_V = 65536
L_MISC = 146240
L_KF = 146304
L_UP = 154624
L_TB = 0
L_TA = 33792
L_WO = 0
L_Z = 65536
ZS = 9360
L_O = 65536
S_U, S_ARE, S_AIM, S_BRE, S_BIM, S_CRE, S_CIM, S_LDT = 8, 10, 12, 14, 16, 18, 20, 22
S_DSK, S_X, S_W, S_WO, S_OUT, S_DBG, S_WS = 24, 26, 28, 30, 32, 34, 36
R_X, R_W, R_WS, R_U, R_OUT, R_WO = 40, 44, 48, 52, 56, 60
S_XQ, S_I5, S_WV, S_TAG, S_LD2, S_DS2 = 64, 65, 66, 67, 68, 69
S_H, S_J, S_C0 = 70, 71, 72
S_T0, S_T1, S_T2, S_T3, S_T4, S_T5 = 73, 74, 75, 76, 77, 78
S_CNT = 79
S_M0, S_M1 = 4, 6
S_D0, S_D1 = 38, 39
S_ST = 80
nstamp = [0]
def stamp():
    if OPT["stamps"]:
        e("s_waitcnt lgkmcnt(0)")
        e("s_memtime %s" % sr(S_ST + 2 * nstamp[0], 2))
        e("s_waitcnt lgkmcnt(0)")
        nstamp[0] += 1
def srd(r, base, size):
    e("s_mov_b32 %s, %s" % (sr(r), sr(base)))
    e("s_and_b32 %s, %s, 0xffff" % (sr(r + 1), sr(base + 1)))
    e("s_mov_b32 %s, 0x%x" % (sr(r + 2), size))
    e("s_mov_b32 %s, 0x00020000" % sr(r + 3))

def csel(dst, a, b):
    e("s_mov_b32 %s, %d" % (sr(dst), b))
    e("s_cselect_b32 %s, %d, %s" % (sr(dst), a, sr(dst)))

LOG2E = math.log2(math.e)

V_TID, V_L = 0, 1
V_L16 = 2
V_PAR = 4
V_U = 10
VT = 14

def header():
    L.append("; fused S4 long-conv (part A) + multi-head attention (part B), one persistent launch, 256 WGs x 8 waves")
    L.append("; @launch grid=(256,1,1) block=(512,1,1) lds=%d" % LDS_TOTAL)
    L.append('.amdgcn_target "amdgcn-amd-amdhsa--gfx950"')
    L.append(".text")
    L.append(".globl %s_kernel" % NAME)
    L.append(".p2align 8")
    L.append(".type %s_kernel,@function" % NAME)
    L.append("%s_kernel:" % NAME)

def footer(nv):
    L.append("L_end:")
    e("s_endpgm")
    L.append('.section .rodata,"a"')
    L.append(".p2align 6")
    L.append(".amdhsa_kernel %s_kernel" % NAME)
    L.append("  .amdhsa_next_free_vgpr %d" % nv)
    L.append("  .amdhsa_next_free_sgpr 102")
    L.append("  .amdhsa_accum_offset %d" % nv)
    L.append("  .amdhsa_group_segment_fixed_size 0")
    L.append("  .amdhsa_kernarg_size 120")
    L.append("  .amdhsa_user_sgpr_count 2")
    L.append("  .amdhsa_user_sgpr_kernarg_segment_ptr 1")
    L.append("  .amdhsa_system_sgpr_workgroup_id_x 1")
    L.append(".end_amdhsa_kernel")

def dma(vaddr, rsrc, soff, ldsaddr_s, sc1=False):
    e("s_mov_b32 m0, %s" % ldsaddr_s) if ldsaddr_s is not None else None
    e("s_nop 0")
    e("buffer_load_dwordx4 %s, %s, %s offen%s lds" % (vr(vaddr), sr(rsrc, 4), soff, " sc1" if sc1 else ""))

def setup():
    c("---- setup ----")
    e("s_cmp_ge_u32 s2, 256")
    e("s_cbranch_scc1 L_end")
    e("s_load_dwordx8 s[24:31], s[0:1], 64")
    e("s_load_dwordx16 s[8:23], s[0:1], 0")
    e("s_load_dwordx4 s[32:35], s[0:1], 96")
    e("s_load_dwordx2 s[36:37], s[0:1], 112")
    if OPT["stamps"] or OPT["dbgspan"]:
        e("s_memrealtime s[100:101]")
    if OPT["dbgspan"]:
        e("s_memtime s[98:99]")
    e("v_and_b32 v%d, 63, v0" % V_L)
    e("v_lshrrev_b32 v%d, 6, v0" % VT)
    e("v_lshlrev_b32 v%d, 4, v%d" % (V_L16, V_L))
    e("v_readfirstlane_b32 %s, v%d" % (sr(S_WV), VT))
    e("s_and_b32 %s, s2, 7" % sr(S_XQ))
    e("s_lshr_b32 %s, s2, 3" % sr(S_I5))
    e("s_and_b32 %s, %s, 3" % (sr(S_T0), sr(S_I5)))
    e("s_lshl_b32 %s, %s, 2" % (sr(S_H), sr(S_XQ)))
    e("s_add_u32 %s, %s, %s" % (sr(S_H), sr(S_H), sr(S_T0)))
    e("s_lshr_b32 %s, %s, 2" % (sr(S_J), sr(S_I5)))
    e("s_lshl_b32 %s, %s, 5" % (sr(S_C0), sr(S_XQ)))
    e("s_add_u32 %s, %s, %s" % (sr(S_C0), sr(S_C0), sr(S_I5)))
    e("s_lshl_b32 %s, %s, 1" % (sr(S_C0), sr(S_C0)))

G_VX, G_VWQ, G_VWK, G_VWV = 32, 33, 34, 35
G_XA = 36
G_WA, G_VA = 40, 41
G_XC = 42
G_WC, G_VC = 46, 47
G_ACCQK = 48
G_ACCV = 64
G_XF = 80
G_WF = 96
G_VF = 112

def gemm_addr():
    t = VT
    c("GEMM DMA voffsets")
    e("v_lshrrev_b32 v%d, 3, v%d" % (t, V_L))
    e("v_and_b32 v%d, 7, v%d" % (t + 1, V_L))
    e("v_lshrrev_b32 v%d, 4, v%d" % (t + 2, V_L))
    e("s_lshl_b32 %s, %s, 3" % (sr(S_T0), sr(S_WV)))
    e("v_add_u32 v%d, %s, v%d" % (t + 3, sr(S_T0), t))
    e("v_bfe_u32 v%d, v%d, 1, 3" % (t + 4, t + 3))
    e("v_xor_b32 v%d, v%d, v%d" % (t + 4, t + 4, t + 1))
    e("v_lshlrev_b32 v%d, 4, v%d" % (t + 4, t + 4))
    e("s_lshl_b32 %s, %s, 16" % (sr(S_T1), sr(S_I5)))
    e("v_lshl_add_u32 v%d, v%d, 10, v%d" % (G_VX, t + 3, t + 4))
    e("v_add_u32 v%d, %s, v%d" % (G_VX, sr(S_T1), G_VX))
    e("v_and_b32 v%d, 1, v%d" % (t + 2, t + 2))
    e("v_mul_u32_u24 v%d, 3072, v%d" % (t + 5, t + 3))
    e("s_lshl_b32 %s, %s, 7" % (sr(S_T1), sr(S_XQ)))
    e("v_add_u32 v%d, %s, v%d" % (t + 5, sr(S_T1), t + 5))
    e("v_lshlrev_b32 v%d, 1, v%d" % (t + 6, t + 2))
    e("v_xor_b32 v%d, v%d, v%d" % (t + 6, t + 6, t + 1))
    e("v_lshl_add_u32 v%d, v%d, 4, v%d" % (G_VWQ, t + 6, t + 5))
    e("v_xor_b32 v%d, 4, v%d" % (t + 6, t + 6))
    e("v_lshl_add_u32 v%d, v%d, 4, v%d" % (G_VWK, t + 6, t + 5))
    e("v_add_u32 v%d, 1024, v%d" % (G_VWK, G_VWK))
    e("v_lshlrev_b32 v%d, 2, v%d" % (t + 6, t + 2))
    e("v_xor_b32 v%d, v%d, v%d" % (t + 6, t + 6, t + 1))
    e("v_lshl_add_u32 v%d, v%d, 4, v%d" % (G_VWV, t + 6, t + 5))
    e("v_add_u32 v%d, 2048, v%d" % (G_VWV, G_VWV))

def gemm_issue(cidx):
    slot = cidx % 5
    e("s_add_u32 %s, %s, %d" % (sr(S_T0), sr(S_I5), cidx))
    e("s_and_b32 %s, %s, 7" % (sr(S_T0), sr(S_T0)))
    e("s_lshl_b32 %s, %s, 7" % (sr(S_T1), sr(S_T0)))
    e("s_mul_i32 %s, %s, 196608" % (sr(S_T2), sr(S_T0)))
    e("s_lshl_b32 %s, %s, 10" % (sr(S_T3), sr(S_WV)))
    for g, (va, rs, so) in enumerate(((G_VX, R_X, S_T1), (G_VWQ, R_W, S_T2), (G_VWK, R_W, S_T2), (G_VWV, R_W, S_T2))):
        e("s_add_u32 m0, %s, %d" % (sr(S_T3), slot * 32768 + g * 8192))
        e("s_nop 0")
        e("buffer_load_dwordx4 %s, %s, %s offen lds" % (vr(va), sr(rs, 4), sr(so)))

def pi_tok(dst, src, t):
    e("v_and_b32 v%d, 0x13, v%d" % (dst, src))
    e("v_bfe_u32 v%d, v%d, 2, 1" % (t, src))
    e("v_lshl_or_b32 v%d, v%d, 3, v%d" % (dst, t, dst))
    e("v_bfe_u32 v%d, v%d, 3, 1" % (t, src))
    e("v_lshl_or_b32 v%d, v%d, 2, v%d" % (dst, t, dst))

def gemm_read_addr():
    t = VT
    c("GEMM LDS fragment read addresses")
    pi_tok(t, V_L, t + 1)
    e("s_and_b32 %s, %s, 1" % (sr(S_T0), sr(S_WV)))
    e("s_lshl_b32 %s, %s, 5" % (sr(S_T0), sr(S_T0)))
    e("v_add_u32 v%d, %s, v%d" % (t, sr(S_T0), t))
    e("v_lshrrev_b32 v%d, 5, v%d" % (t + 1, V_L))
    e("v_bfe_u32 v%d, v%d, 1, 3" % (t + 2, t))
    e("v_xor_b32 v%d, v%d, v%d" % (t + 2, t + 2, t + 1))
    e("v_lshlrev_b32 v%d, 4, v%d" % (t + 2, t + 2))
    e("v_lshl_add_u32 v%d, v%d, 7, v%d" % (G_XA, t, t + 2))
    for s in range(1, 4):
        e("v_xor_b32 v%d, %d, v%d" % (G_XA + s, 32 * s, G_XA))
    e("v_bfe_u32 v%d, v%d, 2, 2" % (t + 2, V_L))
    e("v_lshl_add_u32 v%d, v%d, 3, v%d" % (t + 3, t + 1, t + 2))
    e("v_lshlrev_b32 v%d, 7, v%d" % (t + 3, t + 3))
    e("v_bfe_u32 v%d, v%d, 4, 1" % (t + 4, V_L))
    e("v_bfe_u32 v%d, v%d, 3, 1" % (t + 5, V_L))
    e("v_and_b32 v%d, 1, v%d" % (t + 6, V_L))
    e("v_bfe_u32 v%d, v%d, 1, 1" % (t + 7, V_L))
    e("s_and_b32 %s, %s, 6" % (sr(S_T0), sr(S_WV)))
    e("v_or_b32 v%d, %s, v%d" % (t + 8, sr(S_T0), t + 6))
    e("v_lshl_or_b32 v%d, v%d, 1, v%d" % (t + 9, t + 4, t + 5))
    e("v_lshlrev_b32 v%d, 1, v%d" % (t + 9, t + 9))
    e("v_xor_b32 v%d, v%d, v%d" % (t + 8, t + 8, t + 9))
    e("v_lshl_add_u32 v%d, v%d, 4, v%d" % (t + 8, t + 8, t + 3))
    e("v_lshl_add_u32 v%d, v%d, 3, v%d" % (t + 8, t + 7, t + 8))
    e("v_lshl_add_u32 v%d, v%d, 13, v%d" % (t + 8, t + 4, t + 8))
    e("v_add_u32 v%d, 8192, v%d" % (G_WA, t + 8))
    e("s_and_b32 %s, %s, 2" % (sr(S_T0), sr(S_WV)))
    e("s_lshl_b32 %s, %s, 1" % (sr(S_T0), sr(S_T0)))
    e("v_lshl_or_b32 v%d, v%d, 1, v%d" % (t + 8, t + 4, t + 7))
    e("v_or_b32 v%d, %s, v%d" % (t + 8, sr(S_T0), t + 8))
    e("v_lshlrev_b32 v%d, 2, v%d" % (t + 9, t + 5))
    e("v_xor_b32 v%d, v%d, v%d" % (t + 8, t + 8, t + 9))
    e("v_lshl_add_u32 v%d, v%d, 4, v%d" % (t + 8, t + 8, t + 3))
    e("v_lshl_add_u32 v%d, v%d, 3, v%d" % (t + 8, t + 6, t + 8))
    e("v_add_u32 v%d, 24576, v%d" % (G_VA, t + 8))

def gemm_loop(withv):
    waits = [16, 12, 12, 12, 12, 8, 4, 0]
    for ci in range(8):
        slot = ci % 5
        base = slot * 32768
        c("chunk %d" % ci)
        for s in range(4):
            e("v_add_u32 v%d, 0x%x, v%d" % (G_XC + s, base, G_XA + s))
        e("v_add_u32 v%d, 0x%x, v%d" % (G_WC, base, G_WA))
        if withv:
            e("v_add_u32 v%d, 0x%x, v%d" % (G_VC, base, G_VA))
        e("s_waitcnt vmcnt(%d)" % waits[ci])
        e("s_barrier")
        def reads(s):
            e("ds_read_b128 %s, v%d" % (vr(G_XF + 4 * s, 4), G_XC + s))
            for t in range(2):
                e("ds_read_b64_tr_b16 %s, v%d offset:%d" % (vr(G_WF + 4 * s + 2 * t, 2), G_WC, (16 * s + 4 * t) * 128))
            if withv:
                for t in range(2):
                    e("ds_read_b64_tr_b16 %s, v%d offset:%d" % (vr(G_VF + 4 * s + 2 * t, 2), G_VC, (16 * s + 4 * t) * 128))
        n = 5 if withv else 3
        reads(0); reads(1)
        if 1 <= ci <= 3:
            gemm_issue(ci + 4)
        for s in range(4):
            if s + 2 < 4:
                reads(s + 2)
            rem = (min(s + 2, 3) - s) * n
            cq = "0" if (ci == 0 and s == 0) else vr(G_ACCQK, 16)
            cv = "0" if (ci == 0 and s == 0) else vr(G_ACCV, 16)
            e("s_waitcnt lgkmcnt(%d)" % rem)
            e("v_mfma_f32_32x32x16_bf16 %s, %s, %s, %s" % (vr(G_ACCQK, 16), vr(G_WF + 4 * s, 4), vr(G_XF + 4 * s, 4), cq))
            if withv:
                e("v_mfma_f32_32x32x16_bf16 %s, %s, %s, %s" % (vr(G_ACCV, 16), vr(G_XF + 4 * s, 4), vr(G_VF + 4 * s, 4), cv))

def gemm_epilogue(withv):
    t = VT
    c("GEMM epilogue: publish Q,K(,V)")
    pi_tok(t, V_L, t + 1)
    e("v_lshrrev_b32 v%d, 5, v%d" % (t + 1, V_L))
    e("v_lshlrev_b32 v%d, 4, v%d" % (t, t))
    e("v_lshl_add_u32 v%d, v%d, 9, v%d" % (t, t + 1, t))
    e("s_lshr_b32 %s, %s, 1" % (sr(S_T0), sr(S_WV)))
    e("s_lshl_b32 %s, %s, 2" % (sr(S_T1), sr(S_XQ)))
    e("s_add_u32 %s, %s, %s" % (sr(S_T0), sr(S_T0), sr(S_T1)))
    e("s_lshl_b32 %s, %s, 6" % (sr(S_T0), sr(S_T0)))
    e("s_and_b32 %s, %s, 1" % (sr(S_T2), sr(S_WV)))
    e("s_lshl_b32 %s, %s, 1" % (sr(S_T3), sr(S_I5)))
    e("s_add_u32 %s, %s, %s" % (sr(S_T2), sr(S_T2), sr(S_T3)))
    e("s_add_u32 %s, %s, %s" % (sr(S_T0), sr(S_T0), sr(S_T2)))
    e("s_lshl_b32 %s, %s, 10" % (sr(S_T0), sr(S_T0)))
    e("s_add_u32 %s, %s, 0x%x" % (sr(S_T3), sr(S_T0), WS_K))
    e("s_add_u32 %s, %s, 0x%x" % (sr(S_T0), sr(S_T0), WS_Q))
    if withv:
        e("v_and_b32 v%d, 15, v%d" % (t + 2, V_L))
        e("v_lshlrev_b32 v%d, 4, v%d" % (t + 2, t + 2))
        e("v_lshl_add_u32 v%d, v%d, 8, v%d" % (t + 2, t + 1, t + 2))
        e("v_bfe_u32 v%d, v%d, 4, 1" % (t + 3, V_L))
        e("v_lshl_add_u32 v%d, v%d, 16, v%d" % (t + 2, t + 3, t + 2))
        e("s_and_b32 %s, %s, 2" % (sr(S_T4), sr(S_WV)))
        e("s_add_u32 %s, %s, %s" % (sr(S_T4), sr(S_T4), sr(S_T1)))
        e("s_lshl_b32 %s, %s, 6" % (sr(S_T4), sr(S_T4)))
        e("s_add_u32 %s, %s, %s" % (sr(S_T4), sr(S_T4), sr(S_T2)))
        e("s_lshl_b32 %s, %s, 10" % (sr(S_T4), sr(S_T4)))
        e("s_add_u32 %s, %s, 0x%x" % (sr(S_T4), sr(S_T4), WS_V))
    else:
        nop(4)
    nop(2)
    P = G_XF
    for i in range(4):
        e("v_cvt_pk_bf16_f32 v%d, v%d, v%d" % (P + i, G_ACCQK + 8 + 2 * i, G_ACCQK + 9 + 2 * i))
    e("buffer_store_dwordx4 %s, v%d, %s, %s offen sc1" % (vr(P, 4), t, sr(R_WS, 4), sr(S_T3)))
    if withv:
        for i in range(8):
            e("v_cvt_pk_bf16_f32 v%d, v%d, v%d" % (P + 8 + i, G_ACCV + 2 * i, G_ACCV + 1 + 2 * i))
        e("buffer_store_dwordx4 %s, v%d, %s, %s offen sc1" % (vr(P + 8, 4), t + 2, sr(R_WS, 4), sr(S_T4)))
        e("buffer_store_dwordx4 %s, v%d, %s, %s offen offset:512 sc1" % (vr(P + 12, 4), t + 2, sr(R_WS, 4), sr(S_T4)))
    for i in range(8):
        e("v_mul_f32 v%d, %s, v%d" % (G_ACCQK + i, fl(0.25 * LOG2E), G_ACCQK + i))
    for i in range(4):
        e("v_cvt_pk_bf16_f32 v%d, v%d, v%d" % (P + 4 + i, G_ACCQK + 2 * i, G_ACCQK + 1 + 2 * i))
    e("buffer_store_dwordx4 %s, v%d, %s, %s offen sc1" % (vr(P + 4, 4), t, sr(R_WS, 4), sr(S_T0)))

def cmul(d, a, b):
    e("v_pk_mul_f32 %s, %s, %s op_sel:[0,0] op_sel_hi:[1,0]" % (vr(d, 2), vr(a, 2), vr(b, 2)))
    e("v_pk_fma_f32 %s, %s, %s, %s op_sel:[1,1,0] op_sel_hi:[0,1,1] neg_lo:[1,0,0]" % (vr(d, 2), vr(a, 2), vr(b, 2), vr(d, 2)))
def cmul_multi(lst):
    for d, a, b in lst:
        e("v_pk_mul_f32 %s, %s, %s op_sel:[0,0] op_sel_hi:[1,0]" % (vr(d, 2), vr(a, 2), vr(b, 2)))
    for d, a, b in lst:
        e("v_pk_fma_f32 %s, %s, %s, %s op_sel:[1,1,0] op_sel_hi:[0,1,1] neg_lo:[1,0,0]" % (vr(d, 2), vr(a, 2), vr(b, 2), vr(d, 2)))
def cexp(d, va, vb, Lf, t):
    e("v_mul_f32 v%d, %s, v%d" % (t, fl(Lf), va))
    e("v_mul_f32 v%d, %s, v%d" % (t + 1, fl(Lf), vb))
    e("v_fract_f32 v%d, v%d" % (t + 1, t + 1))
    e("v_exp_f32 v%d, v%d" % (t, t))
    e("v_cos_f32 v%d, v%d" % (d, t + 1))
    e("v_sin_f32 v%d, v%d" % (d + 1, t + 1))
    e("s_nop 0")
    e("v_pk_mul_f32 %s, %s, %s op_sel:[0,0] op_sel_hi:[1,0]" % (vr(d, 2), vr(d, 2), vr(t, 2)))

KB = 32
def kgen_tables():
    t = VT
    c("---- S4 kernel generation: mode tables ----")
    va, vb, vdt, vad = t, t + 1, t + 2, t + 3
    e("s_bitcmp1_b32 %s, 1" % sr(S_WV))
    e("s_cselect_b32 %s, 0, 16" % sr(S_T0))
    e("s_lshl_b32 %s, %s, %s" % (sr(S_T0), sr(S_LD2), sr(S_T0)))
    e("s_and_b32 %s, %s, 0xffff0000" % (sr(S_T0), sr(S_T0)))
    e("v_mov_b32 v%d, %s" % (vdt, fl(LOG2E)))
    e("v_mul_f32 v%d, %s, v%d" % (vdt, sr(S_T0), vdt))
    e("v_exp_f32 v%d, v%d" % (vdt, vdt))
    for i in range(6):
        e("v_lshlrev_b32 v%d, 16, v%d" % (V_PAR + i, V_PAR + i))
    e("v_cvt_pk_bf16_f32 v%d, v%d, v%d" % (vdt, vdt, vdt))
    e("v_and_b32 v%d, 0xffff0000, v%d" % (vdt, vdt))
    e("v_mul_f32 v%d, v%d, v%d" % (va, vdt, V_PAR + 0))
    e("v_mul_f32 v%d, v%d, v%d" % (vb, vdt, V_PAR + 1))
    e("v_mul_f32 v%d, %s, v%d" % (va, fl(LOG2E), va))
    e("s_and_b32 %s, %s, 1" % (sr(S_T1), sr(S_WV)))
    e("s_lshl_b32 %s, %s, 8" % (sr(S_T1), sr(S_T1)))
    e("v_lshl_add_u32 v%d, v%d, 2, %s" % (vad, V_L, sr(S_T1)))
    e("s_cmp_ge_u32 %s, 4" % sr(S_WV))
    e("s_cbranch_scc1 L_kg_A")
    e("v_mul_f32 v%d, %s, v%d" % (vb, fl(1.0 / (2 * math.pi)), vb))
    e("s_bitcmp1_b32 %s, 1" % sr(S_WV))
    csel(S_T1, L_TB + 16896, L_TB)
    e("v_add_u32 v%d, %s, v%d" % (vad, sr(S_T1), vad))
    P = lambda j: KB + 2 * j
    G = lambda g: KB + 16 + 2 * g
    X = KB + 24
    cv = KB + 40
    def put(row, pr, k):
        e("v_cvt_pk_bf16_f32 v%d, v%d, v%d" % (cv + k, pr, pr + 1))
        e("ds_write_b32 v%d, v%d offset:%d" % (vad, cv + k, row * 528))
    cexp(P(1), va, vb, 8.0, t + 4)
    cexp(G(1), va, vb, 64.0, t + 6)
    e("v_mov_b32 v%d, 0x3f80" % (cv + 7))
    e("ds_write_b32 v%d, v%d" % (vad, cv + 7))
    cmul_multi([(P(2), P(1), P(1)), (G(2), G(1), G(1))])
    put(1, P(1), 0); put(8, G(1), 1)
    cmul_multi([(P(3), P(2), P(1)), (P(4), P(2), P(2)), (G(3), G(2), G(1))])
    put(2, P(2), 2); put(16, G(2), 3)
    cmul_multi([(P(5), P(4), P(1)), (P(6), P(4), P(2)), (P(7), P(4), P(3))])
    put(3, P(3), 0); put(4, P(4), 1); put(24, G(3), 2)
    put(5, P(5), 3); put(6, P(6), 4); put(7, P(7), 5)
    for g in range(1, 4):
        cmul_multi([(X + 2 * j, P(j), G(g)) for j in range(1, 8)])
        for j in range(1, 8):
            put(8 * g + j, X + 2 * j, j)
    e("s_branch L_kg_done")
    L.append("L_kg_A:")
    e("v_mul_f32 v%d, %s, v%d" % (vb, fl(-1.0 / (2 * math.pi)), vb))
    e("s_bitcmp1_b32 %s, 1" % sr(S_WV))
    csel(S_T1, L_TA + 14256, L_TA)
    e("v_add_u32 v%d, %s, v%d" % (vad, sr(S_T1), vad))
    E = lambda j: KB + 2 * j
    Q = lambda j: KB + 18 + 2 * j
    H = lambda g: KB + 36 + 2 * g
    X = KB + 52
    cv = KB + 64
    cexp(E(1), va, vb, 1.0, t + 4)
    cexp(H(1), va, vb, 256.0, t + 6)
    e("v_mul_f32 v%d, v%d, v%d" % (X, vdt, V_PAR + 2))
    e("v_mul_f32 v%d, -v%d, v%d" % (X + 1, vdt, V_PAR + 3))
    e("v_mov_b32 v%d, v%d" % (X + 2, V_PAR + 4))
    e("v_mul_f32 v%d, -1.0, v%d" % (X + 3, V_PAR + 5))
    cmul_multi([(Q(0), X, X + 2), (E(2), E(1), E(1)), (H(2), H(1), H(1))])
    cmul_multi([(E(3), E(2), E(1)), (E(4), E(2), E(2)), (H(3), H(2), H(1)), (H(4), H(2), H(2))])
    put(0, Q(0), 0)
    cmul_multi([(E(5), E(4), E(1)), (E(6), E(4), E(2)), (E(7), E(4), E(3)), (E(8), E(4), E(4)),
                (H(5), H(4), H(1)), (H(6), H(4), H(2)), (H(7), H(4), H(3))])
    cmul_multi([(Q(j), Q(0), E(j)) for j in range(1, 9)])
    for j in range(1, 8):
        put(j, Q(j), j)
    cmul_multi([(X + 2 * i, H(1), Q(2 * i)) for i in range(5)])
    for i in range(5): put(8 + i, X + 2 * i, i)
    for g, r0 in ((2, 13), (3, 16)):
        cmul_multi([(X + 2 * i, H(g), Q(4 * i)) for i in range(3)])
        for i in range(3): put(r0 + i, X + 2 * i, i)
    for g in (4, 6):
        cmul_multi([(X, H(g), Q(0)), (X + 2, H(g), Q(8)), (X + 4, H(g + 1), Q(0)), (X + 6, H(g + 1), Q(8))])
        for i in range(4): put(19 + 2 * (g - 4) + i, X + 2 * i, i)
    L.append("L_kg_done:")

def rowmap(region, ei):
    if region == 0: return ei
    if region == 1: return 8 + [0, 0, 1, 2, 2, 2, 3, 4][ei]
    if region in (2, 3): return (13 if region == 2 else 16) + [0, 0, 0, 1, 1, 1, 2, 2][ei]
    return 19 + 2 * (region - 4) + [0, 0, 0, 0, 0, 1, 1, 1][ei]

def kgen_mfma():
    t = VT
    c("---- S4 kernel generation: K = A-table x B-table ----")
    vX, vY, vB = t, t + 1, t + 2
    def packs(rh, yy):
        return [sum(rowmap(4 * rh + g, 4 * yy + r) << (8 * r) for r in range(4)) for g in range(4)]
    e("v_bfe_u32 v%d, v%d, 2, 2" % (t + 3, V_L))
    e("v_and_b32 v%d, 3, v%d" % (t + 4, V_L))
    e("v_lshlrev_b32 v%d, 3, v%d" % (t + 4, t + 4))
    e("v_cmp_eq_u32 s[4:5], 1, v%d" % (t + 3))
    e("v_cmp_eq_u32 s[6:7], 2, v%d" % (t + 3))
    e("v_cmp_eq_u32 vcc, 3, v%d" % (t + 3))
    e("s_bitcmp1_b32 %s, 0" % sr(S_WV))
    for yy, dst in ((0, vX), (1, vY)):
        p0, p1 = packs(0, yy), packs(1, yy)
        for g in range(4):
            e("s_mov_b32 %s, 0x%x" % (sr(S_T1), p0[g]))
            e("s_cselect_b32 %s, 0x%x, %s" % (sr(S_T1), p1[g], sr(S_T1)))
            if g == 0:
                e("v_mov_b32 v%d, %s" % (dst, sr(S_T1)))
            else:
                e("v_mov_b32 v%d, %s" % (t + 5, sr(S_T1)))
                e("v_cndmask_b32 v%d, v%d, v%d, %s" % (dst, dst, t + 5, ["", "s[4:5]", "s[6:7]", "vcc"][g]))
        e("v_lshrrev_b32 v%d, v%d, v%d" % (dst, t + 4, dst))
        e("v_and_b32 v%d, 0xff, v%d" % (dst, dst))
        e("v_mul_u32_u24 v%d, 528, v%d" % (dst, dst))
    e("v_lshrrev_b32 v%d, 4, v%d" % (t + 3, V_L))
    e("s_cmp_ge_u32 %s, 4" % sr(S_WV))
    csel(S_T0, L_TA + 14256, L_TA)
    csel(S_T1, L_TB + 16896, L_TB)
    csel(S_T2, L_KF + 4160 + 64, L_KF + 64)
    e("v_lshl_add_u32 v%d, v%d, 4, %s" % (t + 5, t + 3, sr(S_T0)))
    e("v_add_u32 v%d, v%d, v%d" % (vX, vX, t + 5))
    e("v_add_u32 v%d, v%d, v%d" % (vY, vY, t + 5))
    e("s_bitcmp1_b32 %s, 1" % sr(S_WV))
    e("s_cselect_b32 %s, 16, 0" % sr(S_T3))
    e("v_and_b32 v%d, 15, v%d" % (t + 6, V_L))
    e("v_add_u32 v%d, %s, v%d" % (t + 6, sr(S_T3), t + 6))
    e("v_mul_u32_u24 v%d, 528, v%d" % (vB, t + 6))
    e("v_lshl_add_u32 v%d, v%d, 4, %s" % (t + 5, t + 3, sr(S_T1)))
    e("v_add_u32 v%d, v%d, v%d" % (vB, vB, t + 5))
    e("s_and_b32 %s, %s, 1" % (sr(S_T3), sr(S_WV)))
    e("s_lshl_b32 %s, %s, 11" % (sr(S_T3), sr(S_T3)))
    e("s_add_u32 %s, %s, %s" % (sr(S_T2), sr(S_T2), sr(S_T3)))
    e("v_lshl_add_u32 v%d, v%d, 9, %s" % (t + 7, t + 3, sr(S_T2)))
    e("v_lshl_add_u32 v%d, v%d, 4, v%d" % (t + 7, t + 6, t + 7))
    FX, FY, FB = KB, KB + 32, KB + 64
    AX, AY = KB + 96, KB + 100
    def rd(s):
        e("ds_read_b128 %s, v%d offset:%d" % (vr(FB + 4 * s, 4), vB, 64 * s))
        e("ds_read_b128 %s, v%d offset:%d" % (vr(FX + 4 * s, 4), vX, 64 * s))
        e("ds_read_b128 %s, v%d offset:%d" % (vr(FY + 4 * s, 4), vY, 64 * s))
    for s in range(4): rd(s)
    for s in range(8):
        ahead = min(s + 3, 7) - s
        e("s_waitcnt lgkmcnt(%d)" % (3 * ahead))
        e("v_mfma_f32_16x16x32_bf16 %s, %s, %s, %s" % (vr(AX, 4), vr(FX + 4 * s, 4), vr(FB + 4 * s, 4), "0" if s == 0 else vr(AX, 4)))
        e("v_mfma_f32_16x16x32_bf16 %s, %s, %s, %s" % (vr(AY, 4), vr(FY + 4 * s, 4), vr(FB + 4 * s, 4), "0" if s == 0 else vr(AY, 4)))
        if s + 4 < 8: rd(s + 4)
    c("pads: V ones, K front zeros, u front zeros")
    e("v_mov_b32 v%d, 0x3f803f80" % FB)
    e("v_mov_b32 v%d, 0x3f803f80" % (FB + 1))
    e("v_mov_b32 v%d, 0x3f803f80" % (FB + 2))
    e("v_mov_b32 v%d, 0x3f803f80" % (FB + 3))
    e("v_mov_b32 v%d, 0" % (FB + 4))
    e("v_mov_b32 v%d, 0" % (FB + 5))
    e("v_mov_b32 v%d, 0" % (FB + 6))
    e("v_mov_b32 v%d, 0" % (FB + 7))
    e("v_and_b32 v%d, 1, v%d" % (t + 8, V_L))
    e("v_cmp_eq_u32 vcc, 0, v%d" % (t + 8))
    e("s_bitcmp1_b32 %s, 0" % sr(S_WV))
    e("s_cbranch_scc0 L_kg_nofix")
    e("v_cndmask_b32 v%d, v%d, v%d, vcc" % (AY, AY + 1, AX + 3))
    L.append("L_kg_nofix:")
    e("v_cvt_pk_bf16_f32 v%d, v%d, v%d" % (FX, AX, AX + 1))
    e("v_cvt_pk_bf16_f32 v%d, v%d, v%d" % (FX + 1, AX + 2, AX + 3))
    e("v_cvt_pk_bf16_f32 v%d, v%d, v%d" % (FX + 2, AY, AY + 1))
    e("v_cvt_pk_bf16_f32 v%d, v%d, v%d" % (FX + 3, AY + 2, AY + 3))
    e("ds_write_b128 v%d, %s" % (t + 7, vr(FX, 4)))
    e("s_cmp_eq_u32 %s, 1" % sr(S_WV))
    e("s_cbranch_scc0 L_pad1")
    e("v_mul_u32_u24 v%d, 1040, v%d" % (t + 8, V_L))
    e("v_add_u32 v%d, 0x%x, v%d" % (t + 8, L_V + 1024, t + 8))
    e("ds_write_b128 v%d, %s" % (t + 8, vr(FB, 4)))
    L.append("L_pad1:")
    e("s_cmp_eq_u32 %s, 2" % sr(S_WV))
    e("s_cbranch_scc0 L_pad2")
    e("v_lshrrev_b32 v%d, 3, v%d" % (t + 8, V_L))
    e("v_mul_u32_u24 v%d, 1152, v%d" % (t + 8, t + 8))
    e("v_and_b32 v%d, 7, v%d" % (t + 9, V_L))
    e("v_lshl_add_u32 v%d, v%d, 4, v%d" % (t + 8, t + 9, t + 8))
    e("v_add_u32 v%d, 0x%x, v%d" % (t + 8, L_UP, t + 8))
    e("ds_write_b128 v%d, %s" % (t + 8, vr(FB + 4, 4)))
    L.append("L_pad2:")
    e("s_cmp_eq_u32 %s, 3" % sr(S_WV))
    e("s_cbranch_scc0 L_pad3")
    e("v_bfe_u32 v%d, v%d, 2, 1" % (t + 8, V_L))
    e("v_mul_u32_u24 v%d, 4160, v%d" % (t + 8, t + 8))
    e("v_and_b32 v%d, 3, v%d" % (t + 9, V_L))
    e("v_lshl_add_u32 v%d, v%d, 4, v%d" % (t + 8, t + 9, t + 8))
    e("v_add_u32 v%d, 0x%x, v%d" % (t + 8, L_KF, t + 8))
    e("ds_write_b128 v%d, %s" % (t + 8, vr(FB + 4, 4)))
    e("v_mov_b32 v%d, 0x%x" % (t + 8, L_MISC))
    e("ds_write_b128 v%d, %s" % (t + 8, vr(FB + 4, 4)))
    L.append("L_pad3:")

def flag_store(soff_s):
    t = VT
    e("v_mov_b32 v%d, 0" % t)
    e("v_mov_b32 v%d, %s" % (t + 1, sr(S_TAG)))
    e("s_mov_b64 exec, 1")
    e("buffer_store_dword v%d, v%d, %s, %s offen sc1" % (t + 1, t, sr(R_WS, 4), soff_s))
    e("s_mov_b64 exec, -1")

def poll(label, soff_s):
    t = VT
    e("v_lshlrev_b32 v%d, 7, v%d" % (t, V_L))
    e("s_mov_b32 %s, 0" % sr(S_CNT))
    e("s_mov_b32 exec_hi, 0")
    L.append(label + ":")
    e("buffer_load_dword v%d, v%d, %s, %s offen sc1" % (t + 1, t, sr(R_WS, 4), soff_s))
    e("s_add_u32 %s, %s, 1" % (sr(S_CNT), sr(S_CNT)))
    e("s_waitcnt vmcnt(0)")
    e("v_cmp_ne_u32 vcc, %s, v%d" % (sr(S_TAG), t + 1))
    e("s_cmp_gt_u32 %s, 0x4000" % sr(S_CNT))
    e("s_cbranch_scc1 %s_done" % label)
    e("s_cmp_lg_u64 vcc, 0")
    e("s_cbranch_scc1 %s" % label)
    L.append(label + "_done:")
    e("s_mov_b64 exec, -1")

A_Q = 32
A_S = [36, 52]
A_O = 68
A_KF = [84, 88]
A_VA = [92, 96]
A_VB = [100, 104]
A_IDX = 108
A_KA, A_V0, A_V1 = 109, 110, 111
A_NM = 112

def attn_loads():
    c("---- attention: loads ----")
    e("s_lshl_b32 %s, %s, 16" % (sr(S_T0), sr(S_H)))
    e("s_lshl_b32 %s, %s, 10" % (sr(S_T1), sr(S_WV)))
    e("s_add_u32 %s, %s, %s" % (sr(S_T0), sr(S_T0), sr(S_T1)))
    e("s_lshl_b32 %s, %s, 13" % (sr(S_T2), sr(S_J)))
    e("s_add_u32 %s, %s, %s" % (sr(S_T2), sr(S_T2), sr(S_T0)))
    e("s_add_u32 %s, %s, 0x%x" % (sr(S_T2), sr(S_T2), WS_Q))
    e("buffer_load_dwordx4 %s, v%d, %s, %s offen sc1" % (vr(A_Q, 4), V_L16, sr(R_WS, 4), sr(S_T2)))
    e("s_mul_i32 %s, %s, 1040" % (sr(S_T5), sr(S_WV)))
    for b in range(8):
        e("s_add_u32 %s, %s, %d" % (sr(S_T2), sr(S_J), b))
        e("s_and_b32 %s, %s, 7" % (sr(S_T2), sr(S_T2)))
        e("s_lshl_b32 %s, %s, 13" % (sr(S_T2), sr(S_T2)))
        e("s_add_u32 %s, %s, %s" % (sr(S_T2), sr(S_T2), sr(S_T0)))
        e("s_add_u32 %s, %s, 0x%x" % (sr(S_T3), sr(S_T2), WS_K))
        e("s_add_u32 %s, %s, 0x%x" % (sr(S_T4), sr(S_T2), WS_V))
        e("s_add_u32 m0, %s, %d" % (sr(S_T1), L_K + b * 8192))
        e("s_nop 0")
        e("buffer_load_dwordx4 v%d, %s, %s offen sc1 lds" % (V_L16, sr(R_WS, 4), sr(S_T3)))
        e("s_add_u32 m0, %s, %d" % (sr(S_T5), L_V + b * 8320))
        e("s_nop 0")
        e("buffer_load_dwordx4 v%d, %s, %s offen sc1 lds" % (V_L16, sr(R_WS, 4), sr(S_T4)))

def attn_addr():
    t = VT
    e("v_mov_b32 v%d, 0xdddddddd" % A_IDX)
    e("v_mov_b32 v%d, v%d" % (A_KA, V_L16))
    e("v_and_b32 v%d, 15, v%d" % (t, V_L))
    e("v_lshrrev_b32 v%d, 5, v%d" % (t + 1, V_L))
    e("v_lshlrev_b32 v%d, 4, v%d" % (t, t))
    e("v_lshl_add_u32 v%d, v%d, 8, v%d" % (t, t + 1, t))
    e("v_add_u32 v%d, 0x%x, v%d" % (t, L_V, t))
    e("v_add_u32 v%d, 512, v%d" % (t + 1, t))
    e("v_mov_b32 v%d, 0x%x" % (t + 2, L_V + 1024))
    e("v_and_b32 v%d, 16, v%d" % (t + 3, V_L))
    e("v_cmp_eq_u32 vcc, 0, v%d" % (t + 3))
    for i in range(16):
        e("v_mov_b32 v%d, 0" % (A_O + i))
    e("v_cndmask_b32 v%d, v%d, v%d, vcc" % (A_V0, t + 2, t))
    e("v_cndmask_b32 v%d, v%d, v%d, vcc" % (A_V1, t + 2, t + 1))

def u_loads():
    t = VT
    c("u loads (2 channels, t = 256w + 64i + l)")
    e("s_lshl_b32 %s, %s, 18" % (sr(S_T0), sr(S_WV)))
    e("s_lshl_b32 %s, %s, 1" % (sr(S_T1), sr(S_C0)))
    e("s_add_u32 %s, %s, %s" % (sr(S_T0), sr(S_T0), sr(S_T1)))
    e("v_lshlrev_b32 v%d, 10, v%d" % (t, V_L))
    for i in range(4):
        e("buffer_load_dword v%d, v%d, %s, %s offen" % (V_U + i, t, sr(R_U, 4), sr(S_T0)))
        if i < 3: e("s_add_u32 %s, %s, 0x10000" % (sr(S_T0), sr(S_T0)))

def attn_main():
    c("---- attention main loop ----")
    def rdK(i, off):
        e("ds_read_b128 %s, v%d offset:%d" % (vr(A_KF[i & 1], 4), A_KA, off * 1024))
    def rdVa(i, off):
        e("ds_read_b128 %s, v%d offset:%d" % (vr(A_VA[i & 1], 4), A_V0, off * 1040))
    def rdVb(i, off):
        e("ds_read_b128 %s, v%d offset:%d" % (vr(A_VB[i & 1], 4), A_V1, off * 1040))
    def qk(i):
        e("v_mfma_f32_32x32x16_bf16 %s, %s, %s, 0" % (vr(A_S[i & 1], 16), vr(A_KF[i & 1], 4), vr(A_Q, 4)))
    def pv(i, half):
        a = (A_VA if half == 0 else A_VB)[i & 1]
        e("v_smfmac_f32_32x32x32_bf16 %s, %s, %s, v%d" % (vr(A_O, 16), vr(a, 4), vr(A_S[i & 1] + 8 * half, 8), A_IDX))
    def ex(i, lo, hi):
        for k in range(lo, hi):
            e("v_exp_f32 v%d, v%d" % (A_S[i & 1] + k, A_S[i & 1] + k))
    rdK(0, 0); rdK(1, 1); rdVa(0, 0); rdVb(0, 0)
    for k in range(8): e("v_mov_b32 v%d, 0" % (A_S[1] + 8 + k))
    for k in range(4): e("v_mov_b32 v%d, 0" % (A_VB[1] + k))
    e("s_mov_b32 %s, 0" % sr(S_CNT))
    e("s_waitcnt lgkmcnt(3)")
    qk(0)
    nop(12)
    L.append("L_attn:")
    for i in range(8):
        c("tile %d" % i)
        if i == 6:
            e("s_cmp_lg_u32 %s, 0" % sr(S_CNT))
            e("s_cbranch_scc1 L_attn_nosync")
            e("s_waitcnt vmcnt(0)")
            e("s_barrier")
            u_loads()
            L.append("L_attn_nosync:")
        ex(i, 0, 2)
        pv(i - 1, 1)
        ex(i, 2, 5)
        e("s_waitcnt lgkmcnt(2)")
        qk(i + 1)
        rdK(i + 2, i + 2)
        ex(i, 5, 10)
        e("s_waitcnt lgkmcnt(2)")
        pv(i, 0)
        rdVa(i + 1, i + 1)
        rdVb(i + 1, i + 1)
        if i == 7:
            e("v_add_u32 v%d, 0x2000, v%d" % (A_KA, A_KA))
            e("v_add_u32 v%d, 8320, v%d" % (A_V0, A_V0))
            e("v_add_u32 v%d, 8320, v%d" % (A_V1, A_V1))
            e("s_add_u32 %s, %s, 1" % (sr(S_CNT), sr(S_CNT)))
            e("s_cmp_lt_u32 %s, 8" % sr(S_CNT))
        ex(i, 10, 16)
        e("s_waitcnt lgkmcnt(3)")
    e("s_cbranch_scc1 L_attn")
    e("s_nop 1")
    pv(7, 1)
    e("s_waitcnt lgkmcnt(0)")
    nop(12)

def attn_check_and_slow():
    t = VT
    c("---- softmax guard: the fast path used shift 0; fall back to the true row max if that was unsafe ----")
    e("v_mul_f32 v%d, 0, v%d" % (t, A_O))
    for i in range(1, 8):
        e("v_fma_f32 v%d, v%d, 0, v%d" % (t, A_O + i, t))
    e("v_cmp_nle_f32 vcc, %s, v%d" % (fl(2.0 ** -40), A_O + 8))
    e("v_mov_b32 v%d, %s" % (t + 1, fl(2.0 ** 100)))
    e("v_cmp_nle_f32 s[4:5], v%d, v%d" % (A_O + 8, t + 1))
    e("v_cmp_neq_f32 s[6:7], 0, v%d" % t)
    e("s_or_b64 vcc, vcc, s[4:5]")
    e("s_or_b64 vcc, vcc, s[6:7]")
    if OPT["forceslow"]:
        e("s_mov_b64 vcc, -1")
    e("s_cmp_eq_u64 vcc, 0")
    e("s_cbranch_scc1 L_attn_ok")
    c("slow path pass 1: true row max")
    S = A_S[0]
    e("v_mov_b32 v%d, v%d" % (A_KA, V_L16))
    e("v_mov_b32 v%d, 0xff800000" % t)
    e("s_mov_b32 %s, 0" % sr(S_CNT))
    L.append("L_slow1:")
    e("ds_read_b128 %s, v%d" % (vr(A_KF[0], 4), A_KA))
    e("v_add_u32 v%d, 1024, v%d" % (A_KA, A_KA))
    e("s_waitcnt lgkmcnt(0)")
    e("v_mfma_f32_32x32x16_bf16 %s, %s, %s, 0" % (vr(S, 16), vr(A_KF[0], 4), vr(A_Q, 4)))
    nop(12)
    for k in range(0, 16, 2):
        e("v_max3_f32 v%d, v%d, v%d, v%d" % (t, t, S + k, S + k + 1))
    e("s_add_u32 %s, %s, 1" % (sr(S_CNT), sr(S_CNT)))
    e("s_cmp_lt_u32 %s, 64" % sr(S_CNT))
    e("s_cbranch_scc1 L_slow1")
    e("v_mov_b32 v%d, v%d" % (t + 1, t))
    e("s_nop 1")
    e("v_permlane32_swap_b32 v%d, v%d" % (t, t + 1))
    e("s_nop 1")
    e("v_max_f32 v%d, v%d, v%d" % (t, t, t + 1))
    for k in range(16):
        e("v_mul_f32 v%d, -1.0, v%d" % (A_NM + k, t))
    c("slow path pass 2")
    attn_addr()
    e("s_mov_b32 %s, 0" % sr(S_CNT))
    L.append("L_slow2:")
    e("ds_read_b128 %s, v%d" % (vr(A_KF[0], 4), A_KA))
    e("ds_read_b128 %s, v%d" % (vr(A_VA[0], 4), A_V0))
    e("ds_read_b128 %s, v%d" % (vr(A_VB[0], 4), A_V1))
    e("v_add_u32 v%d, 1024, v%d" % (A_KA, A_KA))
    e("v_add_u32 v%d, 1040, v%d" % (A_V0, A_V0))
    e("v_add_u32 v%d, 1040, v%d" % (A_V1, A_V1))
    e("s_waitcnt lgkmcnt(0)")
    e("v_mfma_f32_32x32x16_bf16 %s, %s, %s, %s" % (vr(S, 16), vr(A_KF[0], 4), vr(A_Q, 4), vr(A_NM, 16)))
    nop(12)
    for k in range(16):
        e("v_exp_f32 v%d, v%d" % (S + k, S + k))
    e("s_nop 1")
    e("v_smfmac_f32_32x32x32_bf16 %s, %s, %s, v%d" % (vr(A_O, 16), vr(A_VA[0], 4), vr(S, 8), A_IDX))
    e("v_smfmac_f32_32x32x32_bf16 %s, %s, %s, v%d" % (vr(A_O, 16), vr(A_VB[0], 4), vr(S + 8, 8), A_IDX))
    e("s_add_u32 %s, %s, 1" % (sr(S_CNT), sr(S_CNT)))
    e("s_cmp_lt_u32 %s, 64" % sr(S_CNT))
    e("s_cbranch_scc1 L_slow2")
    nop(12)
    L.append("L_attn_ok:")

def attn_publish():
    t = VT
    c("normalise and publish O")
    e("v_rcp_f32 v%d, v%d" % (t, A_O + 8))
    e("s_lshl_b32 %s, %s, 3" % (sr(S_T0), sr(S_H)))
    e("s_add_u32 %s, %s, %s" % (sr(S_T0), sr(S_T0), sr(S_J)))
    e("s_lshl_b32 %s, %s, 3" % (sr(S_T0), sr(S_T0)))
    e("s_add_u32 %s, %s, %s" % (sr(S_T0), sr(S_T0), sr(S_WV)))
    e("s_lshl_b32 %s, %s, 10" % (sr(S_T0), sr(S_T0)))
    e("s_add_u32 %s, %s, 0x%x" % (sr(S_T0), sr(S_T0), WS_O))
    for i in range(8):
        e("v_mul_f32 v%d, v%d, v%d" % (A_O + i, A_O + i, t))
    P = A_S[0]
    for i in range(4):
        e("v_cvt_pk_bf16_f32 v%d, v%d, v%d" % (P + i, A_O + 2 * i, A_O + 2 * i + 1))
    e("s_nop 1")
    e("v_permlane32_swap_b32 v%d, v%d" % (P, P + 2))
    e("v_permlane32_swap_b32 v%d, v%d" % (P + 1, P + 3))
    e("buffer_store_dwordx4 %s, v%d, %s, %s offen sc1" % (vr(P, 4), V_L16, sr(R_WS, 4), sr(S_T0)))

def u_stage():
    t = VT
    c("u -> LDS polyphase-4")
    e("v_and_b32 v%d, 3, v%d" % (t, V_L))
    e("v_mul_u32_u24 v%d, 1152, v%d" % (t, t))
    e("v_lshrrev_b32 v%d, 2, v%d" % (t + 1, V_L))
    e("v_lshl_add_u32 v%d, v%d, 1, v%d" % (t, t + 1, t))
    e("s_lshl_b32 %s, %s, 7" % (sr(S_T0), sr(S_WV)))
    e("s_add_u32 %s, %s, %d" % (sr(S_T0), sr(S_T0), L_UP + 128))
    e("v_add_u32 v%d, %s, v%d" % (t, sr(S_T0), t))
    for i in range(4):
        e("ds_write_b16 v%d, v%d offset:%d" % (t, V_U + i, 32 * i))
        e("ds_write_b16_d16_hi v%d, v%d offset:%d" % (t, V_U + i, 4608 + 32 * i))

def wo_loads():
    t = VT
    c("Wo slice -> LDS")
    e("v_lshrrev_b32 v%d, 3, v%d" % (t, V_L))
    e("v_and_b32 v%d, 7, v%d" % (t + 1, V_L))
    e("v_bfe_u32 v%d, v%d, 4, 1" % (t + 2, V_L))
    e("v_lshlrev_b32 v%d, 2, v%d" % (t + 2, t + 2))
    e("v_xor_b32 v%d, v%d, v%d" % (t + 1, t + 1, t + 2))
    e("v_lshlrev_b32 v%d, 4, v%d" % (t + 1, t + 1))
    e("v_lshl_add_u32 v%d, v%d, 10, v%d" % (t, t, t + 1))
    e("s_and_b32 %s, %s, 7" % (sr(S_T0), sr(S_I5)))
    e("s_lshl_b32 %s, %s, 7" % (sr(S_T0), sr(S_T0)))
    e("s_lshl_b32 %s, %s, 13" % (sr(S_T1), sr(S_WV)))
    e("s_add_u32 %s, %s, %s" % (sr(S_T0), sr(S_T0), sr(S_T1)))
    e("s_lshl_b32 %s, %s, 10" % (sr(S_T1), sr(S_WV)))
    for n in range(8):
        e("s_add_u32 m0, %s, %d" % (sr(S_T1), L_WO + n * 8192))
        e("s_nop 0")
        e("buffer_load_dwordx4 v%d, %s, %s offen lds" % (t, sr(R_WO, 4), sr(S_T0)))
        if n < 7: e("s_add_u32 %s, %s, 0x10000" % (sr(S_T0), sr(S_T0)))

C_ACC = [32, 48]
C_A = 64
C_B = 80
C_B2 = 96
C_VA, C_VB, C_VB2 = 112, 113, 114

def o_signal():
    t = VT
    lab = "L_osig%d" % len(L)
    e("s_waitcnt vmcnt(8)")
    e("v_mov_b32 v%d, 0x%x" % (t + 2, L_MISC))
    e("v_mov_b32 v%d, 1" % (t + 3))
    e("s_mov_b64 exec, 1")
    e("ds_add_rtn_u32 v%d, v%d, v%d" % (t + 3, t + 2, t + 3))
    e("s_mov_b64 exec, -1")
    e("s_waitcnt lgkmcnt(0)")
    e("v_readfirstlane_b32 %s, v%d" % (sr(S_T0), t + 3))
    e("s_cmp_eq_u32 %s, 7" % sr(S_T0))
    e("s_cbranch_scc0 %s" % lab)
    e("s_lshl_b32 %s, %s, 5" % (sr(S_T0), sr(S_J)))
    e("s_add_u32 %s, %s, %s" % (sr(S_T0), sr(S_T0), sr(S_H)))
    e("s_lshl_b32 %s, %s, 7" % (sr(S_T0), sr(S_T0)))
    e("s_add_u32 %s, %s, %d" % (sr(S_T0), sr(S_T0), WS_F2))
    flag_store(sr(S_T0))
    L.append(lab + ":")

def conv():
    t = VT
    c("---- causal conv as Toeplitz MFMA ----")
    e("s_cmp_ge_u32 %s, 4" % sr(S_WV))
    csel(S_T0, L_KF + 4160 + 64 + 64 - 32, L_KF + 64 + 64 - 32)
    csel(S_T1, L_UP + 4608, L_UP)
    e("v_bfe_u32 v%d, v%d, 4, 1" % (t, V_L))
    e("v_and_b32 v%d, 3, v%d" % (t + 1, V_L))
    e("v_lshl_add_u32 v%d, v%d, 2, v%d" % (t, t, t + 1))
    e("v_lshrrev_b32 v%d, 5, v%d" % (t + 1, V_L))
    e("v_bfe_u32 v%d, v%d, 2, 2" % (t + 2, V_L))
    e("v_lshl_add_u32 v%d, v%d, 3, v%d" % (t + 2, t + 1, t + 2))
    e("v_sub_u32 v%d, v%d, v%d" % (t, t, t + 2))
    e("v_lshlrev_b32 v%d, 3, v%d" % (t, t))
    e("v_add_u32 v%d, %s, v%d" % (C_VA, sr(S_T0), t))
    e("v_bfe_u32 v%d, v%d, 3, 2" % (t, V_L))
    e("v_mul_u32_u24 v%d, 1152, v%d" % (t, t))
    e("v_and_b32 v%d, 7, v%d" % (t + 2, V_L))
    e("v_add_u32 v%d, v%d, v%d" % (t + 2, t + 2, t + 1))
    e("v_lshl_add_u32 v%d, v%d, 4, v%d" % (t, t + 2, t))
    e("s_add_u32 %s, %s, 16" % (sr(S_T1), sr(S_T1)))
    e("v_add_u32 v%d, %s, v%d" % (C_VB, sr(S_T1), t))
    e("s_and_b32 %s, %s, 3" % (sr(S_T2), sr(S_WV)))
    for q in range(1, 4):
        e("s_cmp_eq_u32 %s, %d" % (sr(S_T2), q))
        e("s_cbranch_scc1 L_conv%d" % q)
    for q in range(4):
        L.append("L_conv%d:" % q)
        TB_, TS = 7 - q, q
        nb, ns = 4 * TB_ + 4, 4 * TS + 4
        D = 3
        cnt = []
        def rd(s):
            k = s % 4
            e("ds_read_b64_tr_b16 %s, v%d offset:%d" % (vr(C_A + 4 * k, 2), C_VA, 128 * s + 32))
            e("ds_read_b64_tr_b16 %s, v%d offset:%d" % (vr(C_A + 4 * k + 2, 2), C_VA, 128 * s))
            e("ds_read_b128 %s, v%d offset:%d" % (vr(C_B + 4 * k, 4), C_VB, 32 * (nb - 1 - s)))
            if s < ns:
                e("ds_read_b128 %s, v%d offset:%d" % (vr(C_B2 + 4 * k, 4), C_VB, 32 * (ns - 1 - s)))
        nops_ = lambda s: (4 if s < ns else 3) if s < nb else 0
        for s in range(D): rd(s)
        done = 0
        signalled = False
        for s in range(nb):
            k = s % 4
            if not signalled and done >= 16:
                o_signal()
                signalled = True
            else:
                e("s_waitcnt lgkmcnt(%d)" % sum(nops_(x) for x in range(s + 1, s + D)))
            e("v_mfma_f32_32x32x16_bf16 %s, %s, %s, %s" % (vr(C_ACC[0], 16), vr(C_A + 4 * k, 4), vr(C_B + 4 * k, 4), "0" if s == 0 else vr(C_ACC[0], 16)))
            done += 1
            if s < ns:
                e("v_mfma_f32_32x32x16_bf16 %s, %s, %s, %s" % (vr(C_ACC[1], 16), vr(C_A + 4 * k, 4), vr(C_B2 + 4 * k, 4), "0" if s == 0 else vr(C_ACC[1], 16)))
                done += 1
            if s + D < nb: rd(s + D)
        if q < 3: e("s_branch L_conv_done")
    L.append("L_conv_done:")
    c("Z partials -> LDS")
    e("s_cmp_ge_u32 %s, 4" % sr(S_WV))
    csel(S_T0, L_Z + 4 * ZS + 144, L_Z + 144)
    e("v_bfe_u32 v%d, v%d, 3, 2" % (t, V_L))
    e("v_mul_u32_u24 v%d, %d, v%d" % (t, ZS, t))
    e("v_and_b32 v%d, 7, v%d" % (t + 2, V_L))
    e("v_mul_u32_u24 v%d, 144, v%d" % (t + 2, t + 2))
    e("v_lshrrev_b32 v%d, 5, v%d" % (t + 1, V_L))
    e("v_lshl_add_u32 v%d, v%d, 4, v%d" % (t + 2, t + 1, t + 2))
    e("v_add3_u32 v%d, v%d, v%d, %s" % (t, t, t + 2, sr(S_T0)))
    e("s_mul_i32 %s, %s, 1152" % (sr(S_T1), sr(S_T2)))
    e("v_add_u32 v%d, %s, v%d" % (t + 1, sr(S_T1), t))
    e("s_sub_u32 %s, %d, %s" % (sr(S_T1), 7 * 1152, sr(S_T1)))
    e("v_add_u32 v%d, %s, v%d" % (t, sr(S_T1), t))
    e("v_mov_b32 v%d, 0" % C_A); e("v_mov_b32 v%d, 0" % (C_A + 1)); e("v_mov_b32 v%d, 0" % (C_A + 2)); e("v_mov_b32 v%d, 0" % (C_A + 3))
    e("v_and_b32 v%d, 7, v%d" % (t + 2, V_L))
    e("v_mul_u32_u24 v%d, %d, v%d" % (t + 2, ZS, t + 2))
    e("v_add_u32 v%d, 0x%x, v%d" % (t + 2, L_Z + 112, t + 2))
    for k in range(4):
        e("ds_write_b128 v%d, %s offset:%d" % (t + 1, vr(C_ACC[1] + 4 * k, 4), 32 * k))
    for k in range(4):
        e("ds_write_b128 v%d, %s offset:%d" % (t, vr(C_ACC[0] + 4 * k, 4), 32 * k))
    e("s_cmp_eq_u32 %s, 0" % sr(S_WV))
    e("s_cbranch_scc0 L_zpad")
    e("ds_write_b128 v%d, %s" % (t + 2, vr(C_A, 4)))
    L.append("L_zpad:")

Y_R = 32
Y_OUT = 64
def conv_epilogue():
    t = VT
    c("y = sum_p Z_p[t-p] + u*D")
    e("s_lshl_b32 %s, %s, 8" % (sr(S_T0), sr(S_WV)))
    e("s_add_u32 %s, %s, 32" % (sr(S_T0), sr(S_T0)))
    for p in range(4):
        e("v_add_u32 v%d, %s, v%d" % (t + 4, sr(S_T0), V_L))
        if p: e("v_subrev_u32 v%d, %d, v%d" % (t + 4, p, t + 4))
        e("v_lshrrev_b32 v%d, 5, v%d" % (t + 5, t + 4))
        e("v_lshlrev_b32 v%d, 2, v%d" % (t + 4, t + 4))
        e("v_lshl_add_u32 v%d, v%d, 4, v%d" % (t + 4, t + 5, t + 4))
        e("v_add_u32 v%d, 0x%x, v%d" % (t + p, L_Z + p * ZS, t + 4))
    e("s_lshl_b32 %s, %s, 16" % (sr(S_D0), sr(S_DS2)))
    e("s_and_b32 %s, %s, 0xffff0000" % (sr(S_D1), sr(S_DS2)))
    e("s_waitcnt lgkmcnt(0)")
    e("s_barrier")
    order = [(i, cl) for i in range(4) for cl in range(2)]
    def rd(n):
        i, cl = order[n]
        for p in range(4):
            e("ds_read_b32 v%d, v%d offset:%d" % (Y_R + 4 * n + p, t + p, cl * 4 * ZS + 288 * i))
    rd(0); rd(1); rd(2)
    for n in range(8):
        i, cl = order[n]
        r = Y_R + 4 * n
        if cl == 0: e("v_lshlrev_b32 v%d, 16, v%d" % (t + 4, V_U + i))
        else: e("v_and_b32 v%d, 0xffff0000, v%d" % (t + 5, V_U + i))
        e("s_waitcnt lgkmcnt(%d)" % (4 * (min(n + 2, 7) - n)))
        if n + 3 < 8: rd(n + 3)
        e("v_add_f32 v%d, v%d, v%d" % (r, r, r + 1))
        e("v_add_f32 v%d, v%d, v%d" % (r + 2, r + 2, r + 3))
        e("v_fma_f32 v%d, v%d, %s, v%d" % (r, t + 4 + cl, sr(S_D0 + cl), r))
        e("v_add_f32 v%d, v%d, v%d" % (r, r, r + 2))
        if cl == 1:
            e("v_cvt_pk_bf16_f32 v%d, v%d, v%d" % (Y_OUT + i, r - 4, r))

def y_stores():
    t = VT + 8
    e("s_lshl_b32 %s, %s, 19" % (sr(S_T0), sr(S_WV)))
    e("s_lshl_b32 %s, %s, 1" % (sr(S_T1), sr(S_C0)))
    e("s_add_u32 %s, %s, %s" % (sr(S_T0), sr(S_T0), sr(S_T1)))
    e("v_lshlrev_b32 v%d, 11, v%d" % (t, V_L))
    for i in range(4):
        e("buffer_store_dword v%d, v%d, %s, %s offen" % (Y_OUT + i, t, sr(R_OUT, 4), sr(S_T0)))
        if i < 3: e("s_add_u32 %s, %s, 0x20000" % (sr(S_T0), sr(S_T0)))

P_W = 128
P_ACC = 72
P_OF = 88
def wo_frags():
    t = VT
    c("Wo fragments -> registers (waves 0..3)")
    e("v_lshrrev_b32 v%d, 5, v%d" % (t, V_L))
    e("v_bfe_u32 v%d, v%d, 2, 2" % (t + 1, V_L))
    e("v_lshl_add_u32 v%d, v%d, 3, v%d" % (t, t, t + 1))
    e("v_lshlrev_b32 v%d, 7, v%d" % (t, t))
    e("v_and_b32 v%d, 1, v%d" % (t + 1, V_L))
    e("v_bfe_u32 v%d, v%d, 4, 1" % (t + 2, V_L))
    e("v_lshl_or_b32 v%d, v%d, 1, v%d" % (t + 1, t + 1, t + 2))
    e("s_and_b32 %s, %s, 2" % (sr(S_T0), sr(S_WV)))
    e("s_lshl_b32 %s, %s, 1" % (sr(S_T0), sr(S_T0)))
    e("v_or_b32 v%d, %s, v%d" % (t + 1, sr(S_T0), t + 1))
    e("v_bfe_u32 v%d, v%d, 3, 1" % (t + 2, V_L))
    e("v_lshlrev_b32 v%d, 2, v%d" % (t + 2, t + 2))
    e("v_xor_b32 v%d, v%d, v%d" % (t + 1, t + 1, t + 2))
    e("v_lshl_add_u32 v%d, v%d, 4, v%d" % (t, t + 1, t))
    e("v_bfe_u32 v%d, v%d, 1, 1" % (t + 2, V_L))
    e("v_lshl_add_u32 v%d, v%d, 3, v%d" % (t, t + 2, t))
    for hh in range(32):
        for tt in range(2):
            e("ds_read_b64_tr_b16 %s, v%d offset:%d" % (vr(P_W + 4 * hh + 2 * tt, 2), t, L_WO + hh * 2048 + tt * 512))

def o_loads():
    c("O tiles -> LDS")
    e("s_lshr_b32 %s, %s, 1" % (sr(S_T0), sr(S_WV)))
    e("s_lshl_b32 %s, %s, 6" % (sr(S_T0), sr(S_T0)))
    e("s_lshl_b32 %s, %s, 3" % (sr(S_T1), sr(S_XQ)))
    e("s_add_u32 %s, %s, %s" % (sr(S_T0), sr(S_T0), sr(S_T1)))
    e("s_lshr_b32 %s, %s, 3" % (sr(S_T1), sr(S_I5)))
    e("s_lshl_b32 %s, %s, 1" % (sr(S_T1), sr(S_T1)))
    e("s_add_u32 %s, %s, %s" % (sr(S_T0), sr(S_T0), sr(S_T1)))
    e("s_and_b32 %s, %s, 1" % (sr(S_T1), sr(S_WV)))
    e("s_add_u32 %s, %s, %s" % (sr(S_T0), sr(S_T0), sr(S_T1)))
    e("s_lshl_b32 %s, %s, 10" % (sr(S_T0), sr(S_T0)))
    e("s_add_u32 %s, %s, 0x%x" % (sr(S_T0), sr(S_T0), WS_O))
    e("s_lshl_b32 %s, %s, 10" % (sr(S_T1), sr(S_WV)))
    for n in range(8):
        e("s_add_u32 m0, %s, %d" % (sr(S_T1), L_O + n * 8192))
        e("s_nop 0")
        e("buffer_load_dwordx4 v%d, %s, %s offen sc1 lds" % (V_L16, sr(R_WS, 4), sr(S_T0)))
        if n < 7: e("s_add_u32 %s, %s, 0x40000" % (sr(S_T0), sr(S_T0)))

def outproj_half(half, va):
    for k in range(8):
        e("ds_read_b128 %s, v%d offset:%d" % (vr(P_OF + 4 * k, 4), va, (16 * half + k) * 2048))
    for k in range(16):
        hh = 16 * half + k
        e("s_waitcnt lgkmcnt(%d)" % (min(k + 7, 15) - k))
        e("v_mfma_f32_32x32x16_bf16 %s, %s, %s, %s" % (vr(P_ACC, 16), vr(P_W + 4 * hh, 4), vr(P_OF + 4 * (k % 8), 4), "0" if hh == 0 else vr(P_ACC, 16)))
        if k + 8 < 16:
            e("ds_read_b128 %s, v%d offset:%d" % (vr(P_OF + 4 * (k % 8), 4), va, (hh + 8) * 2048))

def dump_lds(base, nbytes, wsoff):
    t = VT
    e("s_waitcnt lgkmcnt(0)"); e("s_barrier")
    e("v_lshlrev_b32 v%d, 4, v0" % t)
    e("s_lshl_b32 %s, s2, 18" % sr(S_T0))
    e("s_add_u32 %s, %s, 0x%x" % (sr(S_T0), sr(S_T0), WS_DBG + wsoff))
    for o in range(0, nbytes, 8192):
        e("v_add_u32 v%d, 0x%x, v%d" % (t + 1, base + o, t))
        e("ds_read_b128 %s, v%d" % (vr(t + 2, 4), t + 1))
        e("s_waitcnt lgkmcnt(0)")
        e("buffer_store_dwordx4 %s, v%d, %s, %s offen" % (vr(t + 2, 4), t, sr(R_WS, 4), sr(S_T0)))
        e("s_add_u32 %s, %s, 8192" % (sr(S_T0), sr(S_T0)))
        e("s_waitcnt vmcnt(0)")
    e("s_barrier")

def write_stamps():
    if not OPT["stamps"]: return
    t = VT
    e("s_waitcnt vmcnt(0)")
    stamp()
    e("s_lshl_b32 %s, s2, 3" % sr(S_T0))
    e("s_add_u32 %s, %s, %s" % (sr(S_T0), sr(S_T0), sr(S_WV)))
    e("s_lshl_b32 %s, %s, 7" % (sr(S_T0), sr(S_T0)))
    e("s_add_u32 %s, %s, 0x%x" % (sr(S_T0), sr(S_T0), 0x0c00000))
    e("s_mov_b64 exec, 1")
    e("v_mov_b32 v%d, 0" % t)
    for i in range(nstamp[0]):
        e("v_mov_b32 v%d, %s" % (t + 1, sr(S_ST + 2 * i)))
        e("buffer_store_dword v%d, v%d, %s, %s offen offset:%d" % (t + 1, t, sr(R_WS, 4), sr(S_T0), 4 * i))
        e("s_nop 1")
    e("v_mov_b32 v%d, s100" % (t + 1))
    e("buffer_store_dword v%d, v%d, %s, %s offen offset:%d" % (t + 1, t, sr(R_WS, 4), sr(S_T0), 64))
    e("s_mov_b64 exec, -1")

def main():
    header()
    setup()
    gemm_addr()
    t = VT
    e("s_bfe_u32 %s, %s, 0x10001" % (sr(S_T0), sr(S_WV)))
    e("s_add_u32 %s, %s, %s" % (sr(S_T0), sr(S_T0), sr(S_C0)))
    e("s_lshl_b32 %s, %s, 8" % (sr(S_T0), sr(S_T0)))
    e("s_and_b32 %s, %s, 1" % (sr(S_T1), sr(S_WV)))
    e("s_lshl_b32 %s, %s, 7" % (sr(S_T1), sr(S_T1)))
    e("s_add_u32 %s, %s, %s" % (sr(S_T0), sr(S_T0), sr(S_T1)))
    e("v_lshl_add_u32 v3, v%d, 1, %s" % (V_L, sr(S_T0)))
    e("s_waitcnt lgkmcnt(0)")
    stamp()
    srd(R_X, S_X, 2048 * 1024)
    srd(R_W, S_W, 512 * 3072)
    for i, s in enumerate((S_ARE, S_AIM, S_BRE, S_BIM, S_CRE, S_CIM)):
        e("global_load_ushort v%d, v3, %s" % (V_PAR + i, sr(s, 2)))
    for ci in range(2): gemm_issue(ci)
    e("s_lshl_b32 %s, %s, 1" % (sr(S_T4), sr(S_C0)))
    e("s_load_dword %s, %s, 0" % (sr(S_TAG), sr(S_WS, 2)))
    e("s_load_dword %s, %s, %s" % (sr(S_LD2), sr(S_LDT, 2), sr(S_T4)))
    e("s_load_dword %s, %s, %s" % (sr(S_DS2), sr(S_DSK, 2), sr(S_T4)))
    for ci in range(2, 5): gemm_issue(ci)
    srd(R_WS, S_WS, WS_SIZE)
    srd(R_U, S_U, 2048 * 1024)
    srd(R_OUT, S_OUT, 2048 * 2048)
    srd(R_WO, S_WO, 512 * 1024)
    gemm_read_addr()
    e("s_waitcnt lgkmcnt(0)")
    e("s_add_u32 %s, %s, 1" % (sr(S_TAG), sr(S_TAG)))
    e("s_cmp_ge_u32 %s, 4" % sr(S_WV))
    e("s_cbranch_scc1 L_gemm_nov")
    gemm_loop(True)
    gemm_epilogue(True)
    e("s_branch L_gemm_done")
    L.append("L_gemm_nov:")
    gemm_loop(False)
    gemm_epilogue(False)
    L.append("L_gemm_done:")
    stamp()
    kgen_tables()
    e("s_waitcnt vmcnt(0) lgkmcnt(0)")
    e("s_barrier")
    stamp()
    e("s_cmp_eq_u32 %s, 0" % sr(S_WV))
    e("s_cbranch_scc0 L_nof1")
    e("s_lshl_b32 %s, %s, 5" % (sr(S_T0), sr(S_XQ)))
    e("s_add_u32 %s, %s, %s" % (sr(S_T0), sr(S_T0), sr(S_I5)))
    e("s_lshl_b32 %s, %s, 7" % (sr(S_T0), sr(S_T0)))
    e("s_add_u32 %s, %s, %d" % (sr(S_T0), sr(S_T0), WS_F1))
    flag_store(sr(S_T0))
    L.append("L_nof1:")
    kgen_mfma()
    e("s_cmp_eq_u32 %s, 0" % sr(S_WV))
    e("s_cbranch_scc0 L_nopoll1")
    e("s_lshl_b32 %s, %s, 12" % (sr(S_T0), sr(S_XQ)))
    e("s_add_u32 %s, %s, %d" % (sr(S_T0), sr(S_T0), WS_F1))
    poll("L_poll1", sr(S_T0))
    L.append("L_nopoll1:")
    e("s_waitcnt lgkmcnt(0)")
    e("s_barrier")
    stamp()
    attn_loads()
    attn_addr()
    e("s_waitcnt vmcnt(14)")
    e("s_barrier")
    stamp()
    attn_main()
    attn_check_and_slow()
    stamp()
    attn_publish()
    e("s_waitcnt vmcnt(1)")
    u_stage()
    e("s_waitcnt lgkmcnt(0)")
    e("s_barrier")
    if OPT["dump"]:
        dump_lds(L_KF, 24576, 0)
    wo_loads()
    conv()
    stamp()
    conv_epilogue()
    e("s_waitcnt vmcnt(0)")
    e("s_cmp_eq_u32 %s, 7" % sr(S_WV))
    e("s_cbranch_scc0 L_nopoll2")
    e("s_lshl_b32 %s, %s, 12" % (sr(S_T0), sr(S_XQ)))
    e("s_add_u32 %s, %s, %d" % (sr(S_T0), sr(S_T0), WS_F2))
    poll("L_poll2", sr(S_T0))
    L.append("L_nopoll2:")
    e("s_barrier")
    stamp()
    o_loads()
    y_stores()
    e("s_cmp_ge_u32 %s, 4" % sr(S_WV))
    e("s_cbranch_scc1 L_op_idle")
    wo_frags()
    va = VT + 4
    e("s_and_b32 %s, %s, 1" % (sr(S_T0), sr(S_WV)))
    e("s_lshl_b32 %s, %s, 10" % (sr(S_T0), sr(S_T0)))
    e("s_add_u32 %s, %s, %d" % (sr(S_T0), sr(S_T0), L_O))
    e("v_add_u32 v%d, %s, v%d" % (va, sr(S_T0), V_L16))
    vo = VT + 5
    e("v_and_b32 v%d, 31, v%d" % (vo, V_L))
    e("v_lshlrev_b32 v%d, 11, v%d" % (vo, vo))
    e("v_lshrrev_b32 v%d, 5, v%d" % (vo + 1, V_L))
    e("v_lshl_add_u32 v%d, v%d, 5, v%d" % (vo, vo + 1, vo))
    e("s_lshl_b32 %s, %s, 2" % (sr(S_T0), sr(S_XQ)))
    e("s_lshr_b32 %s, %s, 3" % (sr(S_T1), sr(S_I5)))
    e("s_add_u32 %s, %s, %s" % (sr(S_T0), sr(S_T0), sr(S_T1)))
    e("s_lshl_b32 %s, %s, 1" % (sr(S_T0), sr(S_T0)))
    e("s_and_b32 %s, %s, 1" % (sr(S_T1), sr(S_WV)))
    e("s_add_u32 %s, %s, %s" % (sr(S_T0), sr(S_T0), sr(S_T1)))
    e("s_lshl_b32 %s, %s, 16" % (sr(S_T0), sr(S_T0)))
    e("s_and_b32 %s, %s, 7" % (sr(S_T1), sr(S_I5)))
    e("s_lshl_b32 %s, %s, 7" % (sr(S_T1), sr(S_T1)))
    e("s_add_u32 %s, %s, %s" % (sr(S_T0), sr(S_T0), sr(S_T1)))
    e("s_and_b32 %s, %s, 2" % (sr(S_T1), sr(S_WV)))
    e("s_lshl_b32 %s, %s, 5" % (sr(S_T1), sr(S_T1)))
    e("s_add_u32 %s, %s, %s" % (sr(S_T0), sr(S_T0), sr(S_T1)))
    e("s_add_u32 %s, %s, 1024" % (sr(S_T5), sr(S_T0)))
    e("s_waitcnt vmcnt(8) lgkmcnt(0)")
    e("s_barrier")
    outproj_half(0, va)
    e("s_waitcnt vmcnt(4)")
    e("s_barrier")
    outproj_half(1, va)
    nop(12)
    for i in range(8):
        e("v_cvt_pk_bf16_f32 v%d, v%d, v%d" % (P_OF + i, P_ACC + 2 * i, P_ACC + 2 * i + 1))
    e("buffer_store_dwordx4 %s, v%d, %s, %s offen" % (vr(P_OF, 4), vo, sr(R_OUT, 4), sr(S_T5)))
    e("buffer_store_dwordx4 %s, v%d, %s, %s offen offset:16" % (vr(P_OF + 4, 4), vo, sr(R_OUT, 4), sr(S_T5)))
    e("s_branch L_fin")
    L.append("L_op_idle:")
    e("s_waitcnt vmcnt(8)")
    e("s_barrier")
    e("s_waitcnt vmcnt(4)")
    e("s_barrier")
    e("s_cmp_eq_u32 s2, 0")
    e("s_cbranch_scc0 L_fin")
    e("s_cmp_eq_u32 %s, 7" % sr(S_WV))
    e("s_cbranch_scc0 L_fin")
    flag_store("0")
    L.append("L_fin:")
    write_stamps()
    if OPT["dbgspan"]:
        t = VT
        e("s_cmp_eq_u32 %s, 0" % sr(S_WV))
        e("s_cbranch_scc0 L_end")
        e("s_and_b32 %s, s2, 63" % sr(S_T0))
        e("s_cmp_eq_u32 %s, 5" % sr(S_T0))
        e("s_cbranch_scc0 L_end")
        e("s_waitcnt vmcnt(0)")
        e("s_memrealtime s[96:97]")
        e("s_memtime s[94:95]")
        srd(R_X, S_DBG, 256)
        e("s_lshr_b32 %s, s2, 6" % sr(S_T0))
        e("s_lshl_b32 %s, %s, 4" % (sr(S_T0), sr(S_T0)))
        e("s_waitcnt lgkmcnt(0)")
        e("s_mov_b64 exec, 1")
        e("v_mov_b32 v%d, 0" % t)
        e("s_sub_u32 s94, s94, s98")
        e("s_sub_u32 s96, s96, s100")
        e("v_mov_b32 v%d, s100" % (t + 2))
        e("v_mov_b32 v%d, s96" % (t + 3))
        e("v_mov_b32 v%d, s94" % (t + 4))
        e("v_mov_b32 v%d, 0" % (t + 5))
        e("buffer_store_dwordx4 %s, v%d, %s, %s offen" % (vr(t + 2, 4), t, sr(R_X, 4), sr(S_T0)))
    footer(256)
    open(sys.argv[1], "w").write("\n".join(L) + "\n")

main()
```

```python
import sys, struct, math

NAME = "concat_heads__ssm_conv_s4__softmax_full_mha__prompt"
OPT = dict(stamps=0, dump=0, forceslow=0, dbgspan=0, flip=28, pf=1, yt=[15, 19, 23, 27], wt=[9, 11, 13, 17, 21, 25, 28, 29])
for a in sys.argv[2:]:
    k, v = a.split("=")
    OPT[k] = int(v) if v.lstrip("-").isdigit() else v

L = []
SINK = [L]
def e(s): SINK[0].append("    " + s)
def lab(s): SINK[0].append(s + ":")
def c(s): SINK[0].append("    ; " + s)
def f2u(x): return struct.unpack("<I", struct.pack("<f", x))[0]
def fl(x): return "0x%08x" % f2u(x)
def vr(a, n=1): return "v%d" % a if n == 1 else "v[%d:%d]" % (a, a + n - 1)
def sr(a, n=1): return "s%d" % a if n == 1 else "s[%d:%d]" % (a, a + n - 1)
def nop(n):
    while n > 0:
        k = min(n, 16); e("s_nop %d" % (k - 1)); n -= k
def capture(fn, *a):
    out = []; SINK[0] = out; fn(*a); SINK[0] = L; return out

WS_F1 = 0x1000
WS_F2 = 0xa000
WS_F0 = 0x20000
WS_Q, WS_K, WS_V, WS_O, WS_U2 = 0x100000, 0x300000, 0x500000, 0x700000, 0x900000
WS_ST = 0xc00000
WS_DBG = 0x1000000
WS_SIZE = 0x10000000
LDS_TOTAL = 163840
BLK = 16512
L_FL = 146240
L_KF = 146304
L_UP = 154624
L_TB = 0
L_TA = 33792
L_Z = 71360
ZS = 9360
L_WO = 0
L_O = 65536
L_SC = 65536
L_OT = 131072
S_U, S_ARE, S_AIM, S_BRE, S_BIM, S_CRE, S_CIM, S_LDT = 8, 10, 12, 14, 16, 18, 20, 22
S_DSK, S_X, S_W, S_WO, S_OUT, S_DBG, S_WS = 24, 26, 28, 30, 32, 34, 36
R_X, R_W, R_WS, R_U, R_OUT, R_WO = "s[40:43]", "s[44:47]", "s[48:51]", "s[52:55]", "s[56:59]", "s[60:63]"
XQ, I5, WV, TAG, LD2, DS2, HH, JJ, C0 = "s64", "s65", "s66", "s67", "s68", "s69", "s70", "s71", "s72"
T0, T1, T2, T3, T4, T5, CNT = "s73", "s74", "s75", "s76", "s77", "s78", "s79"
CQ, FLIP, W10, NXT = "s38", "s39", "s3", "s7"
S_ST = 80
stamp_names = []
def stamp(name):
    if OPT["stamps"]:
        if name not in stamp_names: stamp_names.append(name)
        assert len(stamp_names) <= 18
        e("s_waitcnt lgkmcnt(0)")
        e("s_memtime s[98:99]")
        e("s_waitcnt lgkmcnt(0)")
        e("s_mov_b32 %s, s98" % sr(S_ST + stamp_names.index(name)))
def srd(r, base, size):
    r = int(r[2:r.index(":")])
    e("s_mov_b32 %s, %s" % (sr(r), sr(base)))
    e("s_and_b32 %s, %s, 0xffff" % (sr(r + 1), sr(base + 1)))
    e("s_mov_b32 %s, 0x%x" % (sr(r + 2), size))
    e("s_mov_b32 %s, 0x00020000" % sr(r + 3))
def csel(dst, a, b):
    e("s_mov_b32 %s, %d" % (dst, b))
    e("s_cselect_b32 %s, %d, %s" % (dst, a, dst))
LOG2E = math.log2(math.e)

V_L, V_L16, V_PA = 1, 2, 3
V_PAR = 4
V_Y = 10
VT = 14

def header():
    L.append("; fused S4 long-conv (part A) + multi-head attention (part B): one launch, 256 WGs x 8 waves")
    L.append("; @launch grid=(256,1,1) block=(512,1,1) lds=%d" % LDS_TOTAL)
    L.append('.amdgcn_target "amdgcn-amd-amdhsa--gfx950"')
    L.append(".text")
    L.append(".globl %s_kernel" % NAME)
    L.append(".p2align 8")
    L.append(".type %s_kernel,@function" % NAME)
    L.append("%s_kernel:" % NAME)
def footer(nv):
    lab("L_end")
    e("s_endpgm")
    L.append('.section .rodata,"a"')
    L.append(".p2align 6")
    L.append(".amdhsa_kernel %s_kernel" % NAME)
    L.append("  .amdhsa_next_free_vgpr %d" % nv)
    L.append("  .amdhsa_next_free_sgpr 102")
    L.append("  .amdhsa_accum_offset %d" % nv)
    L.append("  .amdhsa_group_segment_fixed_size 0")
    L.append("  .amdhsa_kernarg_size 120")
    L.append("  .amdhsa_user_sgpr_count 2")
    L.append("  .amdhsa_user_sgpr_kernarg_segment_ptr 1")
    L.append("  .amdhsa_system_sgpr_workgroup_id_x 1")
    L.append(".end_amdhsa_kernel")

def setup():
    c("---- setup ----")
    e("s_cmp_ge_u32 s2, 256")
    e("s_cbranch_scc1 L_end")
    e("s_load_dwordx8 s[24:31], s[0:1], 64")
    e("s_load_dwordx16 s[8:23], s[0:1], 0")
    e("s_load_dwordx4 s[32:35], s[0:1], 96")
    e("s_load_dwordx2 s[36:37], s[0:1], 112")
    if OPT["stamps"] or OPT["dbgspan"]: e("s_memrealtime s[100:101]")
    if OPT["dbgspan"]: e("s_memtime s[98:99]")
    e("v_and_b32 v%d, 63, v0" % V_L)
    e("v_lshrrev_b32 v%d, 6, v0" % VT)
    e("v_lshlrev_b32 v%d, 4, v%d" % (V_L16, V_L))
    e("v_readfirstlane_b32 %s, v%d" % (WV, VT))
    e("s_and_b32 %s, s2, 7" % XQ)
    e("s_lshr_b32 %s, s2, 3" % I5)
    e("s_lshl_b32 %s, %s, 10" % (W10, WV))
    e("v_mov_b32 v45, 0")

def setup2():
    e("s_and_b32 %s, %s, 3" % (T0, I5))
    e("s_lshl_b32 %s, %s, 2" % (HH, XQ))
    e("s_add_u32 %s, %s, %s" % (HH, HH, T0))
    e("s_lshr_b32 %s, %s, 2" % (JJ, I5))
    e("s_and_b32 %s, %s, 3" % (CQ, WV))
    e("s_sub_u32 %s, 3, %s" % (T0, CQ))
    e("s_cmp_ge_u32 %s, 4" % WV)
    e("s_cselect_b32 %s, %s, %s" % (CQ, T0, CQ))

G_VX0, G_VX1, G_VWQ, G_VWK, G_VWV = 32, 33, 34, 35, 36
G_UA, G_US = 44, 45
G_UL = 48
G_XA = 32
G_WA = 40
G_WB = 232
G_PL = 46
G_ACC = [48, 64, 80]
G_F = 96
G_XF, G_W0F, G_W1F, G_VF = 96, 112, 236, 176
KB = 128
KR = 200

def loader_addr():
    t = VT
    c("loader DMA voffsets (wave v=w-4 covers rows 16v..16v+15 of each chunk)")
    e("v_lshrrev_b32 v%d, 3, v%d" % (t, V_L))
    e("v_and_b32 v%d, 7, v%d" % (t + 1, V_L))
    e("v_bfe_u32 v%d, v%d, 4, 1" % (t + 2, V_L))
    e("s_and_b32 %s, %s, 3" % (T0, WV))
    e("s_lshl_b32 %s, %s, 4" % (T0, T0))
    e("v_add_u32 v%d, %s, v%d" % (t + 3, T0, t))
    e("v_bfe_u32 v%d, v%d, 1, 3" % (t + 4, t + 3))
    e("v_xor_b32 v%d, v%d, v%d" % (t + 4, t + 4, t + 1))
    e("v_lshlrev_b32 v%d, 4, v%d" % (t + 4, t + 4))
    e("s_lshl_b32 %s, %s, 16" % (T1, I5))
    e("v_lshl_add_u32 v%d, v%d, 10, v%d" % (G_VX0, t + 3, t + 4))
    e("v_add_u32 v%d, %s, v%d" % (G_VX0, T1, G_VX0))
    e("v_xor_b32 v%d, 0x2040, v%d" % (G_VX1, G_VX0))
    e("v_mul_u32_u24 v%d, 3072, v%d" % (t + 5, t + 3))
    e("s_lshl_b32 %s, %s, 7" % (T1, XQ))
    e("v_add_u32 v%d, %s, v%d" % (t + 5, T1, t + 5))
    e("v_lshlrev_b32 v%d, 1, v%d" % (t + 6, t + 2))
    e("v_xor_b32 v%d, v%d, v%d" % (t + 6, t + 6, t + 1))
    e("v_lshl_add_u32 v%d, v%d, 4, v%d" % (G_VWQ, t + 6, t + 5))
    e("v_xor_b32 v%d, 4, v%d" % (t + 6, t + 6))
    e("v_lshl_add_u32 v%d, v%d, 4, v%d" % (G_VWK, t + 6, t + 5))
    e("v_add_u32 v%d, 1024, v%d" % (G_VWK, G_VWK))
    e("v_lshlrev_b32 v%d, 2, v%d" % (t + 6, t + 2))
    e("v_xor_b32 v%d, v%d, v%d" % (t + 6, t + 6, t + 1))
    e("v_lshl_add_u32 v%d, v%d, 4, v%d" % (G_VWV, t + 6, t + 5))
    e("v_add_u32 v%d, 2048, v%d" % (G_VWV, G_VWV))
    e("s_add_u32 %s, %s, %s" % (T5, I5, XQ))
    e("s_and_b32 %s, %s, 3" % (T4, WV))
    e("s_lshl_b32 %s, %s, 11" % (T4, T4))

def issue_chunk(ci):
    base = (ci % 4) * 32768
    e("s_add_u32 %s, %s, %d" % (T0, T5, ci))
    e("s_and_b32 %s, %s, 7" % (T0, T0))
    e("s_add_u32 m0, %s, %d" % (T4, base))
    e("s_lshl_b32 %s, %s, 7" % (T1, T0))
    e("buffer_load_dwordx4 v%d, %s, %s offen lds" % (G_VX0, R_X, T1))
    e("s_add_u32 m0, %s, %d" % (T4, base + 1024))
    e("s_mul_i32 %s, %s, 196608" % (T2, T0))
    e("buffer_load_dwordx4 v%d, %s, %s offen lds" % (G_VX1, R_X, T1))
    for g, va in enumerate((G_VWQ, G_VWK, G_VWV)):
        for h in range(2):
            e("s_add_u32 m0, %s, %d" % (T4, base + (g + 1) * 8192 + h * 1024))
            e("s_add_u32 %s, %s, 24576" % (T3, T2) if g == 0 and h == 0 else "s_nop 0")
            e("buffer_load_dwordx4 v%d, %s, %s offen lds" % (va, R_W, T3 if h else T2))

def pi_tok(dst, src, t):
    e("v_and_b32 v%d, 0x13, v%d" % (dst, src))
    e("v_bfe_u32 v%d, v%d, 2, 1" % (t, src))
    e("v_lshl_or_b32 v%d, v%d, 3, v%d" % (dst, t, dst))
    e("v_bfe_u32 v%d, v%d, 3, 1" % (t, src))
    e("v_lshl_or_b32 v%d, v%d, 2, v%d" % (dst, t, dst))

def gemm_read_addr():
    t = VT
    c("GEMM LDS fragment read addresses")
    pi_tok(t, V_L, t + 1)
    e("s_and_b32 %s, %s, 1" % (T0, WV))
    e("s_lshl_b32 %s, %s, 5" % (T0, T0))
    e("v_add_u32 v%d, %s, v%d" % (t, T0, t))
    e("v_lshrrev_b32 v%d, 5, v%d" % (t + 1, V_L))
    e("v_bfe_u32 v%d, v%d, 1, 3" % (t + 2, t))
    e("v_xor_b32 v%d, v%d, v%d" % (t + 2, t + 2, t + 1))
    e("v_lshlrev_b32 v%d, 4, v%d" % (t + 2, t + 2))
    e("v_lshl_add_u32 v%d, v%d, 7, v%d" % (G_XA, t, t + 2))
    for s in range(1, 4):
        e("v_xor_b32 v%d, %d, v%d" % (G_XA + s, 32 * s, G_XA))
    e("v_bfe_u32 v%d, v%d, 2, 2" % (t + 2, V_L))
    e("v_lshl_add_u32 v%d, v%d, 3, v%d" % (t + 3, t + 1, t + 2))
    e("v_lshlrev_b32 v%d, 7, v%d" % (t + 3, t + 3))
    e("v_bfe_u32 v%d, v%d, 4, 1" % (t + 4, V_L))
    e("v_bfe_u32 v%d, v%d, 3, 1" % (t + 5, V_L))
    e("v_and_b32 v%d, 1, v%d" % (t + 6, V_L))
    e("v_bfe_u32 v%d, v%d, 1, 1" % (t + 7, V_L))
    e("s_and_b32 %s, %s, 2" % (T0, WV))
    e("s_lshl_b32 %s, %s, 1" % (T0, T0))
    e("v_or_b32 v%d, %s, v%d" % (t + 8, T0, t + 6))
    e("v_lshl_or_b32 v%d, v%d, 1, v%d" % (t + 9, t + 4, t + 5))
    e("v_lshlrev_b32 v%d, 1, v%d" % (t + 9, t + 9))
    e("v_xor_b32 v%d, v%d, v%d" % (t + 8, t + 8, t + 9))
    e("v_lshl_add_u32 v%d, v%d, 4, v%d" % (t + 8, t + 8, t + 3))
    e("v_lshl_add_u32 v%d, v%d, 3, v%d" % (t + 8, t + 7, t + 8))
    e("v_lshl_add_u32 v%d, v%d, 13, v%d" % (G_WA, t + 4, t + 8))
    e("v_add_u32 v%d, 8192, v%d" % (G_WA, G_WA))
    e("v_xor_b32 v%d, 32, v%d" % (G_WA + 1, G_WA))
    e("v_lshl_or_b32 v%d, v%d, 1, v%d" % (t + 8, t + 4, t + 7))
    e("v_or_b32 v%d, %s, v%d" % (t + 8, T0, t + 8))
    e("v_lshlrev_b32 v%d, 2, v%d" % (t + 9, t + 5))
    e("v_xor_b32 v%d, v%d, v%d" % (t + 8, t + 8, t + 9))
    e("v_lshl_add_u32 v%d, v%d, 4, v%d" % (t + 8, t + 8, t + 3))
    e("v_lshl_add_u32 v%d, v%d, 3, v%d" % (t + 8, t + 6, t + 8))
    e("v_add_u32 v%d, 24576, v%d" % (G_WA + 2, t + 8))
    for s in range(4): e("v_add_u32 v%d, 0x10000, v%d" % (G_XA + 4 + s, G_XA + s))
    for s in range(3): e("v_add_u32 v%d, 0x10000, v%d" % (G_WB + s, G_WA + s))

def u_coop_loads():
    t = VT
    e("s_sub_u32 %s, %s, 4" % (T0, WV))
    e("s_lshr_b32 %s, %s, 1" % (T1, T0))
    e("s_and_b32 %s, %s, 1" % (T0, T0))
    e("v_and_b32 v%d, 7, v%d" % (t, V_L))
    e("v_bfe_u32 v%d, v%d, 3, 2" % (t + 1, V_L))
    e("s_lshl_b32 %s, %s, 2" % (T0, T0))
    e("v_add_u32 v%d, %s, v%d" % (t + 1, T0, t + 1))
    e("s_lshl_b32 %s, %s, 1" % (T2, I5))
    e("s_add_u32 %s, %s, %s" % (T1, T1, T2))
    e("s_lshl_b32 %s, %s, 3" % (T1, T1))
    e("v_add_u32 v%d, %s, v%d" % (t, T1, t))
    e("v_lshlrev_b32 v%d, 4, v%d" % (t + 2, t + 1))
    e("v_lshl_add_u32 v%d, v%d, 12, v%d" % (G_UA, t, t + 2))
    e("v_lshlrev_b32 v%d, 4, v%d" % (t, t))
    e("v_lshl_add_u32 v%d, v%d, 15, v%d" % (G_US, t + 1, t))
    e("s_lshl_b32 %s, %s, 7" % (T0, XQ))
    e("s_mov_b32 exec_hi, 0")
    for k in range(4):
        e("buffer_load_dwordx4 %s, v%d, %s, %s offen offset:%d" % (vr(G_UL + 4 * k, 4), G_UA, R_U, T0, 1024 * k))
    e("s_mov_b32 exec_hi, -1")

def u_coop_stores():
    D = G_UL + 16
    for i in range(4):
        for k in range(4):
            e("v_mov_b32 v%d, v%d" % (D + 4 * i + k, G_UL + 4 * k + i))
    e("s_lshl_b32 %s, %s, 18" % (T0, XQ))
    e("s_add_u32 %s, %s, 0x%x" % (T0, T0, WS_U2))
    e("s_mov_b32 exec_hi, 0")
    for i in range(4):
        e("buffer_store_dwordx4 %s, v%d, %s, %s offen sc1" % (vr(D + 4 * i, 4), G_US, R_WS, T0))
        if i < 3: e("s_add_u32 %s, %s, 8192" % (T0, T0))
    e("s_mov_b32 exec_hi, -1")

def flag_store(soff, t=VT):
    e("v_mov_b32 v%d, 0" % t)
    e("v_mov_b32 v%d, %s" % (t + 1, TAG))
    e("s_mov_b64 exec, 1")
    e("buffer_store_dword v%d, v%d, %s, %s offen sc1" % (t + 1, t, R_WS, soff))
    e("s_mov_b64 exec, -1")

def poll(label, soff, first_issued=None, t=VT, nwait=0):
    e("v_lshlrev_b32 v%d, 7, v%d" % (t, V_L))
    e("s_mov_b32 %s, 0" % CNT)
    e("s_mov_b32 exec_hi, 0")
    r = t + 1
    if first_issued is not None:
        r = first_issued
        e("s_waitcnt vmcnt(%d)" % nwait)
        e("s_branch %s_chk" % label)
    lab(label)
    e("buffer_load_dword v%d, v%d, %s, %s offen sc1" % (r, t, R_WS, soff))
    e("s_add_u32 %s, %s, 1" % (CNT, CNT))
    e("s_waitcnt vmcnt(0)")
    lab(label + "_chk")
    e("v_cmp_ne_u32 vcc, %s, v%d" % (TAG, r))
    e("s_cmp_gt_u32 %s, 0x4000" % CNT)
    e("s_cbranch_scc1 %s_done" % label)
    e("s_cmp_lg_u64 vcc, 0")
    e("s_cbranch_scc1 %s" % label)
    lab(label + "_done")
    e("s_mov_b32 exec_hi, -1")

def f0_off(dst, v_s):
    e("s_lshl_b32 %s, %s, 2" % (dst, XQ))
    e("s_add_u32 %s, %s, %s" % (dst, dst, v_s))
    e("s_lshl_b32 %s, %s, 12" % (dst, dst))
    e("s_add_u32 %s, %s, 0x%x" % (dst, dst, WS_F0))

def loader_loop(groups):
    issue_chunk(0); issue_chunk(1)
    srd(R_WS, S_WS, WS_SIZE)
    waits = [8, 12, 12, 8, 9, 8, 8, 0]
    parts = {5: groups[0:3], 6: groups[3:5], 7: groups[5:7]}
    for ci in range(8):
        c("loader chunk %d" % ci)
        e("s_waitcnt vmcnt(%d)" % waits[ci])
        e("s_barrier")
        if ci in (0, 4): stamp("ch%d" % ci)
        if ci == 3:
            e("s_and_b32 %s, %s, 3" % (T1, WV))
            f0_off(T0, T1)
            e("s_lshl_b32 %s, %s, 7" % (T1, I5))
            e("s_add_u32 %s, %s, %s" % (T0, T0, T1))
            e("s_waitcnt lgkmcnt(0)")
            e("s_add_u32 %s, %s, 1" % (TAG, TAG))
            flag_store(T0)
        if ci + 2 < 8: issue_chunk(ci + 2)
        if ci == 0: u_coop_stores()
        if ci == 7: u2_load()
        for g in parts.get(ci, []): SINK[0].extend(g)

def u2_load():
    c("u (this WG's channel pair, transposed by the group) -> registers")
    e("s_lshl_b32 %s, %s, 5" % (T0, XQ))
    e("s_add_u32 %s, %s, %s" % (T0, T0, I5))
    e("s_lshl_b32 %s, %s, 13" % (T0, T0))
    e("s_add_u32 %s, %s, 0x%x" % (T0, T0, WS_U2))
    e("v_lshlrev_b32 v%d, 4, v0" % (VT + 2))
    e("buffer_load_dwordx4 %s, v%d, %s, %s offen sc1" % (vr(U2R, 4), VT + 2, R_WS, T0))

def compute_loop(pieces):
    pc = []
    def fill(n):
        for _ in range(n):
            if pc: SINK[0].append(pc.pop(0))
    def mfmas(s, first, nf):
        for k, f in enumerate((G_W0F, G_W1F)):
            e("v_mfma_f32_32x32x16_bf16 %s, %s, %s, %s" % (vr(G_ACC[k], 16), vr(f + 4 * s, 4), vr(G_XF + 4 * s, 4), "0" if first else vr(G_ACC[k], 16)))
            fill(nf)
        e("v_mfma_f32_32x32x16_bf16 %s, %s, %s, %s" % (vr(G_ACC[2], 16), vr(G_XF + 4 * s, 4), vr(G_VF + 4 * s, 4), "0" if first else vr(G_ACC[2], 16)))
        fill(nf)
    for ci in range(8):
        c("compute chunk %d" % ci)
        hi = (ci % 4) >= 2
        ib = (ci % 2) * 32768
        xa = G_XA + (4 if hi else 0)
        wa = G_WB if hi else G_WA
        if ci == 7: poll("L_poll0", T5, first_issued=G_PL, nwait=0)
        e("s_barrier")
        if ci in (0, 4): stamp("ch%d" % ci)
        def reads(s):
            e("ds_read_b128 %s, v%d offset:%d" % (vr(G_XF + 4 * s, 4), xa + s, ib))
            for k, f in enumerate((G_W0F, G_W1F, G_VF)):
                for t in range(2):
                    e("ds_read_b64_tr_b16 %s, v%d offset:%d" % (vr(f + 4 * s + 2 * t, 2), wa + k, ib + (16 * s + 4 * t) * 128))
        reads(0); reads(1)
        if ci == 0: e("s_waitcnt vmcnt(0)")
        if ci == 5:
            f0_off(T5, WV)
            e("v_lshlrev_b32 v%d, 7, v%d" % (VT, V_L))
            e("s_mov_b32 exec_hi, 0")
            e("buffer_load_dword v%d, v%d, %s, %s offen sc1" % (G_PL, VT, R_WS, T5))
            e("s_mov_b32 exec_hi, -1")
        if ci == 7: u2_load()
        if ci < len(pieces): pc.extend(pieces[ci])
        if ci > 0:
            mfmas(2, False, 3); mfmas(3, False, 4)
        else: fill(99)
        e("s_waitcnt lgkmcnt(7)")
        reads(2)
        mfmas(0, ci == 0, 2)
        e("s_waitcnt lgkmcnt(7)")
        reads(3)
        mfmas(1, False, 2)
        fill(99)
        e("s_waitcnt lgkmcnt(0)")
    mfmas(2, False, 0); mfmas(3, False, 0)

def gemm_epilogue():
    t = VT + 4
    c("GEMM epilogue: publish Q,K,V")
    pi_tok(t, V_L, t + 1)
    e("v_lshrrev_b32 v%d, 5, v%d" % (t + 1, V_L))
    e("v_lshlrev_b32 v%d, 4, v%d" % (t, t))
    e("v_lshl_add_u32 v%d, v%d, 9, v%d" % (t, t + 1, t))
    e("s_and_b32 %s, %s, 2" % (T0, WV))
    e("s_lshl_b32 %s, %s, 2" % (T1, XQ))
    e("s_add_u32 %s, %s, %s" % (T0, T0, T1))
    e("s_lshl_b32 %s, %s, 6" % (T0, T0))
    e("s_and_b32 %s, %s, 1" % (T2, WV))
    e("s_lshl_b32 %s, %s, 1" % (T3, I5))
    e("s_add_u32 %s, %s, %s" % (T2, T2, T3))
    e("s_add_u32 %s, %s, %s" % (T0, T0, T2))
    e("s_lshl_b32 %s, %s, 10" % (T0, T0))
    e("s_add_u32 %s, %s, 0x%x" % (T1, T0, WS_K))
    e("s_add_u32 %s, %s, 0x%x" % (T2, T0, WS_K + 65536))
    e("s_add_u32 %s, %s, 0x%x" % (T3, T0, WS_V))
    e("s_add_u32 %s, %s, 0x%x" % (T4, T0, WS_Q + 65536))
    e("s_add_u32 %s, %s, 0x%x" % (T0, T0, WS_Q))
    e("v_and_b32 v%d, 15, v%d" % (t + 2, V_L))
    e("v_lshlrev_b32 v%d, 4, v%d" % (t + 2, t + 2))
    e("v_lshl_add_u32 v%d, v%d, 8, v%d" % (t + 2, t + 1, t + 2))
    e("v_bfe_u32 v%d, v%d, 4, 1" % (t + 3, V_L))
    e("v_lshl_add_u32 v%d, v%d, 16, v%d" % (t + 2, t + 3, t + 2))
    P = G_XF
    def pk(dst, src):
        for i in range(4): e("v_cvt_pk_bf16_f32 v%d, v%d, v%d" % (dst + i, src + 2 * i, src + 1 + 2 * i))
    def st(r, va, so, off=0):
        e("buffer_store_dwordx4 %s, v%d, %s, %s offen%s sc1" % (vr(r, 4), va, R_WS, so, " offset:%d" % off if off else ""))
    pk(P, G_ACC[0] + 8); st(P, t, T1)
    pk(P + 4, G_ACC[1] + 8); st(P + 4, t, T2)
    pk(P + 8, G_ACC[2]); st(P + 8, t + 2, T3)
    pk(P + 12, G_ACC[2] + 8); st(P + 12, t + 2, T3, 512)
    for k, so in ((0, T0), (1, T4)):
        for i in range(8): e("v_mul_f32 v%d, %s, v%d" % (G_ACC[k] + i, fl(0.25 * LOG2E), G_ACC[k] + i))
        pk(P + 16 + 4 * k, G_ACC[k]); st(P + 16 + 4 * k, t, so)

def cmul_multi(lst):
    for d, a, b in lst:
        e("v_pk_mul_f32 %s, %s, %s op_sel:[0,0] op_sel_hi:[1,0]" % (vr(d, 2), vr(a, 2), vr(b, 2)))
    for d, a, b in lst:
        e("v_pk_fma_f32 %s, %s, %s, %s op_sel:[1,1,0] op_sel_hi:[0,1,1] neg_lo:[1,0,0]" % (vr(d, 2), vr(a, 2), vr(b, 2), vr(d, 2)))
def cexp(d, va, vb, Lf, t):
    e("v_mul_f32 v%d, %s, v%d" % (t, fl(Lf), va))
    e("v_mul_f32 v%d, %s, v%d" % (t + 1, fl(Lf), vb))
    e("v_fract_f32 v%d, v%d" % (t + 1, t + 1))
    e("v_exp_f32 v%d, v%d" % (t, t))
    e("v_cos_f32 v%d, v%d" % (d, t + 1))
    e("v_sin_f32 v%d, v%d" % (d + 1, t + 1))
    e("s_nop 0")
    e("v_pk_mul_f32 %s, %s, %s op_sel:[0,0] op_sel_hi:[1,0]" % (vr(d, 2), vr(d, 2), vr(t, 2)))
def put(row, pr):
    e("v_cvt_pk_bf16_f32 v%d, v%d, v%d" % (KR + row, pr, pr + 1))

def kgen_pieces(role):
    va, vb, vdt, ta = KB + 64, KB + 65, KB + 66, KB + 68
    groups = []
    def g(fn): groups.append(capture(fn))
    def pre():
        c("S4 kernel generation: dt = bf16(exp(log_dt)), z = dt*A")
        e("s_bitcmp1_b32 %s, 1" % WV)
        e("s_cselect_b32 %s, 0, 16" % T0)
        e("s_lshl_b32 %s, %s, %s" % (T0, LD2, T0))
        e("s_and_b32 %s, %s, 0xffff0000" % (T0, T0))
        e("v_mov_b32 v%d, %s" % (vdt, fl(LOG2E)))
        e("v_mul_f32 v%d, %s, v%d" % (vdt, T0, vdt))
        e("v_exp_f32 v%d, v%d" % (vdt, vdt))
        for i in range(6 if role else 2):
            e("v_lshlrev_b32 v%d, 16, v%d" % (V_PAR + i, V_PAR + i))
        e("v_cvt_pk_bf16_f32 v%d, v%d, v%d" % (vdt, vdt, vdt))
        e("v_and_b32 v%d, 0xffff0000, v%d" % (vdt, vdt))
        e("v_mul_f32 v%d, v%d, v%d" % (va, vdt, V_PAR + 0))
        e("v_mul_f32 v%d, v%d, v%d" % (vb, vdt, V_PAR + 1))
        e("v_mul_f32 v%d, %s, v%d" % (va, fl(LOG2E), va))
        e("v_mul_f32 v%d, %s, v%d" % (vb, fl((-1.0 if role else 1.0) / (2 * math.pi)), vb))
    if role == 0:
        P = lambda j: KB + 2 * j
        G = lambda k: KB + 16 + 2 * k
        X = KB + 24
        g(lambda: (pre(), cexp(P(1), va, vb, 8.0, ta)))
        g(lambda: (cexp(G(1), va, vb, 64.0, ta + 2), e("v_mov_b32 v%d, 0x3f80" % KR),
                   cmul_multi([(P(2), P(1), P(1)), (G(2), G(1), G(1))]), put(1, P(1)), put(8, G(1))))
        g(lambda: (cmul_multi([(P(3), P(2), P(1)), (P(4), P(2), P(2)), (G(3), G(2), G(1))]), put(2, P(2)), put(16, G(2)),
                   cmul_multi([(P(5), P(4), P(1)), (P(6), P(4), P(2)), (P(7), P(4), P(3))]),
                   put(3, P(3)), put(4, P(4)), put(24, G(3)), put(5, P(5)), put(6, P(6)), put(7, P(7))))
        for k in range(1, 4):
            g(lambda k=k: (cmul_multi([(X + 2 * j, P(j), G(k)) for j in range(1, 8)]), [put(8 * k + j, X + 2 * j) for j in range(1, 8)]))
    else:
        E = lambda j: KB + 2 * j - 2
        Q = lambda j: KB + 16 + 2 * j
        H = lambda k: KB + 32 + 2 * k
        X = KB + 48
        g(lambda: pre())
        g(lambda: (cexp(E(1), va, vb, 1.0, ta), cexp(H(1), va, vb, 256.0, ta + 2)))
        def p2():
            e("v_mul_f32 v%d, v%d, v%d" % (X, vdt, V_PAR + 2))
            e("v_mul_f32 v%d, -v%d, v%d" % (X + 1, vdt, V_PAR + 3))
            e("v_mov_b32 v%d, v%d" % (X + 2, V_PAR + 4))
            e("v_mul_f32 v%d, -1.0, v%d" % (X + 3, V_PAR + 5))
            cmul_multi([(Q(0), X, X + 2), (E(2), E(1), E(1)), (H(2), H(1), H(1))])
            cmul_multi([(E(3), E(2), E(1)), (E(4), E(2), E(2)), (H(3), H(2), H(1)), (H(4), H(2), H(2))])
            put(0, Q(0))
            cmul_multi([(E(5), E(4), E(1)), (E(6), E(4), E(2)), (E(7), E(4), E(3)), (E(8), E(4), E(4))])
        g(p2)
        g(lambda: (cmul_multi([(Q(j), Q(0), E(j)) for j in range(1, 9)]), [put(j, Q(j)) for j in range(1, 8)]))
        g(lambda: (cmul_multi([(H(5), H(4), H(1)), (H(6), H(4), H(2)), (H(7), H(4), H(3))]),
                   cmul_multi([(X + 2 * i, H(1), Q(2 * i)) for i in range(5)]), [put(8 + i, X + 2 * i) for i in range(5)]))
        def p5():
            for k, r0 in ((2, 13), (3, 16)):
                cmul_multi([(X + 2 * i, H(k), Q(4 * i)) for i in range(3)])
                for i in range(3): put(r0 + i, X + 2 * i)
        g(p5)
        def p6():
            for k in (4, 6):
                cmul_multi([(X, H(k), Q(0)), (X + 2, H(k), Q(8)), (X + 4, H(k + 1), Q(0)), (X + 6, H(k + 1), Q(8))])
                for i in range(4): put(19 + 2 * (k - 4) + i, X + 2 * i)
        g(p6)
    return groups

def table_writes(role):
    t = VT + 4
    e("s_and_b32 %s, %s, 1" % (T1, WV))
    e("s_lshl_b32 %s, %s, 8" % (T1, T1))
    e("s_bitcmp1_b32 %s, 1" % WV)
    if role == 0: csel(T2, L_TB + 16896, L_TB)
    else: csel(T2, L_TA + 14256, L_TA)
    e("s_add_u32 %s, %s, %s" % (T1, T1, T2))
    e("v_lshl_add_u32 v%d, v%d, 2, %s" % (t, V_L, T1))
    for r in range(27 if role else 32):
        e("ds_write_b32 v%d, v%d offset:%d" % (t, KR + r, r * 528))

def rowmap(region, ei):
    if region == 0: return ei
    if region == 1: return 8 + [0, 0, 1, 2, 2, 2, 3, 4][ei]
    if region in (2, 3): return (13 if region == 2 else 16) + [0, 0, 0, 1, 1, 1, 2, 2][ei]
    return 19 + 2 * (region - 4) + [0, 0, 0, 0, 0, 1, 1, 1][ei]

K_X, K_Y, K_B, K_W, K_D = 32, 33, 34, 35, 36
def kgen_addr():
    t = VT + 6
    def packs(rh, yy):
        return [sum(rowmap(4 * rh + g, 4 * yy + r) << (8 * r) for r in range(4)) for g in range(4)]
    e("v_bfe_u32 v%d, v%d, 2, 2" % (t + 3, V_L))
    e("v_and_b32 v%d, 3, v%d" % (t + 4, V_L))
    e("v_lshlrev_b32 v%d, 3, v%d" % (t + 4, t + 4))
    e("v_cmp_eq_u32 s[4:5], 1, v%d" % (t + 3))
    e("v_cmp_eq_u32 s[6:7], 2, v%d" % (t + 3))
    e("v_cmp_eq_u32 vcc, 3, v%d" % (t + 3))
    e("s_bitcmp1_b32 %s, 0" % WV)
    for yy, dst in ((0, K_X), (1, K_Y)):
        p0, p1 = packs(0, yy), packs(1, yy)
        for g in range(4):
            e("s_mov_b32 %s, 0x%x" % (T1, p0[g]))
            e("s_cselect_b32 %s, 0x%x, %s" % (T1, p1[g], T1))
            if g == 0: e("v_mov_b32 v%d, %s" % (dst, T1))
            else:
                e("v_mov_b32 v%d, %s" % (t + 5, T1))
                e("v_cndmask_b32 v%d, v%d, v%d, %s" % (dst, dst, t + 5, ["", "s[4:5]", "s[6:7]", "vcc"][g]))
        e("v_lshrrev_b32 v%d, v%d, v%d" % (dst, t + 4, dst))
        e("v_and_b32 v%d, 0xff, v%d" % (dst, dst))
        e("v_mul_u32_u24 v%d, 528, v%d" % (dst, dst))
    e("v_lshrrev_b32 v%d, 4, v%d" % (t + 3, V_L))
    e("s_cmp_ge_u32 %s, 4" % WV)
    csel(T0, L_TA + 14256, L_TA)
    csel(T1, L_TB + 16896, L_TB)
    csel(T2, L_KF + 4160 + 64, L_KF + 64)
    e("s_cselect_b32 %s, 0, 16" % T4)
    e("s_lshl_b32 %s, %s, %s" % (T4, DS2, T4))
    e("s_and_b32 %s, %s, 0xffff0000" % (T4, T4))
    e("s_and_b32 %s, %s, 3" % (T3, WV))
    e("s_cselect_b32 %s, 0, %s" % (T4, T4))
    e("v_cmp_eq_u32 vcc, 0, v%d" % V_L)
    e("v_mov_b32 v%d, %s" % (K_D, T4))
    e("v_lshl_add_u32 v%d, v%d, 4, %s" % (t + 5, t + 3, T0))
    e("v_cndmask_b32 v%d, 0, v%d, vcc" % (K_D, K_D))
    e("v_add_u32 v%d, v%d, v%d" % (K_X, K_X, t + 5))
    e("v_add_u32 v%d, v%d, v%d" % (K_Y, K_Y, t + 5))
    e("s_bitcmp1_b32 %s, 1" % WV)
    e("s_cselect_b32 %s, 16, 0" % T3)
    e("v_and_b32 v%d, 15, v%d" % (t + 6, V_L))
    e("v_add_u32 v%d, %s, v%d" % (t + 6, T3, t + 6))
    e("v_mul_u32_u24 v%d, 528, v%d" % (K_B, t + 6))
    e("v_lshl_add_u32 v%d, v%d, 4, %s" % (t + 5, t + 3, T1))
    e("v_add_u32 v%d, v%d, v%d" % (K_B, K_B, t + 5))
    e("s_and_b32 %s, %s, 1" % (T3, WV))
    e("s_lshl_b32 %s, %s, 11" % (T3, T3))
    e("s_add_u32 %s, %s, %s" % (T2, T2, T3))
    e("v_lshl_add_u32 v%d, v%d, 9, %s" % (K_W, t + 3, T2))
    e("v_lshl_add_u32 v%d, v%d, 4, v%d" % (K_W, t + 6, K_W))

U2R = 252
def kgen_mfma():
    t = VT
    c("---- S4 kernel K = A-table x B-table (rows duplicated to realise bf16(l)) ----")
    FX, FY, FB = 128, 160, 192
    AX, AY = 44, 48
    def rd(s):
        e("ds_read_b128 %s, v%d offset:%d" % (vr(FB + 4 * s, 4), K_B, 64 * s))
        e("ds_read_b128 %s, v%d offset:%d" % (vr(FX + 4 * s, 4), K_X, 64 * s))
        e("ds_read_b128 %s, v%d offset:%d" % (vr(FY + 4 * s, 4), K_Y, 64 * s))
    for s in range(4): rd(s)
    for s in range(8):
        e("s_waitcnt lgkmcnt(%d)" % (3 * (min(s + 3, 7) - s)))
        e("v_mfma_f32_16x16x32_bf16 %s, %s, %s, %s" % (vr(AX, 4), vr(FX + 4 * s, 4), vr(FB + 4 * s, 4), "0" if s == 0 else vr(AX, 4)))
        e("v_mfma_f32_16x16x32_bf16 %s, %s, %s, %s" % (vr(AY, 4), vr(FY + 4 * s, 4), vr(FB + 4 * s, 4), "0" if s == 0 else vr(AY, 4)))
        if s + 4 < 8: rd(s + 4)
    ZE = 56
    for i in range(4): e("v_mov_b32 v%d, 0" % (ZE + i))
    nop(4)
    e("v_and_b32 v%d, 1, v%d" % (t + 8, V_L))
    e("v_cmp_eq_u32 vcc, 0, v%d" % (t + 8))
    e("v_add_f32 v%d, v%d, v%d" % (AX, AX, K_D))
    e("s_bitcmp1_b32 %s, 0" % WV)
    e("s_cbranch_scc0 L_kg_nofix")
    e("v_cndmask_b32 v%d, v%d, v%d, vcc" % (AY, AY + 1, AX + 3))
    lab("L_kg_nofix")
    e("v_cvt_pk_bf16_f32 v%d, v%d, v%d" % (FX, AX, AX + 1))
    e("v_cvt_pk_bf16_f32 v%d, v%d, v%d" % (FX + 1, AX + 2, AX + 3))
    e("v_cvt_pk_bf16_f32 v%d, v%d, v%d" % (FX + 2, AY, AY + 1))
    e("v_cvt_pk_bf16_f32 v%d, v%d, v%d" % (FX + 3, AY + 2, AY + 3))
    e("ds_write_b128 v%d, %s" % (K_W, vr(FX, 4)))
    c("pads: wave1 landing flags, wave2 u zeros, wave3 K zeros")
    e("s_cmp_eq_u32 %s, 1" % WV)
    e("s_cbranch_scc0 L_pad1")
    e("v_mov_b32 v%d, 0x%x" % (t + 8, L_FL))
    e("ds_write_b128 v%d, %s" % (t + 8, vr(ZE, 4)))
    lab("L_pad1")
    e("s_cmp_eq_u32 %s, 2" % WV)
    e("s_cbranch_scc0 L_pad2")
    e("v_lshrrev_b32 v%d, 3, v%d" % (t + 8, V_L))
    e("v_mul_u32_u24 v%d, 1152, v%d" % (t + 8, t + 8))
    e("v_and_b32 v%d, 7, v%d" % (t + 9, V_L))
    e("v_lshl_add_u32 v%d, v%d, 4, v%d" % (t + 8, t + 9, t + 8))
    e("v_add_u32 v%d, 0x%x, v%d" % (t + 8, L_UP, t + 8))
    e("ds_write_b128 v%d, %s" % (t + 8, vr(ZE, 4)))
    lab("L_pad2")
    e("s_cmp_eq_u32 %s, 3" % WV)
    e("s_cbranch_scc0 L_pad3")
    e("v_bfe_u32 v%d, v%d, 2, 1" % (t + 8, V_L))
    e("v_mul_u32_u24 v%d, 4160, v%d" % (t + 8, t + 8))
    e("v_and_b32 v%d, 3, v%d" % (t + 9, V_L))
    e("v_lshl_add_u32 v%d, v%d, 4, v%d" % (t + 8, t + 9, t + 8))
    e("v_add_u32 v%d, 0x%x, v%d" % (t + 8, L_KF, t + 8))
    e("ds_write_b128 v%d, %s" % (t + 8, vr(ZE, 4)))
    lab("L_pad3")
    c("u -> LDS polyphase-4")
    e("v_lshlrev_b32 v%d, 1, v0" % t)
    e("v_add_u32 v%d, 0x%x, v%d" % (t, L_UP + 128, t))
    e("s_waitcnt vmcnt(0)")
    for p in range(4):
        e("ds_write_b16 v%d, v%d offset:%d" % (t, U2R + p, 1152 * p))
        e("ds_write_b16_d16_hi v%d, v%d offset:%d" % (t, U2R + p, 4608 + 1152 * p))

def ones_pads(b0, ON):
    t = VT
    e("v_bfe_u32 v%d, v%d, 3, 2" % (t + 8, V_L))
    e("v_mul_u32_u24 v%d, %d, v%d" % (t + 8, BLK, t + 8))
    e("v_and_b32 v%d, 7, v%d" % (t + 9, V_L))
    e("v_mul_u32_u24 v%d, 1040, v%d" % (t + 9, t + 9))
    e("v_add_u32 v%d, v%d, v%d" % (t + 8, t + 8, t + 9))
    e("v_add_u32 v%d, 0x%x, v%d" % (t + 8, b0 * BLK + 8192 + 1024, t + 8))
    e("ds_write_b128 v%d, %s" % (t + 8, vr(ON, 4)))

C_LO, C_UP = 32, 48
C_A, C_X, C_Y = 64, 80, 96
C_VA, C_VB = 112, 113
def conv_addr():
    t = VT
    e("s_cmp_ge_u32 %s, 4" % WV)
    csel(T0, L_KF + 4160 + 96, L_KF + 96)
    csel(T1, L_UP + 4608 + 16, L_UP + 16)
    e("v_bfe_u32 v%d, v%d, 4, 1" % (t, V_L))
    e("v_and_b32 v%d, 3, v%d" % (t + 1, V_L))
    e("v_lshl_add_u32 v%d, v%d, 2, v%d" % (t, t, t + 1))
    e("v_lshrrev_b32 v%d, 5, v%d" % (t + 1, V_L))
    e("v_bfe_u32 v%d, v%d, 2, 2" % (t + 2, V_L))
    e("v_lshl_add_u32 v%d, v%d, 3, v%d" % (t + 2, t + 1, t + 2))
    e("v_sub_u32 v%d, v%d, v%d" % (t, t, t + 2))
    e("v_lshlrev_b32 v%d, 3, v%d" % (t, t))
    e("v_add_u32 v%d, %s, v%d" % (C_VA, T0, t))
    e("v_bfe_u32 v%d, v%d, 3, 2" % (t, V_L))
    e("v_mul_u32_u24 v%d, 1152, v%d" % (t, t))
    e("v_and_b32 v%d, 7, v%d" % (t + 2, V_L))
    e("v_add_u32 v%d, v%d, v%d" % (t + 2, t + 2, t + 1))
    e("v_lshl_add_u32 v%d, v%d, 4, v%d" % (t, t + 2, t))
    e("s_lshl_b32 %s, %s, 8" % (T2, CQ))
    e("s_add_u32 %s, %s, %s" % (T1, T1, T2))
    e("v_add_u32 v%d, %s, v%d" % (C_VB, T1, t))

def conv():
    t = VT
    c("---- causal conv as Toeplitz MFMA: tiles 2q (lo), 2q+1 (up) ----")
    def rdA(k, base):
        e("ds_read_b64_tr_b16 %s, v%d offset:%d" % (vr(C_A + 4 * k, 2), C_VA, base + 128 * k + 32))
        e("ds_read_b64_tr_b16 %s, v%d offset:%d" % (vr(C_A + 4 * k + 2, 2), C_VA, base + 128 * k))
    def rdB(dst, k, base):
        e("ds_read_b128 %s, v%d offset:%d" % (vr(dst + 4 * k, 4), C_VB, base + 96 - 32 * k))
    def mf(acc, k, b, first=False):
        e("v_mfma_f32_32x32x16_bf16 %s, %s, %s, %s" % (vr(acc, 16), vr(C_A + 4 * k, 4), vr(b + 4 * k, 4), "0" if first else vr(acc, 16)))
    for k in range(4):
        rdA(k, 0); rdB(C_Y, k, 128); rdB(C_X, k, 0)
    e("v_subrev_u32 v%d, 128, v%d" % (C_VB, C_VB))
    def section(cur, old, first=False):
        for k in range(4):
            e("s_waitcnt lgkmcnt(%d)" % ((12 - k) if first else 9))
            mf(C_UP, k, old, first and k == 0)
            mf(C_LO, k, cur, first and k == 0)
            rdA(k, 512); rdB(old, k, 0)
        e("v_add_u32 v%d, 512, v%d" % (C_VA, C_VA))
        e("v_subrev_u32 v%d, 128, v%d" % (C_VB, C_VB))
    section(C_X, C_Y, True)
    e("s_cmp_eq_u32 %s, 0" % CQ)
    e("s_cbranch_scc1 L_conv_tail")
    e("s_mov_b32 %s, %s" % (CNT, CQ))
    lab("L_conv_loop")
    section(C_Y, C_X)
    section(C_X, C_Y)
    e("s_sub_u32 %s, %s, 1" % (CNT, CNT))
    e("s_cmp_lg_u32 %s, 0" % CNT)
    e("s_cbranch_scc1 L_conv_loop")
    lab("L_conv_tail")
    for k in range(4):
        e("s_waitcnt lgkmcnt(%d)" % (9 - 3 * k))
        mf(C_UP, k, C_X)
    stamp("cmfma")
    c("Z partials -> LDS")
    e("s_cmp_ge_u32 %s, 4" % WV)
    csel(T0, L_Z + 4 * ZS + 144, L_Z + 144)
    e("s_mul_i32 %s, %s, 2304" % (T1, CQ))
    e("s_add_u32 %s, %s, %s" % (T0, T0, T1))
    e("v_bfe_u32 v%d, v%d, 3, 2" % (t, V_L))
    e("v_mul_u32_u24 v%d, %d, v%d" % (t, ZS, t))
    e("v_and_b32 v%d, 7, v%d" % (t + 2, V_L))
    e("v_mul_u32_u24 v%d, 144, v%d" % (t + 3, t + 2))
    e("v_lshrrev_b32 v%d, 5, v%d" % (t + 1, V_L))
    e("v_lshl_add_u32 v%d, v%d, 4, v%d" % (t + 3, t + 1, t + 3))
    e("v_add3_u32 v%d, v%d, v%d, %s" % (t, t, t + 3, T0))
    for k in range(4):
        e("ds_write_b128 v%d, %s offset:%d" % (t, vr(C_LO + 4 * k, 4), 32 * k))
    for i in range(4): e("v_mov_b32 v%d, 0" % (C_A + i))
    e("v_mul_u32_u24 v%d, %d, v%d" % (t + 2, ZS, t + 2))
    e("v_add_u32 v%d, 0x%x, v%d" % (t + 2, L_Z + 112, t + 2))
    for k in range(4):
        e("ds_write_b128 v%d, %s offset:%d" % (t, vr(C_UP + 4 * k, 4), 1152 + 32 * k))
    e("s_cmp_eq_u32 %s, 0" % WV)
    e("s_cbranch_scc0 L_zpad")
    e("ds_write_b128 v%d, %s" % (t + 2, vr(C_A, 4)))
    lab("L_zpad")

def kv_early():
    e("s_cmp_eq_u32 %s, 7" % WV)
    e("s_cbranch_scc0 L_pad5")
    for i in range(4): e("v_mov_b32 v%d, 0x3f803f80" % (C_X + i))
    ones_pads(0, C_X)
    lab("L_pad5")
    e("s_cmp_lg_u32 %s, 0" % WV)
    e("s_cbranch_scc1 L_kve_done")
    e("s_lshl_b32 %s, %s, 12" % (T0, XQ))
    e("s_add_u32 %s, %s, 0x%x" % (T0, T0, WS_F1))
    poll("L_poll1", T0, t=VT + 4)
    lab("L_kve_done")

A_Q = [64, 68]
A_S = [72, 88]
A_O = [104, 120]
A_KF = [136, 140]
A_VA = [144, 148]
A_VB = [152, 156]
A_IDX, A_KA, A_V0, A_V1 = 160, 161, 162, 163
A_F = 164
A_NM = 180
Y_R = 32
def conv_epilogue():
    t = VT
    c("y[t] = sum_p Z_p[t-p]")
    e("s_lshl_b32 %s, %s, 8" % (T0, WV))
    e("s_add_u32 %s, %s, 32" % (T0, T0))
    for p in range(4):
        e("v_add_u32 v%d, %s, v%d" % (t + 4, T0, V_L))
        if p: e("v_subrev_u32 v%d, %d, v%d" % (t + 4, p, t + 4))
        e("v_lshrrev_b32 v%d, 5, v%d" % (t + 5, t + 4))
        e("v_lshlrev_b32 v%d, 2, v%d" % (t + 4, t + 4))
        e("v_lshl_add_u32 v%d, v%d, 4, v%d" % (t + 4, t + 5, t + 4))
        e("v_add_u32 v%d, 0x%x, v%d" % (t + p, L_Z + p * ZS, t + 4))
    e("s_lshl_b32 %s, %s, 3" % (T0, HH))
    e("s_add_u32 %s, %s, %s" % (T0, T0, JJ))
    e("s_lshl_b32 %s, %s, 2" % (T0, T0))
    e("s_and_b32 %s, %s, 3" % (T1, WV))
    e("s_add_u32 %s, %s, %s" % (T0, T0, T1))
    e("s_lshl_b32 %s, %s, 11" % (T0, T0))
    e("s_add_u32 %s, %s, 0x%x" % (T0, T0, WS_Q))
    e("s_waitcnt lgkmcnt(0)")
    e("s_barrier")
    stamp("zbar")
    e("buffer_load_dwordx4 %s, v%d, %s, %s offen sc1" % (vr(A_Q[0], 4), V_L16, R_WS, T0))
    e("buffer_load_dwordx4 %s, v%d, %s, %s offen offset:1024 sc1" % (vr(A_Q[1], 4), V_L16, R_WS, T0))
    c("K/V blocks 0,1: one K and one V tile per wave and block")
    e("s_lshl_b32 %s, %s, 16" % (T0, HH))
    e("s_add_u32 %s, %s, %s" % (T0, T0, W10))
    e("s_mul_i32 %s, %s, 1040" % (T5, WV))
    for b in range(2):
        e("s_add_u32 %s, %s, %d" % (T2, JJ, b))
        e("s_and_b32 %s, %s, 7" % (T2, T2))
        e("s_lshl_b32 %s, %s, 13" % (T2, T2))
        e("s_add_u32 %s, %s, %s" % (T2, T2, T0))
        e("s_add_u32 m0, %s, %d" % (W10, b * BLK))
        e("s_add_u32 %s, %s, 0x%x" % (T3, T2, WS_K))
        e("buffer_load_dwordx4 v%d, %s, %s offen sc1 lds" % (V_L16, R_WS, T3))
        e("s_add_u32 m0, %s, %d" % (T5, b * BLK + 8192))
        e("s_add_u32 %s, %s, 0x%x" % (T4, T2, WS_V))
        e("buffer_load_dwordx4 v%d, %s, %s offen sc1 lds" % (V_L16, R_WS, T4))
    order = [(i, cl) for i in range(4) for cl in range(2)]
    def rd(n):
        i, cl = order[n]
        for p in range(4):
            e("ds_read_b32 v%d, v%d offset:%d" % (Y_R + 4 * n + p, t + p, cl * 4 * ZS + 288 * i))
    rd(0); rd(1); rd(2)
    for n in range(8):
        i, cl = order[n]
        r = Y_R + 4 * n
        e("s_waitcnt lgkmcnt(%d)" % (4 * (min(n + 2, 7) - n)))
        if n + 3 < 8: rd(n + 3)
        e("v_add_f32 v%d, v%d, v%d" % (r, r, r + 1))
        e("v_add_f32 v%d, v%d, v%d" % (r + 2, r + 2, r + 3))
        e("v_add_f32 v%d, v%d, v%d" % (r, r, r + 2))
        if cl == 1: e("v_cvt_pk_bf16_f32 v%d, v%d, v%d" % (V_Y + i, r - 4, r))

def kv_late():
    t = VT
    e("s_cmp_ge_u32 %s, 4" % WV)
    e("s_cbranch_scc0 L_kvl_done")
    e("s_and_b32 %s, %s, 3" % (T1, WV))
    e("s_lshl_b32 %s, %s, 2" % (T0, T1))
    e("s_add_u32 %s, %s, %d" % (T0, T0, L_FL))
    e("v_mov_b32 v%d, %s" % (t, T0))
    e("v_mov_b32 v%d, 1" % (t + 1))
    e("v_mov_b32 v%d, 2" % (t + 2))
    e("s_mul_i32 %s, %s, 2080" % (T5, T1))
    e("s_lshl_b32 %s, %s, 11" % (T1, T1))
    e("s_lshl_b32 %s, %s, 16" % (T0, HH))
    e("s_add_u32 %s, %s, %s" % (T0, T0, T1))
    for b in range(2, 8):
        e("s_add_u32 %s, %s, %d" % (T2, JJ, b))
        e("s_and_b32 %s, %s, 7" % (T2, T2))
        e("s_lshl_b32 %s, %s, 13" % (T2, T2))
        e("s_add_u32 %s, %s, %s" % (T2, T2, T0))
        e("s_add_u32 m0, %s, %d" % (T1, b * BLK))
        e("s_add_u32 %s, %s, 0x%x" % (T3, T2, WS_K))
        e("buffer_load_dwordx4 v%d, %s, %s offen sc1 lds" % (V_L16, R_WS, T3))
        e("s_add_u32 %s, %s, 0x%x" % (T4, T2, WS_V))
        e("buffer_load_dwordx4 v%d, %s, %s offen offset:1024 sc1 lds" % (V_L16, R_WS, T3))
        e("s_add_u32 m0, %s, %d" % (T5, b * BLK + 8192))
        e("s_nop 0")
        e("buffer_load_dwordx4 v%d, %s, %s offen sc1 lds" % (V_L16, R_WS, T4))
        e("s_add_u32 m0, m0, 16")
        e("s_nop 0")
        e("buffer_load_dwordx4 v%d, %s, %s offen offset:1024 sc1 lds" % (V_L16, R_WS, T4))
        if b == 5:
            e("s_waitcnt vmcnt(8)")
            e("ds_write_b32 v%d, v%d" % (t, t + 1))
    e("s_cmp_eq_u32 %s, 7" % WV)
    e("s_cbranch_scc0 L_pad4")
    for i in range(4): e("v_mov_b32 v%d, 0x3f803f80" % (32 + i))
    ones_pads(4, 32)
    lab("L_pad4")
    e("s_waitcnt vmcnt(0) lgkmcnt(0)")
    e("ds_write_b32 v%d, v%d" % (t, t + 2))
    stamp("kvdone")
    lab("L_kvl_done")

WOR = 200
A_YA, A_WA = 196, 197
YS, WS_ = "s4", "s5"
def side_addr():
    t = VT + 1
    e("v_lshrrev_b32 v%d, 3, v%d" % (t, V_L))
    e("v_and_b32 v%d, 7, v%d" % (t + 1, V_L))
    e("v_bfe_u32 v%d, v%d, 4, 1" % (t + 2, V_L))
    e("v_lshlrev_b32 v%d, 2, v%d" % (t + 2, t + 2))
    e("v_xor_b32 v%d, v%d, v%d" % (t + 1, t + 1, t + 2))
    e("v_lshlrev_b32 v%d, 4, v%d" % (t + 1, t + 1))
    e("v_lshl_add_u32 v%d, v%d, 10, v%d" % (A_WA, t, t + 1))
    e("s_and_b32 %s, %s, 7" % (T0, I5))
    e("s_lshl_b32 %s, %s, 7" % (T0, T0))
    e("s_lshl_b32 %s, %s, 13" % (T1, WV))
    e("s_add_u32 %s, %s, %s" % (WS_, T0, T1))
    e("s_lshl_b32 %s, %s, 19" % (T0, WV))
    e("s_lshl_b32 %s, %s, 1" % (T1, C0))
    e("s_add_u32 %s, %s, %s" % (YS, T0, T1))
    e("v_lshlrev_b32 v%d, 11, v%d" % (A_YA, V_L))

def kv_check(stage):
    t = VT + 4
    lb = "L_kvchk%d" % stage
    e("v_mov_b32 v%d, 0x%x" % (t, L_FL))
    e("s_mov_b32 %s, 0" % T3)
    lab(lb)
    e("ds_read_b128 %s, v%d" % (vr(t + 2, 4), t))
    e("s_add_u32 %s, %s, 1" % (T3, T3))
    e("s_waitcnt lgkmcnt(0)")
    e("v_min_u32 v%d, v%d, v%d" % (t + 2, t + 2, t + 3))
    e("v_min3_u32 v%d, v%d, v%d, v%d" % (t + 2, t + 2, t + 4, t + 5))
    e("s_cmp_gt_u32 %s, 0x40000" % T3)
    e("s_cbranch_scc1 %s_done" % lb)
    e("v_readfirstlane_b32 %s, v%d" % (T4, t + 2))
    e("s_cmp_lt_u32 %s, %d" % (T4, stage))
    e("s_cbranch_scc1 %s" % lb)
    lab(lb + "_done")

def attn_addr():
    t = VT
    e("v_mov_b32 v%d, 0xdddddddd" % A_IDX)
    e("s_cmp_ge_u32 %s, 4" % WV)
    e("s_cselect_b32 %s, 1024, 0" % T0)
    csel(T1, 8192 + 1040, 8192)
    e("v_add_u32 v%d, %s, v%d" % (A_KA, T0, V_L16))
    e("v_and_b32 v%d, 15, v%d" % (t, V_L))
    e("v_lshrrev_b32 v%d, 5, v%d" % (t + 1, V_L))
    e("v_lshlrev_b32 v%d, 4, v%d" % (t, t))
    e("v_lshl_add_u32 v%d, v%d, 8, v%d" % (t, t + 1, t))
    e("v_add_u32 v%d, 512, v%d" % (t + 1, t))
    e("v_mov_b32 v%d, 1024" % (t + 2))
    e("v_and_b32 v%d, 16, v%d" % (t + 3, V_L))
    e("v_cmp_eq_u32 vcc, 0, v%d" % (t + 3))
    for i in range(16): e("v_mov_b32 v%d, 0" % (A_O[0] + i))
    e("v_cndmask_b32 v%d, v%d, v%d, vcc" % (A_V0, t + 2, t))
    e("v_cndmask_b32 v%d, v%d, v%d, vcc" % (A_V1, t + 2, t + 1))
    e("v_add_u32 v%d, %s, v%d" % (A_V0, T1, A_V0))
    e("v_add_u32 v%d, %s, v%d" % (A_V1, T1, A_V1))
    for i in range(16): e("v_mov_b32 v%d, 0" % (A_O[1] + i))
    side_addr()

def attn_main():
    c("---- attention main loop: wave = 2 q-tiles x 32 key tiles (parity w>>2), fully unrolled ----")
    base = [0]
    koff = lambda i: (i // 4 - base[0]) * BLK + (i % 4) * 2048
    voff = lambda i: (i // 4 - base[0]) * BLK + (i % 4) * 2080
    def rdK(i):
        if i < 32: e("ds_read_b128 %s, v%d offset:%d" % (vr(A_KF[i & 1], 4), A_KA, koff(i)))
    def rdVa(i):
        if i < 32: e("ds_read_b128 %s, v%d offset:%d" % (vr(A_VA[i & 1], 4), A_V0, voff(i)))
    def rdVb(i):
        if i < 32: e("ds_read_b128 %s, v%d offset:%d" % (vr(A_VB[i & 1], 4), A_V1, voff(i)))
    def qk(i, q):
        if i < 32: e("v_mfma_f32_32x32x16_bf16 %s, %s, %s, 0" % (vr(A_S[q], 16), vr(A_KF[i & 1], 4), vr(A_Q[q], 4)))
    def pv(i, q, half):
        if i < 0: return
        a = (A_VA if half == 0 else A_VB)[i & 1]
        e("v_smfmac_f32_32x32x32_bf16 %s, %s, %s, v%d" % (vr(A_O[q], 16), vr(a, 4), vr(A_S[q] + 8 * half, 8), A_IDX))
    def ex(q, lo, hi):
        for k in range(lo, hi): e("v_exp_f32 v%d, v%d" % (A_S[q] + k, A_S[q] + k))
    rdK(0); rdK(1); rdVa(0); rdVb(0)
    e("s_cmp_ge_u32 %s, 4" % WV)
    e("s_cbranch_scc1 L_prio1")
    e("s_setprio 2")
    e("s_branch L_prio_done")
    lab("L_prio1")
    e("s_setprio 1")
    lab("L_prio_done")
    e("s_waitcnt lgkmcnt(3)")
    qk(0, 0)
    nop(12)
    ytiles = OPT["yt"]; wtiles = OPT["wt"]
    for i in range(32):
        c("key tile %d" % i)
        if i == OPT["flip"]:
            e("s_cmp_ge_u32 %s, 4" % WV)
            e("s_cbranch_scc1 L_noflip")
            e("s_setprio 0")
            lab("L_noflip")
        if i == 6: kv_check(1)
        if i == 14: kv_check(2)
        ex(0, 0, 2); pv(i - 1, 1, 1); ex(0, 2, 5); qk(i, 1)
        e("s_waitcnt lgkmcnt(0)")
        if i in (11, 23):
            for r in (A_KA, A_V0, A_V1): e("v_add_u32 v%d, %d, v%d" % (r, 3 * BLK, r))
            base[0] += 3
        rdK(i + 2); rdVa(i + 1); rdVb(i + 1)
        if i in ytiles:
            e("buffer_store_dword v%d, v%d, %s, %s offen" % (V_Y + ytiles.index(i), A_YA, R_OUT, YS))
            e("s_add_u32 %s, %s, 0x20000" % (YS, YS))
        if i in wtiles:
            e("buffer_load_dwordx4 %s, v%d, %s, %s offen" % (vr(WOR + 4 * wtiles.index(i), 4), A_WA, R_WO, WS_))
            e("s_add_u32 %s, %s, 0x10000" % (WS_, WS_))
        ex(0, 5, 11); pv(i, 0, 0); ex(0, 11, 16)
        ex(1, 0, 2); pv(i, 0, 1); ex(1, 2, 5); qk(i + 1, 0)
        ex(1, 5, 11); pv(i, 1, 0); ex(1, 11, 16)
    e("s_nop 1")
    pv(31, 1, 1)
    e("s_setprio 0")
    stamp("loopend")

def combine():
    t = VT
    c("combine the two key-parity halves through LDS")
    e("s_xor_b32 %s, %s, 4" % (T0, WV))
    e("s_mul_i32 %s, %s, 2304" % (T0, T0))
    e("s_add_u32 %s, %s, %d" % (T0, T0, L_SC))
    e("s_mul_i32 %s, %s, 2304" % (T1, WV))
    e("s_add_u32 %s, %s, %d" % (T1, T1, L_SC))
    e("v_add_u32 v%d, %s, v%d" % (t, T0, V_L16))
    e("v_lshl_add_u32 v%d, v%d, 2, %s" % (t + 1, V_L, T0))
    e("v_add_u32 v%d, %s, v%d" % (t + 2, T1, V_L16))
    e("v_lshl_add_u32 v%d, v%d, 2, %s" % (t + 3, V_L, T1))
    e("s_waitcnt lgkmcnt(0)")
    e("s_barrier")
    stamp("attn")
    e("s_cmp_ge_u32 %s, 4" % WV)
    e("s_cbranch_scc1 L_cmb1")
    for kp in range(2):
        if kp: lab("L_cmb1")
        o = A_O[1 - kp]
        e("ds_write_b128 v%d, %s" % (t, vr(o, 4)))
        e("ds_write_b128 v%d, %s offset:1024" % (t, vr(o + 4, 4)))
        e("ds_write_b32 v%d, v%d offset:2048" % (t + 1, o + 8))
        e("s_waitcnt lgkmcnt(0)")
        e("s_barrier")
        e("ds_read_b128 %s, v%d" % (vr(A_F, 4), t + 2))
        e("ds_read_b128 %s, v%d offset:1024" % (vr(A_F + 4, 4), t + 2))
        e("ds_read_b32 v%d, v%d offset:2048" % (A_F + 8, t + 3))
        if kp:
            for i in range(4): e("v_mov_b32 v%d, v%d" % (A_Q[0] + i, A_Q[1] + i))
        e("s_waitcnt lgkmcnt(0)")
        for i in range(9): e("v_add_f32 v%d, v%d, v%d" % (A_F + i, A_F + i, A_O[kp] + i))
        if kp == 0: e("s_branch L_cmb_done")
    lab("L_cmb_done")

def attn_check_and_slow():
    t = VT
    c("---- softmax guard: the fast path used shift 0; redo with the true row max if that was unsafe ----")
    e("v_mul_f32 v%d, 0, v%d" % (t, A_F))
    for i in range(1, 8): e("v_fma_f32 v%d, v%d, 0, v%d" % (t, A_F + i, t))
    e("v_cmp_nle_f32 vcc, %s, v%d" % (fl(2.0 ** -40), A_F + 8))
    e("v_mov_b32 v%d, %s" % (t + 1, fl(2.0 ** 100)))
    e("v_cmp_nle_f32 s[4:5], v%d, v%d" % (A_F + 8, t + 1))
    e("v_cmp_neq_f32 s[6:7], 0, v%d" % t)
    e("s_or_b64 vcc, vcc, s[4:5]")
    e("s_or_b64 vcc, vcc, s[6:7]")
    if OPT["forceslow"]: e("s_mov_b64 vcc, -1")
    e("s_cmp_eq_u64 vcc, 0")
    e("s_cbranch_scc1 L_attn_ok")
    S, KF, VA, VB = A_S[0], A_KF[0], A_VA[0], A_VB[0]
    c("slow path pass 1: true row max (K from the workspace)")
    e("s_lshl_b32 %s, %s, 16" % (T2, HH))
    e("s_add_u32 %s, %s, 0x%x" % (T0, T2, WS_K))
    e("v_mov_b32 v%d, 0xff800000" % t)
    e("s_mov_b32 %s, 0" % CNT)
    lab("L_slow1")
    e("buffer_load_dwordx4 %s, v%d, %s, %s offen sc1" % (vr(KF, 4), V_L16, R_WS, T0))
    e("s_add_u32 %s, %s, 1024" % (T0, T0))
    e("s_waitcnt vmcnt(0)")
    e("v_mfma_f32_32x32x16_bf16 %s, %s, %s, 0" % (vr(S, 16), vr(KF, 4), vr(A_Q[0], 4)))
    nop(12)
    for k in range(0, 16, 2): e("v_max3_f32 v%d, v%d, v%d, v%d" % (t, t, S + k, S + k + 1))
    e("s_add_u32 %s, %s, 1" % (CNT, CNT))
    e("s_cmp_lt_u32 %s, 64" % CNT)
    e("s_cbranch_scc1 L_slow1")
    e("v_mov_b32 v%d, v%d" % (t + 1, t))
    e("s_nop 1")
    e("v_permlane32_swap_b32 v%d, v%d" % (t, t + 1))
    e("s_nop 1")
    e("v_max_f32 v%d, v%d, v%d" % (t, t, t + 1))
    for k in range(16): e("v_mul_f32 v%d, -1.0, v%d" % (A_NM + k, t))
    c("slow path pass 2")
    for k in range(16): e("v_mov_b32 v%d, 0" % (A_F + k))
    for k in range(4):
        e("v_mov_b32 v%d, 0x3f803f80" % (VA + k))
        e("v_mov_b32 v%d, 0x3f803f80" % (VB + k))
    e("v_and_b32 v%d, 15, v%d" % (t, V_L))
    e("v_lshrrev_b32 v%d, 5, v%d" % (t + 1, V_L))
    e("v_lshlrev_b32 v%d, 4, v%d" % (t, t))
    e("v_lshl_add_u32 v%d, v%d, 8, v%d" % (t, t + 1, t))
    e("s_add_u32 %s, %s, 0x%x" % (T0, T2, WS_K))
    e("s_add_u32 %s, %s, 0x%x" % (T1, T2, WS_V))
    e("s_mov_b32 %s, 0" % CNT)
    lab("L_slow2")
    e("buffer_load_dwordx4 %s, v%d, %s, %s offen sc1" % (vr(KF, 4), V_L16, R_WS, T0))
    e("s_mov_b32 exec_lo, 0xffff")
    e("s_mov_b32 exec_hi, 0xffff")
    e("buffer_load_dwordx4 %s, v%d, %s, %s offen sc1" % (vr(VA, 4), t, R_WS, T1))
    e("buffer_load_dwordx4 %s, v%d, %s, %s offen offset:512 sc1" % (vr(VB, 4), t, R_WS, T1))
    e("s_mov_b64 exec, -1")
    e("s_add_u32 %s, %s, 1024" % (T0, T0))
    e("s_add_u32 %s, %s, 1024" % (T1, T1))
    e("s_waitcnt vmcnt(0)")
    e("v_mfma_f32_32x32x16_bf16 %s, %s, %s, %s" % (vr(S, 16), vr(KF, 4), vr(A_Q[0], 4), vr(A_NM, 16)))
    nop(12)
    for k in range(16): e("v_exp_f32 v%d, v%d" % (S + k, S + k))
    e("s_nop 1")
    e("v_smfmac_f32_32x32x32_bf16 %s, %s, %s, v%d" % (vr(A_F, 16), vr(VA, 4), vr(S, 8), A_IDX))
    e("v_smfmac_f32_32x32x32_bf16 %s, %s, %s, v%d" % (vr(A_F, 16), vr(VB, 4), vr(S + 8, 8), A_IDX))
    e("s_add_u32 %s, %s, 1" % (CNT, CNT))
    e("s_cmp_lt_u32 %s, 64" % CNT)
    nop(4)
    e("s_cbranch_scc1 L_slow2")
    nop(12)
    lab("L_attn_ok")

def attn_publish():
    t = VT
    c("normalise and publish O (q-tile 2*(w&3) + (w>>2))")
    e("v_rcp_f32 v%d, v%d" % (t, A_F + 8))
    e("s_lshl_b32 %s, %s, 3" % (T0, HH))
    e("s_add_u32 %s, %s, %s" % (T0, T0, JJ))
    e("s_lshl_b32 %s, %s, 2" % (T0, T0))
    e("s_and_b32 %s, %s, 3" % (T1, WV))
    e("s_add_u32 %s, %s, %s" % (T0, T0, T1))
    e("s_lshl_b32 %s, %s, 1" % (T0, T0))
    e("s_lshr_b32 %s, %s, 2" % (T1, WV))
    e("s_add_u32 %s, %s, %s" % (T0, T0, T1))
    e("s_lshl_b32 %s, %s, 10" % (T0, T0))
    e("s_add_u32 %s, %s, 0x%x" % (T0, T0, WS_O))
    for i in range(8): e("v_mul_f32 v%d, v%d, v%d" % (A_F + i, A_F + i, t))
    P = 32
    for i in range(4): e("v_cvt_pk_bf16_f32 v%d, v%d, v%d" % (P + i, A_F + 2 * i, A_F + 2 * i + 1))
    e("s_nop 1")
    e("v_permlane32_swap_b32 v%d, v%d" % (P, P + 2))
    e("v_permlane32_swap_b32 v%d, v%d" % (P + 1, P + 3))
    e("buffer_store_dwordx4 %s, v%d, %s, %s offen sc1" % (vr(P, 4), V_L16, R_WS, T0))

def wo_stage():
    c("Wo slice (prefetched in registers) -> LDS")
    e("v_add_u32 v%d, %s, v%d" % (VT, W10, V_L16))
    e("s_waitcnt vmcnt(1)")
    for n in range(8):
        e("ds_write_b128 v%d, %s offset:%d" % (VT, vr(WOR + 4 * n, 4), L_WO + 8192 * n))

P_W, P_ACC, P_OF = 128, 72, 88
def wo_frags():
    t = VT
    c("Wo fragments -> registers (waves 0..3)")
    e("v_lshrrev_b32 v%d, 5, v%d" % (t, V_L))
    e("v_bfe_u32 v%d, v%d, 2, 2" % (t + 1, V_L))
    e("v_lshl_add_u32 v%d, v%d, 3, v%d" % (t, t, t + 1))
    e("v_lshlrev_b32 v%d, 7, v%d" % (t, t))
    e("v_and_b32 v%d, 1, v%d" % (t + 1, V_L))
    e("v_bfe_u32 v%d, v%d, 4, 1" % (t + 2, V_L))
    e("v_lshl_or_b32 v%d, v%d, 1, v%d" % (t + 1, t + 1, t + 2))
    e("s_and_b32 %s, %s, 2" % (T0, WV))
    e("s_lshl_b32 %s, %s, 1" % (T0, T0))
    e("v_or_b32 v%d, %s, v%d" % (t + 1, T0, t + 1))
    e("v_bfe_u32 v%d, v%d, 3, 1" % (t + 2, V_L))
    e("v_lshlrev_b32 v%d, 2, v%d" % (t + 2, t + 2))
    e("v_xor_b32 v%d, v%d, v%d" % (t + 1, t + 1, t + 2))
    e("v_lshl_add_u32 v%d, v%d, 4, v%d" % (t, t + 1, t))
    e("v_bfe_u32 v%d, v%d, 1, 1" % (t + 2, V_L))
    e("v_lshl_add_u32 v%d, v%d, 3, v%d" % (t, t + 2, t))
    for hh in range(32):
        for tt in range(2):
            e("ds_read_b64_tr_b16 %s, v%d offset:%d" % (vr(P_W + 4 * hh + 2 * tt, 2), t, L_WO + hh * 2048 + tt * 512))

def o_addr():
    e("s_lshr_b32 %s, %s, 1" % (T0, WV))
    e("s_lshl_b32 %s, %s, 6" % (T0, T0))
    e("s_lshl_b32 %s, %s, 3" % (T1, XQ))
    e("s_add_u32 %s, %s, %s" % (T0, T0, T1))
    e("s_lshr_b32 %s, %s, 3" % (T1, I5))
    e("s_lshl_b32 %s, %s, 1" % (T1, T1))
    e("s_add_u32 %s, %s, %s" % (T0, T0, T1))
    e("s_and_b32 %s, %s, 1" % (T1, WV))
    e("s_add_u32 %s, %s, %s" % (T0, T0, T1))
    e("s_lshl_b32 %s, %s, 10" % (T0, T0))
    e("s_add_u32 %s, %s, 0x%x" % (T4, T0, WS_O))
    e("s_lshl_b32 %s, %s, 2" % (T0, XQ))
    e("s_lshr_b32 %s, %s, 3" % (T1, I5))
    e("s_add_u32 %s, %s, %s" % (T0, T0, T1))
    e("s_lshl_b32 %s, %s, 3" % (T0, T0))
    e("s_add_u32 %s, %s, %s" % (T0, T0, WV))
    e("s_lshl_b32 %s, %s, 14" % (T0, T0))
    e("s_and_b32 %s, %s, 7" % (T1, I5))
    e("s_lshl_b32 %s, %s, 7" % (T1, T1))
    e("s_add_u32 %s, %s, %s" % (T0, T0, T1))
    e("s_add_u32 %s, %s, 1024" % (T5, T0))
def o_loads():
    c("O tiles -> LDS")
    e("s_add_u32 m0, %s, %d" % (W10, L_O))
    e("s_nop 0")
    for n in range(8):
        e("buffer_load_dwordx4 v%d, %s, %s offen sc1 lds" % (V_L16, R_WS, T4))
        if n < 7:
            e("s_add_u32 m0, m0, 8192")
            e("s_add_u32 %s, %s, 0x40000" % (T4, T4))

def outproj_part(h0, nh, va):
    d = min(8, nh)
    for k in range(d): e("ds_read_b128 %s, v%d offset:%d" % (vr(P_OF + 4 * k, 4), va, (h0 + k) * 2048))
    for k in range(nh):
        hh = h0 + k
        e("s_waitcnt lgkmcnt(%d)" % (min(k + d - 1, nh - 1) - k))
        e("v_mfma_f32_32x32x16_bf16 %s, %s, %s, %s" % (vr(P_ACC, 16), vr(P_W + 4 * hh, 4), vr(P_OF + 4 * (k % 8), 4), "0" if hh == 0 else vr(P_ACC, 16)))
        if k + d < nh: e("ds_read_b128 %s, v%d offset:%d" % (vr(P_OF + 4 * (k % 8), 4), va, (hh + d) * 2048))

def dump_lds(base, nbytes, wsoff):
    t = VT + 10
    e("s_waitcnt lgkmcnt(0)"); e("s_barrier")
    e("v_lshlrev_b32 v%d, 4, v0" % t)
    e("s_lshl_b32 %s, s2, 18" % T0)
    e("s_add_u32 %s, %s, 0x%x" % (T0, T0, WS_DBG + wsoff))
    for o in range(0, nbytes, 8192):
        e("v_add_u32 v%d, 0x%x, v%d" % (t + 1, base + o, t))
        e("ds_read_b128 %s, v%d" % (vr(t + 2, 4), t + 1))
        e("s_waitcnt lgkmcnt(0)")
        e("buffer_store_dwordx4 %s, v%d, %s, %s offen" % (vr(t + 2, 4), t, R_WS, T0))
        e("s_add_u32 %s, %s, 8192" % (T0, T0))
        e("s_waitcnt vmcnt(0)")
    e("s_barrier")

def write_stamps():
    t = VT
    if OPT["stamps"]:
        e("s_waitcnt vmcnt(0)")
        stamp("end")
        e("s_lshl_b32 %s, s2, 3" % T0)
        e("s_add_u32 %s, %s, %s" % (T0, T0, WV))
        e("s_lshl_b32 %s, %s, 7" % (T0, T0))
        e("s_add_u32 %s, %s, 0x%x" % (T0, T0, WS_ST))
        e("s_mov_b64 exec, 1")
        e("v_mov_b32 v%d, 0" % t)
        for i in range(len(stamp_names)):
            e("v_mov_b32 v%d, %s" % (t + 1, sr(S_ST + i)))
            e("buffer_store_dword v%d, v%d, %s, %s offen offset:%d" % (t + 1, t, R_WS, T0, 4 * i))
            e("s_nop 1")
        e("v_mov_b32 v%d, s100" % (t + 1))
        e("buffer_store_dword v%d, v%d, %s, %s offen offset:124" % (t + 1, t, R_WS, T0))
        e("s_mov_b64 exec, -1")
        L.insert(0, "; stamps: " + ",".join(stamp_names))
    if OPT["dbgspan"]:
        e("s_cmp_eq_u32 %s, 0" % WV)
        e("s_cbranch_scc0 L_end")
        e("s_and_b32 %s, s2, 63" % T0)
        e("s_cmp_eq_u32 %s, 5" % T0)
        e("s_cbranch_scc0 L_end")
        e("s_waitcnt vmcnt(0)")
        e("s_memrealtime s[96:97]")
        e("s_memtime s[94:95]")
        srd(R_X, S_DBG, 256)
        e("s_lshr_b32 %s, s2, 6" % T0)
        e("s_lshl_b32 %s, %s, 4" % (T0, T0))
        e("s_waitcnt lgkmcnt(0)")
        e("s_mov_b64 exec, 1")
        e("v_mov_b32 v%d, 0" % t)
        e("s_sub_u32 s94, s94, s98")
        e("s_sub_u32 s96, s96, s100")
        e("v_mov_b32 v%d, s100" % (t + 2))
        e("v_mov_b32 v%d, s96" % (t + 3))
        e("v_mov_b32 v%d, s94" % (t + 4))
        e("v_mov_b32 v%d, 0" % (t + 5))
        e("buffer_store_dwordx4 %s, v%d, %s, %s offen" % (vr(t + 2, 4), t, R_X, T0))

def main():
    header()
    setup()
    t = VT
    e("s_lshl_b32 %s, %s, 5" % (C0, XQ))
    e("s_add_u32 %s, %s, %s" % (C0, C0, I5))
    e("s_lshl_b32 %s, %s, 1" % (C0, C0))
    e("s_bfe_u32 %s, %s, 0x10001" % (T0, WV))
    e("s_add_u32 %s, %s, %s" % (T0, T0, C0))
    e("s_lshl_b32 %s, %s, 8" % (T0, T0))
    e("s_and_b32 %s, %s, 1" % (T1, WV))
    e("s_lshl_b32 %s, %s, 7" % (T1, T1))
    e("s_add_u32 %s, %s, %s" % (T0, T0, T1))
    e("v_lshl_add_u32 v%d, v%d, 1, %s" % (V_PA, V_L, T0))
    def scalar_loads():
        e("s_lshl_b32 %s, %s, 1" % (T3, C0))
        e("s_load_dword %s, %s, 0" % (TAG, sr(S_WS, 2)))
        e("s_load_dword %s, %s, %s" % (LD2, sr(S_LDT, 2), T3))
        e("s_load_dword %s, %s, %s" % (DS2, sr(S_DSK, 2), T3))
    e("s_cmp_ge_u32 %s, 4" % WV)
    e("s_cbranch_scc0 L_compute")
    c("======== loader waves ========")
    loader_addr()
    e("s_waitcnt lgkmcnt(0)")
    stamp("karg")
    srd(R_X, S_X, 2048 * 1024)
    srd(R_W, S_W, 512 * 3072)
    srd(R_U, S_U, 2048 * 1024)
    scalar_loads()
    u_coop_loads()
    for i, s in enumerate((S_ARE, S_AIM, S_BRE, S_BIM, S_CRE, S_CIM)):
        e("global_load_ushort v%d, v%d, %s" % (V_PAR + i, V_PA, sr(s, 2)))
    loader_loop(kgen_pieces(1))
    table_writes(1)
    e("s_branch L_gemm_done")
    lab("L_compute")
    c("======== compute waves ========")
    e("s_waitcnt lgkmcnt(0)")
    stamp("karg")
    scalar_loads()
    for i, s in enumerate((S_ARE, S_AIM)):
        e("global_load_ushort v%d, v%d, %s" % (V_PAR + i, V_PA, sr(s, 2)))
    if OPT["pf"]:
        c("pull this WG's 1/32 share of the code into L2")
        e("s_getpc_b64 s[4:5]")
        lab("L_pc")
        e("s_mul_i32 %s, %s, 8" % (T0, I5))
        e("v_add_u32 v%d, %s, v%d" % (t, T0, V_L))
        e("v_lshlrev_b32 v%d, 7, v%d" % (t, t))
        e("v_min_u32 v%d, L_end-L_pc-4, v%d" % (t, t))
        e("s_mov_b64 exec, 0xff")
        e("global_load_dword v%d, v%d, s[4:5]" % (t + 1, t))
        e("s_mov_b64 exec, -1")
    srd(R_WS, S_WS, WS_SIZE)
    gemm_read_addr()
    e("s_waitcnt lgkmcnt(0)")
    e("s_add_u32 %s, %s, 1" % (TAG, TAG))
    compute_loop(kgen_pieces(0))
    gemm_epilogue()
    table_writes(0)
    lab("L_gemm_done")
    stamp("gemm")
    srd(R_OUT, S_OUT, 2048 * 2048)
    srd(R_WO, S_WO, 512 * 1024)
    setup2()
    kgen_addr()
    e("s_waitcnt lgkmcnt(0)")
    e("s_barrier")
    kgen_mfma()
    conv_addr()
    e("s_waitcnt lgkmcnt(0)")
    e("s_barrier")
    stamp("K2")
    e("s_cmp_eq_u32 %s, 0" % WV)
    e("s_cbranch_scc0 L_nof1")
    e("s_lshl_b32 %s, %s, 5" % (T0, XQ))
    e("s_add_u32 %s, %s, %s" % (T0, T0, I5))
    e("s_lshl_b32 %s, %s, 7" % (T0, T0))
    e("s_add_u32 %s, %s, 0x%x" % (T0, T0, WS_F1))
    flag_store(T0)
    lab("L_nof1")
    if OPT["dump"]: dump_lds(L_KF, 24576, 0)
    conv()
    kv_early()
    conv_epilogue()
    attn_addr()
    e("s_waitcnt vmcnt(0)")
    e("s_barrier")
    stamp("blk0")
    kv_late()
    attn_main()
    combine()
    attn_check_and_slow()
    attn_publish()
    wo_stage()
    o_addr()
    e("s_waitcnt vmcnt(0) lgkmcnt(0)")
    e("s_barrier")
    stamp("Wbar")
    e("s_cmp_ge_u32 %s, 4" % WV)
    e("s_cbranch_scc1 L_op_idle")
    wo_frags()
    va = VT + 4
    e("s_and_b32 %s, %s, 1" % (T0, WV))
    e("s_lshl_b32 %s, %s, 10" % (T0, T0))
    e("s_add_u32 %s, %s, %d" % (T0, T0, L_O))
    e("v_add_u32 v%d, %s, v%d" % (va, T0, V_L16))
    vo = VT + 5
    e("v_and_b32 v%d, 31, v%d" % (vo, V_L))
    e("v_mul_u32_u24 v%d, 144, v%d" % (vo, vo))
    e("v_lshrrev_b32 v%d, 5, v%d" % (vo + 1, V_L))
    e("v_lshl_add_u32 v%d, v%d, 5, v%d" % (vo, vo + 1, vo))
    e("s_and_b32 %s, %s, 1" % (T0, WV))
    e("s_mul_i32 %s, %s, 4608" % (T0, T0))
    e("s_and_b32 %s, %s, 2" % (T1, WV))
    e("s_lshl_b32 %s, %s, 5" % (T1, T1))
    e("s_add_u32 %s, %s, %s" % (T0, T0, T1))
    e("s_add_u32 %s, %s, %d" % (T0, T0, L_OT))
    e("v_add_u32 v%d, %s, v%d" % (vo, T0, vo))
    e("s_waitcnt lgkmcnt(0)")
    e("s_barrier")
    stamp("poll2")
    o_loads()
    e("s_waitcnt vmcnt(4)")
    e("s_barrier")
    stamp("O1")
    outproj_part(0, 16, va)
    e("s_waitcnt vmcnt(0)")
    e("s_barrier")
    outproj_part(16, 16, va)
    nop(12)
    for i in range(8): e("v_cvt_pk_bf16_f32 v%d, v%d, v%d" % (P_OF + i, P_ACC + 2 * i, P_ACC + 2 * i + 1))
    e("ds_write_b128 v%d, %s" % (vo, vr(P_OF, 4)))
    e("ds_write_b128 v%d, %s offset:16" % (vo, vr(P_OF + 4, 4)))
    e("s_branch L_fin")
    lab("L_op_idle")
    e("s_cmp_eq_u32 %s, 7" % WV)
    e("s_cbranch_scc0 L_nopoll2")
    e("s_lshl_b32 %s, %s, 5" % (T0, JJ))
    e("s_add_u32 %s, %s, %s" % (T0, T0, HH))
    e("s_lshl_b32 %s, %s, 7" % (T0, T0))
    e("s_add_u32 %s, %s, 0x%x" % (T0, T0, WS_F2))
    flag_store(T0)
    e("s_lshl_b32 %s, %s, 12" % (T0, XQ))
    e("s_add_u32 %s, %s, 0x%x" % (T0, T0, WS_F2))
    poll("L_poll2", T0)
    lab("L_nopoll2")
    e("s_barrier")
    o_loads()
    e("s_waitcnt vmcnt(4)")
    e("s_barrier")
    e("s_waitcnt vmcnt(0)")
    e("s_barrier")
    c("WG 0 advances the epoch word (every WG has read it: all of them have published)")
    e("s_cmp_eq_u32 s2, 0")
    e("s_cbranch_scc0 L_fin")
    e("s_cmp_eq_u32 %s, 7" % WV)
    e("s_cbranch_scc0 L_fin")
    flag_store("0")
    lab("L_fin")
    e("v_lshrrev_b32 v%d, 3, v%d" % (t, V_L))
    e("v_and_b32 v%d, 7, v%d" % (t + 1, V_L))
    e("v_lshlrev_b32 v%d, 4, v%d" % (t + 1, t + 1))
    e("s_mul_i32 %s, %s, 1152" % (T0, WV))
    e("s_add_u32 %s, %s, %d" % (T0, T0, L_OT))
    e("v_mul_u32_u24 v%d, 144, v%d" % (t + 2, t))
    e("v_add3_u32 v%d, v%d, v%d, %s" % (t + 2, t + 2, t + 1, T0))
    e("v_lshl_add_u32 v%d, v%d, 11, v%d" % (t, t, t + 1))
    e("s_waitcnt lgkmcnt(0)")
    e("s_barrier")
    stamp("opdone")
    e("ds_read_b128 v[32:35], v%d" % (t + 2))
    e("s_waitcnt lgkmcnt(0)")
    e("buffer_store_dwordx4 v[32:35], v%d, %s, %s offen" % (t, R_OUT, T5))
    write_stamps()
    footer(256)
    open(sys.argv[1], "w").write("\n".join(L) + "\n")

main()
```

```python
import sys, struct, math

NAME = "concat_heads__ssm_conv_s4__softmax_full_mha__prompt"
OPT = dict(stamps=0, dump=0, forceslow=0, dbgspan=0, flip=28, pf=1, rot=6, npre=150,
           yt=[15, 19, 23, 27], wt=[9, 11, 13, 17, 21, 25, 28, 29])
for a in sys.argv[2:]:
    k, v = a.split("=")
    OPT[k] = int(v) if v.lstrip("-").isdigit() else v

L = []
SINK = [L]
def e(s): SINK[0].append("    " + s)
def lab(s): SINK[0].append(s + ":")
def c(s): SINK[0].append("    ; " + s)
def f2u(x): return struct.unpack("<I", struct.pack("<f", x))[0]
def fl(x): return "0x%08x" % f2u(x)
def vr(a, n=1): return "v%d" % a if n == 1 else "v[%d:%d]" % (a, a + n - 1)
def sr(a, n=1): return "s%d" % a if n == 1 else "s[%d:%d]" % (a, a + n - 1)
def nop(n):
    while n > 0:
        k = min(n, 16); e("s_nop %d" % (k - 1)); n -= k
def capture(fn, *a):
    old = SINK[0]; out = []; SINK[0] = out; fn(*a); SINK[0] = old; return out

WS_F1 = 0x1000
WS_F2 = 0xa000
WS_F0 = 0x20000
WS_Q, WS_K, WS_V, WS_O, WS_U2 = 0x100000, 0x300000, 0x500000, 0x700000, 0x900000
WS_ST = 0xc00000
WS_DBG = 0x1000000
WS_SIZE = 0x10000000
LDS_TOTAL = 163840
BLK = 16512
L_TB = 98304
L_TA = 0
L_FL = 146240
L_KF = 146304
L_UP = 154624
L_Z = 71360
ZS = 9360
L_WO = 0
L_O = 65536
L_SC = 65536
L_OT = 131072
S_U, S_ARE, S_AIM, S_BRE, S_BIM, S_CRE, S_CIM, S_LDT = 8, 10, 12, 14, 16, 18, 20, 22
S_DSK, S_X, S_W, S_WO, S_OUT, S_DBG, S_WS = 24, 26, 28, 30, 32, 34, 36
R_X, R_W, R_WS, R_U, R_OUT, R_WO = "s[40:43]", "s[44:47]", "s[48:51]", "s[52:55]", "s[56:59]", "s[60:63]"
XQ, I5, WV, TAG, LD2, DS2, HH, JJ, C0 = "s64", "s65", "s66", "s67", "s68", "s69", "s70", "s71", "s72"
T0, T1, T2, T3, T4, T5, CNT = "s73", "s74", "s75", "s76", "s77", "s78", "s79"
CQ, CL, W10, GT, GQ = "s38", "s39", "s3", "s6", "s7"
sQKV, sF1, sF1P, sYS, sWO, sOST, sOLD, sOUT, sF2, sF2P, sHB, sQL = ["s%d" % i for i in range(8, 20)]
S_ST = 80
stamp_names = []
def stamp(name):
    if OPT["stamps"]:
        if name not in stamp_names: stamp_names.append(name)
        assert len(stamp_names) <= 18
        e("s_waitcnt lgkmcnt(0)")
        e("s_memrealtime s[98:99]" if OPT["stamps"] == 2 else "s_memtime s[98:99]")
        e("s_waitcnt lgkmcnt(0)")
        e("s_mov_b32 %s, s98" % sr(S_ST + stamp_names.index(name)))
def srd(r, base, size):
    r = int(r[2:r.index(":")])
    e("s_mov_b32 %s, %s" % (sr(r), sr(base)))
    e("s_and_b32 %s, %s, 0xffff" % (sr(r + 1), sr(base + 1)))
    e("s_mov_b32 %s, 0x%x" % (sr(r + 2), size))
    e("s_mov_b32 %s, 0x00020000" % sr(r + 3))
def csel(dst, a, b):
    e("s_mov_b32 %s, %d" % (dst, b))
    e("s_cselect_b32 %s, %d, %s" % (dst, a, dst))
def S(op, d, a, b): e("s_%s %s, %s, %s" % (op, d, a, b if isinstance(b, str) else ("0x%x" % b if b > 64 else str(b))))
def sadd(d, a, b): S("add_u32", d, a, b)
def sshl(d, a, b): S("lshl_b32", d, a, b)
def sshr(d, a, b): S("lshr_b32", d, a, b)
def sand(d, a, b): S("and_b32", d, a, b)
def smul(d, a, b): S("mul_i32", d, a, b)
def V(op, d, *a): e("v_%s v%d, %s" % (op, d, ", ".join(("v%d" % x[0] if isinstance(x, tuple) else (x if isinstance(x, str) else ("0x%x" % x if x > 64 else str(x)))) for x in a)))
def v(x): return (x,)
LOG2E = math.log2(math.e)

V_L, V_L16, V_PA = 1, 2, 3
V_PAR = 4
V_Y = 10
VT = 14
(PV_CA, PV_CB, PV_ZW, PV_ZR, _z1, _z2, _z3, PV_KA, PV_V0, PV_V1, PV_YA, PV_WA, PV_CW, PV_CR,
 PV_OR, PV_OW, PV_WF, PV_FR, PV_FS, PV_WS) = range(224, 244)
PV_QS, PV_VS, PV_TW = 244, 245, 246
PV_GA, PV_GB, PV_GW, PV_GD, PV_US = 244, 245, 246, 247, 248

def header():
    L.append("; fused S4 long-conv (part A) + multi-head attention (part B): one launch, 256 WGs x 8 waves")
    L.append("; @launch grid=(256,1,1) block=(512,1,1) lds=%d" % LDS_TOTAL)
    L.append('.amdgcn_target "amdgcn-amd-amdhsa--gfx950"')
    L.append(".text")
    L.append(".globl %s_kernel" % NAME)
    L.append(".p2align 8")
    L.append(".type %s_kernel,@function" % NAME)
    L.append("%s_kernel:" % NAME)
def footer(nv):
    lab("L_end")
    e("s_endpgm")
    L.append('.section .rodata,"a"')
    L.append(".p2align 6")
    L.append(".amdhsa_kernel %s_kernel" % NAME)
    L.append("  .amdhsa_next_free_vgpr %d" % nv)
    L.append("  .amdhsa_next_free_sgpr 102")
    L.append("  .amdhsa_accum_offset %d" % nv)
    L.append("  .amdhsa_group_segment_fixed_size 0")
    L.append("  .amdhsa_kernarg_size 120")
    L.append("  .amdhsa_user_sgpr_count 2")
    L.append("  .amdhsa_user_sgpr_kernarg_segment_ptr 1")
    L.append("  .amdhsa_system_sgpr_workgroup_id_x 1")
    L.append(".end_amdhsa_kernel")

def setup():
    c("---- setup ----")
    e("s_cmp_ge_u32 s2, 256")
    e("s_cbranch_scc1 L_end")
    e("s_load_dwordx8 s[24:31], s[0:1], 64")
    e("s_load_dwordx16 s[8:23], s[0:1], 0")
    e("s_load_dwordx4 s[32:35], s[0:1], 96")
    e("s_load_dwordx2 s[36:37], s[0:1], 112")
    if OPT["stamps"] or OPT["dbgspan"]: e("s_memrealtime s[100:101]")
    if OPT["dbgspan"]: e("s_memtime s[98:99]")
    V("and_b32", V_L, 63, v(0))
    V("lshrrev_b32", VT, 6, v(0))
    V("lshlrev_b32", V_L16, 4, v(V_L))
    e("v_readfirstlane_b32 %s, v%d" % (WV, VT))
    sand(XQ, "s2", 7)
    sshr(I5, "s2", 3)
    sand(GT, XQ, 3); sshl(GT, GT, 3); sshr(JJ, I5, 2); sadd(GT, GT, JJ)
    sand(GQ, XQ, 4); sand(T0, I5, 3); sadd(GQ, GQ, T0)
    sshl(HH, XQ, 2); sadd(HH, HH, T0)
    sshl(C0, XQ, 5); sadd(C0, C0, I5); sshl(C0, C0, 1)
    sshl(W10, WV, 10)
    e("s_cmp_ge_u32 %s, 4" % WV)
    e("s_cbranch_scc0 L_compute")

def scalar_loads():
    sshl(T3, C0, 1)
    e("s_load_dword %s, %s, 0" % (TAG, sr(S_WS, 2)))
    e("s_load_dword %s, %s, %s" % (LD2, sr(S_LDT, 2), T3))
    e("s_load_dword %s, %s, %s" % (DS2, sr(S_DSK, 2), T3))

def precompute():
    t = VT
    c("---- address precomputation ----")
    sand(CQ, WV, 1); e("s_sub_u32 %s, 3, %s" % (T0, CQ))
    e("s_cmp_ge_u32 %s, 4" % WV)
    e("s_cselect_b32 %s, %s, %s" % (CQ, T0, CQ))
    e("s_cselect_b32 %s, 1024, 0" % T0)
    csel(T1, 8192 + 1040, 8192)
    e("s_bfe_u32 %s, %s, 0x10001" % (CL, WV))
    hf, b7, p4, r4, g1, l15, l8 = t, t + 1, t + 2, t + 3, t + 4, t + 5, t + 6
    V("lshrrev_b32", hf, 5, v(V_L)); V("and_b32", b7, 7, v(V_L)); V("bfe_u32", p4, v(V_L), 3, 2)
    V("bfe_u32", r4, v(V_L), 2, 2); V("bfe_u32", g1, v(V_L), 4, 1); V("and_b32", l15, 15, v(V_L)); V("lshrrev_b32", l8, 3, v(V_L))
    x, y, z = t + 8, t + 9, t + 10
    V("add_u32", PV_KA, T0, v(V_L16))
    V("lshlrev_b32", x, 4, v(l15)); V("lshl_add_u32", x, v(hf), 8, v(x)); V("add_u32", y, 512, v(x)); V("mov_b32", z, 1024)
    e("v_cmp_eq_u32 vcc, 0, v%d" % g1)
    V("lshlrev_b32", PV_YA, 11, v(V_L))
    V("add_u32", PV_WS, W10, v(V_L16))
    V("cndmask_b32", PV_V0, v(z), v(x), "vcc"); V("cndmask_b32", PV_V1, v(z), v(y), "vcc")
    V("add_u32", PV_V0, T1, v(PV_V0)); V("add_u32", PV_V1, T1, v(PV_V1))
    V("lshlrev_b32", x, 2, v(g1)); V("xor_b32", x, v(x), v(b7)); V("lshlrev_b32", x, 4, v(x)); V("lshl_add_u32", PV_WA, v(l8), 10, v(x))
    c("SPLIT")
    e("s_cmp_eq_u32 %s, 1" % CL)
    csel(T0, L_KF + 4160 + 96, L_KF + 96); csel(T1, L_UP + 4608 + 16, L_UP + 16); csel(T2, L_Z + 4 * ZS + 144, L_Z + 144)
    V("and_b32", x, 3, v(V_L)); V("lshl_add_u32", x, v(g1), 2, v(x)); V("lshl_add_u32", y, v(hf), 3, v(r4))
    V("sub_u32", x, v(x), v(y)); V("lshlrev_b32", x, 3, v(x)); V("add_u32", PV_CA, T0, v(x))
    V("lshlrev_b32", PV_WF, 7, v(y))
    V("mul_u32_u24", x, 1152, v(p4)); V("add_u32", z, v(b7), v(hf)); V("lshl_add_u32", x, v(z), 4, v(x))
    sshl(T3, CQ, 8); sadd(T1, T1, T3); V("add_u32", PV_CB, T1, v(x))
    smul(T3, CQ, 2304); sadd(T2, T2, T3)
    V("mul_u32_u24", x, ZS, v(p4)); V("mul_u32_u24", z, 144, v(b7)); V("lshl_add_u32", z, v(hf), 4, v(z)); V("add3_u32", PV_ZW, v(x), v(z), T2)
    sshl(T0, WV, 8); sadd(T0, T0, 32)
    for p in range(4):
        c("SPLIT")
        V("add_u32", x, T0, v(V_L))
        if p: V("subrev_u32", x, p, v(x))
        V("lshrrev_b32", z, 5, v(x)); V("lshlrev_b32", x, 2, v(x)); V("lshl_add_u32", x, v(z), 4, v(x))
        V("add_u32", PV_ZR + p, L_Z + p * ZS, v(x))
    c("SPLIT")
    S("xor_b32", T0, WV, 4); smul(T0, T0, 3072); sadd(T0, T0, L_SC); smul(T1, WV, 3072); sadd(T1, T1, L_SC)
    V("add_u32", PV_CW, T0, v(V_L16)); V("add_u32", PV_CR, T1, v(V_L16))
    c("SPLIT")
    V("and_b32", x, 1, v(V_L)); V("lshl_or_b32", x, v(x), 1, v(g1))
    sand(T0, WV, 2); sshl(T0, T0, 1); V("or_b32", x, T0, v(x))
    V("bfe_u32", z, v(V_L), 3, 1); V("lshlrev_b32", z, 2, v(z)); V("xor_b32", x, v(x), v(z))
    V("lshl_add_u32", PV_WF, v(x), 4, v(PV_WF)); V("bfe_u32", z, v(V_L), 1, 1); V("lshl_add_u32", PV_WF, v(z), 3, v(PV_WF))
    sand(T1, WV, 1); sshl(T2, T1, 10); sadd(T2, T2, L_O); V("add_u32", PV_OR, T2, v(V_L16))
    smul(T1, T1, 4608); sshl(T0, T0, 4); sadd(T0, T0, T1); sadd(T0, T0, L_OT)
    V("and_b32", x, 31, v(V_L)); V("mul_u32_u24", x, 144, v(x)); V("lshl_add_u32", x, v(hf), 5, v(x)); V("add_u32", PV_OW, T0, v(x))
    smul(T0, WV, 1152); sadd(T0, T0, L_OT)
    V("lshlrev_b32", x, 4, v(b7)); V("mul_u32_u24", z, 144, v(l8)); V("add3_u32", PV_FR, v(z), v(x), T0); V("lshl_add_u32", PV_FS, v(l8), 11, v(x))
    c("SPLIT")
    sshl(sF1, GQ, 5); sadd(sF1, sF1, GT); sshl(sF1, sF1, 7); sadd(sF1, sF1, WS_F1)
    sshl(T0, XQ, 12); sadd(sF1P, T0, WS_F1); sadd(sF2P, T0, WS_F2)
    sshl(sF2, JJ, 5); sadd(sF2, sF2, HH); sshl(sF2, sF2, 7); sadd(sF2, sF2, WS_F2)
    sshl(T0, WV, 19); sshl(T1, C0, 1); sadd(sYS, T0, T1)
    sand(T0, I5, 7); sshl(T0, T0, 7); sshl(T1, WV, 13); sadd(sWO, T0, T1)
    c("SPLIT")
    sshl(sHB, HH, 16)
    sshl(T1, JJ, 13); sadd(T1, T1, sHB); sand(T2, WV, 3); sshl(T2, T2, 11); sadd(T1, T1, T2)
    sadd(sQL, T1, WS_Q)
    sshr(T2, WV, 2); sshl(T2, T2, 10); sadd(T1, T1, T2); sadd(sOST, T1, WS_O)
    sshr(T1, WV, 1); sshl(T1, T1, 6); sshl(T2, XQ, 3); sadd(T1, T1, T2); sshr(T3, I5, 3); sshl(T2, T3, 1); sadd(T1, T1, T2)
    sand(T2, WV, 1); sadd(T1, T1, T2); sshl(T1, T1, 10); sadd(sOLD, T1, WS_O)
    sshl(T1, XQ, 2); sadd(T1, T1, T3); sshl(T1, T1, 3); sadd(T1, T1, WV); sshl(T1, T1, 14); sadd(T1, T1, T0); sadd(sOUT, T1, 1024)

G_VX0, G_VX1, G_VWQ, G_VWK, G_VWV, G_UA, G_US, G_PL = 32, 33, 34, 35, 36, 37, 38, 39
G_UL, U2R = 48, 80
G_XA, G_WA, G_WB = 32, 40, 43
G_ACC = [48, 64, 80]
G_XF, G_W0F, G_W1F, G_VF = 96, 112, 128, 144
KB = 48
KR = 192

def loader_addr():
    t = VT
    c("loader DMA voffsets (wave v=w-4 covers rows 16v..16v+15 of each chunk)")
    V("lshrrev_b32", t, 3, v(V_L)); V("and_b32", t + 1, 7, v(V_L)); V("bfe_u32", t + 2, v(V_L), 4, 1)
    sand(T0, WV, 3); sshl(T4, T0, 11); sshl(T0, T0, 4)
    V("add_u32", t + 3, T0, v(t))
    V("bfe_u32", t + 4, v(t + 3), 1, 3); V("xor_b32", t + 4, v(t + 4), v(t + 1)); V("lshlrev_b32", t + 4, 4, v(t + 4))
    sshl(T1, GT, 16)
    V("lshl_add_u32", G_VX0, v(t + 3), 10, v(t + 4)); V("add_u32", G_VX0, T1, v(G_VX0)); V("xor_b32", G_VX1, 0x2040, v(G_VX0))
    V("mul_u32_u24", t + 5, 3072, v(t + 3)); sshl(T1, GQ, 7); V("add_u32", t + 5, T1, v(t + 5))
    V("lshlrev_b32", t + 6, 1, v(t + 2)); V("xor_b32", t + 6, v(t + 6), v(t + 1)); V("lshl_add_u32", G_VWQ, v(t + 6), 4, v(t + 5))
    V("xor_b32", t + 6, 4, v(t + 6)); V("lshl_add_u32", G_VWK, v(t + 6), 4, v(t + 5)); V("add_u32", G_VWK, 1024, v(G_VWK))
    V("lshlrev_b32", t + 6, 2, v(t + 2)); V("xor_b32", t + 6, v(t + 6), v(t + 1)); V("lshl_add_u32", G_VWV, v(t + 6), 4, v(t + 5)); V("add_u32", G_VWV, 2048, v(G_VWV))
    r = OPT["rot"]
    if r == 1: sshl(T5, GQ, 1); sadd(T5, T5, GT)
    else:
        sadd(T5, GQ, GT)
        if r == 3: sshl(T5, T5, 2)
        if r == 5: sand(T5, T5, 1)
        if r == 6: sshl(T5, T5, 1)

I0, I1, I2, I3 = "s20", "s21", "s22", "s23"
def issue_chunk(ci):
    base = (ci % 3) * 32768
    sadd(I0, T5, ci); sand(I0, I0, 7)
    sadd("m0", T4, base); sshl(I1, I0, 7)
    e("buffer_load_dwordx4 v%d, %s, %s offen lds" % (G_VX0, R_X, I1))
    sadd("m0", T4, base + 1024); smul(I2, I0, 196608)
    e("buffer_load_dwordx4 v%d, %s, %s offen lds" % (G_VX1, R_X, I1))
    for g, va in enumerate((G_VWQ, G_VWK, G_VWV)):
        for h in range(2):
            sadd("m0", T4, base + (g + 1) * 8192 + h * 1024)
            if g == 0 and h == 0: sadd(I3, I2, 24576)
            else: e("s_nop 0")
            e("buffer_load_dwordx4 v%d, %s, %s offen lds" % (va, R_W, I3 if h else I2))

def pi_tok(dst, src, t):
    V("and_b32", dst, 0x13, v(src)); V("bfe_u32", t, v(src), 2, 1); V("lshl_or_b32", dst, v(t), 3, v(dst))
    V("bfe_u32", t, v(src), 3, 1); V("lshl_or_b32", dst, v(t), 2, v(dst))

def gemm_read_addr():
    t = VT
    c("GEMM LDS fragment read addresses, publish addresses")
    pi_tok(t, V_L, t + 1)
    V("lshrrev_b32", t + 1, 5, v(V_L))
    V("lshlrev_b32", PV_QS, 4, v(t)); V("lshl_add_u32", PV_QS, v(t + 1), 9, v(PV_QS))
    sand(T0, WV, 1); sshl(T1, T0, 5); V("add_u32", t, T1, v(t))
    V("bfe_u32", t + 2, v(t), 1, 3); V("xor_b32", t + 2, v(t + 2), v(t + 1)); V("lshlrev_b32", t + 2, 4, v(t + 2))
    V("lshl_add_u32", G_XA, v(t), 7, v(t + 2))
    for s in range(1, 4): V("xor_b32", G_XA + s, 32 * s, v(G_XA))
    V("bfe_u32", t + 2, v(V_L), 2, 2); V("lshl_add_u32", t + 3, v(t + 1), 3, v(t + 2)); V("lshlrev_b32", t + 3, 7, v(t + 3))
    V("bfe_u32", t + 4, v(V_L), 4, 1); V("bfe_u32", t + 5, v(V_L), 3, 1); V("and_b32", t + 6, 1, v(V_L)); V("bfe_u32", t + 7, v(V_L), 1, 1)
    sand(T2, WV, 2); sshl(T1, T2, 1)
    V("or_b32", t + 8, T1, v(t + 6)); V("lshl_or_b32", t + 9, v(t + 4), 1, v(t + 5)); V("lshlrev_b32", t + 9, 1, v(t + 9))
    V("xor_b32", t + 8, v(t + 8), v(t + 9)); V("lshl_add_u32", t + 8, v(t + 8), 4, v(t + 3)); V("lshl_add_u32", t + 8, v(t + 7), 3, v(t + 8))
    V("lshl_add_u32", G_WA, v(t + 4), 13, v(t + 8)); V("add_u32", G_WA, 8192, v(G_WA)); V("xor_b32", G_WA + 1, 32, v(G_WA))
    V("lshl_or_b32", t + 8, v(t + 4), 1, v(t + 7)); V("or_b32", t + 8, T1, v(t + 8)); V("lshlrev_b32", t + 9, 2, v(t + 5))
    V("xor_b32", t + 8, v(t + 8), v(t + 9)); V("lshl_add_u32", t + 8, v(t + 8), 4, v(t + 3)); V("lshl_add_u32", t + 8, v(t + 6), 3, v(t + 8))
    V("add_u32", G_WA + 2, 24576, v(t + 8))
    for s in range(4): V("add_u32", G_XA + 4 + s, 0x10000, v(G_XA + s))
    for s in range(3): V("add_u32", G_WB + s, 0x10000, v(G_WA + s))
    V("and_b32", t + 2, 15, v(V_L)); V("lshlrev_b32", t + 2, 4, v(t + 2)); V("lshl_add_u32", t + 2, v(t + 1), 8, v(t + 2)); V("lshl_add_u32", PV_VS, v(t + 4), 16, v(t + 2))
    sshl(T1, GQ, 2); sadd(T1, T1, T2); sshl(T1, T1, 6); sshl(T3, GT, 1); sadd(T1, T1, T3); sadd(T1, T1, T0); sshl(sQKV, T1, 10)
    sshl(T0, T0, 8)
    e("s_bitcmp1_b32 %s, 1" % WV)
    csel(T1, L_TA + 14256, L_TA); csel(T2, L_TB + 16896, L_TB)
    sadd(T1, T1, T0); sadd(T2, T2, T0)
    V("lshl_add_u32", PV_TW, v(V_L), 2, T1); V("lshl_add_u32", 46, v(V_L), 2, T2)

def u_coop_loads():
    t = VT
    e("s_bfe_u32 %s, %s, 0x10001" % (T1, WV)); sand(T0, WV, 1)
    V("and_b32", t, 7, v(V_L)); V("bfe_u32", t + 1, v(V_L), 3, 2)
    sshl(T0, T0, 2); V("add_u32", t + 1, T0, v(t + 1))
    sshl(T2, I5, 1); sadd(T1, T1, T2); sshl(T1, T1, 3); V("add_u32", t, T1, v(t))
    V("lshlrev_b32", t + 2, 4, v(t + 1)); V("lshl_add_u32", G_UA, v(t), 12, v(t + 2))
    V("lshlrev_b32", t, 4, v(t)); V("lshl_add_u32", G_US, v(t + 1), 15, v(t))
    sshl(T0, XQ, 7)
    e("s_mov_b32 exec_hi, 0")
    for k in range(4):
        e("buffer_load_dwordx4 %s, v%d, %s, %s offen offset:%d" % (vr(G_UL + 4 * k, 4), G_UA, R_U, T0, 1024 * k))
    e("s_mov_b32 exec_hi, -1")

def u_coop_stores():
    D = G_UL + 16
    for i in range(4):
        for k in range(4): V("mov_b32", D + 4 * i + k, v(G_UL + 4 * k + i))
    sshl(I0, XQ, 18); sadd(I0, I0, WS_U2)
    e("s_mov_b32 exec_hi, 0")
    for i in range(4):
        e("buffer_store_dwordx4 %s, v%d, %s, %s offen sc1" % (vr(D + 4 * i, 4), G_US, R_WS, I0))
        if i < 3: sadd(I0, I0, 8192)
    e("s_mov_b32 exec_hi, -1")

def flag_store(soff, t=VT):
    V("mov_b32", t, 0); V("mov_b32", t + 1, TAG)
    e("s_mov_b64 exec, 1")
    e("buffer_store_dword v%d, v%d, %s, %s offen sc1" % (t + 1, t, R_WS, soff))
    e("s_mov_b64 exec, -1")

def poll(label, soff, first_issued=None, t=VT, nwait=0):
    V("lshlrev_b32", t, 7, v(V_L))
    e("s_mov_b32 %s, 0" % CNT)
    e("s_mov_b32 exec_hi, 0")
    r = t + 1
    if first_issued is not None:
        r = first_issued
        e("s_waitcnt vmcnt(%d)" % nwait)
        e("s_branch %s_chk" % label)
    lab(label)
    e("buffer_load_dword v%d, v%d, %s, %s offen sc1" % (r, t, R_WS, soff))
    sadd(CNT, CNT, 1)
    e("s_waitcnt vmcnt(0)")
    lab(label + "_chk")
    e("v_cmp_ne_u32 vcc, %s, v%d" % (TAG, r))
    e("s_cmp_gt_u32 %s, 0x4000" % CNT)
    e("s_cbranch_scc1 %s_done" % label)
    e("s_cmp_lg_u64 vcc, 0")
    e("s_cbranch_scc1 %s" % label)
    lab(label + "_done")
    e("s_mov_b32 exec_hi, -1")

def kgen_addr():
    t = VT
    c("SPLIT")
    V("bfe_u32", t, v(V_L), 4, 1); V("bfe_u32", t + 1, v(V_L), 2, 1); V("lshl_or_b32", t, v(t), 1, v(t + 1))
    V("bfe_u32", t + 1, v(V_L), 3, 1); V("and_b32", t + 2, 3, v(V_L)); V("lshl_or_b32", t + 1, v(t + 1), 2, v(t + 2))
    e("v_cmp_eq_u32 s[4:5], 0, v%d" % t)
    e("v_cmp_eq_u32 vcc, 1, v%d" % t)
    e("s_bitcmp1_b32 %s, 0" % WV)
    csel(T0, 0x11100000, 0x76543210); csel(T1, 0x11100000, 0x43222100); csel(T2, 0x11100000, 0x22111000); csel(T3, 0x19171513, 0x100d0800)
    V("mov_b32", t + 2, T2); V("mov_b32", t + 3, T1); V("cndmask_b32", t + 2, v(t + 2), v(t + 3), "vcc")
    V("mov_b32", t + 3, T0); V("cndmask_b32", t + 2, v(t + 2), v(t + 3), "s[4:5]")
    V("lshlrev_b32", t + 1, 2, v(t + 1)); V("bfe_u32", t + 2, v(t + 2), v(t + 1), 4)
    V("lshlrev_b32", t, 3, v(t)); V("bfe_u32", t, T3, v(t), 8); V("add_u32", t, v(t), v(t + 2))
    V("lshrrev_b32", t + 1, 5, v(V_L)); V("and_b32", t + 2, 31, v(V_L))
    e("s_cselect_b32 %s, 2048, 0" % T3)
    e("s_cselect_b32 %s, 0, -1" % CNT)
    e("s_bitcmp1_b32 %s, 1" % WV)
    csel(T0, L_TA + 14256, L_TA); csel(T1, L_TB + 16896, L_TB); csel(T2, L_KF + 4160 + 64, L_KF + 64)
    sadd(T2, T2, T3)
    V("mul_u32_u24", t, 528, v(t)); V("lshl_add_u32", t + 3, v(t + 1), 4, T0); V("add_u32", PV_GA, v(t), v(t + 3))
    V("mul_u32_u24", t, 528, v(t + 2)); V("lshl_add_u32", t + 3, v(t + 1), 4, T1); V("add_u32", PV_GB, v(t), v(t + 3))
    V("lshl_add_u32", t, v(t + 1), 9, T2); V("lshl_add_u32", PV_GW, v(t + 2), 4, v(t))
    e("s_waitcnt lgkmcnt(0)")
    e("s_bitcmp1_b32 %s, 1" % WV)
    e("s_cselect_b32 %s, 0, 16" % T0)
    sshl(T0, DS2, T0); sand(T0, T0, 0xffff0000); sand(T0, T0, CNT)
    e("v_cmp_eq_u32 vcc, 0, v%d" % V_L)
    V("mov_b32", PV_GD, T0)
    sand(T1, WV, 3); sshl(T1, T1, 8); sadd(T1, T1, L_UP + 128)
    V("cndmask_b32", PV_GD, 0, v(PV_GD), "vcc")
    V("lshl_add_u32", PV_US, v(V_L), 1, T1)

def pads():
    t = VT
    c("SPLIT")
    for i in range(4): V("mov_b32", t + 4 + i, 0)
    V("lshrrev_b32", t, 3, v(V_L)); V("mul_u32_u24", t, 1152, v(t)); V("and_b32", t + 1, 7, v(V_L)); V("lshl_add_u32", t, v(t + 1), 4, v(t)); V("add_u32", t, L_UP, v(t))
    V("bfe_u32", t + 1, v(V_L), 2, 1); V("mul_u32_u24", t + 1, 4160, v(t + 1)); V("and_b32", t + 2, 3, v(V_L)); V("lshl_add_u32", t + 1, v(t + 2), 4, v(t + 1)); V("add_u32", t + 1, L_KF, v(t + 1))
    V("lshlrev_b32", t + 2, 4, v(t + 2)); V("add_u32", t + 2, L_FL, v(t + 2))
    for k in range(3): e("ds_write_b128 v%d, %s" % (t + k, vr(t + 4, 4)))

def loader_path():
    c("======== loader waves ========")
    loader_addr()
    e("s_waitcnt lgkmcnt(0)")
    stamp("karg")
    srd(R_X, S_X, 2048 * 1024); srd(R_W, S_W, 512 * 3072)
    scalar_loads()
    issue_chunk(0)
    srd(R_U, S_U, 2048 * 1024)
    u_coop_loads()
    srd(R_WS, S_WS, WS_SIZE); srd(R_OUT, S_OUT, 2048 * 2048); srd(R_WO, S_WO, 512 * 1024)
    late = capture(lambda: (precompute(), kgen_addr(), pads()))
    def upto(n):
        while n < len(late) and "SPLIT" not in late[n]: n += 1
        SINK[0].extend(late[:n]); del late[:n]
    upto(OPT["npre"])
    issue_chunk(1)
    waits = [12, 12, 12, 8, 9, 8, 9, 1]
    for ci in range(8):
        c("loader chunk %d" % ci)
        e("s_waitcnt vmcnt(%d)" % waits[ci])
        e("s_barrier")
        if ci in (0, 7): stamp("ch%d" % ci)
        if ci == 3:
            e("s_waitcnt lgkmcnt(0)")
            sadd(TAG, TAG, 1)
            sshl(I0, XQ, 5); sadd(I0, I0, I5); sshl(I0, I0, 7); sadd(I0, I0, WS_F0)
            flag_store(I0, 40)
        if ci + 2 < 8: issue_chunk(ci + 2)
        if ci == 0:
            e("s_waitcnt vmcnt(16)")
            u_coop_stores()
        if ci == 5:
            sshl(T5, XQ, 12); sadd(T5, T5, WS_F0)
            V("lshlrev_b32", 42, 7, v(V_L))
            e("s_mov_b32 exec_hi, 0")
            e("buffer_load_dword v%d, v42, %s, %s offen sc1" % (G_PL, R_WS, T5))
            e("s_mov_b32 exec_hi, -1")
            upto(len(late) // 2)
        if ci == 6: upto(9999)
    poll("L_poll0", T5, first_issued=G_PL, nwait=0)
    c("u of this WG's channel pair (transposed by the group)")
    sshl(T0, XQ, 5); sadd(T0, T0, I5); sshl(T0, T0, 13); sadd(T0, T0, T4); sadd(T0, T0, WS_U2)
    e("buffer_load_dwordx4 %s, v%d, %s, %s offen sc1" % (vr(U2R, 4), V_L16, R_WS, T0))
    e("buffer_load_dwordx4 %s, v%d, %s, %s offen offset:1024 sc1" % (vr(U2R + 4, 4), V_L16, R_WS, T0))
    e("s_barrier")
    stamp("K1")
    c("---- S4 kernel K = A-table x B-table (rows duplicated to realise bf16(l)) ----")
    FA, FB, AC = 96, 128, 160
    def rd(s):
        e("ds_read_b128 %s, v%d offset:%d" % (vr(FA + 4 * (s % 8), 4), PV_GA, 32 * s))
        e("ds_read_b128 %s, v%d offset:%d" % (vr(FB + 4 * (s % 8), 4), PV_GB, 32 * s))
    for s in range(7): rd(s)
    e("v_and_b32 v%d, 1, v%d" % (VT, V_L))
    e("v_cmp_eq_u32 vcc, 0, v%d" % VT)
    uw = []
    for h in range(2):
        for p in range(4):
            uw.append("    ds_write_b16 v%d, v%d offset:%d" % (PV_US, U2R + 4 * h + p, 1152 * p + 128 * h))
            uw.append("    ds_write_b16_d16_hi v%d, v%d offset:%d" % (PV_US, U2R + 4 * h + p, 4608 + 1152 * p + 128 * h))
    nw = 0
    for s in range(16):
        e("s_waitcnt lgkmcnt(%d)" % (2 * (min(s + 6, 15) - s) + nw))
        e("v_mfma_f32_32x32x16_bf16 %s, %s, %s, %s" % (vr(AC, 16), vr(FA + 4 * (s % 8), 4), vr(FB + 4 * (s % 8), 4), "0" if s == 0 else vr(AC, 16)))
        if s + 7 < 16: rd(s + 7)
        if s == 10: e("s_waitcnt vmcnt(0)")
        if 10 <= s < 15:
            SINK[0].extend(uw[nw:nw + 3]); nw += 3
    SINK[0].extend(uw[15:])
    nop(11)
    V("add_f32", AC, v(AC), v(PV_GD))
    e("s_bitcmp1_b32 %s, 0" % WV)
    e("s_cbranch_scc0 L_kg_nofix")
    V("cndmask_b32", AC + 4, v(AC + 5), v(AC + 3), "vcc"); V("cndmask_b32", AC + 12, v(AC + 13), v(AC + 11), "vcc")
    lab("L_kg_nofix")
    for i in range(8): V("cvt_pk_bf16_f32", FA + i, v(AC + 2 * i), v(AC + 2 * i + 1))
    e("ds_write_b128 v%d, %s" % (PV_GW, vr(FA, 4)))
    e("ds_write_b128 v%d, %s offset:1024" % (PV_GW, vr(FA + 4, 4)))
    e("s_branch L_gemm_done")

def cmul_multi(lst):
    for d, a, b in lst:
        e("v_pk_mul_f32 %s, %s, %s op_sel:[0,0] op_sel_hi:[1,0]" % (vr(d, 2), vr(a, 2), vr(b, 2)))
    for d, a, b in lst:
        e("v_pk_fma_f32 %s, %s, %s, %s op_sel:[1,1,0] op_sel_hi:[0,1,1] neg_lo:[1,0,0]" % (vr(d, 2), vr(a, 2), vr(b, 2), vr(d, 2)))
def cexp_multi(lst, va, vb):
    for d, Lf, t, cj in lst:
        V("mul_f32", t, fl(Lf), v(va)); V("mul_f32", t + 1, fl(-Lf if cj else Lf), v(vb)); V("fract_f32", t + 1, v(t + 1))
    for d, Lf, t, cj in lst:
        V("exp_f32", t, v(t)); V("cos_f32", d, v(t + 1)); V("sin_f32", d + 1, v(t + 1))
    e("s_nop 0")
    for d, Lf, t, cj in lst:
        e("v_pk_mul_f32 %s, %s, %s op_sel:[0,0] op_sel_hi:[1,0]" % (vr(d, 2), vr(d, 2), vr(t, 2)))

def kgen_tables():
    c("---- S4 mode tables: B = exp(z*8j) -> LDS, A = conj(C*dt*B*exp(z*l1)) -> registers ----")
    va, vb, vdt, ta = VT, VT + 1, VT + 2, VT + 4
    e("s_bitcmp1_b32 %s, 1" % WV)
    e("s_cselect_b32 %s, 0, 16" % T0)
    sshl(T0, LD2, T0); sand(T0, T0, 0xffff0000)
    V("mov_b32", vdt, fl(LOG2E)); V("mul_f32", vdt, T0, v(vdt)); V("exp_f32", vdt, v(vdt))
    e("s_waitcnt vmcnt(0)")
    for i in range(6): V("lshlrev_b32", V_PAR + i, 16, v(V_PAR + i))
    V("cvt_pk_bf16_f32", vdt, v(vdt), v(vdt)); V("and_b32", vdt, 0xffff0000, v(vdt))
    V("mul_f32", va, v(vdt), v(V_PAR)); V("mul_f32", vb, v(vdt), v(V_PAR + 1))
    V("mul_f32", va, fl(LOG2E), v(va)); V("mul_f32", vb, fl(1.0 / (2 * math.pi)), v(vb))
    P = lambda j: KB + 2 * j
    G = lambda k: KB + 16 + 2 * k
    X = KB + 24
    E = lambda j: KB + 40 + 2 * j - 2
    Q = lambda j: KB + 56 + 2 * j
    H = lambda k: KB + 72 + 2 * k
    cv = [KB + 90 + i for i in range(8)]
    n = [0]
    def putb(row, pr):
        r = cv[n[0] % 8]; n[0] += 1
        V("cvt_pk_bf16_f32", r, v(pr), v(pr + 1))
        e("ds_write_b32 v46, v%d offset:%d" % (r, row * 528))
    def puta(row, pr): V("cvt_pk_bf16_f32", KR + row, v(pr), v(pr + 1))
    cexp_multi([(P(1), 8.0, ta, 0), (G(1), 64.0, ta + 2, 0), (E(1), 1.0, ta + 4, 1), (H(1), 256.0, ta + 6, 1)], va, vb)
    V("mov_b32", cv[7], 0x3f80); e("ds_write_b32 v46, v%d" % cv[7])
    V("mul_f32", X, v(vdt), v(V_PAR + 2)); e("v_mul_f32 v%d, -v%d, v%d" % (X + 1, vdt, V_PAR + 3))
    V("mov_b32", X + 2, v(V_PAR + 4)); V("mul_f32", X + 3, "-1.0", v(V_PAR + 5))
    cmul_multi([(P(2), P(1), P(1)), (G(2), G(1), G(1)), (Q(0), X, X + 2), (E(2), E(1), E(1)), (H(2), H(1), H(1))])
    putb(1, P(1)); putb(8, G(1))
    cmul_multi([(P(3), P(2), P(1)), (P(4), P(2), P(2)), (G(3), G(2), G(1)), (E(3), E(2), E(1)), (E(4), E(2), E(2)), (H(3), H(2), H(1)), (H(4), H(2), H(2))])
    putb(2, P(2)); putb(16, G(2)); puta(0, Q(0))
    cmul_multi([(P(5), P(4), P(1)), (P(6), P(4), P(2)), (P(7), P(4), P(3)), (E(5), E(4), E(1)), (E(6), E(4), E(2)), (E(7), E(4), E(3)), (E(8), E(4), E(4)),
                (H(5), H(4), H(1)), (H(6), H(4), H(2)), (H(7), H(4), H(3))])
    for r, p in ((3, P(3)), (4, P(4)), (24, G(3)), (5, P(5)), (6, P(6)), (7, P(7))): putb(r, p)
    for k in range(1, 4):
        cmul_multi([(X + 2 * j, P(j), G(k)) for j in range(1, 8)])
        for j in range(1, 8): putb(8 * k + j, X + 2 * j)
    cmul_multi([(Q(j), Q(0), E(j)) for j in range(1, 9)])
    for j in range(1, 8): puta(j, Q(j))
    cmul_multi([(X + 2 * i, H(1), Q(2 * i)) for i in range(5)] + [(X + 10 + 2 * i, H(2), Q(4 * i)) for i in range(3)])
    for i in range(8): puta(8 + i, X + 2 * i)
    cmul_multi([(X + 2 * i, H(3), Q(4 * i)) for i in range(3)] + [(X + 6, H(4), Q(0)), (X + 8, H(4), Q(8)), (X + 10, H(5), Q(0)), (X + 12, H(5), Q(8))])
    for i in range(7): puta(16 + i, X + 2 * i)
    cmul_multi([(X, H(6), Q(0)), (X + 2, H(6), Q(8)), (X + 4, H(7), Q(0)), (X + 6, H(7), Q(8))])
    for i in range(4): puta(23 + i, X + 2 * i)

def compute_path():
    t = VT
    lab("L_compute")
    c("======== compute waves ========")
    e("s_bfe_u32 %s, %s, 0x10001" % (T0, WV)); sadd(T0, T0, C0); sshl(T0, T0, 8); sand(T1, WV, 1); sshl(T1, T1, 7); sadd(T0, T0, T1)
    V("lshl_add_u32", V_PA, v(V_L), 1, T0)
    e("s_waitcnt lgkmcnt(0)")
    stamp("karg")
    scalar_loads()
    for i, s in enumerate((S_ARE, S_AIM, S_BRE, S_BIM, S_CRE, S_CIM)):
        e("global_load_ushort v%d, v%d, %s" % (V_PAR + i, V_PA, sr(s, 2)))
    if OPT["pf"]:
        c("pull this WG's 1/32 share of the code into L2")
        e("s_getpc_b64 s[4:5]")
        lab("L_pc")
        sshl(T0, I5, 3); V("add_u32", t, T0, v(V_L)); V("lshlrev_b32", t, 7, v(t))
        e("v_min_u32 v%d, L_end-L_pc-4, v%d" % (t, t))
        e("s_mov_b64 exec, 0xff")
        e("global_load_dword v47, v%d, s[4:5]" % t)
        e("s_mov_b64 exec, -1")
    srd(R_WS, S_WS, WS_SIZE); srd(R_OUT, S_OUT, 2048 * 2048); srd(R_WO, S_WO, 512 * 1024)
    gemm_read_addr()
    e("s_waitcnt lgkmcnt(0)")
    sadd(TAG, TAG, 1)
    kgen_tables()
    stamp("tab")
    pc = [x for x in capture(precompute) if not x.strip().startswith(";")]
    def fill(n):
        for _ in range(n):
            if pc: SINK[0].append(pc.pop(0))
    def ml(s, first=False):
        cc = lambda k: "0" if first else vr(G_ACC[k], 16)
        return ["v_mfma_f32_32x32x16_bf16 %s, %s, %s, %s" % (vr(G_ACC[0], 16), vr(G_W0F + 4 * s, 4), vr(G_XF + 4 * s, 4), cc(0)),
                "v_mfma_f32_32x32x16_bf16 %s, %s, %s, %s" % (vr(G_ACC[1], 16), vr(G_W1F + 4 * s, 4), vr(G_XF + 4 * s, 4), cc(1)),
                "v_mfma_f32_32x32x16_bf16 %s, %s, %s, %s" % (vr(G_ACC[2], 16), vr(G_XF + 4 * s, 4), vr(G_VF + 4 * s, 4), cc(2))]
    def ilv(ms, rs, nf):
        k = 0
        for i, m in enumerate(ms):
            e(m)
            upto = (len(rs) * (i + 1) + len(ms) - 1) // len(ms)
            SINK[0].extend(rs[k:upto]); k = upto
            fill(nf)
    for ci in range(8):
        c("compute chunk %d" % ci)
        hi = (ci % 3) == 2
        ib = 32768 if ci % 3 == 1 else 0
        xa = G_XA + (4 if hi else 0)
        wa = G_WB if hi else G_WA
        e("s_barrier")
        if ci in (0, 7): stamp("ch%d" % ci)
        def reads(s):
            e("ds_read_b128 %s, v%d offset:%d" % (vr(G_XF + 4 * s, 4), xa + s, ib))
            for k, f in enumerate((G_W0F, G_W1F, G_VF)):
                for tt in range(2):
                    e("ds_read_b64_tr_b16 %s, v%d offset:%d" % (vr(f + 4 * s + 2 * tt, 2), wa + k, ib + (16 * s + 4 * tt) * 128))
        r0, r1 = capture(reads, 0), capture(reads, 1)
        nf = 2 if ci < 7 else 0
        if ci > 0:
            SINK[0].extend(r0[:3]); ilv(ml(3), r0[3:] + r1[:5], 0); SINK[0].extend(r1[5:])
        else: SINK[0].extend(r0 + r1)
        fill(2 * nf)
        e("s_waitcnt lgkmcnt(7)"); ilv(ml(0, ci == 0), capture(reads, 2), nf)
        e("s_waitcnt lgkmcnt(7)"); ilv(ml(1), capture(reads, 3), nf)
        e("s_waitcnt lgkmcnt(7)")
        if ci < 7:
            ilv(ml(2), [], 2 * nf)
            if ci == 6: fill(999)
            e("s_waitcnt lgkmcnt(0)")
    tw = ["    ds_write_b32 v%d, v%d offset:%d" % (PV_TW, KR + r, r * 528) for r in range(27)]
    ilv(ml(2), tw[:8], 0)
    e("s_waitcnt lgkmcnt(8)")
    ilv(ml(3), tw[8:], 0)
    sadd(T1, sQKV, WS_K); sadd(T2, sQKV, WS_K + 65536); sadd(T3, sQKV, WS_V); sadd(T4, sQKV, WS_Q + 65536); sadd(T0, sQKV, WS_Q)
    e("s_waitcnt lgkmcnt(0)")
    e("s_barrier")
    stamp("K1")
    c("GEMM epilogue: publish Q,K,V")
    P = G_XF
    def pk(dst, src):
        for i in range(4): V("cvt_pk_bf16_f32", dst + i, v(src + 2 * i), v(src + 1 + 2 * i))
    def st(r, va, so, off=0):
        e("buffer_store_dwordx4 %s, v%d, %s, %s offen%s sc1" % (vr(r, 4), va, R_WS, so, " offset:%d" % off if off else ""))
    pk(P, G_ACC[0] + 8); st(P, PV_QS, T1)
    pk(P + 4, G_ACC[1] + 8); st(P + 4, PV_QS, T2)
    pk(P + 8, G_ACC[2]); st(P + 8, PV_VS, T3)
    pk(P + 12, G_ACC[2] + 8); st(P + 12, PV_VS, T3, 512)
    for k, so in ((0, T0), (1, T4)):
        for i in range(8): V("mul_f32", G_ACC[k] + i, fl(0.25 * LOG2E), v(G_ACC[k] + i))
        pk(P + 16 + 4 * k, G_ACC[k]); st(P + 16 + 4 * k, PV_QS, so)
    stamp("pub")

def ones_pads(b0, ON):
    t = VT
    for i in range(4): V("mov_b32", ON + i, 0x3f803f80)
    V("bfe_u32", t + 8, v(V_L), 3, 2); V("mul_u32_u24", t + 8, BLK, v(t + 8)); V("and_b32", t + 9, 7, v(V_L)); V("mul_u32_u24", t + 9, 1040, v(t + 9))
    V("add_u32", t + 8, v(t + 8), v(t + 9)); V("add_u32", t + 8, b0 * BLK + 8192 + 1024, v(t + 8))
    e("ds_write_b128 v%d, %s" % (t + 8, vr(ON, 4)))

C_LO, C_UP = 128, 144
C_A, C_X, C_Y = 160, 176, 192
def qkv_signal():
    t = VT + 4
    e("s_cmp_ge_u32 %s, 4" % WV)
    e("s_cbranch_scc1 L_sig_done")
    V("mov_b32", t + 2, L_FL + 16); V("mov_b32", t + 3, 1)
    e("s_waitcnt vmcnt(0)")
    e("s_mov_b64 exec, 1")
    e("ds_add_rtn_u32 v%d, v%d, v%d" % (t + 3, t + 2, t + 3))
    e("s_mov_b64 exec, -1")
    e("s_waitcnt lgkmcnt(0)")
    e("v_readfirstlane_b32 %s, v%d" % (T0, t + 3))
    e("s_cmp_eq_u32 %s, 3" % T0)
    e("s_cbranch_scc0 L_sig_done")
    flag_store(sF1, t)
    lab("L_sig_done")

def conv():
    t = VT
    c("---- causal conv as Toeplitz MFMA: tiles 2q (lo), 2q+1 (up) ----")
    def rdA(k, base):
        e("ds_read_b64_tr_b16 %s, v%d offset:%d" % (vr(C_A + 4 * k, 2), PV_CA, base + 128 * k + 32))
        e("ds_read_b64_tr_b16 %s, v%d offset:%d" % (vr(C_A + 4 * k + 2, 2), PV_CA, base + 128 * k))
    def rdB(dst, k, base):
        e("ds_read_b128 %s, v%d offset:%d" % (vr(dst + 4 * k, 4), PV_CB, base + 96 - 32 * k))
    def mf(acc, k, b, first=False):
        e("v_mfma_f32_32x32x16_bf16 %s, %s, %s, %s" % (vr(acc, 16), vr(C_A + 4 * k, 4), vr(b + 4 * k, 4), "0" if first else vr(acc, 16)))
    for k in range(4):
        rdA(k, 0); rdB(C_Y, k, 128); rdB(C_X, k, 0)
    V("subrev_u32", PV_CB, 128, v(PV_CB))
    def section(cur, old, first=False):
        for k in range(4):
            e("s_waitcnt lgkmcnt(%d)" % ((12 - k) if first else 9))
            mf(C_UP, k, old, first and k == 0)
            mf(C_LO, k, cur, first and k == 0)
            rdA(k, 512); rdB(old, k, 0)
        V("add_u32", PV_CA, 512, v(PV_CA)); V("subrev_u32", PV_CB, 128, v(PV_CB))
    section(C_X, C_Y, True)
    qkv_signal()
    e("s_cmp_eq_u32 %s, 0" % CQ)
    e("s_cbranch_scc1 L_conv_tail")
    e("s_mov_b32 %s, %s" % (CNT, CQ))
    lab("L_conv_loop")
    section(C_Y, C_X)
    section(C_X, C_Y)
    e("s_sub_u32 %s, %s, 1" % (CNT, CNT))
    e("s_cmp_lg_u32 %s, 0" % CNT)
    e("s_cbranch_scc1 L_conv_loop")
    lab("L_conv_tail")
    for k in range(4):
        e("s_waitcnt lgkmcnt(%d)" % (9 - 3 * k))
        mf(C_UP, k, C_X)
    c("Z partials -> LDS")
    for k in range(4): e("ds_write_b128 v%d, %s offset:%d" % (PV_ZW, vr(C_LO + 4 * k, 4), 32 * k))
    nop(8)
    for k in range(4): e("ds_write_b128 v%d, %s offset:%d" % (PV_ZW, vr(C_UP + 4 * k, 4), 1152 + 32 * k))

def kv_tiles(n, msrc, mstep, soff):
    e("s_mov_b32 m0, %s" % msrc)
    e("s_nop 0")
    for i in range(n):
        e("buffer_load_dwordx4 v%d, %s, %s offen sc1 lds" % (V_L16, R_WS, soff))
        if i < n - 1:
            sadd("m0", "m0", mstep); sadd(soff, soff, 1024)

def kv_early():
    t = VT
    e("s_cmp_lg_u32 %s, 0" % CQ)
    e("s_cbranch_scc1 L_kve_done")
    e("s_cmp_eq_u32 %s, 0" % WV)
    e("s_cbranch_scc0 L_kve_w2")
    for i in range(4): V("mov_b32", C_A + i, 0)
    V("and_b32", t + 2, 7, v(V_L)); V("mul_u32_u24", t + 2, ZS, v(t + 2)); V("add_u32", t + 2, L_Z + 112, v(t + 2))
    e("ds_write_b128 v%d, %s" % (t + 2, vr(C_A, 4)))
    e("s_mov_b32 %s, 0" % T5); e("s_mov_b32 %s, 1024" % T4); sadd(T3, sHB, WS_K)
    e("s_branch L_kve_go")
    lab("L_kve_w2")
    ones_pads(0, C_A)
    e("s_mov_b32 %s, 8192" % T5); e("s_mov_b32 %s, 1040" % T4); sadd(T3, sHB, WS_V)
    lab("L_kve_go")
    poll("L_poll1", sF1P, t=VT + 4)
    stamp("poll1")
    sshl(T0, JJ, 13); sadd(T0, T0, T3)
    kv_tiles(8, T5, T4, T0)
    sadd(T0, JJ, 1); sand(T0, T0, 7); sshl(T0, T0, 13); sadd(T0, T0, T3); sadd(T5, T5, BLK)
    kv_tiles(8, T5, T4, T0)
    lab("L_kve_done")

A_Q = [64, 68]
A_S = [72, 88]
A_O = [104, 120]
A_KF = [136, 140]
A_VA = [144, 148]
A_VB = [152, 156]
A_IDX = 160
A_F = 164
A_NM = 72 + 16
WOR = 192
Y_R = 32
def conv_epilogue():
    c("y[t] = sum_p Z_p[t-p]")
    e("s_waitcnt lgkmcnt(0)")
    e("s_barrier")
    stamp("zbar")
    e("buffer_load_dwordx4 %s, v%d, %s, %s offen sc1" % (vr(A_Q[0], 4), V_L16, R_WS, sQL))
    e("buffer_load_dwordx4 %s, v%d, %s, %s offen offset:1024 sc1" % (vr(A_Q[1], 4), V_L16, R_WS, sQL))
    order = [(i, cl) for i in range(4) for cl in range(2)]
    def rd(n):
        i, cl = order[n]
        for p in range(4): e("ds_read_b32 v%d, v%d offset:%d" % (Y_R + 4 * n + p, PV_ZR + p, cl * 4 * ZS + 288 * i))
    rd(0); rd(1); rd(2)
    V("mov_b32", A_IDX, 0xdddddddd)
    zs = [A_O[0] + i for i in range(32)]
    for n in range(8):
        i, cl = order[n]
        r = Y_R + 4 * n
        for _ in range(4): V("mov_b32", zs.pop(), 0)
        e("s_waitcnt lgkmcnt(%d)" % (4 * (min(n + 2, 7) - n)))
        if n + 3 < 8: rd(n + 3)
        V("add_f32", r, v(r), v(r + 1)); V("add_f32", r + 2, v(r + 2), v(r + 3)); V("add_f32", r, v(r), v(r + 2))
        if cl == 1: V("cvt_pk_bf16_f32", V_Y + i, v(r - 4), v(r))

def kv_late():
    t = VT
    e("s_cmp_ge_u32 %s, 4" % WV)
    e("s_cbranch_scc0 L_kvl_done")
    sand(T1, WV, 3); sshl(T0, T1, 2); sadd(T0, T0, L_FL)
    V("mov_b32", t, T0); V("mov_b32", t + 1, 1); V("mov_b32", t + 2, 2)
    smul(T5, T1, 2080); sshl(T1, T1, 11); sadd(T0, sHB, T1)
    for b in range(2, 8):
        sadd(T2, JJ, b); sand(T2, T2, 7); sshl(T2, T2, 13); sadd(T2, T2, T0)
        sadd("m0", T1, b * BLK); sadd(T3, T2, WS_K)
        e("buffer_load_dwordx4 v%d, %s, %s offen sc1 lds" % (V_L16, R_WS, T3))
        sadd(T4, T2, WS_V)
        e("buffer_load_dwordx4 v%d, %s, %s offen offset:1024 sc1 lds" % (V_L16, R_WS, T3))
        sadd("m0", T5, b * BLK + 8192); e("s_nop 0")
        e("buffer_load_dwordx4 v%d, %s, %s offen sc1 lds" % (V_L16, R_WS, T4))
        sadd("m0", "m0", 16); e("s_nop 0")
        e("buffer_load_dwordx4 v%d, %s, %s offen offset:1024 sc1 lds" % (V_L16, R_WS, T4))
        if b == 5:
            e("s_waitcnt vmcnt(8)")
            e("ds_write_b32 v%d, v%d" % (t, t + 1))
    e("s_cmp_eq_u32 %s, 7" % WV)
    e("s_cbranch_scc0 L_pad4")
    ones_pads(4, 32)
    lab("L_pad4")
    e("s_waitcnt vmcnt(0) lgkmcnt(0)")
    e("ds_write_b32 v%d, v%d" % (t, t + 2))
    lab("L_kvl_done")

def kv_check(stage):
    t = VT + 4
    lb = "L_kvchk%d" % stage
    V("mov_b32", t, L_FL)
    e("s_mov_b32 %s, 0" % T3)
    lab(lb)
    e("ds_read_b128 %s, v%d" % (vr(t + 2, 4), t))
    sadd(T3, T3, 1)
    e("s_waitcnt lgkmcnt(0)")
    V("min_u32", t + 2, v(t + 2), v(t + 3)); V("min3_u32", t + 2, v(t + 2), v(t + 4), v(t + 5))
    e("s_cmp_gt_u32 %s, 0x40000" % T3)
    e("s_cbranch_scc1 %s_done" % lb)
    e("v_readfirstlane_b32 %s, v%d" % (T4, t + 2))
    e("s_cmp_lt_u32 %s, %d" % (T4, stage))
    e("s_cbranch_scc1 %s" % lb)
    lab(lb + "_done")

def attn_main():
    c("---- attention main loop: wave = 2 q-tiles x 32 key tiles (parity w>>2), fully unrolled ----")
    base = [0]
    koff = lambda i: (i // 4 - base[0]) * BLK + (i % 4) * 2048
    voff = lambda i: (i // 4 - base[0]) * BLK + (i % 4) * 2080
    def rdK(i):
        if i < 32: e("ds_read_b128 %s, v%d offset:%d" % (vr(A_KF[i & 1], 4), PV_KA, koff(i)))
    def rdVa(i):
        if i < 32: e("ds_read_b128 %s, v%d offset:%d" % (vr(A_VA[i & 1], 4), PV_V0, voff(i)))
    def rdVb(i):
        if i < 32: e("ds_read_b128 %s, v%d offset:%d" % (vr(A_VB[i & 1], 4), PV_V1, voff(i)))
    def qk(i, q):
        if i < 32: e("v_mfma_f32_32x32x16_bf16 %s, %s, %s, 0" % (vr(A_S[q], 16), vr(A_KF[i & 1], 4), vr(A_Q[q], 4)))
    def pv(i, q, half):
        if i < 0: return
        a = (A_VA if half == 0 else A_VB)[i & 1]
        e("v_smfmac_f32_32x32x32_bf16 %s, %s, %s, v%d" % (vr(A_O[q], 16), vr(a, 4), vr(A_S[q] + 8 * half, 8), A_IDX))
    def ex(q, lo, hi):
        for k in range(lo, hi): e("v_exp_f32 v%d, v%d" % (A_S[q] + k, A_S[q] + k))
    rdK(0); rdK(1); rdVa(0); rdVb(0)
    e("s_cmp_ge_u32 %s, 4" % WV)
    e("s_cbranch_scc1 L_prio1")
    e("s_setprio 2")
    e("s_branch L_prio_done")
    lab("L_prio1")
    e("s_setprio 1")
    lab("L_prio_done")
    e("s_waitcnt lgkmcnt(3)")
    qk(0, 0)
    nop(12)
    ytiles = OPT["yt"]; wtiles = OPT["wt"]
    for i in range(32):
        c("key tile %d" % i)
        if i == OPT["flip"]:
            e("s_cmp_ge_u32 %s, 4" % WV)
            e("s_cbranch_scc1 L_noflip")
            e("s_setprio 0")
            lab("L_noflip")
        if i == 6: kv_check(1)
        if i == 14: kv_check(2)
        ex(0, 0, 2); pv(i - 1, 1, 1); ex(0, 2, 5); qk(i, 1)
        e("s_waitcnt lgkmcnt(0)")
        if i in (11, 23):
            for r in (PV_KA, PV_V0, PV_V1): V("add_u32", r, 3 * BLK, v(r))
            base[0] += 3
        rdK(i + 2); rdVa(i + 1); rdVb(i + 1)
        if i in ytiles:
            e("buffer_store_dword v%d, v%d, %s, %s offen" % (V_Y + ytiles.index(i), PV_YA, R_OUT, sYS))
            sadd(sYS, sYS, 0x20000)
        if i in wtiles:
            e("buffer_load_dwordx4 %s, v%d, %s, %s offen" % (vr(WOR + 4 * wtiles.index(i), 4), PV_WA, R_WO, sWO))
            sadd(sWO, sWO, 0x10000)
        ex(0, 5, 11); pv(i, 0, 0); ex(0, 11, 16)
        ex(1, 0, 2); pv(i, 0, 1); ex(1, 2, 5); qk(i + 1, 0)
        ex(1, 5, 11); pv(i, 1, 0); ex(1, 11, 16)
    e("s_nop 1")
    pv(31, 1, 1)
    e("s_setprio 0")
    stamp("loopend")

def combine():
    c("combine the two key-parity halves through LDS")
    e("s_barrier")
    stamp("attn")
    e("s_cmp_ge_u32 %s, 4" % WV)
    e("s_cbranch_scc1 L_cmb1")
    for kp in range(2):
        if kp: lab("L_cmb1")
        o = A_O[1 - kp]
        if kp == 0: nop(8)
        for k in range(3): e("ds_write_b128 v%d, %s offset:%d" % (PV_CW, vr(o + 4 * k, 4), 1024 * k))
        e("s_waitcnt lgkmcnt(0)")
        e("s_barrier")
        for k in range(3): e("ds_read_b128 %s, v%d offset:%d" % (vr(A_F + 4 * k, 4), PV_CR, 1024 * k))
        if kp:
            for i in range(4): V("mov_b32", A_Q[0] + i, v(A_Q[1] + i))
        e("s_waitcnt lgkmcnt(0)")
        for i in (8, 0, 1, 2, 3, 4, 5, 6, 7): V("add_f32", A_F + i, v(A_F + i), v(A_O[kp] + i))
        if kp == 0: e("s_branch L_cmb_done")
    lab("L_cmb_done")

def attn_check_and_slow():
    t = VT
    c("---- softmax guard: the fast path used shift 0; redo with the true row max if that was unsafe ----")
    V("mul_f32", t, 0, v(A_F))
    for i in range(1, 8): V("fma_f32", t, v(A_F + i), 0, v(t))
    e("v_cmp_nle_f32 vcc, %s, v%d" % (fl(2.0 ** -40), A_F + 8))
    V("mov_b32", t + 1, fl(2.0 ** 100))
    e("v_cmp_nle_f32 s[4:5], v%d, v%d" % (A_F + 8, t + 1))
    e("v_cmp_neq_f32 s[6:7], 0, v%d" % t)
    e("s_or_b64 vcc, vcc, s[4:5]")
    e("s_or_b64 vcc, vcc, s[6:7]")
    if OPT["forceslow"]: e("s_mov_b64 vcc, -1")
    e("s_cmp_lg_u64 vcc, 0")
    e("s_cbranch_scc1 L_slow")
    lab("L_attn_ok")

def slow_path():
    t = VT
    lab("L_slow")
    S_, KF, VA, VB = A_S[0], A_KF[0], A_VA[0], A_VB[0]
    c("slow path pass 1: true row max (K from the workspace)")
    sadd(T0, sHB, WS_K)
    V("mov_b32", t, 0xff800000)
    e("s_mov_b32 %s, 0" % CNT)
    lab("L_slow1")
    e("buffer_load_dwordx4 %s, v%d, %s, %s offen sc1" % (vr(KF, 4), V_L16, R_WS, T0))
    sadd(T0, T0, 1024)
    e("s_waitcnt vmcnt(0)")
    e("v_mfma_f32_32x32x16_bf16 %s, %s, %s, 0" % (vr(S_, 16), vr(KF, 4), vr(A_Q[0], 4)))
    nop(12)
    for k in range(0, 16, 2): V("max3_f32", t, v(t), v(S_ + k), v(S_ + k + 1))
    sadd(CNT, CNT, 1)
    e("s_cmp_lt_u32 %s, 64" % CNT)
    e("s_cbranch_scc1 L_slow1")
    V("mov_b32", t + 1, v(t))
    e("s_nop 1")
    e("v_permlane32_swap_b32 v%d, v%d" % (t, t + 1))
    e("s_nop 1")
    V("max_f32", t, v(t), v(t + 1))
    for k in range(16): V("mul_f32", A_NM + k, "-1.0", v(t))
    c("slow path pass 2")
    for k in range(16): V("mov_b32", A_F + k, 0)
    for k in range(4):
        V("mov_b32", VA + k, 0x3f803f80); V("mov_b32", VB + k, 0x3f803f80)
    V("and_b32", t, 15, v(V_L)); V("lshrrev_b32", t + 1, 5, v(V_L)); V("lshlrev_b32", t, 4, v(t)); V("lshl_add_u32", t, v(t + 1), 8, v(t))
    sadd(T0, sHB, WS_K); sadd(T1, sHB, WS_V)
    e("s_mov_b32 %s, 0" % CNT)
    lab("L_slow2")
    e("buffer_load_dwordx4 %s, v%d, %s, %s offen sc1" % (vr(KF, 4), V_L16, R_WS, T0))
    e("s_mov_b32 exec_lo, 0xffff")
    e("s_mov_b32 exec_hi, 0xffff")
    e("buffer_load_dwordx4 %s, v%d, %s, %s offen sc1" % (vr(VA, 4), t, R_WS, T1))
    e("buffer_load_dwordx4 %s, v%d, %s, %s offen offset:512 sc1" % (vr(VB, 4), t, R_WS, T1))
    e("s_mov_b64 exec, -1")
    sadd(T0, T0, 1024); sadd(T1, T1, 1024)
    e("s_waitcnt vmcnt(0)")
    e("v_mfma_f32_32x32x16_bf16 %s, %s, %s, %s" % (vr(S_, 16), vr(KF, 4), vr(A_Q[0], 4), vr(A_NM, 16)))
    nop(12)
    for k in range(16): e("v_exp_f32 v%d, v%d" % (S_ + k, S_ + k))
    e("s_nop 1")
    e("v_smfmac_f32_32x32x32_bf16 %s, %s, %s, v%d" % (vr(A_F, 16), vr(VA, 4), vr(S_, 8), A_IDX))
    e("v_smfmac_f32_32x32x32_bf16 %s, %s, %s, v%d" % (vr(A_F, 16), vr(VB, 4), vr(S_ + 8, 8), A_IDX))
    sadd(CNT, CNT, 1)
    e("s_cmp_lt_u32 %s, 64" % CNT)
    nop(4)
    e("s_cbranch_scc1 L_slow2")
    nop(12)
    e("s_branch L_attn_ok")

def attn_publish():
    t = VT
    c("normalise and publish O (q-tile 2*(w&3) + (w>>2))")
    V("rcp_f32", t, v(A_F + 8))
    e("s_nop 0")
    for i in range(8): V("mul_f32", A_F + i, v(A_F + i), v(t))
    P = 32
    for i in range(4): V("cvt_pk_bf16_f32", P + i, v(A_F + 2 * i), v(A_F + 2 * i + 1))
    e("s_nop 1")
    e("v_permlane32_swap_b32 v%d, v%d" % (P, P + 2))
    e("v_permlane32_swap_b32 v%d, v%d" % (P + 1, P + 3))
    e("buffer_store_dwordx4 %s, v%d, %s, %s offen sc1" % (vr(P, 4), V_L16, R_WS, sOST))
    c("Wo slice (prefetched in registers) -> LDS")
    e("s_waitcnt vmcnt(1)")
    for n in range(8): e("ds_write_b128 v%d, %s offset:%d" % (PV_WS, vr(WOR + 4 * n, 4), L_WO + 8192 * n))

P_W, P_ACC, P_OF = 96, 36, 52
def o_loads():
    sadd("m0", W10, L_O); e("s_nop 0")
    for n in range(8):
        e("buffer_load_dwordx4 v%d, %s, %s offen sc1 lds" % (V_L16, R_WS, sOLD))
        if n < 7:
            sadd("m0", "m0", 8192); sadd(sOLD, sOLD, 0x40000)

def tail():
    t = VT
    e("s_waitcnt vmcnt(0) lgkmcnt(0)")
    e("s_barrier")
    stamp("Wbar")
    e("s_cmp_ge_u32 %s, 4" % WV)
    e("s_cbranch_scc1 L_op_idle")
    c("Wo fragments -> registers (waves 0..3)")
    for hh in range(32):
        for tt in range(2):
            e("ds_read_b64_tr_b16 %s, v%d offset:%d" % (vr(P_W + 4 * hh + 2 * tt, 2), PV_WF, L_WO + hh * 2048 + tt * 512))
    e("s_waitcnt lgkmcnt(0)")
    e("s_barrier")
    stamp("poll2")
    o_loads()
    def mm(st):
        for k in range(4):
            hh = 4 * st + k
            e("v_mfma_f32_32x32x16_bf16 %s, %s, %s, %s" % (vr(P_ACC, 16), vr(P_W + 4 * hh, 4), vr(P_OF + 16 * (st & 1) + 4 * k, 4), "0" if hh == 0 else vr(P_ACC, 16)))
    for st in range(8):
        if st % 2 == 0:
            e("s_waitcnt vmcnt(%d)" % (6 - st))
            e("s_barrier")
            if st == 0: stamp("O1")
        for k in range(4): e("ds_read_b128 %s, v%d offset:%d" % (vr(P_OF + 16 * (st & 1) + 4 * k, 4), PV_OR, (4 * st + k) * 2048))
        if st > 0:
            e("s_waitcnt lgkmcnt(4)")
            mm(st - 1)
    e("s_waitcnt lgkmcnt(0)")
    mm(7)
    nop(12)
    for i in range(8): V("cvt_pk_bf16_f32", P_OF + i, v(P_ACC + 2 * i), v(P_ACC + 2 * i + 1))
    e("ds_write_b128 v%d, %s" % (PV_OW, vr(P_OF, 4)))
    e("ds_write_b128 v%d, %s offset:16" % (PV_OW, vr(P_OF + 4, 4)))
    e("s_branch L_fin")
    lab("L_op_idle")
    e("s_cmp_eq_u32 %s, 7" % WV)
    e("s_cbranch_scc0 L_nopoll2")
    flag_store(sF2)
    poll("L_poll2", sF2P)
    lab("L_nopoll2")
    e("s_barrier")
    o_loads()
    for st in range(4):
        e("s_waitcnt vmcnt(%d)" % (6 - 2 * st))
        e("s_barrier")
    c("WG 0 advances the epoch word (every WG has read it: all of them have published)")
    e("s_cmp_eq_u32 s2, 0")
    e("s_cbranch_scc0 L_fin")
    e("s_cmp_eq_u32 %s, 7" % WV)
    e("s_cbranch_scc0 L_fin")
    flag_store("0")
    lab("L_fin")
    e("s_waitcnt lgkmcnt(0)")
    e("s_barrier")
    stamp("opdone")
    e("ds_read_b128 v[32:35], v%d" % PV_FR)
    e("s_waitcnt lgkmcnt(0)")
    e("buffer_store_dwordx4 v[32:35], v%d, %s, %s offen" % (PV_FS, R_OUT, sOUT))

def dump_lds(base, nbytes, wsoff):
    t = VT + 10
    e("s_waitcnt lgkmcnt(0)"); e("s_barrier")
    V("lshlrev_b32", t, 4, v(0))
    sshl(T0, "s2", 18); sadd(T0, T0, WS_DBG + wsoff)
    for o in range(0, nbytes, 8192):
        V("add_u32", t + 1, base + o, v(t))
        e("ds_read_b128 %s, v%d" % (vr(t + 2, 4), t + 1))
        e("s_waitcnt lgkmcnt(0)")
        e("buffer_store_dwordx4 %s, v%d, %s, %s offen" % (vr(t + 2, 4), t, R_WS, T0))
        sadd(T0, T0, 8192)
        e("s_waitcnt vmcnt(0)")
    e("s_barrier")

def write_stamps():
    t = VT
    if OPT["stamps"]:
        e("s_waitcnt vmcnt(0)")
        stamp("end")
        sshl(T0, "s2", 3); sadd(T0, T0, WV); sshl(T0, T0, 7); sadd(T0, T0, WS_ST)
        e("s_mov_b64 exec, 1")
        V("mov_b32", t, 0)
        for i in range(len(stamp_names)):
            V("mov_b32", t + 1, sr(S_ST + i))
            e("buffer_store_dword v%d, v%d, %s, %s offen offset:%d" % (t + 1, t, R_WS, T0, 4 * i))
            e("s_nop 1")
        V("mov_b32", t + 1, "s100")
        e("buffer_store_dword v%d, v%d, %s, %s offen offset:124" % (t + 1, t, R_WS, T0))
        e("s_memrealtime s[98:99]")
        e("s_waitcnt lgkmcnt(0)")
        V("mov_b32", t + 2, "s98")
        e("buffer_store_dword v%d, v%d, %s, %s offen offset:120" % (t + 2, t, R_WS, T0))
        e("s_mov_b64 exec, -1")
        L.insert(0, "; stamps: " + ",".join(stamp_names))
    if OPT["dbgspan"]:
        e("s_cmp_eq_u32 %s, 0" % WV); e("s_cbranch_scc0 L_end")
        sand(T0, "s2", 63); e("s_cmp_eq_u32 %s, 5" % T0); e("s_cbranch_scc0 L_end")
        e("s_waitcnt vmcnt(0)")
        e("s_memrealtime s[96:97]"); e("s_memtime s[94:95]")
        srd(R_X, S_DBG, 256)
        sshr(T0, "s2", 6); sshl(T0, T0, 4)
        e("s_waitcnt lgkmcnt(0)")
        e("s_mov_b64 exec, 1")
        V("mov_b32", t, 0)
        e("s_sub_u32 s94, s94, s98"); e("s_sub_u32 s96, s96, s100")
        V("mov_b32", t + 2, "s100"); V("mov_b32", t + 3, "s96"); V("mov_b32", t + 4, "s94"); V("mov_b32", t + 5, 0)
        e("buffer_store_dwordx4 %s, v%d, %s, %s offen" % (vr(t + 2, 4), t, R_X, T0))

def main():
    header()
    setup()
    loader_path()
    compute_path()
    lab("L_gemm_done")
    e("s_waitcnt lgkmcnt(0)")
    e("s_barrier")
    stamp("K2")
    if OPT["dump"]: dump_lds(L_KF, 24576, 0)
    conv()
    kv_early()
    conv_epilogue()
    e("s_waitcnt vmcnt(0)")
    e("s_barrier")
    stamp("S")
    kv_late()
    attn_main()
    combine()
    attn_check_and_slow()
    attn_publish()
    tail()
    write_stamps()
    e("s_endpgm")
    slow_path()
    footer(256)
    open(sys.argv[1], "w").write("\n".join(L) + "\n")

main()
```

```python
import sys, struct, math

NAME = "concat_heads__ssm_conv_s4__softmax_full_mha__prompt"
OPT = dict(echo="", echowg=0, stamps=0, dump=0, forceslow=0, dbgspan=0, flip=28, pf=1, rot=6, npre=170,
           yt=[15, 19, 23, 27], wt=[9, 11, 13, 17, 21, 25, 28, 29])
for a in sys.argv[2:]:
    k, v = a.split("=")
    OPT[k] = int(v) if v.lstrip("-").isdigit() else v

L = []
SINK = [L]
def e(s): SINK[0].append("    " + s)
def lab(s): SINK[0].append(s + ":")
def c(s): SINK[0].append("    ; " + s)
def f2u(x): return struct.unpack("<I", struct.pack("<f", x))[0]
def fl(x): return "0x%08x" % f2u(x)
def vr(a, n=1): return "v%d" % a if n == 1 else "v[%d:%d]" % (a, a + n - 1)
def sr(a, n=1): return "s%d" % a if n == 1 else "s[%d:%d]" % (a, a + n - 1)
def nop(n):
    while n > 0:
        k = min(n, 16); e("s_nop %d" % (k - 1)); n -= k
def capture(fn, *a):
    old = SINK[0]; out = []; SINK[0] = out; fn(*a); SINK[0] = old; return out

WS_F1 = 0x1000
WS_F2 = 0xa000
WS_F0 = 0x20000
WS_Q, WS_K, WS_V, WS_O, WS_U2 = 0x100000, 0x300000, 0x500000, 0x700000, 0x900000
WS_ST = 0xc00000
WS_DBG = 0x1000000
WS_SIZE = 0x10000000
LDS_TOTAL = 163840
BLK = 16512
L_TB = 98304
L_TA = 0
L_FL = 146240
L_KF = 146304
L_UP = 154624
L_Z = 71360
ZS = 9360
L_WO = 0
L_O = 65536
L_SC = 65536
L_OT = 131072
S_U, S_ARE, S_AIM, S_BRE, S_BIM, S_CRE, S_CIM, S_LDT = 8, 10, 12, 14, 16, 18, 20, 22
S_DSK, S_X, S_W, S_WO, S_OUT, S_DBG, S_WS = 24, 26, 28, 30, 32, 34, 36
R_X, R_W, R_WS, R_U, R_OUT, R_WO = "s[40:43]", "s[44:47]", "s[48:51]", "s[52:55]", "s[56:59]", "s[60:63]"
XQ, I5, WV, TAG, LD2, DS2, HH, JJ, C0 = "s64", "s65", "s66", "s67", "s68", "s69", "s70", "s71", "s72"
T0, T1, T2, T3, T4, T5, CNT = "s73", "s74", "s75", "s76", "s77", "s78", "s79"
CQ, CL, W10, GT, GQ = "s38", "s39", "s3", "s6", "s7"
sQKV, sF1, sF1P, sYS, sWO, sOST, sOLD, sOUT, sF2, sF2P, sHB, sQL = ["s%d" % i for i in range(8, 20)]
S_ST = 80
stamp_names = []
def stamp(name):
    if OPT["echo"]:
        a, b, m = OPT["echo"].split(",")
        if name in (a, b):
            e("s_waitcnt lgkmcnt(0)")
            e("s_memrealtime s[98:99]")
            e("s_waitcnt lgkmcnt(0)")
            e("s_mov_b32 %s, s98" % ("s80" if name == a else "s81"))
    if OPT["stamps"]:
        if name not in stamp_names: stamp_names.append(name)
        assert len(stamp_names) <= 18
        e("s_waitcnt lgkmcnt(0)")
        e("s_memrealtime s[98:99]" if OPT["stamps"] == 2 else "s_memtime s[98:99]")
        e("s_waitcnt lgkmcnt(0)")
        e("s_mov_b32 %s, s98" % sr(S_ST + stamp_names.index(name)))
def srd(r, base, size):
    r = int(r[2:r.index(":")])
    e("s_mov_b32 %s, %s" % (sr(r), sr(base)))
    e("s_and_b32 %s, %s, 0xffff" % (sr(r + 1), sr(base + 1)))
    e("s_mov_b32 %s, 0x%x" % (sr(r + 2), size))
    e("s_mov_b32 %s, 0x00020000" % sr(r + 3))
def csel(dst, a, b):
    e("s_mov_b32 %s, %d" % (dst, b))
    e("s_cselect_b32 %s, %d, %s" % (dst, a, dst))
def S(op, d, a, b): e("s_%s %s, %s, %s" % (op, d, a, b if isinstance(b, str) else ("0x%x" % b if b > 64 else str(b))))
def sadd(d, a, b): S("add_u32", d, a, b)
def sshl(d, a, b): S("lshl_b32", d, a, b)
def sshr(d, a, b): S("lshr_b32", d, a, b)
def sand(d, a, b): S("and_b32", d, a, b)
def smul(d, a, b): S("mul_i32", d, a, b)
def V(op, d, *a): e("v_%s v%d, %s" % (op, d, ", ".join(("v%d" % x[0] if isinstance(x, tuple) else (x if isinstance(x, str) else ("0x%x" % x if x > 64 else str(x)))) for x in a)))
def v(x): return (x,)
LOG2E = math.log2(math.e)

V_L, V_L16, V_PA = 1, 2, 3
V_PAR = 4
V_Y = 10
VT = 14
(PV_CA, PV_CB, PV_ZW, PV_ZR, _z1, _z2, _z3, PV_KA, PV_V0, PV_V1, PV_YA, PV_WA, PV_CW, PV_CR,
 PV_OR, PV_OW, PV_WF, PV_FR, PV_FS, PV_WS) = range(224, 244)
PV_QS, PV_VS, PV_TW = 244, 245, 246
PV_GA, PV_GB, PV_GW, PV_GD, PV_US = 244, 245, 246, 247, 248

def header():
    L.append("; fused S4 long-conv (part A) + multi-head attention (part B): one launch, 256 WGs x 8 waves")
    L.append("; @launch grid=(256,1,1) block=(512,1,1) lds=%d" % LDS_TOTAL)
    L.append('.amdgcn_target "amdgcn-amd-amdhsa--gfx950"')
    L.append(".text")
    L.append(".globl %s_kernel" % NAME)
    L.append(".p2align 8")
    L.append(".type %s_kernel,@function" % NAME)
    L.append("%s_kernel:" % NAME)
def footer(nv):
    lab("L_end")
    e("s_endpgm")
    L.append('.section .rodata,"a"')
    L.append(".p2align 6")
    L.append(".amdhsa_kernel %s_kernel" % NAME)
    L.append("  .amdhsa_next_free_vgpr %d" % nv)
    L.append("  .amdhsa_next_free_sgpr 102")
    L.append("  .amdhsa_accum_offset %d" % nv)
    L.append("  .amdhsa_group_segment_fixed_size 0")
    L.append("  .amdhsa_kernarg_size 120")
    L.append("  .amdhsa_user_sgpr_count 2")
    L.append("  .amdhsa_user_sgpr_kernarg_segment_ptr 1")
    L.append("  .amdhsa_system_sgpr_workgroup_id_x 1")
    L.append(".end_amdhsa_kernel")

def setup():
    c("---- setup ----")
    e("s_cmp_ge_u32 s2, 256")
    e("s_cbranch_scc1 L_end")
    e("s_load_dwordx8 s[24:31], s[0:1], 64")
    e("s_load_dwordx16 s[8:23], s[0:1], 0")
    e("s_load_dwordx4 s[32:35], s[0:1], 96")
    e("s_load_dwordx2 s[36:37], s[0:1], 112")
    if OPT["stamps"] or OPT["dbgspan"] or OPT["echo"]: e("s_memrealtime s[100:101]")
    if OPT["dbgspan"]: e("s_memtime s[98:99]")
    V("and_b32", V_L, 63, v(0))
    V("lshrrev_b32", VT, 6, v(0))
    V("lshlrev_b32", V_L16, 4, v(V_L))
    V("mov_b32", PV_FS, 0)
    e("v_readfirstlane_b32 %s, v%d" % (WV, VT))
    sand(XQ, "s2", 7)
    sshr(I5, "s2", 3)
    sand(GT, XQ, 3); sshl(GT, GT, 3); sshr(JJ, I5, 2); sadd(GT, GT, JJ)
    sand(GQ, XQ, 4); sand(T0, I5, 3); sadd(GQ, GQ, T0)
    sshl(HH, XQ, 2); sadd(HH, HH, T0)
    sshl(C0, XQ, 5); sadd(C0, C0, I5); sshl(C0, C0, 1)
    sshl(W10, WV, 10)
    e("s_cmp_ge_u32 %s, 4" % WV)
    e("s_cbranch_scc0 L_compute")

def scalar_loads():
    sshl(T3, C0, 1)
    e("s_load_dword %s, %s, 0" % (TAG, sr(S_WS, 2)))
    e("s_load_dword %s, %s, %s" % (LD2, sr(S_LDT, 2), T3))
    e("s_load_dword %s, %s, %s" % (DS2, sr(S_DSK, 2), T3))

def lane_terms():
    t = VT
    hf, b7, p4, r4, g1, l15, l8 = t, t + 1, t + 2, t + 3, t + 4, t + 5, t + 6
    V("lshrrev_b32", hf, 5, v(V_L)); V("and_b32", b7, 7, v(V_L)); V("bfe_u32", p4, v(V_L), 3, 2)
    V("bfe_u32", r4, v(V_L), 2, 2); V("bfe_u32", g1, v(V_L), 4, 1); V("and_b32", l15, 15, v(V_L)); V("lshrrev_b32", l8, 3, v(V_L))
    return hf, b7, p4, r4, g1, l15, l8

def precompute_conv():
    t = VT
    c("---- conv addresses ----")
    sand(CQ, WV, 1); e("s_sub_u32 %s, 3, %s" % (T0, CQ))
    e("s_cmp_ge_u32 %s, 4" % WV)
    e("s_cselect_b32 %s, %s, %s" % (CQ, T0, CQ))
    e("s_bfe_u32 %s, %s, 0x10001" % (CL, WV))
    hf, b7, p4, r4, g1, l15, l8 = lane_terms()
    x, y, z = t + 8, t + 9, t + 10
    e("s_cmp_eq_u32 %s, 1" % CL)
    csel(T0, L_KF + 4160 + 96, L_KF + 96); csel(T1, L_UP + 4608 + 16, L_UP + 16); csel(T2, L_Z + 4 * ZS + 144, L_Z + 144)
    V("and_b32", x, 3, v(V_L)); V("lshl_add_u32", x, v(g1), 2, v(x)); V("lshl_add_u32", y, v(hf), 3, v(r4))
    V("sub_u32", x, v(x), v(y)); V("lshlrev_b32", x, 3, v(x)); V("add_u32", PV_CA, T0, v(x))
    V("mul_u32_u24", x, 1152, v(p4)); V("add_u32", z, v(b7), v(hf)); V("lshl_add_u32", x, v(z), 4, v(x))
    sshl(T3, CQ, 8); sadd(T1, T1, T3); V("add_u32", PV_CB, T1, v(x))
    smul(T3, CQ, 2304); sadd(T2, T2, T3)
    V("mul_u32_u24", x, ZS, v(p4)); V("mul_u32_u24", z, 144, v(b7)); V("lshl_add_u32", z, v(hf), 4, v(z)); V("add3_u32", PV_ZW, v(x), v(z), T2)
    sshl(sF1, GQ, 5); sadd(sF1, sF1, GT); sshl(sF1, sF1, 7); sadd(sF1, sF1, WS_F1)
    sshl(T0, XQ, 12); sadd(sF1P, T0, WS_F1); sadd(sF2P, T0, WS_F2)
    sshl(sHB, HH, 16)

def precompute():
    t = VT
    c("SPLIT")
    e("s_cmp_ge_u32 %s, 4" % WV)
    e("s_cselect_b32 %s, 1024, 0" % T0)
    csel(T1, 8192 + 1040, 8192)
    hf, b7, p4, r4, g1, l15, l8 = lane_terms()
    x, y, z = t + 8, t + 9, t + 10
    V("add_u32", PV_KA, T0, v(V_L16))
    V("lshlrev_b32", x, 4, v(l15)); V("lshl_add_u32", x, v(hf), 8, v(x)); V("add_u32", y, 512, v(x)); V("mov_b32", z, 1024)
    e("v_cmp_eq_u32 vcc, 0, v%d" % g1)
    V("lshlrev_b32", PV_YA, 11, v(V_L))
    V("add_u32", PV_WS, W10, v(V_L16))
    V("cndmask_b32", PV_V0, v(z), v(x), "vcc"); V("cndmask_b32", PV_V1, v(z), v(y), "vcc")
    V("add_u32", PV_V0, T1, v(PV_V0)); V("add_u32", PV_V1, T1, v(PV_V1))
    V("lshlrev_b32", x, 2, v(g1)); V("xor_b32", x, v(x), v(b7)); V("lshlrev_b32", x, 4, v(x)); V("lshl_add_u32", PV_WA, v(l8), 10, v(x))
    c("SPLIT")
    sshl(T0, WV, 8); sadd(T0, T0, 32)
    for p in range(4):
        V("add_u32", x, T0, v(V_L))
        if p: V("subrev_u32", x, p, v(x))
        V("lshrrev_b32", z, 5, v(x)); V("lshlrev_b32", x, 2, v(x)); V("lshl_add_u32", x, v(z), 4, v(x))
        V("add_u32", PV_ZR + p, L_Z + p * ZS, v(x))
    c("SPLIT")
    S("xor_b32", T0, WV, 4); smul(T0, T0, 3072); sadd(T0, T0, L_SC); smul(T1, WV, 3072); sadd(T1, T1, L_SC)
    V("add_u32", PV_CW, T0, v(V_L16)); V("add_u32", PV_CR, T1, v(V_L16))
    c("SPLIT")
    V("lshl_add_u32", y, v(hf), 3, v(r4)); V("lshlrev_b32", PV_WF, 7, v(y))
    V("and_b32", x, 1, v(V_L)); V("lshl_or_b32", x, v(x), 1, v(g1))
    sand(T0, WV, 2); sshl(T0, T0, 1); V("or_b32", x, T0, v(x))
    V("bfe_u32", z, v(V_L), 3, 1); V("lshlrev_b32", z, 2, v(z)); V("xor_b32", x, v(x), v(z))
    V("lshl_add_u32", PV_WF, v(x), 4, v(PV_WF)); V("bfe_u32", z, v(V_L), 1, 1); V("lshl_add_u32", PV_WF, v(z), 3, v(PV_WF))
    sand(T1, WV, 1); sshl(T2, T1, 10); sadd(T2, T2, L_O); V("add_u32", PV_OR, T2, v(V_L16))
    smul(T1, T1, 4608); sshl(T0, T0, 4); sadd(T0, T0, T1); sadd(T0, T0, L_OT)
    V("and_b32", x, 31, v(V_L)); V("mul_u32_u24", x, 144, v(x)); V("lshl_add_u32", x, v(hf), 5, v(x)); V("add_u32", PV_OW, T0, v(x))
    smul(T0, WV, 1152); sadd(T0, T0, L_OT)
    V("lshlrev_b32", x, 4, v(b7)); V("mul_u32_u24", z, 144, v(l8)); V("add3_u32", PV_FR, v(z), v(x), T0); V("lshl_add_u32", PV_FS, v(l8), 11, v(x))
    c("SPLIT")
    sshl(sF2, JJ, 5); sadd(sF2, sF2, HH); sshl(sF2, sF2, 7); sadd(sF2, sF2, WS_F2)
    sshl(T0, WV, 19); sshl(T1, C0, 1); sadd(sYS, T0, T1)
    sand(T0, I5, 7); sshl(T0, T0, 7); sshl(T1, WV, 13); sadd(sWO, T0, T1)
    sshl(T1, JJ, 13); sadd(T1, T1, sHB); sand(T2, WV, 3); sshl(T2, T2, 11); sadd(T1, T1, T2)
    sadd(sQL, T1, WS_Q)
    sshr(T2, WV, 2); sshl(T2, T2, 10); sadd(T1, T1, T2); sadd(sOST, T1, WS_O)
    sshr(T1, WV, 1); sshl(T1, T1, 6); sshl(T2, XQ, 3); sadd(T1, T1, T2); sshr(T3, I5, 3); sshl(T2, T3, 1); sadd(T1, T1, T2)
    sand(T2, WV, 1); sadd(T1, T1, T2); sshl(T1, T1, 10); sadd(sOLD, T1, WS_O)
    sshl(T1, XQ, 2); sadd(T1, T1, T3); sshl(T1, T1, 3); sadd(T1, T1, WV); sshl(T1, T1, 14); sadd(T1, T1, T0); sadd(sOUT, T1, 1024)

G_VX0, G_VX1, G_VWQ, G_VWK, G_VWV, G_PL = 32, 33, 34, 35, 36, 39
G_UA, G_US = 30, 31
G_UL, U2R = 160, 80
G_XA, G_WA, G_WB = 32, 40, 43
G_ACC = [48, 64, 80]
G_XF, G_W0F, G_W1F, G_VF = 96, 112, 128, 144
KB = 48
KR = 192

def loader_addr():
    t = VT
    c("loader DMA voffsets (wave v=w-4 covers rows 16v..16v+15 of each chunk)")
    V("lshrrev_b32", t, 3, v(V_L)); V("and_b32", t + 1, 7, v(V_L)); V("bfe_u32", t + 2, v(V_L), 4, 1)
    sand(T0, WV, 3); sshl(T4, T0, 11); sshl(T0, T0, 4)
    V("add_u32", t + 3, T0, v(t))
    V("bfe_u32", t + 4, v(t + 3), 1, 3); V("xor_b32", t + 4, v(t + 4), v(t + 1)); V("lshlrev_b32", t + 4, 4, v(t + 4))
    sshl(T1, GT, 16)
    V("lshl_add_u32", G_VX0, v(t + 3), 10, v(t + 4)); V("add_u32", G_VX0, T1, v(G_VX0)); V("xor_b32", G_VX1, 0x2040, v(G_VX0))
    V("mul_u32_u24", t + 5, 3072, v(t + 3)); sshl(T1, GQ, 7); V("add_u32", t + 5, T1, v(t + 5))
    V("lshlrev_b32", t + 6, 1, v(t + 2)); V("xor_b32", t + 6, v(t + 6), v(t + 1)); V("lshl_add_u32", G_VWQ, v(t + 6), 4, v(t + 5))
    V("xor_b32", t + 6, 4, v(t + 6)); V("lshl_add_u32", G_VWK, v(t + 6), 4, v(t + 5)); V("add_u32", G_VWK, 1024, v(G_VWK))
    V("lshlrev_b32", t + 6, 2, v(t + 2)); V("xor_b32", t + 6, v(t + 6), v(t + 1)); V("lshl_add_u32", G_VWV, v(t + 6), 4, v(t + 5)); V("add_u32", G_VWV, 2048, v(G_VWV))
    r = OPT["rot"]
    if r == 1: sshl(T5, GQ, 1); sadd(T5, T5, GT)
    else:
        sadd(T5, GQ, GT)
        if r == 3: sshl(T5, T5, 2)
        if r == 5: sand(T5, T5, 1)
        if r == 6: sshl(T5, T5, 1)

I0, I1, I2, I3 = "s20", "s21", "s22", "s23"
def issue_chunk(ci):
    base = (ci % 3) * 32768
    sadd(I0, T5, ci); sand(I0, I0, 7)
    sadd("m0", T4, base); sshl(I1, I0, 7)
    e("buffer_load_dwordx4 v%d, %s, %s offen lds" % (G_VX0, R_X, I1))
    sadd("m0", T4, base + 1024); smul(I2, I0, 196608)
    e("buffer_load_dwordx4 v%d, %s, %s offen lds" % (G_VX1, R_X, I1))
    for g, va in enumerate((G_VWQ, G_VWK, G_VWV)):
        for h in range(2):
            sadd("m0", T4, base + (g + 1) * 8192 + h * 1024)
            if g == 0 and h == 0: sadd(I3, I2, 24576)
            else: e("s_nop 0")
            e("buffer_load_dwordx4 v%d, %s, %s offen lds" % (va, R_W, I3 if h else I2))

def pi_tok(dst, src, t):
    V("and_b32", dst, 0x13, v(src)); V("bfe_u32", t, v(src), 2, 1); V("lshl_or_b32", dst, v(t), 3, v(dst))
    V("bfe_u32", t, v(src), 3, 1); V("lshl_or_b32", dst, v(t), 2, v(dst))

def gemm_read_addr():
    t = VT
    c("GEMM LDS fragment read addresses, publish addresses")
    pi_tok(t, V_L, t + 1)
    V("lshrrev_b32", t + 1, 5, v(V_L))
    V("lshlrev_b32", PV_QS, 4, v(t)); V("lshl_add_u32", PV_QS, v(t + 1), 9, v(PV_QS))
    sand(T0, WV, 1); sshl(T1, T0, 5); V("add_u32", t, T1, v(t))
    V("bfe_u32", t + 2, v(t), 1, 3); V("xor_b32", t + 2, v(t + 2), v(t + 1)); V("lshlrev_b32", t + 2, 4, v(t + 2))
    V("lshl_add_u32", G_XA, v(t), 7, v(t + 2))
    for s in range(1, 4): V("xor_b32", G_XA + s, 32 * s, v(G_XA))
    V("bfe_u32", t + 2, v(V_L), 2, 2); V("lshl_add_u32", t + 3, v(t + 1), 3, v(t + 2)); V("lshlrev_b32", t + 3, 7, v(t + 3))
    V("bfe_u32", t + 4, v(V_L), 4, 1); V("bfe_u32", t + 5, v(V_L), 3, 1); V("and_b32", t + 6, 1, v(V_L)); V("bfe_u32", t + 7, v(V_L), 1, 1)
    sand(T2, WV, 2); sshl(T1, T2, 1)
    V("or_b32", t + 8, T1, v(t + 6)); V("lshl_or_b32", t + 9, v(t + 4), 1, v(t + 5)); V("lshlrev_b32", t + 9, 1, v(t + 9))
    V("xor_b32", t + 8, v(t + 8), v(t + 9)); V("lshl_add_u32", t + 8, v(t + 8), 4, v(t + 3)); V("lshl_add_u32", t + 8, v(t + 7), 3, v(t + 8))
    V("lshl_add_u32", G_WA, v(t + 4), 13, v(t + 8)); V("add_u32", G_WA, 8192, v(G_WA)); V("xor_b32", G_WA + 1, 32, v(G_WA))
    V("lshl_or_b32", t + 8, v(t + 4), 1, v(t + 7)); V("or_b32", t + 8, T1, v(t + 8)); V("lshlrev_b32", t + 9, 2, v(t + 5))
    V("xor_b32", t + 8, v(t + 8), v(t + 9)); V("lshl_add_u32", t + 8, v(t + 8), 4, v(t + 3)); V("lshl_add_u32", t + 8, v(t + 6), 3, v(t + 8))
    V("add_u32", G_WA + 2, 24576, v(t + 8))
    for s in range(4): V("add_u32", G_XA + 4 + s, 0x10000, v(G_XA + s))
    for s in range(3): V("add_u32", G_WB + s, 0x10000, v(G_WA + s))
    V("and_b32", t + 2, 15, v(V_L)); V("lshlrev_b32", t + 2, 4, v(t + 2)); V("lshl_add_u32", t + 2, v(t + 1), 8, v(t + 2)); V("lshl_add_u32", PV_VS, v(t + 4), 16, v(t + 2))
    sshl(T1, GQ, 2); sadd(T1, T1, T2); sshl(T1, T1, 6); sshl(T3, GT, 1); sadd(T1, T1, T3); sadd(T1, T1, T0); sshl(sQKV, T1, 10)
    sshl(T0, T0, 8)
    e("s_bitcmp1_b32 %s, 1" % WV)
    csel(T1, L_TA + 14256, L_TA); csel(T2, L_TB + 16896, L_TB)
    sadd(T1, T1, T0); sadd(T2, T2, T0)
    V("lshl_add_u32", PV_TW, v(V_L), 2, T1); V("lshl_add_u32", 46, v(V_L), 2, T2)

def u_coop_loads():
    t = VT
    e("s_bfe_u32 %s, %s, 0x10001" % (T1, WV)); sand(T0, WV, 1)
    V("and_b32", t, 7, v(V_L)); V("bfe_u32", t + 1, v(V_L), 3, 2)
    sshl(T0, T0, 2); V("add_u32", t + 1, T0, v(t + 1))
    sshl(T2, I5, 1); sadd(T1, T1, T2); sshl(T1, T1, 3); V("add_u32", t, T1, v(t))
    V("lshlrev_b32", t + 2, 4, v(t + 1)); V("lshl_add_u32", G_UA, v(t), 12, v(t + 2))
    V("lshlrev_b32", t, 4, v(t)); V("lshl_add_u32", G_US, v(t + 1), 15, v(t))
    sshl(T0, XQ, 7)
    e("s_mov_b32 exec_hi, 0")
    for k in range(4):
        e("buffer_load_dwordx4 %s, v%d, %s, %s offen offset:%d" % (vr(G_UL + 4 * k, 4), G_UA, R_U, T0, 1024 * k))
    e("s_mov_b32 exec_hi, -1")

def u_coop_stores():
    D = 224
    for i in range(4):
        for k in range(4): V("mov_b32", D + 4 * i + k, v(G_UL + 4 * k + i))
    sshl(I0, XQ, 18); sadd(I0, I0, WS_U2)
    e("s_mov_b32 exec_hi, 0")
    for i in range(4):
        e("buffer_store_dwordx4 %s, v%d, %s, %s offen sc1" % (vr(D + 4 * i, 4), G_US, R_WS, I0))
        if i < 3: sadd(I0, I0, 8192)
    e("s_mov_b32 exec_hi, -1")

def flag_store(soff, t=VT):
    V("mov_b32", t, 0); V("mov_b32", t + 1, TAG)
    e("s_mov_b64 exec, 1")
    e("buffer_store_dword v%d, v%d, %s, %s offen sc1" % (t + 1, t, R_WS, soff))
    e("s_mov_b64 exec, -1")

def poll(label, soff, first_issued=None, t=VT, nwait=0):
    V("lshlrev_b32", t, 7, v(V_L))
    e("s_mov_b32 %s, 0" % CNT)
    e("s_mov_b32 exec_hi, 0")
    r = t + 1
    if first_issued is not None:
        r = first_issued
        e("s_waitcnt vmcnt(%d)" % nwait)
        e("s_branch %s_chk" % label)
    lab(label)
    e("buffer_load_dword v%d, v%d, %s, %s offen sc1" % (r, t, R_WS, soff))
    sadd(CNT, CNT, 1)
    e("s_waitcnt vmcnt(0)")
    lab(label + "_chk")
    e("v_cmp_ne_u32 vcc, %s, v%d" % (TAG, r))
    e("s_cmp_gt_u32 %s, 0x4000" % CNT)
    e("s_cbranch_scc1 %s_done" % label)
    e("s_cmp_lg_u64 vcc, 0")
    e("s_cbranch_scc1 %s" % label)
    lab(label + "_done")
    e("s_mov_b32 exec_hi, -1")

def kgen_addr():
    t = VT
    c("SPLIT")
    V("bfe_u32", t, v(V_L), 4, 1); V("bfe_u32", t + 1, v(V_L), 2, 1); V("lshl_or_b32", t, v(t), 1, v(t + 1))
    V("bfe_u32", t + 1, v(V_L), 3, 1); V("and_b32", t + 2, 3, v(V_L)); V("lshl_or_b32", t + 1, v(t + 1), 2, v(t + 2))
    e("v_cmp_eq_u32 s[4:5], 0, v%d" % t)
    e("v_cmp_eq_u32 vcc, 1, v%d" % t)
    e("s_bitcmp1_b32 %s, 0" % WV)
    csel(T0, 0x11100000, 0x76543210); csel(T1, 0x11100000, 0x43222100); csel(T2, 0x11100000, 0x22111000); csel(T3, 0x19171513, 0x100d0800)
    V("mov_b32", t + 2, T2); V("mov_b32", t + 3, T1); V("cndmask_b32", t + 2, v(t + 2), v(t + 3), "vcc")
    V("mov_b32", t + 3, T0); V("cndmask_b32", t + 2, v(t + 2), v(t + 3), "s[4:5]")
    V("lshlrev_b32", t + 1, 2, v(t + 1)); V("bfe_u32", t + 2, v(t + 2), v(t + 1), 4)
    V("lshlrev_b32", t, 3, v(t)); V("bfe_u32", t, T3, v(t), 8); V("add_u32", t, v(t), v(t + 2))
    V("lshrrev_b32", t + 1, 5, v(V_L)); V("and_b32", t + 2, 31, v(V_L))
    e("s_cselect_b32 %s, 2048, 0" % T3)
    e("s_cselect_b32 %s, 0, -1" % CNT)
    e("s_bitcmp1_b32 %s, 1" % WV)
    csel(T0, L_TA + 14256, L_TA); csel(T1, L_TB + 16896, L_TB); csel(T2, L_KF + 4160 + 64, L_KF + 64)
    sadd(T2, T2, T3)
    V("mul_u32_u24", t, 528, v(t)); V("lshl_add_u32", t + 3, v(t + 1), 4, T0); V("add_u32", PV_GA, v(t), v(t + 3))
    V("mul_u32_u24", t, 528, v(t + 2)); V("lshl_add_u32", t + 3, v(t + 1), 4, T1); V("add_u32", PV_GB, v(t), v(t + 3))
    V("lshl_add_u32", t, v(t + 1), 9, T2); V("lshl_add_u32", PV_GW, v(t + 2), 4, v(t))
    e("s_waitcnt lgkmcnt(0)")
    sadd(TAG, TAG, 1)
    e("s_bitcmp1_b32 %s, 1" % WV)
    e("s_cselect_b32 %s, 0, 16" % T0)
    sshl(T0, DS2, T0); sand(T0, T0, 0xffff0000); sand(T0, T0, CNT)
    e("v_cmp_eq_u32 vcc, 0, v%d" % V_L)
    V("mov_b32", PV_GD, T0)
    sand(T1, WV, 3); sshl(T1, T1, 8); sadd(T1, T1, L_UP + 128)
    V("cndmask_b32", PV_GD, 0, v(PV_GD), "vcc")
    V("lshl_add_u32", PV_US, v(V_L), 1, T1)

def pads():
    t = VT
    c("SPLIT")
    for i in range(4): V("mov_b32", t + 4 + i, 0)
    V("lshrrev_b32", t, 3, v(V_L)); V("mul_u32_u24", t, 1152, v(t)); V("and_b32", t + 1, 7, v(V_L)); V("lshl_add_u32", t, v(t + 1), 4, v(t)); V("add_u32", t, L_UP, v(t))
    V("bfe_u32", t + 1, v(V_L), 2, 1); V("mul_u32_u24", t + 1, 4160, v(t + 1)); V("and_b32", t + 2, 3, v(V_L)); V("lshl_add_u32", t + 1, v(t + 2), 4, v(t + 1)); V("add_u32", t + 1, L_KF, v(t + 1))
    V("lshlrev_b32", t + 2, 4, v(t + 2)); V("add_u32", t + 2, L_FL, v(t + 2))
    for k in range(3): e("ds_write_b128 v%d, %s" % (t + k, vr(t + 4, 4)))

def loader_path():
    c("======== loader waves ========")
    loader_addr()
    e("s_waitcnt lgkmcnt(0)")
    stamp("karg")
    srd(R_X, S_X, 2048 * 1024); srd(R_W, S_W, 512 * 3072)
    scalar_loads()
    issue_chunk(0)
    srd(R_WS, S_WS, WS_SIZE); srd(R_OUT, S_OUT, 2048 * 2048); srd(R_WO, S_WO, 512 * 1024)
    late = capture(lambda: (precompute_conv(), precompute(), kgen_addr(), pads()))
    def upto(n):
        while n < len(late) and "SPLIT" not in late[n]: n += 1
        SINK[0].extend(late[:n]); del late[:n]
    upto(OPT["npre"])
    issue_chunk(1)
    waits = [8, 8, 8, 8, 8, 8, 9, 1]
    for ci in range(8):
        c("loader chunk %d" % ci)
        e("s_waitcnt vmcnt(%d)" % waits[ci])
        e("s_barrier")
        if ci in (0, 7): stamp("ch%d" % ci)
        if ci + 2 < 8: issue_chunk(ci + 2)
        if ci == 5:
            sshl(T5, XQ, 12); sadd(T5, T5, WS_F0)
            V("lshlrev_b32", 42, 7, v(V_L))
            e("s_mov_b32 exec_hi, 0")
            e("buffer_load_dword v%d, v42, %s, %s offen sc1" % (G_PL, R_WS, T5))
            e("s_mov_b32 exec_hi, -1")
            upto(len(late) // 2)
        if ci == 6: upto(9999)
    poll("L_poll0", T5, first_issued=G_PL, nwait=0)
    c("u of this WG's channel pair (transposed by the group)")
    sshl(T0, XQ, 5); sadd(T0, T0, I5); sshl(T0, T0, 13); sadd(T0, T0, T4); sadd(T0, T0, WS_U2)
    e("buffer_load_dwordx4 %s, v%d, %s, %s offen sc1" % (vr(U2R, 4), V_L16, R_WS, T0))
    e("buffer_load_dwordx4 %s, v%d, %s, %s offen offset:1024 sc1" % (vr(U2R + 4, 4), V_L16, R_WS, T0))
    e("s_barrier")
    stamp("K1")
    c("---- S4 kernel K = A-table x B-table (rows duplicated to realise bf16(l)) ----")
    FA, FB, AC = 96, 128, 160
    def rd(s):
        e("ds_read_b128 %s, v%d offset:%d" % (vr(FA + 4 * (s % 8), 4), PV_GA, 32 * s))
        e("ds_read_b128 %s, v%d offset:%d" % (vr(FB + 4 * (s % 8), 4), PV_GB, 32 * s))
    for s in range(7): rd(s)
    e("v_and_b32 v%d, 1, v%d" % (VT, V_L))
    e("v_cmp_eq_u32 vcc, 0, v%d" % VT)
    uw = []
    for h in range(2):
        for p in range(4):
            uw.append("    ds_write_b16 v%d, v%d offset:%d" % (PV_US, U2R + 4 * h + p, 1152 * p + 128 * h))
            uw.append("    ds_write_b16_d16_hi v%d, v%d offset:%d" % (PV_US, U2R + 4 * h + p, 4608 + 1152 * p + 128 * h))
    nw = 0
    for s in range(16):
        e("s_waitcnt lgkmcnt(%d)" % (2 * (min(s + 6, 15) - s) + nw))
        e("v_mfma_f32_32x32x16_bf16 %s, %s, %s, %s" % (vr(AC, 16), vr(FA + 4 * (s % 8), 4), vr(FB + 4 * (s % 8), 4), "0" if s == 0 else vr(AC, 16)))
        if s + 7 < 16: rd(s + 7)
        if s == 10: e("s_waitcnt vmcnt(0)")
        if 10 <= s < 15:
            SINK[0].extend(uw[nw:nw + 3]); nw += 3
    SINK[0].extend(uw[15:])
    nop(11)
    V("add_f32", AC, v(AC), v(PV_GD))
    e("s_bitcmp1_b32 %s, 0" % WV)
    e("s_cbranch_scc0 L_kg_nofix")
    V("cndmask_b32", AC + 4, v(AC + 5), v(AC + 3), "vcc"); V("cndmask_b32", AC + 12, v(AC + 13), v(AC + 11), "vcc")
    lab("L_kg_nofix")
    for i in range(8): V("cvt_pk_bf16_f32", FA + i, v(AC + 2 * i), v(AC + 2 * i + 1))
    e("ds_write_b128 v%d, %s" % (PV_GW, vr(FA, 4)))
    e("ds_write_b128 v%d, %s offset:1024" % (PV_GW, vr(FA + 4, 4)))
    e("s_branch L_gemm_done")

def cmul_multi(lst):
    for d, a, b in lst:
        e("v_pk_mul_f32 %s, %s, %s op_sel:[0,0] op_sel_hi:[1,0]" % (vr(d, 2), vr(a, 2), vr(b, 2)))
    for d, a, b in lst:
        e("v_pk_fma_f32 %s, %s, %s, %s op_sel:[1,1,0] op_sel_hi:[0,1,1] neg_lo:[1,0,0]" % (vr(d, 2), vr(a, 2), vr(b, 2), vr(d, 2)))
def cexp_multi(lst, va, vb):
    for d, Lf, t, cj in lst:
        V("mul_f32", t, fl(Lf), v(va)); V("mul_f32", t + 1, fl(-Lf if cj else Lf), v(vb)); V("fract_f32", t + 1, v(t + 1))
    for d, Lf, t, cj in lst:
        V("exp_f32", t, v(t)); V("cos_f32", d, v(t + 1)); V("sin_f32", d + 1, v(t + 1))
    e("s_nop 0")
    for d, Lf, t, cj in lst:
        e("v_pk_mul_f32 %s, %s, %s op_sel:[0,0] op_sel_hi:[1,0]" % (vr(d, 2), vr(d, 2), vr(t, 2)))

KVA, KVB, KVD = 247, 248, 249
def kgen_b():
    c("---- S4 mode tables: B = exp(z*8j) -> LDS ----")
    va, vb, vdt, ta = KVA, KVB, KVD, VT + 4
    e("s_bitcmp1_b32 %s, 1" % WV)
    e("s_cselect_b32 %s, 0, 16" % T0)
    sshl(T0, LD2, T0); sand(T0, T0, 0xffff0000)
    V("mov_b32", vdt, fl(LOG2E)); V("mul_f32", vdt, T0, v(vdt)); V("exp_f32", vdt, v(vdt))
    for i in range(2): V("lshlrev_b32", V_PAR + i, 16, v(V_PAR + i))
    V("cvt_pk_bf16_f32", vdt, v(vdt), v(vdt)); V("and_b32", vdt, 0xffff0000, v(vdt))
    V("mul_f32", va, v(vdt), v(V_PAR)); V("mul_f32", vb, v(vdt), v(V_PAR + 1))
    V("mul_f32", va, fl(LOG2E), v(va)); V("mul_f32", vb, fl(1.0 / (2 * math.pi)), v(vb))
    P = lambda j: KB + 2 * j
    G = lambda k: KB + 16 + 2 * k
    X = KB + 24
    cv = [KB + 40 + i for i in range(8)]
    n = [0]
    def putb(row, pr):
        r = cv[n[0] % 8]; n[0] += 1
        V("cvt_pk_bf16_f32", r, v(pr), v(pr + 1))
        e("ds_write_b32 v46, v%d offset:%d" % (r, row * 528))
    cexp_multi([(P(1), 8.0, ta, 0), (G(1), 64.0, ta + 2, 0)], va, vb)
    V("mov_b32", cv[7], 0x3f80); e("ds_write_b32 v46, v%d" % cv[7])
    cmul_multi([(P(2), P(1), P(1)), (G(2), G(1), G(1))])
    putb(1, P(1)); putb(8, G(1))
    cmul_multi([(P(3), P(2), P(1)), (P(4), P(2), P(2)), (G(3), G(2), G(1))])
    putb(2, P(2)); putb(16, G(2))
    cmul_multi([(P(5), P(4), P(1)), (P(6), P(4), P(2)), (P(7), P(4), P(3))])
    for r, p in ((3, P(3)), (4, P(4)), (24, G(3)), (5, P(5)), (6, P(6)), (7, P(7))): putb(r, p)
    for k in range(1, 4):
        cmul_multi([(X + 2 * j, P(j), G(k)) for j in range(1, 8)])
        for j in range(1, 8): putb(8 * k + j, X + 2 * j)

def kgen_a():
    va, vb, vdt, ta = KVA, KVB, KVD, VT + 4
    E = lambda j: 224 + 2 * j - 2
    Q = lambda j: 160 + 2 * j
    H = lambda k: 176 + 2 * k
    X = 224
    def puta(row, pr): V("cvt_pk_bf16_f32", KR + row, v(pr), v(pr + 1))
    cexp_multi([(E(1), 1.0, ta, 1), (H(1), 256.0, ta + 2, 1)], va, vb)
    for i in range(2, 6): V("lshlrev_b32", V_PAR + i, 16, v(V_PAR + i))
    V("mul_f32", ta, v(vdt), v(V_PAR + 2)); e("v_mul_f32 v%d, -v%d, v%d" % (ta + 1, vdt, V_PAR + 3))
    V("mov_b32", ta + 2, v(V_PAR + 4)); V("mul_f32", ta + 3, "-1.0", v(V_PAR + 5))
    cmul_multi([(Q(0), ta, ta + 2), (E(2), E(1), E(1)), (H(2), H(1), H(1))])
    cmul_multi([(E(3), E(2), E(1)), (E(4), E(2), E(2)), (H(3), H(2), H(1)), (H(4), H(2), H(2))])
    puta(0, Q(0))
    cmul_multi([(E(5), E(4), E(1)), (E(6), E(4), E(2)), (E(7), E(4), E(3)), (E(8), E(4), E(4)), (H(5), H(4), H(1)), (H(6), H(4), H(2)), (H(7), H(4), H(3))])
    cmul_multi([(Q(j), Q(0), E(j)) for j in range(1, 9)])
    for j in range(1, 8): puta(j, Q(j))
    cmul_multi([(X + 2 * i, H(1), Q(2 * i)) for i in range(5)] + [(X + 10 + 2 * i, H(2), Q(4 * i)) for i in range(3)])
    for i in range(8): puta(8 + i, X + 2 * i)
    cmul_multi([(X + 2 * i, H(3), Q(4 * i)) for i in range(3)] + [(X + 6, H(4), Q(0)), (X + 8, H(4), Q(8)), (X + 10, H(5), Q(0)), (X + 12, H(5), Q(8))])
    for i in range(7): puta(16 + i, X + 2 * i)
    cmul_multi([(X, H(6), Q(0)), (X + 2, H(6), Q(8)), (X + 4, H(7), Q(0)), (X + 6, H(7), Q(8))])
    for i in range(4): puta(23 + i, X + 2 * i)

def compute_path():
    t = VT
    lab("L_compute")
    c("======== compute waves ========")
    e("s_bfe_u32 %s, %s, 0x10001" % (T0, WV)); sadd(T0, T0, C0); sshl(T0, T0, 8); sand(T1, WV, 1); sshl(T1, T1, 7); sadd(T0, T0, T1)
    V("lshl_add_u32", V_PA, v(V_L), 1, T0)
    e("s_waitcnt lgkmcnt(0)")
    stamp("karg")
    for i, s in enumerate((S_ARE, S_AIM, S_BRE, S_BIM, S_CRE, S_CIM)):
        e("global_load_ushort v%d, v%d, %s" % (V_PAR + i, V_PA, sr(s, 2)))
    scalar_loads()
    srd(R_U, S_U, 2048 * 1024)
    u_coop_loads()
    if OPT["pf"]:
        c("pull this WG's 1/32 share of the code into L2")
        e("s_getpc_b64 s[4:5]")
        lab("L_pc")
        sshl(T0, I5, 3); V("add_u32", t, T0, v(V_L)); V("lshlrev_b32", t, 7, v(t))
        e("v_min_u32 v%d, L_end-L_pc-4, v%d" % (t, t))
        e("s_mov_b64 exec, 0xff")
        e("global_load_dword v47, v%d, s[4:5]" % t)
        e("s_mov_b64 exec, -1")
    srd(R_WS, S_WS, WS_SIZE); srd(R_OUT, S_OUT, 2048 * 2048); srd(R_WO, S_WO, 512 * 1024)
    gemm_read_addr()
    e("s_waitcnt vmcnt(%d) lgkmcnt(0)" % (9 if OPT["pf"] else 8))
    sadd(TAG, TAG, 1)
    kgen_b()
    stamp("tab")
    ust = capture(u_coop_stores)
    k = next(i for i, x in enumerate(ust) if "exec_hi, 0" in x)
    pc = ["    s_waitcnt vmcnt(0)"] + ust[:k] + ["\n".join(ust[k:])] + [x for x in capture(kgen_a) if not x.strip().startswith(";")]
    def f0flag():
        sshl(I0, XQ, 5); sadd(I0, I0, I5); sshl(I0, I0, 7); sadd(I0, I0, WS_F0)
        flag_store(I0, 28)
    def fill(n):
        for _ in range(n):
            if pc: SINK[0].append(pc.pop(0))
    def ml(s, first=False):
        cc = lambda k: "0" if first else vr(G_ACC[k], 16)
        return ["v_mfma_f32_32x32x16_bf16 %s, %s, %s, %s" % (vr(G_ACC[0], 16), vr(G_W0F + 4 * s, 4), vr(G_XF + 4 * s, 4), cc(0)),
                "v_mfma_f32_32x32x16_bf16 %s, %s, %s, %s" % (vr(G_ACC[1], 16), vr(G_W1F + 4 * s, 4), vr(G_XF + 4 * s, 4), cc(1)),
                "v_mfma_f32_32x32x16_bf16 %s, %s, %s, %s" % (vr(G_ACC[2], 16), vr(G_XF + 4 * s, 4), vr(G_VF + 4 * s, 4), cc(2))]
    def ilv(ms, rs, nf):
        k = 0
        for i, m in enumerate(ms):
            e(m)
            upto = (len(rs) * (i + 1) + len(ms) - 1) // len(ms)
            SINK[0].extend(rs[k:upto]); k = upto
            fill(nf)
    for ci in range(8):
        c("compute chunk %d" % ci)
        hi = (ci % 3) == 2
        ib = 32768 if ci % 3 == 1 else 0
        xa = G_XA + (4 if hi else 0)
        wa = G_WB if hi else G_WA
        if ci == 4: e("s_waitcnt vmcnt(0)")
        e("s_barrier")
        if ci in (0, 7): stamp("ch%d" % ci)
        if ci == 4: f0flag()
        def reads(s):
            e("ds_read_b128 %s, v%d offset:%d" % (vr(G_XF + 4 * s, 4), xa + s, ib))
            for k, f in enumerate((G_W0F, G_W1F, G_VF)):
                for tt in range(2):
                    e("ds_read_b64_tr_b16 %s, v%d offset:%d" % (vr(f + 4 * s + 2 * tt, 2), wa + k, ib + (16 * s + 4 * tt) * 128))
        r0, r1 = capture(reads, 0), capture(reads, 1)
        nf = 1 if ci < 7 else 0
        if ci > 0:
            SINK[0].extend(r0[:3]); ilv(ml(3), r0[3:] + r1[:5], 0); SINK[0].extend(r1[5:])
        else: SINK[0].extend(r0 + r1)
        fill(6 * nf)
        e("s_waitcnt lgkmcnt(7)"); ilv(ml(0, ci == 0), capture(reads, 2), nf)
        e("s_waitcnt lgkmcnt(7)"); ilv(ml(1), capture(reads, 3), nf)
        e("s_waitcnt lgkmcnt(7)")
        if ci < 7:
            ilv(ml(2), [], 3 * nf)
            if ci == 6: fill(999)
            e("s_waitcnt lgkmcnt(0)")
    tw = ["    ds_write_b32 v%d, v%d offset:%d" % (PV_TW, KR + r, r * 528) for r in range(27)]
    ilv(ml(2), tw[:8], 0)
    e("s_waitcnt lgkmcnt(8)")
    ilv(ml(3), tw[8:], 0)
    sadd(T1, sQKV, WS_K); sadd(T2, sQKV, WS_K + 65536); sadd(T3, sQKV, WS_V); sadd(T4, sQKV, WS_Q + 65536); sadd(T0, sQKV, WS_Q)
    e("s_waitcnt lgkmcnt(0)")
    e("s_barrier")
    stamp("K1")
    c("GEMM epilogue: publish Q,K,V")
    P = G_XF
    def pk(dst, src):
        for i in range(4): V("cvt_pk_bf16_f32", dst + i, v(src + 2 * i), v(src + 1 + 2 * i))
    def st(r, va, so, off=0):
        e("buffer_store_dwordx4 %s, v%d, %s, %s offen%s sc1" % (vr(r, 4), va, R_WS, so, " offset:%d" % off if off else ""))
    pk(P, G_ACC[0] + 8); st(P, PV_QS, T1)
    pk(P + 4, G_ACC[1] + 8); st(P + 4, PV_QS, T2)
    pk(P + 8, G_ACC[2]); st(P + 8, PV_VS, T3)
    pk(P + 12, G_ACC[2] + 8); st(P + 12, PV_VS, T3, 512)
    for k, so in ((0, T0), (1, T4)):
        for i in range(8): V("mul_f32", G_ACC[k] + i, fl(0.25 * LOG2E), v(G_ACC[k] + i))
        pk(P + 16 + 4 * k, G_ACC[k]); st(P + 16 + 4 * k, PV_QS, so)
    stamp("pub")
    precompute_conv()

def ones_pads(b0, ON):
    t = VT
    for i in range(4): V("mov_b32", ON + i, 0x3f803f80)
    V("bfe_u32", t + 8, v(V_L), 3, 2); V("mul_u32_u24", t + 8, BLK, v(t + 8)); V("and_b32", t + 9, 7, v(V_L)); V("mul_u32_u24", t + 9, 1040, v(t + 9))
    V("add_u32", t + 8, v(t + 8), v(t + 9)); V("add_u32", t + 8, b0 * BLK + 8192 + 1024, v(t + 8))
    e("ds_write_b128 v%d, %s" % (t + 8, vr(ON, 4)))

C_LO, C_UP = 128, 144
C_A, C_X, C_Y = 160, 176, 192
def qkv_signal():
    t = VT + 4
    e("s_cmp_ge_u32 %s, 4" % WV)
    e("s_cbranch_scc1 L_sig_done")
    V("mov_b32", t + 2, L_FL + 16); V("mov_b32", t + 3, 1)
    e("s_waitcnt vmcnt(0)")
    e("s_mov_b64 exec, 1")
    e("ds_add_rtn_u32 v%d, v%d, v%d" % (t + 3, t + 2, t + 3))
    e("s_mov_b64 exec, -1")
    e("s_waitcnt lgkmcnt(0)")
    e("v_readfirstlane_b32 %s, v%d" % (T0, t + 3))
    e("s_cmp_eq_u32 %s, 3" % T0)
    e("s_cbranch_scc0 L_sig_done")
    flag_store(sF1, t)
    lab("L_sig_done")

def conv():
    t = VT
    c("---- causal conv as Toeplitz MFMA: tiles 2q (lo), 2q+1 (up) ----")
    def rdA(k, base):
        e("ds_read_b64_tr_b16 %s, v%d offset:%d" % (vr(C_A + 4 * k, 2), PV_CA, base + 128 * k + 32))
        e("ds_read_b64_tr_b16 %s, v%d offset:%d" % (vr(C_A + 4 * k + 2, 2), PV_CA, base + 128 * k))
    def rdB(dst, k, base):
        e("ds_read_b128 %s, v%d offset:%d" % (vr(dst + 4 * k, 4), PV_CB, base + 96 - 32 * k))
    def mf(acc, k, b, first=False):
        e("v_mfma_f32_32x32x16_bf16 %s, %s, %s, %s" % (vr(acc, 16), vr(C_A + 4 * k, 4), vr(b + 4 * k, 4), "0" if first else vr(acc, 16)))
    for k in range(4):
        rdA(k, 0); rdB(C_Y, k, 128); rdB(C_X, k, 0)
    V("subrev_u32", PV_CB, 128, v(PV_CB))
    def section(cur, old, first=False):
        for k in range(4):
            e("s_waitcnt lgkmcnt(%d)" % ((12 - k) if first else 9))
            mf(C_UP, k, old, first and k == 0)
            mf(C_LO, k, cur, first and k == 0)
            rdA(k, 512); rdB(old, k, 0)
        V("add_u32", PV_CA, 512, v(PV_CA)); V("subrev_u32", PV_CB, 128, v(PV_CB))
    section(C_X, C_Y, True)
    qkv_signal()
    e("s_cmp_eq_u32 %s, 0" % CQ)
    e("s_cbranch_scc1 L_conv_tail")
    e("s_mov_b32 %s, %s" % (CNT, CQ))
    lab("L_conv_loop")
    section(C_Y, C_X)
    section(C_X, C_Y)
    e("s_sub_u32 %s, %s, 1" % (CNT, CNT))
    e("s_cmp_lg_u32 %s, 0" % CNT)
    e("s_cbranch_scc1 L_conv_loop")
    lab("L_conv_tail")
    for k in range(4):
        e("s_waitcnt lgkmcnt(%d)" % (9 - 3 * k))
        mf(C_UP, k, C_X)
    c("Z partials -> LDS")
    for k in range(4): e("ds_write_b128 v%d, %s offset:%d" % (PV_ZW, vr(C_LO + 4 * k, 4), 32 * k))
    nop(8)
    for k in range(4): e("ds_write_b128 v%d, %s offset:%d" % (PV_ZW, vr(C_UP + 4 * k, 4), 1152 + 32 * k))

def kv_tiles(n, msrc, mstep, soff):
    e("s_mov_b32 m0, %s" % msrc)
    e("s_nop 0")
    for i in range(n):
        e("buffer_load_dwordx4 v%d, %s, %s offen sc1 lds" % (V_L16, R_WS, soff))
        if i < n - 1:
            sadd("m0", "m0", mstep); sadd(soff, soff, 1024)

def kv_early():
    t = VT
    e("s_cmp_ge_u32 %s, 4" % WV)
    e("s_cbranch_scc1 L_kve_done")
    precompute()
    e("s_cmp_lg_u32 %s, 0" % CQ)
    e("s_cbranch_scc1 L_kve_done")
    e("s_cmp_eq_u32 %s, 0" % WV)
    e("s_cbranch_scc0 L_kve_w2")
    for i in range(4): V("mov_b32", C_A + i, 0)
    V("and_b32", t + 2, 7, v(V_L)); V("mul_u32_u24", t + 2, ZS, v(t + 2)); V("add_u32", t + 2, L_Z + 112, v(t + 2))
    e("ds_write_b128 v%d, %s" % (t + 2, vr(C_A, 4)))
    e("s_mov_b32 %s, 0" % T5); e("s_mov_b32 %s, 1024" % T4); sadd(T3, sHB, WS_K)
    e("s_branch L_kve_go")
    lab("L_kve_w2")
    ones_pads(0, C_A)
    e("s_mov_b32 %s, 8192" % T5); e("s_mov_b32 %s, 1040" % T4); sadd(T3, sHB, WS_V)
    lab("L_kve_go")
    poll("L_poll1", sF1P, t=VT + 4)
    stamp("poll1")
    sshl(T0, JJ, 13); sadd(T0, T0, T3)
    kv_tiles(8, T5, T4, T0)
    sadd(T0, JJ, 1); sand(T0, T0, 7); sshl(T0, T0, 13); sadd(T0, T0, T3); sadd(T5, T5, BLK)
    kv_tiles(8, T5, T4, T0)
    lab("L_kve_done")

A_Q = [64, 68]
A_S = [72, 88]
A_O = [104, 120]
A_KF = [136, 140]
A_VA = [144, 148]
A_VB = [152, 156]
A_IDX = 160
A_F = 164
A_NM = 72 + 16
WOR = 192
Y_R = 32
def conv_epilogue():
    c("y[t] = sum_p Z_p[t-p]")
    e("s_waitcnt lgkmcnt(0)")
    e("s_barrier")
    stamp("zbar")
    e("buffer_load_dwordx4 %s, v%d, %s, %s offen sc1" % (vr(A_Q[0], 4), V_L16, R_WS, sQL))
    e("buffer_load_dwordx4 %s, v%d, %s, %s offen offset:1024 sc1" % (vr(A_Q[1], 4), V_L16, R_WS, sQL))
    order = [(i, cl) for i in range(4) for cl in range(2)]
    def rd(n):
        i, cl = order[n]
        for p in range(4): e("ds_read_b32 v%d, v%d offset:%d" % (Y_R + 4 * n + p, PV_ZR + p, cl * 4 * ZS + 288 * i))
    rd(0); rd(1); rd(2)
    V("mov_b32", A_IDX, 0xdddddddd)
    zs = [A_O[0] + i for i in range(32)]
    for n in range(8):
        i, cl = order[n]
        r = Y_R + 4 * n
        for _ in range(4): V("mov_b32", zs.pop(), 0)
        e("s_waitcnt lgkmcnt(%d)" % (4 * (min(n + 2, 7) - n)))
        if n + 3 < 8: rd(n + 3)
        V("add_f32", r, v(r), v(r + 1)); V("add_f32", r + 2, v(r + 2), v(r + 3)); V("add_f32", r, v(r), v(r + 2))
        if cl == 1: V("cvt_pk_bf16_f32", V_Y + i, v(r - 4), v(r))

def kv_late():
    t = VT
    e("s_cmp_ge_u32 %s, 4" % WV)
    e("s_cbranch_scc0 L_kvl_done")
    sand(T1, WV, 3); sshl(T0, T1, 2); sadd(T0, T0, L_FL)
    V("mov_b32", t, T0); V("mov_b32", t + 1, 1); V("mov_b32", t + 2, 2)
    smul(T5, T1, 2080); sshl(T1, T1, 11); sadd(T0, sHB, T1)
    for b in range(2, 8):
        sadd(T2, JJ, b); sand(T2, T2, 7); sshl(T2, T2, 13); sadd(T2, T2, T0)
        sadd("m0", T1, b * BLK); sadd(T3, T2, WS_K)
        e("buffer_load_dwordx4 v%d, %s, %s offen sc1 lds" % (V_L16, R_WS, T3))
        sadd(T4, T2, WS_V)
        e("buffer_load_dwordx4 v%d, %s, %s offen offset:1024 sc1 lds" % (V_L16, R_WS, T3))
        sadd("m0", T5, b * BLK + 8192); e("s_nop 0")
        e("buffer_load_dwordx4 v%d, %s, %s offen sc1 lds" % (V_L16, R_WS, T4))
        sadd("m0", "m0", 16); e("s_nop 0")
        e("buffer_load_dwordx4 v%d, %s, %s offen offset:1024 sc1 lds" % (V_L16, R_WS, T4))
        if b == 5:
            e("s_waitcnt vmcnt(8)")
            e("ds_write_b32 v%d, v%d" % (t, t + 1))
    e("s_cmp_eq_u32 %s, 7" % WV)
    e("s_cbranch_scc0 L_pad4")
    ones_pads(4, 32)
    lab("L_pad4")
    e("s_waitcnt vmcnt(0) lgkmcnt(0)")
    e("ds_write_b32 v%d, v%d" % (t, t + 2))
    lab("L_kvl_done")

def kv_check(stage):
    t = VT + 4
    lb = "L_kvchk%d" % stage
    V("mov_b32", t, L_FL)
    e("s_mov_b32 %s, 0" % T3)
    lab(lb)
    e("ds_read_b128 %s, v%d" % (vr(t + 2, 4), t))
    sadd(T3, T3, 1)
    e("s_waitcnt lgkmcnt(0)")
    V("min_u32", t + 2, v(t + 2), v(t + 3)); V("min3_u32", t + 2, v(t + 2), v(t + 4), v(t + 5))
    e("s_cmp_gt_u32 %s, 0x40000" % T3)
    e("s_cbranch_scc1 %s_done" % lb)
    e("v_readfirstlane_b32 %s, v%d" % (T4, t + 2))
    e("s_cmp_lt_u32 %s, %d" % (T4, stage))
    e("s_cbranch_scc1 %s" % lb)
    lab(lb + "_done")

def attn_main():
    c("---- attention main loop: wave = 2 q-tiles x 32 key tiles (parity w>>2), fully unrolled ----")
    base = [0]
    koff = lambda i: (i // 4 - base[0]) * BLK + (i % 4) * 2048
    voff = lambda i: (i // 4 - base[0]) * BLK + (i % 4) * 2080
    def rdK(i):
        if i < 32: e("ds_read_b128 %s, v%d offset:%d" % (vr(A_KF[i & 1], 4), PV_KA, koff(i)))
    def rdVa(i):
        if i < 32: e("ds_read_b128 %s, v%d offset:%d" % (vr(A_VA[i & 1], 4), PV_V0, voff(i)))
    def rdVb(i):
        if i < 32: e("ds_read_b128 %s, v%d offset:%d" % (vr(A_VB[i & 1], 4), PV_V1, voff(i)))
    def qk(i, q):
        if i < 32: e("v_mfma_f32_32x32x16_bf16 %s, %s, %s, 0" % (vr(A_S[q], 16), vr(A_KF[i & 1], 4), vr(A_Q[q], 4)))
    def pv(i, q, half):
        if i < 0: return
        a = (A_VA if half == 0 else A_VB)[i & 1]
        e("v_smfmac_f32_32x32x32_bf16 %s, %s, %s, v%d" % (vr(A_O[q], 16), vr(a, 4), vr(A_S[q] + 8 * half, 8), A_IDX))
    def ex(q, lo, hi):
        for k in range(lo, hi): e("v_exp_f32 v%d, v%d" % (A_S[q] + k, A_S[q] + k))
    rdK(0); rdK(1); rdVa(0); rdVb(0)
    e("s_cmp_ge_u32 %s, 4" % WV)
    e("s_cbranch_scc1 L_prio1")
    e("s_setprio 2")
    e("s_branch L_prio_done")
    lab("L_prio1")
    e("s_setprio 1")
    lab("L_prio_done")
    e("s_waitcnt lgkmcnt(3)")
    qk(0, 0)
    nop(12)
    ytiles = OPT["yt"]; wtiles = OPT["wt"]
    for i in range(32):
        c("key tile %d" % i)
        if i == OPT["flip"]:
            e("s_cmp_ge_u32 %s, 4" % WV)
            e("s_cbranch_scc1 L_noflip")
            e("s_setprio 0")
            lab("L_noflip")
        if i == 6: kv_check(1)
        if i == 14: kv_check(2)
        ex(0, 0, 2); pv(i - 1, 1, 1); ex(0, 2, 5); qk(i, 1)
        e("s_waitcnt lgkmcnt(0)")
        if i in (11, 23):
            for r in (PV_KA, PV_V0, PV_V1): V("add_u32", r, 3 * BLK, v(r))
            base[0] += 3
        rdK(i + 2); rdVa(i + 1); rdVb(i + 1)
        if i in ytiles:
            e("buffer_store_dword v%d, v%d, %s, %s offen" % (V_Y + ytiles.index(i), PV_YA, R_OUT, sYS))
            sadd(sYS, sYS, 0x20000)
        if i in wtiles:
            e("buffer_load_dwordx4 %s, v%d, %s, %s offen" % (vr(WOR + 4 * wtiles.index(i), 4), PV_WA, R_WO, sWO))
            sadd(sWO, sWO, 0x10000)
        ex(0, 5, 11); pv(i, 0, 0); ex(0, 11, 16)
        ex(1, 0, 2); pv(i, 0, 1); ex(1, 2, 5); qk(i + 1, 0)
        ex(1, 5, 11); pv(i, 1, 0); ex(1, 11, 16)
    e("s_nop 1")
    pv(31, 1, 1)
    e("s_setprio 0")
    stamp("loopend")

def combine():
    c("combine the two key-parity halves through LDS")
    e("s_barrier")
    stamp("attn")
    e("s_cmp_ge_u32 %s, 4" % WV)
    e("s_cbranch_scc1 L_cmb1")
    for kp in range(2):
        if kp: lab("L_cmb1")
        o = A_O[1 - kp]
        if kp == 0: nop(8)
        for k in range(3): e("ds_write_b128 v%d, %s offset:%d" % (PV_CW, vr(o + 4 * k, 4), 1024 * k))
        e("s_waitcnt lgkmcnt(0)")
        e("s_barrier")
        for k in range(3): e("ds_read_b128 %s, v%d offset:%d" % (vr(A_F + 4 * k, 4), PV_CR, 1024 * k))
        if kp:
            for i in range(4): V("mov_b32", A_Q[0] + i, v(A_Q[1] + i))
        e("s_waitcnt lgkmcnt(0)")
        for i in (8, 0, 1, 2, 3, 4, 5, 6, 7): V("add_f32", A_F + i, v(A_F + i), v(A_O[kp] + i))
        if kp == 0: e("s_branch L_cmb_done")
    lab("L_cmb_done")

def attn_check_and_slow():
    t = VT
    c("---- softmax guard: the fast path used shift 0; redo with the true row max if that was unsafe ----")
    V("mul_f32", t, 0, v(A_F))
    for i in range(1, 8): V("fma_f32", t, v(A_F + i), 0, v(t))
    e("v_cmp_nle_f32 vcc, %s, v%d" % (fl(2.0 ** -40), A_F + 8))
    V("mov_b32", t + 1, fl(2.0 ** 100))
    e("v_cmp_nle_f32 s[4:5], v%d, v%d" % (A_F + 8, t + 1))
    e("v_cmp_neq_f32 s[6:7], 0, v%d" % t)
    e("s_or_b64 vcc, vcc, s[4:5]")
    e("s_or_b64 vcc, vcc, s[6:7]")
    if OPT["forceslow"]: e("s_mov_b64 vcc, -1")
    e("s_cmp_lg_u64 vcc, 0")
    e("s_cbranch_scc1 L_slow")
    lab("L_attn_ok")

def slow_path():
    t = VT
    lab("L_slow")
    S_, KF, VA, VB = A_S[0], A_KF[0], A_VA[0], A_VB[0]
    c("slow path pass 1: true row max (K from the workspace)")
    sadd(T0, sHB, WS_K)
    V("mov_b32", t, 0xff800000)
    e("s_mov_b32 %s, 0" % CNT)
    lab("L_slow1")
    e("buffer_load_dwordx4 %s, v%d, %s, %s offen sc1" % (vr(KF, 4), V_L16, R_WS, T0))
    sadd(T0, T0, 1024)
    e("s_waitcnt vmcnt(0)")
    e("v_mfma_f32_32x32x16_bf16 %s, %s, %s, 0" % (vr(S_, 16), vr(KF, 4), vr(A_Q[0], 4)))
    nop(12)
    for k in range(0, 16, 2): V("max3_f32", t, v(t), v(S_ + k), v(S_ + k + 1))
    sadd(CNT, CNT, 1)
    e("s_cmp_lt_u32 %s, 64" % CNT)
    e("s_cbranch_scc1 L_slow1")
    V("mov_b32", t + 1, v(t))
    e("s_nop 1")
    e("v_permlane32_swap_b32 v%d, v%d" % (t, t + 1))
    e("s_nop 1")
    V("max_f32", t, v(t), v(t + 1))
    for k in range(16): V("mul_f32", A_NM + k, "-1.0", v(t))
    c("slow path pass 2")
    for k in range(16): V("mov_b32", A_F + k, 0)
    for k in range(4):
        V("mov_b32", VA + k, 0x3f803f80); V("mov_b32", VB + k, 0x3f803f80)
    V("and_b32", t, 15, v(V_L)); V("lshrrev_b32", t + 1, 5, v(V_L)); V("lshlrev_b32", t, 4, v(t)); V("lshl_add_u32", t, v(t + 1), 8, v(t))
    sadd(T0, sHB, WS_K); sadd(T1, sHB, WS_V)
    e("s_mov_b32 %s, 0" % CNT)
    lab("L_slow2")
    e("buffer_load_dwordx4 %s, v%d, %s, %s offen sc1" % (vr(KF, 4), V_L16, R_WS, T0))
    e("s_mov_b32 exec_lo, 0xffff")
    e("s_mov_b32 exec_hi, 0xffff")
    e("buffer_load_dwordx4 %s, v%d, %s, %s offen sc1" % (vr(VA, 4), t, R_WS, T1))
    e("buffer_load_dwordx4 %s, v%d, %s, %s offen offset:512 sc1" % (vr(VB, 4), t, R_WS, T1))
    e("s_mov_b64 exec, -1")
    sadd(T0, T0, 1024); sadd(T1, T1, 1024)
    e("s_waitcnt vmcnt(0)")
    e("v_mfma_f32_32x32x16_bf16 %s, %s, %s, %s" % (vr(S_, 16), vr(KF, 4), vr(A_Q[0], 4), vr(A_NM, 16)))
    nop(12)
    for k in range(16): e("v_exp_f32 v%d, v%d" % (S_ + k, S_ + k))
    e("s_nop 1")
    e("v_smfmac_f32_32x32x32_bf16 %s, %s, %s, v%d" % (vr(A_F, 16), vr(VA, 4), vr(S_, 8), A_IDX))
    e("v_smfmac_f32_32x32x32_bf16 %s, %s, %s, v%d" % (vr(A_F, 16), vr(VB, 4), vr(S_ + 8, 8), A_IDX))
    sadd(CNT, CNT, 1)
    e("s_cmp_lt_u32 %s, 64" % CNT)
    nop(4)
    e("s_cbranch_scc1 L_slow2")
    nop(12)
    e("s_branch L_attn_ok")

def attn_publish():
    t = VT
    c("normalise and publish O (q-tile 2*(w&3) + (w>>2))")
    V("rcp_f32", t, v(A_F + 8))
    e("s_nop 0")
    for i in range(8): V("mul_f32", A_F + i, v(A_F + i), v(t))
    P = 32
    for i in range(4): V("cvt_pk_bf16_f32", P + i, v(A_F + 2 * i), v(A_F + 2 * i + 1))
    e("s_nop 1")
    e("v_permlane32_swap_b32 v%d, v%d" % (P, P + 2))
    e("v_permlane32_swap_b32 v%d, v%d" % (P + 1, P + 3))
    e("buffer_store_dwordx4 %s, v%d, %s, %s offen sc1" % (vr(P, 4), V_L16, R_WS, sOST))
    c("Wo slice (prefetched in registers) -> LDS")
    e("s_waitcnt vmcnt(1)")
    for n in range(8): e("ds_write_b128 v%d, %s offset:%d" % (PV_WS, vr(WOR + 4 * n, 4), L_WO + 8192 * n))

P_W, P_ACC, P_OF = 96, 36, 52
def o_loads():
    sadd("m0", W10, L_O); e("s_nop 0")
    for n in range(8):
        e("buffer_load_dwordx4 v%d, %s, %s offen sc1 lds" % (V_L16, R_WS, sOLD))
        if n < 7:
            sadd("m0", "m0", 8192); sadd(sOLD, sOLD, 0x40000)

def tail():
    t = VT
    e("s_waitcnt vmcnt(0) lgkmcnt(0)")
    e("s_barrier")
    stamp("Wbar")
    e("s_cmp_ge_u32 %s, 4" % WV)
    e("s_cbranch_scc1 L_op_idle")
    c("Wo fragments -> registers (waves 0..3)")
    for hh in range(32):
        for tt in range(2):
            e("ds_read_b64_tr_b16 %s, v%d offset:%d" % (vr(P_W + 4 * hh + 2 * tt, 2), PV_WF, L_WO + hh * 2048 + tt * 512))
    e("s_waitcnt lgkmcnt(0)")
    e("s_barrier")
    stamp("poll2")
    o_loads()
    def mm(st):
        for k in range(4):
            hh = 4 * st + k
            e("v_mfma_f32_32x32x16_bf16 %s, %s, %s, %s" % (vr(P_ACC, 16), vr(P_W + 4 * hh, 4), vr(P_OF + 16 * (st & 1) + 4 * k, 4), "0" if hh == 0 else vr(P_ACC, 16)))
    for st in range(8):
        if st % 2 == 0:
            e("s_waitcnt vmcnt(%d)" % (6 - st))
            e("s_barrier")
            if st == 0: stamp("O1")
        for k in range(4): e("ds_read_b128 %s, v%d offset:%d" % (vr(P_OF + 16 * (st & 1) + 4 * k, 4), PV_OR, (4 * st + k) * 2048))
        if st > 0:
            e("s_waitcnt lgkmcnt(4)")
            mm(st - 1)
    e("s_waitcnt lgkmcnt(0)")
    mm(7)
    nop(12)
    for i in range(8): V("cvt_pk_bf16_f32", P_OF + i, v(P_ACC + 2 * i), v(P_ACC + 2 * i + 1))
    e("ds_write_b128 v%d, %s" % (PV_OW, vr(P_OF, 4)))
    e("ds_write_b128 v%d, %s offset:16" % (PV_OW, vr(P_OF + 4, 4)))
    e("s_branch L_fin")
    lab("L_op_idle")
    e("s_cmp_eq_u32 %s, 7" % WV)
    e("s_cbranch_scc0 L_nopoll2")
    flag_store(sF2)
    poll("L_poll2", sF2P)
    lab("L_nopoll2")
    e("s_barrier")
    o_loads()
    for st in range(4):
        e("s_waitcnt vmcnt(%d)" % (6 - 2 * st))
        e("s_barrier")
    c("WG 0 advances the epoch word (every WG has read it: all of them have published)")
    e("s_cmp_eq_u32 s2, 0")
    e("s_cbranch_scc0 L_fin")
    e("s_cmp_eq_u32 %s, 7" % WV)
    e("s_cbranch_scc0 L_fin")
    flag_store("0")
    lab("L_fin")
    e("s_waitcnt lgkmcnt(0)")
    e("s_barrier")
    stamp("opdone")
    e("ds_read_b128 v[32:35], v%d" % PV_FR)
    e("s_waitcnt lgkmcnt(0)")
    e("buffer_store_dwordx4 v[32:35], v%d, %s, %s offen" % (PV_FS, R_OUT, sOUT))

def dump_lds(base, nbytes, wsoff):
    t = VT + 10
    e("s_waitcnt lgkmcnt(0)"); e("s_barrier")
    V("lshlrev_b32", t, 4, v(0))
    sshl(T0, "s2", 18); sadd(T0, T0, WS_DBG + wsoff)
    for o in range(0, nbytes, 8192):
        V("add_u32", t + 1, base + o, v(t))
        e("ds_read_b128 %s, v%d" % (vr(t + 2, 4), t + 1))
        e("s_waitcnt lgkmcnt(0)")
        e("buffer_store_dwordx4 %s, v%d, %s, %s offen" % (vr(t + 2, 4), t, R_WS, T0))
        sadd(T0, T0, 8192)
        e("s_waitcnt vmcnt(0)")
    e("s_barrier")

def write_stamps():
    t = VT
    if OPT["echo"]:
        a, b, m = OPT["echo"].split(",")
        e("s_cmp_eq_u32 %s, 0" % WV); e("s_cbranch_scc0 L_end")
        e("s_cmp_eq_u32 s2, %d" % OPT["echowg"]); e("s_cbranch_scc0 L_end")
        e("s_waitcnt vmcnt(0)")
        stamp("end")
        if a == "start": e("s_mov_b32 s80, s100")
        e("s_sub_u32 s82, s81, s80"); e("s_mul_i32 s82, s82, %s" % m); e("s_min_u32 s82, s82, 20000")
        e("s_memrealtime s[84:85]"); e("s_waitcnt lgkmcnt(0)")
        lab("L_echo")
        e("s_memrealtime s[86:87]"); e("s_waitcnt lgkmcnt(0)")
        e("s_sub_u32 s83, s86, s84"); e("s_cmp_lt_u32 s83, s82"); e("s_cbranch_scc1 L_echo")
    if OPT["stamps"]:
        e("s_waitcnt vmcnt(0)")
        stamp("end")
        sshl(T0, "s2", 3); sadd(T0, T0, WV); sshl(T0, T0, 7); sadd(T0, T0, WS_ST)
        e("s_mov_b64 exec, 1")
        V("mov_b32", t, 0)
        for i in range(len(stamp_names)):
            V("mov_b32", t + 1, sr(S_ST + i))
            e("buffer_store_dword v%d, v%d, %s, %s offen offset:%d" % (t + 1, t, R_WS, T0, 4 * i))
            e("s_nop 1")
        V("mov_b32", t + 1, "s100")
        e("buffer_store_dword v%d, v%d, %s, %s offen offset:124" % (t + 1, t, R_WS, T0))
        e("s_memrealtime s[98:99]")
        e("s_waitcnt lgkmcnt(0)")
        V("mov_b32", t + 2, "s98")
        e("buffer_store_dword v%d, v%d, %s, %s offen offset:120" % (t + 2, t, R_WS, T0))
        e("s_mov_b64 exec, -1")
        L.insert(0, "; stamps: " + ",".join(stamp_names))
    if OPT["dbgspan"]:
        e("s_cmp_eq_u32 %s, 0" % WV); e("s_cbranch_scc0 L_end")
        sand(T0, "s2", 63); e("s_cmp_eq_u32 %s, 5" % T0); e("s_cbranch_scc0 L_end")
        e("s_waitcnt vmcnt(0)")
        e("s_memrealtime s[96:97]"); e("s_memtime s[94:95]")
        srd(R_X, S_DBG, 256)
        sshr(T0, "s2", 6); sshl(T0, T0, 4)
        e("s_waitcnt lgkmcnt(0)")
        e("s_mov_b64 exec, 1")
        V("mov_b32", t, 0)
        e("s_sub_u32 s94, s94, s98"); e("s_sub_u32 s96, s96, s100")
        V("mov_b32", t + 2, "s100"); V("mov_b32", t + 3, "s96"); V("mov_b32", t + 4, "s94"); V("mov_b32", t + 5, 0)
        e("buffer_store_dwordx4 %s, v%d, %s, %s offen" % (vr(t + 2, 4), t, R_X, T0))

def main():
    header()
    setup()
    loader_path()
    compute_path()
    lab("L_gemm_done")
    e("s_waitcnt lgkmcnt(0)")
    e("s_barrier")
    stamp("K2")
    if OPT["dump"]: dump_lds(L_KF, 24576, 0)
    conv()
    kv_early()
    conv_epilogue()
    e("s_waitcnt vmcnt(0)")
    e("s_barrier")
    stamp("S")
    kv_late()
    attn_main()
    combine()
    attn_check_and_slow()
    attn_publish()
    tail()
    write_stamps()
    e("s_endpgm")
    slow_path()
    footer(256)
    open(sys.argv[1], "w").write("\n".join(L) + "\n")

main()
```

```python
import sys, struct, math

NAME = "concat_heads__ssm_conv_s4__softmax_full_mha__prompt"
OPT = dict(ypol="", opol="", abl="", echo="", echowg=0, stamps=0, dump=0, forceslow=0, dbgspan=0, flip=28, pf=1, rot=6, npre=170,
           yt=[15, 19, 23, 27], wt=[9, 11, 13, 17, 21, 25, 28, 29])
for a in sys.argv[2:]:
    k, v = a.split("=")
    OPT[k] = int(v) if v.lstrip("-").isdigit() else v

L = []
SINK = [L]
def e(s): SINK[0].append("    " + s)
def lab(s): SINK[0].append(s + ":")
def c(s): SINK[0].append("    ; " + s)
def f2u(x): return struct.unpack("<I", struct.pack("<f", x))[0]
def fl(x): return "0x%08x" % f2u(x)
def vr(a, n=1): return "v%d" % a if n == 1 else "v[%d:%d]" % (a, a + n - 1)
def sr(a, n=1): return "s%d" % a if n == 1 else "s[%d:%d]" % (a, a + n - 1)
def nop(n):
    while n > 0:
        k = min(n, 16); e("s_nop %d" % (k - 1)); n -= k
def capture(fn, *a):
    old = SINK[0]; out = []; SINK[0] = out; fn(*a); SINK[0] = old; return out

WS_F1 = 0x1000
WS_F2 = 0xa000
WS_F0 = 0x20000
WS_Q, WS_K, WS_V, WS_O, WS_U2 = 0x100000, 0x300000, 0x500000, 0x700000, 0x900000
WS_ST = 0xc00000
WS_DBG = 0x1000000
WS_SIZE = 0x10000000
LDS_TOTAL = 163840
BLK = 16512
L_TB = 98304
L_TA = 0
L_FL = 146240
L_KF = 146304
L_UP = 154624
L_Z = 71360
ZS = 9360
L_WO = 0
L_O = 65536
L_SC = 65536
L_OT = 131072
S_U, S_ARE, S_AIM, S_BRE, S_BIM, S_CRE, S_CIM, S_LDT = 8, 10, 12, 14, 16, 18, 20, 22
S_DSK, S_X, S_W, S_WO, S_OUT, S_DBG, S_WS = 24, 26, 28, 30, 32, 34, 36
R_X, R_W, R_WS, R_U, R_OUT, R_WO = "s[40:43]", "s[44:47]", "s[48:51]", "s[52:55]", "s[56:59]", "s[60:63]"
XQ, I5, WV, TAG, LD2, DS2, HH, JJ, C0 = "s64", "s65", "s66", "s67", "s68", "s69", "s70", "s71", "s72"
T0, T1, T2, T3, T4, T5, CNT = "s73", "s74", "s75", "s76", "s77", "s78", "s79"
CQ, CL, W10, GT, GQ = "s38", "s39", "s3", "s6", "s7"
sQKV, sF1, sF1P, sYS, sWO, sOST, sOLD, sOUT, sF2, sF2P, sHB, sQL = ["s%d" % i for i in range(8, 20)]
S_ST = 80
stamp_names = []
def stamp(name):
    if OPT["echo"]:
        a, b, m = OPT["echo"].split(",")
        if name in (a, b):
            e("s_waitcnt lgkmcnt(0)")
            e("s_memrealtime s[98:99]")
            e("s_waitcnt lgkmcnt(0)")
            e("s_mov_b32 %s, s98" % ("s80" if name == a else "s81"))
    if OPT["stamps"]:
        if name not in stamp_names: stamp_names.append(name)
        assert len(stamp_names) <= 18
        e("s_waitcnt lgkmcnt(0)")
        e("s_memrealtime s[98:99]" if OPT["stamps"] == 2 else "s_memtime s[98:99]")
        e("s_waitcnt lgkmcnt(0)")
        e("s_mov_b32 %s, s98" % sr(S_ST + stamp_names.index(name)))
def srd(r, base, size):
    r = int(r[2:r.index(":")])
    e("s_mov_b32 %s, %s" % (sr(r), sr(base)))
    e("s_and_b32 %s, %s, 0xffff" % (sr(r + 1), sr(base + 1)))
    e("s_mov_b32 %s, 0x%x" % (sr(r + 2), size))
    e("s_mov_b32 %s, 0x00020000" % sr(r + 3))
def csel(dst, a, b):
    e("s_mov_b32 %s, %d" % (dst, b))
    e("s_cselect_b32 %s, %d, %s" % (dst, a, dst))
def S(op, d, a, b): e("s_%s %s, %s, %s" % (op, d, a, b if isinstance(b, str) else ("0x%x" % b if b > 64 else str(b))))
def sadd(d, a, b): S("add_u32", d, a, b)
def sshl(d, a, b): S("lshl_b32", d, a, b)
def sshr(d, a, b): S("lshr_b32", d, a, b)
def sand(d, a, b): S("and_b32", d, a, b)
def smul(d, a, b): S("mul_i32", d, a, b)
def V(op, d, *a): e("v_%s v%d, %s" % (op, d, ", ".join(("v%d" % x[0] if isinstance(x, tuple) else (x if isinstance(x, str) else ("0x%x" % x if x > 64 else str(x)))) for x in a)))
def v(x): return (x,)
LOG2E = math.log2(math.e)

V_L, V_L16, V_PA = 1, 2, 3
V_PAR = 4
V_Y = 10
VT = 14
(PV_CA, PV_CB, PV_ZW, PV_ZR, _z1, _z2, _z3, PV_KA, PV_V0, PV_V1, PV_YA, PV_WA, PV_CW, PV_CR,
 PV_OR, PV_OW, PV_WF, PV_FR, PV_FS, PV_WS) = range(224, 244)
PV_QS, PV_VS, PV_TW = 244, 245, 246
PV_GA, PV_GB, PV_GW, PV_GD, PV_US = 244, 245, 246, 247, 248

def header():
    L.append("; fused S4 long-conv (part A) + multi-head attention (part B): one launch, 256 WGs x 8 waves")
    L.append("; @launch grid=(256,1,1) block=(512,1,1) lds=%d" % LDS_TOTAL)
    L.append('.amdgcn_target "amdgcn-amd-amdhsa--gfx950"')
    L.append(".text")
    L.append(".globl %s_kernel" % NAME)
    L.append(".p2align 8")
    L.append(".type %s_kernel,@function" % NAME)
    L.append("%s_kernel:" % NAME)
def footer(nv):
    lab("L_end")
    e("s_endpgm")
    L.append('.section .rodata,"a"')
    L.append(".p2align 6")
    L.append(".amdhsa_kernel %s_kernel" % NAME)
    L.append("  .amdhsa_next_free_vgpr %d" % nv)
    L.append("  .amdhsa_next_free_sgpr 102")
    L.append("  .amdhsa_accum_offset %d" % nv)
    L.append("  .amdhsa_group_segment_fixed_size 0")
    L.append("  .amdhsa_kernarg_size 120")
    L.append("  .amdhsa_user_sgpr_count 2")
    L.append("  .amdhsa_user_sgpr_kernarg_segment_ptr 1")
    L.append("  .amdhsa_system_sgpr_workgroup_id_x 1")
    L.append(".end_amdhsa_kernel")

def setup():
    c("---- setup ----")
    e("s_cmp_ge_u32 s2, 256")
    e("s_cbranch_scc1 L_end")
    e("s_load_dwordx8 s[24:31], s[0:1], 64")
    e("s_load_dwordx16 s[8:23], s[0:1], 0")
    e("s_load_dwordx4 s[32:35], s[0:1], 96")
    e("s_load_dwordx2 s[36:37], s[0:1], 112")
    if OPT["stamps"] or OPT["dbgspan"] or OPT["echo"]: e("s_memrealtime s[100:101]")
    if OPT["dbgspan"]: e("s_memtime s[98:99]")
    V("and_b32", V_L, 63, v(0))
    V("lshrrev_b32", VT, 6, v(0))
    V("lshlrev_b32", V_L16, 4, v(V_L))
    V("mov_b32", PV_FS, 0)
    e("v_readfirstlane_b32 %s, v%d" % (WV, VT))
    sand(XQ, "s2", 7)
    sshr(I5, "s2", 3)
    sand(GT, XQ, 3); sshl(GT, GT, 3); sshr(JJ, I5, 2); sadd(GT, GT, JJ)
    sand(GQ, XQ, 4); sand(T0, I5, 3); sadd(GQ, GQ, T0)
    sshl(HH, XQ, 2); sadd(HH, HH, T0)
    sshl(C0, XQ, 5); sadd(C0, C0, I5); sshl(C0, C0, 1)
    sshl(W10, WV, 10)
    e("s_cmp_ge_u32 %s, 4" % WV)
    e("s_cbranch_scc0 L_compute")

def scalar_loads():
    sshl(T3, C0, 1)
    e("s_load_dword %s, %s, 0" % (TAG, sr(S_WS, 2)))
    e("s_load_dword %s, %s, %s" % (LD2, sr(S_LDT, 2), T3))
    e("s_load_dword %s, %s, %s" % (DS2, sr(S_DSK, 2), T3))

def lane_terms():
    t = VT
    hf, b7, p4, r4, g1, l15, l8 = t, t + 1, t + 2, t + 3, t + 4, t + 5, t + 6
    V("lshrrev_b32", hf, 5, v(V_L)); V("and_b32", b7, 7, v(V_L)); V("bfe_u32", p4, v(V_L), 3, 2)
    V("bfe_u32", r4, v(V_L), 2, 2); V("bfe_u32", g1, v(V_L), 4, 1); V("and_b32", l15, 15, v(V_L)); V("lshrrev_b32", l8, 3, v(V_L))
    return hf, b7, p4, r4, g1, l15, l8

def precompute_conv():
    t = VT
    c("---- conv addresses ----")
    sand(CQ, WV, 1); e("s_sub_u32 %s, 3, %s" % (T0, CQ))
    e("s_cmp_ge_u32 %s, 4" % WV)
    e("s_cselect_b32 %s, %s, %s" % (CQ, T0, CQ))
    e("s_bfe_u32 %s, %s, 0x10001" % (CL, WV))
    hf, b7, p4, r4, g1, l15, l8 = lane_terms()
    x, y, z = t + 8, t + 9, t + 10
    e("s_cmp_eq_u32 %s, 1" % CL)
    csel(T0, L_KF + 4160 + 96, L_KF + 96); csel(T1, L_UP + 4608 + 16, L_UP + 16); csel(T2, L_Z + 4 * ZS + 144, L_Z + 144)
    V("and_b32", x, 3, v(V_L)); V("lshl_add_u32", x, v(g1), 2, v(x)); V("lshl_add_u32", y, v(hf), 3, v(r4))
    V("sub_u32", x, v(x), v(y)); V("lshlrev_b32", x, 3, v(x)); V("add_u32", PV_CA, T0, v(x))
    V("mul_u32_u24", x, 1152, v(p4)); V("add_u32", z, v(b7), v(hf)); V("lshl_add_u32", x, v(z), 4, v(x))
    sshl(T3, CQ, 8); sadd(T1, T1, T3); V("add_u32", PV_CB, T1, v(x))
    smul(T3, CQ, 2304); sadd(T2, T2, T3)
    V("mul_u32_u24", x, ZS, v(p4)); V("mul_u32_u24", z, 144, v(b7)); V("lshl_add_u32", z, v(hf), 4, v(z)); V("add3_u32", PV_ZW, v(x), v(z), T2)
    sshl(sF1, GQ, 5); sadd(sF1, sF1, GT); sshl(sF1, sF1, 7); sadd(sF1, sF1, WS_F1)
    sshl(T0, XQ, 12); sadd(sF1P, T0, WS_F1); sadd(sF2P, T0, WS_F2)
    sshl(sHB, HH, 16)

def precompute():
    t = VT
    c("SPLIT")
    e("s_cmp_ge_u32 %s, 4" % WV)
    e("s_cselect_b32 %s, 1024, 0" % T0)
    csel(T1, 8192 + 1040, 8192)
    hf, b7, p4, r4, g1, l15, l8 = lane_terms()
    x, y, z = t + 8, t + 9, t + 10
    V("add_u32", PV_KA, T0, v(V_L16))
    V("lshlrev_b32", x, 4, v(l15)); V("lshl_add_u32", x, v(hf), 8, v(x)); V("add_u32", y, 512, v(x)); V("mov_b32", z, 1024)
    e("v_cmp_eq_u32 vcc, 0, v%d" % g1)
    V("lshlrev_b32", PV_YA, 11, v(V_L))
    V("add_u32", PV_WS, W10, v(V_L16))
    V("cndmask_b32", PV_V0, v(z), v(x), "vcc"); V("cndmask_b32", PV_V1, v(z), v(y), "vcc")
    V("add_u32", PV_V0, T1, v(PV_V0)); V("add_u32", PV_V1, T1, v(PV_V1))
    V("lshlrev_b32", x, 2, v(g1)); V("xor_b32", x, v(x), v(b7)); V("lshlrev_b32", x, 4, v(x)); V("lshl_add_u32", PV_WA, v(l8), 10, v(x))
    c("SPLIT")
    sshl(T0, WV, 8); sadd(T0, T0, 32)
    for p in range(4):
        V("add_u32", x, T0, v(V_L))
        if p: V("subrev_u32", x, p, v(x))
        V("lshrrev_b32", z, 5, v(x)); V("lshlrev_b32", x, 2, v(x)); V("lshl_add_u32", x, v(z), 4, v(x))
        V("add_u32", PV_ZR + p, L_Z + p * ZS, v(x))
    c("SPLIT")
    S("xor_b32", T0, WV, 4); smul(T0, T0, 3072); sadd(T0, T0, L_SC); smul(T1, WV, 3072); sadd(T1, T1, L_SC)
    V("add_u32", PV_CW, T0, v(V_L16)); V("add_u32", PV_CR, T1, v(V_L16))
    c("SPLIT")
    V("lshl_add_u32", y, v(hf), 3, v(r4)); V("lshlrev_b32", PV_WF, 7, v(y))
    V("and_b32", x, 1, v(V_L)); V("lshl_or_b32", x, v(x), 1, v(g1))
    sand(T0, WV, 2); sshl(T0, T0, 1); V("or_b32", x, T0, v(x))
    V("bfe_u32", z, v(V_L), 3, 1); V("lshlrev_b32", z, 2, v(z)); V("xor_b32", x, v(x), v(z))
    V("lshl_add_u32", PV_WF, v(x), 4, v(PV_WF)); V("bfe_u32", z, v(V_L), 1, 1); V("lshl_add_u32", PV_WF, v(z), 3, v(PV_WF))
    sand(T1, WV, 1); sshl(T2, T1, 10); sadd(T2, T2, L_O); V("add_u32", PV_OR, T2, v(V_L16))
    smul(T1, T1, 4608); sshl(T0, T0, 4); sadd(T0, T0, T1); sadd(T0, T0, L_OT)
    V("and_b32", x, 31, v(V_L)); V("mul_u32_u24", x, 144, v(x)); V("lshl_add_u32", x, v(hf), 5, v(x)); V("add_u32", PV_OW, T0, v(x))
    smul(T0, WV, 1152); sadd(T0, T0, L_OT)
    V("lshlrev_b32", x, 4, v(b7)); V("mul_u32_u24", z, 144, v(l8)); V("add3_u32", PV_FR, v(z), v(x), T0); V("lshl_add_u32", PV_FS, v(l8), 11, v(x))
    c("SPLIT")
    sshl(sF2, JJ, 5); sadd(sF2, sF2, HH); sshl(sF2, sF2, 7); sadd(sF2, sF2, WS_F2)
    sshl(T0, WV, 19); sshl(T1, C0, 1); sadd(sYS, T0, T1)
    sand(T0, I5, 7); sshl(T0, T0, 7); sshl(T1, WV, 13); sadd(sWO, T0, T1)
    sshl(T1, JJ, 13); sadd(T1, T1, sHB); sand(T2, WV, 3); sshl(T2, T2, 11); sadd(T1, T1, T2)
    sadd(sQL, T1, WS_Q)
    sshr(T2, WV, 2); sshl(T2, T2, 10); sadd(T1, T1, T2); sadd(sOST, T1, WS_O)
    sshr(T1, WV, 1); sshl(T1, T1, 6); sshl(T2, XQ, 3); sadd(T1, T1, T2); sshr(T3, I5, 3); sshl(T2, T3, 1); sadd(T1, T1, T2)
    sand(T2, WV, 1); sadd(T1, T1, T2); sshl(T1, T1, 10); sadd(sOLD, T1, WS_O)
    sshl(T1, XQ, 2); sadd(T1, T1, T3); sshl(T1, T1, 3); sadd(T1, T1, WV); sshl(T1, T1, 14); sadd(T1, T1, T0); sadd(sOUT, T1, 1024)

G_VX0, G_VX1, G_VWQ, G_VWK, G_VWV, G_PL = 32, 33, 34, 35, 36, 39
G_UA, G_US = 30, 31
G_UL, U2R = 160, 80
G_XA, G_WA, G_WB = 32, 40, 43
G_ACC = [48, 64, 80]
G_XF, G_W0F, G_W1F, G_VF = 96, 112, 128, 144
KB = 48
KR = 192

def loader_addr():
    t = VT
    c("loader DMA voffsets (wave v=w-4 covers rows 16v..16v+15 of each chunk)")
    V("lshrrev_b32", t, 3, v(V_L)); V("and_b32", t + 1, 7, v(V_L)); V("bfe_u32", t + 2, v(V_L), 4, 1)
    sand(T0, WV, 3); sshl(T4, T0, 11); sshl(T0, T0, 4)
    V("add_u32", t + 3, T0, v(t))
    V("bfe_u32", t + 4, v(t + 3), 1, 3); V("xor_b32", t + 4, v(t + 4), v(t + 1)); V("lshlrev_b32", t + 4, 4, v(t + 4))
    sshl(T1, GT, 16)
    V("lshl_add_u32", G_VX0, v(t + 3), 10, v(t + 4)); V("add_u32", G_VX0, T1, v(G_VX0)); V("xor_b32", G_VX1, 0x2040, v(G_VX0))
    V("mul_u32_u24", t + 5, 3072, v(t + 3)); sshl(T1, GQ, 7); V("add_u32", t + 5, T1, v(t + 5))
    V("lshlrev_b32", t + 6, 1, v(t + 2)); V("xor_b32", t + 6, v(t + 6), v(t + 1)); V("lshl_add_u32", G_VWQ, v(t + 6), 4, v(t + 5))
    V("xor_b32", t + 6, 4, v(t + 6)); V("lshl_add_u32", G_VWK, v(t + 6), 4, v(t + 5)); V("add_u32", G_VWK, 1024, v(G_VWK))
    V("lshlrev_b32", t + 6, 2, v(t + 2)); V("xor_b32", t + 6, v(t + 6), v(t + 1)); V("lshl_add_u32", G_VWV, v(t + 6), 4, v(t + 5)); V("add_u32", G_VWV, 2048, v(G_VWV))
    r = OPT["rot"]
    if r == 1: sshl(T5, GQ, 1); sadd(T5, T5, GT)
    else:
        sadd(T5, GQ, GT)
        if r == 3: sshl(T5, T5, 2)
        if r == 5: sand(T5, T5, 1)
        if r == 6: sshl(T5, T5, 1)

I0, I1, I2, I3 = "s20", "s21", "s22", "s23"
def issue_chunk(ci):
    base = (ci % 3) * 32768
    sadd(I0, T5, ci); sand(I0, I0, 7)
    sadd("m0", T4, base); sshl(I1, I0, 7)
    e("buffer_load_dwordx4 v%d, %s, %s offen lds" % (G_VX0, R_X, I1))
    sadd("m0", T4, base + 1024); smul(I2, I0, 196608)
    e("buffer_load_dwordx4 v%d, %s, %s offen lds" % (G_VX1, R_X, I1))
    for g, va in enumerate((G_VWQ, G_VWK, G_VWV)):
        for h in range(2):
            sadd("m0", T4, base + (g + 1) * 8192 + h * 1024)
            if g == 0 and h == 0: sadd(I3, I2, 24576)
            else: e("s_nop 0")
            e("buffer_load_dwordx4 v%d, %s, %s offen lds" % (va, R_W, I3 if h else I2))

def pi_tok(dst, src, t):
    V("and_b32", dst, 0x13, v(src)); V("bfe_u32", t, v(src), 2, 1); V("lshl_or_b32", dst, v(t), 3, v(dst))
    V("bfe_u32", t, v(src), 3, 1); V("lshl_or_b32", dst, v(t), 2, v(dst))

def gemm_read_addr():
    t = VT
    c("GEMM LDS fragment read addresses, publish addresses")
    pi_tok(t, V_L, t + 1)
    V("lshrrev_b32", t + 1, 5, v(V_L))
    V("lshlrev_b32", PV_QS, 4, v(t)); V("lshl_add_u32", PV_QS, v(t + 1), 9, v(PV_QS))
    sand(T0, WV, 1); sshl(T1, T0, 5); V("add_u32", t, T1, v(t))
    V("bfe_u32", t + 2, v(t), 1, 3); V("xor_b32", t + 2, v(t + 2), v(t + 1)); V("lshlrev_b32", t + 2, 4, v(t + 2))
    V("lshl_add_u32", G_XA, v(t), 7, v(t + 2))
    for s in range(1, 4): V("xor_b32", G_XA + s, 32 * s, v(G_XA))
    V("bfe_u32", t + 2, v(V_L), 2, 2); V("lshl_add_u32", t + 3, v(t + 1), 3, v(t + 2)); V("lshlrev_b32", t + 3, 7, v(t + 3))
    V("bfe_u32", t + 4, v(V_L), 4, 1); V("bfe_u32", t + 5, v(V_L), 3, 1); V("and_b32", t + 6, 1, v(V_L)); V("bfe_u32", t + 7, v(V_L), 1, 1)
    sand(T2, WV, 2); sshl(T1, T2, 1)
    V("or_b32", t + 8, T1, v(t + 6)); V("lshl_or_b32", t + 9, v(t + 4), 1, v(t + 5)); V("lshlrev_b32", t + 9, 1, v(t + 9))
    V("xor_b32", t + 8, v(t + 8), v(t + 9)); V("lshl_add_u32", t + 8, v(t + 8), 4, v(t + 3)); V("lshl_add_u32", t + 8, v(t + 7), 3, v(t + 8))
    V("lshl_add_u32", G_WA, v(t + 4), 13, v(t + 8)); V("add_u32", G_WA, 8192, v(G_WA)); V("xor_b32", G_WA + 1, 32, v(G_WA))
    V("lshl_or_b32", t + 8, v(t + 4), 1, v(t + 7)); V("or_b32", t + 8, T1, v(t + 8)); V("lshlrev_b32", t + 9, 2, v(t + 5))
    V("xor_b32", t + 8, v(t + 8), v(t + 9)); V("lshl_add_u32", t + 8, v(t + 8), 4, v(t + 3)); V("lshl_add_u32", t + 8, v(t + 6), 3, v(t + 8))
    V("add_u32", G_WA + 2, 24576, v(t + 8))
    for s in range(4): V("add_u32", G_XA + 4 + s, 0x10000, v(G_XA + s))
    for s in range(3): V("add_u32", G_WB + s, 0x10000, v(G_WA + s))
    V("and_b32", t + 2, 15, v(V_L)); V("lshlrev_b32", t + 2, 4, v(t + 2)); V("lshl_add_u32", t + 2, v(t + 1), 8, v(t + 2)); V("lshl_add_u32", PV_VS, v(t + 4), 16, v(t + 2))
    sshl(T1, GQ, 2); sadd(T1, T1, T2); sshl(T1, T1, 6); sshl(T3, GT, 1); sadd(T1, T1, T3); sadd(T1, T1, T0); sshl(sQKV, T1, 10)
    sshl(T0, T0, 8)
    e("s_bitcmp1_b32 %s, 1" % WV)
    csel(T1, L_TA + 14256, L_TA); csel(T2, L_TB + 16896, L_TB)
    sadd(T1, T1, T0); sadd(T2, T2, T0)
    V("lshl_add_u32", PV_TW, v(V_L), 2, T1); V("lshl_add_u32", 46, v(V_L), 2, T2)

def u_coop_loads():
    t = VT
    e("s_bfe_u32 %s, %s, 0x10001" % (T1, WV)); sand(T0, WV, 1)
    V("and_b32", t, 7, v(V_L)); V("bfe_u32", t + 1, v(V_L), 3, 2)
    sshl(T0, T0, 2); V("add_u32", t + 1, T0, v(t + 1))
    sshl(T2, I5, 1); sadd(T1, T1, T2); sshl(T1, T1, 3); V("add_u32", t, T1, v(t))
    V("lshlrev_b32", t + 2, 4, v(t + 1)); V("lshl_add_u32", G_UA, v(t), 12, v(t + 2))
    V("lshlrev_b32", t, 4, v(t)); V("lshl_add_u32", G_US, v(t + 1), 15, v(t))
    sshl(T0, XQ, 7)
    e("s_mov_b32 exec_hi, 0")
    for k in range(4):
        e("buffer_load_dwordx4 %s, v%d, %s, %s offen offset:%d" % (vr(G_UL + 4 * k, 4), G_UA, R_U, T0, 1024 * k))
    e("s_mov_b32 exec_hi, -1")

def u_coop_stores():
    D = 224
    for i in range(4):
        for k in range(4): V("mov_b32", D + 4 * i + k, v(G_UL + 4 * k + i))
    sshl(I0, XQ, 18); sadd(I0, I0, WS_U2)
    e("s_mov_b32 exec_hi, 0")
    for i in range(4):
        e("buffer_store_dwordx4 %s, v%d, %s, %s offen sc1" % (vr(D + 4 * i, 4), G_US, R_WS, I0))
        if i < 3: sadd(I0, I0, 8192)
    e("s_mov_b32 exec_hi, -1")

def flag_store(soff, t=VT):
    V("mov_b32", t, 0); V("mov_b32", t + 1, TAG)
    e("s_mov_b64 exec, 1")
    e("buffer_store_dword v%d, v%d, %s, %s offen sc1" % (t + 1, t, R_WS, soff))
    e("s_mov_b64 exec, -1")

def poll(label, soff, first_issued=None, t=VT, nwait=0):
    V("lshlrev_b32", t, 7, v(V_L))
    e("s_mov_b32 %s, 0" % CNT)
    e("s_mov_b32 exec_hi, 0")
    r = t + 1
    if first_issued is not None:
        r = first_issued
        e("s_waitcnt vmcnt(%d)" % nwait)
        e("s_branch %s_chk" % label)
    lab(label)
    e("buffer_load_dword v%d, v%d, %s, %s offen sc1" % (r, t, R_WS, soff))
    sadd(CNT, CNT, 1)
    e("s_waitcnt vmcnt(0)")
    lab(label + "_chk")
    e("v_cmp_ne_u32 vcc, %s, v%d" % (TAG, r))
    e("s_cmp_gt_u32 %s, 0x4000" % CNT)
    e("s_cbranch_scc1 %s_done" % label)
    e("s_cmp_lg_u64 vcc, 0")
    e("s_cbranch_scc1 %s" % label)
    lab(label + "_done")
    e("s_mov_b32 exec_hi, -1")

def kgen_addr():
    t = VT
    c("SPLIT")
    V("bfe_u32", t, v(V_L), 4, 1); V("bfe_u32", t + 1, v(V_L), 2, 1); V("lshl_or_b32", t, v(t), 1, v(t + 1))
    V("bfe_u32", t + 1, v(V_L), 3, 1); V("and_b32", t + 2, 3, v(V_L)); V("lshl_or_b32", t + 1, v(t + 1), 2, v(t + 2))
    e("v_cmp_eq_u32 s[4:5], 0, v%d" % t)
    e("v_cmp_eq_u32 vcc, 1, v%d" % t)
    e("s_bitcmp1_b32 %s, 0" % WV)
    csel(T0, 0x11100000, 0x76543210); csel(T1, 0x11100000, 0x43222100); csel(T2, 0x11100000, 0x22111000); csel(T3, 0x19171513, 0x100d0800)
    V("mov_b32", t + 2, T2); V("mov_b32", t + 3, T1); V("cndmask_b32", t + 2, v(t + 2), v(t + 3), "vcc")
    V("mov_b32", t + 3, T0); V("cndmask_b32", t + 2, v(t + 2), v(t + 3), "s[4:5]")
    V("lshlrev_b32", t + 1, 2, v(t + 1)); V("bfe_u32", t + 2, v(t + 2), v(t + 1), 4)
    V("lshlrev_b32", t, 3, v(t)); V("bfe_u32", t, T3, v(t), 8); V("add_u32", t, v(t), v(t + 2))
    V("lshrrev_b32", t + 1, 5, v(V_L)); V("and_b32", t + 2, 31, v(V_L))
    e("s_cselect_b32 %s, 2048, 0" % T3)
    e("s_cselect_b32 %s, 0, -1" % CNT)
    e("s_bitcmp1_b32 %s, 1" % WV)
    csel(T0, L_TA + 14256, L_TA); csel(T1, L_TB + 16896, L_TB); csel(T2, L_KF + 4160 + 64, L_KF + 64)
    sadd(T2, T2, T3)
    V("mul_u32_u24", t, 528, v(t)); V("lshl_add_u32", t + 3, v(t + 1), 4, T0); V("add_u32", PV_GA, v(t), v(t + 3))
    V("mul_u32_u24", t, 528, v(t + 2)); V("lshl_add_u32", t + 3, v(t + 1), 4, T1); V("add_u32", PV_GB, v(t), v(t + 3))
    V("lshl_add_u32", t, v(t + 1), 9, T2); V("lshl_add_u32", PV_GW, v(t + 2), 4, v(t))
    e("s_waitcnt lgkmcnt(0)")
    sadd(TAG, TAG, 1)
    e("s_bitcmp1_b32 %s, 1" % WV)
    e("s_cselect_b32 %s, 0, 16" % T0)
    sshl(T0, DS2, T0); sand(T0, T0, 0xffff0000); sand(T0, T0, CNT)
    e("v_cmp_eq_u32 vcc, 0, v%d" % V_L)
    V("mov_b32", PV_GD, T0)
    sand(T1, WV, 3); sshl(T1, T1, 8); sadd(T1, T1, L_UP + 128)
    V("cndmask_b32", PV_GD, 0, v(PV_GD), "vcc")
    V("lshl_add_u32", PV_US, v(V_L), 1, T1)

def pads():
    t = VT
    c("SPLIT")
    for i in range(4): V("mov_b32", t + 4 + i, 0)
    V("lshrrev_b32", t, 3, v(V_L)); V("mul_u32_u24", t, 1152, v(t)); V("and_b32", t + 1, 7, v(V_L)); V("lshl_add_u32", t, v(t + 1), 4, v(t)); V("add_u32", t, L_UP, v(t))
    V("bfe_u32", t + 1, v(V_L), 2, 1); V("mul_u32_u24", t + 1, 4160, v(t + 1)); V("and_b32", t + 2, 3, v(V_L)); V("lshl_add_u32", t + 1, v(t + 2), 4, v(t + 1)); V("add_u32", t + 1, L_KF, v(t + 1))
    V("lshlrev_b32", t + 2, 4, v(t + 2)); V("add_u32", t + 2, L_FL, v(t + 2))
    for k in range(3): e("ds_write_b128 v%d, %s" % (t + k, vr(t + 4, 4)))

def loader_path():
    c("======== loader waves ========")
    loader_addr()
    e("s_waitcnt lgkmcnt(0)")
    stamp("karg")
    srd(R_X, S_X, 2048 * 1024); srd(R_W, S_W, 512 * 3072)
    scalar_loads()
    issue_chunk(0)
    srd(R_WS, S_WS, WS_SIZE); srd(R_OUT, S_OUT, 2048 * 2048); srd(R_WO, S_WO, 512 * 1024)
    late = capture(lambda: (precompute_conv(), precompute(), kgen_addr(), pads()))
    def upto(n):
        while n < len(late) and "SPLIT" not in late[n]: n += 1
        SINK[0].extend(late[:n]); del late[:n]
    upto(OPT["npre"])
    issue_chunk(1)
    waits = [8, 8, 8, 8, 8, 8, 9, 1]
    for ci in range(8):
        c("loader chunk %d" % ci)
        e("s_waitcnt vmcnt(%d)" % waits[ci])
        e("s_barrier")
        if ci in (0, 7): stamp("ch%d" % ci)
        if ci + 2 < 8: issue_chunk(ci + 2)
        if ci == 5:
            sshl(T5, XQ, 12); sadd(T5, T5, WS_F0)
            V("lshlrev_b32", 42, 7, v(V_L))
            e("s_mov_b32 exec_hi, 0")
            e("buffer_load_dword v%d, v42, %s, %s offen sc1" % (G_PL, R_WS, T5))
            e("s_mov_b32 exec_hi, -1")
            upto(len(late) // 2)
        if ci == 6: upto(9999)
    poll("L_poll0", T5, first_issued=G_PL, nwait=0)
    c("u of this WG's channel pair (transposed by the group)")
    sshl(T0, XQ, 5); sadd(T0, T0, I5); sshl(T0, T0, 13); sadd(T0, T0, T4); sadd(T0, T0, WS_U2)
    e("buffer_load_dwordx4 %s, v%d, %s, %s offen sc1" % (vr(U2R, 4), V_L16, R_WS, T0))
    e("buffer_load_dwordx4 %s, v%d, %s, %s offen offset:1024 sc1" % (vr(U2R + 4, 4), V_L16, R_WS, T0))
    e("s_barrier")
    stamp("K1")
    c("---- S4 kernel K = A-table x B-table (rows duplicated to realise bf16(l)) ----")
    FA, FB, AC = 96, 128, 160
    def rd(s):
        e("ds_read_b128 %s, v%d offset:%d" % (vr(FA + 4 * (s % 8), 4), PV_GA, 32 * s))
        e("ds_read_b128 %s, v%d offset:%d" % (vr(FB + 4 * (s % 8), 4), PV_GB, 32 * s))
    for s in range(7): rd(s)
    e("v_and_b32 v%d, 1, v%d" % (VT, V_L))
    e("v_cmp_eq_u32 vcc, 0, v%d" % VT)
    uw = []
    for h in range(2):
        for p in range(4):
            uw.append("    ds_write_b16 v%d, v%d offset:%d" % (PV_US, U2R + 4 * h + p, 1152 * p + 128 * h))
            uw.append("    ds_write_b16_d16_hi v%d, v%d offset:%d" % (PV_US, U2R + 4 * h + p, 4608 + 1152 * p + 128 * h))
    nw = 0
    for s in range(16):
        e("s_waitcnt lgkmcnt(%d)" % (2 * (min(s + 6, 15) - s) + nw))
        e("v_mfma_f32_32x32x16_bf16 %s, %s, %s, %s" % (vr(AC, 16), vr(FA + 4 * (s % 8), 4), vr(FB + 4 * (s % 8), 4), "0" if s == 0 else vr(AC, 16)))
        if s + 7 < 16: rd(s + 7)
        if s == 10: e("s_waitcnt vmcnt(0)")
        if 10 <= s < 15:
            SINK[0].extend(uw[nw:nw + 3]); nw += 3
    SINK[0].extend(uw[15:])
    nop(11)
    V("add_f32", AC, v(AC), v(PV_GD))
    e("s_bitcmp1_b32 %s, 0" % WV)
    e("s_cbranch_scc0 L_kg_nofix")
    V("cndmask_b32", AC + 4, v(AC + 5), v(AC + 3), "vcc"); V("cndmask_b32", AC + 12, v(AC + 13), v(AC + 11), "vcc")
    lab("L_kg_nofix")
    for i in range(8): V("cvt_pk_bf16_f32", FA + i, v(AC + 2 * i), v(AC + 2 * i + 1))
    e("ds_write_b128 v%d, %s" % (PV_GW, vr(FA, 4)))
    e("ds_write_b128 v%d, %s offset:1024" % (PV_GW, vr(FA + 4, 4)))
    e("s_branch L_gemm_done")

def cmul_multi(lst):
    for d, a, b in lst:
        e("v_pk_mul_f32 %s, %s, %s op_sel:[0,0] op_sel_hi:[1,0]" % (vr(d, 2), vr(a, 2), vr(b, 2)))
    for d, a, b in lst:
        e("v_pk_fma_f32 %s, %s, %s, %s op_sel:[1,1,0] op_sel_hi:[0,1,1] neg_lo:[1,0,0]" % (vr(d, 2), vr(a, 2), vr(b, 2), vr(d, 2)))
def cexp_multi(lst, va, vb):
    for d, Lf, t, cj in lst:
        V("mul_f32", t, fl(Lf), v(va)); V("mul_f32", t + 1, fl(-Lf if cj else Lf), v(vb)); V("fract_f32", t + 1, v(t + 1))
    for d, Lf, t, cj in lst:
        V("exp_f32", t, v(t)); V("cos_f32", d, v(t + 1)); V("sin_f32", d + 1, v(t + 1))
    e("s_nop 0")
    for d, Lf, t, cj in lst:
        e("v_pk_mul_f32 %s, %s, %s op_sel:[0,0] op_sel_hi:[1,0]" % (vr(d, 2), vr(d, 2), vr(t, 2)))

KVA, KVB, KVD = 247, 248, 249
def kgen_b():
    c("---- S4 mode tables: B = exp(z*8j) -> LDS ----")
    va, vb, vdt, ta = KVA, KVB, KVD, VT + 4
    e("s_bitcmp1_b32 %s, 1" % WV)
    e("s_cselect_b32 %s, 0, 16" % T0)
    sshl(T0, LD2, T0); sand(T0, T0, 0xffff0000)
    V("mov_b32", vdt, fl(LOG2E)); V("mul_f32", vdt, T0, v(vdt)); V("exp_f32", vdt, v(vdt))
    for i in range(2): V("lshlrev_b32", V_PAR + i, 16, v(V_PAR + i))
    V("cvt_pk_bf16_f32", vdt, v(vdt), v(vdt)); V("and_b32", vdt, 0xffff0000, v(vdt))
    V("mul_f32", va, v(vdt), v(V_PAR)); V("mul_f32", vb, v(vdt), v(V_PAR + 1))
    V("mul_f32", va, fl(LOG2E), v(va)); V("mul_f32", vb, fl(1.0 / (2 * math.pi)), v(vb))
    P = lambda j: KB + 2 * j
    G = lambda k: KB + 16 + 2 * k
    X = KB + 24
    cv = [KB + 40 + i for i in range(8)]
    n = [0]
    def putb(row, pr):
        r = cv[n[0] % 8]; n[0] += 1
        V("cvt_pk_bf16_f32", r, v(pr), v(pr + 1))
        e("ds_write_b32 v46, v%d offset:%d" % (r, row * 528))
    cexp_multi([(P(1), 8.0, ta, 0), (G(1), 64.0, ta + 2, 0)], va, vb)
    V("mov_b32", cv[7], 0x3f80); e("ds_write_b32 v46, v%d" % cv[7])
    cmul_multi([(P(2), P(1), P(1)), (G(2), G(1), G(1))])
    putb(1, P(1)); putb(8, G(1))
    cmul_multi([(P(3), P(2), P(1)), (P(4), P(2), P(2)), (G(3), G(2), G(1))])
    putb(2, P(2)); putb(16, G(2))
    cmul_multi([(P(5), P(4), P(1)), (P(6), P(4), P(2)), (P(7), P(4), P(3))])
    for r, p in ((3, P(3)), (4, P(4)), (24, G(3)), (5, P(5)), (6, P(6)), (7, P(7))): putb(r, p)
    for k in range(1, 4):
        cmul_multi([(X + 2 * j, P(j), G(k)) for j in range(1, 8)])
        for j in range(1, 8): putb(8 * k + j, X + 2 * j)

def kgen_a():
    va, vb, vdt, ta = KVA, KVB, KVD, VT + 4
    E = lambda j: 224 + 2 * j - 2
    Q = lambda j: 160 + 2 * j
    H = lambda k: 176 + 2 * k
    X = 224
    def puta(row, pr): V("cvt_pk_bf16_f32", KR + row, v(pr), v(pr + 1))
    cexp_multi([(E(1), 1.0, ta, 1), (H(1), 256.0, ta + 2, 1)], va, vb)
    for i in range(2, 6): V("lshlrev_b32", V_PAR + i, 16, v(V_PAR + i))
    V("mul_f32", ta, v(vdt), v(V_PAR + 2)); e("v_mul_f32 v%d, -v%d, v%d" % (ta + 1, vdt, V_PAR + 3))
    V("mov_b32", ta + 2, v(V_PAR + 4)); V("mul_f32", ta + 3, "-1.0", v(V_PAR + 5))
    cmul_multi([(Q(0), ta, ta + 2), (E(2), E(1), E(1)), (H(2), H(1), H(1))])
    cmul_multi([(E(3), E(2), E(1)), (E(4), E(2), E(2)), (H(3), H(2), H(1)), (H(4), H(2), H(2))])
    puta(0, Q(0))
    cmul_multi([(E(5), E(4), E(1)), (E(6), E(4), E(2)), (E(7), E(4), E(3)), (E(8), E(4), E(4)), (H(5), H(4), H(1)), (H(6), H(4), H(2)), (H(7), H(4), H(3))])
    cmul_multi([(Q(j), Q(0), E(j)) for j in range(1, 9)])
    for j in range(1, 8): puta(j, Q(j))
    cmul_multi([(X + 2 * i, H(1), Q(2 * i)) for i in range(5)] + [(X + 10 + 2 * i, H(2), Q(4 * i)) for i in range(3)])
    for i in range(8): puta(8 + i, X + 2 * i)
    cmul_multi([(X + 2 * i, H(3), Q(4 * i)) for i in range(3)] + [(X + 6, H(4), Q(0)), (X + 8, H(4), Q(8)), (X + 10, H(5), Q(0)), (X + 12, H(5), Q(8))])
    for i in range(7): puta(16 + i, X + 2 * i)
    cmul_multi([(X, H(6), Q(0)), (X + 2, H(6), Q(8)), (X + 4, H(7), Q(0)), (X + 6, H(7), Q(8))])
    for i in range(4): puta(23 + i, X + 2 * i)

def compute_path():
    t = VT
    lab("L_compute")
    c("======== compute waves ========")
    e("s_bfe_u32 %s, %s, 0x10001" % (T0, WV)); sadd(T0, T0, C0); sshl(T0, T0, 8); sand(T1, WV, 1); sshl(T1, T1, 7); sadd(T0, T0, T1)
    V("lshl_add_u32", V_PA, v(V_L), 1, T0)
    e("s_waitcnt lgkmcnt(0)")
    stamp("karg")
    for i, s in enumerate((S_ARE, S_AIM, S_BRE, S_BIM, S_CRE, S_CIM)):
        e("global_load_ushort v%d, v%d, %s" % (V_PAR + i, V_PA, sr(s, 2)))
    scalar_loads()
    srd(R_U, S_U, 2048 * 1024)
    u_coop_loads()
    if OPT["pf"]:
        c("pull this WG's 1/32 share of the code into L2")
        e("s_getpc_b64 s[4:5]")
        lab("L_pc")
        sshl(T0, I5, 3); V("add_u32", t, T0, v(V_L)); V("lshlrev_b32", t, 7, v(t))
        e("v_min_u32 v%d, L_end-L_pc-4, v%d" % (t, t))
        e("s_mov_b64 exec, 0xff")
        e("global_load_dword v47, v%d, s[4:5]" % t)
        e("s_mov_b64 exec, -1")
    srd(R_WS, S_WS, WS_SIZE); srd(R_OUT, S_OUT, 2048 * 2048); srd(R_WO, S_WO, 512 * 1024)
    gemm_read_addr()
    e("s_waitcnt vmcnt(%d) lgkmcnt(0)" % (9 if OPT["pf"] else 8))
    sadd(TAG, TAG, 1)
    kgen_b()
    ust = capture(u_coop_stores)
    k = next(i for i, x in enumerate(ust) if "exec_hi, 0" in x)
    pc = ["    s_waitcnt vmcnt(0)"] + ust[:k] + ["\n".join(ust[k:])] + [x for x in capture(kgen_a) if not x.strip().startswith(";")]
    if "F" in OPT["abl"]: pc = pc[:20]
    if "U" in OPT["abl"]: pc = pc[20:]
    def f0flag():
        sshl(I0, XQ, 5); sadd(I0, I0, I5); sshl(I0, I0, 7); sadd(I0, I0, WS_F0)
        flag_store(I0, 28)
    def fill(n):
        for _ in range(n):
            if pc: SINK[0].append(pc.pop(0))
    def ml(s, first=False):
        cc = lambda k: "0" if first else vr(G_ACC[k], 16)
        return ["v_mfma_f32_32x32x16_bf16 %s, %s, %s, %s" % (vr(G_ACC[0], 16), vr(G_W0F + 4 * s, 4), vr(G_XF + 4 * s, 4), cc(0)),
                "v_mfma_f32_32x32x16_bf16 %s, %s, %s, %s" % (vr(G_ACC[1], 16), vr(G_W1F + 4 * s, 4), vr(G_XF + 4 * s, 4), cc(1)),
                "v_mfma_f32_32x32x16_bf16 %s, %s, %s, %s" % (vr(G_ACC[2], 16), vr(G_XF + 4 * s, 4), vr(G_VF + 4 * s, 4), cc(2))]
    def ilv(ms, rs, nf):
        k = 0
        for i, m in enumerate(ms):
            if "M" not in OPT["abl"] or m.endswith(", 0"): e(m)
            upto = (len(rs) * (i + 1) + len(ms) - 1) // len(ms)
            SINK[0].extend(rs[k:upto]); k = upto
            fill(nf)
    for ci in range(8):
        c("compute chunk %d" % ci)
        hi = (ci % 3) == 2
        ib = 32768 if ci % 3 == 1 else 0
        xa = G_XA + (4 if hi else 0)
        wa = G_WB if hi else G_WA
        if ci == 4: e("s_waitcnt vmcnt(0)")
        e("s_barrier")
        if ci in (0, 7): stamp("ch%d" % ci)
        if ci == 4: f0flag()
        def reads(s):
            if "R" in OPT["abl"]: return
            e("ds_read_b128 %s, v%d offset:%d" % (vr(G_XF + 4 * s, 4), xa + s, ib))
            for k, f in enumerate((G_W0F, G_W1F, G_VF)):
                for tt in range(2):
                    e("ds_read_b64_tr_b16 %s, v%d offset:%d" % (vr(f + 4 * s + 2 * tt, 2), wa + k, ib + (16 * s + 4 * tt) * 128))
        r0, r1 = capture(reads, 0), capture(reads, 1)
        nf = 1 if ci < 7 else 0
        if ci > 0:
            SINK[0].extend(r0[:3]); ilv(ml(3), r0[3:] + r1[:5], 0); SINK[0].extend(r1[5:])
        else: SINK[0].extend(r0 + r1)
        fill(6 * nf)
        e("s_waitcnt lgkmcnt(7)"); ilv(ml(0, ci == 0), capture(reads, 2), nf)
        e("s_waitcnt lgkmcnt(7)"); ilv(ml(1), capture(reads, 3), nf)
        e("s_waitcnt lgkmcnt(7)")
        if ci < 7:
            ilv(ml(2), [], 3 * nf)
            if ci == 6: fill(999)
            e("s_waitcnt lgkmcnt(0)")
    tw = ["    ds_write_b32 v%d, v%d offset:%d" % (PV_TW, KR + r, r * 528) for r in range(27)]
    ilv(ml(2), tw[:8], 0)
    e("s_waitcnt lgkmcnt(8)")
    ilv(ml(3), tw[8:], 0)
    sadd(T1, sQKV, WS_K); sadd(T2, sQKV, WS_K + 65536); sadd(T3, sQKV, WS_V); sadd(T4, sQKV, WS_Q + 65536); sadd(T0, sQKV, WS_Q)
    e("s_waitcnt lgkmcnt(0)")
    e("s_barrier")
    stamp("K1")
    c("GEMM epilogue: publish Q,K,V")
    P = G_XF
    def pk(dst, src):
        for i in range(4): V("cvt_pk_bf16_f32", dst + i, v(src + 2 * i), v(src + 1 + 2 * i))
    def st(r, va, so, off=0):
        e("buffer_store_dwordx4 %s, v%d, %s, %s offen%s sc1" % (vr(r, 4), va, R_WS, so, " offset:%d" % off if off else ""))
    pk(P, G_ACC[0] + 8); st(P, PV_QS, T1)
    pk(P + 4, G_ACC[1] + 8); st(P + 4, PV_QS, T2)
    pk(P + 8, G_ACC[2]); st(P + 8, PV_VS, T3)
    pk(P + 12, G_ACC[2] + 8); st(P + 12, PV_VS, T3, 512)
    for k, so in ((0, T0), (1, T4)):
        for i in range(8): V("mul_f32", G_ACC[k] + i, fl(0.25 * LOG2E), v(G_ACC[k] + i))
        pk(P + 16 + 4 * k, G_ACC[k]); st(P + 16 + 4 * k, PV_QS, so)
    stamp("pub")
    precompute_conv()

def ones_pads(b0, ON):
    t = VT
    for i in range(4): V("mov_b32", ON + i, 0x3f803f80)
    V("bfe_u32", t + 8, v(V_L), 3, 2); V("mul_u32_u24", t + 8, BLK, v(t + 8)); V("and_b32", t + 9, 7, v(V_L)); V("mul_u32_u24", t + 9, 1040, v(t + 9))
    V("add_u32", t + 8, v(t + 8), v(t + 9)); V("add_u32", t + 8, b0 * BLK + 8192 + 1024, v(t + 8))
    e("ds_write_b128 v%d, %s" % (t + 8, vr(ON, 4)))

C_LO, C_UP = 128, 144
C_A, C_X, C_Y = 160, 176, 192
def qkv_signal():
    t = VT + 4
    e("s_cmp_ge_u32 %s, 4" % WV)
    e("s_cbranch_scc1 L_sig_done")
    V("mov_b32", t + 2, L_FL + 16); V("mov_b32", t + 3, 1)
    e("s_waitcnt vmcnt(0)")
    e("s_mov_b64 exec, 1")
    e("ds_add_rtn_u32 v%d, v%d, v%d" % (t + 3, t + 2, t + 3))
    e("s_mov_b64 exec, -1")
    e("s_waitcnt lgkmcnt(0)")
    e("v_readfirstlane_b32 %s, v%d" % (T0, t + 3))
    e("s_cmp_eq_u32 %s, 3" % T0)
    e("s_cbranch_scc0 L_sig_done")
    flag_store(sF1, t)
    lab("L_sig_done")
    stamp("sig")

def conv():
    t = VT
    c("---- causal conv as Toeplitz MFMA: tiles 2q (lo), 2q+1 (up) ----")
    def rdA(k, base):
        e("ds_read_b64_tr_b16 %s, v%d offset:%d" % (vr(C_A + 4 * k, 2), PV_CA, base + 128 * k + 32))
        e("ds_read_b64_tr_b16 %s, v%d offset:%d" % (vr(C_A + 4 * k + 2, 2), PV_CA, base + 128 * k))
    def rdB(dst, k, base):
        e("ds_read_b128 %s, v%d offset:%d" % (vr(dst + 4 * k, 4), PV_CB, base + 96 - 32 * k))
    def mf(acc, k, b, first=False):
        e("v_mfma_f32_32x32x16_bf16 %s, %s, %s, %s" % (vr(acc, 16), vr(C_A + 4 * k, 4), vr(b + 4 * k, 4), "0" if first else vr(acc, 16)))
    for k in range(4):
        rdA(k, 0); rdB(C_Y, k, 128); rdB(C_X, k, 0)
    V("subrev_u32", PV_CB, 128, v(PV_CB))
    def section(cur, old, first=False):
        for k in range(4):
            e("s_waitcnt lgkmcnt(%d)" % ((12 - k) if first else 9))
            mf(C_UP, k, old, first and k == 0)
            mf(C_LO, k, cur, first and k == 0)
            rdA(k, 512); rdB(old, k, 0)
        V("add_u32", PV_CA, 512, v(PV_CA)); V("subrev_u32", PV_CB, 128, v(PV_CB))
    section(C_X, C_Y, True)
    qkv_signal()
    e("s_cmp_eq_u32 %s, 0" % CQ)
    e("s_cbranch_scc1 L_conv_tail")
    e("s_mov_b32 %s, %s" % (CNT, CQ))
    lab("L_conv_loop")
    section(C_Y, C_X)
    section(C_X, C_Y)
    e("s_sub_u32 %s, %s, 1" % (CNT, CNT))
    e("s_cmp_lg_u32 %s, 0" % CNT)
    e("s_cbranch_scc1 L_conv_loop")
    lab("L_conv_tail")
    for k in range(4):
        e("s_waitcnt lgkmcnt(%d)" % (9 - 3 * k))
        mf(C_UP, k, C_X)
    c("Z partials -> LDS")
    for k in range(4): e("ds_write_b128 v%d, %s offset:%d" % (PV_ZW, vr(C_LO + 4 * k, 4), 32 * k))
    nop(8)
    for k in range(4): e("ds_write_b128 v%d, %s offset:%d" % (PV_ZW, vr(C_UP + 4 * k, 4), 1152 + 32 * k))
    stamp("cend")

def kv_tiles(n, msrc, mstep, soff):
    e("s_mov_b32 m0, %s" % msrc)
    e("s_nop 0")
    for i in range(n):
        e("buffer_load_dwordx4 v%d, %s, %s offen sc1 lds" % (V_L16, R_WS, soff))
        if i < n - 1:
            sadd("m0", "m0", mstep); sadd(soff, soff, 1024)

def kv_early():
    t = VT
    e("s_cmp_ge_u32 %s, 4" % WV)
    e("s_cbranch_scc1 L_kve_done")
    precompute()
    e("s_cmp_lg_u32 %s, 0" % CQ)
    e("s_cbranch_scc1 L_kve_done")
    e("s_cmp_eq_u32 %s, 0" % WV)
    e("s_cbranch_scc0 L_kve_w2")
    for i in range(4): V("mov_b32", C_A + i, 0)
    V("and_b32", t + 2, 7, v(V_L)); V("mul_u32_u24", t + 2, ZS, v(t + 2)); V("add_u32", t + 2, L_Z + 112, v(t + 2))
    e("ds_write_b128 v%d, %s" % (t + 2, vr(C_A, 4)))
    e("s_mov_b32 %s, 0" % T5); e("s_mov_b32 %s, 1024" % T4); sadd(T3, sHB, WS_K)
    e("s_branch L_kve_go")
    lab("L_kve_w2")
    ones_pads(0, C_A)
    e("s_mov_b32 %s, 8192" % T5); e("s_mov_b32 %s, 1040" % T4); sadd(T3, sHB, WS_V)
    lab("L_kve_go")
    poll("L_poll1", sF1P, t=VT + 4)
    stamp("poll1")
    sshl(T0, JJ, 13); sadd(T0, T0, T3)
    kv_tiles(8, T5, T4, T0)
    sadd(T0, JJ, 1); sand(T0, T0, 7); sshl(T0, T0, 13); sadd(T0, T0, T3); sadd(T5, T5, BLK)
    kv_tiles(8, T5, T4, T0)
    lab("L_kve_done")
    stamp("kve")

A_Q = [64, 68]
A_S = [72, 88]
A_O = [104, 120]
A_KF = [136, 140]
A_VA = [144, 148]
A_VB = [152, 156]
A_IDX = 160
A_F = 164
A_NM = 72 + 16
WOR = 192
Y_R = 32
def conv_epilogue():
    c("y[t] = sum_p Z_p[t-p]")
    e("s_waitcnt lgkmcnt(0)")
    e("s_barrier")
    stamp("zbar")
    e("buffer_load_dwordx4 %s, v%d, %s, %s offen sc1" % (vr(A_Q[0], 4), V_L16, R_WS, sQL))
    e("buffer_load_dwordx4 %s, v%d, %s, %s offen offset:1024 sc1" % (vr(A_Q[1], 4), V_L16, R_WS, sQL))
    order = [(i, cl) for i in range(4) for cl in range(2)]
    def rd(n):
        i, cl = order[n]
        for p in range(4): e("ds_read_b32 v%d, v%d offset:%d" % (Y_R + 4 * n + p, PV_ZR + p, cl * 4 * ZS + 288 * i))
    rd(0); rd(1); rd(2)
    V("mov_b32", A_IDX, 0xdddddddd)
    zs = [A_O[0] + i for i in range(32)]
    for n in range(8):
        i, cl = order[n]
        r = Y_R + 4 * n
        for _ in range(4): V("mov_b32", zs.pop(), 0)
        e("s_waitcnt lgkmcnt(%d)" % (4 * (min(n + 2, 7) - n)))
        if n + 3 < 8: rd(n + 3)
        V("add_f32", r, v(r), v(r + 1)); V("add_f32", r + 2, v(r + 2), v(r + 3)); V("add_f32", r, v(r), v(r + 2))
        if cl == 1: V("cvt_pk_bf16_f32", V_Y + i, v(r - 4), v(r))

def kv_late():
    t = VT
    e("s_cmp_ge_u32 %s, 4" % WV)
    e("s_cbranch_scc0 L_kvl_done")
    sand(T1, WV, 3); sshl(T0, T1, 2); sadd(T0, T0, L_FL)
    V("mov_b32", t, T0); V("mov_b32", t + 1, 1); V("mov_b32", t + 2, 2)
    smul(T5, T1, 2080); sshl(T1, T1, 11); sadd(T0, sHB, T1)
    for b in range(2, 8):
        sadd(T2, JJ, b); sand(T2, T2, 7); sshl(T2, T2, 13); sadd(T2, T2, T0)
        sadd("m0", T1, b * BLK); sadd(T3, T2, WS_K)
        e("buffer_load_dwordx4 v%d, %s, %s offen sc1 lds" % (V_L16, R_WS, T3))
        sadd(T4, T2, WS_V)
        e("buffer_load_dwordx4 v%d, %s, %s offen offset:1024 sc1 lds" % (V_L16, R_WS, T3))
        sadd("m0", T5, b * BLK + 8192); e("s_nop 0")
        e("buffer_load_dwordx4 v%d, %s, %s offen sc1 lds" % (V_L16, R_WS, T4))
        sadd("m0", "m0", 16); e("s_nop 0")
        e("buffer_load_dwordx4 v%d, %s, %s offen offset:1024 sc1 lds" % (V_L16, R_WS, T4))
        if b == 5:
            e("s_waitcnt vmcnt(8)")
            e("ds_write_b32 v%d, v%d" % (t, t + 1))
    e("s_cmp_eq_u32 %s, 7" % WV)
    e("s_cbranch_scc0 L_pad4")
    ones_pads(4, 32)
    lab("L_pad4")
    e("s_waitcnt vmcnt(0) lgkmcnt(0)")
    e("ds_write_b32 v%d, v%d" % (t, t + 2))
    lab("L_kvl_done")

def kv_check(stage):
    t = VT + 4
    lb = "L_kvchk%d" % stage
    V("mov_b32", t, L_FL)
    e("s_mov_b32 %s, 0" % T3)
    lab(lb)
    e("ds_read_b128 %s, v%d" % (vr(t + 2, 4), t))
    sadd(T3, T3, 1)
    e("s_waitcnt lgkmcnt(0)")
    V("min_u32", t + 2, v(t + 2), v(t + 3)); V("min3_u32", t + 2, v(t + 2), v(t + 4), v(t + 5))
    e("s_cmp_gt_u32 %s, 0x40000" % T3)
    e("s_cbranch_scc1 %s_done" % lb)
    e("v_readfirstlane_b32 %s, v%d" % (T4, t + 2))
    e("s_cmp_lt_u32 %s, %d" % (T4, stage))
    e("s_cbranch_scc1 %s" % lb)
    lab(lb + "_done")

def attn_main():
    c("---- attention main loop: wave = 2 q-tiles x 32 key tiles (parity w>>2), fully unrolled ----")
    base = [0]
    koff = lambda i: (i // 4 - base[0]) * BLK + (i % 4) * 2048
    voff = lambda i: (i // 4 - base[0]) * BLK + (i % 4) * 2080
    def rdK(i):
        if i < 32: e("ds_read_b128 %s, v%d offset:%d" % (vr(A_KF[i & 1], 4), PV_KA, koff(i)))
    def rdVa(i):
        if i < 32: e("ds_read_b128 %s, v%d offset:%d" % (vr(A_VA[i & 1], 4), PV_V0, voff(i)))
    def rdVb(i):
        if i < 32: e("ds_read_b128 %s, v%d offset:%d" % (vr(A_VB[i & 1], 4), PV_V1, voff(i)))
    def qk(i, q):
        if i < 32: e("v_mfma_f32_32x32x16_bf16 %s, %s, %s, 0" % (vr(A_S[q], 16), vr(A_KF[i & 1], 4), vr(A_Q[q], 4)))
    def pv(i, q, half):
        if i < 0: return
        a = (A_VA if half == 0 else A_VB)[i & 1]
        e("v_smfmac_f32_32x32x32_bf16 %s, %s, %s, v%d" % (vr(A_O[q], 16), vr(a, 4), vr(A_S[q] + 8 * half, 8), A_IDX))
    def ex(q, lo, hi):
        for k in range(lo, hi): e("v_exp_f32 v%d, v%d" % (A_S[q] + k, A_S[q] + k))
    rdK(0); rdK(1); rdVa(0); rdVb(0)
    e("s_cmp_ge_u32 %s, 4" % WV)
    e("s_cbranch_scc1 L_prio1")
    e("s_setprio 2")
    e("s_branch L_prio_done")
    lab("L_prio1")
    e("s_setprio 1")
    lab("L_prio_done")
    e("s_waitcnt lgkmcnt(3)")
    qk(0, 0)
    nop(12)
    ytiles = OPT["yt"]; wtiles = OPT["wt"]
    for i in range(32):
        c("key tile %d" % i)
        if i == OPT["flip"]:
            e("s_cmp_ge_u32 %s, 4" % WV)
            e("s_cbranch_scc1 L_noflip")
            e("s_setprio 0")
            lab("L_noflip")
        if i == 6: kv_check(1)
        if i == 14: kv_check(2)
        ex(0, 0, 2); pv(i - 1, 1, 1); ex(0, 2, 5); qk(i, 1)
        e("s_waitcnt lgkmcnt(0)")
        if i in (11, 23):
            for r in (PV_KA, PV_V0, PV_V1): V("add_u32", r, 3 * BLK, v(r))
            base[0] += 3
        rdK(i + 2); rdVa(i + 1); rdVb(i + 1)
        if i in ytiles:
            e("buffer_store_dword v%d, v%d, %s, %s offen %s" % (V_Y + ytiles.index(i), PV_YA, R_OUT, sYS, OPT["ypol"]))
            sadd(sYS, sYS, 0x20000)
        if i in wtiles:
            e("buffer_load_dwordx4 %s, v%d, %s, %s offen" % (vr(WOR + 4 * wtiles.index(i), 4), PV_WA, R_WO, sWO))
            sadd(sWO, sWO, 0x10000)
        ex(0, 5, 11); pv(i, 0, 0); ex(0, 11, 16)
        ex(1, 0, 2); pv(i, 0, 1); ex(1, 2, 5); qk(i + 1, 0)
        ex(1, 5, 11); pv(i, 1, 0); ex(1, 11, 16)
    e("s_nop 1")
    pv(31, 1, 1)
    e("s_setprio 0")

def combine():
    c("combine the two key-parity halves through LDS")
    e("s_barrier")
    stamp("attn")
    e("s_cmp_ge_u32 %s, 4" % WV)
    e("s_cbranch_scc1 L_cmb1")
    for kp in range(2):
        if kp: lab("L_cmb1")
        o = A_O[1 - kp]
        if kp == 0: nop(8)
        for k in range(3): e("ds_write_b128 v%d, %s offset:%d" % (PV_CW, vr(o + 4 * k, 4), 1024 * k))
        e("s_waitcnt lgkmcnt(0)")
        e("s_barrier")
        for k in range(3): e("ds_read_b128 %s, v%d offset:%d" % (vr(A_F + 4 * k, 4), PV_CR, 1024 * k))
        if kp:
            for i in range(4): V("mov_b32", A_Q[0] + i, v(A_Q[1] + i))
        e("s_waitcnt lgkmcnt(0)")
        for i in (8, 0, 1, 2, 3, 4, 5, 6, 7): V("add_f32", A_F + i, v(A_F + i), v(A_O[kp] + i))
        if kp == 0: e("s_branch L_cmb_done")
    lab("L_cmb_done")

def attn_check_and_slow():
    t = VT
    c("---- softmax guard: the fast path used shift 0; redo with the true row max if that was unsafe ----")
    V("mul_f32", t, 0, v(A_F))
    for i in range(1, 8): V("fma_f32", t, v(A_F + i), 0, v(t))
    e("v_cmp_nle_f32 vcc, %s, v%d" % (fl(2.0 ** -40), A_F + 8))
    V("mov_b32", t + 1, fl(2.0 ** 100))
    e("v_cmp_nle_f32 s[4:5], v%d, v%d" % (A_F + 8, t + 1))
    e("v_cmp_neq_f32 s[6:7], 0, v%d" % t)
    e("s_or_b64 vcc, vcc, s[4:5]")
    e("s_or_b64 vcc, vcc, s[6:7]")
    if OPT["forceslow"]: e("s_mov_b64 vcc, -1")
    e("s_cmp_lg_u64 vcc, 0")
    e("s_cbranch_scc1 L_slow")
    lab("L_attn_ok")

def slow_path():
    t = VT
    lab("L_slow")
    S_, KF, VA, VB = A_S[0], A_KF[0], A_VA[0], A_VB[0]
    c("slow path pass 1: true row max (K from the workspace)")
    sadd(T0, sHB, WS_K)
    V("mov_b32", t, 0xff800000)
    e("s_mov_b32 %s, 0" % CNT)
    lab("L_slow1")
    e("buffer_load_dwordx4 %s, v%d, %s, %s offen sc1" % (vr(KF, 4), V_L16, R_WS, T0))
    sadd(T0, T0, 1024)
    e("s_waitcnt vmcnt(0)")
    e("v_mfma_f32_32x32x16_bf16 %s, %s, %s, 0" % (vr(S_, 16), vr(KF, 4), vr(A_Q[0], 4)))
    nop(12)
    for k in range(0, 16, 2): V("max3_f32", t, v(t), v(S_ + k), v(S_ + k + 1))
    sadd(CNT, CNT, 1)
    e("s_cmp_lt_u32 %s, 64" % CNT)
    e("s_cbranch_scc1 L_slow1")
    V("mov_b32", t + 1, v(t))
    e("s_nop 1")
    e("v_permlane32_swap_b32 v%d, v%d" % (t, t + 1))
    e("s_nop 1")
    V("max_f32", t, v(t), v(t + 1))
    for k in range(16): V("mul_f32", A_NM + k, "-1.0", v(t))
    c("slow path pass 2")
    for k in range(16): V("mov_b32", A_F + k, 0)
    for k in range(4):
        V("mov_b32", VA + k, 0x3f803f80); V("mov_b32", VB + k, 0x3f803f80)
    V("and_b32", t, 15, v(V_L)); V("lshrrev_b32", t + 1, 5, v(V_L)); V("lshlrev_b32", t, 4, v(t)); V("lshl_add_u32", t, v(t + 1), 8, v(t))
    sadd(T0, sHB, WS_K); sadd(T1, sHB, WS_V)
    e("s_mov_b32 %s, 0" % CNT)
    lab("L_slow2")
    e("buffer_load_dwordx4 %s, v%d, %s, %s offen sc1" % (vr(KF, 4), V_L16, R_WS, T0))
    e("s_mov_b32 exec_lo, 0xffff")
    e("s_mov_b32 exec_hi, 0xffff")
    e("buffer_load_dwordx4 %s, v%d, %s, %s offen sc1" % (vr(VA, 4), t, R_WS, T1))
    e("buffer_load_dwordx4 %s, v%d, %s, %s offen offset:512 sc1" % (vr(VB, 4), t, R_WS, T1))
    e("s_mov_b64 exec, -1")
    sadd(T0, T0, 1024); sadd(T1, T1, 1024)
    e("s_waitcnt vmcnt(0)")
    e("v_mfma_f32_32x32x16_bf16 %s, %s, %s, %s" % (vr(S_, 16), vr(KF, 4), vr(A_Q[0], 4), vr(A_NM, 16)))
    nop(12)
    for k in range(16): e("v_exp_f32 v%d, v%d" % (S_ + k, S_ + k))
    e("s_nop 1")
    e("v_smfmac_f32_32x32x32_bf16 %s, %s, %s, v%d" % (vr(A_F, 16), vr(VA, 4), vr(S_, 8), A_IDX))
    e("v_smfmac_f32_32x32x32_bf16 %s, %s, %s, v%d" % (vr(A_F, 16), vr(VB, 4), vr(S_ + 8, 8), A_IDX))
    sadd(CNT, CNT, 1)
    e("s_cmp_lt_u32 %s, 64" % CNT)
    nop(4)
    e("s_cbranch_scc1 L_slow2")
    nop(12)
    e("s_branch L_attn_ok")

def attn_publish():
    t = VT
    c("normalise and publish O (q-tile 2*(w&3) + (w>>2))")
    V("rcp_f32", t, v(A_F + 8))
    e("s_nop 0")
    for i in range(8): V("mul_f32", A_F + i, v(A_F + i), v(t))
    P = 32
    for i in range(4): V("cvt_pk_bf16_f32", P + i, v(A_F + 2 * i), v(A_F + 2 * i + 1))
    e("s_nop 1")
    e("v_permlane32_swap_b32 v%d, v%d" % (P, P + 2))
    e("v_permlane32_swap_b32 v%d, v%d" % (P + 1, P + 3))
    e("buffer_store_dwordx4 %s, v%d, %s, %s offen sc1" % (vr(P, 4), V_L16, R_WS, sOST))
    c("Wo slice (prefetched in registers) -> LDS")
    e("s_waitcnt vmcnt(1)")
    for n in range(8): e("ds_write_b128 v%d, %s offset:%d" % (PV_WS, vr(WOR + 4 * n, 4), L_WO + 8192 * n))

P_W, P_ACC, P_OF = 96, 36, 52
def o_loads():
    sadd("m0", W10, L_O); e("s_nop 0")
    for n in range(8):
        e("buffer_load_dwordx4 v%d, %s, %s offen sc1 lds" % (V_L16, R_WS, sOLD))
        if n < 7:
            sadd("m0", "m0", 8192); sadd(sOLD, sOLD, 0x40000)

def tail():
    t = VT
    e("s_waitcnt vmcnt(0) lgkmcnt(0)")
    e("s_barrier")
    stamp("Wbar")
    e("s_cmp_ge_u32 %s, 4" % WV)
    e("s_cbranch_scc1 L_op_idle")
    c("Wo fragments -> registers (waves 0..3)")
    for hh in range(32):
        for tt in range(2):
            e("ds_read_b64_tr_b16 %s, v%d offset:%d" % (vr(P_W + 4 * hh + 2 * tt, 2), PV_WF, L_WO + hh * 2048 + tt * 512))
    e("s_waitcnt lgkmcnt(0)")
    e("s_barrier")
    stamp("poll2")
    o_loads()
    def mm(st):
        for k in range(4):
            hh = 4 * st + k
            e("v_mfma_f32_32x32x16_bf16 %s, %s, %s, %s" % (vr(P_ACC, 16), vr(P_W + 4 * hh, 4), vr(P_OF + 16 * (st & 1) + 4 * k, 4), "0" if hh == 0 else vr(P_ACC, 16)))
    for st in range(8):
        if st % 2 == 0:
            e("s_waitcnt vmcnt(%d)" % (6 - st))
            e("s_barrier")
            if st == 0: stamp("O1")
        for k in range(4): e("ds_read_b128 %s, v%d offset:%d" % (vr(P_OF + 16 * (st & 1) + 4 * k, 4), PV_OR, (4 * st + k) * 2048))
        if st > 0:
            e("s_waitcnt lgkmcnt(4)")
            mm(st - 1)
    e("s_waitcnt lgkmcnt(0)")
    mm(7)
    nop(12)
    for i in range(8): V("cvt_pk_bf16_f32", P_OF + i, v(P_ACC + 2 * i), v(P_ACC + 2 * i + 1))
    e("ds_write_b128 v%d, %s" % (PV_OW, vr(P_OF, 4)))
    e("ds_write_b128 v%d, %s offset:16" % (PV_OW, vr(P_OF + 4, 4)))
    e("s_branch L_fin")
    lab("L_op_idle")
    e("s_cmp_eq_u32 %s, 7" % WV)
    e("s_cbranch_scc0 L_nopoll2")
    flag_store(sF2)
    poll("L_poll2", sF2P)
    lab("L_nopoll2")
    e("s_barrier")
    o_loads()
    for st in range(4):
        e("s_waitcnt vmcnt(%d)" % (6 - 2 * st))
        e("s_barrier")
    c("WG 0 advances the epoch word (every WG has read it: all of them have published)")
    e("s_cmp_eq_u32 s2, 0")
    e("s_cbranch_scc0 L_fin")
    e("s_cmp_eq_u32 %s, 7" % WV)
    e("s_cbranch_scc0 L_fin")
    flag_store("0")
    lab("L_fin")
    e("s_waitcnt lgkmcnt(0)")
    e("s_barrier")
    stamp("opdone")
    e("ds_read_b128 v[32:35], v%d" % PV_FR)
    e("s_waitcnt lgkmcnt(0)")
    e("buffer_store_dwordx4 v[32:35], v%d, %s, %s offen %s" % (PV_FS, R_OUT, sOUT, OPT["opol"]))

def dump_lds(base, nbytes, wsoff):
    t = VT + 10
    e("s_waitcnt lgkmcnt(0)"); e("s_barrier")
    V("lshlrev_b32", t, 4, v(0))
    sshl(T0, "s2", 18); sadd(T0, T0, WS_DBG + wsoff)
    for o in range(0, nbytes, 8192):
        V("add_u32", t + 1, base + o, v(t))
        e("ds_read_b128 %s, v%d" % (vr(t + 2, 4), t + 1))
        e("s_waitcnt lgkmcnt(0)")
        e("buffer_store_dwordx4 %s, v%d, %s, %s offen" % (vr(t + 2, 4), t, R_WS, T0))
        sadd(T0, T0, 8192)
        e("s_waitcnt vmcnt(0)")
    e("s_barrier")

def write_stamps():
    t = VT
    if OPT["echo"]:
        a, b, m = OPT["echo"].split(",")
        e("s_cmp_eq_u32 %s, 0" % WV); e("s_cbranch_scc0 L_end")
        e("s_cmp_eq_u32 s2, %d" % OPT["echowg"]); e("s_cbranch_scc0 L_end")
        e("s_waitcnt vmcnt(0)")
        stamp("end")
        if a == "start": e("s_mov_b32 s80, s100")
        e("s_sub_u32 s82, s81, s80"); e("s_mul_i32 s82, s82, %s" % m); e("s_min_u32 s82, s82, 20000")
        e("s_memrealtime s[84:85]"); e("s_waitcnt lgkmcnt(0)")
        lab("L_echo")
        e("s_memrealtime s[86:87]"); e("s_waitcnt lgkmcnt(0)")
        e("s_sub_u32 s83, s86, s84"); e("s_cmp_lt_u32 s83, s82"); e("s_cbranch_scc1 L_echo")
    if OPT["stamps"]:
        e("s_waitcnt vmcnt(0)")
        stamp("end")
        sshl(T0, "s2", 3); sadd(T0, T0, WV); sshl(T0, T0, 7); sadd(T0, T0, WS_ST)
        e("s_mov_b64 exec, 1")
        V("mov_b32", t, 0)
        for i in range(len(stamp_names)):
            V("mov_b32", t + 1, sr(S_ST + i))
            e("buffer_store_dword v%d, v%d, %s, %s offen offset:%d" % (t + 1, t, R_WS, T0, 4 * i))
            e("s_nop 1")
        V("mov_b32", t + 1, "s100")
        e("buffer_store_dword v%d, v%d, %s, %s offen offset:124" % (t + 1, t, R_WS, T0))
        e("s_memrealtime s[98:99]")
        e("s_waitcnt lgkmcnt(0)")
        V("mov_b32", t + 2, "s98")
        e("buffer_store_dword v%d, v%d, %s, %s offen offset:120" % (t + 2, t, R_WS, T0))
        e("s_mov_b64 exec, -1")
        L.insert(0, "; stamps: " + ",".join(stamp_names))
    if OPT["dbgspan"]:
        e("s_cmp_eq_u32 %s, 0" % WV); e("s_cbranch_scc0 L_end")
        sand(T0, "s2", 63); e("s_cmp_eq_u32 %s, 5" % T0); e("s_cbranch_scc0 L_end")
        e("s_waitcnt vmcnt(0)")
        e("s_memrealtime s[96:97]"); e("s_memtime s[94:95]")
        srd(R_X, S_DBG, 256)
        sshr(T0, "s2", 6); sshl(T0, T0, 4)
        e("s_waitcnt lgkmcnt(0)")
        e("s_mov_b64 exec, 1")
        V("mov_b32", t, 0)
        e("s_sub_u32 s94, s94, s98"); e("s_sub_u32 s96, s96, s100")
        V("mov_b32", t + 2, "s100"); V("mov_b32", t + 3, "s96"); V("mov_b32", t + 4, "s94"); V("mov_b32", t + 5, 0)
        e("buffer_store_dwordx4 %s, v%d, %s, %s offen" % (vr(t + 2, 4), t, R_X, T0))

def main():
    header()
    setup()
    loader_path()
    compute_path()
    lab("L_gemm_done")
    e("s_waitcnt lgkmcnt(0)")
    e("s_barrier")
    stamp("K2")
    if OPT["dump"]: dump_lds(L_KF, 24576, 0)
    conv()
    kv_early()
    conv_epilogue()
    e("s_waitcnt vmcnt(0)")
    e("s_barrier")
    stamp("S")
    kv_late()
    attn_main()
    combine()
    attn_check_and_slow()
    attn_publish()
    tail()
    write_stamps()
    e("s_endpgm")
    slow_path()
    footer(256)
    open(sys.argv[1], "w").write("\n".join(L) + "\n")

main()
```

```python
import sys, struct, math

NAME = "concat_heads__ssm_conv_s4__softmax_full_mha__prompt"
OPT = dict(ldst=0, ypol="", opol="", abl="", echo="", echowg=0, stamps=0, dump=0, forceslow=0, dbgspan=0, flip1=14, mid=16, flip=30, pf=1, rot=6, yat=2, npre=999,
           yt=[15, 20, 25], wt=[17, 18, 19, 21, 22, 23, 24, 26])
for a in sys.argv[2:]:
    k, v = a.split("=")
    OPT[k] = int(v) if v.lstrip("-").isdigit() else v

L = []
SINK = [L]
def e(s): SINK[0].append("    " + s)
def lab(s): SINK[0].append(s + ":")
def c(s): SINK[0].append("    ; " + s)
def f2u(x): return struct.unpack("<I", struct.pack("<f", x))[0]
def fl(x): return "0x%08x" % f2u(x)
def vr(a, n=1): return "v%d" % a if n == 1 else "v[%d:%d]" % (a, a + n - 1)
def sr(a, n=1): return "s%d" % a if n == 1 else "s[%d:%d]" % (a, a + n - 1)
def nop(n):
    while n > 0:
        k = min(n, 16); e("s_nop %d" % (k - 1)); n -= k
def capture(fn, *a):
    old = SINK[0]; out = []; SINK[0] = out; fn(*a); SINK[0] = old; return out

WS_F1 = 0x1000
WS_F2 = 0xa000
WS_F0 = 0x20000
WS_Q, WS_K, WS_V, WS_O, WS_U2 = 0x100000, 0x300000, 0x500000, 0x700000, 0x900000
WS_ST = 0xc00000
WS_DBG = 0x1000000
WS_SIZE = 0x10000000
LDS_TOTAL = 163840
BLK = 16384
L_TB = 98304
L_TA = 0
L_FL = 146240
L_KF = 146304
L_UP = 154624
ZS = 9504
L_Z = 70208
ZS2 = 2448
L_Z2 = 0
L_WO = 0
L_O = 65536
L_SC = 65536
L_OT = 131072
S_U, S_ARE, S_AIM, S_BRE, S_BIM, S_CRE, S_CIM, S_LDT = 8, 10, 12, 14, 16, 18, 20, 22
S_DSK, S_X, S_W, S_WO, S_OUT, S_DBG, S_WS = 24, 26, 28, 30, 32, 34, 36
R_X, R_W, R_WS, R_U, R_OUT, R_WO = "s[40:43]", "s[44:47]", "s[48:51]", "s[52:55]", "s[56:59]", "s[60:63]"
XQ, I5, WV, TAG, LD2, DS2, HH, JJ, C0 = "s64", "s65", "s66", "s67", "s68", "s69", "s70", "s71", "s72"
T0, T1, T2, T3, T4, T5, CNT = "s73", "s74", "s75", "s76", "s77", "s78", "s79"
CQ, CL, W10, GT, GQ = "s38", "s39", "s3", "s6", "s7"
sQKV, sF1, sF1P, sYS, sWO, sOST, sOLD, sOUT, sF2, sF2P, sHB, sQL = ["s%d" % i for i in range(8, 20)]
sYS2 = "s38"
S_ST = 80
stamp_names = []
def stamp(name):
    if OPT["echo"]:
        a, b, m = OPT["echo"].split(",")
        if name in (a, b):
            e("s_waitcnt lgkmcnt(0)")
            e("s_memrealtime s[98:99]")
            e("s_waitcnt lgkmcnt(0)")
            e("s_mov_b32 %s, s98" % ("s80" if name == a else "s81"))
    if OPT["stamps"]:
        if name not in stamp_names: stamp_names.append(name)
        assert len(stamp_names) <= 18
        e("s_waitcnt lgkmcnt(0)")
        e("s_memrealtime s[98:99]" if OPT["stamps"] == 2 else "s_memtime s[98:99]")
        e("s_waitcnt lgkmcnt(0)")
        e("s_mov_b32 %s, s98" % sr(S_ST + stamp_names.index(name)))
def srd(r, base, size):
    r = int(r[2:r.index(":")])
    e("s_mov_b32 %s, %s" % (sr(r), sr(base)))
    e("s_and_b32 %s, %s, 0xffff" % (sr(r + 1), sr(base + 1)))
    e("s_mov_b32 %s, 0x%x" % (sr(r + 2), size))
    e("s_mov_b32 %s, 0x00020000" % sr(r + 3))
def csel(dst, a, b):
    e("s_mov_b32 %s, %d" % (dst, b))
    e("s_cselect_b32 %s, %d, %s" % (dst, a, dst))
def S(op, d, a, b): e("s_%s %s, %s, %s" % (op, d, a, b if isinstance(b, str) else ("0x%x" % b if b > 64 else str(b))))
def sadd(d, a, b): S("add_u32", d, a, b)
def sshl(d, a, b): S("lshl_b32", d, a, b)
def sshr(d, a, b): S("lshr_b32", d, a, b)
def sand(d, a, b): S("and_b32", d, a, b)
def smul(d, a, b): S("mul_i32", d, a, b)
def V(op, d, *a): e("v_%s v%d, %s" % (op, d, ", ".join(("v%d" % x[0] if isinstance(x, tuple) else (x if isinstance(x, str) else ("0x%x" % x if x > 64 else str(x)))) for x in a)))
def v(x): return (x,)
LOG2E = math.log2(math.e)

V_L, V_L16, V_PA = 1, 2, 3
V_PAR = 4
V_Y = 10
VT = 14
(PV_CA, PV_CB, PV_ZW, PV_ZR, _z1, _z2, _z3, PV_KA, PV_V0, PV_V1, PV_YA, PV_WA, PV_CW, PV_CR,
 PV_OR, PV_OW, PV_WF, PV_FR, PV_FS, PV_WS) = range(224, 244)
PV_ZW2 = PV_V1
PV_CY = 250
PV_QS, PV_VS, PV_TW = 244, 245, 246
PV_GA, PV_GB, PV_GW, PV_GD, PV_US = 244, 245, 246, 247, 248

def header():
    L.append("; fused S4 long-conv (part A) + multi-head attention (part B): one launch, 256 WGs x 8 waves")
    L.append("; @launch grid=(256,1,1) block=(512,1,1) lds=%d" % LDS_TOTAL)
    L.append('.amdgcn_target "amdgcn-amd-amdhsa--gfx950"')
    L.append(".text")
    L.append(".globl %s_kernel" % NAME)
    L.append(".p2align 8")
    L.append(".type %s_kernel,@function" % NAME)
    L.append("%s_kernel:" % NAME)
def footer(nv):
    lab("L_end")
    e("s_endpgm")
    L.append('.section .rodata,"a"')
    L.append(".p2align 6")
    L.append(".amdhsa_kernel %s_kernel" % NAME)
    L.append("  .amdhsa_next_free_vgpr %d" % nv)
    L.append("  .amdhsa_next_free_sgpr 102")
    L.append("  .amdhsa_accum_offset %d" % nv)
    L.append("  .amdhsa_group_segment_fixed_size 0")
    L.append("  .amdhsa_kernarg_size 120")
    L.append("  .amdhsa_user_sgpr_count 2")
    L.append("  .amdhsa_user_sgpr_kernarg_segment_ptr 1")
    L.append("  .amdhsa_system_sgpr_workgroup_id_x 1")
    L.append(".end_amdhsa_kernel")

def setup():
    c("---- setup ----")
    e("s_cmp_ge_u32 s2, 256")
    e("s_cbranch_scc1 L_end")
    e("s_load_dwordx8 s[24:31], s[0:1], 64")
    e("s_load_dwordx16 s[8:23], s[0:1], 0")
    e("s_load_dwordx4 s[32:35], s[0:1], 96")
    e("s_load_dwordx2 s[36:37], s[0:1], 112")
    if OPT["stamps"] or OPT["dbgspan"] or OPT["echo"]: e("s_memrealtime s[100:101]")
    if OPT["dbgspan"]: e("s_memtime s[98:99]")
    V("and_b32", V_L, 63, v(0))
    V("lshrrev_b32", VT, 6, v(0))
    V("lshlrev_b32", V_L16, 4, v(V_L))
    V("mov_b32", PV_FS, 0)
    e("v_readfirstlane_b32 %s, v%d" % (WV, VT))
    sand(XQ, "s2", 7)
    sshr(I5, "s2", 3)
    sand(GT, XQ, 3); sshl(GT, GT, 3); sshr(JJ, I5, 2); sadd(GT, GT, JJ)
    sand(GQ, XQ, 4); sand(T0, I5, 3); sadd(GQ, GQ, T0)
    sshl(HH, XQ, 2); sadd(HH, HH, T0)
    sshl(C0, XQ, 5); sadd(C0, C0, I5); sshl(C0, C0, 1)
    sshl(W10, WV, 10)
    e("s_cmp_ge_u32 %s, 4" % WV)
    e("s_cbranch_scc0 L_compute")

def scalar_loads():
    sshl(T3, C0, 1)
    e("s_load_dword %s, %s, 0" % (TAG, sr(S_WS, 2)))
    e("s_load_dword %s, %s, %s" % (LD2, sr(S_LDT, 2), T3))
    e("s_load_dword %s, %s, %s" % (DS2, sr(S_DSK, 2), T3))

def lane_terms():
    t = VT
    hf, b7, p4, r4, g1, l15, l8 = t, t + 1, t + 2, t + 3, t + 4, t + 5, t + 6
    V("lshrrev_b32", hf, 5, v(V_L)); V("and_b32", b7, 7, v(V_L)); V("bfe_u32", p4, v(V_L), 3, 2)
    V("bfe_u32", r4, v(V_L), 2, 2); V("bfe_u32", g1, v(V_L), 4, 1); V("and_b32", l15, 15, v(V_L)); V("lshrrev_b32", l8, 3, v(V_L))
    return hf, b7, p4, r4, g1, l15, l8

def precompute_conv():
    t = VT
    c("---- conv addresses ----")
    e("s_bfe_u32 %s, %s, 0x10001" % (CL, WV))
    hf, b7, p4, r4, g1, l15, l8 = lane_terms()
    x, y, z = t + 8, t + 9, t + 10
    e("s_cmp_eq_u32 %s, 1" % CL)
    csel(T0, L_KF + 4160 + 96, L_KF + 96); csel(T1, L_UP + 4608, L_UP); csel(T2, L_Z + 4 * ZS + 144, L_Z + 144)
    V("and_b32", x, 3, v(V_L)); V("lshl_add_u32", x, v(g1), 2, v(x)); V("lshl_add_u32", y, v(hf), 3, v(r4))
    V("sub_u32", x, v(x), v(y)); V("lshlrev_b32", x, 3, v(x)); V("add_u32", PV_CA, T0, v(x))
    V("mul_u32_u24", x, 1152, v(p4)); V("add_u32", z, v(b7), v(hf)); V("lshl_add_u32", x, v(z), 4, v(x))
    V("add_u32", PV_CB, T1, v(x))
    V("mul_u32_u24", x, ZS, v(p4)); V("mul_u32_u24", z, 144, v(b7)); V("lshl_add_u32", z, v(hf), 4, v(z)); V("add3_u32", PV_ZW, v(x), v(z), T2)
    sshl(sF1, GQ, 5); sadd(sF1, sF1, GT); sshl(sF1, sF1, 7); sadd(sF1, sF1, WS_F1)
    sshl(T0, XQ, 12); sadd(sF1P, T0, WS_F1); sadd(sF2P, T0, WS_F2)
    sshl(sHB, HH, 16)

def precompute():
    t = VT
    c("SPLIT")
    e("s_cmp_ge_u32 %s, 4" % WV)
    e("s_cselect_b32 %s, 1024, 0" % T0)
    hf, b7, p4, r4, g1, l15, l8 = lane_terms()
    x, y, z = t + 8, t + 9, t + 10
    V("add_u32", PV_KA, T0, v(V_L16))
    V("lshlrev_b32", x, 4, v(l15)); V("lshl_add_u32", x, v(hf), 8, v(x)); sadd(T0, T0, 8192); V("add_u32", PV_V0, T0, v(x))
    V("lshlrev_b32", PV_YA, 11, v(V_L))
    V("lshlrev_b32", x, 2, v(g1)); V("xor_b32", x, v(x), v(b7)); V("lshlrev_b32", x, 4, v(x)); V("lshl_add_u32", PV_WA, v(l8), 10, v(x))
    c("SPLIT")
    sshl(T0, WV, 7); sadd(T0, T0, 32)
    for p in range(4):
        V("add_u32", x, T0, v(V_L))
        if p: V("subrev_u32", x, p, v(x))
        V("lshrrev_b32", z, 5, v(x)); V("lshlrev_b32", x, 2, v(x)); V("lshl_add_u32", x, v(z), 4, v(x))
        V("add_u32", PV_ZR + p, L_Z + p * ZS, v(x))
    c("SPLIT")
    sshl(T0, WV, 18); sshl(T1, C0, 1); sadd(sYS, T0, T1)
    sshr(T0, T0, 1); sadd(T0, T0, T1); sadd(sYS2, T0, 0x200000)
    sand(T0, I5, 7); sshl(T0, T0, 7); sshl(T1, WV, 13); sadd(sWO, T0, T1)
    sshl(T1, JJ, 13); sadd(T1, T1, sHB); sand(T2, WV, 3); sshl(T2, T2, 11); sadd(T1, T1, T2)
    sadd(sQL, T1, WS_Q)

def precompute_tail():
    t = VT + 4
    hf, b7, p4, r4, g1, l8 = t, t + 1, t + 2, t + 3, t + 4, t + 5
    V("lshrrev_b32", hf, 5, v(V_L)); V("and_b32", b7, 7, v(V_L)); V("bfe_u32", p4, v(V_L), 3, 2)
    V("bfe_u32", r4, v(V_L), 2, 2); V("bfe_u32", g1, v(V_L), 4, 1); V("lshrrev_b32", l8, 3, v(V_L))
    x, y, z = t + 6, t + 7, t + 8
    S("xor_b32", T0, WV, 4); smul(T0, T0, 3072); sadd(T0, T0, L_SC); smul(T1, WV, 3072); sadd(T1, T1, L_SC)
    V("add_u32", PV_CW, T0, v(V_L16)); V("add_u32", PV_CR, T1, v(V_L16))
    sand(T0, WV, 1); smul(T0, T0, 4 * ZS2); smul(T1, CL, 8 * ZS2); sadd(T0, T0, T1); sadd(T0, T0, L_Z2 + 144)
    V("mul_u32_u24", x, ZS2, v(p4)); V("mul_u32_u24", z, 144, v(b7)); V("lshl_add_u32", z, v(hf), 4, v(z)); V("add3_u32", PV_ZW2, v(x), v(z), T0)
    V("lshl_add_u32", y, v(hf), 3, v(r4)); V("lshlrev_b32", PV_WF, 7, v(y))
    V("and_b32", x, 1, v(V_L)); V("lshl_or_b32", x, v(x), 1, v(g1))
    sand(T0, WV, 2); sshl(T0, T0, 1); V("or_b32", x, T0, v(x))
    V("bfe_u32", z, v(V_L), 3, 1); V("lshlrev_b32", z, 2, v(z)); V("xor_b32", x, v(x), v(z))
    V("lshl_add_u32", PV_WF, v(x), 4, v(PV_WF)); V("bfe_u32", z, v(V_L), 1, 1); V("lshl_add_u32", PV_WF, v(z), 3, v(PV_WF))
    sand(T1, WV, 1); sshl(T2, T1, 10); sadd(T2, T2, L_O); V("add_u32", PV_OR, T2, v(V_L16))
    smul(T1, T1, 4608); sshl(T0, T0, 4); sadd(T0, T0, T1); sadd(T0, T0, L_OT)
    V("and_b32", x, 31, v(V_L)); V("mul_u32_u24", x, 144, v(x)); V("lshl_add_u32", x, v(hf), 5, v(x)); V("add_u32", PV_OW, T0, v(x))
    smul(T0, WV, 1152); sadd(T0, T0, L_OT)
    V("lshlrev_b32", x, 4, v(b7)); V("mul_u32_u24", z, 144, v(l8)); V("add3_u32", PV_FR, v(z), v(x), T0); V("lshl_add_u32", PV_FS, v(l8), 11, v(x))
    sshl(sF2, JJ, 5); sadd(sF2, sF2, HH); sshl(sF2, sF2, 7); sadd(sF2, sF2, WS_F2)
    S("sub_u32", T1, sQL, WS_Q); sshr(T2, WV, 2); sshl(T2, T2, 10); sadd(T1, T1, T2); sadd(sOST, T1, WS_O)
    sshr(T1, WV, 1); sshl(T1, T1, 6); sshl(T2, XQ, 3); sadd(T1, T1, T2); sshr(T3, I5, 3); sshl(T2, T3, 1); sadd(T1, T1, T2)
    sand(T2, WV, 1); sadd(T1, T1, T2); sshl(T1, T1, 10); sadd(sOLD, T1, WS_O)
    sand(T0, I5, 7); sshl(T0, T0, 7)
    sshl(T1, XQ, 2); sadd(T1, T1, T3); sshl(T1, T1, 3); sadd(T1, T1, WV); sshl(T1, T1, 14); sadd(T1, T1, T0); sadd(sOUT, T1, 1024)

G_VX0, G_VX1, G_VWQ, G_VWK, G_VWV, G_PL = 32, 33, 34, 35, 36, 39
G_UA, G_US = 30, 31
G_UL, U2R = 160, 80
G_XA, G_WA, G_WB = 32, 40, 43
G_ACC = [48, 64, 80]
G_XF, G_W0F, G_W1F, G_VF = 96, 112, 128, 144
KB = 48
KR = 192

def loader_addr():
    t = VT
    c("loader DMA voffsets (wave v=w-4 covers rows 16v..16v+15 of each chunk)")
    V("lshrrev_b32", t, 3, v(V_L)); V("and_b32", t + 1, 7, v(V_L)); V("bfe_u32", t + 2, v(V_L), 4, 1)
    sand(T0, WV, 3); sshl(T4, T0, 11); sshl(T0, T0, 4)
    V("add_u32", t + 3, T0, v(t))
    V("bfe_u32", t + 4, v(t + 3), 1, 3); V("xor_b32", t + 4, v(t + 4), v(t + 1)); V("lshlrev_b32", t + 4, 4, v(t + 4))
    sshl(T1, GT, 16)
    V("lshl_add_u32", G_VX0, v(t + 3), 10, v(t + 4)); V("add_u32", G_VX0, T1, v(G_VX0)); V("xor_b32", G_VX1, 0x2040, v(G_VX0))
    V("mul_u32_u24", t + 5, 3072, v(t + 3)); sshl(T1, GQ, 7); V("add_u32", t + 5, T1, v(t + 5))
    V("lshlrev_b32", t + 6, 1, v(t + 2)); V("xor_b32", t + 6, v(t + 6), v(t + 1)); V("lshl_add_u32", G_VWQ, v(t + 6), 4, v(t + 5))
    V("xor_b32", t + 6, 4, v(t + 6)); V("lshl_add_u32", G_VWK, v(t + 6), 4, v(t + 5)); V("add_u32", G_VWK, 1024, v(G_VWK))
    V("lshlrev_b32", t + 6, 2, v(t + 2)); V("xor_b32", t + 6, v(t + 6), v(t + 1)); V("lshl_add_u32", G_VWV, v(t + 6), 4, v(t + 5)); V("add_u32", G_VWV, 2048, v(G_VWV))
    r = OPT["rot"]
    if r == 1: sshl(T5, GQ, 1); sadd(T5, T5, GT)
    else:
        sadd(T5, GQ, GT)
        if r == 3: sshl(T5, T5, 2)
        if r == 5: sand(T5, T5, 1)
        if r == 6: sshl(T5, T5, 1)

I0, I1, I2, I3 = "s20", "s21", "s22", "s23"
def issue_chunk(ci):
    base = (ci % 3) * 32768
    sadd(I0, T5, ci); sand(I0, I0, 7)
    sadd("m0", T4, base); sshl(I1, I0, 7)
    e("buffer_load_dwordx4 v%d, %s, %s offen lds" % (G_VX0, R_X, I1))
    sadd("m0", T4, base + 1024); smul(I2, I0, 196608)
    e("buffer_load_dwordx4 v%d, %s, %s offen lds" % (G_VX1, R_X, I1))
    for g, va in enumerate((G_VWQ, G_VWK, G_VWV)):
        for h in range(2):
            sadd("m0", T4, base + (g + 1) * 8192 + h * 1024)
            if g == 0 and h == 0: sadd(I3, I2, 24576)
            else: e("s_nop 0")
            e("buffer_load_dwordx4 v%d, %s, %s offen lds" % (va, R_W, I3 if h else I2))

def pi_tok(dst, src, t):
    V("and_b32", dst, 0x13, v(src)); V("bfe_u32", t, v(src), 2, 1); V("lshl_or_b32", dst, v(t), 3, v(dst))
    V("bfe_u32", t, v(src), 3, 1); V("lshl_or_b32", dst, v(t), 2, v(dst))

def gemm_read_addr():
    t = VT
    c("GEMM LDS fragment read addresses, publish addresses")
    pi_tok(t, V_L, t + 1)
    V("lshrrev_b32", t + 1, 5, v(V_L))
    V("lshlrev_b32", PV_QS, 4, v(t)); V("lshl_add_u32", PV_QS, v(t + 1), 9, v(PV_QS))
    sand(T0, WV, 1); sshl(T1, T0, 5); V("add_u32", t, T1, v(t))
    V("bfe_u32", t + 2, v(t), 1, 3); V("xor_b32", t + 2, v(t + 2), v(t + 1)); V("lshlrev_b32", t + 2, 4, v(t + 2))
    V("lshl_add_u32", G_XA, v(t), 7, v(t + 2))
    for s in range(1, 4): V("xor_b32", G_XA + s, 32 * s, v(G_XA))
    V("bfe_u32", t + 2, v(V_L), 2, 2); V("lshl_add_u32", t + 3, v(t + 1), 3, v(t + 2)); V("lshlrev_b32", t + 3, 7, v(t + 3))
    V("bfe_u32", t + 4, v(V_L), 4, 1); V("bfe_u32", t + 5, v(V_L), 3, 1); V("and_b32", t + 6, 1, v(V_L)); V("bfe_u32", t + 7, v(V_L), 1, 1)
    sand(T2, WV, 2); sshl(T1, T2, 1)
    V("or_b32", t + 8, T1, v(t + 6)); V("lshl_or_b32", t + 9, v(t + 4), 1, v(t + 5)); V("lshlrev_b32", t + 9, 1, v(t + 9))
    V("xor_b32", t + 8, v(t + 8), v(t + 9)); V("lshl_add_u32", t + 8, v(t + 8), 4, v(t + 3)); V("lshl_add_u32", t + 8, v(t + 7), 3, v(t + 8))
    V("lshl_add_u32", G_WA, v(t + 4), 13, v(t + 8)); V("add_u32", G_WA, 8192, v(G_WA)); V("xor_b32", G_WA + 1, 32, v(G_WA))
    V("lshl_or_b32", t + 8, v(t + 4), 1, v(t + 7)); V("or_b32", t + 8, T1, v(t + 8)); V("lshlrev_b32", t + 9, 2, v(t + 5))
    V("xor_b32", t + 8, v(t + 8), v(t + 9)); V("lshl_add_u32", t + 8, v(t + 8), 4, v(t + 3)); V("lshl_add_u32", t + 8, v(t + 6), 3, v(t + 8))
    V("add_u32", G_WA + 2, 24576, v(t + 8))
    for s in range(4): V("add_u32", G_XA + 4 + s, 0x10000, v(G_XA + s))
    for s in range(3): V("add_u32", G_WB + s, 0x10000, v(G_WA + s))
    V("and_b32", t + 2, 15, v(V_L)); V("lshlrev_b32", t + 2, 4, v(t + 2)); V("lshl_add_u32", t + 2, v(t + 1), 8, v(t + 2)); V("lshl_add_u32", PV_VS, v(t + 4), 16, v(t + 2))
    sshl(T1, GQ, 2); sadd(T1, T1, T2); sshl(T1, T1, 6); sshl(T3, GT, 1); sadd(T1, T1, T3); sadd(T1, T1, T0); sshl(sQKV, T1, 10)
    sshl(T0, T0, 8)
    e("s_bitcmp1_b32 %s, 1" % WV)
    csel(T1, L_TA + 14256, L_TA); csel(T2, L_TB + 16896, L_TB)
    sadd(T1, T1, T0); sadd(T2, T2, T0)
    V("lshl_add_u32", PV_TW, v(V_L), 2, T1); V("lshl_add_u32", 46, v(V_L), 2, T2)

G_UP = 29
def u_coop_loads():
    t = VT
    sshl(T1, I5, 2); sadd(T1, T1, WV); sshl(T1, T1, 2)
    V("bfe_u32", t, v(V_L), 3, 2); V("add_u32", t, T1, v(t)); V("and_b32", t + 1, 7, v(V_L))
    V("lshlrev_b32", t + 1, 4, v(t + 1)); V("lshl_add_u32", G_UA, v(t), 12, v(t + 1))
    sshl(T0, XQ, 7)
    e("s_mov_b32 exec_hi, 0")
    for k in range(4):
        e("buffer_load_dwordx4 %s, v%d, %s, %s offen offset:%d" % (vr(G_UL + 4 * k, 4), G_UA, R_U, T0, 1024 * k))
    e("s_mov_b32 exec_hi, -1")
    V("and_b32", t, 3, v(V_L)); V("bfe_u32", t + 1, v(V_L), 2, 3)
    V("lshl_add_u32", G_UP, v(t), 3, v(t + 1)); V("lshlrev_b32", G_UP, 2, v(G_UP))
    V("add_u32", t, T1, v(t)); V("lshlrev_b32", t, 4, v(t)); V("lshl_add_u32", G_US, v(t + 1), 15, v(t))

def u_coop_perm():
    D = 224
    e("s_waitcnt vmcnt(0)")
    for i in range(4):
        for k in range(4): e("ds_bpermute_b32 v%d, v%d, v%d" % (D + 4 * i + k, G_UP, G_UL + 4 * k + i))
def u_coop_stores():
    D = 224
    sshl(I0, XQ, 18); sadd(I0, I0, WS_U2)
    e("s_mov_b32 exec_hi, 0")
    for i in range(4):
        e("buffer_store_dwordx4 %s, v%d, %s, %s offen sc1" % (vr(D + 4 * i, 4), G_US, R_WS, I0))
        if i < 3: sadd(I0, I0, 8192)
    e("s_mov_b32 exec_hi, -1")

def flag_store(soff, t=VT):
    V("mov_b32", t, 0); V("mov_b32", t + 1, TAG)
    e("s_mov_b64 exec, 1")
    e("buffer_store_dword v%d, v%d, %s, %s offen sc1" % (t + 1, t, R_WS, soff))
    e("s_mov_b64 exec, -1")

def poll(label, soff, first_issued=None, t=VT, nwait=0):
    V("lshlrev_b32", t, 7, v(V_L))
    e("s_mov_b32 %s, 0" % CNT)
    e("s_mov_b32 exec_hi, 0")
    r = t + 1
    if first_issued is not None:
        r = first_issued
        e("s_waitcnt vmcnt(%d)" % nwait)
        e("s_branch %s_chk" % label)
    lab(label)
    e("buffer_load_dword v%d, v%d, %s, %s offen sc1" % (r, t, R_WS, soff))
    sadd(CNT, CNT, 1)
    e("s_waitcnt vmcnt(0)")
    lab(label + "_chk")
    e("v_cmp_ne_u32 vcc, %s, v%d" % (TAG, r))
    e("s_cmp_gt_u32 %s, 0x4000" % CNT)
    e("s_cbranch_scc1 %s_done" % label)
    e("s_cmp_lg_u64 vcc, 0")
    e("s_cbranch_scc1 %s" % label)
    lab(label + "_done")
    e("s_mov_b32 exec_hi, -1")

def kgen_addr():
    t = VT
    c("SPLIT")
    V("bfe_u32", t, v(V_L), 4, 1); V("bfe_u32", t + 1, v(V_L), 2, 1); V("lshl_or_b32", t, v(t), 1, v(t + 1))
    V("bfe_u32", t + 1, v(V_L), 3, 1); V("and_b32", t + 2, 3, v(V_L)); V("lshl_or_b32", t + 1, v(t + 1), 2, v(t + 2))
    e("v_cmp_eq_u32 s[4:5], 0, v%d" % t)
    e("v_cmp_eq_u32 vcc, 1, v%d" % t)
    e("s_bitcmp1_b32 %s, 0" % WV)
    csel(T0, 0x11100000, 0x76543210); csel(T1, 0x11100000, 0x43222100); csel(T2, 0x11100000, 0x22111000); csel(T3, 0x19171513, 0x100d0800)
    V("mov_b32", t + 2, T2); V("mov_b32", t + 3, T1); V("cndmask_b32", t + 2, v(t + 2), v(t + 3), "vcc")
    V("mov_b32", t + 3, T0); V("cndmask_b32", t + 2, v(t + 2), v(t + 3), "s[4:5]")
    V("lshlrev_b32", t + 1, 2, v(t + 1)); V("bfe_u32", t + 2, v(t + 2), v(t + 1), 4)
    V("lshlrev_b32", t, 3, v(t)); V("bfe_u32", t, T3, v(t), 8); V("add_u32", t, v(t), v(t + 2))
    V("lshrrev_b32", t + 1, 5, v(V_L)); V("and_b32", t + 2, 31, v(V_L))
    e("s_cselect_b32 %s, 2048, 0" % T3)
    e("s_cselect_b32 %s, 0, -1" % CNT)
    e("s_bitcmp1_b32 %s, 1" % WV)
    csel(T0, L_TA + 14256, L_TA); csel(T1, L_TB + 16896, L_TB); csel(T2, L_KF + 4160 + 64, L_KF + 64)
    sadd(T2, T2, T3)
    V("mul_u32_u24", t, 528, v(t)); V("lshl_add_u32", t + 3, v(t + 1), 4, T0); V("add_u32", PV_GA, v(t), v(t + 3))
    V("mul_u32_u24", t, 528, v(t + 2)); V("lshl_add_u32", t + 3, v(t + 1), 4, T1); V("add_u32", PV_GB, v(t), v(t + 3))
    V("lshl_add_u32", t, v(t + 1), 9, T2); V("lshl_add_u32", PV_GW, v(t + 2), 4, v(t))
    e("s_waitcnt lgkmcnt(0)")
    sadd(TAG, TAG, 1)
    e("s_bitcmp1_b32 %s, 1" % WV)
    e("s_cselect_b32 %s, 0, 16" % T0)
    sshl(T0, DS2, T0); sand(T0, T0, 0xffff0000); sand(T0, T0, CNT)
    e("v_cmp_eq_u32 vcc, 0, v%d" % V_L)
    V("mov_b32", PV_GD, T0)
    sand(T1, WV, 3); sshl(T1, T1, 8); sadd(T1, T1, L_UP + 128)
    V("cndmask_b32", PV_GD, 0, v(PV_GD), "vcc")
    V("lshl_add_u32", PV_US, v(V_L), 1, T1)

def pads():
    t = VT
    c("SPLIT")
    for i in range(4): V("mov_b32", t + 4 + i, 0)
    V("lshrrev_b32", t, 3, v(V_L)); V("mul_u32_u24", t, 1152, v(t)); V("and_b32", t + 1, 7, v(V_L)); V("lshl_add_u32", t, v(t + 1), 4, v(t)); V("add_u32", t, L_UP, v(t))
    V("bfe_u32", t + 1, v(V_L), 2, 1); V("mul_u32_u24", t + 1, 4160, v(t + 1)); V("and_b32", t + 2, 3, v(V_L)); V("lshl_add_u32", t + 1, v(t + 2), 4, v(t + 1)); V("add_u32", t + 1, L_KF, v(t + 1))
    V("lshlrev_b32", t + 2, 4, v(t + 2)); V("add_u32", t + 2, L_FL, v(t + 2))
    for k in range(3): e("ds_write_b128 v%d, %s" % (t + k, vr(t + 4, 4)))

def loader_path():
    c("======== loader waves ========")
    loader_addr()
    e("s_waitcnt lgkmcnt(0)")
    stamp("karg")
    srd(R_X, S_X, 2048 * 1024); srd(R_W, S_W, 512 * 3072)
    scalar_loads()
    issue_chunk(0)
    srd(R_WS, S_WS, WS_SIZE); srd(R_OUT, S_OUT, 2048 * 2048); srd(R_WO, S_WO, 512 * 1024)
    late = capture(lambda: (precompute_conv(), precompute(), kgen_addr(), pads()))
    def upto(n):
        while n < len(late) and "SPLIT" not in late[n]: n += 1
        SINK[0].extend(late[:n]); del late[:n]
    upto(OPT["npre"])
    issue_chunk(1)
    waits = [8, 8, 8, 8, 8, 8, 9, 1]
    for ci in range(8):
        c("loader chunk %d" % ci)
        e("s_waitcnt vmcnt(%d)" % waits[ci])
        if OPT["ldst"] and ci in (1, 2, 3, 4, 5): e("s_memtime s[%d:%d]" % (80 + 4 * (ci - 1), 81 + 4 * (ci - 1)))
        e("s_barrier")
        if OPT["ldst"] and ci in (1, 2, 3, 4, 5): e("s_memtime s[%d:%d]" % (82 + 4 * (ci - 1), 83 + 4 * (ci - 1)))
        if ci in (0, 7): stamp("ch%d" % ci)
        if ci + 2 < 8: issue_chunk(ci + 2)
        if ci == 5:
            sshl(T5, XQ, 12); sadd(T5, T5, WS_F0)
            V("lshlrev_b32", 42, 7, v(V_L))
            e("s_mov_b32 exec_hi, 0")
            e("buffer_load_dword v%d, v42, %s, %s offen sc1" % (G_PL, R_WS, T5))
            e("s_mov_b32 exec_hi, -1")
            upto(len(late) // 2)
        if ci == 6: upto(9999)
    poll("L_poll0", T5, first_issued=G_PL, nwait=0)
    c("u of this WG's channel pair (transposed by the group)")
    sshl(T0, XQ, 5); sadd(T0, T0, I5); sshl(T0, T0, 13); sadd(T0, T0, T4); sadd(T0, T0, WS_U2)
    e("buffer_load_dwordx4 %s, v%d, %s, %s offen sc1" % (vr(U2R, 4), V_L16, R_WS, T0))
    e("buffer_load_dwordx4 %s, v%d, %s, %s offen offset:1024 sc1" % (vr(U2R + 4, 4), V_L16, R_WS, T0))
    e("s_barrier")
    stamp("K1")
    c("---- S4 kernel K = A-table x B-table (rows duplicated to realise bf16(l)) ----")
    FA, FB, AC = 96, 128, 160
    def rd(s):
        e("ds_read_b128 %s, v%d offset:%d" % (vr(FA + 4 * (s % 8), 4), PV_GA, 32 * s))
        e("ds_read_b128 %s, v%d offset:%d" % (vr(FB + 4 * (s % 8), 4), PV_GB, 32 * s))
    for s in range(7): rd(s)
    e("v_and_b32 v%d, 1, v%d" % (VT, V_L))
    e("v_cmp_eq_u32 vcc, 0, v%d" % VT)
    uw = []
    for h in range(2):
        for p in range(4):
            uw.append("    ds_write_b16 v%d, v%d offset:%d" % (PV_US, U2R + 4 * h + p, 1152 * p + 128 * h))
            uw.append("    ds_write_b16_d16_hi v%d, v%d offset:%d" % (PV_US, U2R + 4 * h + p, 4608 + 1152 * p + 128 * h))
    nw = 0
    for s in range(16):
        e("s_waitcnt lgkmcnt(%d)" % (2 * (min(s + 6, 15) - s) + nw))
        e("v_mfma_f32_32x32x16_bf16 %s, %s, %s, %s" % (vr(AC, 16), vr(FA + 4 * (s % 8), 4), vr(FB + 4 * (s % 8), 4), "0" if s == 0 else vr(AC, 16)))
        if s + 7 < 16: rd(s + 7)
        if s == 10: e("s_waitcnt vmcnt(0)")
        if 10 <= s < 15:
            SINK[0].extend(uw[nw:nw + 3]); nw += 3
    SINK[0].extend(uw[15:])
    nop(11)
    V("add_f32", AC, v(AC), v(PV_GD))
    e("s_bitcmp1_b32 %s, 0" % WV)
    e("s_cbranch_scc0 L_kg_nofix")
    V("cndmask_b32", AC + 4, v(AC + 5), v(AC + 3), "vcc"); V("cndmask_b32", AC + 12, v(AC + 13), v(AC + 11), "vcc")
    lab("L_kg_nofix")
    for i in range(8): V("cvt_pk_bf16_f32", FA + i, v(AC + 2 * i), v(AC + 2 * i + 1))
    e("ds_write_b128 v%d, %s" % (PV_GW, vr(FA, 4)))
    e("ds_write_b128 v%d, %s offset:1024" % (PV_GW, vr(FA + 4, 4)))
    e("s_branch L_gemm_done")

def cmul_multi(lst):
    for d, a, b in lst:
        e("v_pk_mul_f32 %s, %s, %s op_sel:[0,0] op_sel_hi:[1,0]" % (vr(d, 2), vr(a, 2), vr(b, 2)))
    for d, a, b in lst:
        e("v_pk_fma_f32 %s, %s, %s, %s op_sel:[1,1,0] op_sel_hi:[0,1,1] neg_lo:[1,0,0]" % (vr(d, 2), vr(a, 2), vr(b, 2), vr(d, 2)))
def cexp_multi(lst, va, vb):
    for d, Lf, t, cj in lst:
        V("mul_f32", t, fl(Lf), v(va)); V("mul_f32", t + 1, fl(-Lf if cj else Lf), v(vb)); V("fract_f32", t + 1, v(t + 1))
    for d, Lf, t, cj in lst:
        V("exp_f32", t, v(t)); V("cos_f32", d, v(t + 1)); V("sin_f32", d + 1, v(t + 1))
    e("s_nop 0")
    for d, Lf, t, cj in lst:
        e("v_pk_mul_f32 %s, %s, %s op_sel:[0,0] op_sel_hi:[1,0]" % (vr(d, 2), vr(d, 2), vr(t, 2)))

KVA, KVB, KVD = 247, 248, 249
def kgen_b():
    c("---- S4 mode tables: B = exp(z*8j) -> LDS ----")
    va, vb, vdt, ta = KVA, KVB, KVD, VT + 4
    e("s_bitcmp1_b32 %s, 1" % WV)
    e("s_cselect_b32 %s, 0, 16" % T0)
    sshl(T0, LD2, T0); sand(T0, T0, 0xffff0000)
    V("mov_b32", vdt, fl(LOG2E)); V("mul_f32", vdt, T0, v(vdt)); V("exp_f32", vdt, v(vdt))
    for i in range(2): V("lshlrev_b32", V_PAR + i, 16, v(V_PAR + i))
    V("cvt_pk_bf16_f32", vdt, v(vdt), v(vdt)); V("and_b32", vdt, 0xffff0000, v(vdt))
    V("mul_f32", va, v(vdt), v(V_PAR)); V("mul_f32", vb, v(vdt), v(V_PAR + 1))
    V("mul_f32", va, fl(LOG2E), v(va)); V("mul_f32", vb, fl(1.0 / (2 * math.pi)), v(vb))
    P = lambda j: KB + 2 * j
    G = lambda k: KB + 16 + 2 * k
    X = KB + 24
    cv = [KB + 40 + i for i in range(8)]
    n = [0]
    def putb(row, pr):
        r = cv[n[0] % 8]; n[0] += 1
        V("cvt_pk_bf16_f32", r, v(pr), v(pr + 1))
        e("ds_write_b32 v46, v%d offset:%d" % (r, row * 528))
    cexp_multi([(P(1), 8.0, ta, 0), (G(1), 64.0, ta + 2, 0)], va, vb)
    V("mov_b32", cv[7], 0x3f80); e("ds_write_b32 v46, v%d" % cv[7])
    cmul_multi([(P(2), P(1), P(1)), (G(2), G(1), G(1))])
    putb(1, P(1)); putb(8, G(1))
    cmul_multi([(P(3), P(2), P(1)), (P(4), P(2), P(2)), (G(3), G(2), G(1))])
    putb(2, P(2)); putb(16, G(2))
    cmul_multi([(P(5), P(4), P(1)), (P(6), P(4), P(2)), (P(7), P(4), P(3))])
    for r, p in ((3, P(3)), (4, P(4)), (24, G(3)), (5, P(5)), (6, P(6)), (7, P(7))): putb(r, p)
    for k in range(1, 4):
        cmul_multi([(X + 2 * j, P(j), G(k)) for j in range(1, 8)])
        for j in range(1, 8): putb(8 * k + j, X + 2 * j)

def kgen_a():
    va, vb, vdt, ta = KVA, KVB, KVD, VT + 4
    E = lambda j: 224 + 2 * j - 2
    Q = lambda j: 160 + 2 * j
    H = lambda k: 176 + 2 * k
    X = 224
    def puta(row, pr): V("cvt_pk_bf16_f32", KR + row, v(pr), v(pr + 1))
    cexp_multi([(E(1), 1.0, ta, 1), (H(1), 256.0, ta + 2, 1)], va, vb)
    for i in range(2, 6): V("lshlrev_b32", V_PAR + i, 16, v(V_PAR + i))
    V("mul_f32", ta, v(vdt), v(V_PAR + 2)); e("v_mul_f32 v%d, -v%d, v%d" % (ta + 1, vdt, V_PAR + 3))
    V("mov_b32", ta + 2, v(V_PAR + 4)); V("mul_f32", ta + 3, "-1.0", v(V_PAR + 5))
    cmul_multi([(Q(0), ta, ta + 2), (E(2), E(1), E(1)), (H(2), H(1), H(1))])
    cmul_multi([(E(3), E(2), E(1)), (E(4), E(2), E(2)), (H(3), H(2), H(1)), (H(4), H(2), H(2))])
    puta(0, Q(0))
    cmul_multi([(E(5), E(4), E(1)), (E(6), E(4), E(2)), (E(7), E(4), E(3)), (E(8), E(4), E(4)), (H(5), H(4), H(1)), (H(6), H(4), H(2)), (H(7), H(4), H(3))])
    cmul_multi([(Q(j), Q(0), E(j)) for j in range(1, 9)])
    for j in range(1, 8): puta(j, Q(j))
    cmul_multi([(X + 2 * i, H(1), Q(2 * i)) for i in range(5)] + [(X + 10 + 2 * i, H(2), Q(4 * i)) for i in range(3)])
    for i in range(8): puta(8 + i, X + 2 * i)
    cmul_multi([(X + 2 * i, H(3), Q(4 * i)) for i in range(3)] + [(X + 6, H(4), Q(0)), (X + 8, H(4), Q(8)), (X + 10, H(5), Q(0)), (X + 12, H(5), Q(8))])
    for i in range(7): puta(16 + i, X + 2 * i)
    cmul_multi([(X, H(6), Q(0)), (X + 2, H(6), Q(8)), (X + 4, H(7), Q(0)), (X + 6, H(7), Q(8))])
    for i in range(4): puta(23 + i, X + 2 * i)

def compute_path():
    t = VT
    lab("L_compute")
    c("======== compute waves ========")
    e("s_bfe_u32 %s, %s, 0x10001" % (T0, WV)); sadd(T0, T0, C0); sshl(T0, T0, 8); sand(T1, WV, 1); sshl(T1, T1, 7); sadd(T0, T0, T1)
    V("lshl_add_u32", V_PA, v(V_L), 1, T0)
    e("s_waitcnt lgkmcnt(0)")
    stamp("karg")
    for i, s in enumerate((S_ARE, S_AIM, S_BRE, S_BIM, S_CRE, S_CIM)):
        e("global_load_ushort v%d, v%d, %s" % (V_PAR + i, V_PA, sr(s, 2)))
    scalar_loads()
    srd(R_U, S_U, 2048 * 1024)
    u_coop_loads()
    if OPT["pf"]:
        c("pull this WG's 1/32 share of the code into L2")
        e("s_getpc_b64 s[4:5]")
        lab("L_pc")
        sshl(T0, I5, 3); V("add_u32", t, T0, v(V_L)); V("lshlrev_b32", t, 7, v(t))
        e("v_min_u32 v%d, L_end-L_pc-4, v%d" % (t, t))
        e("s_mov_b64 exec, 0xff")
        e("global_load_dword v47, v%d, s[4:5]" % t)
        e("s_mov_b64 exec, -1")
    srd(R_WS, S_WS, WS_SIZE); srd(R_OUT, S_OUT, 2048 * 2048); srd(R_WO, S_WO, 512 * 1024)
    gemm_read_addr()
    e("s_waitcnt vmcnt(%d) lgkmcnt(0)" % (9 if OPT["pf"] else 8))
    sadd(TAG, TAG, 1)
    kgen_b()
    pc = [x for x in capture(kgen_a) if not x.strip().startswith(";")]
    if "F" in OPT["abl"]: pc = pc[:20]
    if "U" in OPT["abl"]: pc = pc[20:]
    def f0flag():
        sshl(I0, XQ, 5); sadd(I0, I0, I5); sshl(I0, I0, 7); sadd(I0, I0, WS_F0)
        flag_store(I0, 26)
    def fill(n):
        for _ in range(n):
            if pc: SINK[0].append(pc.pop(0))
    def ml(s, first=False):
        cc = lambda k: "0" if first else vr(G_ACC[k], 16)
        return ["v_mfma_f32_32x32x16_bf16 %s, %s, %s, %s" % (vr(G_ACC[0], 16), vr(G_W0F + 4 * s, 4), vr(G_XF + 4 * s, 4), cc(0)),
                "v_mfma_f32_32x32x16_bf16 %s, %s, %s, %s" % (vr(G_ACC[1], 16), vr(G_W1F + 4 * s, 4), vr(G_XF + 4 * s, 4), cc(1)),
                "v_mfma_f32_32x32x16_bf16 %s, %s, %s, %s" % (vr(G_ACC[2], 16), vr(G_XF + 4 * s, 4), vr(G_VF + 4 * s, 4), cc(2))]
    def ilv(ms, rs, nf):
        k = 0
        for i, m in enumerate(ms):
            if "M" not in OPT["abl"] or m.endswith(", 0"): e(m)
            upto = (len(rs) * (i + 1) + len(ms) - 1) // len(ms)
            SINK[0].extend(rs[k:upto]); k = upto
            fill(nf)
    for ci in range(8):
        c("compute chunk %d" % ci)
        hi = (ci % 3) == 2
        ib = 32768 if ci % 3 == 1 else 0
        xa = G_XA + (4 if hi else 0)
        wa = G_WB if hi else G_WA
        if ci == 4: e("s_waitcnt vmcnt(0)")
        e("s_barrier")
        if ci in (0, 7): stamp("ch%d" % ci)
        if ci == 4: f0flag()
        def reads(s):
            if "R" in OPT["abl"]: return
            e("ds_read_b128 %s, v%d offset:%d" % (vr(G_XF + 4 * s, 4), xa + s, ib))
            for k, f in enumerate((G_W0F, G_W1F, G_VF)):
                for tt in range(2):
                    e("ds_read_b64_tr_b16 %s, v%d offset:%d" % (vr(f + 4 * s + 2 * tt, 2), wa + k, ib + (16 * s + 4 * tt) * 128))
        r0, r1 = capture(reads, 0), capture(reads, 1)
        nf = 1 if 0 < ci < 7 else 0
        if ci > 0:
            SINK[0].extend(r0[:3]); ilv(ml(3), r0[3:] + r1[:5], 0); SINK[0].extend(r1[5:])
        else: SINK[0].extend(r0 + r1)
        fill(7 * nf)
        e("s_waitcnt lgkmcnt(7)"); ilv(ml(0, ci == 0), capture(reads, 2), nf)
        e("s_waitcnt lgkmcnt(7)"); ilv(ml(1), capture(reads, 3), nf)
        e("s_waitcnt lgkmcnt(7)")
        if ci < 7:
            if ci == 0: ilv(ml(2), capture(u_coop_perm), 0)
            else: ilv(ml(2), [], 3 * nf)
            if ci == 6: fill(999)
            e("s_waitcnt lgkmcnt(0)")
            if ci == 0: u_coop_stores()
    tw = ["    ds_write_b32 v%d, v%d offset:%d" % (PV_TW, KR + r, r * 528) for r in range(27)]
    ilv(ml(2), tw[:8], 0)
    e("s_waitcnt lgkmcnt(8)")
    ilv(ml(3), tw[8:], 0)
    sadd(T1, sQKV, WS_K); sadd(T2, sQKV, WS_K + 65536); sadd(T3, sQKV, WS_V); sadd(T4, sQKV, WS_Q + 65536); sadd(T0, sQKV, WS_Q)
    e("s_waitcnt lgkmcnt(0)")
    e("s_barrier")
    stamp("K1")
    c("GEMM epilogue: publish Q,K,V")
    P = G_XF
    def pk(dst, src):
        for i in range(4): V("cvt_pk_bf16_f32", dst + i, v(src + 2 * i), v(src + 1 + 2 * i))
    def st(r, va, so, off=0):
        e("buffer_store_dwordx4 %s, v%d, %s, %s offen%s sc1" % (vr(r, 4), va, R_WS, so, " offset:%d" % off if off else ""))
    pk(P, G_ACC[0] + 8); st(P, PV_QS, T1)
    pk(P + 4, G_ACC[1] + 8); st(P + 4, PV_QS, T2)
    pk(P + 8, G_ACC[2]); st(P + 8, PV_VS, T3)
    pk(P + 12, G_ACC[2] + 8); st(P + 12, PV_VS, T3, 512)
    for k, so in ((0, T0), (1, T4)):
        for i in range(8): V("mul_f32", G_ACC[k] + i, fl(0.25 * LOG2E), v(G_ACC[k] + i))
        pk(P + 16 + 4 * k, G_ACC[k]); st(P + 16 + 4 * k, PV_QS, so)
    stamp("pub")
    precompute_conv()

C_LO, C_UP = 128, 144
C_A, C_X, C_Y = 160, 176, 192
def signal(tag, cnt_off, last, soff):
    t = VT + 4
    V("mov_b32", t + 2, L_FL + cnt_off); V("mov_b32", t + 3, 1)
    e("s_waitcnt vmcnt(0)")
    e("s_mov_b64 exec, 1")
    e("ds_add_rtn_u32 v%d, v%d, v%d" % (t + 3, t + 2, t + 3))
    e("s_mov_b64 exec, -1")
    e("s_waitcnt lgkmcnt(0)")
    e("v_readfirstlane_b32 %s, v%d" % (T0, t + 3))
    e("s_cmp_eq_u32 %s, %d" % (T0, last))
    e("s_cbranch_scc0 L_sig_%s" % tag)
    flag_store(soff, t)
    lab("L_sig_%s" % tag)

def conv_job(T, s0, nfull, tail, va, vb, sig=None, sig_after=1):
    def rdA(k, sg):
        e("ds_read_b64_tr_b16 %s, v%d offset:%d" % (vr(C_A + 4 * k, 2), va, 128 * sg + 32))
        e("ds_read_b64_tr_b16 %s, v%d offset:%d" % (vr(C_A + 4 * k + 2, 2), va, 128 * sg))
    def rdB(dst, k, sg):
        e("ds_read_b128 %s, v%d offset:%d" % (vr(dst + 4 * k, 4), vb, 112 + 128 * T - 32 * sg))
    def mf(acc, k, b, first=False):
        e("v_mfma_f32_32x32x16_bf16 %s, %s, %s, %s" % (vr(acc, 16), vr(C_A + 4 * k, 4), vr(b + 4 * k, 4), "0" if first else vr(acc, 16)))
    pend = []
    def note(step, n): pend.extend([step] * n)
    def wait(step):
        n = sum(1 for x in pend if x > step)
        e("s_waitcnt lgkmcnt(%d)" % n)
        pend[:] = [x for x in pend if x > step]
    for k in range(4):
        rdA(k, s0 + k); rdB(C_Y, k, s0 + k - 4); rdB(C_X, k, s0 + k); note(k, 4)
    cur, old = C_X, C_Y
    for sec in range(nfull):
        for k in range(4):
            st = 4 * sec + k
            wait(st)
            mf(C_UP, k, old, st == 0)
            if sec + 1 < nfull: rdB(old, k, s0 + st + 4); note(st + 4, 1)
            mf(C_LO, k, cur, st == 0)
            if sec + 1 < nfull or tail: rdA(k, s0 + st + 4); note(st + 4, 2)
        cur, old = old, cur
        if sig and sec + 1 == sig_after: sig(); del pend[:]
    if tail:
        for k in range(4):
            wait(4 * nfull + k)
            mf(C_UP, k, old)
        nop(2)
    else: nop(12)

def z_writes(va, row0):
    for k in range(4): e("ds_write_b128 v%d, %s offset:%d" % (va, vr(C_LO + 4 * k, 4), 144 * row0 + 32 * k))
    nop(8)
    for k in range(4): e("ds_write_b128 v%d, %s offset:%d" % (va, vr(C_UP + 4 * k, 4), 144 * (row0 + 8) + 32 * k))

def conv():
    c("---- causal conv as Toeplitz MFMA, output tiles 0..5 ----")
    e("s_cmp_ge_u32 %s, 4" % WV)
    e("s_cbranch_scc1 L_conv_hi")
    e("s_bitcmp1_b32 %s, 0" % WV)
    e("s_cbranch_scc1 L_conv_2a")
    conv_job(0, 0, 1, True, PV_CA, PV_CB, lambda: signal("a", 16, 3, sF1)); z_writes(PV_ZW, 0)
    e("s_branch L_conv_done")
    lab("L_conv_2a")
    conv_job(4, 0, 3, False, PV_CA, PV_CB, lambda: signal("b", 16, 3, sF1), 2); z_writes(PV_ZW, 32)
    e("s_branch L_conv_done")
    lab("L_conv_hi")
    e("s_bitcmp1_b32 %s, 0" % WV)
    e("s_cbranch_scc1 L_conv_2b")
    conv_job(2, 0, 3, True, PV_CA, PV_CB); z_writes(PV_ZW, 16)
    e("s_branch L_conv_done")
    lab("L_conv_2b")
    conv_job(4, 12, 2, True, PV_CA, PV_CB); z_writes(PV_ZW, 32 + 17)
    lab("L_conv_done")
    stamp("cend")

def kv_tiles(msrc, soff):
    e("s_mov_b32 m0, %s" % msrc)
    e("s_nop 0")
    for i in range(8):
        if i == 4: sadd("m0", "m0", 4096); sadd(soff, soff, 4096)
        e("buffer_load_dwordx4 v%d, %s, %s offen offset:%d sc1 lds" % (V_L16, R_WS, soff, 1024 * (i % 4)))

def kv_early():
    t = VT
    e("s_cmp_ge_u32 %s, 4" % WV)
    e("s_cbranch_scc1 L_kve_done")
    precompute(); precompute_tail()
    e("s_bitcmp1_b32 %s, 0" % WV)
    e("s_cbranch_scc1 L_kve_done")
    e("s_cmp_eq_u32 %s, 0" % WV)
    e("s_cbranch_scc0 L_kve_w2")
    for i in range(4): V("mov_b32", C_A + i, 0)
    V("and_b32", t + 2, 7, v(V_L)); V("mul_u32_u24", t + 2, ZS, v(t + 2)); V("bfe_u32", t + 3, v(V_L), 3, 1); V("mul_u32_u24", t + 3, 49 * 144, v(t + 3))
    V("add_u32", t + 2, v(t + 2), v(t + 3)); V("add_u32", t + 2, L_Z + 112, v(t + 2))
    e("ds_write_b128 v%d, %s" % (t + 2, vr(C_A, 4)))
    e("s_mov_b32 %s, 0" % T5); sadd(T3, sHB, WS_K)
    e("s_branch L_kve_go")
    lab("L_kve_w2")
    e("s_mov_b32 %s, 8192" % T5); sadd(T3, sHB, WS_V)
    lab("L_kve_go")
    poll("L_poll1", sF1P, t=VT + 4)
    stamp("poll1")
    sshl(T0, JJ, 13); sadd(T0, T0, T3)
    kv_tiles(T5, T0)
    sadd(T0, JJ, 1); sand(T0, T0, 7); sshl(T0, T0, 13); sadd(T0, T0, T3); sadd(T5, T5, BLK)
    kv_tiles(T5, T0)
    lab("L_kve_done")

A_Q = [64, 68]
A_S = [72, 88]
A_O = [104, 120]
A_KF = [136, 140]
A_VA = [144, 148]
A_VB = [152, 156]
A_IDX = 160
A_F = 164
A_NM = 72 + 16
WOR = 192
Y_R = 32
def conv_epilogue():
    c("y[t] = sum_p Z_p[t-p]")
    e("s_waitcnt lgkmcnt(0)")
    e("s_barrier")
    stamp("zbar")
    e("buffer_load_dwordx4 %s, v%d, %s, %s offen sc1" % (vr(A_Q[0], 4), V_L16, R_WS, sQL))
    e("buffer_load_dwordx4 %s, v%d, %s, %s offen offset:1024 sc1" % (vr(A_Q[1], 4), V_L16, R_WS, sQL))
    order = [(0, 0), (0, 4 * ZS), (288, 0), (288, 4 * ZS), (0, 0), (17 * 144, 0), (0, 4 * ZS), (17 * 144, 4 * ZS)]
    def rd(n):
        if n == 4:
            for p in range(4): V("add_u32", PV_ZR + p, T0, v(PV_ZR + p))
        for p in range(4): e("ds_read_b32 v%d, v%d offset:%d" % (Y_R + 4 * n + p, PV_ZR + p, sum(order[n])))
    rd(0); rd(1); rd(2)
    smul(T0, WV, 288); e("s_sub_u32 %s, 4608, %s" % (T0, T0))
    e("s_cmp_eq_u32 %s, 6" % WV)
    e("s_cbranch_scc0 L_nocarry")
    c("carry: last rows of tile 5 (both partials) feed y[1536..1538], finished in the tail")
    t = VT
    for i in range(4): V("mov_b32", PV_CY + i, 0)
    V("and_b32", t, 7, v(V_L)); V("mul_u32_u24", t, ZS, v(t)); V("bfe_u32", t + 1, v(V_L), 3, 1); V("mul_u32_u24", t + 1, 17 * 144, v(t + 1))
    V("add_u32", t, v(t), v(t + 1)); V("add_u32", t, L_Z + 48 * 144 + 112, v(t))
    e("s_mov_b64 exec, 0xffff")
    e("ds_read_b128 %s, v%d" % (vr(PV_CY, 4), t))
    e("s_mov_b64 exec, -1")
    e("s_waitcnt lgkmcnt(0)")
    lab("L_nocarry")
    V("mov_b32", A_IDX, 0xdddddddd)
    V("and_b32", VT, 31, v(V_L)); e("v_cmp_eq_u32 vcc, 16, v%d" % VT); V("mov_b32", VT, 0x3f803f80)
    e("s_mov_b32 s4, 0xffff"); e("s_mov_b32 s5, 0xffff")
    zs = ["    v_cndmask_b32 v%d, 0, v%d, vcc" % (A_VA[0] + i, VT) for i in range(16)]
    zs += ["    v_mov_b32 v%d, 0" % (A_O[0] + i) for i in list(range(9)) + list(range(16, 25))]
    zs += ["    v_mov_b32 v%d, 0" % (A_O[0] + i) for i in list(range(9, 16)) + list(range(25, 32))]
    for n in range(8):
        r = Y_R + 4 * n
        SINK[0].extend(zs[6 * n:6 * n + 6])
        e("s_waitcnt lgkmcnt(%d)" % (4 * (min(n + 2, 7) - n)))
        if n + 3 < 8: rd(n + 3)
        V("add_f32", r, v(r), v(r + 1)); V("add_f32", r + 2, v(r + 2), v(r + 3)); V("add_f32", r, v(r), v(r + 2))
        if n in (1, 3): V("cvt_pk_bf16_f32", V_Y + n // 2, v(r - 4), v(r))
        if n in (5, 7): V("add_f32", r, v(r), v(r - 4))
    V("cvt_pk_bf16_f32", V_Y + 2, v(Y_R + 20), v(Y_R + 28))

def kv_late():
    t = VT
    e("s_cmp_ge_u32 %s, 4" % WV)
    e("s_cbranch_scc0 L_kvl_done")
    sand(T1, WV, 3); sshl(T0, T1, 2); sadd(T0, T0, L_FL)
    V("mov_b32", t, T0); V("mov_b32", t + 1, 1); V("mov_b32", t + 2, 2)
    sshl(T1, T1, 11); sadd(T0, sHB, T1)
    for b in range(2, 8):
        sadd(T2, JJ, b); sand(T2, T2, 7); sshl(T2, T2, 13); sadd(T2, T2, T0)
        sadd("m0", T1, b * BLK); sadd(T3, T2, WS_K)
        e("buffer_load_dwordx4 v%d, %s, %s offen sc1 lds" % (V_L16, R_WS, T3))
        sadd(T4, T2, WS_V)
        e("buffer_load_dwordx4 v%d, %s, %s offen offset:1024 sc1 lds" % (V_L16, R_WS, T3))
        sadd("m0", T1, b * BLK + 8192); e("s_nop 0")
        e("buffer_load_dwordx4 v%d, %s, %s offen sc1 lds" % (V_L16, R_WS, T4))
        e("buffer_load_dwordx4 v%d, %s, %s offen offset:1024 sc1 lds" % (V_L16, R_WS, T4))
        if b == 5:
            e("s_waitcnt vmcnt(8)")
            e("ds_write_b32 v%d, v%d" % (t, t + 1))
    precompute_tail()
    e("s_waitcnt vmcnt(0) lgkmcnt(0)")
    e("ds_write_b32 v%d, v%d" % (t, t + 2))
    lab("L_kvl_done")

def kv_check(stage):
    t = VT + 4
    lb = "L_kvchk%d" % stage
    V("mov_b32", t, L_FL)
    e("s_mov_b32 %s, 0" % T3)
    lab(lb)
    e("ds_read_b128 %s, v%d" % (vr(t + 2, 4), t))
    sadd(T3, T3, 1)
    e("s_waitcnt lgkmcnt(0)")
    V("min_u32", t + 2, v(t + 2), v(t + 3)); V("min3_u32", t + 2, v(t + 2), v(t + 4), v(t + 5))
    e("s_cmp_gt_u32 %s, 0x40000" % T3)
    e("s_cbranch_scc1 %s_done" % lb)
    e("v_readfirstlane_b32 %s, v%d" % (T4, t + 2))
    e("s_cmp_lt_u32 %s, %d" % (T4, stage))
    e("s_cbranch_scc1 %s" % lb)
    lab(lb + "_done")

def attn_main():
    c("---- attention main loop: wave = 2 q-tiles x 32 key tiles (parity w>>2), fully unrolled ----")
    base = [0]
    koff = lambda i: (i // 4 - base[0]) * BLK + (i % 4) * 2048
    def rdK(i):
        if i < 32: e("ds_read_b128 %s, v%d offset:%d" % (vr(A_KF[i & 1], 4), PV_KA, koff(i)))
    def rdV(i):
        if i < 32:
            e("s_mov_b64 exec, s[4:5]")
            e("ds_read_b128 %s, v%d offset:%d" % (vr(A_VA[i & 1], 4), PV_V0, koff(i)))
            e("ds_read_b128 %s, v%d offset:%d" % (vr(A_VB[i & 1], 4), PV_V0, koff(i) + 512))
            e("s_mov_b64 exec, -1")
    def qk(i, q):
        if i < 32: e("v_mfma_f32_32x32x16_bf16 %s, %s, %s, 0" % (vr(A_S[q], 16), vr(A_KF[i & 1], 4), vr(A_Q[q], 4)))
    def pv(i, q, half):
        if i < 0: return
        a = (A_VA if half == 0 else A_VB)[i & 1]
        e("v_smfmac_f32_32x32x32_bf16 %s, %s, %s, v%d" % (vr(A_O[q], 16), vr(a, 4), vr(A_S[q] + 8 * half, 8), A_IDX))
    def ex(q, lo, hi):
        for k in range(lo, hi): e("v_exp_f32 v%d, v%d" % (A_S[q] + k, A_S[q] + k))
    rdK(0); rdK(1); rdV(0)
    e("s_cmp_ge_u32 %s, 4" % WV)
    e("s_cbranch_scc1 L_prio1")
    e("s_setprio 2")
    e("s_branch L_prio_done")
    lab("L_prio1")
    e("s_setprio 1")
    lab("L_prio_done")
    e("s_waitcnt lgkmcnt(3)")
    qk(0, 0)
    nop(12)
    ytiles = OPT["yt"]; wtiles = OPT["wt"]
    for i in range(32):
        c("key tile %d" % i)
        if i in (OPT["flip1"], OPT["flip"], OPT["mid"]):
            if i == OPT["mid"]: e("s_barrier")
            e("s_cmp_ge_u32 %s, 4" % WV)
            e("s_cbranch_scc1 L_noflip%d" % i)
            e("s_setprio %d" % (2 if i == OPT["mid"] else 0))
            lab("L_noflip%d" % i)
        if i == 6: kv_check(1)
        if i == 14: kv_check(2)
        ex(0, 0, 2); pv(i - 1, 1, 1); ex(0, 2, 5); qk(i, 1)
        e("s_waitcnt lgkmcnt(0)")
        if i in (11, 23):
            for r in (PV_KA, PV_V0): V("add_u32", r, 3 * BLK, v(r))
            base[0] += 3
        rdK(i + 2); rdV(i + 1)
        if i in ytiles:
            n = ytiles.index(i)
            e("buffer_store_dword v%d, v%d, %s, %s offen %s" % (V_Y + n, PV_YA, R_OUT, sYS2 if n == 2 else sYS, OPT["ypol"]))
            if n == 0: sadd(sYS, sYS, 0x20000)
            if n == 2: sadd(sYS2, sYS2, 0x100000)
        if i in wtiles:
            sadd("m0", W10, L_WO + 8192 * wtiles.index(i))
            if wtiles.index(i): sadd(sWO, sWO, 0x10000)
            else: e("s_nop 0")
            e("buffer_load_dwordx4 v%d, %s, %s offen lds" % (PV_WA, R_WO, sWO))
        ex(0, 5, 11); pv(i, 0, 0); ex(0, 11, 16)
        ex(1, 0, 2); pv(i, 0, 1); ex(1, 2, 5); qk(i + 1, 0)
        ex(1, 5, 11); pv(i, 1, 0); ex(1, 11, 16)
    e("s_nop 1")
    pv(31, 1, 1)
    e("s_setprio 0")

def combine():
    c("combine the two key-parity halves through LDS")
    e("s_waitcnt vmcnt(0)")
    e("s_barrier")
    stamp("attn")
    e("s_cmp_ge_u32 %s, 4" % WV)
    e("s_cbranch_scc1 L_cmb1")
    for kp in range(2):
        if kp: lab("L_cmb1")
        o = A_O[1 - kp]
        if kp == 0: nop(8)
        for k in range(3): e("ds_write_b128 v%d, %s offset:%d" % (PV_CW, vr(o + 4 * k, 4), 1024 * k))
        e("s_waitcnt lgkmcnt(0)")
        e("s_barrier")
        for k in range(3): e("ds_read_b128 %s, v%d offset:%d" % (vr(A_F + 4 * k, 4), PV_CR, 1024 * k))
        if kp:
            for i in range(4): V("mov_b32", A_Q[0] + i, v(A_Q[1] + i))
        e("s_waitcnt lgkmcnt(0)")
        for i in (8, 0, 1, 2, 3, 4, 5, 6, 7): V("add_f32", A_F + i, v(A_F + i), v(A_O[kp] + i))
        if kp == 0: e("s_branch L_cmb_done")
    lab("L_cmb_done")

def attn_check_and_slow():
    t = VT
    c("---- softmax guard: the fast path used shift 0; redo with the true row max if that was unsafe ----")
    V("mov_b32", t + 1, v(A_F + 8))
    V("mul_f32", t, 0, v(A_F))
    for i in range(1, 8): V("fma_f32", t, v(A_F + i), 0, v(t))
    e("v_permlane32_swap_b32 v%d, v%d" % (A_F + 8, t + 1))
    e("v_cmp_nle_f32 vcc, %s, v%d" % (fl(2.0 ** -40), A_F + 8))
    V("mov_b32", t + 1, fl(2.0 ** 100))
    e("v_cmp_nle_f32 s[4:5], v%d, v%d" % (A_F + 8, t + 1))
    e("v_cmp_neq_f32 s[6:7], 0, v%d" % t)
    e("s_or_b64 vcc, vcc, s[4:5]")
    e("s_or_b64 vcc, vcc, s[6:7]")
    if OPT["forceslow"]: e("s_mov_b64 vcc, -1")
    e("s_cmp_lg_u64 vcc, 0")
    e("s_cbranch_scc1 L_slow")
    lab("L_attn_ok")

def slow_path():
    t = VT
    lab("L_slow")
    S_, KF, VA, VB = A_S[0], A_KF[0], A_VA[0], A_VB[0]
    c("slow path pass 1: true row max (K from the workspace)")
    sadd(T0, sHB, WS_K)
    V("mov_b32", t, 0xff800000)
    e("s_mov_b32 %s, 0" % CNT)
    lab("L_slow1")
    e("buffer_load_dwordx4 %s, v%d, %s, %s offen sc1" % (vr(KF, 4), V_L16, R_WS, T0))
    sadd(T0, T0, 1024)
    e("s_waitcnt vmcnt(0)")
    e("v_mfma_f32_32x32x16_bf16 %s, %s, %s, 0" % (vr(S_, 16), vr(KF, 4), vr(A_Q[0], 4)))
    nop(12)
    for k in range(0, 16, 2): V("max3_f32", t, v(t), v(S_ + k), v(S_ + k + 1))
    sadd(CNT, CNT, 1)
    e("s_cmp_lt_u32 %s, 64" % CNT)
    e("s_cbranch_scc1 L_slow1")
    V("mov_b32", t + 1, v(t))
    e("s_nop 1")
    e("v_permlane32_swap_b32 v%d, v%d" % (t, t + 1))
    e("s_nop 1")
    V("max_f32", t, v(t), v(t + 1))
    for k in range(16): V("mul_f32", A_NM + k, "-1.0", v(t))
    c("slow path pass 2")
    for k in range(16): V("mov_b32", A_F + k, 0)
    for k in range(4):
        V("mov_b32", VA + k, 0x3f803f80); V("mov_b32", VB + k, 0x3f803f80)
    V("and_b32", t, 15, v(V_L)); V("lshrrev_b32", t + 1, 5, v(V_L)); V("lshlrev_b32", t, 4, v(t)); V("lshl_add_u32", t, v(t + 1), 8, v(t))
    sadd(T0, sHB, WS_K); sadd(T1, sHB, WS_V)
    e("s_mov_b32 %s, 0" % CNT)
    lab("L_slow2")
    e("buffer_load_dwordx4 %s, v%d, %s, %s offen sc1" % (vr(KF, 4), V_L16, R_WS, T0))
    e("s_mov_b32 exec_lo, 0xffff")
    e("s_mov_b32 exec_hi, 0xffff")
    e("buffer_load_dwordx4 %s, v%d, %s, %s offen sc1" % (vr(VA, 4), t, R_WS, T1))
    e("buffer_load_dwordx4 %s, v%d, %s, %s offen offset:512 sc1" % (vr(VB, 4), t, R_WS, T1))
    e("s_mov_b64 exec, -1")
    sadd(T0, T0, 1024); sadd(T1, T1, 1024)
    e("s_waitcnt vmcnt(0)")
    e("v_mfma_f32_32x32x16_bf16 %s, %s, %s, %s" % (vr(S_, 16), vr(KF, 4), vr(A_Q[0], 4), vr(A_NM, 16)))
    nop(12)
    for k in range(16): e("v_exp_f32 v%d, v%d" % (S_ + k, S_ + k))
    e("s_nop 1")
    e("v_smfmac_f32_32x32x32_bf16 %s, %s, %s, v%d" % (vr(A_F, 16), vr(VA, 4), vr(S_, 8), A_IDX))
    e("v_smfmac_f32_32x32x32_bf16 %s, %s, %s, v%d" % (vr(A_F, 16), vr(VB, 4), vr(S_ + 8, 8), A_IDX))
    sadd(CNT, CNT, 1)
    e("s_cmp_lt_u32 %s, 64" % CNT)
    nop(4)
    e("s_cbranch_scc1 L_slow2")
    nop(12)
    e("s_branch L_attn_ok")

def attn_publish():
    t = VT
    c("normalise and publish O (q-tile 2*(w&3) + (w>>2))")
    V("rcp_f32", t, v(A_F + 8))
    e("s_nop 0")
    for i in range(8): V("mul_f32", A_F + i, v(A_F + i), v(t))
    P = 32
    for i in range(4): V("cvt_pk_bf16_f32", P + i, v(A_F + 2 * i), v(A_F + 2 * i + 1))
    e("s_nop 1")
    e("v_permlane32_swap_b32 v%d, v%d" % (P, P + 2))
    e("v_permlane32_swap_b32 v%d, v%d" % (P + 1, P + 3))
    e("buffer_store_dwordx4 %s, v%d, %s, %s offen sc1" % (vr(P, 4), V_L16, R_WS, sOST))

P_W, P_ACC, P_OF = 96, 32, 48
def tail():
    t = VT
    e("s_cmp_ge_u32 %s, 4" % WV)
    e("s_cbranch_scc1 L_tail_hi")
    c("==== waves 0..3: Wo fragments, poll, O tiles, output projection ====")
    for hh in range(32):
        for tt in range(2):
            e("ds_read_b64_tr_b16 %s, v%d offset:%d" % (vr(P_W + 4 * hh + 2 * tt, 2), PV_WF, L_WO + hh * 2048 + tt * 512))
    signal("c", 20, 7, sF2)
    e("s_barrier")
    stamp("W")
    V("mov_b32", t + 2, L_FL + 24); V("mov_b32", t + 3, 1)
    e("s_cmp_eq_u32 %s, 0" % WV)
    e("s_cbranch_scc0 L_spin2")
    poll("L_poll2", sF2P)
    e("ds_write_b32 v%d, v%d" % (t + 2, t + 3))
    e("s_branch L_seen2")
    lab("L_spin2")
    e("s_mov_b32 %s, 0" % CNT)
    lab("L_spin2l")
    e("ds_read_b32 v%d, v%d" % (t + 3, t + 2))
    sadd(CNT, CNT, 1)
    e("s_waitcnt lgkmcnt(0)")
    e("v_readfirstlane_b32 %s, v%d" % (T0, t + 3))
    e("s_cmp_gt_u32 %s, 0x200000" % CNT)
    e("s_cbranch_scc1 L_seen2")
    e("s_cmp_eq_u32 %s, 0" % T0)
    e("s_cbranch_scc1 L_spin2l")
    lab("L_seen2")
    stamp("poll2")
    sadd("m0", W10, L_O); e("s_nop 0")
    for n in range(16):
        e("buffer_load_dwordx4 v%d, %s, %s offen sc1 lds" % (V_L16, R_WS, sOLD))
        if n < 15:
            sadd("m0", "m0", 4096); sadd(sOLD, sOLD, 0x20000)
    e("s_barrier")
    def mm(st):
        for k in range(4):
            hh = 4 * st + k
            e("v_mfma_f32_32x32x16_bf16 %s, %s, %s, %s" % (vr(P_ACC, 16), vr(P_W + 4 * hh, 4), vr(P_OF + 16 * (st & 1) + 4 * k, 4), "0" if hh == 0 else vr(P_ACC, 16)))
    for st in range(8):
        if st % 2 == 0:
            e("s_waitcnt vmcnt(%d)" % (12 - 2 * st))
            e("s_barrier")
            if st == 0: stamp("O1")
        for k in range(4): e("ds_read_b128 %s, v%d offset:%d" % (vr(P_OF + 16 * (st & 1) + 4 * k, 4), PV_OR, (4 * st + k) * 2048))
        if st > 0:
            e("s_waitcnt lgkmcnt(4)")
            mm(st - 1)
    e("s_waitcnt lgkmcnt(0)")
    mm(7)
    nop(12)
    for i in range(8): V("cvt_pk_bf16_f32", P_OF + i, v(P_ACC + 2 * i), v(P_ACC + 2 * i + 1))
    e("ds_write_b128 v%d, %s" % (PV_OW, vr(P_OF, 4)))
    e("ds_write_b128 v%d, %s offset:16" % (PV_OW, vr(P_OF + 4, 4)))
    c("WG 0 advances the epoch word (every WG has read it: all of them have published)")
    e("s_cmp_eq_u32 s2, 0")
    e("s_cbranch_scc0 L_fin")
    e("s_cmp_eq_u32 %s, 0" % WV)
    e("s_cbranch_scc0 L_fin")
    flag_store("0")
    e("s_branch L_fin")
    lab("L_tail_hi")
    c("==== waves 4..7: causal conv of output tiles 6,7 (two lag halves per channel) ====")
    for p in range(4): V("add_u32", PV_ZR + p, (L_Z2 - L_Z - 4608 - 1152 + p * (ZS2 - ZS)) & 0xffffffff, v(PV_ZR + p))
    def sigw(tag):
        signal(tag, 20, 7, sF2)
        e("s_barrier")
    e("s_bitcmp1_b32 %s, 0" % WV)
    e("s_cbranch_scc1 L_ct_b")
    conv_job(6, 0, 4, False, PV_CA, PV_CB, lambda: sigw("d"), 1)
    e("s_branch L_ct_done")
    lab("L_ct_b")
    conv_job(6, 16, 3, True, PV_CA, PV_CB, lambda: sigw("e"), 1)
    lab("L_ct_done")
    z_writes(PV_ZW2, 0)
    e("s_cmp_eq_u32 %s, 6" % WV)
    e("s_cbranch_scc0 L_nocarry2")
    V("bfe_u32", t + 2, v(V_L), 2, 1); V("mul_u32_u24", t + 2, 8 * ZS2, v(t + 2)); V("bfe_u32", t + 1, v(V_L), 3, 1); V("lshlrev_b32", t + 1, 2, v(t + 1))
    V("and_b32", t + 3, 3, v(V_L)); V("add_u32", t + 1, v(t + 1), v(t + 3)); V("mul_u32_u24", t + 1, ZS2, v(t + 1))
    V("add_u32", t + 2, v(t + 2), v(t + 1)); V("add_u32", t + 2, L_Z2 + 112, v(t + 2))
    e("s_mov_b64 exec, 0xffff")
    e("ds_write_b128 v%d, %s" % (t + 2, vr(PV_CY, 4)))
    e("s_mov_b64 exec, -1")
    lab("L_nocarry2")
    e("s_waitcnt lgkmcnt(0)")
    stamp("cend2")
    e("s_barrier")
    c("y[1536 + 64w' + l] for w' = w-4 and w")
    order = [(g, cl, st) for g in range(2) for cl in range(2) for st in range(2)]
    def rd(n):
        g, cl, st = order[n]
        for p in range(4): e("ds_read_b32 v%d, v%d offset:%d" % (Y_R + 4 * n + p, PV_ZR + p, cl * 8 * ZS2 + st * 4 * ZS2 + g * 1152))
    rd(0); rd(1); rd(2)
    for n in range(8):
        r = Y_R + 4 * n
        e("s_waitcnt lgkmcnt(%d)" % (4 * (min(n + 2, 7) - n)))
        if n + 3 < 8: rd(n + 3)
        V("add_f32", r, v(r), v(r + 1)); V("add_f32", r + 2, v(r + 2), v(r + 3)); V("add_f32", r, v(r), v(r + 2))
        if n % 2: V("add_f32", r, v(r), v(r - 4))
        if n % 4 == 3: V("cvt_pk_bf16_f32", V_Y + n // 4, v(r - 8), v(r))
    S("sub_u32", sYS, sYS2, 0x80000)
    for st in range(4):
        if st == OPT["yat"]:
            e("buffer_store_dword v%d, v%d, %s, %s offen" % (V_Y, PV_YA, R_OUT, sYS))
            e("buffer_store_dword v%d, v%d, %s, %s offen" % (V_Y + 1, PV_YA, R_OUT, sYS2))
        e("s_barrier")
    if OPT["yat"] == 4:
        e("buffer_store_dword v%d, v%d, %s, %s offen" % (V_Y, PV_YA, R_OUT, sYS))
        e("buffer_store_dword v%d, v%d, %s, %s offen" % (V_Y + 1, PV_YA, R_OUT, sYS2))
    lab("L_fin")
    e("s_waitcnt lgkmcnt(0)")
    e("s_barrier")
    stamp("opdone")
    e("ds_read_b128 v[32:35], v%d" % PV_FR)
    e("s_waitcnt lgkmcnt(0)")
    e("buffer_store_dwordx4 v[32:35], v%d, %s, %s offen %s" % (PV_FS, R_OUT, sOUT, OPT["opol"]))

def dump_lds(base, nbytes, wsoff):
    t = VT + 10
    e("s_waitcnt lgkmcnt(0)"); e("s_barrier")
    V("lshlrev_b32", t, 4, v(0))
    sshl(T0, "s2", 18); sadd(T0, T0, WS_DBG + wsoff)
    for o in range(0, nbytes, 8192):
        V("add_u32", t + 1, base + o, v(t))
        e("ds_read_b128 %s, v%d" % (vr(t + 2, 4), t + 1))
        e("s_waitcnt lgkmcnt(0)")
        e("buffer_store_dwordx4 %s, v%d, %s, %s offen" % (vr(t + 2, 4), t, R_WS, T0))
        sadd(T0, T0, 8192)
        e("s_waitcnt vmcnt(0)")
    e("s_barrier")

def write_stamps():
    t = VT
    if OPT["ldst"]:
        e("s_waitcnt vmcnt(0) lgkmcnt(0)")
        sshl(T0, "s2", 3); sadd(T0, T0, WV); sshl(T0, T0, 7); sadd(T0, T0, WS_ST)
        e("s_mov_b64 exec, 1")
        V("mov_b32", t, 0)
        for i in range(10):
            V("mov_b32", t + 1, sr(80 + 2 * i))
            e("buffer_store_dword v%d, v%d, %s, %s offen offset:%d" % (t + 1, t, R_WS, T0, 4 * i))
            e("s_nop 1")
        e("s_mov_b64 exec, -1")
    if OPT["echo"]:
        a, b, m = OPT["echo"].split(",")
        e("s_cmp_eq_u32 %s, 0" % WV); e("s_cbranch_scc0 L_end")
        e("s_cmp_eq_u32 s2, %d" % OPT["echowg"]); e("s_cbranch_scc0 L_end")
        e("s_waitcnt vmcnt(0)")
        stamp("end")
        if a == "start": e("s_mov_b32 s80, s100")
        e("s_sub_u32 s82, s81, s80"); e("s_mul_i32 s82, s82, %s" % m); e("s_min_u32 s82, s82, 20000")
        e("s_memrealtime s[84:85]"); e("s_waitcnt lgkmcnt(0)")
        lab("L_echo")
        e("s_memrealtime s[86:87]"); e("s_waitcnt lgkmcnt(0)")
        e("s_sub_u32 s83, s86, s84"); e("s_cmp_lt_u32 s83, s82"); e("s_cbranch_scc1 L_echo")
    if OPT["stamps"]:
        e("s_waitcnt vmcnt(0)")
        stamp("end")
        sshl(T0, "s2", 3); sadd(T0, T0, WV); sshl(T0, T0, 7); sadd(T0, T0, WS_ST)
        e("s_mov_b64 exec, 1")
        V("mov_b32", t, 0)
        for i in range(len(stamp_names)):
            V("mov_b32", t + 1, sr(S_ST + i))
            e("buffer_store_dword v%d, v%d, %s, %s offen offset:%d" % (t + 1, t, R_WS, T0, 4 * i))
            e("s_nop 1")
        V("mov_b32", t + 1, "s100")
        e("buffer_store_dword v%d, v%d, %s, %s offen offset:124" % (t + 1, t, R_WS, T0))
        e("s_memrealtime s[98:99]")
        e("s_waitcnt lgkmcnt(0)")
        V("mov_b32", t + 2, "s98")
        e("buffer_store_dword v%d, v%d, %s, %s offen offset:120" % (t + 2, t, R_WS, T0))
        e("s_mov_b64 exec, -1")
        L.insert(0, "; stamps: " + ",".join(stamp_names))
    if OPT["dbgspan"]:
        e("s_cmp_eq_u32 %s, 0" % WV); e("s_cbranch_scc0 L_end")
        sand(T0, "s2", 63); e("s_cmp_eq_u32 %s, 5" % T0); e("s_cbranch_scc0 L_end")
        e("s_waitcnt vmcnt(0)")
        e("s_memrealtime s[96:97]"); e("s_memtime s[94:95]")
        srd(R_X, S_DBG, 256)
        sshr(T0, "s2", 6); sshl(T0, T0, 4)
        e("s_waitcnt lgkmcnt(0)")
        e("s_mov_b64 exec, 1")
        V("mov_b32", t, 0)
        e("s_sub_u32 s94, s94, s98"); e("s_sub_u32 s96, s96, s100")
        V("mov_b32", t + 2, "s100"); V("mov_b32", t + 3, "s96"); V("mov_b32", t + 4, "s94"); V("mov_b32", t + 5, 0)
        e("buffer_store_dwordx4 %s, v%d, %s, %s offen" % (vr(t + 2, 4), t, R_X, T0))

def main():
    header()
    setup()
    loader_path()
    compute_path()
    lab("L_gemm_done")
    e("s_waitcnt lgkmcnt(0)")
    e("s_barrier")
    stamp("K2")
    if OPT["dump"]: dump_lds(L_KF, 24576, 0)
    conv()
    kv_early()
    conv_epilogue()
    e("s_waitcnt vmcnt(0)")
    e("s_barrier")
    stamp("S")
    kv_late()
    attn_main()
    combine()
    attn_check_and_slow()
    attn_publish()
    tail()
    write_stamps()
    e("s_endpgm")
    slow_path()
    footer(256)
    open(sys.argv[1], "w").write("\n".join(L) + "\n")

main()
```

```python
import sys, struct, math

NAME = "concat_heads__ssm_conv_s4__softmax_full_mha__prompt"
OPT = dict(ldst=0, ypol="", opol="", abl="", echo="", echowg=0, echowv=0, stamps=0, dump=0, forceslow=0, dbgspan=0, flip1=14, mid=16, flip=30, pf=1, rot=6, yat=2, npre=999,
           yt=[15, 20, 25], wt=[17, 18, 19, 21, 22, 23, 24, 26])
for a in sys.argv[2:]:
    k, v = a.split("=")
    OPT[k] = int(v) if v.lstrip("-").isdigit() else v

L = []
SINK = [L]
def e(s): SINK[0].append("    " + s)
def lab(s): SINK[0].append(s + ":")
def c(s): SINK[0].append("    ; " + s)
def f2u(x): return struct.unpack("<I", struct.pack("<f", x))[0]
def fl(x): return "0x%08x" % f2u(x)
def vr(a, n=1): return "v%d" % a if n == 1 else "v[%d:%d]" % (a, a + n - 1)
def sr(a, n=1): return "s%d" % a if n == 1 else "s[%d:%d]" % (a, a + n - 1)
def nop(n):
    while n > 0:
        k = min(n, 16); e("s_nop %d" % (k - 1)); n -= k
def capture(fn, *a):
    old = SINK[0]; out = []; SINK[0] = out; fn(*a); SINK[0] = old; return out

WS_F1 = 0x1000
WS_F2 = 0xa000
WS_F0 = 0x20000
WS_Q, WS_K, WS_V, WS_O, WS_U2 = 0x100000, 0x300000, 0x500000, 0x700000, 0x900000
WS_ST = 0xc00000
WS_DBG = 0x1000000
WS_SIZE = 0x10000000
LDS_TOTAL = 163840
BLK = 16384
L_TB = 98304
L_TA = 0
L_FL = 146240
L_KF = 146304
L_UP = 154624
ZS = 9504
L_Z = 70208
ZS2 = 2448
L_Z2 = 0
L_WO = 0
L_O = 65536
L_SC = 65536
L_OT = 131072
S_U, S_ARE, S_AIM, S_BRE, S_BIM, S_CRE, S_CIM, S_LDT = 8, 10, 12, 14, 16, 18, 20, 22
S_DSK, S_X, S_W, S_WO, S_OUT, S_DBG, S_WS = 24, 26, 28, 30, 32, 34, 36
R_X, R_W, R_WS, R_U, R_OUT, R_WO = "s[40:43]", "s[44:47]", "s[48:51]", "s[52:55]", "s[56:59]", "s[60:63]"
XQ, I5, WV, TAG, LD2, DS2, HH, JJ, C0 = "s64", "s65", "s66", "s67", "s68", "s69", "s70", "s71", "s72"
T0, T1, T2, T3, T4, T5, CNT = "s73", "s74", "s75", "s76", "s77", "s78", "s79"
CQ, CL, W10, GT, GQ = "s38", "s39", "s3", "s6", "s7"
sQKV, sF1, sF1P, sYS, sWO, sOST, sOLD, sOUT, sF2, sF2P, sHB, sQL = ["s%d" % i for i in range(8, 20)]
sYS2 = "s38"
S_ST = 80
stamp_names = []
def stamp(name):
    if OPT["echo"]:
        a, b, m = OPT["echo"].split(",")
        if name in (a, b):
            e("s_waitcnt lgkmcnt(0)")
            e("s_memrealtime s[98:99]")
            e("s_waitcnt lgkmcnt(0)")
            e("s_mov_b32 %s, s98" % ("s80" if name == a else "s81"))
    if OPT["stamps"]:
        if name not in stamp_names: stamp_names.append(name)
        assert len(stamp_names) <= 18
        e("s_waitcnt lgkmcnt(0)")
        e("s_memrealtime s[98:99]" if OPT["stamps"] == 2 else "s_memtime s[98:99]")
        e("s_waitcnt lgkmcnt(0)")
        e("s_mov_b32 %s, s98" % sr(S_ST + stamp_names.index(name)))
def srd(r, base, size):
    r = int(r[2:r.index(":")])
    e("s_mov_b32 %s, %s" % (sr(r), sr(base)))
    e("s_and_b32 %s, %s, 0xffff" % (sr(r + 1), sr(base + 1)))
    e("s_mov_b32 %s, 0x%x" % (sr(r + 2), size))
    e("s_mov_b32 %s, 0x00020000" % sr(r + 3))
def csel(dst, a, b):
    e("s_mov_b32 %s, %d" % (dst, b))
    e("s_cselect_b32 %s, %d, %s" % (dst, a, dst))
def S(op, d, a, b): e("s_%s %s, %s, %s" % (op, d, a, b if isinstance(b, str) else ("0x%x" % b if b > 64 else str(b))))
def sadd(d, a, b): S("add_u32", d, a, b)
def sshl(d, a, b): S("lshl_b32", d, a, b)
def sshr(d, a, b): S("lshr_b32", d, a, b)
def sand(d, a, b): S("and_b32", d, a, b)
def smul(d, a, b): S("mul_i32", d, a, b)
def V(op, d, *a): e("v_%s v%d, %s" % (op, d, ", ".join(("v%d" % x[0] if isinstance(x, tuple) else (x if isinstance(x, str) else ("0x%x" % x if x > 64 else str(x)))) for x in a)))
def v(x): return (x,)
LOG2E = math.log2(math.e)

V_L, V_L16, V_PA = 1, 2, 3
V_PAR = 4
V_Y = 10
VT = 14
(PV_CA, PV_CB, PV_ZW, PV_ZR, _z1, _z2, _z3, PV_KA, PV_V0, PV_V1, PV_YA, PV_WA, PV_CW, PV_CR,
 PV_OR, PV_OW, PV_WF, PV_FR, PV_FS, PV_WS) = range(224, 244)
PV_ZW2 = PV_V1
PV_CY = 250
PV_QS, PV_VS, PV_TW = 244, 245, 246
PV_GA, PV_GB, PV_GW, PV_GD, PV_US = 244, 245, 246, 247, 248

def header():
    L.append("; fused S4 long-conv (part A) + multi-head attention (part B): one launch, 256 WGs x 8 waves")
    L.append("; @launch grid=(256,1,1) block=(512,1,1) lds=%d" % LDS_TOTAL)
    L.append('.amdgcn_target "amdgcn-amd-amdhsa--gfx950"')
    L.append(".text")
    L.append(".globl %s_kernel" % NAME)
    L.append(".p2align 8")
    L.append(".type %s_kernel,@function" % NAME)
    L.append("%s_kernel:" % NAME)
def footer(nv):
    lab("L_end")
    e("s_endpgm")
    L.append('.section .rodata,"a"')
    L.append(".p2align 6")
    L.append(".amdhsa_kernel %s_kernel" % NAME)
    L.append("  .amdhsa_next_free_vgpr %d" % nv)
    L.append("  .amdhsa_next_free_sgpr 102")
    L.append("  .amdhsa_accum_offset %d" % nv)
    L.append("  .amdhsa_group_segment_fixed_size 0")
    L.append("  .amdhsa_kernarg_size 120")
    L.append("  .amdhsa_user_sgpr_count 2")
    L.append("  .amdhsa_user_sgpr_kernarg_segment_ptr 1")
    L.append("  .amdhsa_system_sgpr_workgroup_id_x 1")
    L.append(".end_amdhsa_kernel")

def setup():
    c("---- setup ----")
    e("s_cmp_ge_u32 s2, 256")
    e("s_cbranch_scc1 L_end")
    e("s_load_dwordx8 s[24:31], s[0:1], 64")
    e("s_load_dwordx16 s[8:23], s[0:1], 0")
    e("s_load_dwordx4 s[32:35], s[0:1], 96")
    e("s_load_dwordx2 s[36:37], s[0:1], 112")
    if OPT["stamps"] or OPT["dbgspan"] or OPT["echo"]: e("s_memrealtime s[100:101]")
    if OPT["dbgspan"]: e("s_memtime s[98:99]")
    if OPT["pf"] == 2:
        c("pull this WG's 1/32 share of the code into L2 right away (thread t<8: line 8*(wg>>3)+t)")
        e("s_getpc_b64 s[4:5]")
        lab("L_pc")
        e("s_and_b32 s3, s2, 0xf8")
        V("add_u32", VT, "s3", v(0)); V("lshlrev_b32", VT, 7, v(VT))
        e("v_min_u32 v%d, L_end-L_pc-4, v%d" % (VT, VT))
        e("v_cmp_gt_u32 vcc, 8, v0")
        e("s_and_saveexec_b64 s[6:7], vcc")
        e("s_cbranch_execz L_nopf")
        e("global_load_dword v47, v%d, s[4:5]" % VT)
        lab("L_nopf")
        e("s_mov_b64 exec, -1")
    V("and_b32", V_L, 63, v(0))
    V("lshrrev_b32", VT, 6, v(0))
    V("lshlrev_b32", V_L16, 4, v(V_L))
    V("mov_b32", PV_FS, 0)
    e("v_readfirstlane_b32 %s, v%d" % (WV, VT))
    sand(XQ, "s2", 7)
    sshr(I5, "s2", 3)
    sand(GT, XQ, 3); sshl(GT, GT, 3); sshr(JJ, I5, 2); sadd(GT, GT, JJ)
    sand(GQ, XQ, 4); sand(T0, I5, 3); sadd(GQ, GQ, T0)
    sshl(HH, XQ, 2); sadd(HH, HH, T0)
    sshl(C0, XQ, 5); sadd(C0, C0, I5); sshl(C0, C0, 1)
    sshl(W10, WV, 10)
    e("s_cmp_ge_u32 %s, 4" % WV)
    e("s_cbranch_scc0 L_compute")

def scalar_loads():
    sshl(T3, C0, 1)
    e("s_load_dword %s, %s, 0" % (TAG, sr(S_WS, 2)))
    e("s_load_dword %s, %s, %s" % (LD2, sr(S_LDT, 2), T3))
    e("s_load_dword %s, %s, %s" % (DS2, sr(S_DSK, 2), T3))

def lane_terms():
    t = VT
    hf, b7, p4, r4, g1, l15, l8 = t, t + 1, t + 2, t + 3, t + 4, t + 5, t + 6
    V("lshrrev_b32", hf, 5, v(V_L)); V("and_b32", b7, 7, v(V_L)); V("bfe_u32", p4, v(V_L), 3, 2)
    V("bfe_u32", r4, v(V_L), 2, 2); V("bfe_u32", g1, v(V_L), 4, 1); V("and_b32", l15, 15, v(V_L)); V("lshrrev_b32", l8, 3, v(V_L))
    return hf, b7, p4, r4, g1, l15, l8

def precompute_conv():
    t = VT
    c("---- conv addresses ----")
    e("s_bfe_u32 %s, %s, 0x10001" % (CL, WV))
    hf, b7, p4, r4, g1, l15, l8 = lane_terms()
    x, y, z = t + 8, t + 9, t + 10
    e("s_cmp_eq_u32 %s, 1" % CL)
    csel(T0, L_KF + 4160 + 96, L_KF + 96); csel(T1, L_UP + 4608, L_UP); csel(T2, L_Z + 4 * ZS + 144, L_Z + 144)
    V("and_b32", x, 3, v(V_L)); V("lshl_add_u32", x, v(g1), 2, v(x)); V("lshl_add_u32", y, v(hf), 3, v(r4))
    V("sub_u32", x, v(x), v(y)); V("lshlrev_b32", x, 3, v(x)); V("add_u32", PV_CA, T0, v(x))
    V("mul_u32_u24", x, 1152, v(p4)); V("add_u32", z, v(b7), v(hf)); V("lshl_add_u32", x, v(z), 4, v(x))
    V("add_u32", PV_CB, T1, v(x))
    V("mul_u32_u24", x, ZS, v(p4)); V("mul_u32_u24", z, 144, v(b7)); V("lshl_add_u32", z, v(hf), 4, v(z)); V("add3_u32", PV_ZW, v(x), v(z), T2)
    sshl(sF1, GQ, 5); sadd(sF1, sF1, GT); sshl(sF1, sF1, 7); sadd(sF1, sF1, WS_F1)
    sshl(T0, XQ, 12); sadd(sF1P, T0, WS_F1); sadd(sF2P, T0, WS_F2)
    sshl(sHB, HH, 16)

def precompute():
    t = VT
    c("SPLIT")
    e("s_cmp_ge_u32 %s, 4" % WV)
    e("s_cselect_b32 %s, 1024, 0" % T0)
    hf, b7, p4, r4, g1, l15, l8 = lane_terms()
    x, y, z = t + 8, t + 9, t + 10
    V("add_u32", PV_KA, T0, v(V_L16))
    V("lshlrev_b32", x, 4, v(l15)); V("lshl_add_u32", x, v(hf), 8, v(x)); sadd(T0, T0, 8192); V("add_u32", PV_V0, T0, v(x))
    V("lshlrev_b32", PV_YA, 11, v(V_L))
    V("lshlrev_b32", x, 2, v(g1)); V("xor_b32", x, v(x), v(b7)); V("lshlrev_b32", x, 4, v(x)); V("lshl_add_u32", PV_WA, v(l8), 10, v(x))
    c("SPLIT")
    sshl(T0, WV, 7); sadd(T0, T0, 32)
    for p in range(4):
        V("add_u32", x, T0, v(V_L))
        if p: V("subrev_u32", x, p, v(x))
        V("lshrrev_b32", z, 5, v(x)); V("lshlrev_b32", x, 2, v(x)); V("lshl_add_u32", x, v(z), 4, v(x))
        V("add_u32", PV_ZR + p, L_Z + p * ZS, v(x))
    c("SPLIT")
    sshl(T0, WV, 18); sshl(T1, C0, 1); sadd(sYS, T0, T1)
    sshr(T0, T0, 1); sadd(T0, T0, T1); sadd(sYS2, T0, 0x200000)
    sand(T0, I5, 7); sshl(T0, T0, 7); sshl(T1, WV, 13); sadd(sWO, T0, T1)
    sshl(T1, JJ, 13); sadd(T1, T1, sHB); sand(T2, WV, 3); sshl(T2, T2, 11); sadd(T1, T1, T2)
    sadd(sQL, T1, WS_Q)

def precompute_tail():
    t = VT + 4
    hf, b7, p4, r4, g1, l8 = t, t + 1, t + 2, t + 3, t + 4, t + 5
    V("lshrrev_b32", hf, 5, v(V_L)); V("and_b32", b7, 7, v(V_L)); V("bfe_u32", p4, v(V_L), 3, 2)
    V("bfe_u32", r4, v(V_L), 2, 2); V("bfe_u32", g1, v(V_L), 4, 1); V("lshrrev_b32", l8, 3, v(V_L))
    x, y, z = t + 6, t + 7, t + 8
    S("xor_b32", T0, WV, 4); smul(T0, T0, 3072); sadd(T0, T0, L_SC); smul(T1, WV, 3072); sadd(T1, T1, L_SC)
    V("add_u32", PV_CW, T0, v(V_L16)); V("add_u32", PV_CR, T1, v(V_L16))
    sand(T0, WV, 1); smul(T0, T0, 4 * ZS2); smul(T1, CL, 8 * ZS2); sadd(T0, T0, T1); sadd(T0, T0, L_Z2 + 144)
    V("mul_u32_u24", x, ZS2, v(p4)); V("mul_u32_u24", z, 144, v(b7)); V("lshl_add_u32", z, v(hf), 4, v(z)); V("add3_u32", PV_ZW2, v(x), v(z), T0)
    V("lshl_add_u32", y, v(hf), 3, v(r4)); V("lshlrev_b32", PV_WF, 7, v(y))
    V("and_b32", x, 1, v(V_L)); V("lshl_or_b32", x, v(x), 1, v(g1))
    sand(T0, WV, 2); sshl(T0, T0, 1); V("or_b32", x, T0, v(x))
    V("bfe_u32", z, v(V_L), 3, 1); V("lshlrev_b32", z, 2, v(z)); V("xor_b32", x, v(x), v(z))
    V("lshl_add_u32", PV_WF, v(x), 4, v(PV_WF)); V("bfe_u32", z, v(V_L), 1, 1); V("lshl_add_u32", PV_WF, v(z), 3, v(PV_WF))
    sand(T1, WV, 1); sshl(T2, T1, 10); sadd(T2, T2, L_O); V("add_u32", PV_OR, T2, v(V_L16))
    smul(T1, T1, 4608); sshl(T0, T0, 4); sadd(T0, T0, T1); sadd(T0, T0, L_OT)
    V("and_b32", x, 31, v(V_L)); V("mul_u32_u24", x, 144, v(x)); V("lshl_add_u32", x, v(hf), 5, v(x)); V("add_u32", PV_OW, T0, v(x))
    smul(T0, WV, 1152); sadd(T0, T0, L_OT)
    V("lshlrev_b32", x, 4, v(b7)); V("mul_u32_u24", z, 144, v(l8)); V("add3_u32", PV_FR, v(z), v(x), T0); V("lshl_add_u32", PV_FS, v(l8), 11, v(x))
    sshl(sF2, JJ, 5); sadd(sF2, sF2, HH); sshl(sF2, sF2, 7); sadd(sF2, sF2, WS_F2)
    S("sub_u32", T1, sQL, WS_Q); sshr(T2, WV, 2); sshl(T2, T2, 10); sadd(T1, T1, T2); sadd(sOST, T1, WS_O)
    sshr(T1, WV, 1); sshl(T1, T1, 6); sshl(T2, XQ, 3); sadd(T1, T1, T2); sshr(T3, I5, 3); sshl(T2, T3, 1); sadd(T1, T1, T2)
    sand(T2, WV, 1); sadd(T1, T1, T2); sshl(T1, T1, 10); sadd(sOLD, T1, WS_O)
    sand(T0, I5, 7); sshl(T0, T0, 7)
    sshl(T1, XQ, 2); sadd(T1, T1, T3); sshl(T1, T1, 3); sadd(T1, T1, WV); sshl(T1, T1, 14); sadd(T1, T1, T0); sadd(sOUT, T1, 1024)

G_VX0, G_VX1, G_VWQ, G_VWK, G_VWV, G_PL = 32, 33, 34, 35, 36, 39
G_UA, G_US = 30, 31
G_UL, U2R = 160, 80
G_XA, G_WA, G_WB = 32, 40, 43
G_ACC = [48, 64, 80]
G_XF, G_W0F, G_W1F, G_VF = 96, 112, 128, 144
KB = 48
KR = 192

def loader_addr():
    t = VT
    c("loader DMA voffsets (wave v=w-4 covers rows 16v..16v+15 of each chunk)")
    V("lshrrev_b32", t, 3, v(V_L)); V("and_b32", t + 1, 7, v(V_L)); V("bfe_u32", t + 2, v(V_L), 4, 1)
    sand(T0, WV, 3); sshl(T4, T0, 11); sshl(T0, T0, 4)
    V("add_u32", t + 3, T0, v(t))
    V("bfe_u32", t + 4, v(t + 3), 1, 3); V("xor_b32", t + 4, v(t + 4), v(t + 1)); V("lshlrev_b32", t + 4, 4, v(t + 4))
    sshl(T1, GT, 16)
    V("lshl_add_u32", G_VX0, v(t + 3), 10, v(t + 4)); V("add_u32", G_VX0, T1, v(G_VX0)); V("xor_b32", G_VX1, 0x2040, v(G_VX0))
    V("mul_u32_u24", t + 5, 3072, v(t + 3)); sshl(T1, GQ, 7); V("add_u32", t + 5, T1, v(t + 5))
    V("lshlrev_b32", t + 6, 1, v(t + 2)); V("xor_b32", t + 6, v(t + 6), v(t + 1)); V("lshl_add_u32", G_VWQ, v(t + 6), 4, v(t + 5))
    V("xor_b32", t + 6, 4, v(t + 6)); V("lshl_add_u32", G_VWK, v(t + 6), 4, v(t + 5)); V("add_u32", G_VWK, 1024, v(G_VWK))
    V("lshlrev_b32", t + 6, 2, v(t + 2)); V("xor_b32", t + 6, v(t + 6), v(t + 1)); V("lshl_add_u32", G_VWV, v(t + 6), 4, v(t + 5)); V("add_u32", G_VWV, 2048, v(G_VWV))
    r = OPT["rot"]
    if r == 1: sshl(T5, GQ, 1); sadd(T5, T5, GT)
    else:
        sadd(T5, GQ, GT)
        if r == 3: sshl(T5, T5, 2)
        if r == 5: sand(T5, T5, 1)
        if r == 6: sshl(T5, T5, 1)

I0, I1, I2, I3 = "s20", "s21", "s22", "s23"
def issue_chunk(ci):
    base = (ci % 3) * 32768
    sadd(I0, T5, ci); sand(I0, I0, 7)
    sadd("m0", T4, base); sshl(I1, I0, 7)
    e("buffer_load_dwordx4 v%d, %s, %s offen lds" % (G_VX0, R_X, I1))
    sadd("m0", T4, base + 1024); smul(I2, I0, 196608)
    e("buffer_load_dwordx4 v%d, %s, %s offen lds" % (G_VX1, R_X, I1))
    for g, va in enumerate((G_VWQ, G_VWK, G_VWV)):
        for h in range(2):
            sadd("m0", T4, base + (g + 1) * 8192 + h * 1024)
            if g == 0 and h == 0: sadd(I3, I2, 24576)
            else: e("s_nop 0")
            e("buffer_load_dwordx4 v%d, %s, %s offen lds" % (va, R_W, I3 if h else I2))

def pi_tok(dst, src, t):
    V("and_b32", dst, 0x13, v(src)); V("bfe_u32", t, v(src), 2, 1); V("lshl_or_b32", dst, v(t), 3, v(dst))
    V("bfe_u32", t, v(src), 3, 1); V("lshl_or_b32", dst, v(t), 2, v(dst))

def gemm_read_addr():
    t = VT
    c("GEMM LDS fragment read addresses, publish addresses")
    pi_tok(t, V_L, t + 1)
    V("lshrrev_b32", t + 1, 5, v(V_L))
    V("lshlrev_b32", PV_QS, 4, v(t)); V("lshl_add_u32", PV_QS, v(t + 1), 9, v(PV_QS))
    sand(T0, WV, 1); sshl(T1, T0, 5); V("add_u32", t, T1, v(t))
    V("bfe_u32", t + 2, v(t), 1, 3); V("xor_b32", t + 2, v(t + 2), v(t + 1)); V("lshlrev_b32", t + 2, 4, v(t + 2))
    V("lshl_add_u32", G_XA, v(t), 7, v(t + 2))
    for s in range(1, 4): V("xor_b32", G_XA + s, 32 * s, v(G_XA))
    V("bfe_u32", t + 2, v(V_L), 2, 2); V("lshl_add_u32", t + 3, v(t + 1), 3, v(t + 2)); V("lshlrev_b32", t + 3, 7, v(t + 3))
    V("bfe_u32", t + 4, v(V_L), 4, 1); V("bfe_u32", t + 5, v(V_L), 3, 1); V("and_b32", t + 6, 1, v(V_L)); V("bfe_u32", t + 7, v(V_L), 1, 1)
    sand(T2, WV, 2); sshl(T1, T2, 1)
    V("or_b32", t + 8, T1, v(t + 6)); V("lshl_or_b32", t + 9, v(t + 4), 1, v(t + 5)); V("lshlrev_b32", t + 9, 1, v(t + 9))
    V("xor_b32", t + 8, v(t + 8), v(t + 9)); V("lshl_add_u32", t + 8, v(t + 8), 4, v(t + 3)); V("lshl_add_u32", t + 8, v(t + 7), 3, v(t + 8))
    V("lshl_add_u32", G_WA, v(t + 4), 13, v(t + 8)); V("add_u32", G_WA, 8192, v(G_WA)); V("xor_b32", G_WA + 1, 32, v(G_WA))
    V("lshl_or_b32", t + 8, v(t + 4), 1, v(t + 7)); V("or_b32", t + 8, T1, v(t + 8)); V("lshlrev_b32", t + 9, 2, v(t + 5))
    V("xor_b32", t + 8, v(t + 8), v(t + 9)); V("lshl_add_u32", t + 8, v(t + 8), 4, v(t + 3)); V("lshl_add_u32", t + 8, v(t + 6), 3, v(t + 8))
    V("add_u32", G_WA + 2, 24576, v(t + 8))
    for s in range(4): V("add_u32", G_XA + 4 + s, 0x10000, v(G_XA + s))
    for s in range(3): V("add_u32", G_WB + s, 0x10000, v(G_WA + s))
    V("and_b32", t + 2, 15, v(V_L)); V("lshlrev_b32", t + 2, 4, v(t + 2)); V("lshl_add_u32", t + 2, v(t + 1), 8, v(t + 2)); V("lshl_add_u32", PV_VS, v(t + 4), 16, v(t + 2))
    sshl(T1, GQ, 2); sadd(T1, T1, T2); sshl(T1, T1, 6); sshl(T3, GT, 1); sadd(T1, T1, T3); sadd(T1, T1, T0); sshl(sQKV, T1, 10)
    sshl(T0, T0, 8)
    e("s_bitcmp1_b32 %s, 1" % WV)
    csel(T1, L_TA + 14256, L_TA); csel(T2, L_TB + 16896, L_TB)
    sadd(T1, T1, T0); sadd(T2, T2, T0)
    V("lshl_add_u32", PV_TW, v(V_L), 2, T1); V("lshl_add_u32", 46, v(V_L), 2, T2)

G_UP = 29
def u_coop_loads():
    t = VT
    sshl(T1, I5, 2); sadd(T1, T1, WV); sshl(T1, T1, 2)
    V("bfe_u32", t, v(V_L), 3, 2); V("add_u32", t, T1, v(t)); V("and_b32", t + 1, 7, v(V_L))
    V("lshlrev_b32", t + 1, 4, v(t + 1)); V("lshl_add_u32", G_UA, v(t), 12, v(t + 1))
    sshl(T0, XQ, 7)
    e("s_mov_b32 exec_hi, 0")
    for k in range(4):
        e("buffer_load_dwordx4 %s, v%d, %s, %s offen offset:%d" % (vr(G_UL + 4 * k, 4), G_UA, R_U, T0, 1024 * k))
    e("s_mov_b32 exec_hi, -1")
    V("and_b32", t, 3, v(V_L)); V("bfe_u32", t + 1, v(V_L), 2, 3)
    V("lshl_add_u32", G_UP, v(t), 3, v(t + 1)); V("lshlrev_b32", G_UP, 2, v(G_UP))
    V("add_u32", t, T1, v(t)); V("lshlrev_b32", t, 4, v(t)); V("lshl_add_u32", G_US, v(t + 1), 15, v(t))

def u_coop_perm():
    D = 224
    e("s_waitcnt vmcnt(0)")
    for i in range(4):
        for k in range(4): e("ds_bpermute_b32 v%d, v%d, v%d" % (D + 4 * i + k, G_UP, G_UL + 4 * k + i))
def u_coop_stores():
    D = 224
    sshl(I0, XQ, 18); sadd(I0, I0, WS_U2)
    e("s_mov_b32 exec_hi, 0")
    for i in range(4):
        e("buffer_store_dwordx4 %s, v%d, %s, %s offen sc1" % (vr(D + 4 * i, 4), G_US, R_WS, I0))
        if i < 3: sadd(I0, I0, 8192)
    e("s_mov_b32 exec_hi, -1")

def flag_store(soff, t=VT):
    V("mov_b32", t, 0); V("mov_b32", t + 1, TAG)
    e("s_mov_b64 exec, 1")
    e("buffer_store_dword v%d, v%d, %s, %s offen sc1" % (t + 1, t, R_WS, soff))
    e("s_mov_b64 exec, -1")

def poll(label, soff, first_issued=None, t=VT, nwait=0):
    V("lshlrev_b32", t, 7, v(V_L))
    e("s_mov_b32 %s, 0" % CNT)
    e("s_mov_b32 exec_hi, 0")
    r = t + 1
    if first_issued is not None:
        r = first_issued
        e("s_waitcnt vmcnt(%d)" % nwait)
        e("s_branch %s_chk" % label)
    lab(label)
    e("buffer_load_dword v%d, v%d, %s, %s offen sc1" % (r, t, R_WS, soff))
    sadd(CNT, CNT, 1)
    e("s_waitcnt vmcnt(0)")
    lab(label + "_chk")
    e("v_cmp_ne_u32 vcc, %s, v%d" % (TAG, r))
    e("s_cmp_gt_u32 %s, 0x4000" % CNT)
    e("s_cbranch_scc1 %s_done" % label)
    e("s_cmp_lg_u64 vcc, 0")
    e("s_cbranch_scc1 %s" % label)
    lab(label + "_done")
    e("s_mov_b32 exec_hi, -1")

def kgen_addr():
    t = VT
    c("SPLIT")
    V("bfe_u32", t, v(V_L), 4, 1); V("bfe_u32", t + 1, v(V_L), 2, 1); V("lshl_or_b32", t, v(t), 1, v(t + 1))
    V("bfe_u32", t + 1, v(V_L), 3, 1); V("and_b32", t + 2, 3, v(V_L)); V("lshl_or_b32", t + 1, v(t + 1), 2, v(t + 2))
    e("v_cmp_eq_u32 s[4:5], 0, v%d" % t)
    e("v_cmp_eq_u32 vcc, 1, v%d" % t)
    e("s_bitcmp1_b32 %s, 0" % WV)
    csel(T0, 0x11100000, 0x76543210); csel(T1, 0x11100000, 0x43222100); csel(T2, 0x11100000, 0x22111000); csel(T3, 0x19171513, 0x100d0800)
    V("mov_b32", t + 2, T2); V("mov_b32", t + 3, T1); V("cndmask_b32", t + 2, v(t + 2), v(t + 3), "vcc")
    V("mov_b32", t + 3, T0); V("cndmask_b32", t + 2, v(t + 2), v(t + 3), "s[4:5]")
    V("lshlrev_b32", t + 1, 2, v(t + 1)); V("bfe_u32", t + 2, v(t + 2), v(t + 1), 4)
    V("lshlrev_b32", t, 3, v(t)); V("bfe_u32", t, T3, v(t), 8); V("add_u32", t, v(t), v(t + 2))
    V("lshrrev_b32", t + 1, 5, v(V_L)); V("and_b32", t + 2, 31, v(V_L))
    e("s_cselect_b32 %s, 2048, 0" % T3)
    e("s_cselect_b32 %s, 0, -1" % CNT)
    e("s_bitcmp1_b32 %s, 1" % WV)
    csel(T0, L_TA + 14256, L_TA); csel(T1, L_TB + 16896, L_TB); csel(T2, L_KF + 4160 + 64, L_KF + 64)
    sadd(T2, T2, T3)
    V("mul_u32_u24", t, 528, v(t)); V("lshl_add_u32", t + 3, v(t + 1), 4, T0); V("add_u32", PV_GA, v(t), v(t + 3))
    V("mul_u32_u24", t, 528, v(t + 2)); V("lshl_add_u32", t + 3, v(t + 1), 4, T1); V("add_u32", PV_GB, v(t), v(t + 3))
    V("lshl_add_u32", t, v(t + 1), 9, T2); V("lshl_add_u32", PV_GW, v(t + 2), 4, v(t))
    e("s_waitcnt lgkmcnt(0)")
    sadd(TAG, TAG, 1)
    e("s_bitcmp1_b32 %s, 1" % WV)
    e("s_cselect_b32 %s, 0, 16" % T0)
    sshl(T0, DS2, T0); sand(T0, T0, 0xffff0000); sand(T0, T0, CNT)
    e("v_cmp_eq_u32 vcc, 0, v%d" % V_L)
    V("mov_b32", PV_GD, T0)
    sand(T1, WV, 3); sshl(T1, T1, 8); sadd(T1, T1, L_UP + 128)
    V("cndmask_b32", PV_GD, 0, v(PV_GD), "vcc")
    V("lshl_add_u32", PV_US, v(V_L), 1, T1)

def pads():
    t = VT
    c("SPLIT")
    for i in range(4): V("mov_b32", t + 4 + i, 0)
    V("lshrrev_b32", t, 3, v(V_L)); V("mul_u32_u24", t, 1152, v(t)); V("and_b32", t + 1, 7, v(V_L)); V("lshl_add_u32", t, v(t + 1), 4, v(t)); V("add_u32", t, L_UP, v(t))
    V("bfe_u32", t + 1, v(V_L), 2, 1); V("mul_u32_u24", t + 1, 4160, v(t + 1)); V("and_b32", t + 2, 3, v(V_L)); V("lshl_add_u32", t + 1, v(t + 2), 4, v(t + 1)); V("add_u32", t + 1, L_KF, v(t + 1))
    V("lshlrev_b32", t + 2, 4, v(t + 2)); V("add_u32", t + 2, L_FL, v(t + 2))
    for k in range(3): e("ds_write_b128 v%d, %s" % (t + k, vr(t + 4, 4)))

def loader_path():
    c("======== loader waves ========")
    loader_addr()
    e("s_waitcnt lgkmcnt(0)")
    stamp("karg")
    srd(R_X, S_X, 2048 * 1024); srd(R_W, S_W, 512 * 3072)
    scalar_loads()
    issue_chunk(0)
    if OPT["echo"]: stamp("i0")
    srd(R_WS, S_WS, WS_SIZE); srd(R_OUT, S_OUT, 2048 * 2048); srd(R_WO, S_WO, 512 * 1024)
    late = capture(lambda: (precompute_conv(), precompute(), kgen_addr(), pads()))
    def upto(n):
        while n < len(late) and "SPLIT" not in late[n]: n += 1
        SINK[0].extend(late[:n]); del late[:n]
    upto(OPT["npre"])
    if OPT["echo"]: stamp("pre")
    issue_chunk(1)
    waits = [8, 8, 8, 8, 8, 8, 9, 1]
    for ci in range(8):
        c("loader chunk %d" % ci)
        e("s_waitcnt vmcnt(%d)" % waits[ci])
        if OPT["ldst"] and ci in (1, 2, 3, 4, 5): e("s_memtime s[%d:%d]" % (80 + 4 * (ci - 1), 81 + 4 * (ci - 1)))
        e("s_barrier")
        if OPT["ldst"] and ci in (1, 2, 3, 4, 5): e("s_memtime s[%d:%d]" % (82 + 4 * (ci - 1), 83 + 4 * (ci - 1)))
        if ci in (0, 7): stamp("ch%d" % ci)
        if ci + 2 < 8: issue_chunk(ci + 2)
        if ci == 5:
            sshl(T5, XQ, 12); sadd(T5, T5, WS_F0)
            V("lshlrev_b32", 42, 7, v(V_L))
            e("s_mov_b32 exec_hi, 0")
            e("buffer_load_dword v%d, v42, %s, %s offen sc1" % (G_PL, R_WS, T5))
            e("s_mov_b32 exec_hi, -1")
            upto(len(late) // 2)
        if ci == 6: upto(9999)
    poll("L_poll0", T5, first_issued=G_PL, nwait=0)
    c("u of this WG's channel pair (transposed by the group)")
    sshl(T0, XQ, 5); sadd(T0, T0, I5); sshl(T0, T0, 13); sadd(T0, T0, T4); sadd(T0, T0, WS_U2)
    e("buffer_load_dwordx4 %s, v%d, %s, %s offen sc1" % (vr(U2R, 4), V_L16, R_WS, T0))
    e("buffer_load_dwordx4 %s, v%d, %s, %s offen offset:1024 sc1" % (vr(U2R + 4, 4), V_L16, R_WS, T0))
    e("s_barrier")
    stamp("K1")
    c("---- S4 kernel K = A-table x B-table (rows duplicated to realise bf16(l)) ----")
    FA, FB, AC = 96, 128, 160
    def rd(s):
        e("ds_read_b128 %s, v%d offset:%d" % (vr(FA + 4 * (s % 8), 4), PV_GA, 32 * s))
        e("ds_read_b128 %s, v%d offset:%d" % (vr(FB + 4 * (s % 8), 4), PV_GB, 32 * s))
    for s in range(7): rd(s)
    e("v_and_b32 v%d, 1, v%d" % (VT, V_L))
    e("v_cmp_eq_u32 vcc, 0, v%d" % VT)
    uw = []
    for h in range(2):
        for p in range(4):
            uw.append("    ds_write_b16 v%d, v%d offset:%d" % (PV_US, U2R + 4 * h + p, 1152 * p + 128 * h))
            uw.append("    ds_write_b16_d16_hi v%d, v%d offset:%d" % (PV_US, U2R + 4 * h + p, 4608 + 1152 * p + 128 * h))
    nw = 0
    for s in range(16):
        e("s_waitcnt lgkmcnt(%d)" % (2 * (min(s + 6, 15) - s) + nw))
        e("v_mfma_f32_32x32x16_bf16 %s, %s, %s, %s" % (vr(AC, 16), vr(FA + 4 * (s % 8), 4), vr(FB + 4 * (s % 8), 4), "0" if s == 0 else vr(AC, 16)))
        if s + 7 < 16: rd(s + 7)
        if s == 10: e("s_waitcnt vmcnt(0)")
        if 10 <= s < 15:
            SINK[0].extend(uw[nw:nw + 3]); nw += 3
    SINK[0].extend(uw[15:])
    nop(11)
    V("add_f32", AC, v(AC), v(PV_GD))
    e("s_bitcmp1_b32 %s, 0" % WV)
    e("s_cbranch_scc0 L_kg_nofix")
    V("cndmask_b32", AC + 4, v(AC + 5), v(AC + 3), "vcc"); V("cndmask_b32", AC + 12, v(AC + 13), v(AC + 11), "vcc")
    lab("L_kg_nofix")
    for i in range(8): V("cvt_pk_bf16_f32", FA + i, v(AC + 2 * i), v(AC + 2 * i + 1))
    e("ds_write_b128 v%d, %s" % (PV_GW, vr(FA, 4)))
    e("ds_write_b128 v%d, %s offset:1024" % (PV_GW, vr(FA + 4, 4)))
    e("s_branch L_gemm_done")

def cmul_multi(lst):
    for d, a, b in lst:
        e("v_pk_mul_f32 %s, %s, %s op_sel:[0,0] op_sel_hi:[1,0]" % (vr(d, 2), vr(a, 2), vr(b, 2)))
    for d, a, b in lst:
        e("v_pk_fma_f32 %s, %s, %s, %s op_sel:[1,1,0] op_sel_hi:[0,1,1] neg_lo:[1,0,0]" % (vr(d, 2), vr(a, 2), vr(b, 2), vr(d, 2)))
def cexp_multi(lst, va, vb):
    for d, Lf, t, cj in lst:
        V("mul_f32", t, fl(Lf), v(va)); V("mul_f32", t + 1, fl(-Lf if cj else Lf), v(vb)); V("fract_f32", t + 1, v(t + 1))
    for d, Lf, t, cj in lst:
        V("exp_f32", t, v(t)); V("cos_f32", d, v(t + 1)); V("sin_f32", d + 1, v(t + 1))
    e("s_nop 0")
    for d, Lf, t, cj in lst:
        e("v_pk_mul_f32 %s, %s, %s op_sel:[0,0] op_sel_hi:[1,0]" % (vr(d, 2), vr(d, 2), vr(t, 2)))

KVA, KVB, KVD = 247, 248, 249
def kgen_b():
    c("---- S4 mode tables: B = exp(z*8j) -> LDS ----")
    va, vb, vdt, ta = KVA, KVB, KVD, VT + 4
    e("s_bitcmp1_b32 %s, 1" % WV)
    e("s_cselect_b32 %s, 0, 16" % T0)
    sshl(T0, LD2, T0); sand(T0, T0, 0xffff0000)
    V("mov_b32", vdt, fl(LOG2E)); V("mul_f32", vdt, T0, v(vdt)); V("exp_f32", vdt, v(vdt))
    for i in range(2): V("lshlrev_b32", V_PAR + i, 16, v(V_PAR + i))
    V("cvt_pk_bf16_f32", vdt, v(vdt), v(vdt)); V("and_b32", vdt, 0xffff0000, v(vdt))
    V("mul_f32", va, v(vdt), v(V_PAR)); V("mul_f32", vb, v(vdt), v(V_PAR + 1))
    V("mul_f32", va, fl(LOG2E), v(va)); V("mul_f32", vb, fl(1.0 / (2 * math.pi)), v(vb))
    P = lambda j: KB + 2 * j
    G = lambda k: KB + 16 + 2 * k
    X = KB + 24
    cv = [KB + 40 + i for i in range(8)]
    n = [0]
    def putb(row, pr):
        r = cv[n[0] % 8]; n[0] += 1
        V("cvt_pk_bf16_f32", r, v(pr), v(pr + 1))
        e("ds_write_b32 v46, v%d offset:%d" % (r, row * 528))
    cexp_multi([(P(1), 8.0, ta, 0), (G(1), 64.0, ta + 2, 0)], va, vb)
    V("mov_b32", cv[7], 0x3f80); e("ds_write_b32 v46, v%d" % cv[7])
    cmul_multi([(P(2), P(1), P(1)), (G(2), G(1), G(1))])
    putb(1, P(1)); putb(8, G(1))
    cmul_multi([(P(3), P(2), P(1)), (P(4), P(2), P(2)), (G(3), G(2), G(1))])
    putb(2, P(2)); putb(16, G(2))
    cmul_multi([(P(5), P(4), P(1)), (P(6), P(4), P(2)), (P(7), P(4), P(3))])
    for r, p in ((3, P(3)), (4, P(4)), (24, G(3)), (5, P(5)), (6, P(6)), (7, P(7))): putb(r, p)
    for k in range(1, 4):
        cmul_multi([(X + 2 * j, P(j), G(k)) for j in range(1, 8)])
        for j in range(1, 8): putb(8 * k + j, X + 2 * j)

def kgen_a():
    va, vb, vdt, ta = KVA, KVB, KVD, VT + 4
    E = lambda j: 224 + 2 * j - 2
    Q = lambda j: 160 + 2 * j
    H = lambda k: 176 + 2 * k
    X = 224
    def puta(row, pr): V("cvt_pk_bf16_f32", KR + row, v(pr), v(pr + 1))
    cexp_multi([(E(1), 1.0, ta, 1), (H(1), 256.0, ta + 2, 1)], va, vb)
    for i in range(2, 6): V("lshlrev_b32", V_PAR + i, 16, v(V_PAR + i))
    V("mul_f32", ta, v(vdt), v(V_PAR + 2)); e("v_mul_f32 v%d, -v%d, v%d" % (ta + 1, vdt, V_PAR + 3))
    V("mov_b32", ta + 2, v(V_PAR + 4)); V("mul_f32", ta + 3, "-1.0", v(V_PAR + 5))
    cmul_multi([(Q(0), ta, ta + 2), (E(2), E(1), E(1)), (H(2), H(1), H(1))])
    cmul_multi([(E(3), E(2), E(1)), (E(4), E(2), E(2)), (H(3), H(2), H(1)), (H(4), H(2), H(2))])
    puta(0, Q(0))
    cmul_multi([(E(5), E(4), E(1)), (E(6), E(4), E(2)), (E(7), E(4), E(3)), (E(8), E(4), E(4)), (H(5), H(4), H(1)), (H(6), H(4), H(2)), (H(7), H(4), H(3))])
    cmul_multi([(Q(j), Q(0), E(j)) for j in range(1, 9)])
    for j in range(1, 8): puta(j, Q(j))
    cmul_multi([(X + 2 * i, H(1), Q(2 * i)) for i in range(5)] + [(X + 10 + 2 * i, H(2), Q(4 * i)) for i in range(3)])
    for i in range(8): puta(8 + i, X + 2 * i)
    cmul_multi([(X + 2 * i, H(3), Q(4 * i)) for i in range(3)] + [(X + 6, H(4), Q(0)), (X + 8, H(4), Q(8)), (X + 10, H(5), Q(0)), (X + 12, H(5), Q(8))])
    for i in range(7): puta(16 + i, X + 2 * i)
    cmul_multi([(X, H(6), Q(0)), (X + 2, H(6), Q(8)), (X + 4, H(7), Q(0)), (X + 6, H(7), Q(8))])
    for i in range(4): puta(23 + i, X + 2 * i)

def compute_path():
    t = VT
    lab("L_compute")
    c("======== compute waves ========")
    e("s_bfe_u32 %s, %s, 0x10001" % (T0, WV)); sadd(T0, T0, C0); sshl(T0, T0, 8); sand(T1, WV, 1); sshl(T1, T1, 7); sadd(T0, T0, T1)
    V("lshl_add_u32", V_PA, v(V_L), 1, T0)
    e("s_waitcnt lgkmcnt(0)")
    stamp("karg")
    for i, s in enumerate((S_ARE, S_AIM, S_BRE, S_BIM, S_CRE, S_CIM)):
        e("global_load_ushort v%d, v%d, %s" % (V_PAR + i, V_PA, sr(s, 2)))
    scalar_loads()
    srd(R_U, S_U, 2048 * 1024)
    u_coop_loads()
    if OPT["pf"] == 1:
        c("pull this WG's 1/32 share of the code into L2")
        e("s_getpc_b64 s[4:5]")
        lab("L_pc")
        sshl(T0, I5, 3); V("add_u32", t, T0, v(V_L)); V("lshlrev_b32", t, 7, v(t))
        e("v_min_u32 v%d, L_end-L_pc-4, v%d" % (t, t))
        e("s_mov_b64 exec, 0xff")
        e("global_load_dword v47, v%d, s[4:5]" % t)
        e("s_mov_b64 exec, -1")
    srd(R_WS, S_WS, WS_SIZE); srd(R_OUT, S_OUT, 2048 * 2048); srd(R_WO, S_WO, 512 * 1024)
    gemm_read_addr()
    e("s_waitcnt vmcnt(%d) lgkmcnt(0)" % (9 if OPT["pf"] == 1 else 8))
    sadd(TAG, TAG, 1)
    if OPT["echo"]: stamp("par")
    kgen_b()
    stamp("tab")
    pc = [x for x in capture(kgen_a) if not x.strip().startswith(";")]
    if "F" in OPT["abl"]: pc = pc[:20]
    if "U" in OPT["abl"]: pc = pc[20:]
    def f0flag():
        sshl(I0, XQ, 5); sadd(I0, I0, I5); sshl(I0, I0, 7); sadd(I0, I0, WS_F0)
        flag_store(I0, 26)
    def fill(n):
        for _ in range(n):
            if pc: SINK[0].append(pc.pop(0))
    def ml(s, first=False):
        cc = lambda k: "0" if first else vr(G_ACC[k], 16)
        return ["v_mfma_f32_32x32x16_bf16 %s, %s, %s, %s" % (vr(G_ACC[0], 16), vr(G_W0F + 4 * s, 4), vr(G_XF + 4 * s, 4), cc(0)),
                "v_mfma_f32_32x32x16_bf16 %s, %s, %s, %s" % (vr(G_ACC[1], 16), vr(G_W1F + 4 * s, 4), vr(G_XF + 4 * s, 4), cc(1)),
                "v_mfma_f32_32x32x16_bf16 %s, %s, %s, %s" % (vr(G_ACC[2], 16), vr(G_XF + 4 * s, 4), vr(G_VF + 4 * s, 4), cc(2))]
    def ilv(ms, rs, nf):
        k = 0
        for i, m in enumerate(ms):
            if "M" not in OPT["abl"] or m.endswith(", 0"): e(m)
            upto = (len(rs) * (i + 1) + len(ms) - 1) // len(ms)
            SINK[0].extend(rs[k:upto]); k = upto
            fill(nf)
    for ci in range(8):
        c("compute chunk %d" % ci)
        hi = (ci % 3) == 2
        ib = 32768 if ci % 3 == 1 else 0
        xa = G_XA + (4 if hi else 0)
        wa = G_WB if hi else G_WA
        if ci == 4: e("s_waitcnt vmcnt(0)")
        e("s_barrier")
        if ci in (0, 7): stamp("ch%d" % ci)
        if ci == 4: f0flag()
        def reads(s):
            if "R" in OPT["abl"]: return
            e("ds_read_b128 %s, v%d offset:%d" % (vr(G_XF + 4 * s, 4), xa + s, ib))
            for k, f in enumerate((G_W0F, G_W1F, G_VF)):
                for tt in range(2):
                    e("ds_read_b64_tr_b16 %s, v%d offset:%d" % (vr(f + 4 * s + 2 * tt, 2), wa + k, ib + (16 * s + 4 * tt) * 128))
        r0, r1 = capture(reads, 0), capture(reads, 1)
        nf = 1 if 0 < ci < 7 else 0
        if ci > 0:
            SINK[0].extend(r0[:3]); ilv(ml(3), r0[3:] + r1[:5], 0); SINK[0].extend(r1[5:])
        else: SINK[0].extend(r0 + r1)
        fill(7 * nf)
        e("s_waitcnt lgkmcnt(7)"); ilv(ml(0, ci == 0), capture(reads, 2), nf)
        e("s_waitcnt lgkmcnt(7)"); ilv(ml(1), capture(reads, 3), nf)
        e("s_waitcnt lgkmcnt(7)")
        if ci < 7:
            if ci == 0: ilv(ml(2), capture(u_coop_perm), 0)
            else: ilv(ml(2), [], 3 * nf)
            if ci == 6: fill(999)
            e("s_waitcnt lgkmcnt(0)")
            if ci == 0: u_coop_stores()
    tw = ["    ds_write_b32 v%d, v%d offset:%d" % (PV_TW, KR + r, r * 528) for r in range(27)]
    ilv(ml(2), tw[:8], 0)
    e("s_waitcnt lgkmcnt(8)")
    ilv(ml(3), tw[8:], 0)
    sadd(T1, sQKV, WS_K); sadd(T2, sQKV, WS_K + 65536); sadd(T3, sQKV, WS_V); sadd(T4, sQKV, WS_Q + 65536); sadd(T0, sQKV, WS_Q)
    e("s_waitcnt lgkmcnt(0)")
    e("s_barrier")
    stamp("K1")
    c("GEMM epilogue: publish Q,K,V")
    P = G_XF
    def pk(dst, src):
        for i in range(4): V("cvt_pk_bf16_f32", dst + i, v(src + 2 * i), v(src + 1 + 2 * i))
    def st(r, va, so, off=0):
        e("buffer_store_dwordx4 %s, v%d, %s, %s offen%s sc1" % (vr(r, 4), va, R_WS, so, " offset:%d" % off if off else ""))
    pk(P, G_ACC[0] + 8); st(P, PV_QS, T1)
    pk(P + 4, G_ACC[1] + 8); st(P + 4, PV_QS, T2)
    pk(P + 8, G_ACC[2]); st(P + 8, PV_VS, T3)
    pk(P + 12, G_ACC[2] + 8); st(P + 12, PV_VS, T3, 512)
    for k, so in ((0, T0), (1, T4)):
        for i in range(8): V("mul_f32", G_ACC[k] + i, fl(0.25 * LOG2E), v(G_ACC[k] + i))
        pk(P + 16 + 4 * k, G_ACC[k]); st(P + 16 + 4 * k, PV_QS, so)
    stamp("pub")
    precompute_conv()

C_LO, C_UP = 128, 144
C_A, C_X, C_Y = 160, 176, 192
def signal(tag, cnt_off, last, soff):
    t = VT + 4
    V("mov_b32", t + 2, L_FL + cnt_off); V("mov_b32", t + 3, 1)
    e("s_waitcnt vmcnt(0)")
    e("s_mov_b64 exec, 1")
    e("ds_add_rtn_u32 v%d, v%d, v%d" % (t + 3, t + 2, t + 3))
    e("s_mov_b64 exec, -1")
    e("s_waitcnt lgkmcnt(0)")
    e("v_readfirstlane_b32 %s, v%d" % (T0, t + 3))
    e("s_cmp_eq_u32 %s, %d" % (T0, last))
    e("s_cbranch_scc0 L_sig_%s" % tag)
    flag_store(soff, t)
    lab("L_sig_%s" % tag)

def conv_job(T, s0, nfull, tail, va, vb, sig=None, sig_after=1):
    def rdA(k, sg):
        e("ds_read_b64_tr_b16 %s, v%d offset:%d" % (vr(C_A + 4 * k, 2), va, 128 * sg + 32))
        e("ds_read_b64_tr_b16 %s, v%d offset:%d" % (vr(C_A + 4 * k + 2, 2), va, 128 * sg))
    def rdB(dst, k, sg):
        e("ds_read_b128 %s, v%d offset:%d" % (vr(dst + 4 * k, 4), vb, 112 + 128 * T - 32 * sg))
    def mf(acc, k, b, first=False):
        e("v_mfma_f32_32x32x16_bf16 %s, %s, %s, %s" % (vr(acc, 16), vr(C_A + 4 * k, 4), vr(b + 4 * k, 4), "0" if first else vr(acc, 16)))
    pend = []
    def note(step, n): pend.extend([step] * n)
    def wait(step):
        n = sum(1 for x in pend if x > step)
        e("s_waitcnt lgkmcnt(%d)" % n)
        pend[:] = [x for x in pend if x > step]
    for k in range(4):
        rdA(k, s0 + k); rdB(C_Y, k, s0 + k - 4); rdB(C_X, k, s0 + k); note(k, 4)
    cur, old = C_X, C_Y
    for sec in range(nfull):
        for k in range(4):
            st = 4 * sec + k
            wait(st)
            mf(C_UP, k, old, st == 0)
            if sec + 1 < nfull: rdB(old, k, s0 + st + 4); note(st + 4, 1)
            mf(C_LO, k, cur, st == 0)
            if sec + 1 < nfull or tail: rdA(k, s0 + st + 4); note(st + 4, 2)
        cur, old = old, cur
        if sig and sec + 1 == sig_after: sig(); del pend[:]
    if tail:
        for k in range(4):
            wait(4 * nfull + k)
            mf(C_UP, k, old)
        nop(2)
    else: nop(12)

def z_writes(va, row0):
    for k in range(4): e("ds_write_b128 v%d, %s offset:%d" % (va, vr(C_LO + 4 * k, 4), 144 * row0 + 32 * k))
    nop(8)
    for k in range(4): e("ds_write_b128 v%d, %s offset:%d" % (va, vr(C_UP + 4 * k, 4), 144 * (row0 + 8) + 32 * k))

def conv():
    c("---- causal conv as Toeplitz MFMA, output tiles 0..5 ----")
    e("s_cmp_ge_u32 %s, 4" % WV)
    e("s_cbranch_scc1 L_conv_hi")
    e("s_bitcmp1_b32 %s, 0" % WV)
    e("s_cbranch_scc1 L_conv_2a")
    conv_job(0, 0, 1, True, PV_CA, PV_CB, lambda: signal("a", 16, 3, sF1)); z_writes(PV_ZW, 0)
    e("s_branch L_conv_done")
    lab("L_conv_2a")
    conv_job(4, 0, 3, False, PV_CA, PV_CB, lambda: signal("b", 16, 3, sF1), 2); z_writes(PV_ZW, 32)
    e("s_branch L_conv_done")
    lab("L_conv_hi")
    e("s_bitcmp1_b32 %s, 0" % WV)
    e("s_cbranch_scc1 L_conv_2b")
    conv_job(2, 0, 3, True, PV_CA, PV_CB); z_writes(PV_ZW, 16)
    e("s_branch L_conv_done")
    lab("L_conv_2b")
    conv_job(4, 12, 2, True, PV_CA, PV_CB); z_writes(PV_ZW, 32 + 17)
    lab("L_conv_done")
    stamp("cend")

def kv_tiles(msrc, soff):
    e("s_mov_b32 m0, %s" % msrc)
    e("s_nop 0")
    for i in range(8):
        if i == 4: sadd("m0", "m0", 4096); sadd(soff, soff, 4096)
        e("buffer_load_dwordx4 v%d, %s, %s offen offset:%d sc1 lds" % (V_L16, R_WS, soff, 1024 * (i % 4)))

def kv_early():
    t = VT
    e("s_cmp_ge_u32 %s, 4" % WV)
    e("s_cbranch_scc1 L_kve_done")
    precompute(); precompute_tail()
    e("s_bitcmp1_b32 %s, 0" % WV)
    e("s_cbranch_scc1 L_kve_done")
    e("s_cmp_eq_u32 %s, 0" % WV)
    e("s_cbranch_scc0 L_kve_w2")
    for i in range(4): V("mov_b32", C_A + i, 0)
    V("and_b32", t + 2, 7, v(V_L)); V("mul_u32_u24", t + 2, ZS, v(t + 2)); V("bfe_u32", t + 3, v(V_L), 3, 1); V("mul_u32_u24", t + 3, 49 * 144, v(t + 3))
    V("add_u32", t + 2, v(t + 2), v(t + 3)); V("add_u32", t + 2, L_Z + 112, v(t + 2))
    e("ds_write_b128 v%d, %s" % (t + 2, vr(C_A, 4)))
    e("s_mov_b32 %s, 0" % T5); sadd(T3, sHB, WS_K)
    e("s_branch L_kve_go")
    lab("L_kve_w2")
    e("s_mov_b32 %s, 8192" % T5); sadd(T3, sHB, WS_V)
    lab("L_kve_go")
    poll("L_poll1", sF1P, t=VT + 4)
    stamp("poll1")
    sshl(T0, JJ, 13); sadd(T0, T0, T3)
    kv_tiles(T5, T0)
    sadd(T0, JJ, 1); sand(T0, T0, 7); sshl(T0, T0, 13); sadd(T0, T0, T3); sadd(T5, T5, BLK)
    kv_tiles(T5, T0)
    lab("L_kve_done")

A_Q = [64, 68]
A_S = [72, 88]
A_O = [104, 120]
A_KF = [136, 140]
A_VA = [144, 148]
A_VB = [152, 156]
A_IDX = 160
A_F = 164
A_NM = 72 + 16
WOR = 192
Y_R = 32
def conv_epilogue():
    c("y[t] = sum_p Z_p[t-p]")
    e("s_waitcnt lgkmcnt(0)")
    e("s_barrier")
    stamp("zbar")
    e("buffer_load_dwordx4 %s, v%d, %s, %s offen sc1" % (vr(A_Q[0], 4), V_L16, R_WS, sQL))
    e("buffer_load_dwordx4 %s, v%d, %s, %s offen offset:1024 sc1" % (vr(A_Q[1], 4), V_L16, R_WS, sQL))
    order = [(0, 0), (0, 4 * ZS), (288, 0), (288, 4 * ZS), (0, 0), (17 * 144, 0), (0, 4 * ZS), (17 * 144, 4 * ZS)]
    def rd(n):
        if n == 4:
            for p in range(4): V("add_u32", PV_ZR + p, T0, v(PV_ZR + p))
        for p in range(4): e("ds_read_b32 v%d, v%d offset:%d" % (Y_R + 4 * n + p, PV_ZR + p, sum(order[n])))
    rd(0); rd(1); rd(2)
    smul(T0, WV, 288); e("s_sub_u32 %s, 4608, %s" % (T0, T0))
    e("s_cmp_eq_u32 %s, 6" % WV)
    e("s_cbranch_scc0 L_nocarry")
    c("carry: last rows of tile 5 (both partials) feed y[1536..1538], finished in the tail")
    t = VT
    for i in range(4): V("mov_b32", PV_CY + i, 0)
    V("and_b32", t, 7, v(V_L)); V("mul_u32_u24", t, ZS, v(t)); V("bfe_u32", t + 1, v(V_L), 3, 1); V("mul_u32_u24", t + 1, 17 * 144, v(t + 1))
    V("add_u32", t, v(t), v(t + 1)); V("add_u32", t, L_Z + 48 * 144 + 112, v(t))
    e("s_mov_b64 exec, 0xffff")
    e("ds_read_b128 %s, v%d" % (vr(PV_CY, 4), t))
    e("s_mov_b64 exec, -1")
    e("s_waitcnt lgkmcnt(0)")
    lab("L_nocarry")
    V("mov_b32", A_IDX, 0xdddddddd)
    V("and_b32", VT, 31, v(V_L)); e("v_cmp_eq_u32 vcc, 16, v%d" % VT); V("mov_b32", VT, 0x3f803f80)
    e("s_mov_b32 s4, 0xffff"); e("s_mov_b32 s5, 0xffff")
    zs = ["    v_cndmask_b32 v%d, 0, v%d, vcc" % (A_VA[0] + i, VT) for i in range(16)]
    zs += ["    v_mov_b32 v%d, 0" % (A_O[0] + i) for i in list(range(9)) + list(range(16, 25))]
    zs += ["    v_mov_b32 v%d, 0" % (A_O[0] + i) for i in list(range(9, 16)) + list(range(25, 32))]
    for n in range(8):
        r = Y_R + 4 * n
        SINK[0].extend(zs[6 * n:6 * n + 6])
        e("s_waitcnt lgkmcnt(%d)" % (4 * (min(n + 2, 7) - n)))
        if n + 3 < 8: rd(n + 3)
        V("add_f32", r, v(r), v(r + 1)); V("add_f32", r + 2, v(r + 2), v(r + 3)); V("add_f32", r, v(r), v(r + 2))
        if n in (1, 3): V("cvt_pk_bf16_f32", V_Y + n // 2, v(r - 4), v(r))
        if n in (5, 7): V("add_f32", r, v(r), v(r - 4))
    V("cvt_pk_bf16_f32", V_Y + 2, v(Y_R + 20), v(Y_R + 28))

def kv_late():
    t = VT
    e("s_cmp_ge_u32 %s, 4" % WV)
    e("s_cbranch_scc0 L_kvl_done")
    sand(T1, WV, 3); sshl(T0, T1, 2); sadd(T0, T0, L_FL)
    V("mov_b32", t, T0); V("mov_b32", t + 1, 1); V("mov_b32", t + 2, 2)
    sshl(T1, T1, 11); sadd(T0, sHB, T1)
    for b in range(2, 8):
        sadd(T2, JJ, b); sand(T2, T2, 7); sshl(T2, T2, 13); sadd(T2, T2, T0)
        sadd("m0", T1, b * BLK); sadd(T3, T2, WS_K)
        e("buffer_load_dwordx4 v%d, %s, %s offen sc1 lds" % (V_L16, R_WS, T3))
        sadd(T4, T2, WS_V)
        e("buffer_load_dwordx4 v%d, %s, %s offen offset:1024 sc1 lds" % (V_L16, R_WS, T3))
        sadd("m0", T1, b * BLK + 8192); e("s_nop 0")
        e("buffer_load_dwordx4 v%d, %s, %s offen sc1 lds" % (V_L16, R_WS, T4))
        e("buffer_load_dwordx4 v%d, %s, %s offen offset:1024 sc1 lds" % (V_L16, R_WS, T4))
        if b == 5:
            e("s_waitcnt vmcnt(8)")
            e("ds_write_b32 v%d, v%d" % (t, t + 1))
    precompute_tail()
    e("s_waitcnt vmcnt(0) lgkmcnt(0)")
    e("ds_write_b32 v%d, v%d" % (t, t + 2))
    lab("L_kvl_done")

def kv_check(stage):
    t = VT + 4
    lb = "L_kvchk%d" % stage
    V("mov_b32", t, L_FL)
    e("s_mov_b32 %s, 0" % T3)
    lab(lb)
    e("ds_read_b128 %s, v%d" % (vr(t + 2, 4), t))
    sadd(T3, T3, 1)
    e("s_waitcnt lgkmcnt(0)")
    V("min_u32", t + 2, v(t + 2), v(t + 3)); V("min3_u32", t + 2, v(t + 2), v(t + 4), v(t + 5))
    e("s_cmp_gt_u32 %s, 0x40000" % T3)
    e("s_cbranch_scc1 %s_done" % lb)
    e("v_readfirstlane_b32 %s, v%d" % (T4, t + 2))
    e("s_cmp_lt_u32 %s, %d" % (T4, stage))
    e("s_cbranch_scc1 %s" % lb)
    lab(lb + "_done")

def attn_main():
    c("---- attention main loop: wave = 2 q-tiles x 32 key tiles (parity w>>2), fully unrolled ----")
    base = [0]
    koff = lambda i: (i // 4 - base[0]) * BLK + (i % 4) * 2048
    def rdK(i):
        if i < 32: e("ds_read_b128 %s, v%d offset:%d" % (vr(A_KF[i & 1], 4), PV_KA, koff(i)))
    def rdV(i):
        if i < 32:
            e("s_mov_b64 exec, s[4:5]")
            e("ds_read_b128 %s, v%d offset:%d" % (vr(A_VA[i & 1], 4), PV_V0, koff(i)))
            e("ds_read_b128 %s, v%d offset:%d" % (vr(A_VB[i & 1], 4), PV_V0, koff(i) + 512))
            e("s_mov_b64 exec, -1")
    def qk(i, q):
        if i < 32: e("v_mfma_f32_32x32x16_bf16 %s, %s, %s, 0" % (vr(A_S[q], 16), vr(A_KF[i & 1], 4), vr(A_Q[q], 4)))
    def pv(i, q, half):
        if i < 0: return
        a = (A_VA if half == 0 else A_VB)[i & 1]
        e("v_smfmac_f32_32x32x32_bf16 %s, %s, %s, v%d" % (vr(A_O[q], 16), vr(a, 4), vr(A_S[q] + 8 * half, 8), A_IDX))
    def ex(q, lo, hi):
        for k in range(lo, hi): e("v_exp_f32 v%d, v%d" % (A_S[q] + k, A_S[q] + k))
    rdK(0); rdK(1); rdV(0)
    e("s_cmp_ge_u32 %s, 4" % WV)
    e("s_cbranch_scc1 L_prio1")
    e("s_setprio 2")
    e("s_branch L_prio_done")
    lab("L_prio1")
    e("s_setprio 1")
    lab("L_prio_done")
    e("s_waitcnt lgkmcnt(3)")
    qk(0, 0)
    nop(12)
    ytiles = OPT["yt"]; wtiles = OPT["wt"]
    for i in range(32):
        c("key tile %d" % i)
        if i in (OPT["flip1"], OPT["flip"], OPT["mid"]):
            if i == OPT["mid"]: e("s_barrier")
            e("s_cmp_ge_u32 %s, 4" % WV)
            e("s_cbranch_scc1 L_noflip%d" % i)
            e("s_setprio %d" % (2 if i == OPT["mid"] else 0))
            lab("L_noflip%d" % i)
        if i == 6: kv_check(1)
        if i == 14: kv_check(2)
        ex(0, 0, 2); pv(i - 1, 1, 1); ex(0, 2, 5); qk(i, 1)
        e("s_waitcnt lgkmcnt(0)")
        if i in (11, 23):
            for r in (PV_KA, PV_V0): V("add_u32", r, 3 * BLK, v(r))
            base[0] += 3
        rdK(i + 2); rdV(i + 1)
        if i in ytiles:
            n = ytiles.index(i)
            e("buffer_store_dword v%d, v%d, %s, %s offen %s" % (V_Y + n, PV_YA, R_OUT, sYS2 if n == 2 else sYS, OPT["ypol"]))
            if n == 0: sadd(sYS, sYS, 0x20000)
            if n == 2: sadd(sYS2, sYS2, 0x100000)
        if i in wtiles:
            sadd("m0", W10, L_WO + 8192 * wtiles.index(i))
            if wtiles.index(i): sadd(sWO, sWO, 0x10000)
            else: e("s_nop 0")
            e("buffer_load_dwordx4 v%d, %s, %s offen lds" % (PV_WA, R_WO, sWO))
        ex(0, 5, 11); pv(i, 0, 0); ex(0, 11, 16)
        ex(1, 0, 2); pv(i, 0, 1); ex(1, 2, 5); qk(i + 1, 0)
        ex(1, 5, 11); pv(i, 1, 0); ex(1, 11, 16)
    e("s_nop 1")
    pv(31, 1, 1)
    e("s_setprio 0")

def combine():
    c("combine the two key-parity halves through LDS")
    e("s_waitcnt vmcnt(0)")
    e("s_barrier")
    stamp("attn")
    e("s_cmp_ge_u32 %s, 4" % WV)
    e("s_cbranch_scc1 L_cmb1")
    for kp in range(2):
        if kp: lab("L_cmb1")
        o = A_O[1 - kp]
        if kp == 0: nop(8)
        for k in range(3): e("ds_write_b128 v%d, %s offset:%d" % (PV_CW, vr(o + 4 * k, 4), 1024 * k))
        e("s_waitcnt lgkmcnt(0)")
        e("s_barrier")
        for k in range(3): e("ds_read_b128 %s, v%d offset:%d" % (vr(A_F + 4 * k, 4), PV_CR, 1024 * k))
        if kp:
            for i in range(4): V("mov_b32", A_Q[0] + i, v(A_Q[1] + i))
        e("s_waitcnt lgkmcnt(0)")
        for i in (8, 0, 1, 2, 3, 4, 5, 6, 7): V("add_f32", A_F + i, v(A_F + i), v(A_O[kp] + i))
        if kp == 0: e("s_branch L_cmb_done")
    lab("L_cmb_done")

def attn_check_and_slow():
    t = VT
    c("---- softmax guard: the fast path used shift 0; redo with the true row max if that was unsafe ----")
    V("mov_b32", t + 1, v(A_F + 8))
    V("mul_f32", t, 0, v(A_F))
    for i in range(1, 8): V("fma_f32", t, v(A_F + i), 0, v(t))
    e("v_permlane32_swap_b32 v%d, v%d" % (A_F + 8, t + 1))
    e("v_cmp_nle_f32 vcc, %s, v%d" % (fl(2.0 ** -40), A_F + 8))
    V("mov_b32", t + 1, fl(2.0 ** 100))
    e("v_cmp_nle_f32 s[4:5], v%d, v%d" % (A_F + 8, t + 1))
    e("v_cmp_neq_f32 s[6:7], 0, v%d" % t)
    e("s_or_b64 vcc, vcc, s[4:5]")
    e("s_or_b64 vcc, vcc, s[6:7]")
    if OPT["forceslow"]: e("s_mov_b64 vcc, -1")
    e("s_cmp_lg_u64 vcc, 0")
    e("s_cbranch_scc1 L_slow")
    lab("L_attn_ok")

def slow_path():
    t = VT
    lab("L_slow")
    S_, KF, VA, VB = A_S[0], A_KF[0], A_VA[0], A_VB[0]
    c("slow path pass 1: true row max (K from the workspace)")
    sadd(T0, sHB, WS_K)
    V("mov_b32", t, 0xff800000)
    e("s_mov_b32 %s, 0" % CNT)
    lab("L_slow1")
    e("buffer_load_dwordx4 %s, v%d, %s, %s offen sc1" % (vr(KF, 4), V_L16, R_WS, T0))
    sadd(T0, T0, 1024)
    e("s_waitcnt vmcnt(0)")
    e("v_mfma_f32_32x32x16_bf16 %s, %s, %s, 0" % (vr(S_, 16), vr(KF, 4), vr(A_Q[0], 4)))
    nop(12)
    for k in range(0, 16, 2): V("max3_f32", t, v(t), v(S_ + k), v(S_ + k + 1))
    sadd(CNT, CNT, 1)
    e("s_cmp_lt_u32 %s, 64" % CNT)
    e("s_cbranch_scc1 L_slow1")
    V("mov_b32", t + 1, v(t))
    e("s_nop 1")
    e("v_permlane32_swap_b32 v%d, v%d" % (t, t + 1))
    e("s_nop 1")
    V("max_f32", t, v(t), v(t + 1))
    for k in range(16): V("mul_f32", A_NM + k, "-1.0", v(t))
    c("slow path pass 2")
    for k in range(16): V("mov_b32", A_F + k, 0)
    for k in range(4):
        V("mov_b32", VA + k, 0x3f803f80); V("mov_b32", VB + k, 0x3f803f80)
    V("and_b32", t, 15, v(V_L)); V("lshrrev_b32", t + 1, 5, v(V_L)); V("lshlrev_b32", t, 4, v(t)); V("lshl_add_u32", t, v(t + 1), 8, v(t))
    sadd(T0, sHB, WS_K); sadd(T1, sHB, WS_V)
    e("s_mov_b32 %s, 0" % CNT)
    lab("L_slow2")
    e("buffer_load_dwordx4 %s, v%d, %s, %s offen sc1" % (vr(KF, 4), V_L16, R_WS, T0))
    e("s_mov_b32 exec_lo, 0xffff")
    e("s_mov_b32 exec_hi, 0xffff")
    e("buffer_load_dwordx4 %s, v%d, %s, %s offen sc1" % (vr(VA, 4), t, R_WS, T1))
    e("buffer_load_dwordx4 %s, v%d, %s, %s offen offset:512 sc1" % (vr(VB, 4), t, R_WS, T1))
    e("s_mov_b64 exec, -1")
    sadd(T0, T0, 1024); sadd(T1, T1, 1024)
    e("s_waitcnt vmcnt(0)")
    e("v_mfma_f32_32x32x16_bf16 %s, %s, %s, %s" % (vr(S_, 16), vr(KF, 4), vr(A_Q[0], 4), vr(A_NM, 16)))
    nop(12)
    for k in range(16): e("v_exp_f32 v%d, v%d" % (S_ + k, S_ + k))
    e("s_nop 1")
    e("v_smfmac_f32_32x32x32_bf16 %s, %s, %s, v%d" % (vr(A_F, 16), vr(VA, 4), vr(S_, 8), A_IDX))
    e("v_smfmac_f32_32x32x32_bf16 %s, %s, %s, v%d" % (vr(A_F, 16), vr(VB, 4), vr(S_ + 8, 8), A_IDX))
    sadd(CNT, CNT, 1)
    e("s_cmp_lt_u32 %s, 64" % CNT)
    nop(4)
    e("s_cbranch_scc1 L_slow2")
    nop(12)
    e("s_branch L_attn_ok")

def attn_publish():
    t = VT
    c("normalise and publish O (q-tile 2*(w&3) + (w>>2))")
    V("rcp_f32", t, v(A_F + 8))
    e("s_nop 0")
    for i in range(8): V("mul_f32", A_F + i, v(A_F + i), v(t))
    P = 32
    for i in range(4): V("cvt_pk_bf16_f32", P + i, v(A_F + 2 * i), v(A_F + 2 * i + 1))
    e("s_nop 1")
    e("v_permlane32_swap_b32 v%d, v%d" % (P, P + 2))
    e("v_permlane32_swap_b32 v%d, v%d" % (P + 1, P + 3))
    e("buffer_store_dwordx4 %s, v%d, %s, %s offen sc1" % (vr(P, 4), V_L16, R_WS, sOST))

P_W, P_ACC, P_OF = 96, 32, 48
def tail():
    t = VT
    e("s_cmp_ge_u32 %s, 4" % WV)
    e("s_cbranch_scc1 L_tail_hi")
    c("==== waves 0..3: Wo fragments, poll, O tiles, output projection ====")
    for hh in range(32):
        for tt in range(2):
            e("ds_read_b64_tr_b16 %s, v%d offset:%d" % (vr(P_W + 4 * hh + 2 * tt, 2), PV_WF, L_WO + hh * 2048 + tt * 512))
    signal("c", 20, 7, sF2)
    e("s_barrier")
    stamp("W")
    V("mov_b32", t + 2, L_FL + 24); V("mov_b32", t + 3, 1)
    e("s_cmp_eq_u32 %s, 0" % WV)
    e("s_cbranch_scc0 L_spin2")
    poll("L_poll2", sF2P)
    e("ds_write_b32 v%d, v%d" % (t + 2, t + 3))
    e("s_branch L_seen2")
    lab("L_spin2")
    e("s_mov_b32 %s, 0" % CNT)
    lab("L_spin2l")
    e("ds_read_b32 v%d, v%d" % (t + 3, t + 2))
    sadd(CNT, CNT, 1)
    e("s_waitcnt lgkmcnt(0)")
    e("v_readfirstlane_b32 %s, v%d" % (T0, t + 3))
    e("s_cmp_gt_u32 %s, 0x200000" % CNT)
    e("s_cbranch_scc1 L_seen2")
    e("s_cmp_eq_u32 %s, 0" % T0)
    e("s_cbranch_scc1 L_spin2l")
    lab("L_seen2")
    stamp("poll2")
    sadd("m0", W10, L_O); e("s_nop 0")
    for n in range(16):
        e("buffer_load_dwordx4 v%d, %s, %s offen sc1 lds" % (V_L16, R_WS, sOLD))
        if n < 15:
            sadd("m0", "m0", 4096); sadd(sOLD, sOLD, 0x20000)
    e("s_barrier")
    def mm(st):
        for k in range(4):
            hh = 4 * st + k
            e("v_mfma_f32_32x32x16_bf16 %s, %s, %s, %s" % (vr(P_ACC, 16), vr(P_W + 4 * hh, 4), vr(P_OF + 16 * (st & 1) + 4 * k, 4), "0" if hh == 0 else vr(P_ACC, 16)))
    for st in range(8):
        if st % 2 == 0:
            e("s_waitcnt vmcnt(%d)" % (12 - 2 * st))
            e("s_barrier")
            if st == 0: stamp("O1")
        for k in range(4): e("ds_read_b128 %s, v%d offset:%d" % (vr(P_OF + 16 * (st & 1) + 4 * k, 4), PV_OR, (4 * st + k) * 2048))
        if st > 0:
            e("s_waitcnt lgkmcnt(4)")
            mm(st - 1)
    e("s_waitcnt lgkmcnt(0)")
    mm(7)
    nop(12)
    for i in range(8): V("cvt_pk_bf16_f32", P_OF + i, v(P_ACC + 2 * i), v(P_ACC + 2 * i + 1))
    e("ds_write_b128 v%d, %s" % (PV_OW, vr(P_OF, 4)))
    e("ds_write_b128 v%d, %s offset:16" % (PV_OW, vr(P_OF + 4, 4)))
    c("WG 0 advances the epoch word (every WG has read it: all of them have published)")
    e("s_cmp_eq_u32 s2, 0")
    e("s_cbranch_scc0 L_fin")
    e("s_cmp_eq_u32 %s, 0" % WV)
    e("s_cbranch_scc0 L_fin")
    flag_store("0")
    e("s_branch L_fin")
    lab("L_tail_hi")
    c("==== waves 4..7: causal conv of output tiles 6,7 (two lag halves per channel) ====")
    for p in range(4): V("add_u32", PV_ZR + p, (L_Z2 - L_Z - 4608 - 1152 + p * (ZS2 - ZS)) & 0xffffffff, v(PV_ZR + p))
    def sigw(tag):
        signal(tag, 20, 7, sF2)
        e("s_barrier")
    e("s_bitcmp1_b32 %s, 0" % WV)
    e("s_cbranch_scc1 L_ct_b")
    conv_job(6, 0, 4, False, PV_CA, PV_CB, lambda: sigw("d"), 1)
    e("s_branch L_ct_done")
    lab("L_ct_b")
    conv_job(6, 16, 3, True, PV_CA, PV_CB, lambda: sigw("e"), 1)
    lab("L_ct_done")
    z_writes(PV_ZW2, 0)
    e("s_cmp_eq_u32 %s, 6" % WV)
    e("s_cbranch_scc0 L_nocarry2")
    V("bfe_u32", t + 2, v(V_L), 2, 1); V("mul_u32_u24", t + 2, 8 * ZS2, v(t + 2)); V("bfe_u32", t + 1, v(V_L), 3, 1); V("lshlrev_b32", t + 1, 2, v(t + 1))
    V("and_b32", t + 3, 3, v(V_L)); V("add_u32", t + 1, v(t + 1), v(t + 3)); V("mul_u32_u24", t + 1, ZS2, v(t + 1))
    V("add_u32", t + 2, v(t + 2), v(t + 1)); V("add_u32", t + 2, L_Z2 + 112, v(t + 2))
    e("s_mov_b64 exec, 0xffff")
    e("ds_write_b128 v%d, %s" % (t + 2, vr(PV_CY, 4)))
    e("s_mov_b64 exec, -1")
    lab("L_nocarry2")
    e("s_waitcnt lgkmcnt(0)")
    stamp("cend2")
    e("s_barrier")
    c("y[1536 + 64w' + l] for w' = w-4 and w")
    order = [(g, cl, st) for g in range(2) for cl in range(2) for st in range(2)]
    def rd(n):
        g, cl, st = order[n]
        for p in range(4): e("ds_read_b32 v%d, v%d offset:%d" % (Y_R + 4 * n + p, PV_ZR + p, cl * 8 * ZS2 + st * 4 * ZS2 + g * 1152))
    rd(0); rd(1); rd(2)
    for n in range(8):
        r = Y_R + 4 * n
        e("s_waitcnt lgkmcnt(%d)" % (4 * (min(n + 2, 7) - n)))
        if n + 3 < 8: rd(n + 3)
        V("add_f32", r, v(r), v(r + 1)); V("add_f32", r + 2, v(r + 2), v(r + 3)); V("add_f32", r, v(r), v(r + 2))
        if n % 2: V("add_f32", r, v(r), v(r - 4))
        if n % 4 == 3: V("cvt_pk_bf16_f32", V_Y + n // 4, v(r - 8), v(r))
    S("sub_u32", sYS, sYS2, 0x80000)
    for st in range(4):
        if st == OPT["yat"]:
            e("buffer_store_dword v%d, v%d, %s, %s offen" % (V_Y, PV_YA, R_OUT, sYS))
            e("buffer_store_dword v%d, v%d, %s, %s offen" % (V_Y + 1, PV_YA, R_OUT, sYS2))
        e("s_barrier")
    if OPT["yat"] == 4:
        e("buffer_store_dword v%d, v%d, %s, %s offen" % (V_Y, PV_YA, R_OUT, sYS))
        e("buffer_store_dword v%d, v%d, %s, %s offen" % (V_Y + 1, PV_YA, R_OUT, sYS2))
    lab("L_fin")
    e("s_waitcnt lgkmcnt(0)")
    e("s_barrier")
    stamp("opdone")
    e("ds_read_b128 v[32:35], v%d" % PV_FR)
    e("s_waitcnt lgkmcnt(0)")
    e("buffer_store_dwordx4 v[32:35], v%d, %s, %s offen %s" % (PV_FS, R_OUT, sOUT, OPT["opol"]))

def dump_lds(base, nbytes, wsoff):
    t = VT + 10
    e("s_waitcnt lgkmcnt(0)"); e("s_barrier")
    V("lshlrev_b32", t, 4, v(0))
    sshl(T0, "s2", 18); sadd(T0, T0, WS_DBG + wsoff)
    for o in range(0, nbytes, 8192):
        V("add_u32", t + 1, base + o, v(t))
        e("ds_read_b128 %s, v%d" % (vr(t + 2, 4), t + 1))
        e("s_waitcnt lgkmcnt(0)")
        e("buffer_store_dwordx4 %s, v%d, %s, %s offen" % (vr(t + 2, 4), t, R_WS, T0))
        sadd(T0, T0, 8192)
        e("s_waitcnt vmcnt(0)")
    e("s_barrier")

def write_stamps():
    t = VT
    if OPT["ldst"]:
        e("s_waitcnt vmcnt(0) lgkmcnt(0)")
        sshl(T0, "s2", 3); sadd(T0, T0, WV); sshl(T0, T0, 7); sadd(T0, T0, WS_ST)
        e("s_mov_b64 exec, 1")
        V("mov_b32", t, 0)
        for i in range(10):
            V("mov_b32", t + 1, sr(80 + 2 * i))
            e("buffer_store_dword v%d, v%d, %s, %s offen offset:%d" % (t + 1, t, R_WS, T0, 4 * i))
            e("s_nop 1")
        e("s_mov_b64 exec, -1")
    if OPT["echo"]:
        a, b, m = OPT["echo"].split(",")
        e("s_cmp_eq_u32 %s, %d" % (WV, OPT["echowv"])); e("s_cbranch_scc0 L_end")
        e("s_cmp_eq_u32 s2, %d" % OPT["echowg"]); e("s_cbranch_scc0 L_end")
        e("s_waitcnt vmcnt(0)")
        stamp("end")
        if a == "start": e("s_mov_b32 s80, s100")
        e("s_sub_u32 s82, s81, s80"); e("s_mul_i32 s82, s82, %s" % m); e("s_min_u32 s82, s82, 20000")
        e("s_memrealtime s[84:85]"); e("s_waitcnt lgkmcnt(0)")
        lab("L_echo")
        e("s_memrealtime s[86:87]"); e("s_waitcnt lgkmcnt(0)")
        e("s_sub_u32 s83, s86, s84"); e("s_cmp_lt_u32 s83, s82"); e("s_cbranch_scc1 L_echo")
    if OPT["stamps"]:
        e("s_waitcnt vmcnt(0)")
        stamp("end")
        sshl(T0, "s2", 3); sadd(T0, T0, WV); sshl(T0, T0, 7); sadd(T0, T0, WS_ST)
        e("s_mov_b64 exec, 1")
        V("mov_b32", t, 0)
        for i in range(len(stamp_names)):
            V("mov_b32", t + 1, sr(S_ST + i))
            e("buffer_store_dword v%d, v%d, %s, %s offen offset:%d" % (t + 1, t, R_WS, T0, 4 * i))
            e("s_nop 1")
        V("mov_b32", t + 1, "s100")
        e("buffer_store_dword v%d, v%d, %s, %s offen offset:124" % (t + 1, t, R_WS, T0))
        e("s_memrealtime s[98:99]")
        e("s_waitcnt lgkmcnt(0)")
        V("mov_b32", t + 2, "s98")
        e("buffer_store_dword v%d, v%d, %s, %s offen offset:120" % (t + 2, t, R_WS, T0))
        e("s_mov_b64 exec, -1")
        L.insert(0, "; stamps: " + ",".join(stamp_names))
    if OPT["dbgspan"]:
        e("s_cmp_eq_u32 %s, 0" % WV); e("s_cbranch_scc0 L_end")
        sand(T0, "s2", 63); e("s_cmp_eq_u32 %s, 5" % T0); e("s_cbranch_scc0 L_end")
        e("s_waitcnt vmcnt(0)")
        e("s_memrealtime s[96:97]"); e("s_memtime s[94:95]")
        srd(R_X, S_DBG, 256)
        sshr(T0, "s2", 6); sshl(T0, T0, 4)
        e("s_waitcnt lgkmcnt(0)")
        e("s_mov_b64 exec, 1")
        V("mov_b32", t, 0)
        e("s_sub_u32 s94, s94, s98"); e("s_sub_u32 s96, s96, s100")
        V("mov_b32", t + 2, "s100"); V("mov_b32", t + 3, "s96"); V("mov_b32", t + 4, "s94"); V("mov_b32", t + 5, 0)
        e("buffer_store_dwordx4 %s, v%d, %s, %s offen" % (vr(t + 2, 4), t, R_X, T0))

def main():
    header()
    setup()
    loader_path()
    compute_path()
    lab("L_gemm_done")
    e("s_waitcnt lgkmcnt(0)")
    e("s_barrier")
    stamp("K2")
    if OPT["dump"]: dump_lds(L_KF, 24576, 0)
    conv()
    kv_early()
    conv_epilogue()
    e("s_waitcnt vmcnt(0)")
    e("s_barrier")
    stamp("S")
    kv_late()
    attn_main()
    combine()
    attn_check_and_slow()
    attn_publish()
    tail()
    write_stamps()
    e("s_endpgm")
    slow_path()
    footer(256)
    open(sys.argv[1], "w").write("\n".join(L) + "\n")

main()
```

```python
import sys, struct, math

NAME = "concat_heads__ssm_conv_s4__softmax_full_mha__prompt"
OPT = dict(ldst=0, ypol="", opol="", abl="", echo="", echowg=0, echowv=0, stamps=0, dump=0, forceslow=0, dbgspan=0, flip1=14, mid=16, flip=30, pf=2, apre=45, f0=5, f2=2, tsig=0, b1late=0, rot=6, yat=0, npre=999,
           yt=[15, 20, 25], wt=[17, 18, 19, 21, 22, 23, 24, 26])
for a in sys.argv[2:]:
    k, v = a.split("=")
    OPT[k] = int(v) if v.lstrip("-").isdigit() else v

L = []
SINK = [L]
def e(s): SINK[0].append("    " + s)
def lab(s): SINK[0].append(s + ":")
def c(s): SINK[0].append("    ; " + s)
def f2u(x): return struct.unpack("<I", struct.pack("<f", x))[0]
def fl(x): return "0x%08x" % f2u(x)
def vr(a, n=1): return "v%d" % a if n == 1 else "v[%d:%d]" % (a, a + n - 1)
def sr(a, n=1): return "s%d" % a if n == 1 else "s[%d:%d]" % (a, a + n - 1)
def nop(n):
    while n > 0:
        k = min(n, 16); e("s_nop %d" % (k - 1)); n -= k
def capture(fn, *a):
    old = SINK[0]; out = []; SINK[0] = out; fn(*a); SINK[0] = old; return out

WS_F1 = 0x1000
WS_F2 = 0xa000
WS_F0 = 0x20000
WS_Q, WS_K, WS_V, WS_O, WS_U2 = 0x100000, 0x300000, 0x500000, 0x700000, 0x900000
WS_ST = 0xc00000
WS_DBG = 0x1000000
WS_SIZE = 0x10000000
LDS_TOTAL = 163840
BLK = 16384
L_TB = 98304
L_TA = 0
L_FL = 146240
L_KF = 146304
L_UP = 154624
ZS = 9504
L_Z = 70208
ZS2 = 2448
L_Z2 = 0
L_WO = 0
L_O = 65536
L_SC = 65536
L_OT = 131072
S_U, S_ARE, S_AIM, S_BRE, S_BIM, S_CRE, S_CIM, S_LDT = 8, 10, 12, 14, 16, 18, 20, 22
S_DSK, S_X, S_W, S_WO, S_OUT, S_DBG, S_WS = 24, 26, 28, 30, 32, 34, 36
R_X, R_W, R_WS, R_U, R_OUT, R_WO = "s[40:43]", "s[44:47]", "s[48:51]", "s[52:55]", "s[56:59]", "s[60:63]"
XQ, I5, WV, TAG, LD2, DS2, HH, JJ, C0 = "s64", "s65", "s66", "s67", "s68", "s69", "s70", "s71", "s72"
T0, T1, T2, T3, T4, T5, CNT = "s73", "s74", "s75", "s76", "s77", "s78", "s79"
CQ, CL, W10, GT, GQ = "s38", "s39", "s3", "s6", "s7"
sQKV, sF1, sF1P, sYS, sWO, sOST, sOLD, sOUT, sF2, sF2P, sHB, sQL = ["s%d" % i for i in range(8, 20)]
sYS2 = "s38"
S_ST = 80
stamp_names = []
def stamp(name):
    if OPT["echo"]:
        a, b, m = OPT["echo"].split(",")
        if name in (a, b):
            e("s_waitcnt lgkmcnt(0)")
            e("s_memrealtime s[98:99]")
            e("s_waitcnt lgkmcnt(0)")
            e("s_mov_b32 %s, s98" % ("s80" if name == a else "s81"))
    if OPT["stamps"]:
        if name not in stamp_names: stamp_names.append(name)
        assert len(stamp_names) <= 18
        e("s_waitcnt lgkmcnt(0)")
        e("s_memrealtime s[98:99]" if OPT["stamps"] == 2 else "s_memtime s[98:99]")
        e("s_waitcnt lgkmcnt(0)")
        e("s_mov_b32 %s, s98" % sr(S_ST + stamp_names.index(name)))
def srd(r, base, size):
    r = int(r[2:r.index(":")])
    e("s_mov_b32 %s, %s" % (sr(r), sr(base)))
    e("s_and_b32 %s, %s, 0xffff" % (sr(r + 1), sr(base + 1)))
    e("s_mov_b32 %s, 0x%x" % (sr(r + 2), size))
    e("s_mov_b32 %s, 0x00020000" % sr(r + 3))
def csel(dst, a, b):
    e("s_mov_b32 %s, %d" % (dst, b))
    e("s_cselect_b32 %s, %d, %s" % (dst, a, dst))
def S(op, d, a, b): e("s_%s %s, %s, %s" % (op, d, a, b if isinstance(b, str) else ("0x%x" % b if b > 64 else str(b))))
def sadd(d, a, b): S("add_u32", d, a, b)
def sshl(d, a, b): S("lshl_b32", d, a, b)
def sshr(d, a, b): S("lshr_b32", d, a, b)
def sand(d, a, b): S("and_b32", d, a, b)
def smul(d, a, b): S("mul_i32", d, a, b)
def V(op, d, *a): e("v_%s v%d, %s" % (op, d, ", ".join(("v%d" % x[0] if isinstance(x, tuple) else (x if isinstance(x, str) else ("0x%x" % x if x > 64 else str(x)))) for x in a)))
def v(x): return (x,)
LOG2E = math.log2(math.e)

V_L, V_L16, V_PA = 1, 2, 3
V_PAR = 4
V_Y = 10
VT = 14
(PV_CA, PV_CB, PV_ZW, PV_ZR, _z1, _z2, _z3, PV_KA, PV_V0, PV_V1, PV_YA, PV_WA, PV_CW, PV_CR,
 PV_OR, PV_OW, PV_WF, PV_FR, PV_FS, PV_WS) = range(224, 244)
PV_ZW2 = PV_V1
PV_CY = 250
PV_QS, PV_VS, PV_TW = 222, 223, 219
PV_GA, PV_GB, PV_GW, PV_GD, PV_US = 244, 245, 246, 247, 248

def header():
    L.append("; fused S4 long-conv (part A) + multi-head attention (part B): one launch, 256 WGs x 8 waves")
    L.append("; @launch grid=(256,1,1) block=(512,1,1) lds=%d" % LDS_TOTAL)
    L.append('.amdgcn_target "amdgcn-amd-amdhsa--gfx950"')
    L.append(".text")
    L.append(".globl %s_kernel" % NAME)
    L.append(".p2align 8")
    L.append(".type %s_kernel,@function" % NAME)
    L.append("%s_kernel:" % NAME)
def footer(nv):
    lab("L_end")
    e("s_endpgm")
    L.append('.section .rodata,"a"')
    L.append(".p2align 6")
    L.append(".amdhsa_kernel %s_kernel" % NAME)
    L.append("  .amdhsa_next_free_vgpr %d" % nv)
    L.append("  .amdhsa_next_free_sgpr 102")
    L.append("  .amdhsa_accum_offset %d" % nv)
    L.append("  .amdhsa_group_segment_fixed_size 0")
    L.append("  .amdhsa_kernarg_size 120")
    L.append("  .amdhsa_user_sgpr_count 2")
    L.append("  .amdhsa_user_sgpr_kernarg_segment_ptr 1")
    L.append("  .amdhsa_system_sgpr_workgroup_id_x 1")
    L.append(".end_amdhsa_kernel")

def setup():
    c("---- setup ----")
    e("s_cmp_ge_u32 s2, 256")
    e("s_cbranch_scc1 L_end")
    e("s_load_dwordx8 s[24:31], s[0:1], 64")
    e("s_load_dwordx16 s[8:23], s[0:1], 0")
    e("s_load_dwordx4 s[32:35], s[0:1], 96")
    e("s_load_dwordx2 s[36:37], s[0:1], 112")
    if OPT["stamps"] or OPT["dbgspan"] or OPT["echo"]: e("s_memrealtime s[100:101]")
    if OPT["dbgspan"]: e("s_memtime s[98:99]")
    if OPT["pf"] == 2:
        c("pull this WG's 1/32 share of the code into L2 right away (thread t<8: line 8*(wg>>3)+t)")
        e("s_getpc_b64 s[4:5]")
        lab("L_pc")
        e("s_and_b32 s3, s2, 0xf8")
        V("add_u32", VT, "s3", v(0)); V("lshlrev_b32", VT, 7, v(VT))
        e("v_min_u32 v%d, L_end-L_pc-4, v%d" % (VT, VT))
        e("v_cmp_gt_u32 vcc, 8, v0")
        e("s_and_saveexec_b64 s[6:7], vcc")
        e("s_cbranch_execz L_nopf")
        e("global_load_dword v47, v%d, s[4:5]" % VT)
        lab("L_nopf")
        e("s_mov_b64 exec, -1")
    V("and_b32", V_L, 63, v(0))
    V("lshrrev_b32", VT, 6, v(0))
    V("lshlrev_b32", V_L16, 4, v(V_L))
    V("mov_b32", PV_FS, 0)
    e("v_readfirstlane_b32 %s, v%d" % (WV, VT))
    sand(XQ, "s2", 7)
    sshr(I5, "s2", 3)
    sand(GT, XQ, 3); sshl(GT, GT, 3); sshr(JJ, I5, 2); sadd(GT, GT, JJ)
    sand(GQ, XQ, 4); sand(T0, I5, 3); sadd(GQ, GQ, T0)
    sshl(HH, XQ, 2); sadd(HH, HH, T0)
    sshl(C0, XQ, 5); sadd(C0, C0, I5); sshl(C0, C0, 1)
    sshl(W10, WV, 10)
    e("s_cmp_ge_u32 %s, 4" % WV)
    e("s_cbranch_scc0 L_compute")

def scalar_loads():
    sshl(T3, C0, 1)
    e("s_load_dword %s, %s, 0" % (TAG, sr(S_WS, 2)))
    e("s_load_dword %s, %s, %s" % (LD2, sr(S_LDT, 2), T3))
    e("s_load_dword %s, %s, %s" % (DS2, sr(S_DSK, 2), T3))

def lane_terms():
    t = VT
    hf, b7, p4, r4, g1, l15, l8 = t, t + 1, t + 2, t + 3, t + 4, t + 5, t + 6
    V("lshrrev_b32", hf, 5, v(V_L)); V("and_b32", b7, 7, v(V_L)); V("bfe_u32", p4, v(V_L), 3, 2)
    V("bfe_u32", r4, v(V_L), 2, 2); V("bfe_u32", g1, v(V_L), 4, 1); V("and_b32", l15, 15, v(V_L)); V("lshrrev_b32", l8, 3, v(V_L))
    return hf, b7, p4, r4, g1, l15, l8

def precompute_conv():
    t = VT
    c("---- conv addresses ----")
    e("s_bfe_u32 %s, %s, 0x10001" % (CL, WV))
    hf, b7, p4, r4, g1, l15, l8 = lane_terms()
    x, y, z = t + 8, t + 9, t + 10
    e("s_cmp_eq_u32 %s, 1" % CL)
    csel(T0, L_KF + 4160 + 96, L_KF + 96); csel(T1, L_UP + 4608, L_UP); csel(T2, L_Z + 4 * ZS + 144, L_Z + 144)
    V("and_b32", x, 3, v(V_L)); V("lshl_add_u32", x, v(g1), 2, v(x)); V("lshl_add_u32", y, v(hf), 3, v(r4))
    V("sub_u32", x, v(x), v(y)); V("lshlrev_b32", x, 3, v(x)); V("add_u32", PV_CA, T0, v(x))
    V("mul_u32_u24", x, 1152, v(p4)); V("add_u32", z, v(b7), v(hf)); V("lshl_add_u32", x, v(z), 4, v(x))
    V("add_u32", PV_CB, T1, v(x))
    V("mul_u32_u24", x, ZS, v(p4)); V("mul_u32_u24", z, 144, v(b7)); V("lshl_add_u32", z, v(hf), 4, v(z)); V("add3_u32", PV_ZW, v(x), v(z), T2)
    sshl(sF1, GQ, 5); sadd(sF1, sF1, GT); sshl(sF1, sF1, 7); sadd(sF1, sF1, WS_F1)
    sshl(T0, XQ, 12); sadd(sF1P, T0, WS_F1); sadd(sF2P, T0, WS_F2)
    sshl(sHB, HH, 16)

def precompute():
    t = VT
    c("SPLIT")
    e("s_cmp_ge_u32 %s, 4" % WV)
    e("s_cselect_b32 %s, 1024, 0" % T0)
    hf, b7, p4, r4, g1, l15, l8 = lane_terms()
    x, y, z = t + 8, t + 9, t + 10
    V("add_u32", PV_KA, T0, v(V_L16))
    V("lshlrev_b32", x, 4, v(l15)); V("lshl_add_u32", x, v(hf), 8, v(x)); sadd(T0, T0, 8192); V("add_u32", PV_V0, T0, v(x))
    V("lshlrev_b32", PV_YA, 11, v(V_L))
    V("lshlrev_b32", x, 2, v(g1)); V("xor_b32", x, v(x), v(b7)); V("lshlrev_b32", x, 4, v(x)); V("lshl_add_u32", PV_WA, v(l8), 10, v(x))
    c("SPLIT")
    sshl(T0, WV, 7); sadd(T0, T0, 32)
    for p in range(4):
        V("add_u32", x, T0, v(V_L))
        if p: V("subrev_u32", x, p, v(x))
        V("lshrrev_b32", z, 5, v(x)); V("lshlrev_b32", x, 2, v(x)); V("lshl_add_u32", x, v(z), 4, v(x))
        V("add_u32", PV_ZR + p, L_Z + p * ZS, v(x))
    c("SPLIT")
    sshl(T0, WV, 18); sshl(T1, C0, 1); sadd(sYS, T0, T1)
    sshr(T0, T0, 1); sadd(T0, T0, T1); sadd(sYS2, T0, 0x200000)
    sand(T0, I5, 7); sshl(T0, T0, 7); sshl(T1, WV, 13); sadd(sWO, T0, T1)
    sshl(T1, JJ, 13); sadd(T1, T1, sHB); sand(T2, WV, 3); sshl(T2, T2, 11); sadd(T1, T1, T2)
    sadd(sQL, T1, WS_Q)

def precompute_tail():
    t = VT + 4
    hf, b7, p4, r4, g1, l8 = t, t + 1, t + 2, t + 3, t + 4, t + 5
    V("lshrrev_b32", hf, 5, v(V_L)); V("and_b32", b7, 7, v(V_L)); V("bfe_u32", p4, v(V_L), 3, 2)
    V("bfe_u32", r4, v(V_L), 2, 2); V("bfe_u32", g1, v(V_L), 4, 1); V("lshrrev_b32", l8, 3, v(V_L))
    x, y, z = t + 6, t + 7, t + 8
    S("xor_b32", T0, WV, 4); smul(T0, T0, 3072); sadd(T0, T0, L_SC); smul(T1, WV, 3072); sadd(T1, T1, L_SC)
    V("add_u32", PV_CW, T0, v(V_L16)); V("add_u32", PV_CR, T1, v(V_L16))
    sand(T0, WV, 1); smul(T0, T0, 4 * ZS2); smul(T1, CL, 8 * ZS2); sadd(T0, T0, T1); sadd(T0, T0, L_Z2 + 144)
    V("mul_u32_u24", x, ZS2, v(p4)); V("mul_u32_u24", z, 144, v(b7)); V("lshl_add_u32", z, v(hf), 4, v(z)); V("add3_u32", PV_ZW2, v(x), v(z), T0)
    V("lshl_add_u32", y, v(hf), 3, v(r4)); V("lshlrev_b32", PV_WF, 7, v(y))
    V("and_b32", x, 1, v(V_L)); V("lshl_or_b32", x, v(x), 1, v(g1))
    sand(T0, WV, 2); sshl(T0, T0, 1); V("or_b32", x, T0, v(x))
    V("bfe_u32", z, v(V_L), 3, 1); V("lshlrev_b32", z, 2, v(z)); V("xor_b32", x, v(x), v(z))
    V("lshl_add_u32", PV_WF, v(x), 4, v(PV_WF)); V("bfe_u32", z, v(V_L), 1, 1); V("lshl_add_u32", PV_WF, v(z), 3, v(PV_WF))
    sand(T1, WV, 1); sshl(T2, T1, 10); sadd(T2, T2, L_O); V("add_u32", PV_OR, T2, v(V_L16))
    smul(T1, T1, 4608); sshl(T0, T0, 4); sadd(T0, T0, T1); sadd(T0, T0, L_OT)
    V("and_b32", x, 31, v(V_L)); V("mul_u32_u24", x, 144, v(x)); V("lshl_add_u32", x, v(hf), 5, v(x)); V("add_u32", PV_OW, T0, v(x))
    smul(T0, WV, 1152); sadd(T0, T0, L_OT)
    V("lshlrev_b32", x, 4, v(b7)); V("mul_u32_u24", z, 144, v(l8)); V("add3_u32", PV_FR, v(z), v(x), T0); V("lshl_add_u32", PV_FS, v(l8), 11, v(x))
    sshl(sF2, JJ, 5); sadd(sF2, sF2, HH); sshl(sF2, sF2, 7); sadd(sF2, sF2, WS_F2)
    S("sub_u32", T1, sQL, WS_Q); sshr(T2, WV, 2); sshl(T2, T2, 10); sadd(T1, T1, T2); sadd(sOST, T1, WS_O)
    sshr(T1, WV, 1); sshl(T1, T1, 6); sshl(T2, XQ, 3); sadd(T1, T1, T2); sshr(T3, I5, 3); sshl(T2, T3, 1); sadd(T1, T1, T2)
    sand(T2, WV, 1); sadd(T1, T1, T2); sshl(T1, T1, 10); sadd(sOLD, T1, WS_O)
    sand(T0, I5, 7); sshl(T0, T0, 7)
    sshl(T1, XQ, 2); sadd(T1, T1, T3); sshl(T1, T1, 3); sadd(T1, T1, WV); sshl(T1, T1, 14); sadd(T1, T1, T0); sadd(sOUT, T1, 1024)

G_VX0, G_VX1, G_VWQ, G_VWK, G_VWV, G_PL = 32, 33, 34, 35, 36, 39
G_UA, G_US = 30, 31
G_UL, U2R = 196, 80
G_XA, G_WA, G_WB = 32, 40, 43
G_ACC = [48, 64, 80]
G_XF, G_W0F, G_W1F, G_VF = 96, 112, 128, 144
KB = 48
KR = 192

def loader_addr():
    t = VT
    c("loader DMA voffsets (wave v=w-4 covers rows 16v..16v+15 of each chunk)")
    V("lshrrev_b32", t, 3, v(V_L)); V("and_b32", t + 1, 7, v(V_L)); V("bfe_u32", t + 2, v(V_L), 4, 1)
    sand(T0, WV, 3); sshl(T4, T0, 11); sshl(T0, T0, 4)
    V("add_u32", t + 3, T0, v(t))
    V("bfe_u32", t + 4, v(t + 3), 1, 3); V("xor_b32", t + 4, v(t + 4), v(t + 1)); V("lshlrev_b32", t + 4, 4, v(t + 4))
    sshl(T1, GT, 16)
    V("lshl_add_u32", G_VX0, v(t + 3), 10, v(t + 4)); V("add_u32", G_VX0, T1, v(G_VX0)); V("xor_b32", G_VX1, 0x2040, v(G_VX0))
    V("mul_u32_u24", t + 5, 3072, v(t + 3)); sshl(T1, GQ, 7); V("add_u32", t + 5, T1, v(t + 5))
    V("lshlrev_b32", t + 6, 1, v(t + 2)); V("xor_b32", t + 6, v(t + 6), v(t + 1)); V("lshl_add_u32", G_VWQ, v(t + 6), 4, v(t + 5))
    V("xor_b32", t + 6, 4, v(t + 6)); V("lshl_add_u32", G_VWK, v(t + 6), 4, v(t + 5)); V("add_u32", G_VWK, 1024, v(G_VWK))
    V("lshlrev_b32", t + 6, 2, v(t + 2)); V("xor_b32", t + 6, v(t + 6), v(t + 1)); V("lshl_add_u32", G_VWV, v(t + 6), 4, v(t + 5)); V("add_u32", G_VWV, 2048, v(G_VWV))
    r = OPT["rot"]
    if r == 1: sshl(T5, GQ, 1); sadd(T5, T5, GT)
    else:
        sadd(T5, GQ, GT)
        if r == 3: sshl(T5, T5, 2)
        if r == 5: sand(T5, T5, 1)
        if r == 6: sshl(T5, T5, 1)

I0, I1, I2, I3 = "s20", "s21", "s22", "s23"
def issue_chunk(ci):
    base = (ci % 3) * 32768
    sadd(I0, T5, ci); sand(I0, I0, 7)
    sadd("m0", T4, base); sshl(I1, I0, 7)
    e("buffer_load_dwordx4 v%d, %s, %s offen lds" % (G_VX0, R_X, I1))
    sadd("m0", T4, base + 1024); smul(I2, I0, 196608)
    e("buffer_load_dwordx4 v%d, %s, %s offen lds" % (G_VX1, R_X, I1))
    for g, va in enumerate((G_VWQ, G_VWK, G_VWV)):
        for h in range(2):
            sadd("m0", T4, base + (g + 1) * 8192 + h * 1024)
            if g == 0 and h == 0: sadd(I3, I2, 24576)
            else: e("s_nop 0")
            e("buffer_load_dwordx4 v%d, %s, %s offen lds" % (va, R_W, I3 if h else I2))

def pi_tok(dst, src, t):
    V("and_b32", dst, 0x13, v(src)); V("bfe_u32", t, v(src), 2, 1); V("lshl_or_b32", dst, v(t), 3, v(dst))
    V("bfe_u32", t, v(src), 3, 1); V("lshl_or_b32", dst, v(t), 2, v(dst))

def gemm_read_addr():
    t = VT
    c("GEMM LDS fragment read addresses, publish addresses")
    pi_tok(t, V_L, t + 1)
    V("lshrrev_b32", t + 1, 5, v(V_L))
    V("lshlrev_b32", PV_QS, 4, v(t)); V("lshl_add_u32", PV_QS, v(t + 1), 9, v(PV_QS))
    sand(T0, WV, 1); sshl(T1, T0, 5); V("add_u32", t, T1, v(t))
    V("bfe_u32", t + 2, v(t), 1, 3); V("xor_b32", t + 2, v(t + 2), v(t + 1)); V("lshlrev_b32", t + 2, 4, v(t + 2))
    V("lshl_add_u32", G_XA, v(t), 7, v(t + 2))
    for s in range(1, 4): V("xor_b32", G_XA + s, 32 * s, v(G_XA))
    V("bfe_u32", t + 2, v(V_L), 2, 2); V("lshl_add_u32", t + 3, v(t + 1), 3, v(t + 2)); V("lshlrev_b32", t + 3, 7, v(t + 3))
    V("bfe_u32", t + 4, v(V_L), 4, 1); V("bfe_u32", t + 5, v(V_L), 3, 1); V("and_b32", t + 6, 1, v(V_L)); V("bfe_u32", t + 7, v(V_L), 1, 1)
    sand(T2, WV, 2); sshl(T1, T2, 1)
    V("or_b32", t + 8, T1, v(t + 6)); V("lshl_or_b32", t + 9, v(t + 4), 1, v(t + 5)); V("lshlrev_b32", t + 9, 1, v(t + 9))
    V("xor_b32", t + 8, v(t + 8), v(t + 9)); V("lshl_add_u32", t + 8, v(t + 8), 4, v(t + 3)); V("lshl_add_u32", t + 8, v(t + 7), 3, v(t + 8))
    V("lshl_add_u32", G_WA, v(t + 4), 13, v(t + 8)); V("add_u32", G_WA, 8192, v(G_WA)); V("xor_b32", G_WA + 1, 32, v(G_WA))
    V("lshl_or_b32", t + 8, v(t + 4), 1, v(t + 7)); V("or_b32", t + 8, T1, v(t + 8)); V("lshlrev_b32", t + 9, 2, v(t + 5))
    V("xor_b32", t + 8, v(t + 8), v(t + 9)); V("lshl_add_u32", t + 8, v(t + 8), 4, v(t + 3)); V("lshl_add_u32", t + 8, v(t + 6), 3, v(t + 8))
    V("add_u32", G_WA + 2, 24576, v(t + 8))
    for s in range(4): V("add_u32", G_XA + 4 + s, 0x10000, v(G_XA + s))
    for s in range(3): V("add_u32", G_WB + s, 0x10000, v(G_WA + s))
    V("and_b32", t + 2, 15, v(V_L)); V("lshlrev_b32", t + 2, 4, v(t + 2)); V("lshl_add_u32", t + 2, v(t + 1), 8, v(t + 2)); V("lshl_add_u32", PV_VS, v(t + 4), 16, v(t + 2))
    sshl(T1, GQ, 2); sadd(T1, T1, T2); sshl(T1, T1, 6); sshl(T3, GT, 1); sadd(T1, T1, T3); sadd(T1, T1, T0); sshl(sQKV, T1, 10)
    sshl(T0, T0, 8)
    e("s_bitcmp1_b32 %s, 1" % WV)
    csel(T1, L_TA + 14256, L_TA); csel(T2, L_TB + 16896, L_TB)
    sadd(T1, T1, T0); sadd(T2, T2, T0)
    V("lshl_add_u32", PV_TW, v(V_L), 2, T1); V("lshl_add_u32", 46, v(V_L), 2, T2)

G_UP = 29
def u_coop_loads():
    t = VT
    sshl(T1, I5, 2); sadd(T1, T1, WV); sshl(T1, T1, 2)
    V("bfe_u32", t, v(V_L), 3, 2); V("add_u32", t, T1, v(t)); V("and_b32", t + 1, 7, v(V_L))
    V("lshlrev_b32", t + 1, 4, v(t + 1)); V("lshl_add_u32", G_UA, v(t), 12, v(t + 1))
    sshl(T0, XQ, 7)
    e("s_mov_b32 exec_hi, 0")
    for k in range(4):
        e("buffer_load_dwordx4 %s, v%d, %s, %s offen offset:%d" % (vr(G_UL + 4 * k, 4), G_UA, R_U, T0, 1024 * k))
    e("s_mov_b32 exec_hi, -1")
    V("and_b32", t, 3, v(V_L)); V("bfe_u32", t + 1, v(V_L), 2, 3)
    V("lshl_add_u32", G_UP, v(t), 3, v(t + 1)); V("lshlrev_b32", G_UP, 2, v(G_UP))
    V("add_u32", t, T1, v(t)); V("lshlrev_b32", t, 4, v(t)); V("lshl_add_u32", G_US, v(t + 1), 15, v(t))

def u_coop_perm():
    D = 240
    e("s_waitcnt vmcnt(0)")
    for i in range(4):
        for k in range(4): e("ds_bpermute_b32 v%d, v%d, v%d" % (D + 4 * i + k, G_UP, G_UL + 4 * k + i))
def u_coop_stores():
    D = 240
    sshl(I0, XQ, 18); sadd(I0, I0, WS_U2)
    e("s_mov_b32 exec_hi, 0")
    for i in range(4):
        e("buffer_store_dwordx4 %s, v%d, %s, %s offen sc1" % (vr(D + 4 * i, 4), G_US, R_WS, I0))
        if i < 3: sadd(I0, I0, 8192)
    e("s_mov_b32 exec_hi, -1")

def flag_store(soff, t=VT):
    V("mov_b32", t, 0); V("mov_b32", t + 1, TAG)
    e("s_mov_b64 exec, 1")
    e("buffer_store_dword v%d, v%d, %s, %s offen sc1" % (t + 1, t, R_WS, soff))
    e("s_mov_b64 exec, -1")

def poll(label, soff, first_issued=None, t=VT, nwait=0):
    V("lshlrev_b32", t, 7, v(V_L))
    e("s_mov_b32 %s, 0" % CNT)
    e("s_mov_b32 exec_hi, 0")
    r = t + 1
    if first_issued is not None:
        r = first_issued
        e("s_waitcnt vmcnt(%d)" % nwait)
        e("s_branch %s_chk" % label)
    lab(label)
    e("buffer_load_dword v%d, v%d, %s, %s offen sc1" % (r, t, R_WS, soff))
    sadd(CNT, CNT, 1)
    e("s_waitcnt vmcnt(0)")
    lab(label + "_chk")
    e("v_cmp_ne_u32 vcc, %s, v%d" % (TAG, r))
    e("s_cmp_gt_u32 %s, 0x4000" % CNT)
    e("s_cbranch_scc1 %s_done" % label)
    e("s_cmp_lg_u64 vcc, 0")
    e("s_cbranch_scc1 %s" % label)
    lab(label + "_done")
    e("s_mov_b32 exec_hi, -1")

def kgen_addr():
    t = VT
    c("SPLIT")
    V("bfe_u32", t, v(V_L), 4, 1); V("bfe_u32", t + 1, v(V_L), 2, 1); V("lshl_or_b32", t, v(t), 1, v(t + 1))
    V("bfe_u32", t + 1, v(V_L), 3, 1); V("and_b32", t + 2, 3, v(V_L)); V("lshl_or_b32", t + 1, v(t + 1), 2, v(t + 2))
    e("v_cmp_eq_u32 s[4:5], 0, v%d" % t)
    e("v_cmp_eq_u32 vcc, 1, v%d" % t)
    e("s_bitcmp1_b32 %s, 0" % WV)
    csel(T0, 0x11100000, 0x76543210); csel(T1, 0x11100000, 0x43222100); csel(T2, 0x11100000, 0x22111000); csel(T3, 0x19171513, 0x100d0800)
    V("mov_b32", t + 2, T2); V("mov_b32", t + 3, T1); V("cndmask_b32", t + 2, v(t + 2), v(t + 3), "vcc")
    V("mov_b32", t + 3, T0); V("cndmask_b32", t + 2, v(t + 2), v(t + 3), "s[4:5]")
    V("lshlrev_b32", t + 1, 2, v(t + 1)); V("bfe_u32", t + 2, v(t + 2), v(t + 1), 4)
    V("lshlrev_b32", t, 3, v(t)); V("bfe_u32", t, T3, v(t), 8); V("add_u32", t, v(t), v(t + 2))
    V("lshrrev_b32", t + 1, 5, v(V_L)); V("and_b32", t + 2, 31, v(V_L))
    e("s_cselect_b32 %s, 2048, 0" % T3)
    e("s_cselect_b32 %s, 0, -1" % CNT)
    e("s_bitcmp1_b32 %s, 1" % WV)
    csel(T0, L_TA + 14256, L_TA); csel(T1, L_TB + 16896, L_TB); csel(T2, L_KF + 4160 + 64, L_KF + 64)
    sadd(T2, T2, T3)
    V("mul_u32_u24", t, 528, v(t)); V("lshl_add_u32", t + 3, v(t + 1), 4, T0); V("add_u32", PV_GA, v(t), v(t + 3))
    V("mul_u32_u24", t, 528, v(t + 2)); V("lshl_add_u32", t + 3, v(t + 1), 4, T1); V("add_u32", PV_GB, v(t), v(t + 3))
    V("lshl_add_u32", t, v(t + 1), 9, T2); V("lshl_add_u32", PV_GW, v(t + 2), 4, v(t))
    e("s_waitcnt lgkmcnt(0)")
    sadd(TAG, TAG, 1)
    e("s_bitcmp1_b32 %s, 1" % WV)
    e("s_cselect_b32 %s, 0, 16" % T0)
    sshl(T0, DS2, T0); sand(T0, T0, 0xffff0000); sand(T0, T0, CNT)
    e("v_cmp_eq_u32 vcc, 0, v%d" % V_L)
    V("mov_b32", PV_GD, T0)
    sand(T1, WV, 3); sshl(T1, T1, 8); sadd(T1, T1, L_UP + 128)
    V("cndmask_b32", PV_GD, 0, v(PV_GD), "vcc")
    V("lshl_add_u32", PV_US, v(V_L), 1, T1)

def pads():
    t = VT
    c("SPLIT")
    for i in range(4): V("mov_b32", t + 4 + i, 0)
    V("lshrrev_b32", t, 3, v(V_L)); V("mul_u32_u24", t, 1152, v(t)); V("and_b32", t + 1, 7, v(V_L)); V("lshl_add_u32", t, v(t + 1), 4, v(t)); V("add_u32", t, L_UP, v(t))
    V("bfe_u32", t + 1, v(V_L), 2, 1); V("mul_u32_u24", t + 1, 4160, v(t + 1)); V("and_b32", t + 2, 3, v(V_L)); V("lshl_add_u32", t + 1, v(t + 2), 4, v(t + 1)); V("add_u32", t + 1, L_KF, v(t + 1))
    V("lshlrev_b32", t + 2, 4, v(t + 2)); V("add_u32", t + 2, L_FL, v(t + 2))
    for k in range(3): e("ds_write_b128 v%d, %s" % (t + k, vr(t + 4, 4)))

def loader_path():
    c("======== loader waves ========")
    loader_addr()
    e("s_waitcnt lgkmcnt(0)")
    stamp("karg")
    srd(R_X, S_X, 2048 * 1024); srd(R_W, S_W, 512 * 3072)
    scalar_loads()
    issue_chunk(0)
    if OPT["echo"]: stamp("i0")
    srd(R_WS, S_WS, WS_SIZE); srd(R_OUT, S_OUT, 2048 * 2048); srd(R_WO, S_WO, 512 * 1024)
    late = capture(lambda: (precompute_conv(), precompute(), kgen_addr(), pads()))
    def upto(n):
        while n < len(late) and "SPLIT" not in late[n]: n += 1
        SINK[0].extend(late[:n]); del late[:n]
    upto(OPT["npre"])
    if OPT["echo"]: stamp("pre")
    issue_chunk(1)
    waits = [8, 8, 8, 8, 8, 8, 9, 1]
    for ci in range(8):
        c("loader chunk %d" % ci)
        e("s_waitcnt vmcnt(%d)" % waits[ci])
        if OPT["ldst"] and ci in (1, 2, 3, 4, 5): e("s_memtime s[%d:%d]" % (80 + 4 * (ci - 1), 81 + 4 * (ci - 1)))
        e("s_barrier")
        if OPT["ldst"] and ci in (1, 2, 3, 4, 5): e("s_memtime s[%d:%d]" % (82 + 4 * (ci - 1), 83 + 4 * (ci - 1)))
        if ci in (0, 7): stamp("ch%d" % ci)
        if ci + 2 < 8: issue_chunk(ci + 2)
        if ci == 5:
            sshl(T5, XQ, 12); sadd(T5, T5, WS_F0)
            V("lshlrev_b32", 42, 7, v(V_L))
            e("s_mov_b32 exec_hi, 0")
            e("buffer_load_dword v%d, v42, %s, %s offen sc1" % (G_PL, R_WS, T5))
            e("s_mov_b32 exec_hi, -1")
            upto(len(late) // 2)
        if ci == 6: upto(9999)
    poll("L_poll0", T5, first_issued=G_PL, nwait=0)
    c("u of this WG's channel pair (transposed by the group)")
    sshl(T0, XQ, 5); sadd(T0, T0, I5); sshl(T0, T0, 13); sadd(T0, T0, T4); sadd(T0, T0, WS_U2)
    e("buffer_load_dwordx4 %s, v%d, %s, %s offen sc1" % (vr(U2R, 4), V_L16, R_WS, T0))
    e("buffer_load_dwordx4 %s, v%d, %s, %s offen offset:1024 sc1" % (vr(U2R + 4, 4), V_L16, R_WS, T0))
    e("s_barrier")
    stamp("K1")
    c("---- S4 kernel K = A-table x B-table (rows duplicated to realise bf16(l)) ----")
    FA, FB, AC = 96, 128, 160
    def rd(s):
        e("ds_read_b128 %s, v%d offset:%d" % (vr(FA + 4 * (s % 8), 4), PV_GA, 32 * s))
        e("ds_read_b128 %s, v%d offset:%d" % (vr(FB + 4 * (s % 8), 4), PV_GB, 32 * s))
    for s in range(7): rd(s)
    e("v_and_b32 v%d, 1, v%d" % (VT, V_L))
    e("v_cmp_eq_u32 vcc, 0, v%d" % VT)
    uw = []
    for h in range(2):
        for p in range(4):
            uw.append("    ds_write_b16 v%d, v%d offset:%d" % (PV_US, U2R + 4 * h + p, 1152 * p + 128 * h))
            uw.append("    ds_write_b16_d16_hi v%d, v%d offset:%d" % (PV_US, U2R + 4 * h + p, 4608 + 1152 * p + 128 * h))
    nw = 0
    for s in range(16):
        e("s_waitcnt lgkmcnt(%d)" % (2 * (min(s + 6, 15) - s) + nw))
        e("v_mfma_f32_32x32x16_bf16 %s, %s, %s, %s" % (vr(AC, 16), vr(FA + 4 * (s % 8), 4), vr(FB + 4 * (s % 8), 4), "0" if s == 0 else vr(AC, 16)))
        if s + 7 < 16: rd(s + 7)
        if s == 10: e("s_waitcnt vmcnt(0)")
        if 10 <= s < 15:
            SINK[0].extend(uw[nw:nw + 3]); nw += 3
    SINK[0].extend(uw[15:])
    nop(11)
    V("add_f32", AC, v(AC), v(PV_GD))
    e("s_bitcmp1_b32 %s, 0" % WV)
    e("s_cbranch_scc0 L_kg_nofix")
    V("cndmask_b32", AC + 4, v(AC + 5), v(AC + 3), "vcc"); V("cndmask_b32", AC + 12, v(AC + 13), v(AC + 11), "vcc")
    lab("L_kg_nofix")
    for i in range(8): V("cvt_pk_bf16_f32", FA + i, v(AC + 2 * i), v(AC + 2 * i + 1))
    e("ds_write_b128 v%d, %s" % (PV_GW, vr(FA, 4)))
    e("ds_write_b128 v%d, %s offset:1024" % (PV_GW, vr(FA + 4, 4)))
    e("s_branch L_gemm_done")

def cmul_multi(lst):
    for d, a, b in lst:
        e("v_pk_mul_f32 %s, %s, %s op_sel:[0,0] op_sel_hi:[1,0]" % (vr(d, 2), vr(a, 2), vr(b, 2)))
    for d, a, b in lst:
        e("v_pk_fma_f32 %s, %s, %s, %s op_sel:[1,1,0] op_sel_hi:[0,1,1] neg_lo:[1,0,0]" % (vr(d, 2), vr(a, 2), vr(b, 2), vr(d, 2)))
def cexp_multi(lst, va, vb):
    for d, Lf, t, cj in lst:
        V("mul_f32", t, fl(Lf), v(va)); V("mul_f32", t + 1, fl(-Lf if cj else Lf), v(vb)); V("fract_f32", t + 1, v(t + 1))
    for d, Lf, t, cj in lst:
        V("exp_f32", t, v(t)); V("cos_f32", d, v(t + 1)); V("sin_f32", d + 1, v(t + 1))
    e("s_nop 0")
    for d, Lf, t, cj in lst:
        e("v_pk_mul_f32 %s, %s, %s op_sel:[0,0] op_sel_hi:[1,0]" % (vr(d, 2), vr(d, 2), vr(t, 2)))

KVA, KVB, KVD = 220, 221, 25
def kgen_b():
    c("---- S4 mode tables: B = exp(z*8j) -> LDS ----")
    va, vb, vdt, ta = KVA, KVB, KVD, VT + 4
    e("s_bitcmp1_b32 %s, 1" % WV)
    e("s_cselect_b32 %s, 0, 16" % T0)
    sshl(T0, LD2, T0); sand(T0, T0, 0xffff0000)
    V("mov_b32", vdt, fl(LOG2E)); V("mul_f32", vdt, T0, v(vdt)); V("exp_f32", vdt, v(vdt))
    for i in range(2): V("lshlrev_b32", V_PAR + i, 16, v(V_PAR + i))
    V("cvt_pk_bf16_f32", vdt, v(vdt), v(vdt)); V("and_b32", vdt, 0xffff0000, v(vdt))
    V("mul_f32", va, v(vdt), v(V_PAR)); V("mul_f32", vb, v(vdt), v(V_PAR + 1))
    V("mul_f32", va, fl(LOG2E), v(va)); V("mul_f32", vb, fl(1.0 / (2 * math.pi)), v(vb))
    P = lambda j: KB + 2 * j
    G = lambda k: KB + 16 + 2 * k
    X = KB + 24
    cv = [KB + 40 + i for i in range(8)]
    n = [0]
    def putb(row, pr):
        r = cv[n[0] % 8]; n[0] += 1
        V("cvt_pk_bf16_f32", r, v(pr), v(pr + 1))
        e("ds_write_b32 v46, v%d offset:%d" % (r, row * 528))
    cexp_multi([(P(1), 8.0, ta, 0), (G(1), 64.0, ta + 2, 0)], va, vb)
    V("mov_b32", cv[7], 0x3f80); e("ds_write_b32 v46, v%d" % cv[7])
    cmul_multi([(P(2), P(1), P(1)), (G(2), G(1), G(1))])
    putb(1, P(1)); putb(8, G(1))
    cmul_multi([(P(3), P(2), P(1)), (P(4), P(2), P(2)), (G(3), G(2), G(1))])
    putb(2, P(2)); putb(16, G(2))
    cmul_multi([(P(5), P(4), P(1)), (P(6), P(4), P(2)), (P(7), P(4), P(3))])
    for r, p in ((3, P(3)), (4, P(4)), (24, G(3)), (5, P(5)), (6, P(6)), (7, P(7))): putb(r, p)
    for k in range(1, 4):
        cmul_multi([(X + 2 * j, P(j), G(k)) for j in range(1, 8)])
        for j in range(1, 8): putb(8 * k + j, X + 2 * j)

def kgen_a():
    va, vb, vdt, ta = KVA, KVB, KVD, VT + 4
    E = lambda j: 224 + 2 * j - 2
    Q = lambda j: 160 + 2 * j
    H = lambda k: 176 + 2 * k
    X = 224
    def puta(row, pr): V("cvt_pk_bf16_f32", KR + row, v(pr), v(pr + 1))
    cexp_multi([(E(1), 1.0, ta, 1), (H(1), 256.0, ta + 2, 1)], va, vb)
    for i in range(2, 6): V("lshlrev_b32", V_PAR + i, 16, v(V_PAR + i))
    V("mul_f32", ta, v(vdt), v(V_PAR + 2)); e("v_mul_f32 v%d, -v%d, v%d" % (ta + 1, vdt, V_PAR + 3))
    V("mov_b32", ta + 2, v(V_PAR + 4)); V("mul_f32", ta + 3, "-1.0", v(V_PAR + 5))
    cmul_multi([(Q(0), ta, ta + 2), (E(2), E(1), E(1)), (H(2), H(1), H(1))])
    cmul_multi([(E(3), E(2), E(1)), (E(4), E(2), E(2)), (H(3), H(2), H(1)), (H(4), H(2), H(2))])
    puta(0, Q(0))
    cmul_multi([(E(5), E(4), E(1)), (E(6), E(4), E(2)), (E(7), E(4), E(3)), (E(8), E(4), E(4)), (H(5), H(4), H(1)), (H(6), H(4), H(2)), (H(7), H(4), H(3))])
    cmul_multi([(Q(j), Q(0), E(j)) for j in range(1, 9)])
    for j in range(1, 8): puta(j, Q(j))
    cmul_multi([(X + 2 * i, H(1), Q(2 * i)) for i in range(5)] + [(X + 10 + 2 * i, H(2), Q(4 * i)) for i in range(3)])
    for i in range(8): puta(8 + i, X + 2 * i)
    cmul_multi([(X + 2 * i, H(3), Q(4 * i)) for i in range(3)] + [(X + 6, H(4), Q(0)), (X + 8, H(4), Q(8)), (X + 10, H(5), Q(0)), (X + 12, H(5), Q(8))])
    for i in range(7): puta(16 + i, X + 2 * i)
    cmul_multi([(X, H(6), Q(0)), (X + 2, H(6), Q(8)), (X + 4, H(7), Q(0)), (X + 6, H(7), Q(8))])
    for i in range(4): puta(23 + i, X + 2 * i)

def compute_path():
    t = VT
    lab("L_compute")
    c("======== compute waves ========")
    e("s_bfe_u32 %s, %s, 0x10001" % (T0, WV)); sadd(T0, T0, C0); sshl(T0, T0, 8); sand(T1, WV, 1); sshl(T1, T1, 7); sadd(T0, T0, T1)
    V("lshl_add_u32", V_PA, v(V_L), 1, T0)
    e("s_waitcnt lgkmcnt(0)")
    stamp("karg")
    for i, s in enumerate((S_ARE, S_AIM, S_BRE, S_BIM, S_CRE, S_CIM)):
        e("global_load_ushort v%d, v%d, %s" % (V_PAR + i, V_PA, sr(s, 2)))
    scalar_loads()
    srd(R_U, S_U, 2048 * 1024)
    u_coop_loads()
    if OPT["pf"] == 1:
        c("pull this WG's 1/32 share of the code into L2")
        e("s_getpc_b64 s[4:5]")
        lab("L_pc")
        sshl(T0, I5, 3); V("add_u32", t, T0, v(V_L)); V("lshlrev_b32", t, 7, v(t))
        e("v_min_u32 v%d, L_end-L_pc-4, v%d" % (t, t))
        e("s_mov_b64 exec, 0xff")
        e("global_load_dword v47, v%d, s[4:5]" % t)
        e("s_mov_b64 exec, -1")
    srd(R_WS, S_WS, WS_SIZE); srd(R_OUT, S_OUT, 2048 * 2048); srd(R_WO, S_WO, 512 * 1024)
    gemm_read_addr()
    e("s_waitcnt vmcnt(%d) lgkmcnt(0)" % (9 if OPT["pf"] == 1 else 8))
    sadd(TAG, TAG, 1)
    if OPT["echo"]: stamp("par")
    kgen_b()
    stamp("tab")
    pc = [x for x in capture(kgen_a) if not x.strip().startswith(";")]
    if OPT["apre"]:
        e("s_waitcnt vmcnt(%d)" % (5 if OPT["pf"] == 1 else 4))
        SINK[0].extend(pc[:OPT["apre"]]); del pc[:OPT["apre"]]
    if "F" in OPT["abl"]: pc = pc[:20]
    if "U" in OPT["abl"]: pc = pc[20:]
    def f0flag():
        sshl(I0, XQ, 5); sadd(I0, I0, I5); sshl(I0, I0, 7); sadd(I0, I0, WS_F0)
        flag_store(I0, 26)
    def fill(n):
        for _ in range(n):
            if pc: SINK[0].append(pc.pop(0))
    def ml(s, first=False):
        cc = lambda k: "0" if first else vr(G_ACC[k], 16)
        return ["v_mfma_f32_32x32x16_bf16 %s, %s, %s, %s" % (vr(G_ACC[0], 16), vr(G_W0F + 4 * s, 4), vr(G_XF + 4 * s, 4), cc(0)),
                "v_mfma_f32_32x32x16_bf16 %s, %s, %s, %s" % (vr(G_ACC[1], 16), vr(G_W1F + 4 * s, 4), vr(G_XF + 4 * s, 4), cc(1)),
                "v_mfma_f32_32x32x16_bf16 %s, %s, %s, %s" % (vr(G_ACC[2], 16), vr(G_XF + 4 * s, 4), vr(G_VF + 4 * s, 4), cc(2))]
    def ilv(ms, rs, nf):
        k = 0
        for i, m in enumerate(ms):
            if "M" not in OPT["abl"] or m.endswith(", 0"): e(m)
            upto = (len(rs) * (i + 1) + len(ms) - 1) // len(ms)
            SINK[0].extend(rs[k:upto]); k = upto
            fill(nf)
    for ci in range(8):
        c("compute chunk %d" % ci)
        hi = (ci % 3) == 2
        ib = 32768 if ci % 3 == 1 else 0
        xa = G_XA + (4 if hi else 0)
        wa = G_WB if hi else G_WA
        if ci == 4: e("s_waitcnt vmcnt(0)")
        e("s_barrier")
        if ci in (0, 7): stamp("ch%d" % ci)
        if ci == 4: f0flag()
        def reads(s):
            if "R" in OPT["abl"]: return
            e("ds_read_b128 %s, v%d offset:%d" % (vr(G_XF + 4 * s, 4), xa + s, ib))
            for k, f in enumerate((G_W0F, G_W1F, G_VF)):
                for tt in range(2):
                    e("ds_read_b64_tr_b16 %s, v%d offset:%d" % (vr(f + 4 * s + 2 * tt, 2), wa + k, ib + (16 * s + 4 * tt) * 128))
        r0, r1 = capture(reads, 0), capture(reads, 1)
        nf = 1 if 0 < ci < 7 else 0
        if ci > 0:
            SINK[0].extend(r0[:3]); ilv(ml(3), r0[3:] + r1[:5], 0); SINK[0].extend(r1[5:])
        else: SINK[0].extend(r0 + r1)
        fill(OPT["f0"] * nf)
        e("s_waitcnt lgkmcnt(7)"); ilv(ml(0, ci == 0), capture(reads, 2), nf)
        e("s_waitcnt lgkmcnt(7)"); ilv(ml(1), capture(reads, 3), nf)
        e("s_waitcnt lgkmcnt(7)")
        if ci < 7:
            if ci == 0: ilv(ml(2), capture(u_coop_perm), 0)
            else: ilv(ml(2), [], OPT["f2"] * nf)
            if ci == 6: fill(999)
            e("s_waitcnt lgkmcnt(0)")
            if ci == 0: u_coop_stores()
    tw = ["    ds_write_b32 v%d, v%d offset:%d" % (PV_TW, KR + r, r * 528) for r in range(27)]
    ilv(ml(2), tw[:8], 0)
    e("s_waitcnt lgkmcnt(8)")
    ilv(ml(3), tw[8:], 0)
    sadd(T1, sQKV, WS_K); sadd(T2, sQKV, WS_K + 65536); sadd(T3, sQKV, WS_V); sadd(T4, sQKV, WS_Q + 65536); sadd(T0, sQKV, WS_Q)
    e("s_waitcnt lgkmcnt(0)")
    e("s_barrier")
    stamp("K1")
    c("GEMM epilogue: publish Q,K,V")
    P = G_XF
    def pk(dst, src):
        for i in range(4): V("cvt_pk_bf16_f32", dst + i, v(src + 2 * i), v(src + 1 + 2 * i))
    def st(r, va, so, off=0):
        e("buffer_store_dwordx4 %s, v%d, %s, %s offen%s sc1" % (vr(r, 4), va, R_WS, so, " offset:%d" % off if off else ""))
    pk(P, G_ACC[0] + 8); st(P, PV_QS, T1)
    pk(P + 4, G_ACC[1] + 8); st(P + 4, PV_QS, T2)
    pk(P + 8, G_ACC[2]); st(P + 8, PV_VS, T3)
    pk(P + 12, G_ACC[2] + 8); st(P + 12, PV_VS, T3, 512)
    for k, so in ((0, T0), (1, T4)):
        for i in range(8): V("mul_f32", G_ACC[k] + i, fl(0.25 * LOG2E), v(G_ACC[k] + i))
        pk(P + 16 + 4 * k, G_ACC[k]); st(P + 16 + 4 * k, PV_QS, so)
    stamp("pub")
    precompute_conv()

C_LO, C_UP = 128, 144
C_A, C_X, C_Y = 160, 176, 192
def signal(tag, cnt_off, last, soff):
    t = VT + 4
    V("mov_b32", t + 2, L_FL + cnt_off); V("mov_b32", t + 3, 1)
    e("s_waitcnt vmcnt(0)")
    e("s_mov_b64 exec, 1")
    e("ds_add_rtn_u32 v%d, v%d, v%d" % (t + 3, t + 2, t + 3))
    e("s_mov_b64 exec, -1")
    e("s_waitcnt lgkmcnt(0)")
    e("v_readfirstlane_b32 %s, v%d" % (T0, t + 3))
    e("s_cmp_eq_u32 %s, %d" % (T0, last))
    e("s_cbranch_scc0 L_sig_%s" % tag)
    flag_store(soff, t)
    lab("L_sig_%s" % tag)

def conv_job(T, s0, nfull, tail, va, vb, sig=None, sig_after=1):
    def rdA(k, sg):
        e("ds_read_b64_tr_b16 %s, v%d offset:%d" % (vr(C_A + 4 * k, 2), va, 128 * sg + 32))
        e("ds_read_b64_tr_b16 %s, v%d offset:%d" % (vr(C_A + 4 * k + 2, 2), va, 128 * sg))
    def rdB(dst, k, sg):
        e("ds_read_b128 %s, v%d offset:%d" % (vr(dst + 4 * k, 4), vb, 112 + 128 * T - 32 * sg))
    def mf(acc, k, b, first=False):
        e("v_mfma_f32_32x32x16_bf16 %s, %s, %s, %s" % (vr(acc, 16), vr(C_A + 4 * k, 4), vr(b + 4 * k, 4), "0" if first else vr(acc, 16)))
    pend = []
    def note(step, n): pend.extend([step] * n)
    def wait(step):
        n = sum(1 for x in pend if x > step)
        e("s_waitcnt lgkmcnt(%d)" % n)
        pend[:] = [x for x in pend if x > step]
    for k in range(4):
        rdA(k, s0 + k); rdB(C_Y, k, s0 + k - 4); rdB(C_X, k, s0 + k); note(k, 4)
    cur, old = C_X, C_Y
    if sig and sig_after == 0: sig(); del pend[:]
    for sec in range(nfull):
        for k in range(4):
            st = 4 * sec + k
            wait(st)
            mf(C_UP, k, old, st == 0)
            if sec + 1 < nfull: rdB(old, k, s0 + st + 4); note(st + 4, 1)
            mf(C_LO, k, cur, st == 0)
            if sec + 1 < nfull or tail: rdA(k, s0 + st + 4); note(st + 4, 2)
        cur, old = old, cur
        if sig and sec + 1 == sig_after: sig(); del pend[:]
    if tail:
        for k in range(4):
            wait(4 * nfull + k)
            mf(C_UP, k, old)
        nop(2)
    else: nop(12)

def z_writes(va, row0):
    for k in range(4): e("ds_write_b128 v%d, %s offset:%d" % (va, vr(C_LO + 4 * k, 4), 144 * row0 + 32 * k))
    nop(8)
    for k in range(4): e("ds_write_b128 v%d, %s offset:%d" % (va, vr(C_UP + 4 * k, 4), 144 * (row0 + 8) + 32 * k))

def conv():
    c("---- causal conv as Toeplitz MFMA, output tiles 0..5 ----")
    e("s_cmp_ge_u32 %s, 4" % WV)
    e("s_cbranch_scc1 L_conv_hi")
    e("s_bitcmp1_b32 %s, 0" % WV)
    e("s_cbranch_scc1 L_conv_2a")
    conv_job(0, 0, 1, True, PV_CA, PV_CB, lambda: signal("a", 16, 3, sF1)); z_writes(PV_ZW, 0)
    e("s_branch L_conv_done")
    lab("L_conv_2a")
    conv_job(4, 0, 3, False, PV_CA, PV_CB, lambda: signal("b", 16, 3, sF1), 2); z_writes(PV_ZW, 32)
    e("s_branch L_conv_done")
    lab("L_conv_hi")
    e("s_bitcmp1_b32 %s, 0" % WV)
    e("s_cbranch_scc1 L_conv_2b")
    conv_job(2, 0, 3, True, PV_CA, PV_CB); z_writes(PV_ZW, 16)
    e("s_branch L_conv_done")
    lab("L_conv_2b")
    conv_job(4, 12, 2, True, PV_CA, PV_CB); z_writes(PV_ZW, 32 + 17)
    lab("L_conv_done")
    stamp("cend")

def kv_tiles(msrc, soff):
    e("s_mov_b32 m0, %s" % msrc)
    e("s_nop 0")
    for i in range(8):
        if i == 4: sadd("m0", "m0", 4096); sadd(soff, soff, 4096)
        e("buffer_load_dwordx4 v%d, %s, %s offen offset:%d sc1 lds" % (V_L16, R_WS, soff, 1024 * (i % 4)))

def kv_early():
    t = VT
    e("s_cmp_ge_u32 %s, 4" % WV)
    e("s_cbranch_scc1 L_kve_done")
    precompute(); precompute_tail()
    e("s_bitcmp1_b32 %s, 0" % WV)
    e("s_cbranch_scc1 L_kve_done")
    e("s_cmp_eq_u32 %s, 0" % WV)
    e("s_cbranch_scc0 L_kve_w2")
    for i in range(4): V("mov_b32", C_A + i, 0)
    V("and_b32", t + 2, 7, v(V_L)); V("mul_u32_u24", t + 2, ZS, v(t + 2)); V("bfe_u32", t + 3, v(V_L), 3, 1); V("mul_u32_u24", t + 3, 49 * 144, v(t + 3))
    V("add_u32", t + 2, v(t + 2), v(t + 3)); V("add_u32", t + 2, L_Z + 112, v(t + 2))
    e("ds_write_b128 v%d, %s" % (t + 2, vr(C_A, 4)))
    e("s_mov_b32 %s, 0" % T5); sadd(T3, sHB, WS_K)
    e("s_branch L_kve_go")
    lab("L_kve_w2")
    e("s_mov_b32 %s, 8192" % T5); sadd(T3, sHB, WS_V)
    lab("L_kve_go")
    poll("L_poll1", sF1P, t=VT + 4)
    stamp("poll1")
    sshl(T0, JJ, 13); sadd(T0, T0, T3)
    kv_tiles(T5, T0)
    if not OPT["b1late"]:
        sadd(T0, JJ, 1); sand(T0, T0, 7); sshl(T0, T0, 13); sadd(T0, T0, T3); sadd(T5, T5, BLK)
        kv_tiles(T5, T0)
    lab("L_kve_done")

A_Q = [64, 68]
A_S = [72, 88]
A_O = [104, 120]
A_KF = [136, 140]
A_VA = [144, 148]
A_VB = [152, 156]
A_IDX = 160
A_F = 164
A_NM = 72 + 16
WOR = 192
Y_R = 32
def conv_epilogue():
    c("y[t] = sum_p Z_p[t-p]")
    e("s_waitcnt lgkmcnt(0)")
    e("s_barrier")
    stamp("zbar")
    e("buffer_load_dwordx4 %s, v%d, %s, %s offen sc1" % (vr(A_Q[0], 4), V_L16, R_WS, sQL))
    e("buffer_load_dwordx4 %s, v%d, %s, %s offen offset:1024 sc1" % (vr(A_Q[1], 4), V_L16, R_WS, sQL))
    order = [(0, 0), (0, 4 * ZS), (288, 0), (288, 4 * ZS), (0, 0), (17 * 144, 0), (0, 4 * ZS), (17 * 144, 4 * ZS)]
    def rd(n):
        if n == 4:
            for p in range(4): V("add_u32", PV_ZR + p, T0, v(PV_ZR + p))
        for p in range(4): e("ds_read_b32 v%d, v%d offset:%d" % (Y_R + 4 * n + p, PV_ZR + p, sum(order[n])))
    rd(0); rd(1); rd(2)
    smul(T0, WV, 288); e("s_sub_u32 %s, 4608, %s" % (T0, T0))
    e("s_cmp_eq_u32 %s, 6" % WV)
    e("s_cbranch_scc0 L_nocarry")
    c("carry: last rows of tile 5 (both partials) feed y[1536..1538], finished in the tail")
    t = VT
    for i in range(4): V("mov_b32", PV_CY + i, 0)
    V("and_b32", t, 7, v(V_L)); V("mul_u32_u24", t, ZS, v(t)); V("bfe_u32", t + 1, v(V_L), 3, 1); V("mul_u32_u24", t + 1, 17 * 144, v(t + 1))
    V("add_u32", t, v(t), v(t + 1)); V("add_u32", t, L_Z + 48 * 144 + 112, v(t))
    e("s_mov_b64 exec, 0xffff")
    e("ds_read_b128 %s, v%d" % (vr(PV_CY, 4), t))
    e("s_mov_b64 exec, -1")
    e("s_waitcnt lgkmcnt(0)")
    lab("L_nocarry")
    V("mov_b32", A_IDX, 0xdddddddd)
    V("and_b32", VT, 31, v(V_L)); e("v_cmp_eq_u32 vcc, 16, v%d" % VT); V("mov_b32", VT, 0x3f803f80)
    e("s_mov_b32 s4, 0xffff"); e("s_mov_b32 s5, 0xffff")
    zs = ["    v_cndmask_b32 v%d, 0, v%d, vcc" % (A_VA[0] + i, VT) for i in range(16)]
    zs += ["    v_mov_b32 v%d, 0" % (A_O[0] + i) for i in list(range(9)) + list(range(16, 25))]
    zs += ["    v_mov_b32 v%d, 0" % (A_O[0] + i) for i in list(range(9, 16)) + list(range(25, 32))]
    for n in range(8):
        r = Y_R + 4 * n
        SINK[0].extend(zs[6 * n:6 * n + 6])
        e("s_waitcnt lgkmcnt(%d)" % (4 * (min(n + 2, 7) - n)))
        if n + 3 < 8: rd(n + 3)
        V("add_f32", r, v(r), v(r + 1)); V("add_f32", r + 2, v(r + 2), v(r + 3)); V("add_f32", r, v(r), v(r + 2))
        if n in (1, 3): V("cvt_pk_bf16_f32", V_Y + n // 2, v(r - 4), v(r))
        if n in (5, 7): V("add_f32", r, v(r), v(r - 4))
    V("cvt_pk_bf16_f32", V_Y + 2, v(Y_R + 20), v(Y_R + 28))

def kv_late():
    t = VT
    e("s_cmp_ge_u32 %s, 4" % WV)
    if OPT["b1late"]:
        e("s_cbranch_scc1 L_kvl")
        e("s_waitcnt vmcnt(0)")
        e("s_barrier")
        stamp("S")
        e("s_branch L_kvl_done")
        lab("L_kvl")
    else: e("s_cbranch_scc0 L_kvl_done")
    sand(T1, WV, 3); sshl(T0, T1, 2); sadd(T0, T0, L_FL)
    V("mov_b32", t, T0); V("mov_b32", t + 1, 2); V("mov_b32", t + 2, 3); V("mov_b32", t + 3, 1)
    sshl(T1, T1, 11); sadd(T0, sHB, T1)
    for b in range(1 if OPT["b1late"] else 2, 8):
        sadd(T2, JJ, b); sand(T2, T2, 7); sshl(T2, T2, 13); sadd(T2, T2, T0)
        sadd("m0", T1, b * BLK); sadd(T3, T2, WS_K)
        e("buffer_load_dwordx4 v%d, %s, %s offen sc1 lds" % (V_L16, R_WS, T3))
        sadd(T4, T2, WS_V)
        e("buffer_load_dwordx4 v%d, %s, %s offen offset:1024 sc1 lds" % (V_L16, R_WS, T3))
        sadd("m0", T1, b * BLK + 8192); e("s_nop 0")
        e("buffer_load_dwordx4 v%d, %s, %s offen sc1 lds" % (V_L16, R_WS, T4))
        e("buffer_load_dwordx4 v%d, %s, %s offen offset:1024 sc1 lds" % (V_L16, R_WS, T4))
        if b == 1:
            e("s_waitcnt vmcnt(4)")
            e("s_barrier")
            stamp("S")
        if b == 2 and OPT["b1late"]:
            e("s_waitcnt vmcnt(4)")
            e("ds_write_b32 v%d, v%d" % (t, t + 3))
        if b == 5:
            e("s_waitcnt vmcnt(8)")
            e("ds_write_b32 v%d, v%d" % (t, t + 1))
    precompute_tail()
    e("s_waitcnt vmcnt(0) lgkmcnt(0)")
    e("ds_write_b32 v%d, v%d" % (t, t + 2))
    lab("L_kvl_done")

def kv_check(stage):
    t = VT + 4
    lb = "L_kvchk%d" % stage
    V("mov_b32", t, L_FL)
    e("s_mov_b32 %s, 0" % T3)
    lab(lb)
    e("ds_read_b128 %s, v%d" % (vr(t + 2, 4), t))
    sadd(T3, T3, 1)
    e("s_waitcnt lgkmcnt(0)")
    V("min_u32", t + 2, v(t + 2), v(t + 3)); V("min3_u32", t + 2, v(t + 2), v(t + 4), v(t + 5))
    e("s_cmp_gt_u32 %s, 0x40000" % T3)
    e("s_cbranch_scc1 %s_done" % lb)
    e("v_readfirstlane_b32 %s, v%d" % (T4, t + 2))
    e("s_cmp_lt_u32 %s, %d" % (T4, stage))
    e("s_cbranch_scc1 %s" % lb)
    lab(lb + "_done")

def attn_main():
    c("---- attention main loop: wave = 2 q-tiles x 32 key tiles (parity w>>2), fully unrolled ----")
    base = [0]
    koff = lambda i: (i // 4 - base[0]) * BLK + (i % 4) * 2048
    def rdK(i):
        if i < 32: e("ds_read_b128 %s, v%d offset:%d" % (vr(A_KF[i & 1], 4), PV_KA, koff(i)))
    def rdV(i):
        if i < 32:
            e("s_mov_b64 exec, s[4:5]")
            e("ds_read_b128 %s, v%d offset:%d" % (vr(A_VA[i & 1], 4), PV_V0, koff(i)))
            e("ds_read_b128 %s, v%d offset:%d" % (vr(A_VB[i & 1], 4), PV_V0, koff(i) + 512))
            e("s_mov_b64 exec, -1")
    def qk(i, q):
        if i < 32: e("v_mfma_f32_32x32x16_bf16 %s, %s, %s, 0" % (vr(A_S[q], 16), vr(A_KF[i & 1], 4), vr(A_Q[q], 4)))
    def pv(i, q, half):
        if i < 0: return
        a = (A_VA if half == 0 else A_VB)[i & 1]
        e("v_smfmac_f32_32x32x32_bf16 %s, %s, %s, v%d" % (vr(A_O[q], 16), vr(a, 4), vr(A_S[q] + 8 * half, 8), A_IDX))
    def ex(q, lo, hi):
        for k in range(lo, hi): e("v_exp_f32 v%d, v%d" % (A_S[q] + k, A_S[q] + k))
    rdK(0); rdK(1); rdV(0)
    e("s_cmp_ge_u32 %s, 4" % WV)
    e("s_cbranch_scc1 L_prio1")
    e("s_setprio 2")
    e("s_branch L_prio_done")
    lab("L_prio1")
    e("s_setprio 1")
    lab("L_prio_done")
    e("s_waitcnt lgkmcnt(3)")
    qk(0, 0)
    nop(12)
    ytiles = OPT["yt"]; wtiles = OPT["wt"]
    for i in range(32):
        c("key tile %d" % i)
        if i in (OPT["flip1"], OPT["flip"], OPT["mid"]):
            if i == OPT["mid"]: e("s_barrier")
            e("s_cmp_ge_u32 %s, 4" % WV)
            e("s_cbranch_scc1 L_noflip%d" % i)
            e("s_setprio %d" % (2 if i == OPT["mid"] else 0))
            lab("L_noflip%d" % i)
        if i == 2 and OPT["b1late"]: kv_check(1)
        if i == 6: kv_check(2)
        if i == 14: kv_check(3)
        ex(0, 0, 2); pv(i - 1, 1, 1); ex(0, 2, 5); qk(i, 1)
        e("s_waitcnt lgkmcnt(0)")
        if i in (11, 23):
            for r in (PV_KA, PV_V0): V("add_u32", r, 3 * BLK, v(r))
            base[0] += 3
        rdK(i + 2); rdV(i + 1)
        if i in ytiles:
            n = ytiles.index(i)
            e("buffer_store_dword v%d, v%d, %s, %s offen %s" % (V_Y + n, PV_YA, R_OUT, sYS2 if n == 2 else sYS, OPT["ypol"]))
            if n == 0: sadd(sYS, sYS, 0x20000)
            if n == 2: sadd(sYS2, sYS2, 0x100000)
        if i in wtiles:
            sadd("m0", W10, L_WO + 8192 * wtiles.index(i))
            if wtiles.index(i): sadd(sWO, sWO, 0x10000)
            else: e("s_nop 0")
            e("buffer_load_dwordx4 v%d, %s, %s offen lds" % (PV_WA, R_WO, sWO))
        ex(0, 5, 11); pv(i, 0, 0); ex(0, 11, 16)
        ex(1, 0, 2); pv(i, 0, 1); ex(1, 2, 5); qk(i + 1, 0)
        ex(1, 5, 11); pv(i, 1, 0); ex(1, 11, 16)
    e("s_nop 1")
    pv(31, 1, 1)
    e("s_setprio 0")

def combine():
    c("combine the two key-parity halves through LDS")
    e("s_waitcnt vmcnt(0)")
    e("s_barrier")
    stamp("attn")
    e("s_cmp_ge_u32 %s, 4" % WV)
    e("s_cbranch_scc1 L_cmb1")
    for kp in range(2):
        if kp: lab("L_cmb1")
        o = A_O[1 - kp]
        if kp == 0: nop(8)
        for k in range(3): e("ds_write_b128 v%d, %s offset:%d" % (PV_CW, vr(o + 4 * k, 4), 1024 * k))
        e("s_waitcnt lgkmcnt(0)")
        e("s_barrier")
        for k in range(3): e("ds_read_b128 %s, v%d offset:%d" % (vr(A_F + 4 * k, 4), PV_CR, 1024 * k))
        if kp:
            for i in range(4): V("mov_b32", A_Q[0] + i, v(A_Q[1] + i))
        e("s_waitcnt lgkmcnt(0)")
        for i in (8, 0, 1, 2, 3, 4, 5, 6, 7): V("add_f32", A_F + i, v(A_F + i), v(A_O[kp] + i))
        if kp == 0: e("s_branch L_cmb_done")
    lab("L_cmb_done")

def attn_check_and_slow():
    t = VT
    V("mov_b32", t + 1, v(A_F + 8))
    e("s_nop 1")
    e("v_permlane32_swap_b32 v%d, v%d" % (A_F + 8, t + 1))
    attn_publish()
    c("---- softmax guard: the fast path used shift 0; redo with the true row max if that was unsafe ----")
    V("mul_f32", t, 0, v(A_F))
    for i in range(1, 8): V("fma_f32", t, v(A_F + i), 0, v(t))
    e("v_cmp_nle_f32 vcc, %s, v%d" % (fl(2.0 ** -40), A_F + 8))
    V("mov_b32", t + 1, fl(2.0 ** 100))
    e("v_cmp_nle_f32 s[4:5], v%d, v%d" % (A_F + 8, t + 1))
    e("v_cmp_neq_f32 s[6:7], 0, v%d" % t)
    e("s_or_b64 vcc, vcc, s[4:5]")
    e("s_or_b64 vcc, vcc, s[6:7]")
    if OPT["forceslow"]: e("s_mov_b64 vcc, -1")
    e("s_cmp_lg_u64 vcc, 0")
    e("s_cbranch_scc1 L_slow")
    lab("L_attn_ok")

def slow_path():
    t = VT
    lab("L_slow")
    S_, KF, VA, VB = A_S[0], A_KF[0], A_VA[0], A_VB[0]
    c("slow path pass 1: true row max (K from the workspace)")
    sadd(T0, sHB, WS_K)
    V("mov_b32", t, 0xff800000)
    e("s_mov_b32 %s, 0" % CNT)
    lab("L_slow1")
    e("buffer_load_dwordx4 %s, v%d, %s, %s offen sc1" % (vr(KF, 4), V_L16, R_WS, T0))
    sadd(T0, T0, 1024)
    e("s_waitcnt vmcnt(0)")
    e("v_mfma_f32_32x32x16_bf16 %s, %s, %s, 0" % (vr(S_, 16), vr(KF, 4), vr(A_Q[0], 4)))
    nop(12)
    for k in range(0, 16, 2): V("max3_f32", t, v(t), v(S_ + k), v(S_ + k + 1))
    sadd(CNT, CNT, 1)
    e("s_cmp_lt_u32 %s, 64" % CNT)
    e("s_cbranch_scc1 L_slow1")
    V("mov_b32", t + 1, v(t))
    e("s_nop 1")
    e("v_permlane32_swap_b32 v%d, v%d" % (t, t + 1))
    e("s_nop 1")
    V("max_f32", t, v(t), v(t + 1))
    for k in range(16): V("mul_f32", A_NM + k, "-1.0", v(t))
    c("slow path pass 2")
    for k in range(16): V("mov_b32", A_F + k, 0)
    for k in range(4):
        V("mov_b32", VA + k, 0x3f803f80); V("mov_b32", VB + k, 0x3f803f80)
    V("and_b32", t, 15, v(V_L)); V("lshrrev_b32", t + 1, 5, v(V_L)); V("lshlrev_b32", t, 4, v(t)); V("lshl_add_u32", t, v(t + 1), 8, v(t))
    sadd(T0, sHB, WS_K); sadd(T1, sHB, WS_V)
    e("s_mov_b32 %s, 0" % CNT)
    lab("L_slow2")
    e("buffer_load_dwordx4 %s, v%d, %s, %s offen sc1" % (vr(KF, 4), V_L16, R_WS, T0))
    e("s_mov_b32 exec_lo, 0xffff")
    e("s_mov_b32 exec_hi, 0xffff")
    e("buffer_load_dwordx4 %s, v%d, %s, %s offen sc1" % (vr(VA, 4), t, R_WS, T1))
    e("buffer_load_dwordx4 %s, v%d, %s, %s offen offset:512 sc1" % (vr(VB, 4), t, R_WS, T1))
    e("s_mov_b64 exec, -1")
    sadd(T0, T0, 1024); sadd(T1, T1, 1024)
    e("s_waitcnt vmcnt(0)")
    e("v_mfma_f32_32x32x16_bf16 %s, %s, %s, %s" % (vr(S_, 16), vr(KF, 4), vr(A_Q[0], 4), vr(A_NM, 16)))
    nop(12)
    for k in range(16): e("v_exp_f32 v%d, v%d" % (S_ + k, S_ + k))
    e("s_nop 1")
    e("v_smfmac_f32_32x32x32_bf16 %s, %s, %s, v%d" % (vr(A_F, 16), vr(VA, 4), vr(S_, 8), A_IDX))
    e("v_smfmac_f32_32x32x32_bf16 %s, %s, %s, v%d" % (vr(A_F, 16), vr(VB, 4), vr(S_ + 8, 8), A_IDX))
    sadd(CNT, CNT, 1)
    e("s_cmp_lt_u32 %s, 64" % CNT)
    nop(4)
    e("s_cbranch_scc1 L_slow2")
    nop(12)
    attn_publish()
    e("s_branch L_attn_ok")

def attn_publish():
    t = VT
    c("normalise and publish O (q-tile 2*(w&3) + (w>>2))")
    V("rcp_f32", t, v(A_F + 8))
    e("s_nop 0")
    for i in range(8): V("mul_f32", A_F + i, v(A_F + i), v(t))
    P = 32
    for i in range(4): V("cvt_pk_bf16_f32", P + i, v(A_F + 2 * i), v(A_F + 2 * i + 1))
    e("s_nop 1")
    e("v_permlane32_swap_b32 v%d, v%d" % (P, P + 2))
    e("v_permlane32_swap_b32 v%d, v%d" % (P + 1, P + 3))
    e("buffer_store_dwordx4 %s, v%d, %s, %s offen sc1" % (vr(P, 4), V_L16, R_WS, sOST))

P_W, P_ACC, P_OF = 96, 32, 48
def tail():
    t = VT
    e("s_cmp_ge_u32 %s, 4" % WV)
    e("s_cbranch_scc1 L_tail_hi")
    c("==== waves 0..3: Wo fragments, poll, O tiles, output projection ====")
    for hh in range(32):
        for tt in range(2):
            e("ds_read_b64_tr_b16 %s, v%d offset:%d" % (vr(P_W + 4 * hh + 2 * tt, 2), PV_WF, L_WO + hh * 2048 + tt * 512))
    signal("c", 20, 7, sF2)
    e("s_barrier")
    stamp("W")
    V("mov_b32", t + 2, L_FL + 24); V("mov_b32", t + 3, 1)
    e("s_cmp_eq_u32 %s, 0" % WV)
    e("s_cbranch_scc0 L_spin2")
    poll("L_poll2", sF2P)
    e("ds_write_b32 v%d, v%d" % (t + 2, t + 3))
    e("s_branch L_seen2")
    lab("L_spin2")
    e("s_mov_b32 %s, 0" % CNT)
    lab("L_spin2l")
    e("ds_read_b32 v%d, v%d" % (t + 3, t + 2))
    sadd(CNT, CNT, 1)
    e("s_waitcnt lgkmcnt(0)")
    e("v_readfirstlane_b32 %s, v%d" % (T0, t + 3))
    e("s_cmp_gt_u32 %s, 0x200000" % CNT)
    e("s_cbranch_scc1 L_seen2")
    e("s_cmp_eq_u32 %s, 0" % T0)
    e("s_cbranch_scc1 L_spin2l")
    lab("L_seen2")
    stamp("poll2")
    sadd("m0", W10, L_O); e("s_nop 0")
    for n in range(16):
        e("buffer_load_dwordx4 v%d, %s, %s offen sc1 lds" % (V_L16, R_WS, sOLD))
        if n < 15:
            sadd("m0", "m0", 4096); sadd(sOLD, sOLD, 0x20000)
    e("s_barrier")
    def mm(st):
        for k in range(4):
            hh = 4 * st + k
            e("v_mfma_f32_32x32x16_bf16 %s, %s, %s, %s" % (vr(P_ACC, 16), vr(P_W + 4 * hh, 4), vr(P_OF + 16 * (st & 1) + 4 * k, 4), "0" if hh == 0 else vr(P_ACC, 16)))
    for st in range(8):
        if st % 2 == 0:
            e("s_waitcnt vmcnt(%d)" % (12 - 2 * st))
            e("s_barrier")
            if st == 0: stamp("O1")
        for k in range(4): e("ds_read_b128 %s, v%d offset:%d" % (vr(P_OF + 16 * (st & 1) + 4 * k, 4), PV_OR, (4 * st + k) * 2048))
        if st > 0:
            e("s_waitcnt lgkmcnt(4)")
            mm(st - 1)
    e("s_waitcnt lgkmcnt(0)")
    mm(7)
    nop(12)
    for i in range(8): V("cvt_pk_bf16_f32", P_OF + i, v(P_ACC + 2 * i), v(P_ACC + 2 * i + 1))
    e("ds_write_b128 v%d, %s" % (PV_OW, vr(P_OF, 4)))
    e("ds_write_b128 v%d, %s offset:16" % (PV_OW, vr(P_OF + 4, 4)))
    c("WG 0 advances the epoch word (every WG has read it: all of them have published)")
    e("s_cmp_eq_u32 s2, 0")
    e("s_cbranch_scc0 L_fin")
    e("s_cmp_eq_u32 %s, 0" % WV)
    e("s_cbranch_scc0 L_fin")
    flag_store("0")
    e("s_branch L_fin")
    lab("L_tail_hi")
    c("==== waves 4..7: causal conv of output tiles 6,7 (two lag halves per channel) ====")
    for p in range(4): V("add_u32", PV_ZR + p, (L_Z2 - L_Z - 4608 - 1152 + p * (ZS2 - ZS)) & 0xffffffff, v(PV_ZR + p))
    def sigw(tag):
        signal(tag, 20, 7, sF2)
        e("s_barrier")
    e("s_bitcmp1_b32 %s, 0" % WV)
    e("s_cbranch_scc1 L_ct_b")
    conv_job(6, 0, 4, False, PV_CA, PV_CB, lambda: sigw("d"), OPT["tsig"])
    e("s_branch L_ct_done")
    lab("L_ct_b")
    conv_job(6, 16, 3, True, PV_CA, PV_CB, lambda: sigw("e"), OPT["tsig"])
    lab("L_ct_done")
    z_writes(PV_ZW2, 0)
    e("s_cmp_eq_u32 %s, 6" % WV)
    e("s_cbranch_scc0 L_nocarry2")
    V("bfe_u32", t + 2, v(V_L), 2, 1); V("mul_u32_u24", t + 2, 8 * ZS2, v(t + 2)); V("bfe_u32", t + 1, v(V_L), 3, 1); V("lshlrev_b32", t + 1, 2, v(t + 1))
    V("and_b32", t + 3, 3, v(V_L)); V("add_u32", t + 1, v(t + 1), v(t + 3)); V("mul_u32_u24", t + 1, ZS2, v(t + 1))
    V("add_u32", t + 2, v(t + 2), v(t + 1)); V("add_u32", t + 2, L_Z2 + 112, v(t + 2))
    e("s_mov_b64 exec, 0xffff")
    e("ds_write_b128 v%d, %s" % (t + 2, vr(PV_CY, 4)))
    e("s_mov_b64 exec, -1")
    lab("L_nocarry2")
    e("s_waitcnt lgkmcnt(0)")
    stamp("cend2")
    e("s_barrier")
    c("y[1536 + 64w' + l] for w' = w-4 and w")
    order = [(g, cl, st) for g in range(2) for cl in range(2) for st in range(2)]
    def rd(n):
        g, cl, st = order[n]
        for p in range(4): e("ds_read_b32 v%d, v%d offset:%d" % (Y_R + 4 * n + p, PV_ZR + p, cl * 8 * ZS2 + st * 4 * ZS2 + g * 1152))
    rd(0); rd(1); rd(2)
    for n in range(8):
        r = Y_R + 4 * n
        e("s_waitcnt lgkmcnt(%d)" % (4 * (min(n + 2, 7) - n)))
        if n + 3 < 8: rd(n + 3)
        V("add_f32", r, v(r), v(r + 1)); V("add_f32", r + 2, v(r + 2), v(r + 3)); V("add_f32", r, v(r), v(r + 2))
        if n % 2: V("add_f32", r, v(r), v(r - 4))
        if n % 4 == 3: V("cvt_pk_bf16_f32", V_Y + n // 4, v(r - 8), v(r))
    S("sub_u32", sYS, sYS2, 0x80000)
    for st in range(4):
        if st == OPT["yat"]:
            e("buffer_store_dword v%d, v%d, %s, %s offen" % (V_Y, PV_YA, R_OUT, sYS))
            e("buffer_store_dword v%d, v%d, %s, %s offen" % (V_Y + 1, PV_YA, R_OUT, sYS2))
        e("s_barrier")
    if OPT["yat"] == 4:
        e("buffer_store_dword v%d, v%d, %s, %s offen" % (V_Y, PV_YA, R_OUT, sYS))
        e("buffer_store_dword v%d, v%d, %s, %s offen" % (V_Y + 1, PV_YA, R_OUT, sYS2))
    lab("L_fin")
    e("s_waitcnt lgkmcnt(0)")
    e("s_barrier")
    stamp("opdone")
    e("ds_read_b128 v[32:35], v%d" % PV_FR)
    e("s_waitcnt lgkmcnt(0)")
    e("buffer_store_dwordx4 v[32:35], v%d, %s, %s offen %s" % (PV_FS, R_OUT, sOUT, OPT["opol"]))

def dump_lds(base, nbytes, wsoff):
    t = VT + 10
    e("s_waitcnt lgkmcnt(0)"); e("s_barrier")
    V("lshlrev_b32", t, 4, v(0))
    sshl(T0, "s2", 18); sadd(T0, T0, WS_DBG + wsoff)
    for o in range(0, nbytes, 8192):
        V("add_u32", t + 1, base + o, v(t))
        e("ds_read_b128 %s, v%d" % (vr(t + 2, 4), t + 1))
        e("s_waitcnt lgkmcnt(0)")
        e("buffer_store_dwordx4 %s, v%d, %s, %s offen" % (vr(t + 2, 4), t, R_WS, T0))
        sadd(T0, T0, 8192)
        e("s_waitcnt vmcnt(0)")
    e("s_barrier")

def write_stamps():
    t = VT
    if OPT["ldst"]:
        e("s_waitcnt vmcnt(0) lgkmcnt(0)")
        sshl(T0, "s2", 3); sadd(T0, T0, WV); sshl(T0, T0, 7); sadd(T0, T0, WS_ST)
        e("s_mov_b64 exec, 1")
        V("mov_b32", t, 0)
        for i in range(10):
            V("mov_b32", t + 1, sr(80 + 2 * i))
            e("buffer_store_dword v%d, v%d, %s, %s offen offset:%d" % (t + 1, t, R_WS, T0, 4 * i))
            e("s_nop 1")
        e("s_mov_b64 exec, -1")
    if OPT["echo"]:
        a, b, m = OPT["echo"].split(",")
        e("s_cmp_eq_u32 %s, %d" % (WV, OPT["echowv"])); e("s_cbranch_scc0 L_end")
        e("s_cmp_eq_u32 s2, %d" % OPT["echowg"]); e("s_cbranch_scc0 L_end")
        e("s_waitcnt vmcnt(0)")
        stamp("end")
        if a == "start": e("s_mov_b32 s80, s100")
        e("s_sub_u32 s82, s81, s80"); e("s_mul_i32 s82, s82, %s" % m); e("s_min_u32 s82, s82, 20000")
        e("s_memrealtime s[84:85]"); e("s_waitcnt lgkmcnt(0)")
        lab("L_echo")
        e("s_memrealtime s[86:87]"); e("s_waitcnt lgkmcnt(0)")
        e("s_sub_u32 s83, s86, s84"); e("s_cmp_lt_u32 s83, s82"); e("s_cbranch_scc1 L_echo")
    if OPT["stamps"]:
        e("s_waitcnt vmcnt(0)")
        stamp("end")
        sshl(T0, "s2", 3); sadd(T0, T0, WV); sshl(T0, T0, 7); sadd(T0, T0, WS_ST)
        e("s_mov_b64 exec, 1")
        V("mov_b32", t, 0)
        for i in range(len(stamp_names)):
            V("mov_b32", t + 1, sr(S_ST + i))
            e("buffer_store_dword v%d, v%d, %s, %s offen offset:%d" % (t + 1, t, R_WS, T0, 4 * i))
            e("s_nop 1")
        V("mov_b32", t + 1, "s100")
        e("buffer_store_dword v%d, v%d, %s, %s offen offset:124" % (t + 1, t, R_WS, T0))
        e("s_memrealtime s[98:99]")
        e("s_waitcnt lgkmcnt(0)")
        V("mov_b32", t + 2, "s98")
        e("buffer_store_dword v%d, v%d, %s, %s offen offset:120" % (t + 2, t, R_WS, T0))
        e("s_mov_b64 exec, -1")
        L.insert(0, "; stamps: " + ",".join(stamp_names))
    if OPT["dbgspan"]:
        e("s_cmp_eq_u32 %s, 0" % WV); e("s_cbranch_scc0 L_end")
        sand(T0, "s2", 63); e("s_cmp_eq_u32 %s, 5" % T0); e("s_cbranch_scc0 L_end")
        e("s_waitcnt vmcnt(0)")
        e("s_memrealtime s[96:97]"); e("s_memtime s[94:95]")
        srd(R_X, S_DBG, 256)
        sshr(T0, "s2", 6); sshl(T0, T0, 4)
        e("s_waitcnt lgkmcnt(0)")
        e("s_mov_b64 exec, 1")
        V("mov_b32", t, 0)
        e("s_sub_u32 s94, s94, s98"); e("s_sub_u32 s96, s96, s100")
        V("mov_b32", t + 2, "s100"); V("mov_b32", t + 3, "s96"); V("mov_b32", t + 4, "s94"); V("mov_b32", t + 5, 0)
        e("buffer_store_dwordx4 %s, v%d, %s, %s offen" % (vr(t + 2, 4), t, R_X, T0))

def main():
    header()
    setup()
    loader_path()
    compute_path()
    lab("L_gemm_done")
    e("s_waitcnt lgkmcnt(0)")
    e("s_barrier")
    stamp("K2")
    if OPT["dump"]: dump_lds(L_KF, 24576, 0)
    conv()
    kv_early()
    conv_epilogue()
    if not OPT["b1late"]:
        e("s_waitcnt vmcnt(0)")
        e("s_barrier")
        stamp("S")
    kv_late()
    attn_main()
    combine()
    attn_check_and_slow()
    tail()
    write_stamps()
    e("s_endpgm")
    slow_path()
    footer(256)
    open(sys.argv[1], "w").write("\n".join(L) + "\n")

main()
```

```python
import sys, struct, math

NAME = "concat_heads__ssm_conv_s4__softmax_full_mha__prompt"
OPT = dict(ldst=0, ypol="", opol="", abl="", echo="", echowg=0, echowv=0, stamps=0, dump=0, forceslow=0, dbgspan=0, flip1=14, mid=16, flip=30, pf=2, apre=45, f0=5, f2=2, pfx=0, tsig=0, b1late=0, rot=6, yat=0, npre=999,
           yt=[15, 20, 25], wt=[17, 18, 19, 21, 22, 23, 24, 26])
for a in sys.argv[2:]:
    k, v = a.split("=")
    OPT[k] = int(v) if v.lstrip("-").isdigit() else v

L = []
SINK = [L]
def e(s): SINK[0].append("    " + s)
def lab(s): SINK[0].append(s + ":")
def c(s): SINK[0].append("    ; " + s)
def f2u(x): return struct.unpack("<I", struct.pack("<f", x))[0]
def fl(x): return "0x%08x" % f2u(x)
def vr(a, n=1): return "v%d" % a if n == 1 else "v[%d:%d]" % (a, a + n - 1)
def sr(a, n=1): return "s%d" % a if n == 1 else "s[%d:%d]" % (a, a + n - 1)
def nop(n):
    while n > 0:
        k = min(n, 16); e("s_nop %d" % (k - 1)); n -= k
def capture(fn, *a):
    old = SINK[0]; out = []; SINK[0] = out; fn(*a); SINK[0] = old; return out

WS_F1 = 0x1000
WS_F2 = 0xa000
WS_F0 = 0x20000
WS_Q, WS_K, WS_V, WS_O, WS_U2 = 0x100000, 0x300000, 0x500000, 0x700000, 0x900000
WS_ST = 0xc00000
WS_DBG = 0x1000000
WS_SIZE = 0x10000000
LDS_TOTAL = 163840
BLK = 16384
L_TB = 98304
L_TA = 0
L_FL = 146240
L_KF = 146304
L_UP = 154624
ZS = 9504
L_Z = 70208
ZS2 = 2448
L_Z2 = 0
L_WO = 0
L_O = 65536
L_SC = 65536
L_OT = 131072
S_U, S_ARE, S_AIM, S_BRE, S_BIM, S_CRE, S_CIM, S_LDT = 8, 10, 12, 14, 16, 18, 20, 22
S_DSK, S_X, S_W, S_WO, S_OUT, S_DBG, S_WS = 24, 26, 28, 30, 32, 34, 36
R_X, R_W, R_WS, R_U, R_OUT, R_WO = "s[40:43]", "s[44:47]", "s[48:51]", "s[52:55]", "s[56:59]", "s[60:63]"
XQ, I5, WV, TAG, LD2, DS2, HH, JJ, C0 = "s64", "s65", "s66", "s67", "s68", "s69", "s70", "s71", "s72"
T0, T1, T2, T3, T4, T5, CNT = "s73", "s74", "s75", "s76", "s77", "s78", "s79"
CQ, CL, W10, GT, GQ = "s38", "s39", "s3", "s6", "s7"
sQKV, sF1, sF1P, sYS, sWO, sOST, sOLD, sOUT, sF2, sF2P, sHB, sQL = ["s%d" % i for i in range(8, 20)]
sYS2 = "s38"
S_ST = 80
stamp_names = []
def stamp(name):
    if OPT["echo"]:
        a, b, m = OPT["echo"].split(",")
        if name in (a, b):
            e("s_waitcnt lgkmcnt(0)")
            e("s_memrealtime s[98:99]")
            e("s_waitcnt lgkmcnt(0)")
            e("s_mov_b32 %s, s98" % ("s80" if name == a else "s81"))
    if OPT["stamps"]:
        if name not in stamp_names: stamp_names.append(name)
        assert len(stamp_names) <= 18
        e("s_waitcnt lgkmcnt(0)")
        e("s_memrealtime s[98:99]" if OPT["stamps"] == 2 else "s_memtime s[98:99]")
        e("s_waitcnt lgkmcnt(0)")
        e("s_mov_b32 %s, s98" % sr(S_ST + stamp_names.index(name)))
def srd(r, base, size):
    r = int(r[2:r.index(":")])
    e("s_mov_b32 %s, %s" % (sr(r), sr(base)))
    e("s_and_b32 %s, %s, 0xffff" % (sr(r + 1), sr(base + 1)))
    e("s_mov_b32 %s, 0x%x" % (sr(r + 2), size))
    e("s_mov_b32 %s, 0x00020000" % sr(r + 3))
def csel(dst, a, b):
    e("s_mov_b32 %s, %d" % (dst, b))
    e("s_cselect_b32 %s, %d, %s" % (dst, a, dst))
def S(op, d, a, b): e("s_%s %s, %s, %s" % (op, d, a, b if isinstance(b, str) else ("0x%x" % b if b > 64 else str(b))))
def sadd(d, a, b): S("add_u32", d, a, b)
def sshl(d, a, b): S("lshl_b32", d, a, b)
def sshr(d, a, b): S("lshr_b32", d, a, b)
def sand(d, a, b): S("and_b32", d, a, b)
def smul(d, a, b): S("mul_i32", d, a, b)
def V(op, d, *a): e("v_%s v%d, %s" % (op, d, ", ".join(("v%d" % x[0] if isinstance(x, tuple) else (x if isinstance(x, str) else ("0x%x" % x if x > 64 else str(x)))) for x in a)))
def v(x): return (x,)
LOG2E = math.log2(math.e)

V_L, V_L16, V_PA = 1, 2, 3
V_PAR = 4
V_Y = 10
VT = 14
(PV_CA, PV_CB, PV_ZW, PV_ZR, _z1, _z2, _z3, PV_KA, PV_V0, PV_V1, PV_YA, PV_WA, PV_CW, PV_CR,
 PV_OR, PV_OW, PV_WF, PV_FR, PV_FS, PV_WS) = range(224, 244)
PV_ZW2 = PV_V1
PV_CY = 250
PV_QS, PV_VS, PV_TW = 222, 223, 219
PV_GA, PV_GB, PV_GW, PV_GD, PV_US = 244, 245, 246, 247, 248

def header():
    L.append("; fused S4 long-conv (part A) + multi-head attention (part B): one launch, 256 WGs x 8 waves")
    L.append("; @launch grid=(256,1,1) block=(512,1,1) lds=%d" % LDS_TOTAL)
    L.append('.amdgcn_target "amdgcn-amd-amdhsa--gfx950"')
    L.append(".text")
    L.append(".globl %s_kernel" % NAME)
    L.append(".p2align 8")
    L.append(".type %s_kernel,@function" % NAME)
    L.append("%s_kernel:" % NAME)
def footer(nv):
    lab("L_end")
    e("s_endpgm")
    L.append('.section .rodata,"a"')
    L.append(".p2align 6")
    L.append(".amdhsa_kernel %s_kernel" % NAME)
    L.append("  .amdhsa_next_free_vgpr %d" % nv)
    L.append("  .amdhsa_next_free_sgpr 102")
    L.append("  .amdhsa_accum_offset %d" % nv)
    L.append("  .amdhsa_group_segment_fixed_size 0")
    L.append("  .amdhsa_kernarg_size 120")
    L.append("  .amdhsa_user_sgpr_count 2")
    L.append("  .amdhsa_user_sgpr_kernarg_segment_ptr 1")
    L.append("  .amdhsa_system_sgpr_workgroup_id_x 1")
    L.append(".end_amdhsa_kernel")

def setup():
    c("---- setup ----")
    e("s_cmp_ge_u32 s2, 256")
    e("s_cbranch_scc1 L_end")
    e("s_load_dwordx8 s[24:31], s[0:1], 64")
    e("s_load_dwordx16 s[8:23], s[0:1], 0")
    e("s_load_dwordx4 s[32:35], s[0:1], 96")
    e("s_load_dwordx2 s[36:37], s[0:1], 112")
    if OPT["stamps"] or OPT["dbgspan"] or OPT["echo"]: e("s_memrealtime s[100:101]")
    if OPT["dbgspan"]: e("s_memtime s[98:99]")
    if OPT["pf"] == 2:
        c("pull this WG's 1/32 share of the code into L2 right away (thread t<8: line 8*(wg>>3)+t)")
        e("s_getpc_b64 s[4:5]")
        lab("L_pc")
        e("s_and_b32 s3, s2, 0xf8")
        V("add_u32", VT, "s3", v(0)); V("lshlrev_b32", VT, 7, v(VT))
        e("v_min_u32 v%d, L_end-L_pc-4, v%d" % (VT, VT))
        e("v_cmp_gt_u32 vcc, 8, v0")
        e("s_and_saveexec_b64 s[6:7], vcc")
        e("s_cbranch_execz L_nopf")
        e("global_load_dword v47, v%d, s[4:5]" % VT)
        lab("L_nopf")
        e("s_mov_b64 exec, -1")
    V("and_b32", V_L, 63, v(0))
    V("lshrrev_b32", VT, 6, v(0))
    V("lshlrev_b32", V_L16, 4, v(V_L))
    V("mov_b32", PV_FS, 0)
    e("v_readfirstlane_b32 %s, v%d" % (WV, VT))
    sand(XQ, "s2", 7)
    sshr(I5, "s2", 3)
    sand(GT, XQ, 3); sshl(GT, GT, 3); sshr(JJ, I5, 2); sadd(GT, GT, JJ)
    sand(GQ, XQ, 4); sand(T0, I5, 3); sadd(GQ, GQ, T0)
    sshl(HH, XQ, 2); sadd(HH, HH, T0)
    sshl(C0, XQ, 5); sadd(C0, C0, I5); sshl(C0, C0, 1)
    sshl(W10, WV, 10)
    e("s_cmp_ge_u32 %s, 4" % WV)
    e("s_cbranch_scc0 L_compute")

def scalar_loads():
    sshl(T3, C0, 1)
    e("s_load_dword %s, %s, 0" % (TAG, sr(S_WS, 2)))
    e("s_load_dword %s, %s, %s" % (LD2, sr(S_LDT, 2), T3))
    e("s_load_dword %s, %s, %s" % (DS2, sr(S_DSK, 2), T3))

def lane_terms():
    t = VT
    hf, b7, p4, r4, g1, l15, l8 = t, t + 1, t + 2, t + 3, t + 4, t + 5, t + 6
    V("lshrrev_b32", hf, 5, v(V_L)); V("and_b32", b7, 7, v(V_L)); V("bfe_u32", p4, v(V_L), 3, 2)
    V("bfe_u32", r4, v(V_L), 2, 2); V("bfe_u32", g1, v(V_L), 4, 1); V("and_b32", l15, 15, v(V_L)); V("lshrrev_b32", l8, 3, v(V_L))
    return hf, b7, p4, r4, g1, l15, l8

def precompute_conv():
    t = VT
    c("---- conv addresses ----")
    e("s_bfe_u32 %s, %s, 0x10001" % (CL, WV))
    hf, b7, p4, r4, g1, l15, l8 = lane_terms()
    x, y, z = t + 8, t + 9, t + 10
    e("s_cmp_eq_u32 %s, 1" % CL)
    csel(T0, L_KF + 4160 + 96, L_KF + 96); csel(T1, L_UP + 4608, L_UP); csel(T2, L_Z + 4 * ZS + 144, L_Z + 144)
    V("and_b32", x, 3, v(V_L)); V("lshl_add_u32", x, v(g1), 2, v(x)); V("lshl_add_u32", y, v(hf), 3, v(r4))
    V("sub_u32", x, v(x), v(y)); V("lshlrev_b32", x, 3, v(x)); V("add_u32", PV_CA, T0, v(x))
    V("mul_u32_u24", x, 1152, v(p4)); V("add_u32", z, v(b7), v(hf)); V("lshl_add_u32", x, v(z), 4, v(x))
    V("add_u32", PV_CB, T1, v(x))
    V("mul_u32_u24", x, ZS, v(p4)); V("mul_u32_u24", z, 144, v(b7)); V("lshl_add_u32", z, v(hf), 4, v(z)); V("add3_u32", PV_ZW, v(x), v(z), T2)
    sshl(sF1, GQ, 5); sadd(sF1, sF1, GT); sshl(sF1, sF1, 7); sadd(sF1, sF1, WS_F1)
    sshl(T0, XQ, 12); sadd(sF1P, T0, WS_F1); sadd(sF2P, T0, WS_F2)
    sshl(sHB, HH, 16)

def precompute():
    t = VT
    c("SPLIT")
    e("s_cmp_ge_u32 %s, 4" % WV)
    e("s_cselect_b32 %s, 1024, 0" % T0)
    hf, b7, p4, r4, g1, l15, l8 = lane_terms()
    x, y, z = t + 8, t + 9, t + 10
    V("add_u32", PV_KA, T0, v(V_L16))
    V("lshlrev_b32", x, 4, v(l15)); V("lshl_add_u32", x, v(hf), 8, v(x)); sadd(T0, T0, 8192); V("add_u32", PV_V0, T0, v(x))
    V("lshlrev_b32", PV_YA, 11, v(V_L))
    V("lshlrev_b32", x, 2, v(g1)); V("xor_b32", x, v(x), v(b7)); V("lshlrev_b32", x, 4, v(x)); V("lshl_add_u32", PV_WA, v(l8), 10, v(x))
    c("SPLIT")
    sshl(T0, WV, 7); sadd(T0, T0, 32)
    for p in range(4):
        V("add_u32", x, T0, v(V_L))
        if p: V("subrev_u32", x, p, v(x))
        V("lshrrev_b32", z, 5, v(x)); V("lshlrev_b32", x, 2, v(x)); V("lshl_add_u32", x, v(z), 4, v(x))
        V("add_u32", PV_ZR + p, L_Z + p * ZS, v(x))
    c("SPLIT")
    sshl(T0, WV, 18); sshl(T1, C0, 1); sadd(sYS, T0, T1)
    sshr(T0, T0, 1); sadd(T0, T0, T1); sadd(sYS2, T0, 0x200000)
    sand(T0, I5, 7); sshl(T0, T0, 7); sshl(T1, WV, 13); sadd(sWO, T0, T1)
    sshl(T1, JJ, 13); sadd(T1, T1, sHB); sand(T2, WV, 3); sshl(T2, T2, 11); sadd(T1, T1, T2)
    sadd(sQL, T1, WS_Q)

def precompute_tail():
    t = VT + 4
    hf, b7, p4, r4, g1, l8 = t, t + 1, t + 2, t + 3, t + 4, t + 5
    V("lshrrev_b32", hf, 5, v(V_L)); V("and_b32", b7, 7, v(V_L)); V("bfe_u32", p4, v(V_L), 3, 2)
    V("bfe_u32", r4, v(V_L), 2, 2); V("bfe_u32", g1, v(V_L), 4, 1); V("lshrrev_b32", l8, 3, v(V_L))
    x, y, z = t + 6, t + 7, t + 8
    S("xor_b32", T0, WV, 4); smul(T0, T0, 3072); sadd(T0, T0, L_SC); smul(T1, WV, 3072); sadd(T1, T1, L_SC)
    V("add_u32", PV_CW, T0, v(V_L16)); V("add_u32", PV_CR, T1, v(V_L16))
    sand(T0, WV, 1); smul(T0, T0, 4 * ZS2); smul(T1, CL, 8 * ZS2); sadd(T0, T0, T1); sadd(T0, T0, L_Z2 + 144)
    V("mul_u32_u24", x, ZS2, v(p4)); V("mul_u32_u24", z, 144, v(b7)); V("lshl_add_u32", z, v(hf), 4, v(z)); V("add3_u32", PV_ZW2, v(x), v(z), T0)
    V("lshl_add_u32", y, v(hf), 3, v(r4)); V("lshlrev_b32", PV_WF, 7, v(y))
    V("and_b32", x, 1, v(V_L)); V("lshl_or_b32", x, v(x), 1, v(g1))
    sand(T0, WV, 2); sshl(T0, T0, 1); V("or_b32", x, T0, v(x))
    V("bfe_u32", z, v(V_L), 3, 1); V("lshlrev_b32", z, 2, v(z)); V("xor_b32", x, v(x), v(z))
    V("lshl_add_u32", PV_WF, v(x), 4, v(PV_WF)); V("bfe_u32", z, v(V_L), 1, 1); V("lshl_add_u32", PV_WF, v(z), 3, v(PV_WF))
    sand(T1, WV, 1); sshl(T2, T1, 10); sadd(T2, T2, L_O); V("add_u32", PV_OR, T2, v(V_L16))
    smul(T1, T1, 4608); sshl(T0, T0, 4); sadd(T0, T0, T1); sadd(T0, T0, L_OT)
    V("and_b32", x, 31, v(V_L)); V("mul_u32_u24", x, 144, v(x)); V("lshl_add_u32", x, v(hf), 5, v(x)); V("add_u32", PV_OW, T0, v(x))
    smul(T0, WV, 1152); sadd(T0, T0, L_OT)
    V("lshlrev_b32", x, 4, v(b7)); V("mul_u32_u24", z, 144, v(l8)); V("add3_u32", PV_FR, v(z), v(x), T0); V("lshl_add_u32", PV_FS, v(l8), 11, v(x))
    sshl(sF2, JJ, 5); sadd(sF2, sF2, HH); sshl(sF2, sF2, 7); sadd(sF2, sF2, WS_F2)
    S("sub_u32", T1, sQL, WS_Q); sshr(T2, WV, 2); sshl(T2, T2, 10); sadd(T1, T1, T2); sadd(sOST, T1, WS_O)
    sshr(T1, WV, 1); sshl(T1, T1, 6); sshl(T2, XQ, 3); sadd(T1, T1, T2); sshr(T3, I5, 3); sshl(T2, T3, 1); sadd(T1, T1, T2)
    sand(T2, WV, 1); sadd(T1, T1, T2); sshl(T1, T1, 10); sadd(sOLD, T1, WS_O)
    sand(T0, I5, 7); sshl(T0, T0, 7)
    sshl(T1, XQ, 2); sadd(T1, T1, T3); sshl(T1, T1, 3); sadd(T1, T1, WV); sshl(T1, T1, 14); sadd(T1, T1, T0); sadd(sOUT, T1, 1024)

G_VX0, G_VX1, G_VWQ, G_VWK, G_VWV, G_PL = 32, 33, 34, 35, 36, 39
G_UA, G_US = 30, 31
G_UL, U2R = 196, 80
G_XA, G_WA, G_WB = 32, 40, 43
G_ACC = [48, 64, 80]
G_XF, G_W0F, G_W1F, G_VF = 96, 112, 128, 144
KB = 48
KR = 192

def loader_addr():
    t = VT
    c("loader DMA voffsets (wave v=w-4 covers rows 16v..16v+15 of each chunk)")
    V("lshrrev_b32", t, 3, v(V_L)); V("and_b32", t + 1, 7, v(V_L)); V("bfe_u32", t + 2, v(V_L), 4, 1)
    sand(T0, WV, 3); sshl(T4, T0, 11); sshl(T0, T0, 4)
    V("add_u32", t + 3, T0, v(t))
    V("bfe_u32", t + 4, v(t + 3), 1, 3); V("xor_b32", t + 4, v(t + 4), v(t + 1)); V("lshlrev_b32", t + 4, 4, v(t + 4))
    sshl(T1, GT, 16)
    V("lshl_add_u32", G_VX0, v(t + 3), 10, v(t + 4)); V("add_u32", G_VX0, T1, v(G_VX0)); V("xor_b32", G_VX1, 0x2040, v(G_VX0))
    V("mul_u32_u24", t + 5, 3072, v(t + 3)); sshl(T1, GQ, 7); V("add_u32", t + 5, T1, v(t + 5))
    V("lshlrev_b32", t + 6, 1, v(t + 2)); V("xor_b32", t + 6, v(t + 6), v(t + 1)); V("lshl_add_u32", G_VWQ, v(t + 6), 4, v(t + 5))
    V("xor_b32", t + 6, 4, v(t + 6)); V("lshl_add_u32", G_VWK, v(t + 6), 4, v(t + 5)); V("add_u32", G_VWK, 1024, v(G_VWK))
    V("lshlrev_b32", t + 6, 2, v(t + 2)); V("xor_b32", t + 6, v(t + 6), v(t + 1)); V("lshl_add_u32", G_VWV, v(t + 6), 4, v(t + 5)); V("add_u32", G_VWV, 2048, v(G_VWV))
    r = OPT["rot"]
    if r == 1: sshl(T5, GQ, 1); sadd(T5, T5, GT)
    else:
        sadd(T5, GQ, GT)
        if r == 3: sshl(T5, T5, 2)
        if r == 5: sand(T5, T5, 1)
        if r == 6: sshl(T5, T5, 1)

I0, I1, I2, I3 = "s20", "s21", "s22", "s23"
def issue_chunk(ci):
    base = (ci % 3) * 32768
    sadd(I0, T5, ci); sand(I0, I0, 7)
    sadd("m0", T4, base); sshl(I1, I0, 7)
    e("buffer_load_dwordx4 v%d, %s, %s offen lds" % (G_VX0, R_X, I1))
    sadd("m0", T4, base + 1024); smul(I2, I0, 196608)
    e("buffer_load_dwordx4 v%d, %s, %s offen lds" % (G_VX1, R_X, I1))
    for g, va in enumerate((G_VWQ, G_VWK, G_VWV)):
        for h in range(2):
            sadd("m0", T4, base + (g + 1) * 8192 + h * 1024)
            if g == 0 and h == 0: sadd(I3, I2, 24576)
            else: e("s_nop 0")
            e("buffer_load_dwordx4 v%d, %s, %s offen lds" % (va, R_W, I3 if h else I2))

def pi_tok(dst, src, t):
    V("and_b32", dst, 0x13, v(src)); V("bfe_u32", t, v(src), 2, 1); V("lshl_or_b32", dst, v(t), 3, v(dst))
    V("bfe_u32", t, v(src), 3, 1); V("lshl_or_b32", dst, v(t), 2, v(dst))

def gemm_read_addr():
    t = VT
    c("GEMM LDS fragment read addresses, publish addresses")
    pi_tok(t, V_L, t + 1)
    V("lshrrev_b32", t + 1, 5, v(V_L))
    V("lshlrev_b32", PV_QS, 4, v(t)); V("lshl_add_u32", PV_QS, v(t + 1), 9, v(PV_QS))
    sand(T0, WV, 1); sshl(T1, T0, 5); V("add_u32", t, T1, v(t))
    V("bfe_u32", t + 2, v(t), 1, 3); V("xor_b32", t + 2, v(t + 2), v(t + 1)); V("lshlrev_b32", t + 2, 4, v(t + 2))
    V("lshl_add_u32", G_XA, v(t), 7, v(t + 2))
    for s in range(1, 4): V("xor_b32", G_XA + s, 32 * s, v(G_XA))
    V("bfe_u32", t + 2, v(V_L), 2, 2); V("lshl_add_u32", t + 3, v(t + 1), 3, v(t + 2)); V("lshlrev_b32", t + 3, 7, v(t + 3))
    V("bfe_u32", t + 4, v(V_L), 4, 1); V("bfe_u32", t + 5, v(V_L), 3, 1); V("and_b32", t + 6, 1, v(V_L)); V("bfe_u32", t + 7, v(V_L), 1, 1)
    sand(T2, WV, 2); sshl(T1, T2, 1)
    V("or_b32", t + 8, T1, v(t + 6)); V("lshl_or_b32", t + 9, v(t + 4), 1, v(t + 5)); V("lshlrev_b32", t + 9, 1, v(t + 9))
    V("xor_b32", t + 8, v(t + 8), v(t + 9)); V("lshl_add_u32", t + 8, v(t + 8), 4, v(t + 3)); V("lshl_add_u32", t + 8, v(t + 7), 3, v(t + 8))
    V("lshl_add_u32", G_WA, v(t + 4), 13, v(t + 8)); V("add_u32", G_WA, 8192, v(G_WA)); V("xor_b32", G_WA + 1, 32, v(G_WA))
    V("lshl_or_b32", t + 8, v(t + 4), 1, v(t + 7)); V("or_b32", t + 8, T1, v(t + 8)); V("lshlrev_b32", t + 9, 2, v(t + 5))
    V("xor_b32", t + 8, v(t + 8), v(t + 9)); V("lshl_add_u32", t + 8, v(t + 8), 4, v(t + 3)); V("lshl_add_u32", t + 8, v(t + 6), 3, v(t + 8))
    V("add_u32", G_WA + 2, 24576, v(t + 8))
    for s in range(4): V("add_u32", G_XA + 4 + s, 0x10000, v(G_XA + s))
    for s in range(3): V("add_u32", G_WB + s, 0x10000, v(G_WA + s))
    V("and_b32", t + 2, 15, v(V_L)); V("lshlrev_b32", t + 2, 4, v(t + 2)); V("lshl_add_u32", t + 2, v(t + 1), 8, v(t + 2)); V("lshl_add_u32", PV_VS, v(t + 4), 16, v(t + 2))
    sshl(T1, GQ, 2); sadd(T1, T1, T2); sshl(T1, T1, 6); sshl(T3, GT, 1); sadd(T1, T1, T3); sadd(T1, T1, T0); sshl(sQKV, T1, 10)
    sshl(T0, T0, 8)
    e("s_bitcmp1_b32 %s, 1" % WV)
    csel(T1, L_TA + 14256, L_TA); csel(T2, L_TB + 16896, L_TB)
    sadd(T1, T1, T0); sadd(T2, T2, T0)
    V("lshl_add_u32", PV_TW, v(V_L), 2, T1); V("lshl_add_u32", 46, v(V_L), 2, T2)

G_UP = 29
def u_coop_loads():
    t = VT
    sshl(T1, I5, 2); sadd(T1, T1, WV); sshl(T1, T1, 2)
    V("bfe_u32", t, v(V_L), 3, 2); V("add_u32", t, T1, v(t)); V("and_b32", t + 1, 7, v(V_L))
    V("lshlrev_b32", t + 1, 4, v(t + 1)); V("lshl_add_u32", G_UA, v(t), 12, v(t + 1))
    sshl(T0, XQ, 7)
    e("s_mov_b32 exec_hi, 0")
    for k in range(4):
        e("buffer_load_dwordx4 %s, v%d, %s, %s offen offset:%d" % (vr(G_UL + 4 * k, 4), G_UA, R_U, T0, 1024 * k))
    e("s_mov_b32 exec_hi, -1")
    V("and_b32", t, 3, v(V_L)); V("bfe_u32", t + 1, v(V_L), 2, 3)
    V("lshl_add_u32", G_UP, v(t), 3, v(t + 1)); V("lshlrev_b32", G_UP, 2, v(G_UP))
    V("add_u32", t, T1, v(t)); V("lshlrev_b32", t, 4, v(t)); V("lshl_add_u32", G_US, v(t + 1), 15, v(t))

def u_coop_perm():
    D = 240
    e("s_waitcnt vmcnt(0)")
    for i in range(4):
        for k in range(4): e("ds_bpermute_b32 v%d, v%d, v%d" % (D + 4 * i + k, G_UP, G_UL + 4 * k + i))
def u_coop_stores():
    D = 240
    sshl(I0, XQ, 18); sadd(I0, I0, WS_U2)
    e("s_mov_b32 exec_hi, 0")
    for i in range(4):
        e("buffer_store_dwordx4 %s, v%d, %s, %s offen sc1" % (vr(D + 4 * i, 4), G_US, R_WS, I0))
        if i < 3: sadd(I0, I0, 8192)
    e("s_mov_b32 exec_hi, -1")

def flag_store(soff, t=VT):
    V("mov_b32", t, 0); V("mov_b32", t + 1, TAG)
    e("s_mov_b64 exec, 1")
    e("buffer_store_dword v%d, v%d, %s, %s offen sc1" % (t + 1, t, R_WS, soff))
    e("s_mov_b64 exec, -1")

def poll(label, soff, first_issued=None, t=VT, nwait=0):
    V("lshlrev_b32", t, 7, v(V_L))
    e("s_mov_b32 %s, 0" % CNT)
    e("s_mov_b32 exec_hi, 0")
    r = t + 1
    if first_issued is not None:
        r = first_issued
        e("s_waitcnt vmcnt(%d)" % nwait)
        e("s_branch %s_chk" % label)
    lab(label)
    e("buffer_load_dword v%d, v%d, %s, %s offen sc1" % (r, t, R_WS, soff))
    sadd(CNT, CNT, 1)
    e("s_waitcnt vmcnt(0)")
    lab(label + "_chk")
    e("v_cmp_ne_u32 vcc, %s, v%d" % (TAG, r))
    e("s_cmp_gt_u32 %s, 0x4000" % CNT)
    e("s_cbranch_scc1 %s_done" % label)
    e("s_cmp_lg_u64 vcc, 0")
    e("s_cbranch_scc1 %s" % label)
    lab(label + "_done")
    e("s_mov_b32 exec_hi, -1")

def kgen_addr():
    t = VT
    c("SPLIT")
    V("bfe_u32", t, v(V_L), 4, 1); V("bfe_u32", t + 1, v(V_L), 2, 1); V("lshl_or_b32", t, v(t), 1, v(t + 1))
    V("bfe_u32", t + 1, v(V_L), 3, 1); V("and_b32", t + 2, 3, v(V_L)); V("lshl_or_b32", t + 1, v(t + 1), 2, v(t + 2))
    e("v_cmp_eq_u32 s[4:5], 0, v%d" % t)
    e("v_cmp_eq_u32 vcc, 1, v%d" % t)
    e("s_bitcmp1_b32 %s, 0" % WV)
    csel(T0, 0x11100000, 0x76543210); csel(T1, 0x11100000, 0x43222100); csel(T2, 0x11100000, 0x22111000); csel(T3, 0x19171513, 0x100d0800)
    V("mov_b32", t + 2, T2); V("mov_b32", t + 3, T1); V("cndmask_b32", t + 2, v(t + 2), v(t + 3), "vcc")
    V("mov_b32", t + 3, T0); V("cndmask_b32", t + 2, v(t + 2), v(t + 3), "s[4:5]")
    V("lshlrev_b32", t + 1, 2, v(t + 1)); V("bfe_u32", t + 2, v(t + 2), v(t + 1), 4)
    V("lshlrev_b32", t, 3, v(t)); V("bfe_u32", t, T3, v(t), 8); V("add_u32", t, v(t), v(t + 2))
    V("lshrrev_b32", t + 1, 5, v(V_L)); V("and_b32", t + 2, 31, v(V_L))
    e("s_cselect_b32 %s, 2048, 0" % T3)
    e("s_cselect_b32 %s, 0, -1" % CNT)
    e("s_bitcmp1_b32 %s, 1" % WV)
    csel(T0, L_TA + 14256, L_TA); csel(T1, L_TB + 16896, L_TB); csel(T2, L_KF + 4160 + 64, L_KF + 64)
    sadd(T2, T2, T3)
    V("mul_u32_u24", t, 528, v(t)); V("lshl_add_u32", t + 3, v(t + 1), 4, T0); V("add_u32", PV_GA, v(t), v(t + 3))
    V("mul_u32_u24", t, 528, v(t + 2)); V("lshl_add_u32", t + 3, v(t + 1), 4, T1); V("add_u32", PV_GB, v(t), v(t + 3))
    V("lshl_add_u32", t, v(t + 1), 9, T2); V("lshl_add_u32", PV_GW, v(t + 2), 4, v(t))
    e("s_waitcnt lgkmcnt(0)")
    sadd(TAG, TAG, 1)
    e("s_bitcmp1_b32 %s, 1" % WV)
    e("s_cselect_b32 %s, 0, 16" % T0)
    sshl(T0, DS2, T0); sand(T0, T0, 0xffff0000); sand(T0, T0, CNT)
    e("v_cmp_eq_u32 vcc, 0, v%d" % V_L)
    V("mov_b32", PV_GD, T0)
    sand(T1, WV, 3); sshl(T1, T1, 8); sadd(T1, T1, L_UP + 128)
    V("cndmask_b32", PV_GD, 0, v(PV_GD), "vcc")
    V("lshl_add_u32", PV_US, v(V_L), 1, T1)

def pads():
    t = VT
    c("SPLIT")
    for i in range(4): V("mov_b32", t + 4 + i, 0)
    V("lshrrev_b32", t, 3, v(V_L)); V("mul_u32_u24", t, 1152, v(t)); V("and_b32", t + 1, 7, v(V_L)); V("lshl_add_u32", t, v(t + 1), 4, v(t)); V("add_u32", t, L_UP, v(t))
    V("bfe_u32", t + 1, v(V_L), 2, 1); V("mul_u32_u24", t + 1, 4160, v(t + 1)); V("and_b32", t + 2, 3, v(V_L)); V("lshl_add_u32", t + 1, v(t + 2), 4, v(t + 1)); V("add_u32", t + 1, L_KF, v(t + 1))
    V("lshlrev_b32", t + 2, 4, v(t + 2)); V("add_u32", t + 2, L_FL, v(t + 2))
    for k in range(3): e("ds_write_b128 v%d, %s" % (t + k, vr(t + 4, 4)))

def loader_path():
    c("======== loader waves ========")
    loader_addr()
    e("s_waitcnt lgkmcnt(0)")
    stamp("karg")
    srd(R_X, S_X, 2048 * 1024); srd(R_W, S_W, 512 * 3072)
    scalar_loads()
    issue_chunk(0)
    if OPT["echo"]: stamp("i0")
    srd(R_WS, S_WS, WS_SIZE); srd(R_OUT, S_OUT, 2048 * 2048); srd(R_WO, S_WO, 512 * 1024)
    late = capture(lambda: (precompute_conv(), precompute(), kgen_addr(), pads()))
    def upto(n):
        while n < len(late) and "SPLIT" not in late[n]: n += 1
        SINK[0].extend(late[:n]); del late[:n]
    upto(OPT["npre"])
    if OPT["echo"]: stamp("pre")
    issue_chunk(1)
    if OPT["echo"]: stamp("i1")
    waits = [8, 8, 8, 8, 8, 8, 9, 1]
    for ci in range(8):
        c("loader chunk %d" % ci)
        e("s_waitcnt vmcnt(%d)" % waits[ci])
        if OPT["echo"] and ci in (0, 1, 2): stamp("ld%d" % ci)
        if OPT["ldst"] and ci in (1, 2, 3, 4, 5): e("s_memtime s[%d:%d]" % (80 + 4 * (ci - 1), 81 + 4 * (ci - 1)))
        e("s_barrier")
        if OPT["ldst"] and ci in (1, 2, 3, 4, 5): e("s_memtime s[%d:%d]" % (82 + 4 * (ci - 1), 83 + 4 * (ci - 1)))
        if ci in (0, 7): stamp("ch%d" % ci)
        if ci + 2 < 8: issue_chunk(ci + 2)
        if ci == 5:
            sshl(T5, XQ, 12); sadd(T5, T5, WS_F0)
            V("lshlrev_b32", 42, 7, v(V_L))
            e("s_mov_b32 exec_hi, 0")
            e("buffer_load_dword v%d, v42, %s, %s offen sc1" % (G_PL, R_WS, T5))
            e("s_mov_b32 exec_hi, -1")
            upto(len(late) // 2)
        if ci == 6: upto(9999)
    poll("L_poll0", T5, first_issued=G_PL, nwait=0)
    c("u of this WG's channel pair (transposed by the group)")
    sshl(T0, XQ, 5); sadd(T0, T0, I5); sshl(T0, T0, 13); sadd(T0, T0, T4); sadd(T0, T0, WS_U2)
    e("buffer_load_dwordx4 %s, v%d, %s, %s offen sc1" % (vr(U2R, 4), V_L16, R_WS, T0))
    e("buffer_load_dwordx4 %s, v%d, %s, %s offen offset:1024 sc1" % (vr(U2R + 4, 4), V_L16, R_WS, T0))
    e("s_barrier")
    stamp("K1")
    c("---- S4 kernel K = A-table x B-table (rows duplicated to realise bf16(l)) ----")
    FA, FB, AC = 96, 128, 160
    def rd(s):
        e("ds_read_b128 %s, v%d offset:%d" % (vr(FA + 4 * (s % 8), 4), PV_GA, 32 * s))
        e("ds_read_b128 %s, v%d offset:%d" % (vr(FB + 4 * (s % 8), 4), PV_GB, 32 * s))
    for s in range(7): rd(s)
    e("v_and_b32 v%d, 1, v%d" % (VT, V_L))
    e("v_cmp_eq_u32 vcc, 0, v%d" % VT)
    uw = []
    for h in range(2):
        for p in range(4):
            uw.append("    ds_write_b16 v%d, v%d offset:%d" % (PV_US, U2R + 4 * h + p, 1152 * p + 128 * h))
            uw.append("    ds_write_b16_d16_hi v%d, v%d offset:%d" % (PV_US, U2R + 4 * h + p, 4608 + 1152 * p + 128 * h))
    nw = 0
    for s in range(16):
        e("s_waitcnt lgkmcnt(%d)" % (2 * (min(s + 6, 15) - s) + nw))
        e("v_mfma_f32_32x32x16_bf16 %s, %s, %s, %s" % (vr(AC, 16), vr(FA + 4 * (s % 8), 4), vr(FB + 4 * (s % 8), 4), "0" if s == 0 else vr(AC, 16)))
        if s + 7 < 16: rd(s + 7)
        if s == 10: e("s_waitcnt vmcnt(0)")
        if 10 <= s < 15:
            SINK[0].extend(uw[nw:nw + 3]); nw += 3
    SINK[0].extend(uw[15:])
    nop(11)
    V("add_f32", AC, v(AC), v(PV_GD))
    e("s_bitcmp1_b32 %s, 0" % WV)
    e("s_cbranch_scc0 L_kg_nofix")
    V("cndmask_b32", AC + 4, v(AC + 5), v(AC + 3), "vcc"); V("cndmask_b32", AC + 12, v(AC + 13), v(AC + 11), "vcc")
    lab("L_kg_nofix")
    for i in range(8): V("cvt_pk_bf16_f32", FA + i, v(AC + 2 * i), v(AC + 2 * i + 1))
    e("ds_write_b128 v%d, %s" % (PV_GW, vr(FA, 4)))
    e("ds_write_b128 v%d, %s offset:1024" % (PV_GW, vr(FA + 4, 4)))
    e("s_branch L_gemm_done")

def cmul_multi(lst):
    for d, a, b in lst:
        e("v_pk_mul_f32 %s, %s, %s op_sel:[0,0] op_sel_hi:[1,0]" % (vr(d, 2), vr(a, 2), vr(b, 2)))
    for d, a, b in lst:
        e("v_pk_fma_f32 %s, %s, %s, %s op_sel:[1,1,0] op_sel_hi:[0,1,1] neg_lo:[1,0,0]" % (vr(d, 2), vr(a, 2), vr(b, 2), vr(d, 2)))
def cexp_multi(lst, va, vb):
    for d, Lf, t, cj in lst:
        V("mul_f32", t, fl(Lf), v(va)); V("mul_f32", t + 1, fl(-Lf if cj else Lf), v(vb)); V("fract_f32", t + 1, v(t + 1))
    for d, Lf, t, cj in lst:
        V("exp_f32", t, v(t)); V("cos_f32", d, v(t + 1)); V("sin_f32", d + 1, v(t + 1))
    e("s_nop 0")
    for d, Lf, t, cj in lst:
        e("v_pk_mul_f32 %s, %s, %s op_sel:[0,0] op_sel_hi:[1,0]" % (vr(d, 2), vr(d, 2), vr(t, 2)))

KVA, KVB, KVD = 220, 221, 25
def kgen_b():
    c("---- S4 mode tables: B = exp(z*8j) -> LDS ----")
    va, vb, vdt, ta = KVA, KVB, KVD, VT + 4
    e("s_bitcmp1_b32 %s, 1" % WV)
    e("s_cselect_b32 %s, 0, 16" % T0)
    sshl(T0, LD2, T0); sand(T0, T0, 0xffff0000)
    V("mov_b32", vdt, fl(LOG2E)); V("mul_f32", vdt, T0, v(vdt)); V("exp_f32", vdt, v(vdt))
    for i in range(2): V("lshlrev_b32", V_PAR + i, 16, v(V_PAR + i))
    V("cvt_pk_bf16_f32", vdt, v(vdt), v(vdt)); V("and_b32", vdt, 0xffff0000, v(vdt))
    V("mul_f32", va, v(vdt), v(V_PAR)); V("mul_f32", vb, v(vdt), v(V_PAR + 1))
    V("mul_f32", va, fl(LOG2E), v(va)); V("mul_f32", vb, fl(1.0 / (2 * math.pi)), v(vb))
    P = lambda j: KB + 2 * j
    G = lambda k: KB + 16 + 2 * k
    X = KB + 24
    cv = [KB + 40 + i for i in range(8)]
    n = [0]
    def putb(row, pr):
        r = cv[n[0] % 8]; n[0] += 1
        V("cvt_pk_bf16_f32", r, v(pr), v(pr + 1))
        e("ds_write_b32 v46, v%d offset:%d" % (r, row * 528))
    cexp_multi([(P(1), 8.0, ta, 0), (G(1), 64.0, ta + 2, 0)], va, vb)
    V("mov_b32", cv[7], 0x3f80); e("ds_write_b32 v46, v%d" % cv[7])
    cmul_multi([(P(2), P(1), P(1)), (G(2), G(1), G(1))])
    putb(1, P(1)); putb(8, G(1))
    cmul_multi([(P(3), P(2), P(1)), (P(4), P(2), P(2)), (G(3), G(2), G(1))])
    putb(2, P(2)); putb(16, G(2))
    cmul_multi([(P(5), P(4), P(1)), (P(6), P(4), P(2)), (P(7), P(4), P(3))])
    for r, p in ((3, P(3)), (4, P(4)), (24, G(3)), (5, P(5)), (6, P(6)), (7, P(7))): putb(r, p)
    for k in range(1, 4):
        cmul_multi([(X + 2 * j, P(j), G(k)) for j in range(1, 8)])
        for j in range(1, 8): putb(8 * k + j, X + 2 * j)

def kgen_a():
    va, vb, vdt, ta = KVA, KVB, KVD, VT + 4
    E = lambda j: 224 + 2 * j - 2
    Q = lambda j: 160 + 2 * j
    H = lambda k: 176 + 2 * k
    X = 224
    def puta(row, pr): V("cvt_pk_bf16_f32", KR + row, v(pr), v(pr + 1))
    cexp_multi([(E(1), 1.0, ta, 1), (H(1), 256.0, ta + 2, 1)], va, vb)
    for i in range(2, 6): V("lshlrev_b32", V_PAR + i, 16, v(V_PAR + i))
    V("mul_f32", ta, v(vdt), v(V_PAR + 2)); e("v_mul_f32 v%d, -v%d, v%d" % (ta + 1, vdt, V_PAR + 3))
    V("mov_b32", ta + 2, v(V_PAR + 4)); V("mul_f32", ta + 3, "-1.0", v(V_PAR + 5))
    cmul_multi([(Q(0), ta, ta + 2), (E(2), E(1), E(1)), (H(2), H(1), H(1))])
    cmul_multi([(E(3), E(2), E(1)), (E(4), E(2), E(2)), (H(3), H(2), H(1)), (H(4), H(2), H(2))])
    puta(0, Q(0))
    cmul_multi([(E(5), E(4), E(1)), (E(6), E(4), E(2)), (E(7), E(4), E(3)), (E(8), E(4), E(4)), (H(5), H(4), H(1)), (H(6), H(4), H(2)), (H(7), H(4), H(3))])
    cmul_multi([(Q(j), Q(0), E(j)) for j in range(1, 9)])
    for j in range(1, 8): puta(j, Q(j))
    cmul_multi([(X + 2 * i, H(1), Q(2 * i)) for i in range(5)] + [(X + 10 + 2 * i, H(2), Q(4 * i)) for i in range(3)])
    for i in range(8): puta(8 + i, X + 2 * i)
    cmul_multi([(X + 2 * i, H(3), Q(4 * i)) for i in range(3)] + [(X + 6, H(4), Q(0)), (X + 8, H(4), Q(8)), (X + 10, H(5), Q(0)), (X + 12, H(5), Q(8))])
    for i in range(7): puta(16 + i, X + 2 * i)
    cmul_multi([(X, H(6), Q(0)), (X + 2, H(6), Q(8)), (X + 4, H(7), Q(0)), (X + 6, H(7), Q(8))])
    for i in range(4): puta(23 + i, X + 2 * i)

def compute_path():
    t = VT
    lab("L_compute")
    c("======== compute waves ========")
    e("s_bfe_u32 %s, %s, 0x10001" % (T0, WV)); sadd(T0, T0, C0); sshl(T0, T0, 8); sand(T1, WV, 1); sshl(T1, T1, 7); sadd(T0, T0, T1)
    V("lshl_add_u32", V_PA, v(V_L), 1, T0)
    e("s_waitcnt lgkmcnt(0)")
    stamp("karg")
    if OPT["pfx"]:
        c("touch this WG's 1/256 share of x and Wqkv so that HBM streams them in at once")
        V("lshlrev_b32", 252, 7, v(V_L)); V("min_u32", 253, 47 * 128, v(252))
        sshl(T0, "s2", 13); smul(T1, "s2", 6144)
        V("add_u32", 252, T0, v(252)); V("add_u32", 253, T1, v(253))
        e("s_cmp_eq_u32 %s, 0" % WV)
        e("s_cbranch_scc0 L_pfx1")
        e("global_load_dword v252, v252, %s" % sr(S_X, 2))
        lab("L_pfx1")
        e("s_cmp_eq_u32 %s, 1" % WV)
        e("s_cbranch_scc0 L_pfx2")
        e("global_load_dword v253, v253, %s" % sr(S_W, 2))
        lab("L_pfx2")
    for i, s in enumerate((S_ARE, S_AIM, S_BRE, S_BIM, S_CRE, S_CIM)):
        e("global_load_ushort v%d, v%d, %s" % (V_PAR + i, V_PA, sr(s, 2)))
    scalar_loads()
    srd(R_U, S_U, 2048 * 1024)
    u_coop_loads()
    if OPT["pf"] == 1:
        c("pull this WG's 1/32 share of the code into L2")
        e("s_getpc_b64 s[4:5]")
        lab("L_pc")
        sshl(T0, I5, 3); V("add_u32", t, T0, v(V_L)); V("lshlrev_b32", t, 7, v(t))
        e("v_min_u32 v%d, L_end-L_pc-4, v%d" % (t, t))
        e("s_mov_b64 exec, 0xff")
        e("global_load_dword v47, v%d, s[4:5]" % t)
        e("s_mov_b64 exec, -1")
    srd(R_WS, S_WS, WS_SIZE); srd(R_OUT, S_OUT, 2048 * 2048); srd(R_WO, S_WO, 512 * 1024)
    gemm_read_addr()
    e("s_waitcnt vmcnt(%d) lgkmcnt(0)" % (9 if OPT["pf"] == 1 else 8))
    sadd(TAG, TAG, 1)
    if OPT["echo"]: stamp("par")
    kgen_b()
    stamp("tab")
    pc = [x for x in capture(kgen_a) if not x.strip().startswith(";")]
    if OPT["apre"]:
        e("s_waitcnt vmcnt(%d)" % (5 if OPT["pf"] == 1 else 4))
        SINK[0].extend(pc[:OPT["apre"]]); del pc[:OPT["apre"]]
    if OPT["echo"]: stamp("cp0")
    if "F" in OPT["abl"]: pc = pc[:20]
    if "U" in OPT["abl"]: pc = pc[20:]
    def f0flag():
        sshl(I0, XQ, 5); sadd(I0, I0, I5); sshl(I0, I0, 7); sadd(I0, I0, WS_F0)
        flag_store(I0, 26)
    def fill(n):
        for _ in range(n):
            if pc: SINK[0].append(pc.pop(0))
    def ml(s, first=False):
        cc = lambda k: "0" if first else vr(G_ACC[k], 16)
        return ["v_mfma_f32_32x32x16_bf16 %s, %s, %s, %s" % (vr(G_ACC[0], 16), vr(G_W0F + 4 * s, 4), vr(G_XF + 4 * s, 4), cc(0)),
                "v_mfma_f32_32x32x16_bf16 %s, %s, %s, %s" % (vr(G_ACC[1], 16), vr(G_W1F + 4 * s, 4), vr(G_XF + 4 * s, 4), cc(1)),
                "v_mfma_f32_32x32x16_bf16 %s, %s, %s, %s" % (vr(G_ACC[2], 16), vr(G_XF + 4 * s, 4), vr(G_VF + 4 * s, 4), cc(2))]
    def ilv(ms, rs, nf):
        k = 0
        for i, m in enumerate(ms):
            if "M" not in OPT["abl"] or m.endswith(", 0"): e(m)
            upto = (len(rs) * (i + 1) + len(ms) - 1) // len(ms)
            SINK[0].extend(rs[k:upto]); k = upto
            fill(nf)
    for ci in range(8):
        c("compute chunk %d" % ci)
        hi = (ci % 3) == 2
        ib = 32768 if ci % 3 == 1 else 0
        xa = G_XA + (4 if hi else 0)
        wa = G_WB if hi else G_WA
        if ci == 4: e("s_waitcnt vmcnt(0)")
        e("s_barrier")
        if ci in (0, 7): stamp("ch%d" % ci)
        if ci == 4: f0flag()
        def reads(s):
            if "R" in OPT["abl"]: return
            e("ds_read_b128 %s, v%d offset:%d" % (vr(G_XF + 4 * s, 4), xa + s, ib))
            for k, f in enumerate((G_W0F, G_W1F, G_VF)):
                for tt in range(2):
                    e("ds_read_b64_tr_b16 %s, v%d offset:%d" % (vr(f + 4 * s + 2 * tt, 2), wa + k, ib + (16 * s + 4 * tt) * 128))
        r0, r1 = capture(reads, 0), capture(reads, 1)
        nf = 1 if 0 < ci < 7 else 0
        if ci > 0:
            SINK[0].extend(r0[:3]); ilv(ml(3), r0[3:] + r1[:5], 0); SINK[0].extend(r1[5:])
        else: SINK[0].extend(r0 + r1)
        fill(OPT["f0"] * nf)
        e("s_waitcnt lgkmcnt(7)"); ilv(ml(0, ci == 0), capture(reads, 2), nf)
        e("s_waitcnt lgkmcnt(7)"); ilv(ml(1), capture(reads, 3), nf)
        e("s_waitcnt lgkmcnt(7)")
        if ci < 7:
            if ci == 0: ilv(ml(2), capture(u_coop_perm), 0)
            else: ilv(ml(2), [], OPT["f2"] * nf)
            if ci == 6: fill(999)
            e("s_waitcnt lgkmcnt(0)")
            if ci == 0: u_coop_stores()
    tw = ["    ds_write_b32 v%d, v%d offset:%d" % (PV_TW, KR + r, r * 528) for r in range(27)]
    ilv(ml(2), tw[:8], 0)
    e("s_waitcnt lgkmcnt(8)")
    ilv(ml(3), tw[8:], 0)
    sadd(T1, sQKV, WS_K); sadd(T2, sQKV, WS_K + 65536); sadd(T3, sQKV, WS_V); sadd(T4, sQKV, WS_Q + 65536); sadd(T0, sQKV, WS_Q)
    e("s_waitcnt lgkmcnt(0)")
    e("s_barrier")
    stamp("K1")
    c("GEMM epilogue: publish Q,K,V")
    P = G_XF
    def pk(dst, src):
        for i in range(4): V("cvt_pk_bf16_f32", dst + i, v(src + 2 * i), v(src + 1 + 2 * i))
    def st(r, va, so, off=0):
        e("buffer_store_dwordx4 %s, v%d, %s, %s offen%s sc1" % (vr(r, 4), va, R_WS, so, " offset:%d" % off if off else ""))
    pk(P, G_ACC[0] + 8); st(P, PV_QS, T1)
    pk(P + 4, G_ACC[1] + 8); st(P + 4, PV_QS, T2)
    pk(P + 8, G_ACC[2]); st(P + 8, PV_VS, T3)
    pk(P + 12, G_ACC[2] + 8); st(P + 12, PV_VS, T3, 512)
    for k, so in ((0, T0), (1, T4)):
        for i in range(8): V("mul_f32", G_ACC[k] + i, fl(0.25 * LOG2E), v(G_ACC[k] + i))
        pk(P + 16 + 4 * k, G_ACC[k]); st(P + 16 + 4 * k, PV_QS, so)
    stamp("pub")
    precompute_conv()

C_LO, C_UP = 128, 144
C_A, C_X, C_Y = 160, 176, 192
def signal(tag, cnt_off, last, soff):
    t = VT + 4
    V("mov_b32", t + 2, L_FL + cnt_off); V("mov_b32", t + 3, 1)
    e("s_waitcnt vmcnt(0)")
    e("s_mov_b64 exec, 1")
    e("ds_add_rtn_u32 v%d, v%d, v%d" % (t + 3, t + 2, t + 3))
    e("s_mov_b64 exec, -1")
    e("s_waitcnt lgkmcnt(0)")
    e("v_readfirstlane_b32 %s, v%d" % (T0, t + 3))
    e("s_cmp_eq_u32 %s, %d" % (T0, last))
    e("s_cbranch_scc0 L_sig_%s" % tag)
    flag_store(soff, t)
    lab("L_sig_%s" % tag)

def conv_job(T, s0, nfull, tail, va, vb, sig=None, sig_after=1):
    def rdA(k, sg):
        e("ds_read_b64_tr_b16 %s, v%d offset:%d" % (vr(C_A + 4 * k, 2), va, 128 * sg + 32))
        e("ds_read_b64_tr_b16 %s, v%d offset:%d" % (vr(C_A + 4 * k + 2, 2), va, 128 * sg))
    def rdB(dst, k, sg):
        e("ds_read_b128 %s, v%d offset:%d" % (vr(dst + 4 * k, 4), vb, 112 + 128 * T - 32 * sg))
    def mf(acc, k, b, first=False):
        e("v_mfma_f32_32x32x16_bf16 %s, %s, %s, %s" % (vr(acc, 16), vr(C_A + 4 * k, 4), vr(b + 4 * k, 4), "0" if first else vr(acc, 16)))
    pend = []
    def note(step, n): pend.extend([step] * n)
    def wait(step):
        n = sum(1 for x in pend if x > step)
        e("s_waitcnt lgkmcnt(%d)" % n)
        pend[:] = [x for x in pend if x > step]
    for k in range(4):
        rdA(k, s0 + k); rdB(C_Y, k, s0 + k - 4); rdB(C_X, k, s0 + k); note(k, 4)
    cur, old = C_X, C_Y
    if sig and sig_after == 0: sig(); del pend[:]
    for sec in range(nfull):
        for k in range(4):
            st = 4 * sec + k
            wait(st)
            mf(C_UP, k, old, st == 0)
            if sec + 1 < nfull: rdB(old, k, s0 + st + 4); note(st + 4, 1)
            mf(C_LO, k, cur, st == 0)
            if sec + 1 < nfull or tail: rdA(k, s0 + st + 4); note(st + 4, 2)
        cur, old = old, cur
        if sig and sec + 1 == sig_after: sig(); del pend[:]
    if tail:
        for k in range(4):
            wait(4 * nfull + k)
            mf(C_UP, k, old)
        nop(2)
    else: nop(12)

def z_writes(va, row0):
    for k in range(4): e("ds_write_b128 v%d, %s offset:%d" % (va, vr(C_LO + 4 * k, 4), 144 * row0 + 32 * k))
    nop(8)
    for k in range(4): e("ds_write_b128 v%d, %s offset:%d" % (va, vr(C_UP + 4 * k, 4), 144 * (row0 + 8) + 32 * k))

def conv():
    c("---- causal conv as Toeplitz MFMA, output tiles 0..5 ----")
    e("s_cmp_ge_u32 %s, 4" % WV)
    e("s_cbranch_scc1 L_conv_hi")
    e("s_bitcmp1_b32 %s, 0" % WV)
    e("s_cbranch_scc1 L_conv_2a")
    conv_job(0, 0, 1, True, PV_CA, PV_CB, lambda: signal("a", 16, 3, sF1)); z_writes(PV_ZW, 0)
    e("s_branch L_conv_done")
    lab("L_conv_2a")
    conv_job(4, 0, 3, False, PV_CA, PV_CB, lambda: signal("b", 16, 3, sF1), 2); z_writes(PV_ZW, 32)
    e("s_branch L_conv_done")
    lab("L_conv_hi")
    e("s_bitcmp1_b32 %s, 0" % WV)
    e("s_cbranch_scc1 L_conv_2b")
    conv_job(2, 0, 3, True, PV_CA, PV_CB); z_writes(PV_ZW, 16)
    e("s_branch L_conv_done")
    lab("L_conv_2b")
    conv_job(4, 12, 2, True, PV_CA, PV_CB); z_writes(PV_ZW, 32 + 17)
    lab("L_conv_done")
    stamp("cend")

def kv_tiles(msrc, soff):
    e("s_mov_b32 m0, %s" % msrc)
    e("s_nop 0")
    for i in range(8):
        if i == 4: sadd("m0", "m0", 4096); sadd(soff, soff, 4096)
        e("buffer_load_dwordx4 v%d, %s, %s offen offset:%d sc1 lds" % (V_L16, R_WS, soff, 1024 * (i % 4)))

def kv_early():
    t = VT
    e("s_cmp_ge_u32 %s, 4" % WV)
    e("s_cbranch_scc1 L_kve_done")
    precompute(); precompute_tail()
    e("s_bitcmp1_b32 %s, 0" % WV)
    e("s_cbranch_scc1 L_kve_done")
    e("s_cmp_eq_u32 %s, 0" % WV)
    e("s_cbranch_scc0 L_kve_w2")
    for i in range(4): V("mov_b32", C_A + i, 0)
    V("and_b32", t + 2, 7, v(V_L)); V("mul_u32_u24", t + 2, ZS, v(t + 2)); V("bfe_u32", t + 3, v(V_L), 3, 1); V("mul_u32_u24", t + 3, 49 * 144, v(t + 3))
    V("add_u32", t + 2, v(t + 2), v(t + 3)); V("add_u32", t + 2, L_Z + 112, v(t + 2))
    e("ds_write_b128 v%d, %s" % (t + 2, vr(C_A, 4)))
    e("s_mov_b32 %s, 0" % T5); sadd(T3, sHB, WS_K)
    e("s_branch L_kve_go")
    lab("L_kve_w2")
    e("s_mov_b32 %s, 8192" % T5); sadd(T3, sHB, WS_V)
    lab("L_kve_go")
    poll("L_poll1", sF1P, t=VT + 4)
    stamp("poll1")
    sshl(T0, JJ, 13); sadd(T0, T0, T3)
    kv_tiles(T5, T0)
    if not OPT["b1late"]:
        sadd(T0, JJ, 1); sand(T0, T0, 7); sshl(T0, T0, 13); sadd(T0, T0, T3); sadd(T5, T5, BLK)
        kv_tiles(T5, T0)
    lab("L_kve_done")

A_Q = [64, 68]
A_S = [72, 88]
A_O = [104, 120]
A_KF = [136, 140]
A_VA = [144, 148]
A_VB = [152, 156]
A_IDX = 160
A_F = 164
A_NM = 72 + 16
WOR = 192
Y_R = 32
def conv_epilogue():
    c("y[t] = sum_p Z_p[t-p]")
    e("s_waitcnt lgkmcnt(0)")
    e("s_barrier")
    stamp("zbar")
    e("buffer_load_dwordx4 %s, v%d, %s, %s offen sc1" % (vr(A_Q[0], 4), V_L16, R_WS, sQL))
    e("buffer_load_dwordx4 %s, v%d, %s, %s offen offset:1024 sc1" % (vr(A_Q[1], 4), V_L16, R_WS, sQL))
    order = [(0, 0), (0, 4 * ZS), (288, 0), (288, 4 * ZS), (0, 0), (17 * 144, 0), (0, 4 * ZS), (17 * 144, 4 * ZS)]
    def rd(n):
        if n == 4:
            for p in range(4): V("add_u32", PV_ZR + p, T0, v(PV_ZR + p))
        for p in range(4): e("ds_read_b32 v%d, v%d offset:%d" % (Y_R + 4 * n + p, PV_ZR + p, sum(order[n])))
    rd(0); rd(1); rd(2)
    smul(T0, WV, 288); e("s_sub_u32 %s, 4608, %s" % (T0, T0))
    e("s_cmp_eq_u32 %s, 6" % WV)
    e("s_cbranch_scc0 L_nocarry")
    c("carry: last rows of tile 5 (both partials) feed y[1536..1538], finished in the tail")
    t = VT
    for i in range(4): V("mov_b32", PV_CY + i, 0)
    V("and_b32", t, 7, v(V_L)); V("mul_u32_u24", t, ZS, v(t)); V("bfe_u32", t + 1, v(V_L), 3, 1); V("mul_u32_u24", t + 1, 17 * 144, v(t + 1))
    V("add_u32", t, v(t), v(t + 1)); V("add_u32", t, L_Z + 48 * 144 + 112, v(t))
    e("s_mov_b64 exec, 0xffff")
    e("ds_read_b128 %s, v%d" % (vr(PV_CY, 4), t))
    e("s_mov_b64 exec, -1")
    e("s_waitcnt lgkmcnt(0)")
    lab("L_nocarry")
    V("mov_b32", A_IDX, 0xdddddddd)
    V("and_b32", VT, 31, v(V_L)); e("v_cmp_eq_u32 vcc, 16, v%d" % VT); V("mov_b32", VT, 0x3f803f80)
    e("s_mov_b32 s4, 0xffff"); e("s_mov_b32 s5, 0xffff")
    zs = ["    v_cndmask_b32 v%d, 0, v%d, vcc" % (A_VA[0] + i, VT) for i in range(16)]
    zs += ["    v_mov_b32 v%d, 0" % (A_O[0] + i) for i in list(range(9)) + list(range(16, 25))]
    zs += ["    v_mov_b32 v%d, 0" % (A_O[0] + i) for i in list(range(9, 16)) + list(range(25, 32))]
    for n in range(8):
        r = Y_R + 4 * n
        SINK[0].extend(zs[6 * n:6 * n + 6])
        e("s_waitcnt lgkmcnt(%d)" % (4 * (min(n + 2, 7) - n)))
        if n + 3 < 8: rd(n + 3)
        V("add_f32", r, v(r), v(r + 1)); V("add_f32", r + 2, v(r + 2), v(r + 3)); V("add_f32", r, v(r), v(r + 2))
        if n in (1, 3): V("cvt_pk_bf16_f32", V_Y + n // 2, v(r - 4), v(r))
        if n in (5, 7): V("add_f32", r, v(r), v(r - 4))
    V("cvt_pk_bf16_f32", V_Y + 2, v(Y_R + 20), v(Y_R + 28))

def kv_late():
    t = VT
    e("s_cmp_ge_u32 %s, 4" % WV)
    if OPT["b1late"]:
        e("s_cbranch_scc1 L_kvl")
        e("s_waitcnt vmcnt(0)")
        e("s_barrier")
        stamp("S")
        e("s_branch L_kvl_done")
        lab("L_kvl")
    else: e("s_cbranch_scc0 L_kvl_done")
    sand(T1, WV, 3); sshl(T0, T1, 2); sadd(T0, T0, L_FL)
    V("mov_b32", t, T0); V("mov_b32", t + 1, 2); V("mov_b32", t + 2, 3); V("mov_b32", t + 3, 1)
    sshl(T1, T1, 11); sadd(T0, sHB, T1)
    for b in range(1 if OPT["b1late"] else 2, 8):
        sadd(T2, JJ, b); sand(T2, T2, 7); sshl(T2, T2, 13); sadd(T2, T2, T0)
        sadd("m0", T1, b * BLK); sadd(T3, T2, WS_K)
        e("buffer_load_dwordx4 v%d, %s, %s offen sc1 lds" % (V_L16, R_WS, T3))
        sadd(T4, T2, WS_V)
        e("buffer_load_dwordx4 v%d, %s, %s offen offset:1024 sc1 lds" % (V_L16, R_WS, T3))
        sadd("m0", T1, b * BLK + 8192); e("s_nop 0")
        e("buffer_load_dwordx4 v%d, %s, %s offen sc1 lds" % (V_L16, R_WS, T4))
        e("buffer_load_dwordx4 v%d, %s, %s offen offset:1024 sc1 lds" % (V_L16, R_WS, T4))
        if b == 1:
            e("s_waitcnt vmcnt(4)")
            e("s_barrier")
            stamp("S")
        if b == 2 and OPT["b1late"]:
            e("s_waitcnt vmcnt(4)")
            e("ds_write_b32 v%d, v%d" % (t, t + 3))
        if b == 5:
            e("s_waitcnt vmcnt(8)")
            e("ds_write_b32 v%d, v%d" % (t, t + 1))
    precompute_tail()
    e("s_waitcnt vmcnt(0) lgkmcnt(0)")
    e("ds_write_b32 v%d, v%d" % (t, t + 2))
    lab("L_kvl_done")

def kv_check(stage):
    t = VT + 4
    lb = "L_kvchk%d" % stage
    V("mov_b32", t, L_FL)
    e("s_mov_b32 %s, 0" % T3)
    lab(lb)
    e("ds_read_b128 %s, v%d" % (vr(t + 2, 4), t))
    sadd(T3, T3, 1)
    e("s_waitcnt lgkmcnt(0)")
    V("min_u32", t + 2, v(t + 2), v(t + 3)); V("min3_u32", t + 2, v(t + 2), v(t + 4), v(t + 5))
    e("s_cmp_gt_u32 %s, 0x40000" % T3)
    e("s_cbranch_scc1 %s_done" % lb)
    e("v_readfirstlane_b32 %s, v%d" % (T4, t + 2))
    e("s_cmp_lt_u32 %s, %d" % (T4, stage))
    e("s_cbranch_scc1 %s" % lb)
    lab(lb + "_done")

def attn_main():
    c("---- attention main loop: wave = 2 q-tiles x 32 key tiles (parity w>>2), fully unrolled ----")
    base = [0]
    koff = lambda i: (i // 4 - base[0]) * BLK + (i % 4) * 2048
    def rdK(i):
        if i < 32: e("ds_read_b128 %s, v%d offset:%d" % (vr(A_KF[i & 1], 4), PV_KA, koff(i)))
    def rdV(i):
        if i < 32:
            e("s_mov_b64 exec, s[4:5]")
            e("ds_read_b128 %s, v%d offset:%d" % (vr(A_VA[i & 1], 4), PV_V0, koff(i)))
            e("ds_read_b128 %s, v%d offset:%d" % (vr(A_VB[i & 1], 4), PV_V0, koff(i) + 512))
            e("s_mov_b64 exec, -1")
    def qk(i, q):
        if i < 32: e("v_mfma_f32_32x32x16_bf16 %s, %s, %s, 0" % (vr(A_S[q], 16), vr(A_KF[i & 1], 4), vr(A_Q[q], 4)))
    def pv(i, q, half):
        if i < 0: return
        a = (A_VA if half == 0 else A_VB)[i & 1]
        e("v_smfmac_f32_32x32x32_bf16 %s, %s, %s, v%d" % (vr(A_O[q], 16), vr(a, 4), vr(A_S[q] + 8 * half, 8), A_IDX))
    def ex(q, lo, hi):
        for k in range(lo, hi): e("v_exp_f32 v%d, v%d" % (A_S[q] + k, A_S[q] + k))
    rdK(0); rdK(1); rdV(0)
    e("s_cmp_ge_u32 %s, 4" % WV)
    e("s_cbranch_scc1 L_prio1")
    e("s_setprio 2")
    e("s_branch L_prio_done")
    lab("L_prio1")
    e("s_setprio 1")
    lab("L_prio_done")
    e("s_waitcnt lgkmcnt(3)")
    qk(0, 0)
    nop(12)
    ytiles = OPT["yt"]; wtiles = OPT["wt"]
    for i in range(32):
        c("key tile %d" % i)
        if i in (OPT["flip1"], OPT["flip"], OPT["mid"]):
            if i == OPT["mid"]: e("s_barrier")
            e("s_cmp_ge_u32 %s, 4" % WV)
            e("s_cbranch_scc1 L_noflip%d" % i)
            e("s_setprio %d" % (2 if i == OPT["mid"] else 0))
            lab("L_noflip%d" % i)
        if i == 2 and OPT["b1late"]: kv_check(1)
        if i == 6: kv_check(2)
        if i == 14: kv_check(3)
        ex(0, 0, 2); pv(i - 1, 1, 1); ex(0, 2, 5); qk(i, 1)
        e("s_waitcnt lgkmcnt(0)")
        if i in (11, 23):
            for r in (PV_KA, PV_V0): V("add_u32", r, 3 * BLK, v(r))
            base[0] += 3
        rdK(i + 2); rdV(i + 1)
        if i in ytiles:
            n = ytiles.index(i)
            e("buffer_store_dword v%d, v%d, %s, %s offen %s" % (V_Y + n, PV_YA, R_OUT, sYS2 if n == 2 else sYS, OPT["ypol"]))
            if n == 0: sadd(sYS, sYS, 0x20000)
            if n == 2: sadd(sYS2, sYS2, 0x100000)
        if i in wtiles:
            sadd("m0", W10, L_WO + 8192 * wtiles.index(i))
            if wtiles.index(i): sadd(sWO, sWO, 0x10000)
            else: e("s_nop 0")
            e("buffer_load_dwordx4 v%d, %s, %s offen lds" % (PV_WA, R_WO, sWO))
        ex(0, 5, 11); pv(i, 0, 0); ex(0, 11, 16)
        ex(1, 0, 2); pv(i, 0, 1); ex(1, 2, 5); qk(i + 1, 0)
        ex(1, 5, 11); pv(i, 1, 0); ex(1, 11, 16)
    e("s_nop 1")
    pv(31, 1, 1)
    e("s_setprio 0")

def combine():
    c("combine the two key-parity halves through LDS")
    e("s_waitcnt vmcnt(0)")
    e("s_barrier")
    stamp("attn")
    e("s_cmp_ge_u32 %s, 4" % WV)
    e("s_cbranch_scc1 L_cmb1")
    for kp in range(2):
        if kp: lab("L_cmb1")
        o = A_O[1 - kp]
        if kp == 0: nop(8)
        for k in range(3): e("ds_write_b128 v%d, %s offset:%d" % (PV_CW, vr(o + 4 * k, 4), 1024 * k))
        e("s_waitcnt lgkmcnt(0)")
        e("s_barrier")
        for k in range(3): e("ds_read_b128 %s, v%d offset:%d" % (vr(A_F + 4 * k, 4), PV_CR, 1024 * k))
        if kp:
            for i in range(4): V("mov_b32", A_Q[0] + i, v(A_Q[1] + i))
        e("s_waitcnt lgkmcnt(0)")
        for i in (8, 0, 1, 2, 3, 4, 5, 6, 7): V("add_f32", A_F + i, v(A_F + i), v(A_O[kp] + i))
        if kp == 0: e("s_branch L_cmb_done")
    lab("L_cmb_done")

def attn_check_and_slow():
    t = VT
    V("mov_b32", t + 1, v(A_F + 8))
    e("s_nop 1")
    e("v_permlane32_swap_b32 v%d, v%d" % (A_F + 8, t + 1))
    attn_publish()
    c("---- softmax guard: the fast path used shift 0; redo with the true row max if that was unsafe ----")
    V("mul_f32", t, 0, v(A_F))
    for i in range(1, 8): V("fma_f32", t, v(A_F + i), 0, v(t))
    e("v_cmp_nle_f32 vcc, %s, v%d" % (fl(2.0 ** -40), A_F + 8))
    V("mov_b32", t + 1, fl(2.0 ** 100))
    e("v_cmp_nle_f32 s[4:5], v%d, v%d" % (A_F + 8, t + 1))
    e("v_cmp_neq_f32 s[6:7], 0, v%d" % t)
    e("s_or_b64 vcc, vcc, s[4:5]")
    e("s_or_b64 vcc, vcc, s[6:7]")
    if OPT["forceslow"]: e("s_mov_b64 vcc, -1")
    e("s_cmp_lg_u64 vcc, 0")
    e("s_cbranch_scc1 L_slow")
    lab("L_attn_ok")

def slow_path():
    t = VT
    lab("L_slow")
    S_, KF, VA, VB = A_S[0], A_KF[0], A_VA[0], A_VB[0]
    c("slow path pass 1: true row max (K from the workspace)")
    sadd(T0, sHB, WS_K)
    V("mov_b32", t, 0xff800000)
    e("s_mov_b32 %s, 0" % CNT)
    lab("L_slow1")
    e("buffer_load_dwordx4 %s, v%d, %s, %s offen sc1" % (vr(KF, 4), V_L16, R_WS, T0))
    sadd(T0, T0, 1024)
    e("s_waitcnt vmcnt(0)")
    e("v_mfma_f32_32x32x16_bf16 %s, %s, %s, 0" % (vr(S_, 16), vr(KF, 4), vr(A_Q[0], 4)))
    nop(12)
    for k in range(0, 16, 2): V("max3_f32", t, v(t), v(S_ + k), v(S_ + k + 1))
    sadd(CNT, CNT, 1)
    e("s_cmp_lt_u32 %s, 64" % CNT)
    e("s_cbranch_scc1 L_slow1")
    V("mov_b32", t + 1, v(t))
    e("s_nop 1")
    e("v_permlane32_swap_b32 v%d, v%d" % (t, t + 1))
    e("s_nop 1")
    V("max_f32", t, v(t), v(t + 1))
    for k in range(16): V("mul_f32", A_NM + k, "-1.0", v(t))
    c("slow path pass 2")
    for k in range(16): V("mov_b32", A_F + k, 0)
    for k in range(4):
        V("mov_b32", VA + k, 0x3f803f80); V("mov_b32", VB + k, 0x3f803f80)
    V("and_b32", t, 15, v(V_L)); V("lshrrev_b32", t + 1, 5, v(V_L)); V("lshlrev_b32", t, 4, v(t)); V("lshl_add_u32", t, v(t + 1), 8, v(t))
    sadd(T0, sHB, WS_K); sadd(T1, sHB, WS_V)
    e("s_mov_b32 %s, 0" % CNT)
    lab("L_slow2")
    e("buffer_load_dwordx4 %s, v%d, %s, %s offen sc1" % (vr(KF, 4), V_L16, R_WS, T0))
    e("s_mov_b32 exec_lo, 0xffff")
    e("s_mov_b32 exec_hi, 0xffff")
    e("buffer_load_dwordx4 %s, v%d, %s, %s offen sc1" % (vr(VA, 4), t, R_WS, T1))
    e("buffer_load_dwordx4 %s, v%d, %s, %s offen offset:512 sc1" % (vr(VB, 4), t, R_WS, T1))
    e("s_mov_b64 exec, -1")
    sadd(T0, T0, 1024); sadd(T1, T1, 1024)
    e("s_waitcnt vmcnt(0)")
    e("v_mfma_f32_32x32x16_bf16 %s, %s, %s, %s" % (vr(S_, 16), vr(KF, 4), vr(A_Q[0], 4), vr(A_NM, 16)))
    nop(12)
    for k in range(16): e("v_exp_f32 v%d, v%d" % (S_ + k, S_ + k))
    e("s_nop 1")
    e("v_smfmac_f32_32x32x32_bf16 %s, %s, %s, v%d" % (vr(A_F, 16), vr(VA, 4), vr(S_, 8), A_IDX))
    e("v_smfmac_f32_32x32x32_bf16 %s, %s, %s, v%d" % (vr(A_F, 16), vr(VB, 4), vr(S_ + 8, 8), A_IDX))
    sadd(CNT, CNT, 1)
    e("s_cmp_lt_u32 %s, 64" % CNT)
    nop(4)
    e("s_cbranch_scc1 L_slow2")
    nop(12)
    attn_publish()
    e("s_branch L_attn_ok")

def attn_publish():
    t = VT
    c("normalise and publish O (q-tile 2*(w&3) + (w>>2))")
    V("rcp_f32", t, v(A_F + 8))
    e("s_nop 0")
    for i in range(8): V("mul_f32", A_F + i, v(A_F + i), v(t))
    P = 32
    for i in range(4): V("cvt_pk_bf16_f32", P + i, v(A_F + 2 * i), v(A_F + 2 * i + 1))
    e("s_nop 1")
    e("v_permlane32_swap_b32 v%d, v%d" % (P, P + 2))
    e("v_permlane32_swap_b32 v%d, v%d" % (P + 1, P + 3))
    e("buffer_store_dwordx4 %s, v%d, %s, %s offen sc1" % (vr(P, 4), V_L16, R_WS, sOST))

P_W, P_ACC, P_OF = 96, 32, 48
def tail():
    t = VT
    e("s_cmp_ge_u32 %s, 4" % WV)
    e("s_cbranch_scc1 L_tail_hi")
    c("==== waves 0..3: Wo fragments, poll, O tiles, output projection ====")
    for hh in range(32):
        for tt in range(2):
            e("ds_read_b64_tr_b16 %s, v%d offset:%d" % (vr(P_W + 4 * hh + 2 * tt, 2), PV_WF, L_WO + hh * 2048 + tt * 512))
    signal("c", 20, 7, sF2)
    e("s_barrier")
    stamp("W")
    V("mov_b32", t + 2, L_FL + 24); V("mov_b32", t + 3, 1)
    e("s_cmp_eq_u32 %s, 0" % WV)
    e("s_cbranch_scc0 L_spin2")
    poll("L_poll2", sF2P)
    e("ds_write_b32 v%d, v%d" % (t + 2, t + 3))
    e("s_branch L_seen2")
    lab("L_spin2")
    e("s_mov_b32 %s, 0" % CNT)
    lab("L_spin2l")
    e("ds_read_b32 v%d, v%d" % (t + 3, t + 2))
    sadd(CNT, CNT, 1)
    e("s_waitcnt lgkmcnt(0)")
    e("v_readfirstlane_b32 %s, v%d" % (T0, t + 3))
    e("s_cmp_gt_u32 %s, 0x200000" % CNT)
    e("s_cbranch_scc1 L_seen2")
    e("s_cmp_eq_u32 %s, 0" % T0)
    e("s_cbranch_scc1 L_spin2l")
    lab("L_seen2")
    stamp("poll2")
    sadd("m0", W10, L_O); e("s_nop 0")
    for n in range(16):
        e("buffer_load_dwordx4 v%d, %s, %s offen sc1 lds" % (V_L16, R_WS, sOLD))
        if n < 15:
            sadd("m0", "m0", 4096); sadd(sOLD, sOLD, 0x20000)
    e("s_barrier")
    def mm(st):
        for k in range(4):
            hh = 4 * st + k
            e("v_mfma_f32_32x32x16_bf16 %s, %s, %s, %s" % (vr(P_ACC, 16), vr(P_W + 4 * hh, 4), vr(P_OF + 16 * (st & 1) + 4 * k, 4), "0" if hh == 0 else vr(P_ACC, 16)))
    for st in range(8):
        if st % 2 == 0:
            e("s_waitcnt vmcnt(%d)" % (12 - 2 * st))
            e("s_barrier")
            if st == 0: stamp("O1")
        for k in range(4): e("ds_read_b128 %s, v%d offset:%d" % (vr(P_OF + 16 * (st & 1) + 4 * k, 4), PV_OR, (4 * st + k) * 2048))
        if st > 0:
            e("s_waitcnt lgkmcnt(4)")
            mm(st - 1)
    e("s_waitcnt lgkmcnt(0)")
    mm(7)
    nop(12)
    for i in range(8): V("cvt_pk_bf16_f32", P_OF + i, v(P_ACC + 2 * i), v(P_ACC + 2 * i + 1))
    e("ds_write_b128 v%d, %s" % (PV_OW, vr(P_OF, 4)))
    e("ds_write_b128 v%d, %s offset:16" % (PV_OW, vr(P_OF + 4, 4)))
    c("WG 0 advances the epoch word (every WG has read it: all of them have published)")
    e("s_cmp_eq_u32 s2, 0")
    e("s_cbranch_scc0 L_fin")
    e("s_cmp_eq_u32 %s, 0" % WV)
    e("s_cbranch_scc0 L_fin")
    flag_store("0")
    e("s_branch L_fin")
    lab("L_tail_hi")
    c("==== waves 4..7: causal conv of output tiles 6,7 (two lag halves per channel) ====")
    for p in range(4): V("add_u32", PV_ZR + p, (L_Z2 - L_Z - 4608 - 1152 + p * (ZS2 - ZS)) & 0xffffffff, v(PV_ZR + p))
    def sigw(tag):
        signal(tag, 20, 7, sF2)
        e("s_barrier")
    e("s_bitcmp1_b32 %s, 0" % WV)
    e("s_cbranch_scc1 L_ct_b")
    conv_job(6, 0, 4, False, PV_CA, PV_CB, lambda: sigw("d"), OPT["tsig"])
    e("s_branch L_ct_done")
    lab("L_ct_b")
    conv_job(6, 16, 3, True, PV_CA, PV_CB, lambda: sigw("e"), OPT["tsig"])
    lab("L_ct_done")
    z_writes(PV_ZW2, 0)
    e("s_cmp_eq_u32 %s, 6" % WV)
    e("s_cbranch_scc0 L_nocarry2")
    V("bfe_u32", t + 2, v(V_L), 2, 1); V("mul_u32_u24", t + 2, 8 * ZS2, v(t + 2)); V("bfe_u32", t + 1, v(V_L), 3, 1); V("lshlrev_b32", t + 1, 2, v(t + 1))
    V("and_b32", t + 3, 3, v(V_L)); V("add_u32", t + 1, v(t + 1), v(t + 3)); V("mul_u32_u24", t + 1, ZS2, v(t + 1))
    V("add_u32", t + 2, v(t + 2), v(t + 1)); V("add_u32", t + 2, L_Z2 + 112, v(t + 2))
    e("s_mov_b64 exec, 0xffff")
    e("ds_write_b128 v%d, %s" % (t + 2, vr(PV_CY, 4)))
    e("s_mov_b64 exec, -1")
    lab("L_nocarry2")
    e("s_waitcnt lgkmcnt(0)")
    stamp("cend2")
    e("s_barrier")
    c("y[1536 + 64w' + l] for w' = w-4 and w")
    order = [(g, cl, st) for g in range(2) for cl in range(2) for st in range(2)]
    def rd(n):
        g, cl, st = order[n]
        for p in range(4): e("ds_read_b32 v%d, v%d offset:%d" % (Y_R + 4 * n + p, PV_ZR + p, cl * 8 * ZS2 + st * 4 * ZS2 + g * 1152))
    rd(0); rd(1); rd(2)
    for n in range(8):
        r = Y_R + 4 * n
        e("s_waitcnt lgkmcnt(%d)" % (4 * (min(n + 2, 7) - n)))
        if n + 3 < 8: rd(n + 3)
        V("add_f32", r, v(r), v(r + 1)); V("add_f32", r + 2, v(r + 2), v(r + 3)); V("add_f32", r, v(r), v(r + 2))
        if n % 2: V("add_f32", r, v(r), v(r - 4))
        if n % 4 == 3: V("cvt_pk_bf16_f32", V_Y + n // 4, v(r - 8), v(r))
    S("sub_u32", sYS, sYS2, 0x80000)
    for st in range(4):
        if st == OPT["yat"]:
            e("buffer_store_dword v%d, v%d, %s, %s offen" % (V_Y, PV_YA, R_OUT, sYS))
            e("buffer_store_dword v%d, v%d, %s, %s offen" % (V_Y + 1, PV_YA, R_OUT, sYS2))
        e("s_barrier")
    if OPT["yat"] == 4:
        e("buffer_store_dword v%d, v%d, %s, %s offen" % (V_Y, PV_YA, R_OUT, sYS))
        e("buffer_store_dword v%d, v%d, %s, %s offen" % (V_Y + 1, PV_YA, R_OUT, sYS2))
    lab("L_fin")
    e("s_waitcnt lgkmcnt(0)")
    e("s_barrier")
    stamp("opdone")
    e("ds_read_b128 v[32:35], v%d" % PV_FR)
    e("s_waitcnt lgkmcnt(0)")
    e("buffer_store_dwordx4 v[32:35], v%d, %s, %s offen %s" % (PV_FS, R_OUT, sOUT, OPT["opol"]))

def dump_lds(base, nbytes, wsoff):
    t = VT + 10
    e("s_waitcnt lgkmcnt(0)"); e("s_barrier")
    V("lshlrev_b32", t, 4, v(0))
    sshl(T0, "s2", 18); sadd(T0, T0, WS_DBG + wsoff)
    for o in range(0, nbytes, 8192):
        V("add_u32", t + 1, base + o, v(t))
        e("ds_read_b128 %s, v%d" % (vr(t + 2, 4), t + 1))
        e("s_waitcnt lgkmcnt(0)")
        e("buffer_store_dwordx4 %s, v%d, %s, %s offen" % (vr(t + 2, 4), t, R_WS, T0))
        sadd(T0, T0, 8192)
        e("s_waitcnt vmcnt(0)")
    e("s_barrier")

def write_stamps():
    t = VT
    if OPT["ldst"]:
        e("s_waitcnt vmcnt(0) lgkmcnt(0)")
        sshl(T0, "s2", 3); sadd(T0, T0, WV); sshl(T0, T0, 7); sadd(T0, T0, WS_ST)
        e("s_mov_b64 exec, 1")
        V("mov_b32", t, 0)
        for i in range(10):
            V("mov_b32", t + 1, sr(80 + 2 * i))
            e("buffer_store_dword v%d, v%d, %s, %s offen offset:%d" % (t + 1, t, R_WS, T0, 4 * i))
            e("s_nop 1")
        e("s_mov_b64 exec, -1")
    if OPT["echo"]:
        a, b, m = OPT["echo"].split(",")
        e("s_cmp_eq_u32 %s, %d" % (WV, OPT["echowv"])); e("s_cbranch_scc0 L_end")
        e("s_cmp_eq_u32 s2, %d" % OPT["echowg"]); e("s_cbranch_scc0 L_end")
        e("s_waitcnt vmcnt(0)")
        stamp("end")
        if a == "start": e("s_mov_b32 s80, s100")
        e("s_sub_u32 s82, s81, s80"); e("s_mul_i32 s82, s82, %s" % m); e("s_min_u32 s82, s82, 20000")
        e("s_memrealtime s[84:85]"); e("s_waitcnt lgkmcnt(0)")
        lab("L_echo")
        e("s_memrealtime s[86:87]"); e("s_waitcnt lgkmcnt(0)")
        e("s_sub_u32 s83, s86, s84"); e("s_cmp_lt_u32 s83, s82"); e("s_cbranch_scc1 L_echo")
    if OPT["stamps"]:
        e("s_waitcnt vmcnt(0)")
        stamp("end")
        sshl(T0, "s2", 3); sadd(T0, T0, WV); sshl(T0, T0, 7); sadd(T0, T0, WS_ST)
        e("s_mov_b64 exec, 1")
        V("mov_b32", t, 0)
        for i in range(len(stamp_names)):
            V("mov_b32", t + 1, sr(S_ST + i))
            e("buffer_store_dword v%d, v%d, %s, %s offen offset:%d" % (t + 1, t, R_WS, T0, 4 * i))
            e("s_nop 1")
        V("mov_b32", t + 1, "s100")
        e("buffer_store_dword v%d, v%d, %s, %s offen offset:124" % (t + 1, t, R_WS, T0))
        e("s_memrealtime s[98:99]")
        e("s_waitcnt lgkmcnt(0)")
        V("mov_b32", t + 2, "s98")
        e("buffer_store_dword v%d, v%d, %s, %s offen offset:120" % (t + 2, t, R_WS, T0))
        e("s_mov_b64 exec, -1")
        L.insert(0, "; stamps: " + ",".join(stamp_names))
    if OPT["dbgspan"]:
        e("s_cmp_eq_u32 %s, 0" % WV); e("s_cbranch_scc0 L_end")
        sand(T0, "s2", 63); e("s_cmp_eq_u32 %s, 5" % T0); e("s_cbranch_scc0 L_end")
        e("s_waitcnt vmcnt(0)")
        e("s_memrealtime s[96:97]"); e("s_memtime s[94:95]")
        srd(R_X, S_DBG, 256)
        sshr(T0, "s2", 6); sshl(T0, T0, 4)
        e("s_waitcnt lgkmcnt(0)")
        e("s_mov_b64 exec, 1")
        V("mov_b32", t, 0)
        e("s_sub_u32 s94, s94, s98"); e("s_sub_u32 s96, s96, s100")
        V("mov_b32", t + 2, "s100"); V("mov_b32", t + 3, "s96"); V("mov_b32", t + 4, "s94"); V("mov_b32", t + 5, 0)
        e("buffer_store_dwordx4 %s, v%d, %s, %s offen" % (vr(t + 2, 4), t, R_X, T0))

def main():
    header()
    setup()
    loader_path()
    compute_path()
    lab("L_gemm_done")
    e("s_waitcnt lgkmcnt(0)")
    e("s_barrier")
    stamp("K2")
    if OPT["dump"]: dump_lds(L_KF, 24576, 0)
    conv()
    kv_early()
    conv_epilogue()
    if not OPT["b1late"]:
        e("s_waitcnt vmcnt(0)")
        e("s_barrier")
        stamp("S")
    kv_late()
    attn_main()
    combine()
    attn_check_and_slow()
    tail()
    write_stamps()
    e("s_endpgm")
    slow_path()
    footer(256)
    open(sys.argv[1], "w").write("\n".join(L) + "\n")

main()
```

```python
import sys, struct, math

NAME = "concat_heads__ssm_conv_s4__softmax_full_mha__prompt"
OPT = dict(ldst=0, ypol="", opol="", abl="", echo="", echowg=0, echowv=0, stamps=0, dump=0, forceslow=0, dbgspan=0, flip1=14, mid=16, flip=30, pf=2, apre=45, f0=5, f2=2, umode=0, uat=0, ust2=1, lsp=0, fline=0, psleep=0, ppol="sc1", gprio=0, pfx=0, tsig=0, b1late=0, rot=6, yat=0, npre=999,
           yt=[15, 20, 25], wt=[17, 18, 19, 21, 22, 23, 24, 26])
for a in sys.argv[2:]:
    k, v = a.split("=")
    OPT[k] = int(v) if v.lstrip("-").isdigit() else v

L = []
SINK = [L]
def e(s): SINK[0].append("    " + s)
def lab(s): SINK[0].append(s + ":")
def c(s): SINK[0].append("    ; " + s)
def f2u(x): return struct.unpack("<I", struct.pack("<f", x))[0]
def fl(x): return "0x%08x" % f2u(x)
def vr(a, n=1): return "v%d" % a if n == 1 else "v[%d:%d]" % (a, a + n - 1)
def sr(a, n=1): return "s%d" % a if n == 1 else "s[%d:%d]" % (a, a + n - 1)
def nop(n):
    while n > 0:
        k = min(n, 16); e("s_nop %d" % (k - 1)); n -= k
def capture(fn, *a):
    old = SINK[0]; out = []; SINK[0] = out; fn(*a); SINK[0] = old; return out

WS_F1 = 0x1000
WS_F2 = 0xa000
WS_F0 = 0x20000
WS_Q, WS_K, WS_V, WS_O, WS_U2 = 0x100000, 0x300000, 0x500000, 0x700000, 0x900000
WS_ST = 0xc00000
WS_DBG = 0x1000000
WS_SIZE = 0x10000000
LDS_TOTAL = 163840
BLK = 16384
L_TB = 98304
L_TA = 0
L_FL = 146240
L_KF = 146304
L_UP = 154624
ZS = 9504
L_Z = 70208
ZS2 = 2448
L_Z2 = 0
L_WO = 0
L_O = 65536
L_SC = 65536
L_OT = 131072
S_U, S_ARE, S_AIM, S_BRE, S_BIM, S_CRE, S_CIM, S_LDT = 8, 10, 12, 14, 16, 18, 20, 22
S_DSK, S_X, S_W, S_WO, S_OUT, S_DBG, S_WS = 24, 26, 28, 30, 32, 34, 36
R_X, R_W, R_WS, R_U, R_OUT, R_WO = "s[40:43]", "s[44:47]", "s[48:51]", "s[52:55]", "s[56:59]", "s[60:63]"
XQ, I5, WV, TAG, LD2, DS2, HH, JJ, C0 = "s64", "s65", "s66", "s67", "s68", "s69", "s70", "s71", "s72"
T0, T1, T2, T3, T4, T5, CNT = "s73", "s74", "s75", "s76", "s77", "s78", "s79"
CQ, CL, W10, GT, GQ = "s38", "s39", "s3", "s6", "s7"
sQKV, sF1, sF1P, sYS, sWO, sOST, sOLD, sOUT, sF2, sF2P, sHB, sQL = ["s%d" % i for i in range(8, 20)]
sYS2 = "s38"
S_ST = 80
stamp_names = []
def stamp(name):
    if OPT["echo"]:
        a, b, m = OPT["echo"].split(",")
        if name in (a, b):
            e("s_waitcnt lgkmcnt(0)")
            e("s_memrealtime s[98:99]")
            e("s_waitcnt lgkmcnt(0)")
            e("s_mov_b32 %s, s98" % ("s80" if name == a else "s81"))
    if OPT["stamps"]:
        if name not in stamp_names: stamp_names.append(name)
        assert len(stamp_names) <= 18
        e("s_waitcnt lgkmcnt(0)")
        e("s_memrealtime s[98:99]" if OPT["stamps"] == 2 else "s_memtime s[98:99]")
        e("s_waitcnt lgkmcnt(0)")
        e("s_mov_b32 %s, s98" % sr(S_ST + stamp_names.index(name)))
def srd(r, base, size):
    r = int(r[2:r.index(":")])
    e("s_mov_b32 %s, %s" % (sr(r), sr(base)))
    e("s_and_b32 %s, %s, 0xffff" % (sr(r + 1), sr(base + 1)))
    e("s_mov_b32 %s, 0x%x" % (sr(r + 2), size))
    e("s_mov_b32 %s, 0x00020000" % sr(r + 3))
def csel(dst, a, b):
    e("s_mov_b32 %s, %d" % (dst, b))
    e("s_cselect_b32 %s, %d, %s" % (dst, a, dst))
def S(op, d, a, b): e("s_%s %s, %s, %s" % (op, d, a, b if isinstance(b, str) else ("0x%x" % b if b > 64 else str(b))))
def sadd(d, a, b): S("add_u32", d, a, b)
def sshl(d, a, b): S("lshl_b32", d, a, b)
def sshr(d, a, b): S("lshr_b32", d, a, b)
def sand(d, a, b): S("and_b32", d, a, b)
def smul(d, a, b): S("mul_i32", d, a, b)
def V(op, d, *a): e("v_%s v%d, %s" % (op, d, ", ".join(("v%d" % x[0] if isinstance(x, tuple) else (x if isinstance(x, str) else ("0x%x" % x if x > 64 else str(x)))) for x in a)))
def v(x): return (x,)
LOG2E = math.log2(math.e)

V_L, V_L16, V_PA = 1, 2, 3
V_PAR = 4
V_Y = 10
VT = 14
(PV_CA, PV_CB, PV_ZW, PV_ZR, _z1, _z2, _z3, PV_KA, PV_V0, PV_V1, PV_YA, PV_WA, PV_CW, PV_CR,
 PV_OR, PV_OW, PV_WF, PV_FR, PV_FS, PV_WS) = range(224, 244)
PV_ZW2 = PV_V1
PV_CY = 250
PV_QS, PV_VS, PV_TW = 222, 223, 219
PV_GA, PV_GB, PV_GW, PV_GD, PV_US = 244, 245, 246, 247, 248

def header():
    L.append("; fused S4 long-conv (part A) + multi-head attention (part B): one launch, 256 WGs x 8 waves")
    L.append("; @launch grid=(256,1,1) block=(512,1,1) lds=%d" % LDS_TOTAL)
    L.append('.amdgcn_target "amdgcn-amd-amdhsa--gfx950"')
    L.append(".text")
    L.append(".globl %s_kernel" % NAME)
    L.append(".p2align 8")
    L.append(".type %s_kernel,@function" % NAME)
    L.append("%s_kernel:" % NAME)
def footer(nv):
    lab("L_end")
    e("s_endpgm")
    L.append('.section .rodata,"a"')
    L.append(".p2align 6")
    L.append(".amdhsa_kernel %s_kernel" % NAME)
    L.append("  .amdhsa_next_free_vgpr %d" % nv)
    L.append("  .amdhsa_next_free_sgpr 102")
    L.append("  .amdhsa_accum_offset %d" % nv)
    L.append("  .amdhsa_group_segment_fixed_size 0")
    L.append("  .amdhsa_kernarg_size 120")
    L.append("  .amdhsa_user_sgpr_count 2")
    L.append("  .amdhsa_user_sgpr_kernarg_segment_ptr 1")
    L.append("  .amdhsa_system_sgpr_workgroup_id_x 1")
    L.append(".end_amdhsa_kernel")

def setup():
    c("---- setup ----")
    e("s_cmp_ge_u32 s2, 256")
    e("s_cbranch_scc1 L_end")
    e("s_load_dwordx8 s[24:31], s[0:1], 64")
    e("s_load_dwordx16 s[8:23], s[0:1], 0")
    e("s_load_dwordx4 s[32:35], s[0:1], 96")
    e("s_load_dwordx2 s[36:37], s[0:1], 112")
    if OPT["stamps"] or OPT["dbgspan"] or OPT["echo"]: e("s_memrealtime s[100:101]")
    if OPT["dbgspan"]: e("s_memtime s[98:99]")
    if OPT["pf"] == 2:
        c("pull this WG's 1/32 share of the code into L2 right away (thread t<8: line 8*(wg>>3)+t)")
        e("s_getpc_b64 s[4:5]")
        lab("L_pc")
        e("s_and_b32 s3, s2, 0xf8")
        V("add_u32", VT, "s3", v(0)); V("lshlrev_b32", VT, 7, v(VT))
        e("v_min_u32 v%d, L_end-L_pc-4, v%d" % (VT, VT))
        e("v_cmp_gt_u32 vcc, 8, v0")
        e("s_and_saveexec_b64 s[6:7], vcc")
        e("s_cbranch_execz L_nopf")
        e("global_load_dword v47, v%d, s[4:5]" % VT)
        lab("L_nopf")
        e("s_mov_b64 exec, -1")
    V("and_b32", V_L, 63, v(0))
    V("lshrrev_b32", VT, 6, v(0))
    V("lshlrev_b32", V_L16, 4, v(V_L))
    V("mov_b32", PV_FS, 0)
    e("v_readfirstlane_b32 %s, v%d" % (WV, VT))
    sand(XQ, "s2", 7)
    sshr(I5, "s2", 3)
    sand(GT, XQ, 3); sshl(GT, GT, 3); sshr(JJ, I5, 2); sadd(GT, GT, JJ)
    sand(GQ, XQ, 4); sand(T0, I5, 3); sadd(GQ, GQ, T0)
    sshl(HH, XQ, 2); sadd(HH, HH, T0)
    sshl(C0, XQ, 5); sadd(C0, C0, I5); sshl(C0, C0, 1)
    sshl(W10, WV, 10)
    e("s_cmp_ge_u32 %s, 4" % WV)
    e("s_cbranch_scc0 L_compute")

def scalar_loads():
    sshl(T3, C0, 1)
    e("s_load_dword %s, %s, 0" % (TAG, sr(S_WS, 2)))
    e("s_load_dword %s, %s, %s" % (LD2, sr(S_LDT, 2), T3))
    e("s_load_dword %s, %s, %s" % (DS2, sr(S_DSK, 2), T3))

def lane_terms():
    t = VT
    hf, b7, p4, r4, g1, l15, l8 = t, t + 1, t + 2, t + 3, t + 4, t + 5, t + 6
    V("lshrrev_b32", hf, 5, v(V_L)); V("and_b32", b7, 7, v(V_L)); V("bfe_u32", p4, v(V_L), 3, 2)
    V("bfe_u32", r4, v(V_L), 2, 2); V("bfe_u32", g1, v(V_L), 4, 1); V("and_b32", l15, 15, v(V_L)); V("lshrrev_b32", l8, 3, v(V_L))
    return hf, b7, p4, r4, g1, l15, l8

def precompute_conv():
    t = VT
    c("---- conv addresses ----")
    e("s_bfe_u32 %s, %s, 0x10001" % (CL, WV))
    hf, b7, p4, r4, g1, l15, l8 = lane_terms()
    x, y, z = t + 8, t + 9, t + 10
    e("s_cmp_eq_u32 %s, 1" % CL)
    csel(T0, L_KF + 4160 + 96, L_KF + 96); csel(T1, L_UP + 4608, L_UP); csel(T2, L_Z + 4 * ZS + 144, L_Z + 144)
    V("and_b32", x, 3, v(V_L)); V("lshl_add_u32", x, v(g1), 2, v(x)); V("lshl_add_u32", y, v(hf), 3, v(r4))
    V("sub_u32", x, v(x), v(y)); V("lshlrev_b32", x, 3, v(x)); V("add_u32", PV_CA, T0, v(x))
    V("mul_u32_u24", x, 1152, v(p4)); V("add_u32", z, v(b7), v(hf)); V("lshl_add_u32", x, v(z), 4, v(x))
    V("add_u32", PV_CB, T1, v(x))
    V("mul_u32_u24", x, ZS, v(p4)); V("mul_u32_u24", z, 144, v(b7)); V("lshl_add_u32", z, v(hf), 4, v(z)); V("add3_u32", PV_ZW, v(x), v(z), T2)
    sshl(sF1, GQ, 5); sadd(sF1, sF1, GT); sshl(sF1, sF1, 7); sadd(sF1, sF1, WS_F1)
    sshl(T0, XQ, 12); sadd(sF1P, T0, WS_F1); sadd(sF2P, T0, WS_F2)
    sshl(sHB, HH, 16)

def precompute():
    t = VT
    c("SPLIT")
    e("s_cmp_ge_u32 %s, 4" % WV)
    e("s_cselect_b32 %s, 1024, 0" % T0)
    hf, b7, p4, r4, g1, l15, l8 = lane_terms()
    x, y, z = t + 8, t + 9, t + 10
    V("add_u32", PV_KA, T0, v(V_L16))
    V("lshlrev_b32", x, 4, v(l15)); V("lshl_add_u32", x, v(hf), 8, v(x)); sadd(T0, T0, 8192); V("add_u32", PV_V0, T0, v(x))
    V("lshlrev_b32", PV_YA, 11, v(V_L))
    V("lshlrev_b32", x, 2, v(g1)); V("xor_b32", x, v(x), v(b7)); V("lshlrev_b32", x, 4, v(x)); V("lshl_add_u32", PV_WA, v(l8), 10, v(x))
    c("SPLIT")
    sshl(T0, WV, 7); sadd(T0, T0, 32)
    for p in range(4):
        V("add_u32", x, T0, v(V_L))
        if p: V("subrev_u32", x, p, v(x))
        V("lshrrev_b32", z, 5, v(x)); V("lshlrev_b32", x, 2, v(x)); V("lshl_add_u32", x, v(z), 4, v(x))
        V("add_u32", PV_ZR + p, L_Z + p * ZS, v(x))
    c("SPLIT")
    sshl(T0, WV, 18); sshl(T1, C0, 1); sadd(sYS, T0, T1)
    sshr(T0, T0, 1); sadd(T0, T0, T1); sadd(sYS2, T0, 0x200000)
    sand(T0, I5, 7); sshl(T0, T0, 7); sshl(T1, WV, 13); sadd(sWO, T0, T1)
    sshl(T1, JJ, 13); sadd(T1, T1, sHB); sand(T2, WV, 3); sshl(T2, T2, 11); sadd(T1, T1, T2)
    sadd(sQL, T1, WS_Q)

def precompute_tail():
    t = VT + 4
    hf, b7, p4, r4, g1, l8 = t, t + 1, t + 2, t + 3, t + 4, t + 5
    V("lshrrev_b32", hf, 5, v(V_L)); V("and_b32", b7, 7, v(V_L)); V("bfe_u32", p4, v(V_L), 3, 2)
    V("bfe_u32", r4, v(V_L), 2, 2); V("bfe_u32", g1, v(V_L), 4, 1); V("lshrrev_b32", l8, 3, v(V_L))
    x, y, z = t + 6, t + 7, t + 8
    S("xor_b32", T0, WV, 4); smul(T0, T0, 3072); sadd(T0, T0, L_SC); smul(T1, WV, 3072); sadd(T1, T1, L_SC)
    V("add_u32", PV_CW, T0, v(V_L16)); V("add_u32", PV_CR, T1, v(V_L16))
    sand(T0, WV, 1); smul(T0, T0, 4 * ZS2); smul(T1, CL, 8 * ZS2); sadd(T0, T0, T1); sadd(T0, T0, L_Z2 + 144)
    V("mul_u32_u24", x, ZS2, v(p4)); V("mul_u32_u24", z, 144, v(b7)); V("lshl_add_u32", z, v(hf), 4, v(z)); V("add3_u32", PV_ZW2, v(x), v(z), T0)
    V("lshl_add_u32", y, v(hf), 3, v(r4)); V("lshlrev_b32", PV_WF, 7, v(y))
    V("and_b32", x, 1, v(V_L)); V("lshl_or_b32", x, v(x), 1, v(g1))
    sand(T0, WV, 2); sshl(T0, T0, 1); V("or_b32", x, T0, v(x))
    V("bfe_u32", z, v(V_L), 3, 1); V("lshlrev_b32", z, 2, v(z)); V("xor_b32", x, v(x), v(z))
    V("lshl_add_u32", PV_WF, v(x), 4, v(PV_WF)); V("bfe_u32", z, v(V_L), 1, 1); V("lshl_add_u32", PV_WF, v(z), 3, v(PV_WF))
    sand(T1, WV, 1); sshl(T2, T1, 10); sadd(T2, T2, L_O); V("add_u32", PV_OR, T2, v(V_L16))
    smul(T1, T1, 4608); sshl(T0, T0, 4); sadd(T0, T0, T1); sadd(T0, T0, L_OT)
    V("and_b32", x, 31, v(V_L)); V("mul_u32_u24", x, 144, v(x)); V("lshl_add_u32", x, v(hf), 5, v(x)); V("add_u32", PV_OW, T0, v(x))
    smul(T0, WV, 1152); sadd(T0, T0, L_OT)
    V("lshlrev_b32", x, 4, v(b7)); V("mul_u32_u24", z, 144, v(l8)); V("add3_u32", PV_FR, v(z), v(x), T0); V("lshl_add_u32", PV_FS, v(l8), 11, v(x))
    sshl(sF2, JJ, 5); sadd(sF2, sF2, HH); sshl(sF2, sF2, 7); sadd(sF2, sF2, WS_F2)
    S("sub_u32", T1, sQL, WS_Q); sshr(T2, WV, 2); sshl(T2, T2, 10); sadd(T1, T1, T2); sadd(sOST, T1, WS_O)
    sshr(T1, WV, 1); sshl(T1, T1, 6); sshl(T2, XQ, 3); sadd(T1, T1, T2); sshr(T3, I5, 3); sshl(T2, T3, 1); sadd(T1, T1, T2)
    sand(T2, WV, 1); sadd(T1, T1, T2); sshl(T1, T1, 10); sadd(sOLD, T1, WS_O)
    sand(T0, I5, 7); sshl(T0, T0, 7)
    sshl(T1, XQ, 2); sadd(T1, T1, T3); sshl(T1, T1, 3); sadd(T1, T1, WV); sshl(T1, T1, 14); sadd(T1, T1, T0); sadd(sOUT, T1, 1024)

G_VX0, G_VX1, G_VWQ, G_VWK, G_VWV, G_PL = 32, 33, 34, 35, 36, 39
G_UA, G_US = 30, 31
G_UL, U2R = 196, 80
G_XA, G_WA, G_WB = 32, 40, 43
G_ACC = [48, 64, 80]
G_XF, G_W0F, G_W1F, G_VF = 96, 112, 128, 144
KB = 48
KR = 192

def loader_addr():
    t = VT
    c("loader DMA voffsets (wave v=w-4 covers rows 16v..16v+15 of each chunk)")
    V("lshrrev_b32", t, 3, v(V_L)); V("and_b32", t + 1, 7, v(V_L)); V("bfe_u32", t + 2, v(V_L), 4, 1)
    sand(T0, WV, 3); sshl(T4, T0, 11); sshl(T0, T0, 4)
    V("add_u32", t + 3, T0, v(t))
    V("bfe_u32", t + 4, v(t + 3), 1, 3); V("xor_b32", t + 4, v(t + 4), v(t + 1)); V("lshlrev_b32", t + 4, 4, v(t + 4))
    sshl(T1, GT, 16)
    V("lshl_add_u32", G_VX0, v(t + 3), 10, v(t + 4)); V("add_u32", G_VX0, T1, v(G_VX0)); V("xor_b32", G_VX1, 0x2040, v(G_VX0))
    V("mul_u32_u24", t + 5, 3072, v(t + 3)); sshl(T1, GQ, 7); V("add_u32", t + 5, T1, v(t + 5))
    V("lshlrev_b32", t + 6, 1, v(t + 2)); V("xor_b32", t + 6, v(t + 6), v(t + 1)); V("lshl_add_u32", G_VWQ, v(t + 6), 4, v(t + 5))
    V("xor_b32", t + 6, 4, v(t + 6)); V("lshl_add_u32", G_VWK, v(t + 6), 4, v(t + 5)); V("add_u32", G_VWK, 1024, v(G_VWK))
    V("lshlrev_b32", t + 6, 2, v(t + 2)); V("xor_b32", t + 6, v(t + 6), v(t + 1)); V("lshl_add_u32", G_VWV, v(t + 6), 4, v(t + 5)); V("add_u32", G_VWV, 2048, v(G_VWV))
    r = OPT["rot"]
    if r == 1: sshl(T5, GQ, 1); sadd(T5, T5, GT)
    else:
        sadd(T5, GQ, GT)
        if r == 3: sshl(T5, T5, 2)
        if r == 5: sand(T5, T5, 1)
        if r == 6: sshl(T5, T5, 1)

I0, I1, I2, I3 = "s20", "s21", "s22", "s23"
def issue_chunk(ci):
    base = (ci % 3) * 32768
    sadd(I0, T5, ci); sand(I0, I0, 7)
    sadd("m0", T4, base); sshl(I1, I0, 7)
    e("buffer_load_dwordx4 v%d, %s, %s offen lds" % (G_VX0, R_X, I1))
    sadd("m0", T4, base + 1024); smul(I2, I0, 196608)
    e("buffer_load_dwordx4 v%d, %s, %s offen lds" % (G_VX1, R_X, I1))
    for g, va in enumerate((G_VWQ, G_VWK, G_VWV)):
        for h in range(2):
            sadd("m0", T4, base + (g + 1) * 8192 + h * 1024)
            if g == 0 and h == 0: sadd(I3, I2, 24576)
            else: e("s_nop 0")
            e("buffer_load_dwordx4 v%d, %s, %s offen lds" % (va, R_W, I3 if h else I2))

def pi_tok(dst, src, t):
    V("and_b32", dst, 0x13, v(src)); V("bfe_u32", t, v(src), 2, 1); V("lshl_or_b32", dst, v(t), 3, v(dst))
    V("bfe_u32", t, v(src), 3, 1); V("lshl_or_b32", dst, v(t), 2, v(dst))

def gemm_read_addr():
    t = VT
    c("GEMM LDS fragment read addresses, publish addresses")
    pi_tok(t, V_L, t + 1)
    V("lshrrev_b32", t + 1, 5, v(V_L))
    V("lshlrev_b32", PV_QS, 4, v(t)); V("lshl_add_u32", PV_QS, v(t + 1), 9, v(PV_QS))
    sand(T0, WV, 1); sshl(T1, T0, 5); V("add_u32", t, T1, v(t))
    V("bfe_u32", t + 2, v(t), 1, 3); V("xor_b32", t + 2, v(t + 2), v(t + 1)); V("lshlrev_b32", t + 2, 4, v(t + 2))
    V("lshl_add_u32", G_XA, v(t), 7, v(t + 2))
    for s in range(1, 4): V("xor_b32", G_XA + s, 32 * s, v(G_XA))
    V("bfe_u32", t + 2, v(V_L), 2, 2); V("lshl_add_u32", t + 3, v(t + 1), 3, v(t + 2)); V("lshlrev_b32", t + 3, 7, v(t + 3))
    V("bfe_u32", t + 4, v(V_L), 4, 1); V("bfe_u32", t + 5, v(V_L), 3, 1); V("and_b32", t + 6, 1, v(V_L)); V("bfe_u32", t + 7, v(V_L), 1, 1)
    sand(T2, WV, 2); sshl(T1, T2, 1)
    V("or_b32", t + 8, T1, v(t + 6)); V("lshl_or_b32", t + 9, v(t + 4), 1, v(t + 5)); V("lshlrev_b32", t + 9, 1, v(t + 9))
    V("xor_b32", t + 8, v(t + 8), v(t + 9)); V("lshl_add_u32", t + 8, v(t + 8), 4, v(t + 3)); V("lshl_add_u32", t + 8, v(t + 7), 3, v(t + 8))
    V("lshl_add_u32", G_WA, v(t + 4), 13, v(t + 8)); V("add_u32", G_WA, 8192, v(G_WA)); V("xor_b32", G_WA + 1, 32, v(G_WA))
    V("lshl_or_b32", t + 8, v(t + 4), 1, v(t + 7)); V("or_b32", t + 8, T1, v(t + 8)); V("lshlrev_b32", t + 9, 2, v(t + 5))
    V("xor_b32", t + 8, v(t + 8), v(t + 9)); V("lshl_add_u32", t + 8, v(t + 8), 4, v(t + 3)); V("lshl_add_u32", t + 8, v(t + 6), 3, v(t + 8))
    V("add_u32", G_WA + 2, 24576, v(t + 8))
    for s in range(4): V("add_u32", G_XA + 4 + s, 0x10000, v(G_XA + s))
    for s in range(3): V("add_u32", G_WB + s, 0x10000, v(G_WA + s))
    V("and_b32", t + 2, 15, v(V_L)); V("lshlrev_b32", t + 2, 4, v(t + 2)); V("lshl_add_u32", t + 2, v(t + 1), 8, v(t + 2)); V("lshl_add_u32", PV_VS, v(t + 4), 16, v(t + 2))
    sshl(T1, GQ, 2); sadd(T1, T1, T2); sshl(T1, T1, 6); sshl(T3, GT, 1); sadd(T1, T1, T3); sadd(T1, T1, T0); sshl(sQKV, T1, 10)
    sshl(T0, T0, 8)
    e("s_bitcmp1_b32 %s, 1" % WV)
    csel(T1, L_TA + 14256, L_TA); csel(T2, L_TB + 16896, L_TB)
    sadd(T1, T1, T0); sadd(T2, T2, T0)
    V("lshl_add_u32", PV_TW, v(V_L), 2, T1); V("lshl_add_u32", 46, v(V_L), 2, T2)

G_UP = 29
def u_coop_loads():
    t = VT
    if OPT["umode"] == 0:
        e("s_bfe_u32 %s, %s, 0x10001" % (T1, WV)); sand(T0, WV, 1)
        V("and_b32", t, 7, v(V_L)); V("bfe_u32", t + 1, v(V_L), 3, 2)
        sshl(T0, T0, 2); V("add_u32", t + 1, T0, v(t + 1))
        sshl(T2, I5, 1); sadd(T1, T1, T2); sshl(T1, T1, 3); V("add_u32", t, T1, v(t))
        V("lshlrev_b32", t + 2, 4, v(t + 1)); V("lshl_add_u32", G_UA, v(t), 12, v(t + 2))
        V("lshlrev_b32", t, 4, v(t)); V("lshl_add_u32", G_US, v(t + 1), 15, v(t))
        sshl(T0, XQ, 7)
        e("s_mov_b32 exec_hi, 0")
        for k in range(4):
            e("buffer_load_dwordx4 %s, v%d, %s, %s offen offset:%d" % (vr(G_UL + 4 * k, 4), G_UA, R_U, T0, 1024 * k))
        e("s_mov_b32 exec_hi, -1")
        return
    sshl(T1, I5, 2); sadd(T1, T1, WV); sshl(T1, T1, 2)
    V("bfe_u32", t, v(V_L), 3, 2); V("add_u32", t, T1, v(t)); V("and_b32", t + 1, 7, v(V_L))
    V("lshlrev_b32", t + 1, 4, v(t + 1)); V("lshl_add_u32", G_UA, v(t), 12, v(t + 1))
    sshl(T0, XQ, 7)
    e("s_mov_b32 exec_hi, 0")
    for k in range(4):
        e("buffer_load_dwordx4 %s, v%d, %s, %s offen offset:%d" % (vr(G_UL + 4 * k, 4), G_UA, R_U, T0, 1024 * k))
    e("s_mov_b32 exec_hi, -1")
    V("and_b32", t, 3, v(V_L)); V("bfe_u32", t + 1, v(V_L), 2, 3)
    V("lshl_add_u32", G_UP, v(t), 3, v(t + 1)); V("lshlrev_b32", G_UP, 2, v(G_UP))
    V("add_u32", t, T1, v(t)); V("lshlrev_b32", t, 4, v(t)); V("lshl_add_u32", G_US, v(t + 1), 15, v(t))

def u_coop_perm():
    D = 240
    e("s_waitcnt vmcnt(0)")
    for i in range(4):
        for k in range(4):
            if OPT["umode"]: e("ds_bpermute_b32 v%d, v%d, v%d" % (D + 4 * i + k, G_UP, G_UL + 4 * k + i))
            else: V("mov_b32", D + 4 * i + k, v(G_UL + 4 * k + i))
def u_coop_stores():
    D = 240
    sshl(I0, XQ, 18); sadd(I0, I0, WS_U2)
    e("s_mov_b32 exec_hi, 0")
    for i in range(4):
        e("buffer_store_dwordx4 %s, v%d, %s, %s offen sc1" % (vr(D + 4 * i, 4), G_US, R_WS, I0))
        if i < 3: sadd(I0, I0, 8192)
    e("s_mov_b32 exec_hi, -1")

def flag_store(soff, t=VT):
    if OPT["fline"] and soff != "0":
        V("mov_b32", t + 1, TAG)
        V("lshlrev_b32", t, 2, v(V_L))
        e("s_mov_b32 exec_hi, 0")
        e("buffer_store_dword v%d, v%d, %s, %s offen sc1" % (t + 1, t, R_WS, soff))
        e("s_mov_b32 exec_hi, -1")
        return
    V("mov_b32", t, 0); V("mov_b32", t + 1, TAG)
    e("s_mov_b64 exec, 1")
    e("buffer_store_dword v%d, v%d, %s, %s offen sc1" % (t + 1, t, R_WS, soff))
    e("s_mov_b64 exec, -1")

def poll(label, soff, first_issued=None, t=VT, nwait=0):
    V("lshlrev_b32", t, 7, v(V_L))
    e("s_mov_b32 %s, 0" % CNT)
    e("s_mov_b32 exec_hi, 0")
    r = t + 1
    if first_issued is not None:
        r = first_issued
        e("s_waitcnt vmcnt(%d)" % nwait)
        e("s_branch %s_chk" % label)
    if OPT["psleep"] and first_issued is None: e("s_branch %s_go" % label)
    lab(label)
    if OPT["psleep"]: e("s_sleep %d" % OPT["psleep"])
    lab(label + "_go")
    e("buffer_load_dword v%d, v%d, %s, %s offen %s" % (r, t, R_WS, soff, OPT["ppol"].replace("+", " ")))
    sadd(CNT, CNT, 1)
    e("s_waitcnt vmcnt(0)")
    lab(label + "_chk")
    e("v_cmp_ne_u32 vcc, %s, v%d" % (TAG, r))
    e("s_cmp_gt_u32 %s, 0x4000" % CNT)
    e("s_cbranch_scc1 %s_done" % label)
    e("s_cmp_lg_u64 vcc, 0")
    e("s_cbranch_scc1 %s" % label)
    lab(label + "_done")
    e("s_mov_b32 exec_hi, -1")

def kgen_addr():
    t = VT
    c("SPLIT")
    V("bfe_u32", t, v(V_L), 4, 1); V("bfe_u32", t + 1, v(V_L), 2, 1); V("lshl_or_b32", t, v(t), 1, v(t + 1))
    V("bfe_u32", t + 1, v(V_L), 3, 1); V("and_b32", t + 2, 3, v(V_L)); V("lshl_or_b32", t + 1, v(t + 1), 2, v(t + 2))
    e("v_cmp_eq_u32 s[4:5], 0, v%d" % t)
    e("v_cmp_eq_u32 vcc, 1, v%d" % t)
    e("s_bitcmp1_b32 %s, 0" % WV)
    csel(T0, 0x11100000, 0x76543210); csel(T1, 0x11100000, 0x43222100); csel(T2, 0x11100000, 0x22111000); csel(T3, 0x19171513, 0x100d0800)
    V("mov_b32", t + 2, T2); V("mov_b32", t + 3, T1); V("cndmask_b32", t + 2, v(t + 2), v(t + 3), "vcc")
    V("mov_b32", t + 3, T0); V("cndmask_b32", t + 2, v(t + 2), v(t + 3), "s[4:5]")
    V("lshlrev_b32", t + 1, 2, v(t + 1)); V("bfe_u32", t + 2, v(t + 2), v(t + 1), 4)
    V("lshlrev_b32", t, 3, v(t)); V("bfe_u32", t, T3, v(t), 8); V("add_u32", t, v(t), v(t + 2))
    V("lshrrev_b32", t + 1, 5, v(V_L)); V("and_b32", t + 2, 31, v(V_L))
    e("s_cselect_b32 %s, 2048, 0" % T3)
    e("s_cselect_b32 %s, 0, -1" % CNT)
    e("s_bitcmp1_b32 %s, 1" % WV)
    csel(T0, L_TA + 14256, L_TA); csel(T1, L_TB + 16896, L_TB); csel(T2, L_KF + 4160 + 64, L_KF + 64)
    sadd(T2, T2, T3)
    V("mul_u32_u24", t, 528, v(t)); V("lshl_add_u32", t + 3, v(t + 1), 4, T0); V("add_u32", PV_GA, v(t), v(t + 3))
    V("mul_u32_u24", t, 528, v(t + 2)); V("lshl_add_u32", t + 3, v(t + 1), 4, T1); V("add_u32", PV_GB, v(t), v(t + 3))
    V("lshl_add_u32", t, v(t + 1), 9, T2); V("lshl_add_u32", PV_GW, v(t + 2), 4, v(t))
    e("s_waitcnt lgkmcnt(0)")
    sadd(TAG, TAG, 1)
    e("s_bitcmp1_b32 %s, 1" % WV)
    e("s_cselect_b32 %s, 0, 16" % T0)
    sshl(T0, DS2, T0); sand(T0, T0, 0xffff0000); sand(T0, T0, CNT)
    e("v_cmp_eq_u32 vcc, 0, v%d" % V_L)
    V("mov_b32", PV_GD, T0)
    sand(T1, WV, 3); sshl(T1, T1, 8); sadd(T1, T1, L_UP + 128)
    V("cndmask_b32", PV_GD, 0, v(PV_GD), "vcc")
    V("lshl_add_u32", PV_US, v(V_L), 1, T1)

def pads():
    t = VT
    c("SPLIT")
    for i in range(4): V("mov_b32", t + 4 + i, 0)
    V("lshrrev_b32", t, 3, v(V_L)); V("mul_u32_u24", t, 1152, v(t)); V("and_b32", t + 1, 7, v(V_L)); V("lshl_add_u32", t, v(t + 1), 4, v(t)); V("add_u32", t, L_UP, v(t))
    V("bfe_u32", t + 1, v(V_L), 2, 1); V("mul_u32_u24", t + 1, 4160, v(t + 1)); V("and_b32", t + 2, 3, v(V_L)); V("lshl_add_u32", t + 1, v(t + 2), 4, v(t + 1)); V("add_u32", t + 1, L_KF, v(t + 1))
    V("lshlrev_b32", t + 2, 4, v(t + 2)); V("add_u32", t + 2, L_FL, v(t + 2))
    for k in range(3): e("ds_write_b128 v%d, %s" % (t + k, vr(t + 4, 4)))

def loader_path():
    c("======== loader waves ========")
    if OPT["gprio"] == 2: e("s_setprio 1")
    loader_addr()
    e("s_waitcnt lgkmcnt(0)")
    stamp("karg")
    srd(R_X, S_X, 2048 * 1024); srd(R_W, S_W, 512 * 3072)
    scalar_loads()
    issue_chunk(0)
    if OPT["echo"]: stamp("i0")
    srd(R_WS, S_WS, WS_SIZE); srd(R_OUT, S_OUT, 2048 * 2048); srd(R_WO, S_WO, 512 * 1024)
    late = capture(lambda: (precompute_conv(), precompute(), kgen_addr(), pads()))
    def upto(n):
        while n < len(late) and "SPLIT" not in late[n]: n += 1
        SINK[0].extend(late[:n]); del late[:n]
    upto(OPT["npre"])
    if OPT["echo"]: stamp("pre")
    issue_chunk(1)
    if OPT["echo"]: stamp("i1")
    waits = [8, 8, 8, 8, 8, 8, 9, 1]
    for ci in range(8):
        c("loader chunk %d" % ci)
        e("s_waitcnt vmcnt(%d)" % waits[ci])
        if OPT["echo"] and ci in (0, 1, 2): stamp("ld%d" % ci)
        if OPT["ldst"] and ci in (0, 1, 2, 3, 4): e("s_memrealtime s[%d:%d]" % (80 + 4 * ci, 81 + 4 * ci))
        e("s_barrier")
        if OPT["ldst"] and ci in (0, 1, 2, 3, 4): e("s_memrealtime s[%d:%d]" % (82 + 4 * ci, 83 + 4 * ci))
        if ci in (0, 7): stamp("ch%d" % ci)
        if ci + 2 < 8: issue_chunk(ci + 2)
        if ci < 5 and OPT["lsp"]: upto(OPT["lsp"])
        if ci == 5:
            sshl(T5, XQ, 12); sadd(T5, T5, WS_F0)
            V("lshlrev_b32", 42, 7, v(V_L))
            e("s_mov_b32 exec_hi, 0")
            e("buffer_load_dword v%d, v42, %s, %s offen sc1" % (G_PL, R_WS, T5))
            e("s_mov_b32 exec_hi, -1")
            upto(len(late) // 2)
        if ci == 6: upto(9999)
    poll("L_poll0", T5, first_issued=G_PL, nwait=0)
    c("u of this WG's channel pair (transposed by the group)")
    sshl(T0, XQ, 5); sadd(T0, T0, I5); sshl(T0, T0, 13); sadd(T0, T0, T4); sadd(T0, T0, WS_U2)
    e("buffer_load_dwordx4 %s, v%d, %s, %s offen sc1" % (vr(U2R, 4), V_L16, R_WS, T0))
    e("buffer_load_dwordx4 %s, v%d, %s, %s offen offset:1024 sc1" % (vr(U2R + 4, 4), V_L16, R_WS, T0))
    e("s_barrier")
    stamp("K1")
    c("---- S4 kernel K = A-table x B-table (rows duplicated to realise bf16(l)) ----")
    FA, FB, AC = 96, 128, 160
    def rd(s):
        e("ds_read_b128 %s, v%d offset:%d" % (vr(FA + 4 * (s % 8), 4), PV_GA, 32 * s))
        e("ds_read_b128 %s, v%d offset:%d" % (vr(FB + 4 * (s % 8), 4), PV_GB, 32 * s))
    for s in range(7): rd(s)
    e("v_and_b32 v%d, 1, v%d" % (VT, V_L))
    e("v_cmp_eq_u32 vcc, 0, v%d" % VT)
    uw = []
    for h in range(2):
        for p in range(4):
            uw.append("    ds_write_b16 v%d, v%d offset:%d" % (PV_US, U2R + 4 * h + p, 1152 * p + 128 * h))
            uw.append("    ds_write_b16_d16_hi v%d, v%d offset:%d" % (PV_US, U2R + 4 * h + p, 4608 + 1152 * p + 128 * h))
    nw = 0
    for s in range(16):
        e("s_waitcnt lgkmcnt(%d)" % (2 * (min(s + 6, 15) - s) + nw))
        e("v_mfma_f32_32x32x16_bf16 %s, %s, %s, %s" % (vr(AC, 16), vr(FA + 4 * (s % 8), 4), vr(FB + 4 * (s % 8), 4), "0" if s == 0 else vr(AC, 16)))
        if s + 7 < 16: rd(s + 7)
        if s == 10: e("s_waitcnt vmcnt(0)")
        if 10 <= s < 15:
            SINK[0].extend(uw[nw:nw + 3]); nw += 3
    SINK[0].extend(uw[15:])
    nop(11)
    V("add_f32", AC, v(AC), v(PV_GD))
    e("s_bitcmp1_b32 %s, 0" % WV)
    e("s_cbranch_scc0 L_kg_nofix")
    V("cndmask_b32", AC + 4, v(AC + 5), v(AC + 3), "vcc"); V("cndmask_b32", AC + 12, v(AC + 13), v(AC + 11), "vcc")
    lab("L_kg_nofix")
    for i in range(8): V("cvt_pk_bf16_f32", FA + i, v(AC + 2 * i), v(AC + 2 * i + 1))
    e("ds_write_b128 v%d, %s" % (PV_GW, vr(FA, 4)))
    e("ds_write_b128 v%d, %s offset:1024" % (PV_GW, vr(FA + 4, 4)))
    e("s_branch L_gemm_done")

def cmul_multi(lst):
    for d, a, b in lst:
        e("v_pk_mul_f32 %s, %s, %s op_sel:[0,0] op_sel_hi:[1,0]" % (vr(d, 2), vr(a, 2), vr(b, 2)))
    for d, a, b in lst:
        e("v_pk_fma_f32 %s, %s, %s, %s op_sel:[1,1,0] op_sel_hi:[0,1,1] neg_lo:[1,0,0]" % (vr(d, 2), vr(a, 2), vr(b, 2), vr(d, 2)))
def cexp_multi(lst, va, vb):
    for d, Lf, t, cj in lst:
        V("mul_f32", t, fl(Lf), v(va)); V("mul_f32", t + 1, fl(-Lf if cj else Lf), v(vb)); V("fract_f32", t + 1, v(t + 1))
    for d, Lf, t, cj in lst:
        V("exp_f32", t, v(t)); V("cos_f32", d, v(t + 1)); V("sin_f32", d + 1, v(t + 1))
    e("s_nop 0")
    for d, Lf, t, cj in lst:
        e("v_pk_mul_f32 %s, %s, %s op_sel:[0,0] op_sel_hi:[1,0]" % (vr(d, 2), vr(d, 2), vr(t, 2)))

KVA, KVB, KVD = 220, 221, 25
def kgen_b():
    c("---- S4 mode tables: B = exp(z*8j) -> LDS ----")
    va, vb, vdt, ta = KVA, KVB, KVD, VT + 4
    e("s_bitcmp1_b32 %s, 1" % WV)
    e("s_cselect_b32 %s, 0, 16" % T0)
    sshl(T0, LD2, T0); sand(T0, T0, 0xffff0000)
    V("mov_b32", vdt, fl(LOG2E)); V("mul_f32", vdt, T0, v(vdt)); V("exp_f32", vdt, v(vdt))
    for i in range(2): V("lshlrev_b32", V_PAR + i, 16, v(V_PAR + i))
    V("cvt_pk_bf16_f32", vdt, v(vdt), v(vdt)); V("and_b32", vdt, 0xffff0000, v(vdt))
    V("mul_f32", va, v(vdt), v(V_PAR)); V("mul_f32", vb, v(vdt), v(V_PAR + 1))
    V("mul_f32", va, fl(LOG2E), v(va)); V("mul_f32", vb, fl(1.0 / (2 * math.pi)), v(vb))
    P = lambda j: KB + 2 * j
    G = lambda k: KB + 16 + 2 * k
    X = KB + 24
    cv = [KB + 40 + i for i in range(8)]
    n = [0]
    def putb(row, pr):
        r = cv[n[0] % 8]; n[0] += 1
        V("cvt_pk_bf16_f32", r, v(pr), v(pr + 1))
        e("ds_write_b32 v46, v%d offset:%d" % (r, row * 528))
    cexp_multi([(P(1), 8.0, ta, 0), (G(1), 64.0, ta + 2, 0)], va, vb)
    V("mov_b32", cv[7], 0x3f80); e("ds_write_b32 v46, v%d" % cv[7])
    cmul_multi([(P(2), P(1), P(1)), (G(2), G(1), G(1))])
    putb(1, P(1)); putb(8, G(1))
    cmul_multi([(P(3), P(2), P(1)), (P(4), P(2), P(2)), (G(3), G(2), G(1))])
    putb(2, P(2)); putb(16, G(2))
    cmul_multi([(P(5), P(4), P(1)), (P(6), P(4), P(2)), (P(7), P(4), P(3))])
    for r, p in ((3, P(3)), (4, P(4)), (24, G(3)), (5, P(5)), (6, P(6)), (7, P(7))): putb(r, p)
    for k in range(1, 4):
        cmul_multi([(X + 2 * j, P(j), G(k)) for j in range(1, 8)])
        for j in range(1, 8): putb(8 * k + j, X + 2 * j)

def kgen_a():
    va, vb, vdt, ta = KVA, KVB, KVD, VT + 4
    E = lambda j: 224 + 2 * j - 2
    Q = lambda j: 160 + 2 * j
    H = lambda k: 176 + 2 * k
    X = 224
    def puta(row, pr): V("cvt_pk_bf16_f32", KR + row, v(pr), v(pr + 1))
    cexp_multi([(E(1), 1.0, ta, 1), (H(1), 256.0, ta + 2, 1)], va, vb)
    for i in range(2, 6): V("lshlrev_b32", V_PAR + i, 16, v(V_PAR + i))
    V("mul_f32", ta, v(vdt), v(V_PAR + 2)); e("v_mul_f32 v%d, -v%d, v%d" % (ta + 1, vdt, V_PAR + 3))
    V("mov_b32", ta + 2, v(V_PAR + 4)); V("mul_f32", ta + 3, "-1.0", v(V_PAR + 5))
    cmul_multi([(Q(0), ta, ta + 2), (E(2), E(1), E(1)), (H(2), H(1), H(1))])
    cmul_multi([(E(3), E(2), E(1)), (E(4), E(2), E(2)), (H(3), H(2), H(1)), (H(4), H(2), H(2))])
    puta(0, Q(0))
    cmul_multi([(E(5), E(4), E(1)), (E(6), E(4), E(2)), (E(7), E(4), E(3)), (E(8), E(4), E(4)), (H(5), H(4), H(1)), (H(6), H(4), H(2)), (H(7), H(4), H(3))])
    cmul_multi([(Q(j), Q(0), E(j)) for j in range(1, 9)])
    for j in range(1, 8): puta(j, Q(j))
    cmul_multi([(X + 2 * i, H(1), Q(2 * i)) for i in range(5)] + [(X + 10 + 2 * i, H(2), Q(4 * i)) for i in range(3)])
    for i in range(8): puta(8 + i, X + 2 * i)
    cmul_multi([(X + 2 * i, H(3), Q(4 * i)) for i in range(3)] + [(X + 6, H(4), Q(0)), (X + 8, H(4), Q(8)), (X + 10, H(5), Q(0)), (X + 12, H(5), Q(8))])
    for i in range(7): puta(16 + i, X + 2 * i)
    cmul_multi([(X, H(6), Q(0)), (X + 2, H(6), Q(8)), (X + 4, H(7), Q(0)), (X + 6, H(7), Q(8))])
    for i in range(4): puta(23 + i, X + 2 * i)

def compute_path():
    t = VT
    lab("L_compute")
    if OPT["gprio"] == 1: e("s_setprio 1")
    c("======== compute waves ========")
    e("s_bfe_u32 %s, %s, 0x10001" % (T0, WV)); sadd(T0, T0, C0); sshl(T0, T0, 8); sand(T1, WV, 1); sshl(T1, T1, 7); sadd(T0, T0, T1)
    V("lshl_add_u32", V_PA, v(V_L), 1, T0)
    e("s_waitcnt lgkmcnt(0)")
    stamp("karg")
    if OPT["pfx"]:
        c("touch this WG's 1/256 share of x and Wqkv so that HBM streams them in at once")
        V("lshlrev_b32", 252, 7, v(V_L)); V("min_u32", 253, 47 * 128, v(252))
        sshl(T0, "s2", 13); smul(T1, "s2", 6144)
        V("add_u32", 252, T0, v(252)); V("add_u32", 253, T1, v(253))
        e("s_cmp_eq_u32 %s, 0" % WV)
        e("s_cbranch_scc0 L_pfx1")
        e("global_load_dword v252, v252, %s" % sr(S_X, 2))
        lab("L_pfx1")
        e("s_cmp_eq_u32 %s, 1" % WV)
        e("s_cbranch_scc0 L_pfx2")
        e("global_load_dword v253, v253, %s" % sr(S_W, 2))
        lab("L_pfx2")
    for i, s in enumerate((S_ARE, S_AIM, S_BRE, S_BIM, S_CRE, S_CIM)):
        e("global_load_ushort v%d, v%d, %s" % (V_PAR + i, V_PA, sr(s, 2)))
    scalar_loads()
    srd(R_U, S_U, 2048 * 1024)
    u_coop_loads()
    if OPT["pf"] == 1:
        c("pull this WG's 1/32 share of the code into L2")
        e("s_getpc_b64 s[4:5]")
        lab("L_pc")
        sshl(T0, I5, 3); V("add_u32", t, T0, v(V_L)); V("lshlrev_b32", t, 7, v(t))
        e("v_min_u32 v%d, L_end-L_pc-4, v%d" % (t, t))
        e("s_mov_b64 exec, 0xff")
        e("global_load_dword v47, v%d, s[4:5]" % t)
        e("s_mov_b64 exec, -1")
    srd(R_WS, S_WS, WS_SIZE); srd(R_OUT, S_OUT, 2048 * 2048); srd(R_WO, S_WO, 512 * 1024)
    gemm_read_addr()
    e("s_waitcnt vmcnt(%d) lgkmcnt(0)" % (9 if OPT["pf"] == 1 else 8))
    sadd(TAG, TAG, 1)
    if OPT["echo"]: stamp("par")
    kgen_b()
    stamp("tab")
    pc = [x for x in capture(kgen_a) if not x.strip().startswith(";")]
    if OPT["apre"]:
        e("s_waitcnt vmcnt(%d)" % (5 if OPT["pf"] == 1 else 4))
        SINK[0].extend(pc[:OPT["apre"]]); del pc[:OPT["apre"]]
    if OPT["uat"] < 0:
        u_coop_perm(); e("s_waitcnt lgkmcnt(0)"); u_coop_stores()
    if OPT["echo"]: stamp("cp0")
    if "F" in OPT["abl"]: pc = pc[:20]
    if "U" in OPT["abl"]: pc = pc[20:]
    def f0flag():
        sshl(I0, XQ, 5); sadd(I0, I0, I5); sshl(I0, I0, 7); sadd(I0, I0, WS_F0)
        flag_store(I0, 26)
    def fill(n):
        for _ in range(n):
            if pc: SINK[0].append(pc.pop(0))
    def ml(s, first=False):
        cc = lambda k: "0" if first else vr(G_ACC[k], 16)
        return ["v_mfma_f32_32x32x16_bf16 %s, %s, %s, %s" % (vr(G_ACC[0], 16), vr(G_W0F + 4 * s, 4), vr(G_XF + 4 * s, 4), cc(0)),
                "v_mfma_f32_32x32x16_bf16 %s, %s, %s, %s" % (vr(G_ACC[1], 16), vr(G_W1F + 4 * s, 4), vr(G_XF + 4 * s, 4), cc(1)),
                "v_mfma_f32_32x32x16_bf16 %s, %s, %s, %s" % (vr(G_ACC[2], 16), vr(G_XF + 4 * s, 4), vr(G_VF + 4 * s, 4), cc(2))]
    def ilv(ms, rs, nf):
        k = 0
        for i, m in enumerate(ms):
            if "M" not in OPT["abl"] or m.endswith(", 0"): e(m)
            upto = (len(rs) * (i + 1) + len(ms) - 1) // len(ms)
            SINK[0].extend(rs[k:upto]); k = upto
            fill(nf)
    for ci in range(8):
        c("compute chunk %d" % ci)
        hi = (ci % 3) == 2
        ib = 32768 if ci % 3 == 1 else 0
        xa = G_XA + (4 if hi else 0)
        wa = G_WB if hi else G_WA
        if ci == 4: e("s_waitcnt vmcnt(0)")
        e("s_barrier")
        if ci in (0, 7): stamp("ch%d" % ci)
        if ci == 4: f0flag()
        def reads(s):
            if "R" in OPT["abl"]: return
            e("ds_read_b128 %s, v%d offset:%d" % (vr(G_XF + 4 * s, 4), xa + s, ib))
            for k, f in enumerate((G_W0F, G_W1F, G_VF)):
                for tt in range(2):
                    e("ds_read_b64_tr_b16 %s, v%d offset:%d" % (vr(f + 4 * s + 2 * tt, 2), wa + k, ib + (16 * s + 4 * tt) * 128))
        r0, r1 = capture(reads, 0), capture(reads, 1)
        nf = 1 if ci != OPT["uat"] and ci < 7 else 0
        if ci > 0:
            SINK[0].extend(r0[:3]); ilv(ml(3), r0[3:] + r1[:5], 0); SINK[0].extend(r1[5:])
        else: SINK[0].extend(r0 + r1)
        if ci == OPT["uat"] + 1 and OPT["ust2"]: u_coop_stores()
        fill(OPT["f0"] * nf)
        e("s_waitcnt lgkmcnt(7)"); ilv(ml(0, ci == 0), capture(reads, 2), nf)
        e("s_waitcnt lgkmcnt(7)"); ilv(ml(1), capture(reads, 3), nf)
        e("s_waitcnt lgkmcnt(7)")
        if ci < 7:
            if ci == OPT["uat"]: ilv(ml(2), capture(u_coop_perm), 0)
            else: ilv(ml(2), [], OPT["f2"] * nf)
            if ci == 6: fill(999)
            e("s_waitcnt lgkmcnt(0)")
            if ci == OPT["uat"] and not OPT["ust2"]: u_coop_stores()
    tw = ["    ds_write_b32 v%d, v%d offset:%d" % (PV_TW, KR + r, r * 528) for r in range(27)]
    ilv(ml(2), tw[:8], 0)
    e("s_waitcnt lgkmcnt(8)")
    ilv(ml(3), tw[8:], 0)
    sadd(T1, sQKV, WS_K); sadd(T2, sQKV, WS_K + 65536); sadd(T3, sQKV, WS_V); sadd(T4, sQKV, WS_Q + 65536); sadd(T0, sQKV, WS_Q)
    e("s_waitcnt lgkmcnt(0)")
    e("s_barrier")
    stamp("K1")
    c("GEMM epilogue: publish Q,K,V")
    P = G_XF
    def pk(dst, src):
        for i in range(4): V("cvt_pk_bf16_f32", dst + i, v(src + 2 * i), v(src + 1 + 2 * i))
    def st(r, va, so, off=0):
        e("buffer_store_dwordx4 %s, v%d, %s, %s offen%s sc1" % (vr(r, 4), va, R_WS, so, " offset:%d" % off if off else ""))
    pk(P, G_ACC[0] + 8); st(P, PV_QS, T1)
    pk(P + 4, G_ACC[1] + 8); st(P + 4, PV_QS, T2)
    pk(P + 8, G_ACC[2]); st(P + 8, PV_VS, T3)
    pk(P + 12, G_ACC[2] + 8); st(P + 12, PV_VS, T3, 512)
    for k, so in ((0, T0), (1, T4)):
        for i in range(8): V("mul_f32", G_ACC[k] + i, fl(0.25 * LOG2E), v(G_ACC[k] + i))
        pk(P + 16 + 4 * k, G_ACC[k]); st(P + 16 + 4 * k, PV_QS, so)
    stamp("pub")
    precompute_conv()

C_LO, C_UP = 128, 144
C_A, C_X, C_Y = 160, 176, 192
def signal(tag, cnt_off, last, soff):
    t = VT + 4
    V("mov_b32", t + 2, L_FL + cnt_off); V("mov_b32", t + 3, 1)
    e("s_waitcnt vmcnt(0)")
    e("s_mov_b64 exec, 1")
    e("ds_add_rtn_u32 v%d, v%d, v%d" % (t + 3, t + 2, t + 3))
    e("s_mov_b64 exec, -1")
    e("s_waitcnt lgkmcnt(0)")
    e("v_readfirstlane_b32 %s, v%d" % (T0, t + 3))
    e("s_cmp_eq_u32 %s, %d" % (T0, last))
    e("s_cbranch_scc0 L_sig_%s" % tag)
    flag_store(soff, t)
    lab("L_sig_%s" % tag)

def conv_job(T, s0, nfull, tail, va, vb, sig=None, sig_after=1):
    def rdA(k, sg):
        e("ds_read_b64_tr_b16 %s, v%d offset:%d" % (vr(C_A + 4 * k, 2), va, 128 * sg + 32))
        e("ds_read_b64_tr_b16 %s, v%d offset:%d" % (vr(C_A + 4 * k + 2, 2), va, 128 * sg))
    def rdB(dst, k, sg):
        e("ds_read_b128 %s, v%d offset:%d" % (vr(dst + 4 * k, 4), vb, 112 + 128 * T - 32 * sg))
    def mf(acc, k, b, first=False):
        e("v_mfma_f32_32x32x16_bf16 %s, %s, %s, %s" % (vr(acc, 16), vr(C_A + 4 * k, 4), vr(b + 4 * k, 4), "0" if first else vr(acc, 16)))
    pend = []
    def note(step, n): pend.extend([step] * n)
    def wait(step):
        n = sum(1 for x in pend if x > step)
        e("s_waitcnt lgkmcnt(%d)" % n)
        pend[:] = [x for x in pend if x > step]
    for k in range(4):
        rdA(k, s0 + k); rdB(C_Y, k, s0 + k - 4); rdB(C_X, k, s0 + k); note(k, 4)
    cur, old = C_X, C_Y
    if sig and sig_after == 0: sig(); del pend[:]
    for sec in range(nfull):
        for k in range(4):
            st = 4 * sec + k
            wait(st)
            mf(C_UP, k, old, st == 0)
            if sec + 1 < nfull: rdB(old, k, s0 + st + 4); note(st + 4, 1)
            mf(C_LO, k, cur, st == 0)
            if sec + 1 < nfull or tail: rdA(k, s0 + st + 4); note(st + 4, 2)
        cur, old = old, cur
        if sig and sec + 1 == sig_after: sig(); del pend[:]
    if tail:
        for k in range(4):
            wait(4 * nfull + k)
            mf(C_UP, k, old)
        nop(2)
    else: nop(12)

def z_writes(va, row0):
    for k in range(4): e("ds_write_b128 v%d, %s offset:%d" % (va, vr(C_LO + 4 * k, 4), 144 * row0 + 32 * k))
    nop(8)
    for k in range(4): e("ds_write_b128 v%d, %s offset:%d" % (va, vr(C_UP + 4 * k, 4), 144 * (row0 + 8) + 32 * k))

def conv():
    c("---- causal conv as Toeplitz MFMA, output tiles 0..5 ----")
    e("s_cmp_ge_u32 %s, 4" % WV)
    e("s_cbranch_scc1 L_conv_hi")
    e("s_bitcmp1_b32 %s, 0" % WV)
    e("s_cbranch_scc1 L_conv_2a")
    conv_job(0, 0, 1, True, PV_CA, PV_CB, lambda: signal("a", 16, 3, sF1)); z_writes(PV_ZW, 0)
    e("s_branch L_conv_done")
    lab("L_conv_2a")
    conv_job(4, 0, 3, False, PV_CA, PV_CB, lambda: signal("b", 16, 3, sF1), 2); z_writes(PV_ZW, 32)
    e("s_branch L_conv_done")
    lab("L_conv_hi")
    e("s_bitcmp1_b32 %s, 0" % WV)
    e("s_cbranch_scc1 L_conv_2b")
    conv_job(2, 0, 3, True, PV_CA, PV_CB); z_writes(PV_ZW, 16)
    e("s_branch L_conv_done")
    lab("L_conv_2b")
    conv_job(4, 12, 2, True, PV_CA, PV_CB); z_writes(PV_ZW, 32 + 17)
    lab("L_conv_done")
    stamp("cend")

def kv_tiles(msrc, soff):
    e("s_mov_b32 m0, %s" % msrc)
    e("s_nop 0")
    for i in range(8):
        if i == 4: sadd("m0", "m0", 4096); sadd(soff, soff, 4096)
        e("buffer_load_dwordx4 v%d, %s, %s offen offset:%d sc1 lds" % (V_L16, R_WS, soff, 1024 * (i % 4)))

def kv_early():
    t = VT
    e("s_cmp_ge_u32 %s, 4" % WV)
    e("s_cbranch_scc1 L_kve_done")
    precompute(); precompute_tail()
    e("s_bitcmp1_b32 %s, 0" % WV)
    e("s_cbranch_scc1 L_kve_done")
    e("s_cmp_eq_u32 %s, 0" % WV)
    e("s_cbranch_scc0 L_kve_w2")
    for i in range(4): V("mov_b32", C_A + i, 0)
    V("and_b32", t + 2, 7, v(V_L)); V("mul_u32_u24", t + 2, ZS, v(t + 2)); V("bfe_u32", t + 3, v(V_L), 3, 1); V("mul_u32_u24", t + 3, 49 * 144, v(t + 3))
    V("add_u32", t + 2, v(t + 2), v(t + 3)); V("add_u32", t + 2, L_Z + 112, v(t + 2))
    e("ds_write_b128 v%d, %s" % (t + 2, vr(C_A, 4)))
    e("s_mov_b32 %s, 0" % T5); sadd(T3, sHB, WS_K)
    e("s_branch L_kve_go")
    lab("L_kve_w2")
    e("s_mov_b32 %s, 8192" % T5); sadd(T3, sHB, WS_V)
    lab("L_kve_go")
    poll("L_poll1", sF1P, t=VT + 4)
    stamp("poll1")
    sshl(T0, JJ, 13); sadd(T0, T0, T3)
    kv_tiles(T5, T0)
    if not OPT["b1late"]:
        sadd(T0, JJ, 1); sand(T0, T0, 7); sshl(T0, T0, 13); sadd(T0, T0, T3); sadd(T5, T5, BLK)
        kv_tiles(T5, T0)
    lab("L_kve_done")

A_Q = [64, 68]
A_S = [72, 88]
A_O = [104, 120]
A_KF = [136, 140]
A_VA = [144, 148]
A_VB = [152, 156]
A_IDX = 160
A_F = 164
A_NM = 72 + 16
WOR = 192
Y_R = 32
def conv_epilogue():
    c("y[t] = sum_p Z_p[t-p]")
    e("s_waitcnt lgkmcnt(0)")
    e("s_barrier")
    stamp("zbar")
    e("buffer_load_dwordx4 %s, v%d, %s, %s offen sc1" % (vr(A_Q[0], 4), V_L16, R_WS, sQL))
    e("buffer_load_dwordx4 %s, v%d, %s, %s offen offset:1024 sc1" % (vr(A_Q[1], 4), V_L16, R_WS, sQL))
    order = [(0, 0), (0, 4 * ZS), (288, 0), (288, 4 * ZS), (0, 0), (17 * 144, 0), (0, 4 * ZS), (17 * 144, 4 * ZS)]
    def rd(n):
        if n == 4:
            for p in range(4): V("add_u32", PV_ZR + p, T0, v(PV_ZR + p))
        for p in range(4): e("ds_read_b32 v%d, v%d offset:%d" % (Y_R + 4 * n + p, PV_ZR + p, sum(order[n])))
    rd(0); rd(1); rd(2)
    smul(T0, WV, 288); e("s_sub_u32 %s, 4608, %s" % (T0, T0))
    e("s_cmp_eq_u32 %s, 6" % WV)
    e("s_cbranch_scc0 L_nocarry")
    c("carry: last rows of tile 5 (both partials) feed y[1536..1538], finished in the tail")
    t = VT
    for i in range(4): V("mov_b32", PV_CY + i, 0)
    V("and_b32", t, 7, v(V_L)); V("mul_u32_u24", t, ZS, v(t)); V("bfe_u32", t + 1, v(V_L), 3, 1); V("mul_u32_u24", t + 1, 17 * 144, v(t + 1))
    V("add_u32", t, v(t), v(t + 1)); V("add_u32", t, L_Z + 48 * 144 + 112, v(t))
    e("s_mov_b64 exec, 0xffff")
    e("ds_read_b128 %s, v%d" % (vr(PV_CY, 4), t))
    e("s_mov_b64 exec, -1")
    e("s_waitcnt lgkmcnt(0)")
    lab("L_nocarry")
    V("mov_b32", A_IDX, 0xdddddddd)
    V("and_b32", VT, 31, v(V_L)); e("v_cmp_eq_u32 vcc, 16, v%d" % VT); V("mov_b32", VT, 0x3f803f80)
    e("s_mov_b32 s4, 0xffff"); e("s_mov_b32 s5, 0xffff")
    zs = ["    v_cndmask_b32 v%d, 0, v%d, vcc" % (A_VA[0] + i, VT) for i in range(16)]
    zs += ["    v_mov_b32 v%d, 0" % (A_O[0] + i) for i in list(range(9)) + list(range(16, 25))]
    zs += ["    v_mov_b32 v%d, 0" % (A_O[0] + i) for i in list(range(9, 16)) + list(range(25, 32))]
    for n in range(8):
        r = Y_R + 4 * n
        SINK[0].extend(zs[6 * n:6 * n + 6])
        e("s_waitcnt lgkmcnt(%d)" % (4 * (min(n + 2, 7) - n)))
        if n + 3 < 8: rd(n + 3)
        V("add_f32", r, v(r), v(r + 1)); V("add_f32", r + 2, v(r + 2), v(r + 3)); V("add_f32", r, v(r), v(r + 2))
        if n in (1, 3): V("cvt_pk_bf16_f32", V_Y + n // 2, v(r - 4), v(r))
        if n in (5, 7): V("add_f32", r, v(r), v(r - 4))
    V("cvt_pk_bf16_f32", V_Y + 2, v(Y_R + 20), v(Y_R + 28))

def kv_late():
    t = VT
    e("s_cmp_ge_u32 %s, 4" % WV)
    if OPT["b1late"]:
        e("s_cbranch_scc1 L_kvl")
        e("s_waitcnt vmcnt(0)")
        e("s_barrier")
        stamp("S")
        e("s_branch L_kvl_done")
        lab("L_kvl")
    else: e("s_cbranch_scc0 L_kvl_done")
    sand(T1, WV, 3); sshl(T0, T1, 2); sadd(T0, T0, L_FL)
    V("mov_b32", t, T0); V("mov_b32", t + 1, 2); V("mov_b32", t + 2, 3); V("mov_b32", t + 3, 1)
    sshl(T1, T1, 11); sadd(T0, sHB, T1)
    for b in range(1 if OPT["b1late"] else 2, 8):
        sadd(T2, JJ, b); sand(T2, T2, 7); sshl(T2, T2, 13); sadd(T2, T2, T0)
        sadd("m0", T1, b * BLK); sadd(T3, T2, WS_K)
        e("buffer_load_dwordx4 v%d, %s, %s offen sc1 lds" % (V_L16, R_WS, T3))
        sadd(T4, T2, WS_V)
        e("buffer_load_dwordx4 v%d, %s, %s offen offset:1024 sc1 lds" % (V_L16, R_WS, T3))
        sadd("m0", T1, b * BLK + 8192); e("s_nop 0")
        e("buffer_load_dwordx4 v%d, %s, %s offen sc1 lds" % (V_L16, R_WS, T4))
        e("buffer_load_dwordx4 v%d, %s, %s offen offset:1024 sc1 lds" % (V_L16, R_WS, T4))
        if b == 1:
            e("s_waitcnt vmcnt(4)")
            e("s_barrier")
            stamp("S")
        if b == 2 and OPT["b1late"]:
            e("s_waitcnt vmcnt(4)")
            e("ds_write_b32 v%d, v%d" % (t, t + 3))
        if b == 5:
            e("s_waitcnt vmcnt(8)")
            e("ds_write_b32 v%d, v%d" % (t, t + 1))
    precompute_tail()
    e("s_waitcnt vmcnt(0) lgkmcnt(0)")
    e("ds_write_b32 v%d, v%d" % (t, t + 2))
    lab("L_kvl_done")

def kv_check(stage):
    t = VT + 4
    lb = "L_kvchk%d" % stage
    V("mov_b32", t, L_FL)
    e("s_mov_b32 %s, 0" % T3)
    lab(lb)
    e("ds_read_b128 %s, v%d" % (vr(t + 2, 4), t))
    sadd(T3, T3, 1)
    e("s_waitcnt lgkmcnt(0)")
    V("min_u32", t + 2, v(t + 2), v(t + 3)); V("min3_u32", t + 2, v(t + 2), v(t + 4), v(t + 5))
    e("s_cmp_gt_u32 %s, 0x40000" % T3)
    e("s_cbranch_scc1 %s_done" % lb)
    e("v_readfirstlane_b32 %s, v%d" % (T4, t + 2))
    e("s_cmp_lt_u32 %s, %d" % (T4, stage))
    e("s_cbranch_scc1 %s" % lb)
    lab(lb + "_done")

def attn_main():
    c("---- attention main loop: wave = 2 q-tiles x 32 key tiles (parity w>>2), fully unrolled ----")
    base = [0]
    koff = lambda i: (i // 4 - base[0]) * BLK + (i % 4) * 2048
    def rdK(i):
        if i < 32: e("ds_read_b128 %s, v%d offset:%d" % (vr(A_KF[i & 1], 4), PV_KA, koff(i)))
    def rdV(i):
        if i < 32:
            e("s_mov_b64 exec, s[4:5]")
            e("ds_read_b128 %s, v%d offset:%d" % (vr(A_VA[i & 1], 4), PV_V0, koff(i)))
            e("ds_read_b128 %s, v%d offset:%d" % (vr(A_VB[i & 1], 4), PV_V0, koff(i) + 512))
            e("s_mov_b64 exec, -1")
    def qk(i, q):
        if i < 32: e("v_mfma_f32_32x32x16_bf16 %s, %s, %s, 0" % (vr(A_S[q], 16), vr(A_KF[i & 1], 4), vr(A_Q[q], 4)))
    def pv(i, q, half):
        if i < 0: return
        a = (A_VA if half == 0 else A_VB)[i & 1]
        e("v_smfmac_f32_32x32x32_bf16 %s, %s, %s, v%d" % (vr(A_O[q], 16), vr(a, 4), vr(A_S[q] + 8 * half, 8), A_IDX))
    def ex(q, lo, hi):
        for k in range(lo, hi): e("v_exp_f32 v%d, v%d" % (A_S[q] + k, A_S[q] + k))
    rdK(0); rdK(1); rdV(0)
    e("s_cmp_ge_u32 %s, 4" % WV)
    e("s_cbranch_scc1 L_prio1")
    e("s_setprio 2")
    e("s_branch L_prio_done")
    lab("L_prio1")
    e("s_setprio 1")
    lab("L_prio_done")
    e("s_waitcnt lgkmcnt(3)")
    qk(0, 0)
    nop(12)
    ytiles = OPT["yt"]; wtiles = OPT["wt"]
    for i in range(32):
        c("key tile %d" % i)
        if i in (OPT["flip1"], OPT["flip"], OPT["mid"]):
            if i == OPT["mid"]: e("s_barrier")
            e("s_cmp_ge_u32 %s, 4" % WV)
            e("s_cbranch_scc1 L_noflip%d" % i)
            e("s_setprio %d" % (2 if i == OPT["mid"] else 0))
            lab("L_noflip%d" % i)
        if i == 2 and OPT["b1late"]: kv_check(1)
        if i == 6: kv_check(2)
        if i == 14: kv_check(3)
        ex(0, 0, 2); pv(i - 1, 1, 1); ex(0, 2, 5); qk(i, 1)
        e("s_waitcnt lgkmcnt(0)")
        if i in (11, 23):
            for r in (PV_KA, PV_V0): V("add_u32", r, 3 * BLK, v(r))
            base[0] += 3
        rdK(i + 2); rdV(i + 1)
        if i in ytiles:
            n = ytiles.index(i)
            e("buffer_store_dword v%d, v%d, %s, %s offen %s" % (V_Y + n, PV_YA, R_OUT, sYS2 if n == 2 else sYS, OPT["ypol"]))
            if n == 0: sadd(sYS, sYS, 0x20000)
            if n == 2: sadd(sYS2, sYS2, 0x100000)
        if i in wtiles:
            sadd("m0", W10, L_WO + 8192 * wtiles.index(i))
            if wtiles.index(i): sadd(sWO, sWO, 0x10000)
            else: e("s_nop 0")
            e("buffer_load_dwordx4 v%d, %s, %s offen lds" % (PV_WA, R_WO, sWO))
        ex(0, 5, 11); pv(i, 0, 0); ex(0, 11, 16)
        ex(1, 0, 2); pv(i, 0, 1); ex(1, 2, 5); qk(i + 1, 0)
        ex(1, 5, 11); pv(i, 1, 0); ex(1, 11, 16)
    e("s_nop 1")
    pv(31, 1, 1)
    e("s_setprio 0")

def combine():
    c("combine the two key-parity halves through LDS")
    e("s_waitcnt vmcnt(0)")
    e("s_barrier")
    stamp("attn")
    e("s_cmp_ge_u32 %s, 4" % WV)
    e("s_cbranch_scc1 L_cmb1")
    for kp in range(2):
        if kp: lab("L_cmb1")
        o = A_O[1 - kp]
        if kp == 0: nop(8)
        for k in range(3): e("ds_write_b128 v%d, %s offset:%d" % (PV_CW, vr(o + 4 * k, 4), 1024 * k))
        e("s_waitcnt lgkmcnt(0)")
        e("s_barrier")
        for k in range(3): e("ds_read_b128 %s, v%d offset:%d" % (vr(A_F + 4 * k, 4), PV_CR, 1024 * k))
        if kp:
            for i in range(4): V("mov_b32", A_Q[0] + i, v(A_Q[1] + i))
        e("s_waitcnt lgkmcnt(0)")
        for i in (8, 0, 1, 2, 3, 4, 5, 6, 7): V("add_f32", A_F + i, v(A_F + i), v(A_O[kp] + i))
        if kp == 0: e("s_branch L_cmb_done")
    lab("L_cmb_done")

def attn_check_and_slow():
    t = VT
    V("mov_b32", t + 1, v(A_F + 8))
    e("s_nop 1")
    e("v_permlane32_swap_b32 v%d, v%d" % (A_F + 8, t + 1))
    attn_publish()
    c("---- softmax guard: the fast path used shift 0; redo with the true row max if that was unsafe ----")
    V("mul_f32", t, 0, v(A_F))
    for i in range(1, 8): V("fma_f32", t, v(A_F + i), 0, v(t))
    e("v_cmp_nle_f32 vcc, %s, v%d" % (fl(2.0 ** -40), A_F + 8))
    V("mov_b32", t + 1, fl(2.0 ** 100))
    e("v_cmp_nle_f32 s[4:5], v%d, v%d" % (A_F + 8, t + 1))
    e("v_cmp_neq_f32 s[6:7], 0, v%d" % t)
    e("s_or_b64 vcc, vcc, s[4:5]")
    e("s_or_b64 vcc, vcc, s[6:7]")
    if OPT["forceslow"]: e("s_mov_b64 vcc, -1")
    e("s_cmp_lg_u64 vcc, 0")
    e("s_cbranch_scc1 L_slow")
    lab("L_attn_ok")

def slow_path():
    t = VT
    lab("L_slow")
    S_, KF, VA, VB = A_S[0], A_KF[0], A_VA[0], A_VB[0]
    c("slow path pass 1: true row max (K from the workspace)")
    sadd(T0, sHB, WS_K)
    V("mov_b32", t, 0xff800000)
    e("s_mov_b32 %s, 0" % CNT)
    lab("L_slow1")
    e("buffer_load_dwordx4 %s, v%d, %s, %s offen sc1" % (vr(KF, 4), V_L16, R_WS, T0))
    sadd(T0, T0, 1024)
    e("s_waitcnt vmcnt(0)")
    e("v_mfma_f32_32x32x16_bf16 %s, %s, %s, 0" % (vr(S_, 16), vr(KF, 4), vr(A_Q[0], 4)))
    nop(12)
    for k in range(0, 16, 2): V("max3_f32", t, v(t), v(S_ + k), v(S_ + k + 1))
    sadd(CNT, CNT, 1)
    e("s_cmp_lt_u32 %s, 64" % CNT)
    e("s_cbranch_scc1 L_slow1")
    V("mov_b32", t + 1, v(t))
    e("s_nop 1")
    e("v_permlane32_swap_b32 v%d, v%d" % (t, t + 1))
    e("s_nop 1")
    V("max_f32", t, v(t), v(t + 1))
    for k in range(16): V("mul_f32", A_NM + k, "-1.0", v(t))
    c("slow path pass 2")
    for k in range(16): V("mov_b32", A_F + k, 0)
    for k in range(4):
        V("mov_b32", VA + k, 0x3f803f80); V("mov_b32", VB + k, 0x3f803f80)
    V("and_b32", t, 15, v(V_L)); V("lshrrev_b32", t + 1, 5, v(V_L)); V("lshlrev_b32", t, 4, v(t)); V("lshl_add_u32", t, v(t + 1), 8, v(t))
    sadd(T0, sHB, WS_K); sadd(T1, sHB, WS_V)
    e("s_mov_b32 %s, 0" % CNT)
    lab("L_slow2")
    e("buffer_load_dwordx4 %s, v%d, %s, %s offen sc1" % (vr(KF, 4), V_L16, R_WS, T0))
    e("s_mov_b32 exec_lo, 0xffff")
    e("s_mov_b32 exec_hi, 0xffff")
    e("buffer_load_dwordx4 %s, v%d, %s, %s offen sc1" % (vr(VA, 4), t, R_WS, T1))
    e("buffer_load_dwordx4 %s, v%d, %s, %s offen offset:512 sc1" % (vr(VB, 4), t, R_WS, T1))
    e("s_mov_b64 exec, -1")
    sadd(T0, T0, 1024); sadd(T1, T1, 1024)
    e("s_waitcnt vmcnt(0)")
    e("v_mfma_f32_32x32x16_bf16 %s, %s, %s, %s" % (vr(S_, 16), vr(KF, 4), vr(A_Q[0], 4), vr(A_NM, 16)))
    nop(12)
    for k in range(16): e("v_exp_f32 v%d, v%d" % (S_ + k, S_ + k))
    e("s_nop 1")
    e("v_smfmac_f32_32x32x32_bf16 %s, %s, %s, v%d" % (vr(A_F, 16), vr(VA, 4), vr(S_, 8), A_IDX))
    e("v_smfmac_f32_32x32x32_bf16 %s, %s, %s, v%d" % (vr(A_F, 16), vr(VB, 4), vr(S_ + 8, 8), A_IDX))
    sadd(CNT, CNT, 1)
    e("s_cmp_lt_u32 %s, 64" % CNT)
    nop(4)
    e("s_cbranch_scc1 L_slow2")
    nop(12)
    attn_publish()
    e("s_branch L_attn_ok")

def attn_publish():
    t = VT
    c("normalise and publish O (q-tile 2*(w&3) + (w>>2))")
    V("rcp_f32", t, v(A_F + 8))
    e("s_nop 0")
    for i in range(8): V("mul_f32", A_F + i, v(A_F + i), v(t))
    P = 32
    for i in range(4): V("cvt_pk_bf16_f32", P + i, v(A_F + 2 * i), v(A_F + 2 * i + 1))
    e("s_nop 1")
    e("v_permlane32_swap_b32 v%d, v%d" % (P, P + 2))
    e("v_permlane32_swap_b32 v%d, v%d" % (P + 1, P + 3))
    e("buffer_store_dwordx4 %s, v%d, %s, %s offen sc1" % (vr(P, 4), V_L16, R_WS, sOST))

P_W, P_ACC, P_OF = 96, 32, 48
def tail():
    t = VT
    e("s_cmp_ge_u32 %s, 4" % WV)
    e("s_cbranch_scc1 L_tail_hi")
    c("==== waves 0..3: Wo fragments, poll, O tiles, output projection ====")
    for hh in range(32):
        for tt in range(2):
            e("ds_read_b64_tr_b16 %s, v%d offset:%d" % (vr(P_W + 4 * hh + 2 * tt, 2), PV_WF, L_WO + hh * 2048 + tt * 512))
    signal("c", 20, 7, sF2)
    e("s_barrier")
    stamp("W")
    V("mov_b32", t + 2, L_FL + 24); V("mov_b32", t + 3, 1)
    e("s_cmp_eq_u32 %s, 0" % WV)
    e("s_cbranch_scc0 L_spin2")
    poll("L_poll2", sF2P)
    e("ds_write_b32 v%d, v%d" % (t + 2, t + 3))
    e("s_branch L_seen2")
    lab("L_spin2")
    e("s_mov_b32 %s, 0" % CNT)
    lab("L_spin2l")
    e("ds_read_b32 v%d, v%d" % (t + 3, t + 2))
    sadd(CNT, CNT, 1)
    e("s_waitcnt lgkmcnt(0)")
    e("v_readfirstlane_b32 %s, v%d" % (T0, t + 3))
    e("s_cmp_gt_u32 %s, 0x200000" % CNT)
    e("s_cbranch_scc1 L_seen2")
    e("s_cmp_eq_u32 %s, 0" % T0)
    e("s_cbranch_scc1 L_spin2l")
    lab("L_seen2")
    stamp("poll2")
    sadd("m0", W10, L_O); e("s_nop 0")
    for n in range(16):
        e("buffer_load_dwordx4 v%d, %s, %s offen sc1 lds" % (V_L16, R_WS, sOLD))
        if n < 15:
            sadd("m0", "m0", 4096); sadd(sOLD, sOLD, 0x20000)
    e("s_barrier")
    def mm(st):
        for k in range(4):
            hh = 4 * st + k
            e("v_mfma_f32_32x32x16_bf16 %s, %s, %s, %s" % (vr(P_ACC, 16), vr(P_W + 4 * hh, 4), vr(P_OF + 16 * (st & 1) + 4 * k, 4), "0" if hh == 0 else vr(P_ACC, 16)))
    for st in range(8):
        if st % 2 == 0:
            e("s_waitcnt vmcnt(%d)" % (12 - 2 * st))
            e("s_barrier")
            if st == 0: stamp("O1")
        for k in range(4): e("ds_read_b128 %s, v%d offset:%d" % (vr(P_OF + 16 * (st & 1) + 4 * k, 4), PV_OR, (4 * st + k) * 2048))
        if st > 0:
            e("s_waitcnt lgkmcnt(4)")
            mm(st - 1)
    e("s_waitcnt lgkmcnt(0)")
    mm(7)
    nop(12)
    for i in range(8): V("cvt_pk_bf16_f32", P_OF + i, v(P_ACC + 2 * i), v(P_ACC + 2 * i + 1))
    e("ds_write_b128 v%d, %s" % (PV_OW, vr(P_OF, 4)))
    e("ds_write_b128 v%d, %s offset:16" % (PV_OW, vr(P_OF + 4, 4)))
    c("WG 0 advances the epoch word (every WG has read it: all of them have published)")
    e("s_cmp_eq_u32 s2, 0")
    e("s_cbranch_scc0 L_fin")
    e("s_cmp_eq_u32 %s, 0" % WV)
    e("s_cbranch_scc0 L_fin")
    flag_store("0")
    e("s_branch L_fin")
    lab("L_tail_hi")
    c("==== waves 4..7: causal conv of output tiles 6,7 (two lag halves per channel) ====")
    for p in range(4): V("add_u32", PV_ZR + p, (L_Z2 - L_Z - 4608 - 1152 + p * (ZS2 - ZS)) & 0xffffffff, v(PV_ZR + p))
    def sigw(tag):
        signal(tag, 20, 7, sF2)
        e("s_barrier")
    e("s_bitcmp1_b32 %s, 0" % WV)
    e("s_cbranch_scc1 L_ct_b")
    conv_job(6, 0, 4, False, PV_CA, PV_CB, lambda: sigw("d"), OPT["tsig"])
    e("s_branch L_ct_done")
    lab("L_ct_b")
    conv_job(6, 16, 3, True, PV_CA, PV_CB, lambda: sigw("e"), OPT["tsig"])
    lab("L_ct_done")
    z_writes(PV_ZW2, 0)
    e("s_cmp_eq_u32 %s, 6" % WV)
    e("s_cbranch_scc0 L_nocarry2")
    V("bfe_u32", t + 2, v(V_L), 2, 1); V("mul_u32_u24", t + 2, 8 * ZS2, v(t + 2)); V("bfe_u32", t + 1, v(V_L), 3, 1); V("lshlrev_b32", t + 1, 2, v(t + 1))
    V("and_b32", t + 3, 3, v(V_L)); V("add_u32", t + 1, v(t + 1), v(t + 3)); V("mul_u32_u24", t + 1, ZS2, v(t + 1))
    V("add_u32", t + 2, v(t + 2), v(t + 1)); V("add_u32", t + 2, L_Z2 + 112, v(t + 2))
    e("s_mov_b64 exec, 0xffff")
    e("ds_write_b128 v%d, %s" % (t + 2, vr(PV_CY, 4)))
    e("s_mov_b64 exec, -1")
    lab("L_nocarry2")
    e("s_waitcnt lgkmcnt(0)")
    stamp("cend2")
    e("s_barrier")
    c("y[1536 + 64w' + l] for w' = w-4 and w")
    order = [(g, cl, st) for g in range(2) for cl in range(2) for st in range(2)]
    def rd(n):
        g, cl, st = order[n]
        for p in range(4): e("ds_read_b32 v%d, v%d offset:%d" % (Y_R + 4 * n + p, PV_ZR + p, cl * 8 * ZS2 + st * 4 * ZS2 + g * 1152))
    rd(0); rd(1); rd(2)
    for n in range(8):
        r = Y_R + 4 * n
        e("s_waitcnt lgkmcnt(%d)" % (4 * (min(n + 2, 7) - n)))
        if n + 3 < 8: rd(n + 3)
        V("add_f32", r, v(r), v(r + 1)); V("add_f32", r + 2, v(r + 2), v(r + 3)); V("add_f32", r, v(r), v(r + 2))
        if n % 2: V("add_f32", r, v(r), v(r - 4))
        if n % 4 == 3: V("cvt_pk_bf16_f32", V_Y + n // 4, v(r - 8), v(r))
    S("sub_u32", sYS, sYS2, 0x80000)
    for st in range(4):
        if st == OPT["yat"]:
            e("buffer_store_dword v%d, v%d, %s, %s offen" % (V_Y, PV_YA, R_OUT, sYS))
            e("buffer_store_dword v%d, v%d, %s, %s offen" % (V_Y + 1, PV_YA, R_OUT, sYS2))
        e("s_barrier")
    if OPT["yat"] == 4:
        e("buffer_store_dword v%d, v%d, %s, %s offen" % (V_Y, PV_YA, R_OUT, sYS))
        e("buffer_store_dword v%d, v%d, %s, %s offen" % (V_Y + 1, PV_YA, R_OUT, sYS2))
    lab("L_fin")
    e("s_waitcnt lgkmcnt(0)")
    e("s_barrier")
    stamp("opdone")
    e("ds_read_b128 v[32:35], v%d" % PV_FR)
    e("s_waitcnt lgkmcnt(0)")
    e("buffer_store_dwordx4 v[32:35], v%d, %s, %s offen %s" % (PV_FS, R_OUT, sOUT, OPT["opol"]))

def dump_lds(base, nbytes, wsoff):
    t = VT + 10
    e("s_waitcnt lgkmcnt(0)"); e("s_barrier")
    V("lshlrev_b32", t, 4, v(0))
    sshl(T0, "s2", 18); sadd(T0, T0, WS_DBG + wsoff)
    for o in range(0, nbytes, 8192):
        V("add_u32", t + 1, base + o, v(t))
        e("ds_read_b128 %s, v%d" % (vr(t + 2, 4), t + 1))
        e("s_waitcnt lgkmcnt(0)")
        e("buffer_store_dwordx4 %s, v%d, %s, %s offen" % (vr(t + 2, 4), t, R_WS, T0))
        sadd(T0, T0, 8192)
        e("s_waitcnt vmcnt(0)")
    e("s_barrier")

def write_stamps():
    t = VT
    if OPT["ldst"]:
        e("s_waitcnt vmcnt(0) lgkmcnt(0)")
        sshl(T0, "s2", 3); sadd(T0, T0, WV); sshl(T0, T0, 7); sadd(T0, T0, WS_ST)
        e("s_mov_b64 exec, 1")
        V("mov_b32", t, 0)
        for i in range(10):
            V("mov_b32", t + 1, sr(80 + 2 * i))
            e("buffer_store_dword v%d, v%d, %s, %s offen offset:%d" % (t + 1, t, R_WS, T0, 4 * i))
            e("s_nop 1")
        e("s_mov_b64 exec, -1")
    if OPT["echo"]:
        a, b, m = OPT["echo"].split(",")
        e("s_cmp_eq_u32 %s, %d" % (WV, OPT["echowv"])); e("s_cbranch_scc0 L_end")
        e("s_cmp_eq_u32 s2, %d" % OPT["echowg"]); e("s_cbranch_scc0 L_end")
        e("s_waitcnt vmcnt(0)")
        stamp("end")
        if a == "start": e("s_mov_b32 s80, s100")
        e("s_sub_u32 s82, s81, s80"); e("s_mul_i32 s82, s82, %s" % m); e("s_min_u32 s82, s82, 20000")
        e("s_memrealtime s[84:85]"); e("s_waitcnt lgkmcnt(0)")
        lab("L_echo")
        e("s_memrealtime s[86:87]"); e("s_waitcnt lgkmcnt(0)")
        e("s_sub_u32 s83, s86, s84"); e("s_cmp_lt_u32 s83, s82"); e("s_cbranch_scc1 L_echo")
    if OPT["stamps"]:
        e("s_waitcnt vmcnt(0)")
        stamp("end")
        sshl(T0, "s2", 3); sadd(T0, T0, WV); sshl(T0, T0, 7); sadd(T0, T0, WS_ST)
        e("s_mov_b64 exec, 1")
        V("mov_b32", t, 0)
        for i in range(len(stamp_names)):
            V("mov_b32", t + 1, sr(S_ST + i))
            e("buffer_store_dword v%d, v%d, %s, %s offen offset:%d" % (t + 1, t, R_WS, T0, 4 * i))
            e("s_nop 1")
        V("mov_b32", t + 1, "s100")
        e("buffer_store_dword v%d, v%d, %s, %s offen offset:124" % (t + 1, t, R_WS, T0))
        e("s_memrealtime s[98:99]")
        e("s_waitcnt lgkmcnt(0)")
        V("mov_b32", t + 2, "s98")
        e("buffer_store_dword v%d, v%d, %s, %s offen offset:120" % (t + 2, t, R_WS, T0))
        e("s_mov_b64 exec, -1")
        L.insert(0, "; stamps: " + ",".join(stamp_names))
    if OPT["dbgspan"]:
        e("s_cmp_eq_u32 %s, 0" % WV); e("s_cbranch_scc0 L_end")
        sand(T0, "s2", 63); e("s_cmp_eq_u32 %s, 5" % T0); e("s_cbranch_scc0 L_end")
        e("s_waitcnt vmcnt(0)")
        e("s_memrealtime s[96:97]"); e("s_memtime s[94:95]")
        srd(R_X, S_DBG, 256)
        sshr(T0, "s2", 6); sshl(T0, T0, 4)
        e("s_waitcnt lgkmcnt(0)")
        e("s_mov_b64 exec, 1")
        V("mov_b32", t, 0)
        e("s_sub_u32 s94, s94, s98"); e("s_sub_u32 s96, s96, s100")
        V("mov_b32", t + 2, "s100"); V("mov_b32", t + 3, "s96"); V("mov_b32", t + 4, "s94"); V("mov_b32", t + 5, 0)
        e("buffer_store_dwordx4 %s, v%d, %s, %s offen" % (vr(t + 2, 4), t, R_X, T0))

def main():
    header()
    setup()
    loader_path()
    compute_path()
    lab("L_gemm_done")
    if OPT["gprio"]: e("s_setprio 0")
    e("s_waitcnt lgkmcnt(0)")
    e("s_barrier")
    stamp("K2")
    if OPT["dump"]: dump_lds(L_KF, 24576, 0)
    conv()
    kv_early()
    conv_epilogue()
    if not OPT["b1late"]:
        e("s_waitcnt vmcnt(0)")
        e("s_barrier")
        stamp("S")
    kv_late()
    attn_main()
    combine()
    attn_check_and_slow()
    tail()
    write_stamps()
    e("s_endpgm")
    slow_path()
    footer(256)
    open(sys.argv[1], "w").write("\n".join(L) + "\n")

main()
```

```python
import sys, struct, math

NAME = "concat_heads__ssm_conv_s4__softmax_full_mha__prompt"
OPT = dict(ldst=0, ypol="", opol="", abl="", echo="", echowg=0, echowv=0, stamps=0, dump=0, forceslow=0, dbgspan=0, flip1=14, mid=16, flip=30, pf=2, apre=45, f0=5, f2=2, umode=0, uat=0, ust2=1, lsp=0, fline=0, psleep=0, ppol="sc1", gprio=0, kvrot=0, qearly=0, cfill=3, gsig=1, pfx=0, tsig=0, b1late=0, rot=6, yat=0, npre=999,
           yt=[15, 20, 25], wt=[17, 18, 19, 21, 22, 23, 24, 26])
for a in sys.argv[2:]:
    k, v = a.split("=")
    OPT[k] = int(v) if v.lstrip("-").isdigit() else v

L = []
SINK = [L]
def e(s): SINK[0].append("    " + s)
def lab(s): SINK[0].append(s + ":")
def c(s): SINK[0].append("    ; " + s)
def f2u(x): return struct.unpack("<I", struct.pack("<f", x))[0]
def fl(x): return "0x%08x" % f2u(x)
def vr(a, n=1): return "v%d" % a if n == 1 else "v[%d:%d]" % (a, a + n - 1)
def sr(a, n=1): return "s%d" % a if n == 1 else "s[%d:%d]" % (a, a + n - 1)
def nop(n):
    while n > 0:
        k = min(n, 16); e("s_nop %d" % (k - 1)); n -= k
def capture(fn, *a):
    old = SINK[0]; out = []; SINK[0] = out; fn(*a); SINK[0] = old; return out

WS_F1 = 0x1000
WS_F2 = 0xa000
WS_F0 = 0x20000
WS_Q, WS_K, WS_V, WS_O, WS_U2 = 0x100000, 0x300000, 0x500000, 0x700000, 0x900000
WS_ST = 0xc00000
WS_DBG = 0x1000000
WS_SIZE = 0x10000000
LDS_TOTAL = 163840
BLK = 16384
L_TB = 98304
L_TA = 0
L_FL = 146240
L_KF = 146304
L_UP = 154624
ZS = 9504
L_Z = 70208
ZS2 = 2448
L_Z2 = 0
L_WO = 0
L_O = 65536
L_SC = 65536
L_OT = 131072
S_U, S_ARE, S_AIM, S_BRE, S_BIM, S_CRE, S_CIM, S_LDT = 8, 10, 12, 14, 16, 18, 20, 22
S_DSK, S_X, S_W, S_WO, S_OUT, S_DBG, S_WS = 24, 26, 28, 30, 32, 34, 36
R_X, R_W, R_WS, R_U, R_OUT, R_WO = "s[40:43]", "s[44:47]", "s[48:51]", "s[52:55]", "s[56:59]", "s[60:63]"
XQ, I5, WV, TAG, LD2, DS2, HH, JJ, C0 = "s64", "s65", "s66", "s67", "s68", "s69", "s70", "s71", "s72"
T0, T1, T2, T3, T4, T5, CNT = "s73", "s74", "s75", "s76", "s77", "s78", "s79"
CQ, CL, W10, GT, GQ = "s38", "s39", "s3", "s6", "s7"
JR = "s97"
sQKV, sF1, sF1P, sYS, sWO, sOST, sOLD, sOUT, sF2, sF2P, sHB, sQL = ["s%d" % i for i in range(8, 20)]
sYS2 = "s38"
S_ST = 80
stamp_names = []
def stamp(name):
    if OPT["echo"]:
        a, b, m = OPT["echo"].split(",")
        if name in (a, b):
            e("s_waitcnt lgkmcnt(0)")
            e("s_memrealtime s[98:99]")
            e("s_waitcnt lgkmcnt(0)")
            e("s_mov_b32 %s, s98" % ("s80" if name == a else "s81"))
    if OPT["stamps"]:
        if name not in stamp_names: stamp_names.append(name)
        assert len(stamp_names) <= 18
        e("s_waitcnt lgkmcnt(0)")
        e("s_memrealtime s[98:99]" if OPT["stamps"] == 2 else "s_memtime s[98:99]")
        e("s_waitcnt lgkmcnt(0)")
        e("s_mov_b32 %s, s98" % sr(S_ST + stamp_names.index(name)))
def srd(r, base, size):
    r = int(r[2:r.index(":")])
    e("s_mov_b32 %s, %s" % (sr(r), sr(base)))
    e("s_and_b32 %s, %s, 0xffff" % (sr(r + 1), sr(base + 1)))
    e("s_mov_b32 %s, 0x%x" % (sr(r + 2), size))
    e("s_mov_b32 %s, 0x00020000" % sr(r + 3))
def csel(dst, a, b):
    e("s_mov_b32 %s, %d" % (dst, b))
    e("s_cselect_b32 %s, %d, %s" % (dst, a, dst))
def S(op, d, a, b): e("s_%s %s, %s, %s" % (op, d, a, b if isinstance(b, str) else ("0x%x" % b if b > 64 else str(b))))
def sadd(d, a, b): S("add_u32", d, a, b)
def sshl(d, a, b): S("lshl_b32", d, a, b)
def sshr(d, a, b): S("lshr_b32", d, a, b)
def sand(d, a, b): S("and_b32", d, a, b)
def smul(d, a, b): S("mul_i32", d, a, b)
def V(op, d, *a): e("v_%s v%d, %s" % (op, d, ", ".join(("v%d" % x[0] if isinstance(x, tuple) else (x if isinstance(x, str) else ("0x%x" % x if x > 64 else str(x)))) for x in a)))
def v(x): return (x,)
LOG2E = math.log2(math.e)

V_L, V_L16, V_PA = 1, 2, 3
V_PAR = 4
V_Y = 10
VT = 14
(PV_CA, PV_CB, PV_ZW, PV_ZR, _z1, _z2, _z3, PV_KA, PV_V0, PV_V1, PV_YA, PV_WA, PV_CW, PV_CR,
 PV_OR, PV_OW, PV_WF, PV_FR, PV_FS, PV_WS) = range(224, 244)
PV_ZW2 = PV_V1
PV_CY = 250
PV_QS, PV_VS, PV_TW = 222, 223, 219
PV_GA, PV_GB, PV_GW, PV_GD, PV_US = 244, 245, 246, 247, 248

def header():
    L.append("; fused S4 long-conv (part A) + multi-head attention (part B): one launch, 256 WGs x 8 waves")
    L.append("; @launch grid=(256,1,1) block=(512,1,1) lds=%d" % LDS_TOTAL)
    L.append('.amdgcn_target "amdgcn-amd-amdhsa--gfx950"')
    L.append(".text")
    L.append(".globl %s_kernel" % NAME)
    L.append(".p2align 8")
    L.append(".type %s_kernel,@function" % NAME)
    L.append("%s_kernel:" % NAME)
def footer(nv):
    lab("L_end")
    e("s_endpgm")
    L.append('.section .rodata,"a"')
    L.append(".p2align 6")
    L.append(".amdhsa_kernel %s_kernel" % NAME)
    L.append("  .amdhsa_next_free_vgpr %d" % nv)
    L.append("  .amdhsa_next_free_sgpr 102")
    L.append("  .amdhsa_accum_offset %d" % nv)
    L.append("  .amdhsa_group_segment_fixed_size 0")
    L.append("  .amdhsa_kernarg_size 120")
    L.append("  .amdhsa_user_sgpr_count 2")
    L.append("  .amdhsa_user_sgpr_kernarg_segment_ptr 1")
    L.append("  .amdhsa_system_sgpr_workgroup_id_x 1")
    L.append(".end_amdhsa_kernel")

def setup():
    c("---- setup ----")
    e("s_cmp_ge_u32 s2, 256")
    e("s_cbranch_scc1 L_end")
    e("s_load_dwordx8 s[24:31], s[0:1], 64")
    e("s_load_dwordx16 s[8:23], s[0:1], 0")
    e("s_load_dwordx4 s[32:35], s[0:1], 96")
    e("s_load_dwordx2 s[36:37], s[0:1], 112")
    if OPT["stamps"] or OPT["dbgspan"] or OPT["echo"]: e("s_memrealtime s[100:101]")
    if OPT["dbgspan"]: e("s_memtime s[98:99]")
    if OPT["pf"] == 2:
        c("pull this WG's 1/32 share of the code into L2 right away (thread t<8: line 8*(wg>>3)+t)")
        e("s_getpc_b64 s[4:5]")
        lab("L_pc")
        e("s_and_b32 s3, s2, 0xf8")
        V("add_u32", VT, "s3", v(0)); V("lshlrev_b32", VT, 7, v(VT))
        e("v_min_u32 v%d, L_end-L_pc-4, v%d" % (VT, VT))
        e("v_cmp_gt_u32 vcc, 8, v0")
        e("s_and_saveexec_b64 s[6:7], vcc")
        e("s_cbranch_execz L_nopf")
        e("global_load_dword v47, v%d, s[4:5]" % VT)
        lab("L_nopf")
        e("s_mov_b64 exec, -1")
    V("and_b32", V_L, 63, v(0))
    V("lshrrev_b32", VT, 6, v(0))
    V("lshlrev_b32", V_L16, 4, v(V_L))
    V("mov_b32", PV_FS, 0)
    e("v_readfirstlane_b32 %s, v%d" % (WV, VT))
    sand(XQ, "s2", 7)
    sshr(I5, "s2", 3)
    sand(GT, XQ, 3); sshl(GT, GT, 3); sshr(JJ, I5, 2); sadd(GT, GT, JJ)
    sand(GQ, XQ, 4); sand(T0, I5, 3); sadd(GQ, GQ, T0)
    sshl(HH, XQ, 2); sadd(HH, HH, T0)
    sshl(C0, XQ, 5); sadd(C0, C0, I5); sshl(C0, C0, 1)
    sshl(W10, WV, 10)
    e("s_cmp_ge_u32 %s, 4" % WV)
    e("s_cbranch_scc0 L_compute")

def scalar_loads():
    sshl(T3, C0, 1)
    e("s_load_dword %s, %s, 0" % (TAG, sr(S_WS, 2)))
    e("s_load_dword %s, %s, %s" % (LD2, sr(S_LDT, 2), T3))
    e("s_load_dword %s, %s, %s" % (DS2, sr(S_DSK, 2), T3))

def lane_terms():
    t = VT
    hf, b7, p4, r4, g1, l15, l8 = t, t + 1, t + 2, t + 3, t + 4, t + 5, t + 6
    V("lshrrev_b32", hf, 5, v(V_L)); V("and_b32", b7, 7, v(V_L)); V("bfe_u32", p4, v(V_L), 3, 2)
    V("bfe_u32", r4, v(V_L), 2, 2); V("bfe_u32", g1, v(V_L), 4, 1); V("and_b32", l15, 15, v(V_L)); V("lshrrev_b32", l8, 3, v(V_L))
    return hf, b7, p4, r4, g1, l15, l8

def precompute_conv():
    t = VT
    c("---- conv addresses ----")
    e("s_bfe_u32 %s, %s, 0x10001" % (CL, WV))
    hf, b7, p4, r4, g1, l15, l8 = lane_terms()
    x, y, z = t + 8, t + 9, t + 10
    e("s_cmp_eq_u32 %s, 1" % CL)
    csel(T0, L_KF + 4160 + 96, L_KF + 96); csel(T1, L_UP + 4608, L_UP); csel(T2, L_Z + 4 * ZS + 144, L_Z + 144)
    V("and_b32", x, 3, v(V_L)); V("lshl_add_u32", x, v(g1), 2, v(x)); V("lshl_add_u32", y, v(hf), 3, v(r4))
    V("sub_u32", x, v(x), v(y)); V("lshlrev_b32", x, 3, v(x)); V("add_u32", PV_CA, T0, v(x))
    V("mul_u32_u24", x, 1152, v(p4)); V("add_u32", z, v(b7), v(hf)); V("lshl_add_u32", x, v(z), 4, v(x))
    V("add_u32", PV_CB, T1, v(x))
    V("mul_u32_u24", x, ZS, v(p4)); V("mul_u32_u24", z, 144, v(b7)); V("lshl_add_u32", z, v(hf), 4, v(z)); V("add3_u32", PV_ZW, v(x), v(z), T2)
    sshl(sF1, GQ, 5); sadd(sF1, sF1, GT); sshl(sF1, sF1, 7); sadd(sF1, sF1, WS_F1)
    sshl(T0, XQ, 12); sadd(sF1P, T0, WS_F1); sadd(sF2P, T0, WS_F2)
    sshl(sHB, HH, 16)
    if OPT["kvrot"] == 1: e("s_mov_b32 %s, %s" % (JR, JJ))
    elif OPT["kvrot"] == 0: e("s_mov_b32 %s, 0" % JR)
    else: sand(JR, JJ, OPT["kvrot"])

def precompute():
    t = VT
    c("SPLIT")
    e("s_cmp_ge_u32 %s, 4" % WV)
    e("s_cselect_b32 %s, 1024, 0" % T0)
    hf, b7, p4, r4, g1, l15, l8 = lane_terms()
    x, y, z = t + 8, t + 9, t + 10
    V("add_u32", PV_KA, T0, v(V_L16))
    V("lshlrev_b32", x, 4, v(l15)); V("lshl_add_u32", x, v(hf), 8, v(x)); sadd(T0, T0, 8192); V("add_u32", PV_V0, T0, v(x))
    V("lshlrev_b32", PV_YA, 11, v(V_L))
    V("lshlrev_b32", x, 2, v(g1)); V("xor_b32", x, v(x), v(b7)); V("lshlrev_b32", x, 4, v(x)); V("lshl_add_u32", PV_WA, v(l8), 10, v(x))
    c("SPLIT")
    sshl(T0, WV, 7); sadd(T0, T0, 32)
    for p in range(4):
        V("add_u32", x, T0, v(V_L))
        if p: V("subrev_u32", x, p, v(x))
        V("lshrrev_b32", z, 5, v(x)); V("lshlrev_b32", x, 2, v(x)); V("lshl_add_u32", x, v(z), 4, v(x))
        V("add_u32", PV_ZR + p, L_Z + p * ZS, v(x))
    c("SPLIT")
    sshl(T0, WV, 18); sshl(T1, C0, 1); sadd(sYS, T0, T1)
    sshr(T0, T0, 1); sadd(T0, T0, T1); sadd(sYS2, T0, 0x200000)
    sand(T0, I5, 7); sshl(T0, T0, 7); sshl(T1, WV, 13); sadd(sWO, T0, T1)
    sshl(T1, JJ, 13); sadd(T1, T1, sHB); sand(T2, WV, 3); sshl(T2, T2, 11); sadd(T1, T1, T2)
    sadd(sQL, T1, WS_Q)

def precompute_tail():
    t = VT + 4
    hf, b7, p4, r4, g1, l8 = t, t + 1, t + 2, t + 3, t + 4, t + 5
    V("lshrrev_b32", hf, 5, v(V_L)); V("and_b32", b7, 7, v(V_L)); V("bfe_u32", p4, v(V_L), 3, 2)
    V("bfe_u32", r4, v(V_L), 2, 2); V("bfe_u32", g1, v(V_L), 4, 1); V("lshrrev_b32", l8, 3, v(V_L))
    x, y, z = t + 6, t + 7, t + 8
    S("xor_b32", T0, WV, 4); smul(T0, T0, 3072); sadd(T0, T0, L_SC); smul(T1, WV, 3072); sadd(T1, T1, L_SC)
    V("add_u32", PV_CW, T0, v(V_L16)); V("add_u32", PV_CR, T1, v(V_L16))
    sand(T0, WV, 1); smul(T0, T0, 4 * ZS2); smul(T1, CL, 8 * ZS2); sadd(T0, T0, T1); sadd(T0, T0, L_Z2 + 144)
    V("mul_u32_u24", x, ZS2, v(p4)); V("mul_u32_u24", z, 144, v(b7)); V("lshl_add_u32", z, v(hf), 4, v(z)); V("add3_u32", PV_ZW2, v(x), v(z), T0)
    V("lshl_add_u32", y, v(hf), 3, v(r4)); V("lshlrev_b32", PV_WF, 7, v(y))
    V("and_b32", x, 1, v(V_L)); V("lshl_or_b32", x, v(x), 1, v(g1))
    sand(T0, WV, 2); sshl(T0, T0, 1); V("or_b32", x, T0, v(x))
    V("bfe_u32", z, v(V_L), 3, 1); V("lshlrev_b32", z, 2, v(z)); V("xor_b32", x, v(x), v(z))
    V("lshl_add_u32", PV_WF, v(x), 4, v(PV_WF)); V("bfe_u32", z, v(V_L), 1, 1); V("lshl_add_u32", PV_WF, v(z), 3, v(PV_WF))
    sand(T1, WV, 1); sshl(T2, T1, 10); sadd(T2, T2, L_O); V("add_u32", PV_OR, T2, v(V_L16))
    smul(T1, T1, 4608); sshl(T0, T0, 4); sadd(T0, T0, T1); sadd(T0, T0, L_OT)
    V("and_b32", x, 31, v(V_L)); V("mul_u32_u24", x, 144, v(x)); V("lshl_add_u32", x, v(hf), 5, v(x)); V("add_u32", PV_OW, T0, v(x))
    smul(T0, WV, 1152); sadd(T0, T0, L_OT)
    V("lshlrev_b32", x, 4, v(b7)); V("mul_u32_u24", z, 144, v(l8)); V("add3_u32", PV_FR, v(z), v(x), T0); V("lshl_add_u32", PV_FS, v(l8), 11, v(x))
    sshl(sF2, JJ, 5); sadd(sF2, sF2, HH); sshl(sF2, sF2, 7); sadd(sF2, sF2, WS_F2)
    S("sub_u32", T1, sQL, WS_Q); sshr(T2, WV, 2); sshl(T2, T2, 10); sadd(T1, T1, T2); sadd(sOST, T1, WS_O)
    sshr(T1, WV, 1); sshl(T1, T1, 6); sshl(T2, XQ, 3); sadd(T1, T1, T2); sshr(T3, I5, 3); sshl(T2, T3, 1); sadd(T1, T1, T2)
    sand(T2, WV, 1); sadd(T1, T1, T2); sshl(T1, T1, 10); sadd(sOLD, T1, WS_O)
    sand(T0, I5, 7); sshl(T0, T0, 7)
    sshl(T1, XQ, 2); sadd(T1, T1, T3); sshl(T1, T1, 3); sadd(T1, T1, WV); sshl(T1, T1, 14); sadd(T1, T1, T0); sadd(sOUT, T1, 1024)

G_VX0, G_VX1, G_VWQ, G_VWK, G_VWV, G_PL = 32, 33, 34, 35, 36, 39
G_UA, G_US = 30, 31
G_UL, U2R = 196, 80
G_XA, G_WA, G_WB = 32, 40, 43
G_ACC = [48, 64, 80]
G_XF, G_W0F, G_W1F, G_VF = 96, 112, 128, 144
KB = 48
KR = 192

def loader_addr():
    t = VT
    c("loader DMA voffsets (wave v=w-4 covers rows 16v..16v+15 of each chunk)")
    V("lshrrev_b32", t, 3, v(V_L)); V("and_b32", t + 1, 7, v(V_L)); V("bfe_u32", t + 2, v(V_L), 4, 1)
    sand(T0, WV, 3); sshl(T4, T0, 11); sshl(T0, T0, 4)
    V("add_u32", t + 3, T0, v(t))
    V("bfe_u32", t + 4, v(t + 3), 1, 3); V("xor_b32", t + 4, v(t + 4), v(t + 1)); V("lshlrev_b32", t + 4, 4, v(t + 4))
    sshl(T1, GT, 16)
    V("lshl_add_u32", G_VX0, v(t + 3), 10, v(t + 4)); V("add_u32", G_VX0, T1, v(G_VX0)); V("xor_b32", G_VX1, 0x2040, v(G_VX0))
    V("mul_u32_u24", t + 5, 3072, v(t + 3)); sshl(T1, GQ, 7); V("add_u32", t + 5, T1, v(t + 5))
    V("lshlrev_b32", t + 6, 1, v(t + 2)); V("xor_b32", t + 6, v(t + 6), v(t + 1)); V("lshl_add_u32", G_VWQ, v(t + 6), 4, v(t + 5))
    V("xor_b32", t + 6, 4, v(t + 6)); V("lshl_add_u32", G_VWK, v(t + 6), 4, v(t + 5)); V("add_u32", G_VWK, 1024, v(G_VWK))
    V("lshlrev_b32", t + 6, 2, v(t + 2)); V("xor_b32", t + 6, v(t + 6), v(t + 1)); V("lshl_add_u32", G_VWV, v(t + 6), 4, v(t + 5)); V("add_u32", G_VWV, 2048, v(G_VWV))
    r = OPT["rot"]
    if r == 1: sshl(T5, GQ, 1); sadd(T5, T5, GT)
    else:
        sadd(T5, GQ, GT)
        if r == 3: sshl(T5, T5, 2)
        if r == 5: sand(T5, T5, 1)
        if r == 6: sshl(T5, T5, 1)

I0, I1, I2, I3 = "s20", "s21", "s22", "s23"
def issue_chunk(ci):
    base = (ci % 3) * 32768
    sadd(I0, T5, ci); sand(I0, I0, 7)
    sadd("m0", T4, base); sshl(I1, I0, 7)
    e("buffer_load_dwordx4 v%d, %s, %s offen lds" % (G_VX0, R_X, I1))
    sadd("m0", T4, base + 1024); smul(I2, I0, 196608)
    e("buffer_load_dwordx4 v%d, %s, %s offen lds" % (G_VX1, R_X, I1))
    for g, va in enumerate((G_VWQ, G_VWK, G_VWV)):
        for h in range(2):
            sadd("m0", T4, base + (g + 1) * 8192 + h * 1024)
            if g == 0 and h == 0: sadd(I3, I2, 24576)
            else: e("s_nop 0")
            e("buffer_load_dwordx4 v%d, %s, %s offen lds" % (va, R_W, I3 if h else I2))

def pi_tok(dst, src, t):
    V("and_b32", dst, 0x13, v(src)); V("bfe_u32", t, v(src), 2, 1); V("lshl_or_b32", dst, v(t), 3, v(dst))
    V("bfe_u32", t, v(src), 3, 1); V("lshl_or_b32", dst, v(t), 2, v(dst))

def gemm_read_addr():
    t = VT
    c("GEMM LDS fragment read addresses, publish addresses")
    pi_tok(t, V_L, t + 1)
    V("lshrrev_b32", t + 1, 5, v(V_L))
    V("lshlrev_b32", PV_QS, 4, v(t)); V("lshl_add_u32", PV_QS, v(t + 1), 9, v(PV_QS))
    sand(T0, WV, 1); sshl(T1, T0, 5); V("add_u32", t, T1, v(t))
    V("bfe_u32", t + 2, v(t), 1, 3); V("xor_b32", t + 2, v(t + 2), v(t + 1)); V("lshlrev_b32", t + 2, 4, v(t + 2))
    V("lshl_add_u32", G_XA, v(t), 7, v(t + 2))
    for s in range(1, 4): V("xor_b32", G_XA + s, 32 * s, v(G_XA))
    V("bfe_u32", t + 2, v(V_L), 2, 2); V("lshl_add_u32", t + 3, v(t + 1), 3, v(t + 2)); V("lshlrev_b32", t + 3, 7, v(t + 3))
    V("bfe_u32", t + 4, v(V_L), 4, 1); V("bfe_u32", t + 5, v(V_L), 3, 1); V("and_b32", t + 6, 1, v(V_L)); V("bfe_u32", t + 7, v(V_L), 1, 1)
    sand(T2, WV, 2); sshl(T1, T2, 1)
    V("or_b32", t + 8, T1, v(t + 6)); V("lshl_or_b32", t + 9, v(t + 4), 1, v(t + 5)); V("lshlrev_b32", t + 9, 1, v(t + 9))
    V("xor_b32", t + 8, v(t + 8), v(t + 9)); V("lshl_add_u32", t + 8, v(t + 8), 4, v(t + 3)); V("lshl_add_u32", t + 8, v(t + 7), 3, v(t + 8))
    V("lshl_add_u32", G_WA, v(t + 4), 13, v(t + 8)); V("add_u32", G_WA, 8192, v(G_WA)); V("xor_b32", G_WA + 1, 32, v(G_WA))
    V("lshl_or_b32", t + 8, v(t + 4), 1, v(t + 7)); V("or_b32", t + 8, T1, v(t + 8)); V("lshlrev_b32", t + 9, 2, v(t + 5))
    V("xor_b32", t + 8, v(t + 8), v(t + 9)); V("lshl_add_u32", t + 8, v(t + 8), 4, v(t + 3)); V("lshl_add_u32", t + 8, v(t + 6), 3, v(t + 8))
    V("add_u32", G_WA + 2, 24576, v(t + 8))
    for s in range(4): V("add_u32", G_XA + 4 + s, 0x10000, v(G_XA + s))
    for s in range(3): V("add_u32", G_WB + s, 0x10000, v(G_WA + s))
    V("and_b32", t + 2, 15, v(V_L)); V("lshlrev_b32", t + 2, 4, v(t + 2)); V("lshl_add_u32", t + 2, v(t + 1), 8, v(t + 2)); V("lshl_add_u32", PV_VS, v(t + 4), 16, v(t + 2))
    sshl(T1, GQ, 2); sadd(T1, T1, T2); sshl(T1, T1, 6); sshl(T3, GT, 1); sadd(T1, T1, T3); sadd(T1, T1, T0); sshl(sQKV, T1, 10)
    sshl(T0, T0, 8)
    e("s_bitcmp1_b32 %s, 1" % WV)
    csel(T1, L_TA + 14256, L_TA); csel(T2, L_TB + 16896, L_TB)
    sadd(T1, T1, T0); sadd(T2, T2, T0)
    V("lshl_add_u32", PV_TW, v(V_L), 2, T1); V("lshl_add_u32", 46, v(V_L), 2, T2)

G_UP = 29
def u_coop_loads():
    t = VT
    if OPT["umode"] == 0:
        e("s_bfe_u32 %s, %s, 0x10001" % (T1, WV)); sand(T0, WV, 1)
        V("and_b32", t, 7, v(V_L)); V("bfe_u32", t + 1, v(V_L), 3, 2)
        sshl(T0, T0, 2); V("add_u32", t + 1, T0, v(t + 1))
        sshl(T2, I5, 1); sadd(T1, T1, T2); sshl(T1, T1, 3); V("add_u32", t, T1, v(t))
        V("lshlrev_b32", t + 2, 4, v(t + 1)); V("lshl_add_u32", G_UA, v(t), 12, v(t + 2))
        V("lshlrev_b32", t, 4, v(t)); V("lshl_add_u32", G_US, v(t + 1), 15, v(t))
        sshl(T0, XQ, 7)
        e("s_mov_b32 exec_hi, 0")
        for k in range(4):
            e("buffer_load_dwordx4 %s, v%d, %s, %s offen offset:%d" % (vr(G_UL + 4 * k, 4), G_UA, R_U, T0, 1024 * k))
        e("s_mov_b32 exec_hi, -1")
        return
    sshl(T1, I5, 2); sadd(T1, T1, WV); sshl(T1, T1, 2)
    V("bfe_u32", t, v(V_L), 3, 2); V("add_u32", t, T1, v(t)); V("and_b32", t + 1, 7, v(V_L))
    V("lshlrev_b32", t + 1, 4, v(t + 1)); V("lshl_add_u32", G_UA, v(t), 12, v(t + 1))
    sshl(T0, XQ, 7)
    e("s_mov_b32 exec_hi, 0")
    for k in range(4):
        e("buffer_load_dwordx4 %s, v%d, %s, %s offen offset:%d" % (vr(G_UL + 4 * k, 4), G_UA, R_U, T0, 1024 * k))
    e("s_mov_b32 exec_hi, -1")
    V("and_b32", t, 3, v(V_L)); V("bfe_u32", t + 1, v(V_L), 2, 3)
    V("lshl_add_u32", G_UP, v(t), 3, v(t + 1)); V("lshlrev_b32", G_UP, 2, v(G_UP))
    V("add_u32", t, T1, v(t)); V("lshlrev_b32", t, 4, v(t)); V("lshl_add_u32", G_US, v(t + 1), 15, v(t))

def u_coop_perm():
    D = 240
    e("s_waitcnt vmcnt(0)")
    for i in range(4):
        for k in range(4):
            if OPT["umode"]: e("ds_bpermute_b32 v%d, v%d, v%d" % (D + 4 * i + k, G_UP, G_UL + 4 * k + i))
            else: V("mov_b32", D + 4 * i + k, v(G_UL + 4 * k + i))
def u_coop_stores():
    D = 240
    sshl(I0, XQ, 18); sadd(I0, I0, WS_U2)
    e("s_mov_b32 exec_hi, 0")
    for i in range(4):
        e("buffer_store_dwordx4 %s, v%d, %s, %s offen sc1" % (vr(D + 4 * i, 4), G_US, R_WS, I0))
        if i < 3: sadd(I0, I0, 8192)
    e("s_mov_b32 exec_hi, -1")

def flag_store(soff, t=VT):
    if OPT["fline"] and soff != "0":
        V("mov_b32", t + 1, TAG)
        V("lshlrev_b32", t, 2, v(V_L))
        e("s_mov_b32 exec_hi, 0")
        e("buffer_store_dword v%d, v%d, %s, %s offen sc1" % (t + 1, t, R_WS, soff))
        e("s_mov_b32 exec_hi, -1")
        return
    V("mov_b32", t, 0); V("mov_b32", t + 1, TAG)
    e("s_mov_b64 exec, 1")
    e("buffer_store_dword v%d, v%d, %s, %s offen sc1" % (t + 1, t, R_WS, soff))
    e("s_mov_b64 exec, -1")

def poll(label, soff, first_issued=None, t=VT, nwait=0):
    V("lshlrev_b32", t, 7, v(V_L))
    e("s_mov_b32 %s, 0" % CNT)
    e("s_mov_b32 exec_hi, 0")
    r = t + 1
    if first_issued is not None:
        r = first_issued
        e("s_waitcnt vmcnt(%d)" % nwait)
        e("s_branch %s_chk" % label)
    if OPT["psleep"] and first_issued is None: e("s_branch %s_go" % label)
    lab(label)
    if OPT["psleep"]: e("s_sleep %d" % OPT["psleep"])
    lab(label + "_go")
    e("buffer_load_dword v%d, v%d, %s, %s offen %s" % (r, t, R_WS, soff, OPT["ppol"].replace("+", " ")))
    sadd(CNT, CNT, 1)
    e("s_waitcnt vmcnt(0)")
    lab(label + "_chk")
    e("v_cmp_ne_u32 vcc, %s, v%d" % (TAG, r))
    e("s_cmp_gt_u32 %s, 0x4000" % CNT)
    e("s_cbranch_scc1 %s_done" % label)
    e("s_cmp_lg_u64 vcc, 0")
    e("s_cbranch_scc1 %s" % label)
    lab(label + "_done")
    e("s_mov_b32 exec_hi, -1")

def kgen_addr():
    t = VT
    c("SPLIT")
    V("bfe_u32", t, v(V_L), 4, 1); V("bfe_u32", t + 1, v(V_L), 2, 1); V("lshl_or_b32", t, v(t), 1, v(t + 1))
    V("bfe_u32", t + 1, v(V_L), 3, 1); V("and_b32", t + 2, 3, v(V_L)); V("lshl_or_b32", t + 1, v(t + 1), 2, v(t + 2))
    e("v_cmp_eq_u32 s[4:5], 0, v%d" % t)
    e("v_cmp_eq_u32 vcc, 1, v%d" % t)
    e("s_bitcmp1_b32 %s, 0" % WV)
    csel(T0, 0x11100000, 0x76543210); csel(T1, 0x11100000, 0x43222100); csel(T2, 0x11100000, 0x22111000); csel(T3, 0x19171513, 0x100d0800)
    V("mov_b32", t + 2, T2); V("mov_b32", t + 3, T1); V("cndmask_b32", t + 2, v(t + 2), v(t + 3), "vcc")
    V("mov_b32", t + 3, T0); V("cndmask_b32", t + 2, v(t + 2), v(t + 3), "s[4:5]")
    V("lshlrev_b32", t + 1, 2, v(t + 1)); V("bfe_u32", t + 2, v(t + 2), v(t + 1), 4)
    V("lshlrev_b32", t, 3, v(t)); V("bfe_u32", t, T3, v(t), 8); V("add_u32", t, v(t), v(t + 2))
    V("lshrrev_b32", t + 1, 5, v(V_L)); V("and_b32", t + 2, 31, v(V_L))
    e("s_cselect_b32 %s, 2048, 0" % T3)
    e("s_cselect_b32 %s, 0, -1" % CNT)
    e("s_bitcmp1_b32 %s, 1" % WV)
    csel(T0, L_TA + 14256, L_TA); csel(T1, L_TB + 16896, L_TB); csel(T2, L_KF + 4160 + 64, L_KF + 64)
    sadd(T2, T2, T3)
    V("mul_u32_u24", t, 528, v(t)); V("lshl_add_u32", t + 3, v(t + 1), 4, T0); V("add_u32", PV_GA, v(t), v(t + 3))
    V("mul_u32_u24", t, 528, v(t + 2)); V("lshl_add_u32", t + 3, v(t + 1), 4, T1); V("add_u32", PV_GB, v(t), v(t + 3))
    V("lshl_add_u32", t, v(t + 1), 9, T2); V("lshl_add_u32", PV_GW, v(t + 2), 4, v(t))
    e("s_waitcnt lgkmcnt(0)")
    sadd(TAG, TAG, 1)
    e("s_bitcmp1_b32 %s, 1" % WV)
    e("s_cselect_b32 %s, 0, 16" % T0)
    sshl(T0, DS2, T0); sand(T0, T0, 0xffff0000); sand(T0, T0, CNT)
    e("v_cmp_eq_u32 vcc, 0, v%d" % V_L)
    V("mov_b32", PV_GD, T0)
    sand(T1, WV, 3); sshl(T1, T1, 8); sadd(T1, T1, L_UP + 128)
    V("cndmask_b32", PV_GD, 0, v(PV_GD), "vcc")
    V("lshl_add_u32", PV_US, v(V_L), 1, T1)

def pads():
    t = VT
    c("SPLIT")
    for i in range(4): V("mov_b32", t + 4 + i, 0)
    V("lshrrev_b32", t, 3, v(V_L)); V("mul_u32_u24", t, 1152, v(t)); V("and_b32", t + 1, 7, v(V_L)); V("lshl_add_u32", t, v(t + 1), 4, v(t)); V("add_u32", t, L_UP, v(t))
    V("bfe_u32", t + 1, v(V_L), 2, 1); V("mul_u32_u24", t + 1, 4160, v(t + 1)); V("and_b32", t + 2, 3, v(V_L)); V("lshl_add_u32", t + 1, v(t + 2), 4, v(t + 1)); V("add_u32", t + 1, L_KF, v(t + 1))
    V("lshlrev_b32", t + 2, 4, v(t + 2)); V("add_u32", t + 2, L_FL, v(t + 2))
    for k in range(3): e("ds_write_b128 v%d, %s" % (t + k, vr(t + 4, 4)))

def loader_path():
    c("======== loader waves ========")
    if OPT["gprio"] == 2: e("s_setprio 1")
    loader_addr()
    e("s_waitcnt lgkmcnt(0)")
    stamp("karg")
    srd(R_X, S_X, 2048 * 1024); srd(R_W, S_W, 512 * 3072)
    scalar_loads()
    issue_chunk(0)
    if OPT["echo"]: stamp("i0")
    srd(R_WS, S_WS, WS_SIZE); srd(R_OUT, S_OUT, 2048 * 2048); srd(R_WO, S_WO, 512 * 1024)
    late = capture(lambda: (precompute_conv(), precompute(), kgen_addr(), pads()))
    def upto(n):
        while n < len(late) and "SPLIT" not in late[n]: n += 1
        SINK[0].extend(late[:n]); del late[:n]
    upto(OPT["npre"])
    if OPT["echo"]: stamp("pre")
    issue_chunk(1)
    if OPT["echo"]: stamp("i1")
    waits = [8, 8, 8, 8, 8, 8, 9, 1]
    for ci in range(8):
        c("loader chunk %d" % ci)
        e("s_waitcnt vmcnt(%d)" % waits[ci])
        if OPT["echo"] and ci in (0, 1, 2): stamp("ld%d" % ci)
        if OPT["ldst"] and ci in (0, 1, 2, 3, 4): e("s_memrealtime s[%d:%d]" % (80 + 4 * ci, 81 + 4 * ci))
        e("s_barrier")
        if OPT["ldst"] and ci in (0, 1, 2, 3, 4): e("s_memrealtime s[%d:%d]" % (82 + 4 * ci, 83 + 4 * ci))
        if ci in (0, 7): stamp("ch%d" % ci)
        if ci + 2 < 8: issue_chunk(ci + 2)
        if ci < 5 and OPT["lsp"]: upto(OPT["lsp"])
        if ci == 5:
            sshl(T5, XQ, 12); sadd(T5, T5, WS_F0)
            V("lshlrev_b32", 42, 7, v(V_L))
            e("s_mov_b32 exec_hi, 0")
            e("buffer_load_dword v%d, v42, %s, %s offen sc1" % (G_PL, R_WS, T5))
            e("s_mov_b32 exec_hi, -1")
            upto(len(late) // 2)
        if ci == 6: upto(9999)
    poll("L_poll0", T5, first_issued=G_PL, nwait=0)
    c("u of this WG's channel pair (transposed by the group)")
    sshl(T0, XQ, 5); sadd(T0, T0, I5); sshl(T0, T0, 13); sadd(T0, T0, T4); sadd(T0, T0, WS_U2)
    e("buffer_load_dwordx4 %s, v%d, %s, %s offen sc1" % (vr(U2R, 4), V_L16, R_WS, T0))
    e("buffer_load_dwordx4 %s, v%d, %s, %s offen offset:1024 sc1" % (vr(U2R + 4, 4), V_L16, R_WS, T0))
    e("s_barrier")
    stamp("K1")
    c("---- S4 kernel K = A-table x B-table (rows duplicated to realise bf16(l)) ----")
    FA, FB, AC = 96, 128, 160
    def rd(s):
        e("ds_read_b128 %s, v%d offset:%d" % (vr(FA + 4 * (s % 8), 4), PV_GA, 32 * s))
        e("ds_read_b128 %s, v%d offset:%d" % (vr(FB + 4 * (s % 8), 4), PV_GB, 32 * s))
    for s in range(7): rd(s)
    e("v_and_b32 v%d, 1, v%d" % (VT, V_L))
    e("v_cmp_eq_u32 vcc, 0, v%d" % VT)
    uw = []
    for h in range(2):
        for p in range(4):
            uw.append("    ds_write_b16 v%d, v%d offset:%d" % (PV_US, U2R + 4 * h + p, 1152 * p + 128 * h))
            uw.append("    ds_write_b16_d16_hi v%d, v%d offset:%d" % (PV_US, U2R + 4 * h + p, 4608 + 1152 * p + 128 * h))
    nw = 0
    for s in range(16):
        e("s_waitcnt lgkmcnt(%d)" % (2 * (min(s + 6, 15) - s) + nw))
        e("v_mfma_f32_32x32x16_bf16 %s, %s, %s, %s" % (vr(AC, 16), vr(FA + 4 * (s % 8), 4), vr(FB + 4 * (s % 8), 4), "0" if s == 0 else vr(AC, 16)))
        if s + 7 < 16: rd(s + 7)
        if s == 10: e("s_waitcnt vmcnt(0)")
        if 10 <= s < 15:
            SINK[0].extend(uw[nw:nw + 3]); nw += 3
    SINK[0].extend(uw[15:])
    nop(11)
    V("add_f32", AC, v(AC), v(PV_GD))
    e("s_bitcmp1_b32 %s, 0" % WV)
    e("s_cbranch_scc0 L_kg_nofix")
    V("cndmask_b32", AC + 4, v(AC + 5), v(AC + 3), "vcc"); V("cndmask_b32", AC + 12, v(AC + 13), v(AC + 11), "vcc")
    lab("L_kg_nofix")
    for i in range(8): V("cvt_pk_bf16_f32", FA + i, v(AC + 2 * i), v(AC + 2 * i + 1))
    e("ds_write_b128 v%d, %s" % (PV_GW, vr(FA, 4)))
    e("ds_write_b128 v%d, %s offset:1024" % (PV_GW, vr(FA + 4, 4)))
    e("s_branch L_gemm_done")

def cmul_multi(lst):
    for d, a, b in lst:
        e("v_pk_mul_f32 %s, %s, %s op_sel:[0,0] op_sel_hi:[1,0]" % (vr(d, 2), vr(a, 2), vr(b, 2)))
    for d, a, b in lst:
        e("v_pk_fma_f32 %s, %s, %s, %s op_sel:[1,1,0] op_sel_hi:[0,1,1] neg_lo:[1,0,0]" % (vr(d, 2), vr(a, 2), vr(b, 2), vr(d, 2)))
def cexp_multi(lst, va, vb):
    for d, Lf, t, cj in lst:
        V("mul_f32", t, fl(Lf), v(va)); V("mul_f32", t + 1, fl(-Lf if cj else Lf), v(vb)); V("fract_f32", t + 1, v(t + 1))
    for d, Lf, t, cj in lst:
        V("exp_f32", t, v(t)); V("cos_f32", d, v(t + 1)); V("sin_f32", d + 1, v(t + 1))
    e("s_nop 0")
    for d, Lf, t, cj in lst:
        e("v_pk_mul_f32 %s, %s, %s op_sel:[0,0] op_sel_hi:[1,0]" % (vr(d, 2), vr(d, 2), vr(t, 2)))

KVA, KVB, KVD = 220, 221, 25
def kgen_b():
    c("---- S4 mode tables: B = exp(z*8j) -> LDS ----")
    va, vb, vdt, ta = KVA, KVB, KVD, VT + 4
    e("s_bitcmp1_b32 %s, 1" % WV)
    e("s_cselect_b32 %s, 0, 16" % T0)
    sshl(T0, LD2, T0); sand(T0, T0, 0xffff0000)
    V("mov_b32", vdt, fl(LOG2E)); V("mul_f32", vdt, T0, v(vdt)); V("exp_f32", vdt, v(vdt))
    for i in range(2): V("lshlrev_b32", V_PAR + i, 16, v(V_PAR + i))
    V("cvt_pk_bf16_f32", vdt, v(vdt), v(vdt)); V("and_b32", vdt, 0xffff0000, v(vdt))
    V("mul_f32", va, v(vdt), v(V_PAR)); V("mul_f32", vb, v(vdt), v(V_PAR + 1))
    V("mul_f32", va, fl(LOG2E), v(va)); V("mul_f32", vb, fl(1.0 / (2 * math.pi)), v(vb))
    P = lambda j: KB + 2 * j
    G = lambda k: KB + 16 + 2 * k
    X = KB + 24
    cv = [KB + 40 + i for i in range(8)]
    n = [0]
    def putb(row, pr):
        r = cv[n[0] % 8]; n[0] += 1
        V("cvt_pk_bf16_f32", r, v(pr), v(pr + 1))
        e("ds_write_b32 v46, v%d offset:%d" % (r, row * 528))
    cexp_multi([(P(1), 8.0, ta, 0), (G(1), 64.0, ta + 2, 0)], va, vb)
    V("mov_b32", cv[7], 0x3f80); e("ds_write_b32 v46, v%d" % cv[7])
    cmul_multi([(P(2), P(1), P(1)), (G(2), G(1), G(1))])
    putb(1, P(1)); putb(8, G(1))
    cmul_multi([(P(3), P(2), P(1)), (P(4), P(2), P(2)), (G(3), G(2), G(1))])
    putb(2, P(2)); putb(16, G(2))
    cmul_multi([(P(5), P(4), P(1)), (P(6), P(4), P(2)), (P(7), P(4), P(3))])
    for r, p in ((3, P(3)), (4, P(4)), (24, G(3)), (5, P(5)), (6, P(6)), (7, P(7))): putb(r, p)
    for k in range(1, 4):
        cmul_multi([(X + 2 * j, P(j), G(k)) for j in range(1, 8)])
        for j in range(1, 8): putb(8 * k + j, X + 2 * j)

def kgen_a():
    va, vb, vdt, ta = KVA, KVB, KVD, VT + 4
    E = lambda j: 224 + 2 * j - 2
    Q = lambda j: 160 + 2 * j
    H = lambda k: 176 + 2 * k
    X = 224
    def puta(row, pr): V("cvt_pk_bf16_f32", KR + row, v(pr), v(pr + 1))
    cexp_multi([(E(1), 1.0, ta, 1), (H(1), 256.0, ta + 2, 1)], va, vb)
    for i in range(2, 6): V("lshlrev_b32", V_PAR + i, 16, v(V_PAR + i))
    V("mul_f32", ta, v(vdt), v(V_PAR + 2)); e("v_mul_f32 v%d, -v%d, v%d" % (ta + 1, vdt, V_PAR + 3))
    V("mov_b32", ta + 2, v(V_PAR + 4)); V("mul_f32", ta + 3, "-1.0", v(V_PAR + 5))
    cmul_multi([(Q(0), ta, ta + 2), (E(2), E(1), E(1)), (H(2), H(1), H(1))])
    cmul_multi([(E(3), E(2), E(1)), (E(4), E(2), E(2)), (H(3), H(2), H(1)), (H(4), H(2), H(2))])
    puta(0, Q(0))
    cmul_multi([(E(5), E(4), E(1)), (E(6), E(4), E(2)), (E(7), E(4), E(3)), (E(8), E(4), E(4)), (H(5), H(4), H(1)), (H(6), H(4), H(2)), (H(7), H(4), H(3))])
    cmul_multi([(Q(j), Q(0), E(j)) for j in range(1, 9)])
    for j in range(1, 8): puta(j, Q(j))
    cmul_multi([(X + 2 * i, H(1), Q(2 * i)) for i in range(5)] + [(X + 10 + 2 * i, H(2), Q(4 * i)) for i in range(3)])
    for i in range(8): puta(8 + i, X + 2 * i)
    cmul_multi([(X + 2 * i, H(3), Q(4 * i)) for i in range(3)] + [(X + 6, H(4), Q(0)), (X + 8, H(4), Q(8)), (X + 10, H(5), Q(0)), (X + 12, H(5), Q(8))])
    for i in range(7): puta(16 + i, X + 2 * i)
    cmul_multi([(X, H(6), Q(0)), (X + 2, H(6), Q(8)), (X + 4, H(7), Q(0)), (X + 6, H(7), Q(8))])
    for i in range(4): puta(23 + i, X + 2 * i)

def compute_path():
    t = VT
    lab("L_compute")
    if OPT["gprio"] == 1: e("s_setprio 1")
    c("======== compute waves ========")
    e("s_bfe_u32 %s, %s, 0x10001" % (T0, WV)); sadd(T0, T0, C0); sshl(T0, T0, 8); sand(T1, WV, 1); sshl(T1, T1, 7); sadd(T0, T0, T1)
    V("lshl_add_u32", V_PA, v(V_L), 1, T0)
    e("s_waitcnt lgkmcnt(0)")
    stamp("karg")
    if OPT["pfx"]:
        c("touch this WG's 1/256 share of x and Wqkv so that HBM streams them in at once")
        V("lshlrev_b32", 252, 7, v(V_L)); V("min_u32", 253, 47 * 128, v(252))
        sshl(T0, "s2", 13); smul(T1, "s2", 6144)
        V("add_u32", 252, T0, v(252)); V("add_u32", 253, T1, v(253))
        e("s_cmp_eq_u32 %s, 0" % WV)
        e("s_cbranch_scc0 L_pfx1")
        e("global_load_dword v252, v252, %s" % sr(S_X, 2))
        lab("L_pfx1")
        e("s_cmp_eq_u32 %s, 1" % WV)
        e("s_cbranch_scc0 L_pfx2")
        e("global_load_dword v253, v253, %s" % sr(S_W, 2))
        lab("L_pfx2")
    for i, s in enumerate((S_ARE, S_AIM, S_BRE, S_BIM, S_CRE, S_CIM)):
        e("global_load_ushort v%d, v%d, %s" % (V_PAR + i, V_PA, sr(s, 2)))
    scalar_loads()
    srd(R_U, S_U, 2048 * 1024)
    u_coop_loads()
    if OPT["pf"] == 1:
        c("pull this WG's 1/32 share of the code into L2")
        e("s_getpc_b64 s[4:5]")
        lab("L_pc")
        sshl(T0, I5, 3); V("add_u32", t, T0, v(V_L)); V("lshlrev_b32", t, 7, v(t))
        e("v_min_u32 v%d, L_end-L_pc-4, v%d" % (t, t))
        e("s_mov_b64 exec, 0xff")
        e("global_load_dword v47, v%d, s[4:5]" % t)
        e("s_mov_b64 exec, -1")
    srd(R_WS, S_WS, WS_SIZE); srd(R_OUT, S_OUT, 2048 * 2048); srd(R_WO, S_WO, 512 * 1024)
    gemm_read_addr()
    e("s_waitcnt vmcnt(%d) lgkmcnt(0)" % (9 if OPT["pf"] == 1 else 8))
    sadd(TAG, TAG, 1)
    if OPT["echo"]: stamp("par")
    kgen_b()
    pc = [x for x in capture(kgen_a) if not x.strip().startswith(";")]
    if OPT["apre"]:
        e("s_waitcnt vmcnt(%d)" % (5 if OPT["pf"] == 1 else 4))
        SINK[0].extend(pc[:OPT["apre"]]); del pc[:OPT["apre"]]
    if OPT["uat"] < 0:
        u_coop_perm(); e("s_waitcnt lgkmcnt(0)"); u_coop_stores()
    if OPT["echo"]: stamp("cp0")
    if "F" in OPT["abl"]: pc = pc[:20]
    if "U" in OPT["abl"]: pc = pc[20:]
    def f0flag():
        sshl(I0, XQ, 5); sadd(I0, I0, I5); sshl(I0, I0, 7); sadd(I0, I0, WS_F0)
        flag_store(I0, 26)
    def fill(n):
        for _ in range(n):
            if pc: SINK[0].append(pc.pop(0))
    def ml(s, first=False):
        cc = lambda k: "0" if first else vr(G_ACC[k], 16)
        return ["v_mfma_f32_32x32x16_bf16 %s, %s, %s, %s" % (vr(G_ACC[0], 16), vr(G_W0F + 4 * s, 4), vr(G_XF + 4 * s, 4), cc(0)),
                "v_mfma_f32_32x32x16_bf16 %s, %s, %s, %s" % (vr(G_ACC[1], 16), vr(G_W1F + 4 * s, 4), vr(G_XF + 4 * s, 4), cc(1)),
                "v_mfma_f32_32x32x16_bf16 %s, %s, %s, %s" % (vr(G_ACC[2], 16), vr(G_XF + 4 * s, 4), vr(G_VF + 4 * s, 4), cc(2))]
    def ilv(ms, rs, nf):
        k = 0
        for i, m in enumerate(ms):
            if "M" not in OPT["abl"] or m.endswith(", 0"): e(m)
            upto = (len(rs) * (i + 1) + len(ms) - 1) // len(ms)
            SINK[0].extend(rs[k:upto]); k = upto
            fill(nf)
    for ci in range(8):
        c("compute chunk %d" % ci)
        hi = (ci % 3) == 2
        ib = 32768 if ci % 3 == 1 else 0
        xa = G_XA + (4 if hi else 0)
        wa = G_WB if hi else G_WA
        if ci == 4: e("s_waitcnt vmcnt(0)")
        e("s_barrier")
        if ci in (0, 7): stamp("ch%d" % ci)
        if ci == 4: f0flag()
        def reads(s):
            if "R" in OPT["abl"]: return
            e("ds_read_b128 %s, v%d offset:%d" % (vr(G_XF + 4 * s, 4), xa + s, ib))
            for k, f in enumerate((G_W0F, G_W1F, G_VF)):
                for tt in range(2):
                    e("ds_read_b64_tr_b16 %s, v%d offset:%d" % (vr(f + 4 * s + 2 * tt, 2), wa + k, ib + (16 * s + 4 * tt) * 128))
        r0, r1 = capture(reads, 0), capture(reads, 1)
        nf = 1 if ci != OPT["uat"] and ci < 7 else 0
        if ci > 0:
            SINK[0].extend(r0[:3]); ilv(ml(3), r0[3:] + r1[:5], 0); SINK[0].extend(r1[5:])
        else: SINK[0].extend(r0 + r1)
        if ci == OPT["uat"] + 1 and OPT["ust2"]: u_coop_stores()
        fill(OPT["f0"] * nf)
        e("s_waitcnt lgkmcnt(7)"); ilv(ml(0, ci == 0), capture(reads, 2), nf)
        e("s_waitcnt lgkmcnt(7)"); ilv(ml(1), capture(reads, 3), nf)
        e("s_waitcnt lgkmcnt(7)")
        if ci < 7:
            if ci == OPT["uat"]: ilv(ml(2), capture(u_coop_perm), 0)
            else: ilv(ml(2), [], OPT["f2"] * nf)
            if ci == 6: fill(999)
            e("s_waitcnt lgkmcnt(0)")
            if ci == OPT["uat"] and not OPT["ust2"]: u_coop_stores()
    tw = ["    ds_write_b32 v%d, v%d offset:%d" % (PV_TW, KR + r, r * 528) for r in range(27)]
    ilv(ml(2), tw[:8], 0)
    e("s_waitcnt lgkmcnt(8)")
    ilv(ml(3), tw[8:], 0)
    sadd(T1, sQKV, WS_K); sadd(T2, sQKV, WS_K + 65536); sadd(T3, sQKV, WS_V); sadd(T4, sQKV, WS_Q + 65536); sadd(T0, sQKV, WS_Q)
    e("s_waitcnt lgkmcnt(0)")
    e("s_barrier")
    stamp("K1")
    c("GEMM epilogue: publish Q,K,V")
    P = G_XF
    def pk(dst, src):
        for i in range(4): V("cvt_pk_bf16_f32", dst + i, v(src + 2 * i), v(src + 1 + 2 * i))
    def st(r, va, so, off=0):
        e("buffer_store_dwordx4 %s, v%d, %s, %s offen%s sc1" % (vr(r, 4), va, R_WS, so, " offset:%d" % off if off else ""))
    pk(P, G_ACC[0] + 8); st(P, PV_QS, T1)
    pk(P + 4, G_ACC[1] + 8); st(P + 4, PV_QS, T2)
    pk(P + 8, G_ACC[2]); st(P + 8, PV_VS, T3)
    pk(P + 12, G_ACC[2] + 8); st(P + 12, PV_VS, T3, 512)
    for k, so in ((0, T0), (1, T4)):
        for i in range(8): V("mul_f32", G_ACC[k] + i, fl(0.25 * LOG2E), v(G_ACC[k] + i))
        pk(P + 16 + 4 * k, G_ACC[k]); st(P + 16 + 4 * k, PV_QS, so)
    stamp("pub")
    precompute_conv()

C_LO, C_UP = 128, 144
C_A, C_X, C_Y = 160, 176, 192
def signal(tag, cnt_off, last, soff):
    t = VT + 4
    V("mov_b32", t + 2, L_FL + cnt_off); V("mov_b32", t + 3, 1)
    e("s_waitcnt vmcnt(0)")
    e("s_mov_b64 exec, 1")
    e("ds_add_rtn_u32 v%d, v%d, v%d" % (t + 3, t + 2, t + 3))
    e("s_mov_b64 exec, -1")
    e("s_waitcnt lgkmcnt(0)")
    e("v_readfirstlane_b32 %s, v%d" % (T0, t + 3))
    e("s_cmp_eq_u32 %s, %d" % (T0, last))
    e("s_cbranch_scc0 L_sig_%s" % tag)
    flag_store(soff, t)
    lab("L_sig_%s" % tag)

def attn_init():
    V("and_b32", 31, 31, v(V_L)); e("v_cmp_eq_u32 vcc, 16, v31"); V("mov_b32", 31, 0x3f803f80); V("mov_b32", 255, 0xdddddddd)
    e("s_mov_b32 s4, 0xffff"); e("s_mov_b32 s5, 0xffff")
    for i in range(16): V("cndmask_b32", 208 + i, 0, v(31), "vcc")
    for i in range(32): V("mov_b32", 72 + i, 0)

def conv_job(T, s0, nfull, tail, va, vb, sig=None, sig_after=1, fills=None):
    def rdA(k, sg):
        e("ds_read_b64_tr_b16 %s, v%d offset:%d" % (vr(C_A + 4 * k, 2), va, 128 * sg + 32))
        e("ds_read_b64_tr_b16 %s, v%d offset:%d" % (vr(C_A + 4 * k + 2, 2), va, 128 * sg))
    def rdB(dst, k, sg):
        e("ds_read_b128 %s, v%d offset:%d" % (vr(dst + 4 * k, 4), vb, 112 + 128 * T - 32 * sg))
    def mf(acc, k, b, first=False):
        e("v_mfma_f32_32x32x16_bf16 %s, %s, %s, %s" % (vr(acc, 16), vr(C_A + 4 * k, 4), vr(b + 4 * k, 4), "0" if first else vr(acc, 16)))
        for _ in range(OPT["cfill"]):
            if fl_: SINK[0].append(fl_.pop(0))
    fl_ = list(fills or [])
    pend = []
    def note(step, n): pend.extend([step] * n)
    def wait(step):
        n = sum(1 for x in pend if x > step)
        e("s_waitcnt lgkmcnt(%d)" % n)
        pend[:] = [x for x in pend if x > step]
    for k in range(4):
        rdA(k, s0 + k); rdB(C_Y, k, s0 + k - 4); rdB(C_X, k, s0 + k); note(k, 4)
    cur, old = C_X, C_Y
    if sig and sig_after == 0: sig(); del pend[:]
    for sec in range(nfull):
        for k in range(4):
            st = 4 * sec + k
            wait(st)
            mf(C_UP, k, old, st == 0)
            if sec + 1 < nfull: rdB(old, k, s0 + st + 4); note(st + 4, 1)
            mf(C_LO, k, cur, st == 0)
            if sec + 1 < nfull or tail: rdA(k, s0 + st + 4); note(st + 4, 2)
        cur, old = old, cur
        if sig and sec + 1 == sig_after: sig(); del pend[:]
    if tail:
        for k in range(4):
            wait(4 * nfull + k)
            mf(C_UP, k, old)
    n = len(fl_)
    SINK[0].extend(fl_)
    nop(max(0, (2 if tail else 12) - n))

def z_writes(va, row0):
    for k in range(4): e("ds_write_b128 v%d, %s offset:%d" % (va, vr(C_LO + 4 * k, 4), 144 * row0 + 32 * k))
    nop(8)
    for k in range(4): e("ds_write_b128 v%d, %s offset:%d" % (va, vr(C_UP + 4 * k, 4), 144 * (row0 + 8) + 32 * k))

def conv():
    c("---- causal conv as Toeplitz MFMA, output tiles 0..5 ----")
    ini = capture(attn_init)
    e("s_cmp_ge_u32 %s, 4" % WV)
    e("s_cbranch_scc1 L_conv_hi")
    e("s_bitcmp1_b32 %s, 0" % WV)
    e("s_cbranch_scc1 L_conv_2a")
    conv_job(0, 0, 1, True, PV_CA, PV_CB, lambda: signal("a", 16, 3, sF1), min(1, OPT["gsig"]), fills=ini); z_writes(PV_ZW, 0)
    e("s_branch L_conv_done")
    lab("L_conv_2a")
    conv_job(4, 0, 3, False, PV_CA, PV_CB, lambda: signal("b", 16, 3, sF1), OPT["gsig"], fills=ini); z_writes(PV_ZW, 32)
    e("s_branch L_conv_done")
    lab("L_conv_hi")
    e("s_bitcmp1_b32 %s, 0" % WV)
    e("s_cbranch_scc1 L_conv_2b")
    conv_job(2, 0, 3, True, PV_CA, PV_CB, fills=ini); z_writes(PV_ZW, 16)
    e("s_branch L_conv_done")
    lab("L_conv_2b")
    conv_job(4, 12, 2, True, PV_CA, PV_CB, fills=ini); z_writes(PV_ZW, 32 + 17)
    lab("L_conv_done")
    stamp("cend")

def kv_tiles(msrc, soff):
    e("s_mov_b32 m0, %s" % msrc)
    e("s_nop 0")
    for i in range(8):
        if i == 4: sadd("m0", "m0", 4096); sadd(soff, soff, 4096)
        e("buffer_load_dwordx4 v%d, %s, %s offen offset:%d sc1 lds" % (V_L16, R_WS, soff, 1024 * (i % 4)))

def q_loads():
    e("buffer_load_dwordx4 %s, v%d, %s, %s offen sc1" % (vr(64, 4), V_L16, R_WS, sQL))
    e("buffer_load_dwordx4 %s, v%d, %s, %s offen offset:1024 sc1" % (vr(68, 4), V_L16, R_WS, sQL))

def kv_early():
    t = VT
    e("s_cmp_ge_u32 %s, 4" % WV)
    e("s_cbranch_scc1 L_kve_done")
    precompute(); precompute_tail()
    e("s_bitcmp1_b32 %s, 0" % WV)
    e("s_cbranch_scc1 L_kve_done")
    e("s_cmp_eq_u32 %s, 0" % WV)
    e("s_cbranch_scc0 L_kve_w2")
    for i in range(4): V("mov_b32", C_A + i, 0)
    V("and_b32", t + 2, 7, v(V_L)); V("mul_u32_u24", t + 2, ZS, v(t + 2)); V("bfe_u32", t + 3, v(V_L), 3, 1); V("mul_u32_u24", t + 3, 49 * 144, v(t + 3))
    V("add_u32", t + 2, v(t + 2), v(t + 3)); V("add_u32", t + 2, L_Z + 112, v(t + 2))
    e("ds_write_b128 v%d, %s" % (t + 2, vr(C_A, 4)))
    e("s_mov_b32 %s, 0" % T5); sadd(T3, sHB, WS_K)
    e("s_branch L_kve_go")
    lab("L_kve_w2")
    e("s_mov_b32 %s, 8192" % T5); sadd(T3, sHB, WS_V)
    lab("L_kve_go")
    poll("L_poll1", sF1P, t=VT + 4)
    stamp("poll1")
    if OPT["qearly"]:
        V("mov_b32", t + 2, L_FL + 32); V("mov_b32", t + 3, 1)
        e("ds_write_b32 v%d, v%d" % (t + 2, t + 3))
        q_loads()
    sshl(T0, JR, 13); sadd(T0, T0, T3)
    kv_tiles(T5, T0)
    if not OPT["b1late"]:
        sadd(T0, JR, 1); sand(T0, T0, 7); sshl(T0, T0, 13); sadd(T0, T0, T3); sadd(T5, T5, BLK)
        kv_tiles(T5, T0)
    if OPT["qearly"]:
        e("s_branch L_kve_out")
        lab("L_kve_done")
        V("mov_b32", t + 2, L_FL + 32)
        e("s_mov_b32 %s, 0" % CNT)
        lab("L_qsp")
        e("ds_read_b32 v%d, v%d" % (t + 3, t + 2))
        sadd(CNT, CNT, 1)
        e("s_waitcnt lgkmcnt(0)")
        e("v_readfirstlane_b32 %s, v%d" % (T0, t + 3))
        e("s_cmp_gt_u32 %s, 0x200000" % CNT)
        e("s_cbranch_scc1 L_qsp_done")
        e("s_cmp_eq_u32 %s, 0" % T0)
        e("s_cbranch_scc1 L_qsp")
        lab("L_qsp_done")
        q_loads()
        lab("L_kve_out")
    else: lab("L_kve_done")

A_Q = [64, 68]
A_S = [104, 120]
A_O = [72, 88]
A_KF = [136, 140]
A_VA = [208, 212]
A_VB = [216, 220]
A_IDX = 63 + 192
A_F = 164
A_NM = 120
WOR = 192
Y_R = 32
def conv_epilogue():
    c("y[t] = sum_p Z_p[t-p]")
    e("s_waitcnt lgkmcnt(0)")
    e("s_barrier")
    stamp("zbar")
    if not OPT["qearly"]: q_loads()
    order = [(0, 0), (0, 4 * ZS), (288, 0), (288, 4 * ZS), (0, 0), (17 * 144, 0), (0, 4 * ZS), (17 * 144, 4 * ZS)]
    def rd(n):
        if n == 4:
            for p in range(4): V("add_u32", PV_ZR + p, T0, v(PV_ZR + p))
        for p in range(4): e("ds_read_b32 v%d, v%d offset:%d" % (Y_R + 4 * n + p, PV_ZR + p, sum(order[n])))
    rd(0); rd(1); rd(2)
    smul(T0, WV, 288); e("s_sub_u32 %s, 4608, %s" % (T0, T0))
    e("s_cmp_eq_u32 %s, 6" % WV)
    e("s_cbranch_scc0 L_nocarry")
    c("carry: last rows of tile 5 (both partials) feed y[1536..1538], finished in the tail")
    t = VT
    for i in range(4): V("mov_b32", PV_CY + i, 0)
    V("and_b32", t, 7, v(V_L)); V("mul_u32_u24", t, ZS, v(t)); V("bfe_u32", t + 1, v(V_L), 3, 1); V("mul_u32_u24", t + 1, 17 * 144, v(t + 1))
    V("add_u32", t, v(t), v(t + 1)); V("add_u32", t, L_Z + 48 * 144 + 112, v(t))
    e("s_mov_b64 exec, 0xffff")
    e("ds_read_b128 %s, v%d" % (vr(PV_CY, 4), t))
    e("s_mov_b64 exec, -1")
    e("s_waitcnt lgkmcnt(0)")
    lab("L_nocarry")
    for n in range(8):
        r = Y_R + 4 * n
        e("s_waitcnt lgkmcnt(%d)" % (4 * (min(n + 2, 7) - n)))
        if n + 3 < 8: rd(n + 3)
        V("add_f32", r, v(r), v(r + 1)); V("add_f32", r + 2, v(r + 2), v(r + 3)); V("add_f32", r, v(r), v(r + 2))
        if n in (1, 3): V("cvt_pk_bf16_f32", V_Y + n // 2, v(r - 4), v(r))
        if n in (5, 7): V("add_f32", r, v(r), v(r - 4))
    V("cvt_pk_bf16_f32", V_Y + 2, v(Y_R + 20), v(Y_R + 28))

def kv_late():
    t = VT
    e("s_cmp_ge_u32 %s, 4" % WV)
    if OPT["b1late"]:
        e("s_cbranch_scc1 L_kvl")
        e("s_waitcnt vmcnt(0)")
        e("s_barrier")
        stamp("S")
        e("s_branch L_kvl_done")
        lab("L_kvl")
    else: e("s_cbranch_scc0 L_kvl_done")
    sand(T1, WV, 3); sshl(T0, T1, 2); sadd(T0, T0, L_FL)
    V("mov_b32", t, T0); V("mov_b32", t + 1, 2); V("mov_b32", t + 2, 3); V("mov_b32", t + 3, 1)
    sshl(T1, T1, 11); sadd(T0, sHB, T1)
    for b in range(1 if OPT["b1late"] else 2, 8):
        sadd(T2, JR, b); sand(T2, T2, 7); sshl(T2, T2, 13); sadd(T2, T2, T0)
        sadd("m0", T1, b * BLK); sadd(T3, T2, WS_K)
        e("buffer_load_dwordx4 v%d, %s, %s offen sc1 lds" % (V_L16, R_WS, T3))
        sadd(T4, T2, WS_V)
        e("buffer_load_dwordx4 v%d, %s, %s offen offset:1024 sc1 lds" % (V_L16, R_WS, T3))
        sadd("m0", T1, b * BLK + 8192); e("s_nop 0")
        e("buffer_load_dwordx4 v%d, %s, %s offen sc1 lds" % (V_L16, R_WS, T4))
        e("buffer_load_dwordx4 v%d, %s, %s offen offset:1024 sc1 lds" % (V_L16, R_WS, T4))
        if b == 1:
            e("s_waitcnt vmcnt(4)")
            e("s_barrier")
            stamp("S")
        if b == 2 and OPT["b1late"]:
            e("s_waitcnt vmcnt(4)")
            e("ds_write_b32 v%d, v%d" % (t, t + 3))
        if b == 5:
            e("s_waitcnt vmcnt(8)")
            e("ds_write_b32 v%d, v%d" % (t, t + 1))
    precompute_tail()
    e("s_waitcnt vmcnt(0) lgkmcnt(0)")
    e("ds_write_b32 v%d, v%d" % (t, t + 2))
    lab("L_kvl_done")

def kv_check(stage):
    t = VT + 4
    lb = "L_kvchk%d" % stage
    V("mov_b32", t, L_FL)
    e("s_mov_b32 %s, 0" % T3)
    lab(lb)
    e("ds_read_b128 %s, v%d" % (vr(t + 2, 4), t))
    sadd(T3, T3, 1)
    e("s_waitcnt lgkmcnt(0)")
    V("min_u32", t + 2, v(t + 2), v(t + 3)); V("min3_u32", t + 2, v(t + 2), v(t + 4), v(t + 5))
    e("s_cmp_gt_u32 %s, 0x40000" % T3)
    e("s_cbranch_scc1 %s_done" % lb)
    e("v_readfirstlane_b32 %s, v%d" % (T4, t + 2))
    e("s_cmp_lt_u32 %s, %d" % (T4, stage))
    e("s_cbranch_scc1 %s" % lb)
    lab(lb + "_done")

def attn_main():
    c("---- attention main loop: wave = 2 q-tiles x 32 key tiles (parity w>>2), fully unrolled ----")
    base = [0]
    koff = lambda i: (i // 4 - base[0]) * BLK + (i % 4) * 2048
    def rdK(i):
        if i < 32: e("ds_read_b128 %s, v%d offset:%d" % (vr(A_KF[i & 1], 4), PV_KA, koff(i)))
    def rdV(i):
        if i < 32:
            e("s_mov_b64 exec, s[4:5]")
            e("ds_read_b128 %s, v%d offset:%d" % (vr(A_VA[i & 1], 4), PV_V0, koff(i)))
            e("ds_read_b128 %s, v%d offset:%d" % (vr(A_VB[i & 1], 4), PV_V0, koff(i) + 512))
            e("s_mov_b64 exec, -1")
    def qk(i, q):
        if i < 32: e("v_mfma_f32_32x32x16_bf16 %s, %s, %s, 0" % (vr(A_S[q], 16), vr(A_KF[i & 1], 4), vr(A_Q[q], 4)))
    def pv(i, q, half):
        if i < 0: return
        a = (A_VA if half == 0 else A_VB)[i & 1]
        e("v_smfmac_f32_32x32x32_bf16 %s, %s, %s, v%d" % (vr(A_O[q], 16), vr(a, 4), vr(A_S[q] + 8 * half, 8), A_IDX))
    def ex(q, lo, hi):
        for k in range(lo, hi): e("v_exp_f32 v%d, v%d" % (A_S[q] + k, A_S[q] + k))
    rdK(0); rdK(1); rdV(0)
    e("s_cmp_ge_u32 %s, 4" % WV)
    e("s_cbranch_scc1 L_prio1")
    e("s_setprio 2")
    e("s_branch L_prio_done")
    lab("L_prio1")
    e("s_setprio 1")
    lab("L_prio_done")
    e("s_waitcnt lgkmcnt(3)")
    qk(0, 0)
    nop(12)
    ytiles = OPT["yt"]; wtiles = OPT["wt"]
    for i in range(32):
        c("key tile %d" % i)
        if i in (OPT["flip1"], OPT["flip"], OPT["mid"]):
            if i == OPT["mid"]: e("s_barrier")
            e("s_cmp_ge_u32 %s, 4" % WV)
            e("s_cbranch_scc1 L_noflip%d" % i)
            e("s_setprio %d" % (2 if i == OPT["mid"] else 0))
            lab("L_noflip%d" % i)
        if i == 2 and OPT["b1late"]: kv_check(1)
        if i == 6: kv_check(2)
        if i == 14: kv_check(3)
        ex(0, 0, 2); pv(i - 1, 1, 1); ex(0, 2, 5); qk(i, 1)
        e("s_waitcnt lgkmcnt(0)")
        if i in (11, 23):
            for r in (PV_KA, PV_V0): V("add_u32", r, 3 * BLK, v(r))
            base[0] += 3
        rdK(i + 2); rdV(i + 1)
        if i in ytiles:
            n = ytiles.index(i)
            e("buffer_store_dword v%d, v%d, %s, %s offen %s" % (V_Y + n, PV_YA, R_OUT, sYS2 if n == 2 else sYS, OPT["ypol"]))
            if n == 0: sadd(sYS, sYS, 0x20000)
            if n == 2: sadd(sYS2, sYS2, 0x100000)
        if i in wtiles:
            sadd("m0", W10, L_WO + 8192 * wtiles.index(i))
            if wtiles.index(i): sadd(sWO, sWO, 0x10000)
            else: e("s_nop 0")
            e("buffer_load_dwordx4 v%d, %s, %s offen lds" % (PV_WA, R_WO, sWO))
        ex(0, 5, 11); pv(i, 0, 0); ex(0, 11, 16)
        ex(1, 0, 2); pv(i, 0, 1); ex(1, 2, 5); qk(i + 1, 0)
        ex(1, 5, 11); pv(i, 1, 0); ex(1, 11, 16)
    e("s_nop 1")
    pv(31, 1, 1)
    e("s_setprio 0")

def combine():
    c("combine the two key-parity halves through LDS")
    e("s_waitcnt vmcnt(0)")
    e("s_barrier")
    stamp("attn")
    e("s_cmp_ge_u32 %s, 4" % WV)
    e("s_cbranch_scc1 L_cmb1")
    for kp in range(2):
        if kp: lab("L_cmb1")
        o = A_O[1 - kp]
        if kp == 0: nop(8)
        for k in range(3): e("ds_write_b128 v%d, %s offset:%d" % (PV_CW, vr(o + 4 * k, 4), 1024 * k))
        e("s_waitcnt lgkmcnt(0)")
        e("s_barrier")
        for k in range(3): e("ds_read_b128 %s, v%d offset:%d" % (vr(A_F + 4 * k, 4), PV_CR, 1024 * k))
        if kp:
            for i in range(4): V("mov_b32", A_Q[0] + i, v(A_Q[1] + i))
        e("s_waitcnt lgkmcnt(0)")
        for i in (8, 0, 1, 2, 3, 4, 5, 6, 7): V("add_f32", A_F + i, v(A_F + i), v(A_O[kp] + i))
        if kp == 0: e("s_branch L_cmb_done")
    lab("L_cmb_done")

def attn_check_and_slow():
    t = VT
    V("mov_b32", t + 1, v(A_F + 8))
    e("s_nop 1")
    e("v_permlane32_swap_b32 v%d, v%d" % (A_F + 8, t + 1))
    attn_publish()
    c("---- softmax guard: the fast path used shift 0; redo with the true row max if that was unsafe ----")
    V("mul_f32", t, 0, v(A_F))
    for i in range(1, 8): V("fma_f32", t, v(A_F + i), 0, v(t))
    e("v_cmp_nle_f32 vcc, %s, v%d" % (fl(2.0 ** -40), A_F + 8))
    V("mov_b32", t + 1, fl(2.0 ** 100))
    e("v_cmp_nle_f32 s[4:5], v%d, v%d" % (A_F + 8, t + 1))
    e("v_cmp_neq_f32 s[6:7], 0, v%d" % t)
    e("s_or_b64 vcc, vcc, s[4:5]")
    e("s_or_b64 vcc, vcc, s[6:7]")
    if OPT["forceslow"]: e("s_mov_b64 vcc, -1")
    e("s_cmp_lg_u64 vcc, 0")
    e("s_cbranch_scc1 L_slow")
    lab("L_attn_ok")

def slow_path():
    t = VT
    lab("L_slow")
    S_, KF, VA, VB = A_S[0], A_KF[0], A_VA[0], A_VB[0]
    c("slow path pass 1: true row max (K from the workspace)")
    sadd(T0, sHB, WS_K)
    V("mov_b32", t, 0xff800000)
    e("s_mov_b32 %s, 0" % CNT)
    lab("L_slow1")
    e("buffer_load_dwordx4 %s, v%d, %s, %s offen sc1" % (vr(KF, 4), V_L16, R_WS, T0))
    sadd(T0, T0, 1024)
    e("s_waitcnt vmcnt(0)")
    e("v_mfma_f32_32x32x16_bf16 %s, %s, %s, 0" % (vr(S_, 16), vr(KF, 4), vr(A_Q[0], 4)))
    nop(12)
    for k in range(0, 16, 2): V("max3_f32", t, v(t), v(S_ + k), v(S_ + k + 1))
    sadd(CNT, CNT, 1)
    e("s_cmp_lt_u32 %s, 64" % CNT)
    e("s_cbranch_scc1 L_slow1")
    V("mov_b32", t + 1, v(t))
    e("s_nop 1")
    e("v_permlane32_swap_b32 v%d, v%d" % (t, t + 1))
    e("s_nop 1")
    V("max_f32", t, v(t), v(t + 1))
    for k in range(16): V("mul_f32", A_NM + k, "-1.0", v(t))
    c("slow path pass 2")
    for k in range(16): V("mov_b32", A_F + k, 0)
    for k in range(4):
        V("mov_b32", VA + k, 0x3f803f80); V("mov_b32", VB + k, 0x3f803f80)
    V("and_b32", t, 15, v(V_L)); V("lshrrev_b32", t + 1, 5, v(V_L)); V("lshlrev_b32", t, 4, v(t)); V("lshl_add_u32", t, v(t + 1), 8, v(t))
    sadd(T0, sHB, WS_K); sadd(T1, sHB, WS_V)
    e("s_mov_b32 %s, 0" % CNT)
    lab("L_slow2")
    e("buffer_load_dwordx4 %s, v%d, %s, %s offen sc1" % (vr(KF, 4), V_L16, R_WS, T0))
    e("s_mov_b32 exec_lo, 0xffff")
    e("s_mov_b32 exec_hi, 0xffff")
    e("buffer_load_dwordx4 %s, v%d, %s, %s offen sc1" % (vr(VA, 4), t, R_WS, T1))
    e("buffer_load_dwordx4 %s, v%d, %s, %s offen offset:512 sc1" % (vr(VB, 4), t, R_WS, T1))
    e("s_mov_b64 exec, -1")
    sadd(T0, T0, 1024); sadd(T1, T1, 1024)
    e("s_waitcnt vmcnt(0)")
    e("v_mfma_f32_32x32x16_bf16 %s, %s, %s, %s" % (vr(S_, 16), vr(KF, 4), vr(A_Q[0], 4), vr(A_NM, 16)))
    nop(12)
    for k in range(16): e("v_exp_f32 v%d, v%d" % (S_ + k, S_ + k))
    e("s_nop 1")
    e("v_smfmac_f32_32x32x32_bf16 %s, %s, %s, v%d" % (vr(A_F, 16), vr(VA, 4), vr(S_, 8), A_IDX))
    e("v_smfmac_f32_32x32x32_bf16 %s, %s, %s, v%d" % (vr(A_F, 16), vr(VB, 4), vr(S_ + 8, 8), A_IDX))
    sadd(CNT, CNT, 1)
    e("s_cmp_lt_u32 %s, 64" % CNT)
    nop(4)
    e("s_cbranch_scc1 L_slow2")
    nop(12)
    attn_publish()
    e("s_branch L_attn_ok")

def attn_publish():
    t = VT
    c("normalise and publish O (q-tile 2*(w&3) + (w>>2))")
    V("rcp_f32", t, v(A_F + 8))
    e("s_nop 0")
    for i in range(8): V("mul_f32", A_F + i, v(A_F + i), v(t))
    P = 32
    for i in range(4): V("cvt_pk_bf16_f32", P + i, v(A_F + 2 * i), v(A_F + 2 * i + 1))
    e("s_nop 1")
    e("v_permlane32_swap_b32 v%d, v%d" % (P, P + 2))
    e("v_permlane32_swap_b32 v%d, v%d" % (P + 1, P + 3))
    e("buffer_store_dwordx4 %s, v%d, %s, %s offen sc1" % (vr(P, 4), V_L16, R_WS, sOST))

P_W, P_ACC, P_OF = 96, 32, 48
def tail():
    t = VT
    e("s_cmp_ge_u32 %s, 4" % WV)
    e("s_cbranch_scc1 L_tail_hi")
    c("==== waves 0..3: Wo fragments, poll, O tiles, output projection ====")
    for hh in range(32):
        for tt in range(2):
            e("ds_read_b64_tr_b16 %s, v%d offset:%d" % (vr(P_W + 4 * hh + 2 * tt, 2), PV_WF, L_WO + hh * 2048 + tt * 512))
    signal("c", 20, 7, sF2)
    e("s_barrier")
    stamp("W")
    V("mov_b32", t + 2, L_FL + 24); V("mov_b32", t + 3, 1)
    e("s_cmp_eq_u32 %s, 0" % WV)
    e("s_cbranch_scc0 L_spin2")
    poll("L_poll2", sF2P)
    e("ds_write_b32 v%d, v%d" % (t + 2, t + 3))
    e("s_branch L_seen2")
    lab("L_spin2")
    e("s_mov_b32 %s, 0" % CNT)
    lab("L_spin2l")
    e("ds_read_b32 v%d, v%d" % (t + 3, t + 2))
    sadd(CNT, CNT, 1)
    e("s_waitcnt lgkmcnt(0)")
    e("v_readfirstlane_b32 %s, v%d" % (T0, t + 3))
    e("s_cmp_gt_u32 %s, 0x200000" % CNT)
    e("s_cbranch_scc1 L_seen2")
    e("s_cmp_eq_u32 %s, 0" % T0)
    e("s_cbranch_scc1 L_spin2l")
    lab("L_seen2")
    stamp("poll2")
    sadd("m0", W10, L_O); e("s_nop 0")
    for n in range(16):
        e("buffer_load_dwordx4 v%d, %s, %s offen sc1 lds" % (V_L16, R_WS, sOLD))
        if n < 15:
            sadd("m0", "m0", 4096); sadd(sOLD, sOLD, 0x20000)
    e("s_barrier")
    def mm(st):
        for k in range(4):
            hh = 4 * st + k
            e("v_mfma_f32_32x32x16_bf16 %s, %s, %s, %s" % (vr(P_ACC, 16), vr(P_W + 4 * hh, 4), vr(P_OF + 16 * (st & 1) + 4 * k, 4), "0" if hh == 0 else vr(P_ACC, 16)))
    for st in range(8):
        if st % 2 == 0:
            e("s_waitcnt vmcnt(%d)" % (12 - 2 * st))
            e("s_barrier")
            if st == 0: stamp("O1")
        for k in range(4): e("ds_read_b128 %s, v%d offset:%d" % (vr(P_OF + 16 * (st & 1) + 4 * k, 4), PV_OR, (4 * st + k) * 2048))
        if st > 0:
            e("s_waitcnt lgkmcnt(4)")
            mm(st - 1)
    e("s_waitcnt lgkmcnt(0)")
    mm(7)
    nop(12)
    for i in range(8): V("cvt_pk_bf16_f32", P_OF + i, v(P_ACC + 2 * i), v(P_ACC + 2 * i + 1))
    e("ds_write_b128 v%d, %s" % (PV_OW, vr(P_OF, 4)))
    e("ds_write_b128 v%d, %s offset:16" % (PV_OW, vr(P_OF + 4, 4)))
    c("WG 0 advances the epoch word (every WG has read it: all of them have published)")
    e("s_cmp_eq_u32 s2, 0")
    e("s_cbranch_scc0 L_fin")
    e("s_cmp_eq_u32 %s, 0" % WV)
    e("s_cbranch_scc0 L_fin")
    flag_store("0")
    e("s_branch L_fin")
    lab("L_tail_hi")
    c("==== waves 4..7: causal conv of output tiles 6,7 (two lag halves per channel) ====")
    for p in range(4): V("add_u32", PV_ZR + p, (L_Z2 - L_Z - 4608 - 1152 + p * (ZS2 - ZS)) & 0xffffffff, v(PV_ZR + p))
    def sigw(tag):
        signal(tag, 20, 7, sF2)
        e("s_barrier")
    e("s_bitcmp1_b32 %s, 0" % WV)
    e("s_cbranch_scc1 L_ct_b")
    conv_job(6, 0, 4, False, PV_CA, PV_CB, lambda: sigw("d"), OPT["tsig"])
    e("s_branch L_ct_done")
    lab("L_ct_b")
    conv_job(6, 16, 3, True, PV_CA, PV_CB, lambda: sigw("e"), OPT["tsig"])
    lab("L_ct_done")
    z_writes(PV_ZW2, 0)
    e("s_cmp_eq_u32 %s, 6" % WV)
    e("s_cbranch_scc0 L_nocarry2")
    V("bfe_u32", t + 2, v(V_L), 2, 1); V("mul_u32_u24", t + 2, 8 * ZS2, v(t + 2)); V("bfe_u32", t + 1, v(V_L), 3, 1); V("lshlrev_b32", t + 1, 2, v(t + 1))
    V("and_b32", t + 3, 3, v(V_L)); V("add_u32", t + 1, v(t + 1), v(t + 3)); V("mul_u32_u24", t + 1, ZS2, v(t + 1))
    V("add_u32", t + 2, v(t + 2), v(t + 1)); V("add_u32", t + 2, L_Z2 + 112, v(t + 2))
    e("s_mov_b64 exec, 0xffff")
    e("ds_write_b128 v%d, %s" % (t + 2, vr(PV_CY, 4)))
    e("s_mov_b64 exec, -1")
    lab("L_nocarry2")
    e("s_waitcnt lgkmcnt(0)")
    stamp("cend2")
    e("s_barrier")
    c("y[1536 + 64w' + l] for w' = w-4 and w")
    order = [(g, cl, st) for g in range(2) for cl in range(2) for st in range(2)]
    def rd(n):
        g, cl, st = order[n]
        for p in range(4): e("ds_read_b32 v%d, v%d offset:%d" % (Y_R + 4 * n + p, PV_ZR + p, cl * 8 * ZS2 + st * 4 * ZS2 + g * 1152))
    rd(0); rd(1); rd(2)
    for n in range(8):
        r = Y_R + 4 * n
        e("s_waitcnt lgkmcnt(%d)" % (4 * (min(n + 2, 7) - n)))
        if n + 3 < 8: rd(n + 3)
        V("add_f32", r, v(r), v(r + 1)); V("add_f32", r + 2, v(r + 2), v(r + 3)); V("add_f32", r, v(r), v(r + 2))
        if n % 2: V("add_f32", r, v(r), v(r - 4))
        if n % 4 == 3: V("cvt_pk_bf16_f32", V_Y + n // 4, v(r - 8), v(r))
    S("sub_u32", sYS, sYS2, 0x80000)
    for st in range(4):
        if st == OPT["yat"]:
            e("buffer_store_dword v%d, v%d, %s, %s offen" % (V_Y, PV_YA, R_OUT, sYS))
            e("buffer_store_dword v%d, v%d, %s, %s offen" % (V_Y + 1, PV_YA, R_OUT, sYS2))
        e("s_barrier")
    if OPT["yat"] == 4:
        e("buffer_store_dword v%d, v%d, %s, %s offen" % (V_Y, PV_YA, R_OUT, sYS))
        e("buffer_store_dword v%d, v%d, %s, %s offen" % (V_Y + 1, PV_YA, R_OUT, sYS2))
    lab("L_fin")
    e("s_waitcnt lgkmcnt(0)")
    e("s_barrier")
    stamp("opdone")
    e("ds_read_b128 v[32:35], v%d" % PV_FR)
    e("s_waitcnt lgkmcnt(0)")
    e("buffer_store_dwordx4 v[32:35], v%d, %s, %s offen %s" % (PV_FS, R_OUT, sOUT, OPT["opol"]))

def dump_lds(base, nbytes, wsoff):
    t = VT + 10
    e("s_waitcnt lgkmcnt(0)"); e("s_barrier")
    V("lshlrev_b32", t, 4, v(0))
    sshl(T0, "s2", 18); sadd(T0, T0, WS_DBG + wsoff)
    for o in range(0, nbytes, 8192):
        V("add_u32", t + 1, base + o, v(t))
        e("ds_read_b128 %s, v%d" % (vr(t + 2, 4), t + 1))
        e("s_waitcnt lgkmcnt(0)")
        e("buffer_store_dwordx4 %s, v%d, %s, %s offen" % (vr(t + 2, 4), t, R_WS, T0))
        sadd(T0, T0, 8192)
        e("s_waitcnt vmcnt(0)")
    e("s_barrier")

def write_stamps():
    t = VT
    if OPT["ldst"]:
        e("s_waitcnt vmcnt(0) lgkmcnt(0)")
        sshl(T0, "s2", 3); sadd(T0, T0, WV); sshl(T0, T0, 7); sadd(T0, T0, WS_ST)
        e("s_mov_b64 exec, 1")
        V("mov_b32", t, 0)
        for i in range(10):
            V("mov_b32", t + 1, sr(80 + 2 * i))
            e("buffer_store_dword v%d, v%d, %s, %s offen offset:%d" % (t + 1, t, R_WS, T0, 4 * i))
            e("s_nop 1")
        e("s_mov_b64 exec, -1")
    if OPT["echo"]:
        a, b, m = OPT["echo"].split(",")
        e("s_cmp_eq_u32 %s, %d" % (WV, OPT["echowv"])); e("s_cbranch_scc0 L_end")
        e("s_cmp_eq_u32 s2, %d" % OPT["echowg"]); e("s_cbranch_scc0 L_end")
        e("s_waitcnt vmcnt(0)")
        stamp("end")
        if a == "start": e("s_mov_b32 s80, s100")
        e("s_sub_u32 s82, s81, s80"); e("s_mul_i32 s82, s82, %s" % m); e("s_min_u32 s82, s82, 20000")
        e("s_memrealtime s[84:85]"); e("s_waitcnt lgkmcnt(0)")
        lab("L_echo")
        e("s_memrealtime s[86:87]"); e("s_waitcnt lgkmcnt(0)")
        e("s_sub_u32 s83, s86, s84"); e("s_cmp_lt_u32 s83, s82"); e("s_cbranch_scc1 L_echo")
    if OPT["stamps"]:
        e("s_waitcnt vmcnt(0)")
        stamp("end")
        sshl(T0, "s2", 3); sadd(T0, T0, WV); sshl(T0, T0, 7); sadd(T0, T0, WS_ST)
        e("s_mov_b64 exec, 1")
        V("mov_b32", t, 0)
        for i in range(len(stamp_names)):
            V("mov_b32", t + 1, sr(S_ST + i))
            e("buffer_store_dword v%d, v%d, %s, %s offen offset:%d" % (t + 1, t, R_WS, T0, 4 * i))
            e("s_nop 1")
        V("mov_b32", t + 1, "s100")
        e("buffer_store_dword v%d, v%d, %s, %s offen offset:124" % (t + 1, t, R_WS, T0))
        e("s_memrealtime s[98:99]")
        e("s_waitcnt lgkmcnt(0)")
        V("mov_b32", t + 2, "s98")
        e("buffer_store_dword v%d, v%d, %s, %s offen offset:120" % (t + 2, t, R_WS, T0))
        e("s_mov_b64 exec, -1")
        L.insert(0, "; stamps: " + ",".join(stamp_names))
    if OPT["dbgspan"]:
        e("s_cmp_eq_u32 %s, 0" % WV); e("s_cbranch_scc0 L_end")
        sand(T0, "s2", 63); e("s_cmp_eq_u32 %s, 5" % T0); e("s_cbranch_scc0 L_end")
        e("s_waitcnt vmcnt(0)")
        e("s_memrealtime s[96:97]"); e("s_memtime s[94:95]")
        srd(R_X, S_DBG, 256)
        sshr(T0, "s2", 6); sshl(T0, T0, 4)
        e("s_waitcnt lgkmcnt(0)")
        e("s_mov_b64 exec, 1")
        V("mov_b32", t, 0)
        e("s_sub_u32 s94, s94, s98"); e("s_sub_u32 s96, s96, s100")
        V("mov_b32", t + 2, "s100"); V("mov_b32", t + 3, "s96"); V("mov_b32", t + 4, "s94"); V("mov_b32", t + 5, 0)
        e("buffer_store_dwordx4 %s, v%d, %s, %s offen" % (vr(t + 2, 4), t, R_X, T0))

def main():
    header()
    setup()
    loader_path()
    compute_path()
    lab("L_gemm_done")
    if OPT["gprio"]: e("s_setprio 0")
    e("s_waitcnt lgkmcnt(0)")
    e("s_barrier")
    stamp("K2")
    if OPT["dump"]: dump_lds(L_KF, 24576, 0)
    conv()
    kv_early()
    conv_epilogue()
    if not OPT["b1late"]:
        e("s_waitcnt vmcnt(0)")
        e("s_barrier")
        stamp("S")
    kv_late()
    attn_main()
    combine()
    attn_check_and_slow()
    tail()
    write_stamps()
    e("s_endpgm")
    slow_path()
    footer(256)
    open(sys.argv[1], "w").write("\n".join(L) + "\n")

main()
```

```python
import sys, struct, math

NAME = "concat_heads__ssm_conv_s4__softmax_full_mha__prompt"
OPT = dict(only="", ldst=0, ypol="", opol="", abl="", echo="", echowg=0, echowv=0, stamps=0, dump=0, forceslow=0, dbgspan=0, flip1=14, mid=16, flip=30, pf=2, apre=45, f0=5, f2=2, umode=0, uat=0, ust2=1, lsp=0, fline=0, psleep=0, ppol="sc1", gprio=0, kvrot=0, qearly=0, cfill=3, gsig=0, fsig=16, wbar=2, pfw=0, pfx=0, tsig=-2, b1late=0, rot=6, yat=0, npre=999,
           yt=[15, 20, 25], wt=[17, 18, 19, 21, 22, 23, 24, 26])
for a in sys.argv[2:]:
    k, v = a.split("=")
    OPT[k] = int(v) if v.lstrip("-").isdigit() else v

L = []
SINK = [L]
def e(s): SINK[0].append("    " + s)
def lab(s): SINK[0].append(s + ":")
def c(s): SINK[0].append("    ; " + s)
def f2u(x): return struct.unpack("<I", struct.pack("<f", x))[0]
def fl(x): return "0x%08x" % f2u(x)
def vr(a, n=1): return "v%d" % a if n == 1 else "v[%d:%d]" % (a, a + n - 1)
def sr(a, n=1): return "s%d" % a if n == 1 else "s[%d:%d]" % (a, a + n - 1)
def nop(n):
    while n > 0:
        k = min(n, 16); e("s_nop %d" % (k - 1)); n -= k
def capture(fn, *a):
    old = SINK[0]; out = []; SINK[0] = out; fn(*a); SINK[0] = old; return out

WS_F1 = 0x1000
WS_F2 = 0xa000
WS_F0 = 0x20000
WS_Q, WS_K, WS_V, WS_O, WS_U2 = 0x100000, 0x300000, 0x500000, 0x700000, 0x900000
WS_ST = 0xc00000
WS_DBG = 0x1000000
WS_SIZE = 0x10000000
LDS_TOTAL = 163840
BLK = 16384
L_TB = 98304
L_TA = 0
L_FL = 146240
L_KF = 146304
L_UP = 154624
ZS = 9504
L_Z = 70208
ZS2 = 2448
L_Z2 = 0
L_WO = 0
L_O = 65536
L_SC = 65536
L_OT = 131072
S_U, S_ARE, S_AIM, S_BRE, S_BIM, S_CRE, S_CIM, S_LDT = 8, 10, 12, 14, 16, 18, 20, 22
S_DSK, S_X, S_W, S_WO, S_OUT, S_DBG, S_WS = 24, 26, 28, 30, 32, 34, 36
R_X, R_W, R_WS, R_U, R_OUT, R_WO = "s[40:43]", "s[44:47]", "s[48:51]", "s[52:55]", "s[56:59]", "s[60:63]"
XQ, I5, WV, TAG, LD2, DS2, HH, JJ, C0 = "s64", "s65", "s66", "s67", "s68", "s69", "s70", "s71", "s72"
T0, T1, T2, T3, T4, T5, CNT = "s73", "s74", "s75", "s76", "s77", "s78", "s79"
CQ, CL, W10, GT, GQ = "s38", "s39", "s3", "s6", "s7"
JR = "s97"
sQKV, sF1, sF1P, sYS, sWO, sOST, sOLD, sOUT, sF2, sF2P, sHB, sQL = ["s%d" % i for i in range(8, 20)]
sYS2 = "s38"
S_ST = 80
stamp_names = []
def stamp(name):
    if OPT["only"] and name not in OPT["only"].split(",") + ["karg", "end"]: return
    if OPT["echo"]:
        a, b, m = OPT["echo"].split(",")
        if name in (a, b):
            e("s_waitcnt lgkmcnt(0)")
            e("s_memrealtime s[98:99]")
            e("s_waitcnt lgkmcnt(0)")
            e("s_mov_b32 %s, s98" % ("s80" if name == a else "s81"))
    if OPT["stamps"]:
        if name not in stamp_names: stamp_names.append(name)
        assert len(stamp_names) <= 18
        e("s_waitcnt lgkmcnt(0)")
        e("s_memrealtime s[98:99]" if OPT["stamps"] == 2 else "s_memtime s[98:99]")
        e("s_waitcnt lgkmcnt(0)")
        e("s_mov_b32 %s, s98" % sr(S_ST + stamp_names.index(name)))
def srd(r, base, size):
    r = int(r[2:r.index(":")])
    e("s_mov_b32 %s, %s" % (sr(r), sr(base)))
    e("s_and_b32 %s, %s, 0xffff" % (sr(r + 1), sr(base + 1)))
    e("s_mov_b32 %s, 0x%x" % (sr(r + 2), size))
    e("s_mov_b32 %s, 0x00020000" % sr(r + 3))
def csel(dst, a, b):
    e("s_mov_b32 %s, %d" % (dst, b))
    e("s_cselect_b32 %s, %d, %s" % (dst, a, dst))
def S(op, d, a, b): e("s_%s %s, %s, %s" % (op, d, a, b if isinstance(b, str) else ("0x%x" % b if b > 64 else str(b))))
def sadd(d, a, b): S("add_u32", d, a, b)
def sshl(d, a, b): S("lshl_b32", d, a, b)
def sshr(d, a, b): S("lshr_b32", d, a, b)
def sand(d, a, b): S("and_b32", d, a, b)
def smul(d, a, b): S("mul_i32", d, a, b)
def V(op, d, *a): e("v_%s v%d, %s" % (op, d, ", ".join(("v%d" % x[0] if isinstance(x, tuple) else (x if isinstance(x, str) else ("0x%x" % x if x > 64 else str(x)))) for x in a)))
def v(x): return (x,)
LOG2E = math.log2(math.e)

V_L, V_L16, V_PA = 1, 2, 3
V_PAR = 4
V_Y = 10
VT = 14
(PV_CA, PV_CB, PV_ZW, PV_ZR, _z1, _z2, _z3, PV_KA, PV_V0, PV_V1, PV_YA, PV_WA, PV_CW, PV_CR,
 PV_OR, PV_OW, PV_WF, PV_FR, PV_FS, PV_WS) = range(224, 244)
PV_ZW2 = PV_V1
PV_CY = 250
PV_QS, PV_VS, PV_TW = 222, 223, 219
PV_GA, PV_GB, PV_GW, PV_GD, PV_US = 244, 245, 246, 247, 248

def header():
    for x in """fused S4 long-conv (out[:, 0:512]) + 32-head attention with output projection (out[:, 512:1024])
one launch, 256 workgroups x 8 waves, one workgroup per CU (160 KB LDS); generated by my own script
 phase 1  QKV GEMM: WG = 64 tokens x 4 heads (q,k,v); waves 4-7 stream x/W into an LDS ring (LDS-DMA),
          waves 0-3 run the MFMAs and build the S4 mode tables; Q,K,V go to d_ws (sc1) + flag
 phase 2  S4: K[l] = Re sum_n C B dt exp(dt A bf16(l)) as a table matmul (rows duplicated to realise bf16(l)),
          causal conv as Toeplitz MFMAs on polyphase-4 u (tiles 0-5 here, tiles 6-7 in the tail); D folded into K[0]
 phase 3  attention: WG = 1 head x 256 queries, S^T = K Q^T (q pre-scaled by log2e/4), P = 2^S in place,
          O^T += V^T P with the sparse MFMA reading the high halves of the fp32 P; a ones row gives the row sum.
          The fast path uses shift 0; afterwards the row sum and O are range-checked and any wave for which
          that shift was unsafe recomputes its rows with the true row max (L_slow).
 phase 4  O goes to d_ws (sc1) + flag; WG = 64 x 64 tile of O @ Wo
hand-offs: sc1 stores -> vmcnt(0) -> flag (tag = d_ws[0] + 1, advanced by WG 0 at the end) -> sc1 poll -> sc1 loads""".split("\n"):
        L.append("; " + x)
    L.append("; @launch grid=(256,1,1) block=(512,1,1) lds=%d" % LDS_TOTAL)
    L.append('.amdgcn_target "amdgcn-amd-amdhsa--gfx950"')
    L.append(".text")
    L.append(".globl %s_kernel" % NAME)
    L.append(".p2align 8")
    L.append(".type %s_kernel,@function" % NAME)
    L.append("%s_kernel:" % NAME)
def footer(nv):
    lab("L_end")
    e("s_endpgm")
    L.append('.section .rodata,"a"')
    L.append(".p2align 6")
    L.append(".amdhsa_kernel %s_kernel" % NAME)
    L.append("  .amdhsa_next_free_vgpr %d" % nv)
    L.append("  .amdhsa_next_free_sgpr 102")
    L.append("  .amdhsa_accum_offset %d" % nv)
    L.append("  .amdhsa_group_segment_fixed_size 0")
    L.append("  .amdhsa_kernarg_size 120")
    L.append("  .amdhsa_user_sgpr_count 2")
    L.append("  .amdhsa_user_sgpr_kernarg_segment_ptr 1")
    L.append("  .amdhsa_system_sgpr_workgroup_id_x 1")
    L.append(".end_amdhsa_kernel")

def setup():
    c("---- setup ----")
    e("s_cmp_ge_u32 s2, 256")
    e("s_cbranch_scc1 L_end")
    e("s_load_dwordx8 s[24:31], s[0:1], 64")
    e("s_load_dwordx16 s[8:23], s[0:1], 0")
    e("s_load_dwordx4 s[32:35], s[0:1], 96")
    e("s_load_dwordx2 s[36:37], s[0:1], 112")
    if OPT["stamps"] or OPT["dbgspan"] or OPT["echo"]: e("s_memrealtime s[100:101]")
    if OPT["dbgspan"]: e("s_memtime s[98:99]")
    if OPT["pf"] == 2:
        c("pull this WG's 1/32 share of the code into L2 right away (thread t<8: line 8*(wg>>3)+t)")
        e("s_getpc_b64 s[4:5]")
        lab("L_pc")
        e("s_and_b32 s3, s2, 0xf8")
        V("add_u32", VT, "s3", v(0)); V("lshlrev_b32", VT, 7, v(VT))
        e("v_min_u32 v%d, L_end-L_pc-4, v%d" % (VT, VT))
        e("v_cmp_gt_u32 vcc, 8, v0")
        e("s_and_saveexec_b64 s[6:7], vcc")
        e("s_cbranch_execz L_nopf")
        e("global_load_dword v47, v%d, s[4:5]" % VT)
        lab("L_nopf")
        e("s_mov_b64 exec, -1")
    V("and_b32", V_L, 63, v(0))
    V("lshrrev_b32", VT, 6, v(0))
    V("lshlrev_b32", V_L16, 4, v(V_L))
    V("mov_b32", PV_FS, 0)
    e("v_readfirstlane_b32 %s, v%d" % (WV, VT))
    sand(XQ, "s2", 7)
    sshr(I5, "s2", 3)
    sand(GT, XQ, 3); sshl(GT, GT, 3); sshr(JJ, I5, 2); sadd(GT, GT, JJ)
    sand(GQ, XQ, 4); sand(T0, I5, 3); sadd(GQ, GQ, T0)
    sshl(HH, XQ, 2); sadd(HH, HH, T0)
    sshl(C0, XQ, 5); sadd(C0, C0, I5); sshl(C0, C0, 1)
    sshl(W10, WV, 10)
    e("s_cmp_ge_u32 %s, 4" % WV)
    e("s_cbranch_scc0 L_compute")

def scalar_loads():
    sshl(T3, C0, 1)
    e("s_load_dword %s, %s, 0" % (TAG, sr(S_WS, 2)))
    e("s_load_dword %s, %s, %s" % (LD2, sr(S_LDT, 2), T3))
    e("s_load_dword %s, %s, %s" % (DS2, sr(S_DSK, 2), T3))

def lane_terms():
    t = VT
    hf, b7, p4, r4, g1, l15, l8 = t, t + 1, t + 2, t + 3, t + 4, t + 5, t + 6
    V("lshrrev_b32", hf, 5, v(V_L)); V("and_b32", b7, 7, v(V_L)); V("bfe_u32", p4, v(V_L), 3, 2)
    V("bfe_u32", r4, v(V_L), 2, 2); V("bfe_u32", g1, v(V_L), 4, 1); V("and_b32", l15, 15, v(V_L)); V("lshrrev_b32", l8, 3, v(V_L))
    return hf, b7, p4, r4, g1, l15, l8

def precompute_conv():
    t = VT
    c("---- conv addresses ----")
    e("s_bfe_u32 %s, %s, 0x10001" % (CL, WV))
    hf, b7, p4, r4, g1, l15, l8 = lane_terms()
    x, y, z = t + 8, t + 9, t + 10
    e("s_cmp_eq_u32 %s, 1" % CL)
    csel(T0, L_KF + 4160 + 96, L_KF + 96); csel(T1, L_UP + 4608, L_UP); csel(T2, L_Z + 4 * ZS + 144, L_Z + 144)
    V("and_b32", x, 3, v(V_L)); V("lshl_add_u32", x, v(g1), 2, v(x)); V("lshl_add_u32", y, v(hf), 3, v(r4))
    V("sub_u32", x, v(x), v(y)); V("lshlrev_b32", x, 3, v(x)); V("add_u32", PV_CA, T0, v(x))
    V("mul_u32_u24", x, 1152, v(p4)); V("add_u32", z, v(b7), v(hf)); V("lshl_add_u32", x, v(z), 4, v(x))
    V("add_u32", PV_CB, T1, v(x))
    V("mul_u32_u24", x, ZS, v(p4)); V("mul_u32_u24", z, 144, v(b7)); V("lshl_add_u32", z, v(hf), 4, v(z)); V("add3_u32", PV_ZW, v(x), v(z), T2)
    sshl(sF1, GQ, 5); sadd(sF1, sF1, GT); sshl(sF1, sF1, 7); sadd(sF1, sF1, WS_F1)
    sshl(T0, XQ, 12); sadd(sF1P, T0, WS_F1); sadd(sF2P, T0, WS_F2)
    sshl(sHB, HH, 16)
    if OPT["kvrot"] == 1: e("s_mov_b32 %s, %s" % (JR, JJ))
    elif OPT["kvrot"] == 0: e("s_mov_b32 %s, 0" % JR)
    else: sand(JR, JJ, OPT["kvrot"])

def precompute():
    t = VT
    c("SPLIT")
    e("s_cmp_ge_u32 %s, 4" % WV)
    e("s_cselect_b32 %s, 1024, 0" % T0)
    hf, b7, p4, r4, g1, l15, l8 = lane_terms()
    x, y, z = t + 8, t + 9, t + 10
    V("add_u32", PV_KA, T0, v(V_L16))
    V("lshlrev_b32", x, 4, v(l15)); V("lshl_add_u32", x, v(hf), 8, v(x)); sadd(T0, T0, 8192); V("add_u32", PV_V0, T0, v(x))
    V("lshlrev_b32", PV_YA, 11, v(V_L))
    V("lshlrev_b32", x, 2, v(g1)); V("xor_b32", x, v(x), v(b7)); V("lshlrev_b32", x, 4, v(x)); V("lshl_add_u32", PV_WA, v(l8), 10, v(x))
    c("SPLIT")
    sshl(T0, WV, 7); sadd(T0, T0, 32)
    for p in range(4):
        V("add_u32", x, T0, v(V_L))
        if p: V("subrev_u32", x, p, v(x))
        V("lshrrev_b32", z, 5, v(x)); V("lshlrev_b32", x, 2, v(x)); V("lshl_add_u32", x, v(z), 4, v(x))
        V("add_u32", PV_ZR + p, L_Z + p * ZS, v(x))
    c("SPLIT")
    sshl(T0, WV, 18); sshl(T1, C0, 1); sadd(sYS, T0, T1)
    sshr(T0, T0, 1); sadd(T0, T0, T1); sadd(sYS2, T0, 0x200000)
    sand(T0, I5, 7); sshl(T0, T0, 7); sshl(T1, WV, 13); sadd(sWO, T0, T1)
    sshl(T1, JJ, 13); sadd(T1, T1, sHB); sand(T2, WV, 3); sshl(T2, T2, 11); sadd(T1, T1, T2)
    sadd(sQL, T1, WS_Q)

def precompute_tail():
    t = VT + 4
    hf, b7, p4, r4, g1, l8 = t, t + 1, t + 2, t + 3, t + 4, t + 5
    V("lshrrev_b32", hf, 5, v(V_L)); V("and_b32", b7, 7, v(V_L)); V("bfe_u32", p4, v(V_L), 3, 2)
    V("bfe_u32", r4, v(V_L), 2, 2); V("bfe_u32", g1, v(V_L), 4, 1); V("lshrrev_b32", l8, 3, v(V_L))
    x, y, z = t + 6, t + 7, t + 8
    sand(T0, WV, 3); smul(T0, T0, 6144); sadd(T0, T0, L_SC)
    V("add_u32", PV_CW, T0, v(V_L16))
    sand(T0, WV, 1); smul(T0, T0, 4 * ZS2); smul(T1, CL, 8 * ZS2); sadd(T0, T0, T1); sadd(T0, T0, L_Z2 + 144)
    V("mul_u32_u24", x, ZS2, v(p4)); V("mul_u32_u24", z, 144, v(b7)); V("lshl_add_u32", z, v(hf), 4, v(z)); V("add3_u32", PV_ZW2, v(x), v(z), T0)
    V("lshl_add_u32", y, v(hf), 3, v(r4)); V("lshlrev_b32", PV_WF, 7, v(y))
    V("and_b32", x, 1, v(V_L)); V("lshl_or_b32", x, v(x), 1, v(g1))
    sand(T0, WV, 2); sshl(T0, T0, 1); V("or_b32", x, T0, v(x))
    V("bfe_u32", z, v(V_L), 3, 1); V("lshlrev_b32", z, 2, v(z)); V("xor_b32", x, v(x), v(z))
    V("lshl_add_u32", PV_WF, v(x), 4, v(PV_WF)); V("bfe_u32", z, v(V_L), 1, 1); V("lshl_add_u32", PV_WF, v(z), 3, v(PV_WF))
    sand(T1, WV, 1); sshl(T2, T1, 10); sadd(T2, T2, L_O); V("add_u32", PV_OR, T2, v(V_L16))
    smul(T1, T1, 4608); sshl(T0, T0, 4); sadd(T0, T0, T1); sadd(T0, T0, L_OT)
    V("and_b32", x, 31, v(V_L)); V("mul_u32_u24", x, 144, v(x)); V("lshl_add_u32", x, v(hf), 5, v(x)); V("add_u32", PV_OW, T0, v(x))
    smul(T0, WV, 1152); sadd(T0, T0, L_OT)
    V("lshlrev_b32", x, 4, v(b7)); V("mul_u32_u24", z, 144, v(l8)); V("add3_u32", PV_FR, v(z), v(x), T0); V("lshl_add_u32", PV_FS, v(l8), 11, v(x))
    sshl(sF2, JJ, 5); sadd(sF2, sF2, HH); sshl(sF2, sF2, 7); sadd(sF2, sF2, WS_F2)
    S("sub_u32", T1, sQL, WS_Q); sadd(sOST, T1, WS_O)
    sshr(T1, WV, 1); sshl(T1, T1, 6); sshl(T2, XQ, 3); sadd(T1, T1, T2); sshr(T3, I5, 3); sshl(T2, T3, 1); sadd(T1, T1, T2)
    sand(T2, WV, 1); sadd(T1, T1, T2); sshl(T1, T1, 10); sadd(sOLD, T1, WS_O)
    sand(T0, I5, 7); sshl(T0, T0, 7)
    sshl(T1, XQ, 2); sadd(T1, T1, T3); sshl(T1, T1, 3); sadd(T1, T1, WV); sshl(T1, T1, 14); sadd(T1, T1, T0); sadd(sOUT, T1, 1024)

G_VX0, G_VX1, G_VWQ, G_VWK, G_VWV, G_PL = 32, 33, 34, 35, 36, 39
G_UA, G_US = 30, 31
G_UL, U2R = 196, 80
G_XA, G_WA, G_WB = 32, 40, 43
G_ACC = [48, 64, 80]
G_XF, G_W0F, G_W1F, G_VF = 96, 112, 128, 144
KB = 48
KR = 192

def loader_addr():
    t = VT
    c("loader DMA voffsets (wave v=w-4 covers rows 16v..16v+15 of each chunk)")
    V("lshrrev_b32", t, 3, v(V_L)); V("and_b32", t + 1, 7, v(V_L)); V("bfe_u32", t + 2, v(V_L), 4, 1)
    sand(T0, WV, 3); sshl(T4, T0, 11); sshl(T0, T0, 4)
    V("add_u32", t + 3, T0, v(t))
    V("bfe_u32", t + 4, v(t + 3), 1, 3); V("xor_b32", t + 4, v(t + 4), v(t + 1)); V("lshlrev_b32", t + 4, 4, v(t + 4))
    sshl(T1, GT, 16)
    V("lshl_add_u32", G_VX0, v(t + 3), 10, v(t + 4)); V("add_u32", G_VX0, T1, v(G_VX0)); V("xor_b32", G_VX1, 0x2040, v(G_VX0))
    V("mul_u32_u24", t + 5, 3072, v(t + 3)); sshl(T1, GQ, 7); V("add_u32", t + 5, T1, v(t + 5))
    V("lshlrev_b32", t + 6, 1, v(t + 2)); V("xor_b32", t + 6, v(t + 6), v(t + 1)); V("lshl_add_u32", G_VWQ, v(t + 6), 4, v(t + 5))
    V("xor_b32", t + 6, 4, v(t + 6)); V("lshl_add_u32", G_VWK, v(t + 6), 4, v(t + 5)); V("add_u32", G_VWK, 1024, v(G_VWK))
    V("lshlrev_b32", t + 6, 2, v(t + 2)); V("xor_b32", t + 6, v(t + 6), v(t + 1)); V("lshl_add_u32", G_VWV, v(t + 6), 4, v(t + 5)); V("add_u32", G_VWV, 2048, v(G_VWV))
    r = OPT["rot"]
    if r == 1: sshl(T5, GQ, 1); sadd(T5, T5, GT)
    else:
        sadd(T5, GQ, GT)
        if r == 3: sshl(T5, T5, 2)
        if r == 5: sand(T5, T5, 1)
        if r == 6: sshl(T5, T5, 1)

I0, I1, I2, I3 = "s20", "s21", "s22", "s23"
def issue_chunk(ci):
    base = (ci % 3) * 32768
    sadd(I0, T5, ci); sand(I0, I0, 7)
    sadd("m0", T4, base); sshl(I1, I0, 7)
    e("buffer_load_dwordx4 v%d, %s, %s offen lds" % (G_VX0, R_X, I1))
    sadd("m0", T4, base + 1024); smul(I2, I0, 196608)
    e("buffer_load_dwordx4 v%d, %s, %s offen lds" % (G_VX1, R_X, I1))
    for g, va in enumerate((G_VWQ, G_VWK, G_VWV)):
        for h in range(2):
            sadd("m0", T4, base + (g + 1) * 8192 + h * 1024)
            if g == 0 and h == 0: sadd(I3, I2, 24576)
            else: e("s_nop 0")
            e("buffer_load_dwordx4 v%d, %s, %s offen lds" % (va, R_W, I3 if h else I2))

def pi_tok(dst, src, t):
    V("and_b32", dst, 0x13, v(src)); V("bfe_u32", t, v(src), 2, 1); V("lshl_or_b32", dst, v(t), 3, v(dst))
    V("bfe_u32", t, v(src), 3, 1); V("lshl_or_b32", dst, v(t), 2, v(dst))

def gemm_read_addr():
    t = VT
    c("GEMM LDS fragment read addresses, publish addresses")
    pi_tok(t, V_L, t + 1)
    V("lshrrev_b32", t + 1, 5, v(V_L))
    V("lshlrev_b32", PV_QS, 4, v(t)); V("lshl_add_u32", PV_QS, v(t + 1), 9, v(PV_QS))
    sand(T0, WV, 1); sshl(T1, T0, 5); V("add_u32", t, T1, v(t))
    V("bfe_u32", t + 2, v(t), 1, 3); V("xor_b32", t + 2, v(t + 2), v(t + 1)); V("lshlrev_b32", t + 2, 4, v(t + 2))
    V("lshl_add_u32", G_XA, v(t), 7, v(t + 2))
    for s in range(1, 4): V("xor_b32", G_XA + s, 32 * s, v(G_XA))
    V("bfe_u32", t + 2, v(V_L), 2, 2); V("lshl_add_u32", t + 3, v(t + 1), 3, v(t + 2)); V("lshlrev_b32", t + 3, 7, v(t + 3))
    V("bfe_u32", t + 4, v(V_L), 4, 1); V("bfe_u32", t + 5, v(V_L), 3, 1); V("and_b32", t + 6, 1, v(V_L)); V("bfe_u32", t + 7, v(V_L), 1, 1)
    sand(T2, WV, 2); sshl(T1, T2, 1)
    V("or_b32", t + 8, T1, v(t + 6)); V("lshl_or_b32", t + 9, v(t + 4), 1, v(t + 5)); V("lshlrev_b32", t + 9, 1, v(t + 9))
    V("xor_b32", t + 8, v(t + 8), v(t + 9)); V("lshl_add_u32", t + 8, v(t + 8), 4, v(t + 3)); V("lshl_add_u32", t + 8, v(t + 7), 3, v(t + 8))
    V("lshl_add_u32", G_WA, v(t + 4), 13, v(t + 8)); V("add_u32", G_WA, 8192, v(G_WA)); V("xor_b32", G_WA + 1, 32, v(G_WA))
    V("lshl_or_b32", t + 8, v(t + 4), 1, v(t + 7)); V("or_b32", t + 8, T1, v(t + 8)); V("lshlrev_b32", t + 9, 2, v(t + 5))
    V("xor_b32", t + 8, v(t + 8), v(t + 9)); V("lshl_add_u32", t + 8, v(t + 8), 4, v(t + 3)); V("lshl_add_u32", t + 8, v(t + 6), 3, v(t + 8))
    V("add_u32", G_WA + 2, 24576, v(t + 8))
    for s in range(4): V("add_u32", G_XA + 4 + s, 0x10000, v(G_XA + s))
    for s in range(3): V("add_u32", G_WB + s, 0x10000, v(G_WA + s))
    V("and_b32", t + 2, 15, v(V_L)); V("lshlrev_b32", t + 2, 4, v(t + 2)); V("lshl_add_u32", t + 2, v(t + 1), 8, v(t + 2)); V("lshl_add_u32", PV_VS, v(t + 4), 16, v(t + 2))
    sshl(T1, GQ, 2); sadd(T1, T1, T2); sshl(T1, T1, 6); sshl(T3, GT, 1); sadd(T1, T1, T3); sadd(T1, T1, T0); sshl(sQKV, T1, 10)
    sshl(T0, T0, 8)
    e("s_bitcmp1_b32 %s, 1" % WV)
    csel(T1, L_TA + 14256, L_TA); csel(T2, L_TB + 16896, L_TB)
    sadd(T1, T1, T0); sadd(T2, T2, T0)
    V("lshl_add_u32", PV_TW, v(V_L), 2, T1); V("lshl_add_u32", 46, v(V_L), 2, T2)

G_UP = 29
def u_coop_loads():
    t = VT
    if OPT["umode"] == 0:
        e("s_bfe_u32 %s, %s, 0x10001" % (T1, WV)); sand(T0, WV, 1)
        V("and_b32", t, 7, v(V_L)); V("bfe_u32", t + 1, v(V_L), 3, 2)
        sshl(T0, T0, 2); V("add_u32", t + 1, T0, v(t + 1))
        sshl(T2, I5, 1); sadd(T1, T1, T2); sshl(T1, T1, 3); V("add_u32", t, T1, v(t))
        V("lshlrev_b32", t + 2, 4, v(t + 1)); V("lshl_add_u32", G_UA, v(t), 12, v(t + 2))
        V("lshlrev_b32", t, 4, v(t)); V("lshl_add_u32", G_US, v(t + 1), 15, v(t))
        sshl(T0, XQ, 7)
        e("s_mov_b32 exec_hi, 0")
        for k in range(4):
            e("buffer_load_dwordx4 %s, v%d, %s, %s offen offset:%d" % (vr(G_UL + 4 * k, 4), G_UA, R_U, T0, 1024 * k))
        e("s_mov_b32 exec_hi, -1")
        return
    sshl(T1, I5, 2); sadd(T1, T1, WV); sshl(T1, T1, 2)
    V("bfe_u32", t, v(V_L), 3, 2); V("add_u32", t, T1, v(t)); V("and_b32", t + 1, 7, v(V_L))
    V("lshlrev_b32", t + 1, 4, v(t + 1)); V("lshl_add_u32", G_UA, v(t), 12, v(t + 1))
    sshl(T0, XQ, 7)
    e("s_mov_b32 exec_hi, 0")
    for k in range(4):
        e("buffer_load_dwordx4 %s, v%d, %s, %s offen offset:%d" % (vr(G_UL + 4 * k, 4), G_UA, R_U, T0, 1024 * k))
    e("s_mov_b32 exec_hi, -1")
    V("and_b32", t, 3, v(V_L)); V("bfe_u32", t + 1, v(V_L), 2, 3)
    V("lshl_add_u32", G_UP, v(t), 3, v(t + 1)); V("lshlrev_b32", G_UP, 2, v(G_UP))
    V("add_u32", t, T1, v(t)); V("lshlrev_b32", t, 4, v(t)); V("lshl_add_u32", G_US, v(t + 1), 15, v(t))

def u_coop_perm():
    D = 240
    e("s_waitcnt vmcnt(0)")
    for i in range(4):
        for k in range(4):
            if OPT["umode"]: e("ds_bpermute_b32 v%d, v%d, v%d" % (D + 4 * i + k, G_UP, G_UL + 4 * k + i))
            else: V("mov_b32", D + 4 * i + k, v(G_UL + 4 * k + i))
def u_coop_stores():
    D = 240
    sshl(I0, XQ, 18); sadd(I0, I0, WS_U2)
    e("s_mov_b32 exec_hi, 0")
    for i in range(4):
        e("buffer_store_dwordx4 %s, v%d, %s, %s offen sc1" % (vr(D + 4 * i, 4), G_US, R_WS, I0))
        if i < 3: sadd(I0, I0, 8192)
    e("s_mov_b32 exec_hi, -1")

def flag_store(soff, t=VT):
    if OPT["fline"] and soff != "0":
        V("mov_b32", t + 1, TAG)
        V("lshlrev_b32", t, 2, v(V_L))
        e("s_mov_b32 exec_hi, 0")
        e("buffer_store_dword v%d, v%d, %s, %s offen sc1" % (t + 1, t, R_WS, soff))
        e("s_mov_b32 exec_hi, -1")
        return
    V("mov_b32", t, 0); V("mov_b32", t + 1, TAG)
    e("s_mov_b64 exec, 1")
    e("buffer_store_dword v%d, v%d, %s, %s offen sc1" % (t + 1, t, R_WS, soff))
    e("s_mov_b64 exec, -1")

def poll(label, soff, first_issued=None, t=VT, nwait=0):
    V("lshlrev_b32", t, 7, v(V_L))
    e("s_mov_b32 %s, 0" % CNT)
    e("s_mov_b32 exec_hi, 0")
    r = t + 1
    if first_issued is not None:
        r = first_issued
        e("s_waitcnt vmcnt(%d)" % nwait)
        e("s_branch %s_chk" % label)
    if OPT["psleep"] and first_issued is None: e("s_branch %s_go" % label)
    lab(label)
    if OPT["psleep"]: e("s_sleep %d" % OPT["psleep"])
    lab(label + "_go")
    e("buffer_load_dword v%d, v%d, %s, %s offen %s" % (r, t, R_WS, soff, OPT["ppol"].replace("+", " ")))
    sadd(CNT, CNT, 1)
    e("s_waitcnt vmcnt(0)")
    lab(label + "_chk")
    e("v_cmp_ne_u32 vcc, %s, v%d" % (TAG, r))
    e("s_cmp_gt_u32 %s, 0x4000" % CNT)
    e("s_cbranch_scc1 %s_done" % label)
    e("s_cmp_lg_u64 vcc, 0")
    e("s_cbranch_scc1 %s" % label)
    lab(label + "_done")
    e("s_mov_b32 exec_hi, -1")

def kgen_addr():
    t = VT
    c("SPLIT")
    V("bfe_u32", t, v(V_L), 4, 1); V("bfe_u32", t + 1, v(V_L), 2, 1); V("lshl_or_b32", t, v(t), 1, v(t + 1))
    V("bfe_u32", t + 1, v(V_L), 3, 1); V("and_b32", t + 2, 3, v(V_L)); V("lshl_or_b32", t + 1, v(t + 1), 2, v(t + 2))
    e("v_cmp_eq_u32 s[4:5], 0, v%d" % t)
    e("v_cmp_eq_u32 vcc, 1, v%d" % t)
    e("s_bitcmp1_b32 %s, 0" % WV)
    csel(T0, 0x11100000, 0x76543210); csel(T1, 0x11100000, 0x43222100); csel(T2, 0x11100000, 0x22111000); csel(T3, 0x19171513, 0x100d0800)
    V("mov_b32", t + 2, T2); V("mov_b32", t + 3, T1); V("cndmask_b32", t + 2, v(t + 2), v(t + 3), "vcc")
    V("mov_b32", t + 3, T0); V("cndmask_b32", t + 2, v(t + 2), v(t + 3), "s[4:5]")
    V("lshlrev_b32", t + 1, 2, v(t + 1)); V("bfe_u32", t + 2, v(t + 2), v(t + 1), 4)
    V("lshlrev_b32", t, 3, v(t)); V("bfe_u32", t, T3, v(t), 8); V("add_u32", t, v(t), v(t + 2))
    V("lshrrev_b32", t + 1, 5, v(V_L)); V("and_b32", t + 2, 31, v(V_L))
    e("s_cselect_b32 %s, 2048, 0" % T3)
    e("s_cselect_b32 %s, 0, -1" % CNT)
    e("s_bitcmp1_b32 %s, 1" % WV)
    csel(T0, L_TA + 14256, L_TA); csel(T1, L_TB + 16896, L_TB); csel(T2, L_KF + 4160 + 64, L_KF + 64)
    sadd(T2, T2, T3)
    V("mul_u32_u24", t, 528, v(t)); V("lshl_add_u32", t + 3, v(t + 1), 4, T0); V("add_u32", PV_GA, v(t), v(t + 3))
    V("mul_u32_u24", t, 528, v(t + 2)); V("lshl_add_u32", t + 3, v(t + 1), 4, T1); V("add_u32", PV_GB, v(t), v(t + 3))
    V("lshl_add_u32", t, v(t + 1), 9, T2); V("lshl_add_u32", PV_GW, v(t + 2), 4, v(t))
    e("s_waitcnt lgkmcnt(0)")
    sadd(TAG, TAG, 1)
    e("s_bitcmp1_b32 %s, 1" % WV)
    e("s_cselect_b32 %s, 0, 16" % T0)
    sshl(T0, DS2, T0); sand(T0, T0, 0xffff0000); sand(T0, T0, CNT)
    e("v_cmp_eq_u32 vcc, 0, v%d" % V_L)
    V("mov_b32", PV_GD, T0)
    sand(T1, WV, 3); sshl(T1, T1, 8); sadd(T1, T1, L_UP + 128)
    V("cndmask_b32", PV_GD, 0, v(PV_GD), "vcc")
    V("lshl_add_u32", PV_US, v(V_L), 1, T1)

def pads():
    t = VT
    c("SPLIT")
    for i in range(4): V("mov_b32", t + 4 + i, 0)
    V("lshrrev_b32", t, 3, v(V_L)); V("mul_u32_u24", t, 1152, v(t)); V("and_b32", t + 1, 7, v(V_L)); V("lshl_add_u32", t, v(t + 1), 4, v(t)); V("add_u32", t, L_UP, v(t))
    V("bfe_u32", t + 1, v(V_L), 2, 1); V("mul_u32_u24", t + 1, 4160, v(t + 1)); V("and_b32", t + 2, 3, v(V_L)); V("lshl_add_u32", t + 1, v(t + 2), 4, v(t + 1)); V("add_u32", t + 1, L_KF, v(t + 1))
    V("lshlrev_b32", t + 2, 4, v(t + 2)); V("add_u32", t + 2, L_FL, v(t + 2))
    for k in range(3): e("ds_write_b128 v%d, %s" % (t + k, vr(t + 4, 4)))

def loader_path():
    c("======== loader waves ========")
    if OPT["gprio"] == 2: e("s_setprio 1")
    loader_addr()
    e("s_waitcnt lgkmcnt(0)")
    stamp("karg")
    srd(R_X, S_X, 2048 * 1024); srd(R_W, S_W, 512 * 3072)
    scalar_loads()
    issue_chunk(0)
    if OPT["echo"]: stamp("i0")
    srd(R_WS, S_WS, WS_SIZE); srd(R_OUT, S_OUT, 2048 * 2048); srd(R_WO, S_WO, 512 * 1024)
    late = capture(lambda: (precompute_conv(), precompute(), kgen_addr(), pads()))
    def upto(n):
        while n < len(late) and "SPLIT" not in late[n]: n += 1
        SINK[0].extend(late[:n]); del late[:n]
    upto(OPT["npre"])
    if OPT["echo"]: stamp("pre")
    issue_chunk(1)
    if OPT["echo"]: stamp("i1")
    waits = [8, 8, 8, 8, 8, 8, 9, 1]
    for ci in range(8):
        c("loader chunk %d" % ci)
        e("s_waitcnt vmcnt(%d)" % waits[ci])
        if OPT["echo"] and ci in (0, 1, 2): stamp("ld%d" % ci)
        if OPT["ldst"] and ci in (0, 1, 2, 3, 4): e("s_memrealtime s[%d:%d]" % (80 + 4 * ci, 81 + 4 * ci))
        e("s_barrier")
        if OPT["ldst"] and ci in (0, 1, 2, 3, 4): e("s_memrealtime s[%d:%d]" % (82 + 4 * ci, 83 + 4 * ci))
        if ci in (0, 7): stamp("ch%d" % ci)
        if ci + 2 < 8: issue_chunk(ci + 2)
        if ci < 5 and OPT["lsp"]: upto(OPT["lsp"])
        if ci == 5:
            sshl(T5, XQ, 12); sadd(T5, T5, WS_F0)
            V("lshlrev_b32", 42, 7, v(V_L))
            e("s_mov_b32 exec_hi, 0")
            e("buffer_load_dword v%d, v42, %s, %s offen sc1" % (G_PL, R_WS, T5))
            e("s_mov_b32 exec_hi, -1")
            upto(len(late) // 2)
        if ci == 6: upto(9999)
    poll("L_poll0", T5, first_issued=G_PL, nwait=0)
    c("u of this WG's channel pair (transposed by the group)")
    sshl(T0, XQ, 5); sadd(T0, T0, I5); sshl(T0, T0, 13); sadd(T0, T0, T4); sadd(T0, T0, WS_U2)
    e("buffer_load_dwordx4 %s, v%d, %s, %s offen sc1" % (vr(U2R, 4), V_L16, R_WS, T0))
    e("buffer_load_dwordx4 %s, v%d, %s, %s offen offset:1024 sc1" % (vr(U2R + 4, 4), V_L16, R_WS, T0))
    e("s_barrier")
    stamp("K1")
    c("---- S4 kernel K = A-table x B-table (rows duplicated to realise bf16(l)) ----")
    FA, FB, AC = 96, 128, 160
    def rd(s):
        e("ds_read_b128 %s, v%d offset:%d" % (vr(FA + 4 * (s % 8), 4), PV_GA, 32 * s))
        e("ds_read_b128 %s, v%d offset:%d" % (vr(FB + 4 * (s % 8), 4), PV_GB, 32 * s))
    for s in range(7): rd(s)
    e("v_and_b32 v%d, 1, v%d" % (VT, V_L))
    e("v_cmp_eq_u32 vcc, 0, v%d" % VT)
    uw = []
    for h in range(2):
        for p in range(4):
            uw.append("    ds_write_b16 v%d, v%d offset:%d" % (PV_US, U2R + 4 * h + p, 1152 * p + 128 * h))
            uw.append("    ds_write_b16_d16_hi v%d, v%d offset:%d" % (PV_US, U2R + 4 * h + p, 4608 + 1152 * p + 128 * h))
    nw = 0
    for s in range(16):
        e("s_waitcnt lgkmcnt(%d)" % (2 * (min(s + 6, 15) - s) + nw))
        e("v_mfma_f32_32x32x16_bf16 %s, %s, %s, %s" % (vr(AC, 16), vr(FA + 4 * (s % 8), 4), vr(FB + 4 * (s % 8), 4), "0" if s == 0 else vr(AC, 16)))
        if s + 7 < 16: rd(s + 7)
        if s == 10:
            stamp("preU")
            e("s_waitcnt vmcnt(0)")
            stamp("gotU")
        if 10 <= s < 15:
            SINK[0].extend(uw[nw:nw + 3]); nw += 3
    SINK[0].extend(uw[15:])
    nop(11)
    V("add_f32", AC, v(AC), v(PV_GD))
    e("s_bitcmp1_b32 %s, 0" % WV)
    e("s_cbranch_scc0 L_kg_nofix")
    V("cndmask_b32", AC + 4, v(AC + 5), v(AC + 3), "vcc"); V("cndmask_b32", AC + 12, v(AC + 13), v(AC + 11), "vcc")
    lab("L_kg_nofix")
    for i in range(8): V("cvt_pk_bf16_f32", FA + i, v(AC + 2 * i), v(AC + 2 * i + 1))
    e("ds_write_b128 v%d, %s" % (PV_GW, vr(FA, 4)))
    e("ds_write_b128 v%d, %s offset:1024" % (PV_GW, vr(FA + 4, 4)))
    e("s_branch L_gemm_done")

def cmul_multi(lst):
    for d, a, b in lst:
        e("v_pk_mul_f32 %s, %s, %s op_sel:[0,0] op_sel_hi:[1,0]" % (vr(d, 2), vr(a, 2), vr(b, 2)))
    for d, a, b in lst:
        e("v_pk_fma_f32 %s, %s, %s, %s op_sel:[1,1,0] op_sel_hi:[0,1,1] neg_lo:[1,0,0]" % (vr(d, 2), vr(a, 2), vr(b, 2), vr(d, 2)))
def cexp_multi(lst, va, vb):
    for d, Lf, t, cj in lst:
        V("mul_f32", t, fl(Lf), v(va)); V("mul_f32", t + 1, fl(-Lf if cj else Lf), v(vb)); V("fract_f32", t + 1, v(t + 1))
    for d, Lf, t, cj in lst:
        V("exp_f32", t, v(t)); V("cos_f32", d, v(t + 1)); V("sin_f32", d + 1, v(t + 1))
    e("s_nop 0")
    for d, Lf, t, cj in lst:
        e("v_pk_mul_f32 %s, %s, %s op_sel:[0,0] op_sel_hi:[1,0]" % (vr(d, 2), vr(d, 2), vr(t, 2)))

KVA, KVB, KVD = 220, 221, 25
def kgen_b():
    c("---- S4 mode tables: B = exp(z*8j) -> LDS ----")
    va, vb, vdt, ta = KVA, KVB, KVD, VT + 4
    e("s_bitcmp1_b32 %s, 1" % WV)
    e("s_cselect_b32 %s, 0, 16" % T0)
    sshl(T0, LD2, T0); sand(T0, T0, 0xffff0000)
    V("mov_b32", vdt, fl(LOG2E)); V("mul_f32", vdt, T0, v(vdt)); V("exp_f32", vdt, v(vdt))
    for i in range(2): V("lshlrev_b32", V_PAR + i, 16, v(V_PAR + i))
    V("cvt_pk_bf16_f32", vdt, v(vdt), v(vdt)); V("and_b32", vdt, 0xffff0000, v(vdt))
    V("mul_f32", va, v(vdt), v(V_PAR)); V("mul_f32", vb, v(vdt), v(V_PAR + 1))
    V("mul_f32", va, fl(LOG2E), v(va)); V("mul_f32", vb, fl(1.0 / (2 * math.pi)), v(vb))
    P = lambda j: KB + 2 * j
    G = lambda k: KB + 16 + 2 * k
    X = KB + 24
    cv = [KB + 40 + i for i in range(8)]
    n = [0]
    def putb(row, pr):
        r = cv[n[0] % 8]; n[0] += 1
        V("cvt_pk_bf16_f32", r, v(pr), v(pr + 1))
        e("ds_write_b32 v46, v%d offset:%d" % (r, row * 528))
    cexp_multi([(P(1), 8.0, ta, 0), (G(1), 64.0, ta + 2, 0)], va, vb)
    V("mov_b32", cv[7], 0x3f80); e("ds_write_b32 v46, v%d" % cv[7])
    cmul_multi([(P(2), P(1), P(1)), (G(2), G(1), G(1))])
    putb(1, P(1)); putb(8, G(1))
    cmul_multi([(P(3), P(2), P(1)), (P(4), P(2), P(2)), (G(3), G(2), G(1))])
    putb(2, P(2)); putb(16, G(2))
    cmul_multi([(P(5), P(4), P(1)), (P(6), P(4), P(2)), (P(7), P(4), P(3))])
    for r, p in ((3, P(3)), (4, P(4)), (24, G(3)), (5, P(5)), (6, P(6)), (7, P(7))): putb(r, p)
    for k in range(1, 4):
        cmul_multi([(X + 2 * j, P(j), G(k)) for j in range(1, 8)])
        for j in range(1, 8): putb(8 * k + j, X + 2 * j)

def kgen_a():
    va, vb, vdt, ta = KVA, KVB, KVD, VT + 4
    E = lambda j: 224 + 2 * j - 2
    Q = lambda j: 160 + 2 * j
    H = lambda k: 176 + 2 * k
    X = 224
    def puta(row, pr): V("cvt_pk_bf16_f32", KR + row, v(pr), v(pr + 1))
    cexp_multi([(E(1), 1.0, ta, 1), (H(1), 256.0, ta + 2, 1)], va, vb)
    for i in range(2, 6): V("lshlrev_b32", V_PAR + i, 16, v(V_PAR + i))
    V("mul_f32", ta, v(vdt), v(V_PAR + 2)); e("v_mul_f32 v%d, -v%d, v%d" % (ta + 1, vdt, V_PAR + 3))
    V("mov_b32", ta + 2, v(V_PAR + 4)); V("mul_f32", ta + 3, "-1.0", v(V_PAR + 5))
    cmul_multi([(Q(0), ta, ta + 2), (E(2), E(1), E(1)), (H(2), H(1), H(1))])
    cmul_multi([(E(3), E(2), E(1)), (E(4), E(2), E(2)), (H(3), H(2), H(1)), (H(4), H(2), H(2))])
    puta(0, Q(0))
    cmul_multi([(E(5), E(4), E(1)), (E(6), E(4), E(2)), (E(7), E(4), E(3)), (E(8), E(4), E(4)), (H(5), H(4), H(1)), (H(6), H(4), H(2)), (H(7), H(4), H(3))])
    cmul_multi([(Q(j), Q(0), E(j)) for j in range(1, 9)])
    for j in range(1, 8): puta(j, Q(j))
    cmul_multi([(X + 2 * i, H(1), Q(2 * i)) for i in range(5)] + [(X + 10 + 2 * i, H(2), Q(4 * i)) for i in range(3)])
    for i in range(8): puta(8 + i, X + 2 * i)
    cmul_multi([(X + 2 * i, H(3), Q(4 * i)) for i in range(3)] + [(X + 6, H(4), Q(0)), (X + 8, H(4), Q(8)), (X + 10, H(5), Q(0)), (X + 12, H(5), Q(8))])
    for i in range(7): puta(16 + i, X + 2 * i)
    cmul_multi([(X, H(6), Q(0)), (X + 2, H(6), Q(8)), (X + 4, H(7), Q(0)), (X + 6, H(7), Q(8))])
    for i in range(4): puta(23 + i, X + 2 * i)

def compute_path():
    t = VT
    lab("L_compute")
    if OPT["gprio"] == 1: e("s_setprio 1")
    c("======== compute waves ========")
    e("s_bfe_u32 %s, %s, 0x10001" % (T0, WV)); sadd(T0, T0, C0); sshl(T0, T0, 8); sand(T1, WV, 1); sshl(T1, T1, 7); sadd(T0, T0, T1)
    V("lshl_add_u32", V_PA, v(V_L), 1, T0)
    e("s_waitcnt lgkmcnt(0)")
    stamp("karg")
    if OPT["pfx"]:
        c("touch this WG's 1/256 share of x and Wqkv so that HBM streams them in at once")
        V("lshlrev_b32", 252, 7, v(V_L)); V("min_u32", 253, 47 * 128, v(252))
        sshl(T0, "s2", 13); smul(T1, "s2", 6144)
        V("add_u32", 252, T0, v(252)); V("add_u32", 253, T1, v(253))
        e("s_cmp_eq_u32 %s, 0" % WV)
        e("s_cbranch_scc0 L_pfx1")
        e("global_load_dword v252, v252, %s" % sr(S_X, 2))
        lab("L_pfx1")
        e("s_cmp_eq_u32 %s, 1" % WV)
        e("s_cbranch_scc0 L_pfx2")
        e("global_load_dword v253, v253, %s" % sr(S_W, 2))
        lab("L_pfx2")
    for i, s in enumerate((S_ARE, S_AIM, S_BRE, S_BIM, S_CRE, S_CIM)):
        e("global_load_ushort v%d, v%d, %s" % (V_PAR + i, V_PA, sr(s, 2)))
    scalar_loads()
    srd(R_U, S_U, 2048 * 1024)
    u_coop_loads()
    if OPT["pfw"]:
        c("XCD slots 0..3 usually start first: warm the memory-side cache with the W columns of head quads 4..7")
        e("s_cmp_eq_u32 %s, 0" % WV); e("s_cbranch_scc0 L_pfw")
        e("s_cmp_lt_u32 %s, 4" % XQ); e("s_cbranch_scc0 L_pfw")
        sshl(T0, XQ, 5); sadd(T0, T0, I5); smul(T0, T0, 4 * 3072); sadd(T0, T0, 512)
        V("min_u32", 252, 47, v(V_L)); V("mul_u32_u24", 253, 0x1556, v(252)); V("lshrrev_b32", 253, 16, v(253))
        V("mul_u32_u24", 254, 12, v(253)); V("sub_u32", 252, v(252), v(254))
        V("mul_u32_u24", 253, 3072, v(253)); V("lshrrev_b32", 254, 2, v(252)); V("lshl_add_u32", 253, v(254), 10, v(253))
        V("and_b32", 252, 3, v(252)); V("lshl_add_u32", 253, v(252), 7, v(253)); V("add_u32", 253, T0, v(253))
        e("global_load_dword v253, v253, %s" % sr(S_W, 2))
        e("s_branch L_pfw2")
        lab("L_pfw")
        e("global_load_dword v253, v%d, %s" % (V_L16, sr(S_W, 2)))
        lab("L_pfw2")
    if OPT["pf"] == 1:
        c("pull this WG's 1/32 share of the code into L2")
        e("s_getpc_b64 s[4:5]")
        lab("L_pc")
        sshl(T0, I5, 3); V("add_u32", t, T0, v(V_L)); V("lshlrev_b32", t, 7, v(t))
        e("v_min_u32 v%d, L_end-L_pc-4, v%d" % (t, t))
        e("s_mov_b64 exec, 0xff")
        e("global_load_dword v47, v%d, s[4:5]" % t)
        e("s_mov_b64 exec, -1")
    srd(R_WS, S_WS, WS_SIZE); srd(R_OUT, S_OUT, 2048 * 2048); srd(R_WO, S_WO, 512 * 1024)
    gemm_read_addr()
    e("s_waitcnt vmcnt(%d) lgkmcnt(0)" % (8 + (OPT["pf"] == 1) + OPT["pfw"]))
    sadd(TAG, TAG, 1)
    if OPT["echo"]: stamp("par")
    kgen_b()
    pc = [x for x in capture(kgen_a) if not x.strip().startswith(";")]
    if OPT["apre"]:
        e("s_waitcnt vmcnt(%d)" % (4 + (OPT["pf"] == 1) + OPT["pfw"]))
        SINK[0].extend(pc[:OPT["apre"]]); del pc[:OPT["apre"]]
    if OPT["uat"] < 0:
        u_coop_perm(); e("s_waitcnt lgkmcnt(0)"); u_coop_stores()
    if OPT["echo"]: stamp("cp0")
    if "F" in OPT["abl"]: pc = pc[:20]
    if "U" in OPT["abl"]: pc = pc[20:]
    def f0flag():
        sshl(I0, XQ, 5); sadd(I0, I0, I5); sshl(I0, I0, 7); sadd(I0, I0, WS_F0)
        flag_store(I0, 26)
    def fill(n):
        for _ in range(n):
            if pc: SINK[0].append(pc.pop(0))
    def ml(s, first=False):
        cc = lambda k: "0" if first else vr(G_ACC[k], 16)
        return ["v_mfma_f32_32x32x16_bf16 %s, %s, %s, %s" % (vr(G_ACC[0], 16), vr(G_W0F + 4 * s, 4), vr(G_XF + 4 * s, 4), cc(0)),
                "v_mfma_f32_32x32x16_bf16 %s, %s, %s, %s" % (vr(G_ACC[1], 16), vr(G_W1F + 4 * s, 4), vr(G_XF + 4 * s, 4), cc(1)),
                "v_mfma_f32_32x32x16_bf16 %s, %s, %s, %s" % (vr(G_ACC[2], 16), vr(G_XF + 4 * s, 4), vr(G_VF + 4 * s, 4), cc(2))]
    def ilv(ms, rs, nf):
        k = 0
        for i, m in enumerate(ms):
            if "M" not in OPT["abl"] or m.endswith(", 0"): e(m)
            upto = (len(rs) * (i + 1) + len(ms) - 1) // len(ms)
            SINK[0].extend(rs[k:upto]); k = upto
            fill(nf)
    for ci in range(8):
        c("compute chunk %d" % ci)
        hi = (ci % 3) == 2
        ib = 32768 if ci % 3 == 1 else 0
        xa = G_XA + (4 if hi else 0)
        wa = G_WB if hi else G_WA
        if ci == 4: e("s_waitcnt vmcnt(0)")
        e("s_barrier")
        if ci in (0, 7): stamp("ch%d" % ci)
        if ci == 4: f0flag()
        def reads(s):
            if "R" in OPT["abl"]: return
            e("ds_read_b128 %s, v%d offset:%d" % (vr(G_XF + 4 * s, 4), xa + s, ib))
            for k, f in enumerate((G_W0F, G_W1F, G_VF)):
                for tt in range(2):
                    e("ds_read_b64_tr_b16 %s, v%d offset:%d" % (vr(f + 4 * s + 2 * tt, 2), wa + k, ib + (16 * s + 4 * tt) * 128))
        r0, r1 = capture(reads, 0), capture(reads, 1)
        nf = 1 if ci != OPT["uat"] and ci < 7 else 0
        if ci > 0:
            SINK[0].extend(r0[:3]); ilv(ml(3), r0[3:] + r1[:5], 0); SINK[0].extend(r1[5:])
        else: SINK[0].extend(r0 + r1)
        if ci == OPT["uat"] + 1 and OPT["ust2"]: u_coop_stores()
        fill(OPT["f0"] * nf)
        e("s_waitcnt lgkmcnt(7)"); ilv(ml(0, ci == 0), capture(reads, 2), nf)
        e("s_waitcnt lgkmcnt(7)"); ilv(ml(1), capture(reads, 3), nf)
        e("s_waitcnt lgkmcnt(7)")
        if ci < 7:
            if ci == OPT["uat"]: ilv(ml(2), capture(u_coop_perm), 0)
            else: ilv(ml(2), [], OPT["f2"] * nf)
            if ci == 6: fill(999)
            e("s_waitcnt lgkmcnt(0)")
            if ci == OPT["uat"] and not OPT["ust2"]: u_coop_stores()
    tw = ["    ds_write_b32 v%d, v%d offset:%d" % (PV_TW, KR + r, r * 528) for r in range(27)]
    ilv(ml(2), tw[:8], 0)
    e("s_waitcnt lgkmcnt(8)")
    ilv(ml(3), tw[8:], 0)
    sadd(T1, sQKV, WS_K); sadd(T2, sQKV, WS_K + 65536); sadd(T3, sQKV, WS_V); sadd(T4, sQKV, WS_Q + 65536); sadd(T0, sQKV, WS_Q)
    e("s_waitcnt lgkmcnt(0)")
    e("s_barrier")
    stamp("K1")
    c("GEMM epilogue: publish Q,K,V")
    P = G_XF
    def pk(dst, src):
        for i in range(4): V("cvt_pk_bf16_f32", dst + i, v(src + 2 * i), v(src + 1 + 2 * i))
    def st(r, va, so, off=0):
        e("buffer_store_dwordx4 %s, v%d, %s, %s offen%s sc1" % (vr(r, 4), va, R_WS, so, " offset:%d" % off if off else ""))
    pk(P, G_ACC[0] + 8); st(P, PV_QS, T1)
    pk(P + 4, G_ACC[1] + 8); st(P + 4, PV_QS, T2)
    pk(P + 8, G_ACC[2]); st(P + 8, PV_VS, T3)
    pk(P + 12, G_ACC[2] + 8); st(P + 12, PV_VS, T3, 512)
    for k, so in ((0, T0), (1, T4)):
        for i in range(8): V("mul_f32", G_ACC[k] + i, fl(0.25 * LOG2E), v(G_ACC[k] + i))
        pk(P + 16 + 4 * k, G_ACC[k]); st(P + 16 + 4 * k, PV_QS, so)
    stamp("pub")
    precompute_conv()
    if OPT["gsig"] < 0: signal("p", 16, 3, sF1)

C_LO, C_UP = 128, 144
C_A, C_X, C_Y = 160, 176, 192
def signal(tag, cnt_off, last, soff):
    t = VT + 4
    V("mov_b32", t + 2, L_FL + cnt_off); V("mov_b32", t + 3, 1)
    stamp("presig" + ("1" if cnt_off == 16 else "2"))
    e("s_waitcnt vmcnt(0)")
    stamp("acked" + ("1" if cnt_off == 16 else "2"))
    e("s_mov_b64 exec, 1")
    e("ds_add_rtn_u32 v%d, v%d, v%d" % (t + 3, t + 2, t + 3))
    e("s_mov_b64 exec, -1")
    e("s_waitcnt lgkmcnt(0)")
    e("v_readfirstlane_b32 %s, v%d" % (T0, t + 3))
    e("s_cmp_eq_u32 %s, %d" % (T0, last))
    e("s_cbranch_scc0 L_sig_%s" % tag)
    flag_store(soff, t)
    lab("L_sig_%s" % tag)

def attn_init():
    V("and_b32", 31, 31, v(V_L)); e("v_cmp_eq_u32 vcc, 16, v31"); V("mov_b32", 31, 0x3f803f80); V("mov_b32", 255, 0xdddddddd)
    e("s_mov_b32 s4, 0xffff"); e("s_mov_b32 s5, 0xffff")
    for i in range(16): V("cndmask_b32", 208 + i, 0, v(31), "vcc")
    for i in range(32): V("mov_b32", 72 + i, 0)

def conv_job(T, s0, nfull, tail, va, vb, sig=None, sig_after=1, fills=None, bar_after=-1):
    def rdA(k, sg):
        e("ds_read_b64_tr_b16 %s, v%d offset:%d" % (vr(C_A + 4 * k, 2), va, 128 * sg + 32))
        e("ds_read_b64_tr_b16 %s, v%d offset:%d" % (vr(C_A + 4 * k + 2, 2), va, 128 * sg))
    def rdB(dst, k, sg):
        e("ds_read_b128 %s, v%d offset:%d" % (vr(dst + 4 * k, 4), vb, 112 + 128 * T - 32 * sg))
    def mf(acc, k, b, first=False):
        e("v_mfma_f32_32x32x16_bf16 %s, %s, %s, %s" % (vr(acc, 16), vr(C_A + 4 * k, 4), vr(b + 4 * k, 4), "0" if first else vr(acc, 16)))
        for _ in range(OPT["cfill"]):
            if fl_: SINK[0].append(fl_.pop(0))
    fl_ = list(fills or [])
    pend = []
    def note(step, n): pend.extend([step] * n)
    def wait(step):
        n = sum(1 for x in pend if x > step)
        e("s_waitcnt lgkmcnt(%d)" % n)
        pend[:] = [x for x in pend if x > step]
    if sig and sig_after == -2: sig()
    for k in range(4):
        rdA(k, s0 + k); rdB(C_Y, k, s0 + k - 4); rdB(C_X, k, s0 + k); note(k, 4)
    cur, old = C_X, C_Y
    if sig and sig_after == 0: sig(); del pend[:]
    if bar_after == 0: e("s_barrier")
    for sec in range(nfull):
        for k in range(4):
            st = 4 * sec + k
            wait(st)
            mf(C_UP, k, old, st == 0)
            if sec + 1 < nfull: rdB(old, k, s0 + st + 4); note(st + 4, 1)
            mf(C_LO, k, cur, st == 0)
            if sec + 1 < nfull or tail: rdA(k, s0 + st + 4); note(st + 4, 2)
        cur, old = old, cur
        if sig and sec + 1 == sig_after: sig(); del pend[:]
        if sec + 1 == bar_after: e("s_barrier")
    if tail:
        for k in range(4):
            wait(4 * nfull + k)
            mf(C_UP, k, old)
    n = len(fl_)
    SINK[0].extend(fl_)
    nop(max(0, (2 if tail else 12) - n))

def z_writes(va, row0):
    for k in range(4): e("ds_write_b128 v%d, %s offset:%d" % (va, vr(C_LO + 4 * k, 4), 144 * row0 + 32 * k))
    nop(8)
    for k in range(4): e("ds_write_b128 v%d, %s offset:%d" % (va, vr(C_UP + 4 * k, 4), 144 * (row0 + 8) + 32 * k))

def conv():
    c("---- causal conv as Toeplitz MFMA, output tiles 0..5 ----")
    ini = capture(attn_init)
    e("s_cmp_ge_u32 %s, 4" % WV)
    e("s_cbranch_scc1 L_conv_hi")
    e("s_bitcmp1_b32 %s, 0" % WV)
    e("s_cbranch_scc1 L_conv_2a")
    conv_job(0, 0, 1, True, PV_CA, PV_CB, lambda: signal("a", 16, 3, sF1), min(1, OPT["gsig"]), fills=ini); z_writes(PV_ZW, 0)
    e("s_branch L_conv_done")
    lab("L_conv_2a")
    conv_job(4, 0, 3, False, PV_CA, PV_CB, lambda: signal("b", 16, 3, sF1), OPT["gsig"], fills=ini); z_writes(PV_ZW, 32)
    e("s_branch L_conv_done")
    lab("L_conv_hi")
    e("s_bitcmp1_b32 %s, 0" % WV)
    e("s_cbranch_scc1 L_conv_2b")
    conv_job(2, 0, 3, True, PV_CA, PV_CB, fills=ini); z_writes(PV_ZW, 16)
    e("s_branch L_conv_done")
    lab("L_conv_2b")
    conv_job(4, 12, 2, True, PV_CA, PV_CB, fills=ini); z_writes(PV_ZW, 32 + 17)
    lab("L_conv_done")
    stamp("cend")

def kv_tiles(msrc, soff):
    e("s_mov_b32 m0, %s" % msrc)
    e("s_nop 0")
    for i in range(8):
        if i == 4: sadd("m0", "m0", 4096); sadd(soff, soff, 4096)
        e("buffer_load_dwordx4 v%d, %s, %s offen offset:%d sc1 lds" % (V_L16, R_WS, soff, 1024 * (i % 4)))

def q_loads():
    e("buffer_load_dwordx4 %s, v%d, %s, %s offen sc1" % (vr(64, 4), V_L16, R_WS, sQL))
    e("buffer_load_dwordx4 %s, v%d, %s, %s offen offset:1024 sc1" % (vr(68, 4), V_L16, R_WS, sQL))

def kv_early():
    t = VT
    e("s_cmp_ge_u32 %s, 4" % WV)
    e("s_cbranch_scc1 L_kve_done")
    precompute(); precompute_tail()
    e("s_bitcmp1_b32 %s, 0" % WV)
    e("s_cbranch_scc1 L_kve_done")
    e("s_cmp_eq_u32 %s, 0" % WV)
    e("s_cbranch_scc0 L_kve_w2")
    for i in range(4): V("mov_b32", C_A + i, 0)
    V("and_b32", t + 2, 7, v(V_L)); V("mul_u32_u24", t + 2, ZS, v(t + 2)); V("bfe_u32", t + 3, v(V_L), 3, 1); V("mul_u32_u24", t + 3, 49 * 144, v(t + 3))
    V("add_u32", t + 2, v(t + 2), v(t + 3)); V("add_u32", t + 2, L_Z + 112, v(t + 2))
    e("ds_write_b128 v%d, %s" % (t + 2, vr(C_A, 4)))
    e("s_mov_b32 %s, 0" % T5); sadd(T3, sHB, WS_K)
    e("s_branch L_kve_go")
    lab("L_kve_w2")
    e("s_mov_b32 %s, 8192" % T5); sadd(T3, sHB, WS_V)
    lab("L_kve_go")
    poll("L_poll1", sF1P, t=VT + 4)
    stamp("poll1")
    if OPT["qearly"]:
        V("mov_b32", t + 2, L_FL + 32); V("mov_b32", t + 3, 1)
        e("ds_write_b32 v%d, v%d" % (t + 2, t + 3))
        q_loads()
    sshl(T0, JR, 13); sadd(T0, T0, T3)
    kv_tiles(T5, T0)
    if not OPT["b1late"]:
        sadd(T0, JR, 1); sand(T0, T0, 7); sshl(T0, T0, 13); sadd(T0, T0, T3); sadd(T5, T5, BLK)
        kv_tiles(T5, T0)
    if OPT["qearly"]:
        e("s_branch L_kve_out")
        lab("L_kve_done")
        V("mov_b32", t + 2, L_FL + 32)
        e("s_mov_b32 %s, 0" % CNT)
        lab("L_qsp")
        e("ds_read_b32 v%d, v%d" % (t + 3, t + 2))
        sadd(CNT, CNT, 1)
        e("s_waitcnt lgkmcnt(0)")
        e("v_readfirstlane_b32 %s, v%d" % (T0, t + 3))
        e("s_cmp_gt_u32 %s, 0x200000" % CNT)
        e("s_cbranch_scc1 L_qsp_done")
        e("s_cmp_eq_u32 %s, 0" % T0)
        e("s_cbranch_scc1 L_qsp")
        lab("L_qsp_done")
        q_loads()
        lab("L_kve_out")
    else: lab("L_kve_done")

A_Q = [64, 68]
A_S = [104, 120]
A_O = [72, 88]
A_KF = [136, 140]
A_VA = [208, 212]
A_VB = [216, 220]
A_IDX = 63 + 192
A_F = 164
A_NM = 120
WOR = 192
Y_R = 32
def conv_epilogue():
    c("y[t] = sum_p Z_p[t-p]")
    e("s_waitcnt lgkmcnt(0)")
    e("s_barrier")
    stamp("zbar")
    if not OPT["qearly"]: q_loads()
    order = [(0, 0), (0, 4 * ZS), (288, 0), (288, 4 * ZS), (0, 0), (17 * 144, 0), (0, 4 * ZS), (17 * 144, 4 * ZS)]
    def rd(n):
        if n == 4:
            for p in range(4): V("add_u32", PV_ZR + p, T0, v(PV_ZR + p))
        for p in range(4): e("ds_read_b32 v%d, v%d offset:%d" % (Y_R + 4 * n + p, PV_ZR + p, sum(order[n])))
    rd(0); rd(1); rd(2)
    smul(T0, WV, 288); e("s_sub_u32 %s, 4608, %s" % (T0, T0))
    e("s_cmp_eq_u32 %s, 6" % WV)
    e("s_cbranch_scc0 L_nocarry")
    c("carry: last rows of tile 5 (both partials) feed y[1536..1538], finished in the tail")
    t = VT
    for i in range(4): V("mov_b32", PV_CY + i, 0)
    V("and_b32", t, 7, v(V_L)); V("mul_u32_u24", t, ZS, v(t)); V("bfe_u32", t + 1, v(V_L), 3, 1); V("mul_u32_u24", t + 1, 17 * 144, v(t + 1))
    V("add_u32", t, v(t), v(t + 1)); V("add_u32", t, L_Z + 48 * 144 + 112, v(t))
    e("s_mov_b64 exec, 0xffff")
    e("ds_read_b128 %s, v%d" % (vr(PV_CY, 4), t))
    e("s_mov_b64 exec, -1")
    e("s_waitcnt lgkmcnt(0)")
    lab("L_nocarry")
    for n in range(8):
        r = Y_R + 4 * n
        e("s_waitcnt lgkmcnt(%d)" % (4 * (min(n + 2, 7) - n)))
        if n + 3 < 8: rd(n + 3)
        V("add_f32", r, v(r), v(r + 1)); V("add_f32", r + 2, v(r + 2), v(r + 3)); V("add_f32", r, v(r), v(r + 2))
        if n in (1, 3): V("cvt_pk_bf16_f32", V_Y + n // 2, v(r - 4), v(r))
        if n in (5, 7): V("add_f32", r, v(r), v(r - 4))
    V("cvt_pk_bf16_f32", V_Y + 2, v(Y_R + 20), v(Y_R + 28))

def kv_late():
    t = VT
    e("s_cmp_ge_u32 %s, 4" % WV)
    if OPT["b1late"]:
        e("s_cbranch_scc1 L_kvl")
        e("s_waitcnt vmcnt(0)")
        e("s_barrier")
        stamp("S")
        e("s_branch L_kvl_done")
        lab("L_kvl")
    else: e("s_cbranch_scc0 L_kvl_done")
    sand(T1, WV, 3); sshl(T0, T1, 2); sadd(T0, T0, L_FL)
    V("mov_b32", t, T0); V("mov_b32", t + 1, 2); V("mov_b32", t + 2, 3); V("mov_b32", t + 3, 1)
    sshl(T1, T1, 11); sadd(T0, sHB, T1)
    for b in range(1 if OPT["b1late"] else 2, 8):
        sadd(T2, JR, b); sand(T2, T2, 7); sshl(T2, T2, 13); sadd(T2, T2, T0)
        sadd("m0", T1, b * BLK); sadd(T3, T2, WS_K)
        e("buffer_load_dwordx4 v%d, %s, %s offen sc1 lds" % (V_L16, R_WS, T3))
        sadd(T4, T2, WS_V)
        e("buffer_load_dwordx4 v%d, %s, %s offen offset:1024 sc1 lds" % (V_L16, R_WS, T3))
        sadd("m0", T1, b * BLK + 8192); e("s_nop 0")
        e("buffer_load_dwordx4 v%d, %s, %s offen sc1 lds" % (V_L16, R_WS, T4))
        e("buffer_load_dwordx4 v%d, %s, %s offen offset:1024 sc1 lds" % (V_L16, R_WS, T4))
        if b == 1:
            e("s_waitcnt vmcnt(4)")
            e("s_barrier")
            stamp("S")
        if b == 2 and OPT["b1late"]:
            e("s_waitcnt vmcnt(4)")
            e("ds_write_b32 v%d, v%d" % (t, t + 3))
        if b == 5:
            e("s_waitcnt vmcnt(8)")
            e("ds_write_b32 v%d, v%d" % (t, t + 1))
    precompute_tail()
    e("s_waitcnt vmcnt(0) lgkmcnt(0)")
    e("ds_write_b32 v%d, v%d" % (t, t + 2))
    lab("L_kvl_done")

def kv_check(stage):
    t = VT + 4
    lb = "L_kvchk%d" % stage
    V("mov_b32", t, L_FL)
    e("s_mov_b32 %s, 0" % T3)
    lab(lb)
    e("ds_read_b128 %s, v%d" % (vr(t + 2, 4), t))
    sadd(T3, T3, 1)
    e("s_waitcnt lgkmcnt(0)")
    V("min_u32", t + 2, v(t + 2), v(t + 3)); V("min3_u32", t + 2, v(t + 2), v(t + 4), v(t + 5))
    e("s_cmp_gt_u32 %s, 0x40000" % T3)
    e("s_cbranch_scc1 %s_done" % lb)
    e("v_readfirstlane_b32 %s, v%d" % (T4, t + 2))
    e("s_cmp_lt_u32 %s, %d" % (T4, stage))
    e("s_cbranch_scc1 %s" % lb)
    lab(lb + "_done")

def attn_main():
    c("---- attention main loop: wave = 2 q-tiles x 32 key tiles (parity w>>2), fully unrolled ----")
    base = [0]
    koff = lambda i: (i // 4 - base[0]) * BLK + (i % 4) * 2048
    def rdK(i):
        if i < 32: e("ds_read_b128 %s, v%d offset:%d" % (vr(A_KF[i & 1], 4), PV_KA, koff(i)))
    def rdV(i):
        if i < 32:
            e("s_mov_b64 exec, s[4:5]")
            e("ds_read_b128 %s, v%d offset:%d" % (vr(A_VA[i & 1], 4), PV_V0, koff(i)))
            e("ds_read_b128 %s, v%d offset:%d" % (vr(A_VB[i & 1], 4), PV_V0, koff(i) + 512))
            e("s_mov_b64 exec, -1")
    def qk(i, q):
        if i < 32: e("v_mfma_f32_32x32x16_bf16 %s, %s, %s, 0" % (vr(A_S[q], 16), vr(A_KF[i & 1], 4), vr(A_Q[q], 4)))
    def pv(i, q, half):
        if i < 0: return
        a = (A_VA if half == 0 else A_VB)[i & 1]
        e("v_smfmac_f32_32x32x32_bf16 %s, %s, %s, v%d" % (vr(A_O[q], 16), vr(a, 4), vr(A_S[q] + 8 * half, 8), A_IDX))
    def ex(q, lo, hi):
        for k in range(lo, hi): e("v_exp_f32 v%d, v%d" % (A_S[q] + k, A_S[q] + k))
    rdK(0); rdK(1); rdV(0)
    e("s_cmp_ge_u32 %s, 4" % WV)
    e("s_cbranch_scc1 L_prio1")
    e("s_setprio 2")
    e("s_branch L_prio_done")
    lab("L_prio1")
    e("s_setprio 1")
    lab("L_prio_done")
    e("s_waitcnt lgkmcnt(3)")
    qk(0, 0)
    nop(12)
    ytiles = OPT["yt"]; wtiles = OPT["wt"]
    for i in range(32):
        c("key tile %d" % i)
        if i in (OPT["flip1"], OPT["flip"], OPT["mid"]):
            if i == OPT["mid"]: e("s_barrier")
            e("s_cmp_ge_u32 %s, 4" % WV)
            e("s_cbranch_scc1 L_noflip%d" % i)
            e("s_setprio %d" % (2 if i == OPT["mid"] else 0))
            lab("L_noflip%d" % i)
        if i == 2 and OPT["b1late"]: kv_check(1)
        if i == 6: kv_check(2)
        if i == 14: kv_check(3)
        ex(0, 0, 2); pv(i - 1, 1, 1); ex(0, 2, 5); qk(i, 1)
        e("s_waitcnt lgkmcnt(0)")
        if i in (11, 23):
            for r in (PV_KA, PV_V0): V("add_u32", r, 3 * BLK, v(r))
            base[0] += 3
        rdK(i + 2); rdV(i + 1)
        if i in ytiles:
            n = ytiles.index(i)
            e("buffer_store_dword v%d, v%d, %s, %s offen %s" % (V_Y + n, PV_YA, R_OUT, sYS2 if n == 2 else sYS, OPT["ypol"]))
            if n == 0: sadd(sYS, sYS, 0x20000)
            if n == 2: sadd(sYS2, sYS2, 0x100000)
        if i in wtiles:
            sadd("m0", W10, L_WO + 8192 * wtiles.index(i))
            if wtiles.index(i): sadd(sWO, sWO, 0x10000)
            else: e("s_nop 0")
            e("buffer_load_dwordx4 v%d, %s, %s offen lds" % (PV_WA, R_WO, sWO))
        ex(0, 5, 11); pv(i, 0, 0); ex(0, 11, 16)
        ex(1, 0, 2); pv(i, 0, 1); ex(1, 2, 5); qk(i + 1, 0)
        ex(1, 5, 11); pv(i, 1, 0); ex(1, 11, 16)
    e("s_nop 1")
    pv(31, 1, 1)
    e("s_setprio 0")

A_G = 176
def combine():
    t = VT
    c("waves 4..7 hand their halves (odd key tiles) to waves 0..3, which finish and publish both q-tiles")
    stamp("loopend")
    e("s_waitcnt vmcnt(0)")
    e("s_barrier")
    stamp("attn")
    e("s_cmp_ge_u32 %s, 4" % WV)
    e("s_cbranch_scc0 L_cmb0")
    for k in range(3): e("ds_write_b128 v%d, %s offset:%d" % (PV_CW, vr(A_O[0] + 4 * k, 4), 1024 * k))
    nop(5)
    for k in range(3): e("ds_write_b128 v%d, %s offset:%d" % (PV_CW, vr(A_O[1] + 4 * k, 4), 3072 + 1024 * k))
    e("s_waitcnt lgkmcnt(0)")
    e("s_barrier")
    e("s_branch L_tail_hi")
    lab("L_cmb0")
    e("s_barrier")
    stamp("T1")
    for q, F in ((0, A_F), (1, A_G)):
        for k in (2, 0, 1): e("ds_read_b128 %s, v%d offset:%d" % (vr(F + 4 * k, 4), PV_CW, 3072 * q + 1024 * k))
    for q, F in ((0, A_F), (1, A_G)):
        e("s_waitcnt lgkmcnt(%d)" % (5 - 3 * q))
        V("add_f32", F + 8, v(F + 8), v(A_O[q] + 8))
        V("mov_b32", t + 1, v(F + 8))
        e("s_waitcnt lgkmcnt(%d)" % (3 - 3 * q))
        for i in range(8): V("add_f32", F + i, v(F + i), v(A_O[q] + i))
        e("v_permlane32_swap_b32 v%d, v%d" % (F + 8, t + 1))
        attn_publish(F, 32 + 4 * q, 1024 * q)
    stamp("pubO")
    c("---- softmax guard: the fast path used shift 0; redo with the true row max if that was unsafe ----")
    V("mov_b32", t + 1, fl(2.0 ** 100))
    for q, F in ((0, A_F), (1, A_G)):
        V("mul_f32", t, 0, v(F))
        for i in range(1, 8): V("fma_f32", t, v(F + i), 0, v(t))
        e("v_cmp_nle_f32 vcc, %s, v%d" % (fl(2.0 ** -40), F + 8))
        e("v_cmp_nle_f32 s[4:5], v%d, v%d" % (F + 8, t + 1))
        e("v_cmp_neq_f32 s[6:7], 0, v%d" % t)
        e("s_or_b64 vcc, vcc, s[4:5]")
        e("s_or_b64 vcc, vcc, s[6:7]")
        if OPT["forceslow"]: e("s_mov_b64 vcc, -1")
        e("s_cmp_lg_u64 vcc, 0")
        e("s_cselect_b32 %s, 1, 0" % (T4 if q == 0 else T5))
    S("or_b32", T0, T4, T5)
    e("s_cbranch_scc1 L_slow")
    lab("L_attn_ok")

def slow_path():
    t = VT
    lab("L_slow")
    S_, KF, VA, VB = A_S[0], A_KF[0], A_VA[0], A_VB[0]
    e("s_cmp_eq_u32 %s, 0" % T4)
    e("s_cbranch_scc1 L_slow_next")
    lab("L_slow_go")
    c("slow path pass 1: true row max (K from the workspace)")
    sadd(T0, sHB, WS_K)
    V("mov_b32", t, 0xff800000)
    e("s_mov_b32 %s, 0" % CNT)
    lab("L_slow1")
    e("buffer_load_dwordx4 %s, v%d, %s, %s offen sc1" % (vr(KF, 4), V_L16, R_WS, T0))
    sadd(T0, T0, 1024)
    e("s_waitcnt vmcnt(0)")
    e("v_mfma_f32_32x32x16_bf16 %s, %s, %s, 0" % (vr(S_, 16), vr(KF, 4), vr(A_Q[0], 4)))
    nop(12)
    for k in range(0, 16, 2): V("max3_f32", t, v(t), v(S_ + k), v(S_ + k + 1))
    sadd(CNT, CNT, 1)
    e("s_cmp_lt_u32 %s, 64" % CNT)
    e("s_cbranch_scc1 L_slow1")
    V("mov_b32", t + 1, v(t))
    e("s_nop 1")
    e("v_permlane32_swap_b32 v%d, v%d" % (t, t + 1))
    e("s_nop 1")
    V("max_f32", t, v(t), v(t + 1))
    for k in range(16): V("mul_f32", A_NM + k, "-1.0", v(t))
    c("slow path pass 2")
    for k in range(16): V("mov_b32", A_F + k, 0)
    for k in range(4):
        V("mov_b32", VA + k, 0x3f803f80); V("mov_b32", VB + k, 0x3f803f80)
    V("and_b32", t, 15, v(V_L)); V("lshrrev_b32", t + 1, 5, v(V_L)); V("lshlrev_b32", t, 4, v(t)); V("lshl_add_u32", t, v(t + 1), 8, v(t))
    sadd(T0, sHB, WS_K); sadd(T1, sHB, WS_V)
    e("s_mov_b32 %s, 0" % CNT)
    lab("L_slow2")
    e("buffer_load_dwordx4 %s, v%d, %s, %s offen sc1" % (vr(KF, 4), V_L16, R_WS, T0))
    e("s_mov_b32 exec_lo, 0xffff")
    e("s_mov_b32 exec_hi, 0xffff")
    e("buffer_load_dwordx4 %s, v%d, %s, %s offen sc1" % (vr(VA, 4), t, R_WS, T1))
    e("buffer_load_dwordx4 %s, v%d, %s, %s offen offset:512 sc1" % (vr(VB, 4), t, R_WS, T1))
    e("s_mov_b64 exec, -1")
    sadd(T0, T0, 1024); sadd(T1, T1, 1024)
    e("s_waitcnt vmcnt(0)")
    e("v_mfma_f32_32x32x16_bf16 %s, %s, %s, %s" % (vr(S_, 16), vr(KF, 4), vr(A_Q[0], 4), vr(A_NM, 16)))
    nop(12)
    for k in range(16): e("v_exp_f32 v%d, v%d" % (S_ + k, S_ + k))
    e("s_nop 1")
    e("v_smfmac_f32_32x32x32_bf16 %s, %s, %s, v%d" % (vr(A_F, 16), vr(VA, 4), vr(S_, 8), A_IDX))
    e("v_smfmac_f32_32x32x32_bf16 %s, %s, %s, v%d" % (vr(A_F, 16), vr(VB, 4), vr(S_ + 8, 8), A_IDX))
    sadd(CNT, CNT, 1)
    e("s_cmp_lt_u32 %s, 64" % CNT)
    nop(4)
    e("s_cbranch_scc1 L_slow2")
    nop(12)
    attn_publish(A_F, 32, 0)
    lab("L_slow_next")
    e("s_cmp_eq_u32 %s, 0" % T5)
    e("s_cbranch_scc1 L_attn_ok")
    e("s_mov_b32 %s, 0" % T5)
    for i in range(4): V("mov_b32", A_Q[0] + i, v(A_Q[1] + i))
    sadd(sOST, sOST, 1024)
    e("s_branch L_slow_go")

def attn_publish(F, P, off):
    t = VT
    V("rcp_f32", t, v(F + 8))
    e("s_nop 0")
    for i in range(8): V("mul_f32", F + i, v(F + i), v(t))
    for i in range(4): V("cvt_pk_bf16_f32", P + i, v(F + 2 * i), v(F + 2 * i + 1))
    e("s_nop 1")
    e("v_permlane32_swap_b32 v%d, v%d" % (P, P + 2))
    e("v_permlane32_swap_b32 v%d, v%d" % (P + 1, P + 3))
    e("buffer_store_dwordx4 %s, v%d, %s, %s offen offset:%d sc1" % (vr(P, 4), V_L16, R_WS, sOST, off))

P_W, P_ACC, P_OF = 96, 32, 48
def tail():
    t = VT
    c("==== waves 0..3: Wo fragments, poll, O tiles, output projection ====")
    for hh in range(32):
        if hh == OPT["fsig"]: signal("c", 20, 3, sF2)
        for tt in range(2):
            e("ds_read_b64_tr_b16 %s, v%d offset:%d" % (vr(P_W + 4 * hh + 2 * tt, 2), PV_WF, L_WO + hh * 2048 + tt * 512))
    if OPT["fsig"] >= 32: signal("c", 20, 3, sF2)
    else: e("s_waitcnt lgkmcnt(0)")
    e("s_barrier")
    stamp("W")
    V("mov_b32", t + 2, L_FL + 24); V("mov_b32", t + 3, 1)
    e("s_cmp_eq_u32 %s, 0" % WV)
    e("s_cbranch_scc0 L_spin2")
    poll("L_poll2", sF2P)
    e("ds_write_b32 v%d, v%d" % (t + 2, t + 3))
    e("s_branch L_seen2")
    lab("L_spin2")
    e("s_mov_b32 %s, 0" % CNT)
    lab("L_spin2l")
    e("ds_read_b32 v%d, v%d" % (t + 3, t + 2))
    sadd(CNT, CNT, 1)
    e("s_waitcnt lgkmcnt(0)")
    e("v_readfirstlane_b32 %s, v%d" % (T0, t + 3))
    e("s_cmp_gt_u32 %s, 0x200000" % CNT)
    e("s_cbranch_scc1 L_seen2")
    e("s_cmp_eq_u32 %s, 0" % T0)
    e("s_cbranch_scc1 L_spin2l")
    lab("L_seen2")
    stamp("poll2")
    sadd("m0", W10, L_O); e("s_nop 0")
    for n in range(16):
        e("buffer_load_dwordx4 v%d, %s, %s offen sc1 lds" % (V_L16, R_WS, sOLD))
        if n < 15:
            sadd("m0", "m0", 4096); sadd(sOLD, sOLD, 0x20000)
    e("s_barrier")
    def mm(st):
        for k in range(4):
            hh = 4 * st + k
            e("v_mfma_f32_32x32x16_bf16 %s, %s, %s, %s" % (vr(P_ACC, 16), vr(P_W + 4 * hh, 4), vr(P_OF + 16 * (st & 1) + 4 * k, 4), "0" if hh == 0 else vr(P_ACC, 16)))
    for st in range(8):
        if st % 2 == 0:
            e("s_waitcnt vmcnt(%d)" % (12 - 2 * st))
            e("s_barrier")
            if st == 0: stamp("O1")
        for k in range(4): e("ds_read_b128 %s, v%d offset:%d" % (vr(P_OF + 16 * (st & 1) + 4 * k, 4), PV_OR, (4 * st + k) * 2048))
        if st > 0:
            e("s_waitcnt lgkmcnt(4)")
            mm(st - 1)
    e("s_waitcnt lgkmcnt(0)")
    mm(7)
    nop(12)
    for i in range(8): V("cvt_pk_bf16_f32", P_OF + i, v(P_ACC + 2 * i), v(P_ACC + 2 * i + 1))
    e("ds_write_b128 v%d, %s" % (PV_OW, vr(P_OF, 4)))
    e("ds_write_b128 v%d, %s offset:16" % (PV_OW, vr(P_OF + 4, 4)))
    c("WG 0 advances the epoch word (every WG has read it: all of them have published)")
    e("s_cmp_eq_u32 s2, 0")
    e("s_cbranch_scc0 L_fin")
    e("s_cmp_eq_u32 %s, 0" % WV)
    e("s_cbranch_scc0 L_fin")
    flag_store("0")
    e("s_branch L_fin")
    lab("L_tail_hi")
    c("==== waves 4..7: causal conv of output tiles 6,7 (two lag halves per channel) ====")
    for p in range(4): V("add_u32", PV_ZR + p, (L_Z2 - L_Z - 4608 - 1152 + p * (ZS2 - ZS)) & 0xffffffff, v(PV_ZR + p))
    def sigw(tag):
        signal(tag, 20, 7, sF2)
    e("s_bitcmp1_b32 %s, 0" % WV)
    e("s_cbranch_scc1 L_ct_b")
    conv_job(6, 0, 4, False, PV_CA, PV_CB, None, bar_after=OPT["wbar"])
    e("s_branch L_ct_done")
    lab("L_ct_b")
    conv_job(6, 16, 3, True, PV_CA, PV_CB, None, bar_after=OPT["wbar"])
    lab("L_ct_done")
    z_writes(PV_ZW2, 0)
    e("s_cmp_eq_u32 %s, 6" % WV)
    e("s_cbranch_scc0 L_nocarry2")
    V("bfe_u32", t + 2, v(V_L), 2, 1); V("mul_u32_u24", t + 2, 8 * ZS2, v(t + 2)); V("bfe_u32", t + 1, v(V_L), 3, 1); V("lshlrev_b32", t + 1, 2, v(t + 1))
    V("and_b32", t + 3, 3, v(V_L)); V("add_u32", t + 1, v(t + 1), v(t + 3)); V("mul_u32_u24", t + 1, ZS2, v(t + 1))
    V("add_u32", t + 2, v(t + 2), v(t + 1)); V("add_u32", t + 2, L_Z2 + 112, v(t + 2))
    e("s_mov_b64 exec, 0xffff")
    e("ds_write_b128 v%d, %s" % (t + 2, vr(PV_CY, 4)))
    e("s_mov_b64 exec, -1")
    lab("L_nocarry2")
    e("s_waitcnt lgkmcnt(0)")
    stamp("cend2")
    e("s_barrier")
    c("y[1536 + 64w' + l] for w' = w-4 and w")
    order = [(g, cl, st) for g in range(2) for cl in range(2) for st in range(2)]
    def rd(n):
        g, cl, st = order[n]
        for p in range(4): e("ds_read_b32 v%d, v%d offset:%d" % (Y_R + 4 * n + p, PV_ZR + p, cl * 8 * ZS2 + st * 4 * ZS2 + g * 1152))
    rd(0); rd(1); rd(2)
    for n in range(8):
        r = Y_R + 4 * n
        e("s_waitcnt lgkmcnt(%d)" % (4 * (min(n + 2, 7) - n)))
        if n + 3 < 8: rd(n + 3)
        V("add_f32", r, v(r), v(r + 1)); V("add_f32", r + 2, v(r + 2), v(r + 3)); V("add_f32", r, v(r), v(r + 2))
        if n % 2: V("add_f32", r, v(r), v(r - 4))
        if n % 4 == 3: V("cvt_pk_bf16_f32", V_Y + n // 4, v(r - 8), v(r))
    S("sub_u32", sYS, sYS2, 0x80000)
    for st in range(4):
        if st == OPT["yat"]:
            e("buffer_store_dword v%d, v%d, %s, %s offen" % (V_Y, PV_YA, R_OUT, sYS))
            e("buffer_store_dword v%d, v%d, %s, %s offen" % (V_Y + 1, PV_YA, R_OUT, sYS2))
        e("s_barrier")
    if OPT["yat"] == 4:
        e("buffer_store_dword v%d, v%d, %s, %s offen" % (V_Y, PV_YA, R_OUT, sYS))
        e("buffer_store_dword v%d, v%d, %s, %s offen" % (V_Y + 1, PV_YA, R_OUT, sYS2))
    lab("L_fin")
    e("s_waitcnt lgkmcnt(0)")
    e("s_barrier")
    stamp("opdone")
    e("ds_read_b128 v[32:35], v%d" % PV_FR)
    e("s_waitcnt lgkmcnt(0)")
    e("buffer_store_dwordx4 v[32:35], v%d, %s, %s offen %s" % (PV_FS, R_OUT, sOUT, OPT["opol"]))

def dump_lds(base, nbytes, wsoff):
    t = VT + 10
    e("s_waitcnt lgkmcnt(0)"); e("s_barrier")
    V("lshlrev_b32", t, 4, v(0))
    sshl(T0, "s2", 18); sadd(T0, T0, WS_DBG + wsoff)
    for o in range(0, nbytes, 8192):
        V("add_u32", t + 1, base + o, v(t))
        e("ds_read_b128 %s, v%d" % (vr(t + 2, 4), t + 1))
        e("s_waitcnt lgkmcnt(0)")
        e("buffer_store_dwordx4 %s, v%d, %s, %s offen" % (vr(t + 2, 4), t, R_WS, T0))
        sadd(T0, T0, 8192)
        e("s_waitcnt vmcnt(0)")
    e("s_barrier")

def write_stamps():
    t = VT
    if OPT["ldst"]:
        e("s_waitcnt vmcnt(0) lgkmcnt(0)")
        sshl(T0, "s2", 3); sadd(T0, T0, WV); sshl(T0, T0, 7); sadd(T0, T0, WS_ST)
        e("s_mov_b64 exec, 1")
        V("mov_b32", t, 0)
        for i in range(10):
            V("mov_b32", t + 1, sr(80 + 2 * i))
            e("buffer_store_dword v%d, v%d, %s, %s offen offset:%d" % (t + 1, t, R_WS, T0, 4 * i))
            e("s_nop 1")
        e("s_mov_b64 exec, -1")
    if OPT["echo"]:
        a, b, m = OPT["echo"].split(",")
        e("s_cmp_eq_u32 %s, %d" % (WV, OPT["echowv"])); e("s_cbranch_scc0 L_end")
        e("s_cmp_eq_u32 s2, %d" % OPT["echowg"]); e("s_cbranch_scc0 L_end")
        e("s_waitcnt vmcnt(0)")
        stamp("end")
        if a == "start": e("s_mov_b32 s80, s100")
        e("s_sub_u32 s82, s81, s80"); e("s_mul_i32 s82, s82, %s" % m); e("s_min_u32 s82, s82, 20000")
        e("s_memrealtime s[84:85]"); e("s_waitcnt lgkmcnt(0)")
        lab("L_echo")
        e("s_memrealtime s[86:87]"); e("s_waitcnt lgkmcnt(0)")
        e("s_sub_u32 s83, s86, s84"); e("s_cmp_lt_u32 s83, s82"); e("s_cbranch_scc1 L_echo")
    if OPT["stamps"]:
        e("s_waitcnt vmcnt(0)")
        stamp("end")
        sshl(T0, "s2", 3); sadd(T0, T0, WV); sshl(T0, T0, 7); sadd(T0, T0, WS_ST)
        e("s_mov_b64 exec, 1")
        V("mov_b32", t, 0)
        for i in range(len(stamp_names)):
            V("mov_b32", t + 1, sr(S_ST + i))
            e("buffer_store_dword v%d, v%d, %s, %s offen offset:%d" % (t + 1, t, R_WS, T0, 4 * i))
            e("s_nop 1")
        V("mov_b32", t + 1, "s100")
        e("buffer_store_dword v%d, v%d, %s, %s offen offset:124" % (t + 1, t, R_WS, T0))
        e("s_memrealtime s[98:99]")
        e("s_waitcnt lgkmcnt(0)")
        V("mov_b32", t + 2, "s98")
        e("buffer_store_dword v%d, v%d, %s, %s offen offset:120" % (t + 2, t, R_WS, T0))
        e("s_mov_b64 exec, -1")
        L.insert(0, "; stamps: " + ",".join(stamp_names))
    if OPT["dbgspan"]:
        e("s_cmp_eq_u32 %s, 0" % WV); e("s_cbranch_scc0 L_end")
        sand(T0, "s2", 63); e("s_cmp_eq_u32 %s, 5" % T0); e("s_cbranch_scc0 L_end")
        e("s_waitcnt vmcnt(0)")
        e("s_memrealtime s[96:97]"); e("s_memtime s[94:95]")
        srd(R_X, S_DBG, 256)
        sshr(T0, "s2", 6); sshl(T0, T0, 4)
        e("s_waitcnt lgkmcnt(0)")
        e("s_mov_b64 exec, 1")
        V("mov_b32", t, 0)
        e("s_sub_u32 s94, s94, s98"); e("s_sub_u32 s96, s96, s100")
        V("mov_b32", t + 2, "s100"); V("mov_b32", t + 3, "s96"); V("mov_b32", t + 4, "s94"); V("mov_b32", t + 5, 0)
        e("buffer_store_dwordx4 %s, v%d, %s, %s offen" % (vr(t + 2, 4), t, R_X, T0))

def main():
    header()
    setup()
    loader_path()
    compute_path()
    lab("L_gemm_done")
    if OPT["gprio"]: e("s_setprio 0")
    e("s_waitcnt lgkmcnt(0)")
    e("s_barrier")
    stamp("K2")
    if OPT["dump"]: dump_lds(L_KF, 24576, 0)
    conv()
    kv_early()
    conv_epilogue()
    if not OPT["b1late"]:
        e("s_waitcnt vmcnt(0)")
        e("s_barrier")
        stamp("S")
    kv_late()
    attn_main()
    combine()
    tail()
    write_stamps()
    e("s_endpgm")
    slow_path()
    footer(256)
    open(sys.argv[1], "w").write("\n".join(L) + "\n")

main()
```

```python
import sys, struct, math

NAME = "concat_heads__ssm_conv_s4__softmax_full_mha__prompt"
OPT = dict(only="", ldst=0, ypol="", opol="", abl="", echo="", echowg=0, echowv=0, stamps=0, dump=0, forceslow=0, dbgspan=0, flip1=14, mid=16, flip=30, pf=2, apre=45, f0=5, f2=2, umode=0, uat=0, ust2=1, lsp=0, fline=0, psleep=0, ppol="sc1", gprio=0, kvrot=0, qearly=0, cfill=3, pk=0, p2at=99, pat=30, jprio=0, gsig=0, fsig=16, wbar=2, pfw=0, pfx=0, tsig=-2, b1late=0, rot=6, yat=0, npre=999,
           yt=[15, 20, 25], wt=[17, 18, 19, 21, 22, 23, 24, 26])
for a in sys.argv[2:]:
    k, v = a.split("=")
    OPT[k] = int(v) if v.lstrip("-").isdigit() else v

L = []
SINK = [L]
def e(s): SINK[0].append("    " + s)
def lab(s): SINK[0].append(s + ":")
def c(s): SINK[0].append("    ; " + s)
def f2u(x): return struct.unpack("<I", struct.pack("<f", x))[0]
def fl(x): return "0x%08x" % f2u(x)
def vr(a, n=1): return "v%d" % a if n == 1 else "v[%d:%d]" % (a, a + n - 1)
def sr(a, n=1): return "s%d" % a if n == 1 else "s[%d:%d]" % (a, a + n - 1)
def nop(n):
    while n > 0:
        k = min(n, 16); e("s_nop %d" % (k - 1)); n -= k
def capture(fn, *a):
    old = SINK[0]; out = []; SINK[0] = out; fn(*a); SINK[0] = old; return out

WS_F1 = 0x1000
WS_F2 = 0xa000
WS_F0 = 0x20000
WS_Q, WS_K, WS_V, WS_O, WS_U2 = 0x100000, 0x300000, 0x500000, 0x700000, 0x900000
WS_ST = 0xc00000
WS_DBG = 0x1000000
WS_SIZE = 0x10000000
LDS_TOTAL = 163840
BLK = 16384
L_TB = 98304
L_TA = 0
L_FL = 146240
L_KF = 146304
L_UP = 154624
ZS = 9504
L_Z = 70208
ZS2 = 2448
L_Z2 = 0
L_WO = 0
L_O = 65536
L_SC = 65536
L_OT = 131072
S_U, S_ARE, S_AIM, S_BRE, S_BIM, S_CRE, S_CIM, S_LDT = 8, 10, 12, 14, 16, 18, 20, 22
S_DSK, S_X, S_W, S_WO, S_OUT, S_DBG, S_WS = 24, 26, 28, 30, 32, 34, 36
R_X, R_W, R_WS, R_U, R_OUT, R_WO = "s[40:43]", "s[44:47]", "s[48:51]", "s[52:55]", "s[56:59]", "s[60:63]"
XQ, I5, WV, TAG, LD2, DS2, HH, JJ, C0 = "s64", "s65", "s66", "s67", "s68", "s69", "s70", "s71", "s72"
T0, T1, T2, T3, T4, T5, CNT = "s73", "s74", "s75", "s76", "s77", "s78", "s79"
CQ, CL, W10, GT, GQ = "s38", "s39", "s3", "s6", "s7"
JR = "s97"
sQKV, sF1, sF1P, sYS, sWO, sOST, sOLD, sOUT, sF2, sF2P, sHB, sQL = ["s%d" % i for i in range(8, 20)]
sYS2 = "s38"
S_ST = 80
stamp_names = []
def stamp(name):
    if OPT["only"] and name not in OPT["only"].split(",") + ["karg", "end"]: return
    if OPT["echo"]:
        a, b, m = OPT["echo"].split(",")
        if name in (a, b):
            e("s_waitcnt lgkmcnt(0)")
            e("s_memrealtime s[98:99]")
            e("s_waitcnt lgkmcnt(0)")
            e("s_mov_b32 %s, s98" % ("s80" if name == a else "s81"))
    if OPT["stamps"]:
        if name not in stamp_names: stamp_names.append(name)
        assert len(stamp_names) <= 18
        e("s_waitcnt lgkmcnt(0)")
        e("s_memrealtime s[98:99]" if OPT["stamps"] == 2 else "s_memtime s[98:99]")
        e("s_waitcnt lgkmcnt(0)")
        e("s_mov_b32 %s, s98" % sr(S_ST + stamp_names.index(name)))
def srd(r, base, size):
    r = int(r[2:r.index(":")])
    e("s_mov_b32 %s, %s" % (sr(r), sr(base)))
    e("s_and_b32 %s, %s, 0xffff" % (sr(r + 1), sr(base + 1)))
    e("s_mov_b32 %s, 0x%x" % (sr(r + 2), size))
    e("s_mov_b32 %s, 0x00020000" % sr(r + 3))
def csel(dst, a, b):
    e("s_mov_b32 %s, %d" % (dst, b))
    e("s_cselect_b32 %s, %d, %s" % (dst, a, dst))
def S(op, d, a, b): e("s_%s %s, %s, %s" % (op, d, a, b if isinstance(b, str) else ("0x%x" % b if b > 64 else str(b))))
def sadd(d, a, b): S("add_u32", d, a, b)
def sshl(d, a, b): S("lshl_b32", d, a, b)
def sshr(d, a, b): S("lshr_b32", d, a, b)
def sand(d, a, b): S("and_b32", d, a, b)
def smul(d, a, b): S("mul_i32", d, a, b)
def V(op, d, *a): e("v_%s v%d, %s" % (op, d, ", ".join(("v%d" % x[0] if isinstance(x, tuple) else (x if isinstance(x, str) else ("0x%x" % x if x > 64 else str(x)))) for x in a)))
def v(x): return (x,)
LOG2E = math.log2(math.e)

V_L, V_L16, V_PA = 1, 2, 3
V_PAR = 4
V_Y = 10
VT = 14
(PV_CA, PV_CB, PV_ZW, PV_ZR, _z1, _z2, _z3, PV_KA, PV_V0, PV_V1, PV_YA, PV_WA, PV_CW, PV_CR,
 PV_OR, PV_OW, PV_WF, PV_FR, PV_FS, PV_WS) = range(224, 244)
PV_ZW2 = PV_V1
PV_CY = 250
PV_QS, PV_VS, PV_TW = 222, 223, 219
PV_GA, PV_GB, PV_GW, PV_GD, PV_US = 244, 245, 246, 247, 248

def header():
    for x in """fused S4 long-conv (out[:, 0:512]) + 32-head attention with output projection (out[:, 512:1024])
one launch, 256 workgroups x 8 waves, one workgroup per CU (160 KB LDS); generated by my own script
 phase 1  QKV GEMM: WG = 64 tokens x 4 heads (q,k,v); waves 4-7 stream x/W into an LDS ring (LDS-DMA),
          waves 0-3 run the MFMAs and build the S4 mode tables; Q,K,V go to d_ws (sc1) + flag
 phase 2  S4: K[l] = Re sum_n C B dt exp(dt A bf16(l)) as a table matmul (rows duplicated to realise bf16(l)),
          causal conv as Toeplitz MFMAs on polyphase-4 u (tiles 0-5 here, tiles 6-7 in the tail); D folded into K[0]
 phase 3  attention: WG = 1 head x 256 queries, S^T = K Q^T (q pre-scaled by log2e/4), P = 2^S in place,
          O^T += V^T P with the sparse MFMA reading the high halves of the fp32 P; a ones row gives the row sum.
          The fast path uses shift 0; afterwards the row sum and O are range-checked and any wave for which
          that shift was unsafe recomputes its rows with the true row max (L_slow).
 phase 4  O goes to d_ws (sc1) + flag; WG = 64 x 64 tile of O @ Wo
hand-offs: sc1 stores -> vmcnt(0) -> flag (tag = d_ws[0] + 1, advanced by WG 0 at the end) -> sc1 poll -> sc1 loads""".split("\n"):
        L.append("; " + x)
    L.append("; @launch grid=(256,1,1) block=(512,1,1) lds=%d" % LDS_TOTAL)
    L.append('.amdgcn_target "amdgcn-amd-amdhsa--gfx950"')
    L.append(".text")
    L.append(".globl %s_kernel" % NAME)
    L.append(".p2align 8")
    L.append(".type %s_kernel,@function" % NAME)
    L.append("%s_kernel:" % NAME)
def footer(nv):
    lab("L_end")
    e("s_endpgm")
    L.append('.section .rodata,"a"')
    L.append(".p2align 6")
    L.append(".amdhsa_kernel %s_kernel" % NAME)
    L.append("  .amdhsa_next_free_vgpr %d" % nv)
    L.append("  .amdhsa_next_free_sgpr 102")
    L.append("  .amdhsa_accum_offset %d" % nv)
    L.append("  .amdhsa_group_segment_fixed_size 0")
    L.append("  .amdhsa_kernarg_size 120")
    L.append("  .amdhsa_user_sgpr_count 2")
    L.append("  .amdhsa_user_sgpr_kernarg_segment_ptr 1")
    L.append("  .amdhsa_system_sgpr_workgroup_id_x 1")
    L.append(".end_amdhsa_kernel")

def setup():
    c("---- setup ----")
    e("s_cmp_ge_u32 s2, 256")
    e("s_cbranch_scc1 L_end")
    e("s_load_dwordx8 s[24:31], s[0:1], 64")
    e("s_load_dwordx16 s[8:23], s[0:1], 0")
    e("s_load_dwordx4 s[32:35], s[0:1], 96")
    e("s_load_dwordx2 s[36:37], s[0:1], 112")
    if OPT["stamps"] or OPT["dbgspan"] or OPT["echo"]: e("s_memrealtime s[100:101]")
    if OPT["dbgspan"]: e("s_memtime s[98:99]")
    if OPT["pf"] == 2:
        c("pull this WG's 1/32 share of the code into L2 right away (thread t<8: line 8*(wg>>3)+t)")
        e("s_getpc_b64 s[4:5]")
        lab("L_pc")
        e("s_and_b32 s3, s2, 0xf8")
        V("add_u32", VT, "s3", v(0)); V("lshlrev_b32", VT, 7, v(VT))
        e("v_min_u32 v%d, L_end-L_pc-4, v%d" % (VT, VT))
        e("v_cmp_gt_u32 vcc, 8, v0")
        e("s_and_saveexec_b64 s[6:7], vcc")
        e("s_cbranch_execz L_nopf")
        e("global_load_dword v47, v%d, s[4:5]" % VT)
        lab("L_nopf")
        e("s_mov_b64 exec, -1")
    V("and_b32", V_L, 63, v(0))
    V("lshrrev_b32", VT, 6, v(0))
    V("lshlrev_b32", V_L16, 4, v(V_L))
    V("mov_b32", PV_FS, 0)
    e("v_readfirstlane_b32 %s, v%d" % (WV, VT))
    sand(XQ, "s2", 7)
    sshr(I5, "s2", 3)
    sand(GT, XQ, 3); sshl(GT, GT, 3); sshr(JJ, I5, 2); sadd(GT, GT, JJ)
    sand(GQ, XQ, 4); sand(T0, I5, 3); sadd(GQ, GQ, T0)
    sshl(HH, XQ, 2); sadd(HH, HH, T0)
    sshl(C0, XQ, 5); sadd(C0, C0, I5); sshl(C0, C0, 1)
    sshl(W10, WV, 10)
    e("s_cmp_ge_u32 %s, 4" % WV)
    e("s_cbranch_scc0 L_compute")

def scalar_loads():
    sshl(T3, C0, 1)
    e("s_load_dword %s, %s, 0" % (TAG, sr(S_WS, 2)))
    e("s_load_dword %s, %s, %s" % (LD2, sr(S_LDT, 2), T3))
    e("s_load_dword %s, %s, %s" % (DS2, sr(S_DSK, 2), T3))

def lane_terms():
    t = VT
    hf, b7, p4, r4, g1, l15, l8 = t, t + 1, t + 2, t + 3, t + 4, t + 5, t + 6
    V("lshrrev_b32", hf, 5, v(V_L)); V("and_b32", b7, 7, v(V_L)); V("bfe_u32", p4, v(V_L), 3, 2)
    V("bfe_u32", r4, v(V_L), 2, 2); V("bfe_u32", g1, v(V_L), 4, 1); V("and_b32", l15, 15, v(V_L)); V("lshrrev_b32", l8, 3, v(V_L))
    return hf, b7, p4, r4, g1, l15, l8

def precompute_conv():
    t = VT
    c("---- conv addresses ----")
    e("s_bfe_u32 %s, %s, 0x10001" % (CL, WV))
    hf, b7, p4, r4, g1, l15, l8 = lane_terms()
    x, y, z = t + 8, t + 9, t + 10
    e("s_cmp_eq_u32 %s, 1" % CL)
    csel(T0, L_KF + 4160 + 96, L_KF + 96); csel(T1, L_UP + 4608, L_UP); csel(T2, L_Z + 4 * ZS + 144, L_Z + 144)
    V("and_b32", x, 3, v(V_L)); V("lshl_add_u32", x, v(g1), 2, v(x)); V("lshl_add_u32", y, v(hf), 3, v(r4))
    V("sub_u32", x, v(x), v(y)); V("lshlrev_b32", x, 3, v(x)); V("add_u32", PV_CA, T0, v(x))
    V("mul_u32_u24", x, 1152, v(p4)); V("add_u32", z, v(b7), v(hf)); V("lshl_add_u32", x, v(z), 4, v(x))
    V("add_u32", PV_CB, T1, v(x))
    V("mul_u32_u24", x, ZS, v(p4)); V("mul_u32_u24", z, 144, v(b7)); V("lshl_add_u32", z, v(hf), 4, v(z)); V("add3_u32", PV_ZW, v(x), v(z), T2)
    sshl(sF1, GQ, 5); sadd(sF1, sF1, GT); sshl(sF1, sF1, 7); sadd(sF1, sF1, WS_F1)
    sshl(T0, XQ, 12); sadd(sF1P, T0, WS_F1); sadd(sF2P, T0, WS_F2)
    sshl(sHB, HH, 16)
    if OPT["kvrot"] == 1: e("s_mov_b32 %s, %s" % (JR, JJ))
    elif OPT["kvrot"] == 0: e("s_mov_b32 %s, 0" % JR)
    else: sand(JR, JJ, OPT["kvrot"])

def precompute():
    t = VT
    c("SPLIT")
    e("s_cmp_ge_u32 %s, 4" % WV)
    e("s_cselect_b32 %s, 1024, 0" % T0)
    hf, b7, p4, r4, g1, l15, l8 = lane_terms()
    x, y, z = t + 8, t + 9, t + 10
    V("add_u32", PV_KA, T0, v(V_L16))
    V("lshlrev_b32", x, 4, v(l15)); V("lshl_add_u32", x, v(hf), 8, v(x)); sadd(T0, T0, 8192); V("add_u32", PV_V0, T0, v(x))
    V("lshlrev_b32", PV_YA, 11, v(V_L))
    V("lshlrev_b32", x, 2, v(g1)); V("xor_b32", x, v(x), v(b7)); V("lshlrev_b32", x, 4, v(x)); V("lshl_add_u32", PV_WA, v(l8), 10, v(x))
    c("SPLIT")
    sshl(T0, WV, 7); sadd(T0, T0, 32)
    for p in range(4):
        V("add_u32", x, T0, v(V_L))
        if p: V("subrev_u32", x, p, v(x))
        V("lshrrev_b32", z, 5, v(x)); V("lshlrev_b32", x, 2, v(x)); V("lshl_add_u32", x, v(z), 4, v(x))
        V("add_u32", PV_ZR + p, L_Z + p * ZS, v(x))
    c("SPLIT")
    sshl(T0, WV, 18); sshl(T1, C0, 1); sadd(sYS, T0, T1)
    sshr(T0, T0, 1); sadd(T0, T0, T1); sadd(sYS2, T0, 0x200000)
    sand(T0, I5, 7); sshl(T0, T0, 7); sshl(T1, WV, 13); sadd(sWO, T0, T1)
    sshl(T1, JJ, 13); sadd(T1, T1, sHB); sand(T2, WV, 3); sshl(T2, T2, 11); sadd(T1, T1, T2)
    sadd(sQL, T1, WS_Q)

def precompute_tail(part):
    t = VT + 8
    hf, b7, l8, x, y, z = t, t + 1, t + 2, t + 3, t + 4, t + 5
    V("lshrrev_b32", hf, 5, v(V_L))
    if part == 1:
        sand(T0, WV, 3); smul(T0, T0, 6144); sadd(T0, T0, L_SC)
        V("add_u32", PV_CW, T0, v(V_L16)); V("lshl_add_u32", PV_CR, v(V_L), 2, T0)
        S("sub_u32", T1, sQL, WS_Q); sadd(sOST, T1, WS_O)
        V("bfe_u32", y, v(V_L), 2, 2); V("lshl_add_u32", y, v(hf), 3, v(y)); V("lshlrev_b32", PV_WF, 7, v(y))
        V("and_b32", x, 1, v(V_L)); V("bfe_u32", z, v(V_L), 4, 1); V("lshl_or_b32", x, v(x), 1, v(z))
        sand(T0, WV, 2); sshl(T0, T0, 1); V("or_b32", x, T0, v(x))
        V("bfe_u32", z, v(V_L), 3, 1); V("lshlrev_b32", z, 2, v(z)); V("xor_b32", x, v(x), v(z))
        V("lshl_add_u32", PV_WF, v(x), 4, v(PV_WF)); V("bfe_u32", z, v(V_L), 1, 1); V("lshl_add_u32", PV_WF, v(z), 3, v(PV_WF))
        sshl(sF2, JJ, 5); sadd(sF2, sF2, HH); sshl(sF2, sF2, 7); sadd(sF2, sF2, WS_F2)
        return
    V("and_b32", b7, 7, v(V_L)); V("lshrrev_b32", l8, 3, v(V_L))
    sand(T0, WV, 1); smul(T0, T0, 4 * ZS2); smul(T1, CL, 8 * ZS2); sadd(T0, T0, T1); sadd(T0, T0, L_Z2 + 144)
    V("bfe_u32", x, v(V_L), 3, 2); V("mul_u32_u24", x, ZS2, v(x)); V("mul_u32_u24", z, 144, v(b7)); V("lshl_add_u32", z, v(hf), 4, v(z)); V("add3_u32", PV_ZW2, v(x), v(z), T0)
    sand(T0, WV, 2); sshl(T0, T0, 5)
    sand(T1, WV, 1); sshl(T2, T1, 10); sadd(T2, T2, L_O); V("add_u32", PV_OR, T2, v(V_L16))
    smul(T1, T1, 4608); sadd(T0, T0, T1); sadd(T0, T0, L_OT)
    V("and_b32", x, 31, v(V_L)); V("mul_u32_u24", x, 144, v(x)); V("lshl_add_u32", x, v(hf), 5, v(x)); V("add_u32", PV_OW, T0, v(x))
    smul(T0, WV, 1152); sadd(T0, T0, L_OT)
    V("lshlrev_b32", x, 4, v(b7)); V("mul_u32_u24", z, 144, v(l8)); V("add3_u32", PV_FR, v(z), v(x), T0); V("lshl_add_u32", PV_FS, v(l8), 11, v(x))
    sshr(T1, WV, 1); sshl(T1, T1, 6); sshl(T2, XQ, 3); sadd(T1, T1, T2); sshr(T3, I5, 3); sshl(T2, T3, 1); sadd(T1, T1, T2)
    sand(T2, WV, 1); sadd(T1, T1, T2); sshl(T1, T1, 10); sadd(sOLD, T1, WS_O)
    sand(T0, I5, 7); sshl(T0, T0, 7)
    sshl(T1, XQ, 2); sadd(T1, T1, T3); sshl(T1, T1, 3); sadd(T1, T1, WV); sshl(T1, T1, 14); sadd(T1, T1, T0); sadd(sOUT, T1, 1024)

G_VX0, G_VX1, G_VWQ, G_VWK, G_VWV, G_PL = 32, 33, 34, 35, 36, 39
G_UA, G_US = 30, 31
G_UL, U2R = 196, 80
G_XA, G_WA, G_WB = 32, 40, 43
G_ACC = [48, 64, 80]
G_XF, G_W0F, G_W1F, G_VF = 96, 112, 128, 144
KB = 48
KR = 192

def loader_addr():
    t = VT
    c("loader DMA voffsets (wave v=w-4 covers rows 16v..16v+15 of each chunk)")
    V("lshrrev_b32", t, 3, v(V_L)); V("and_b32", t + 1, 7, v(V_L)); V("bfe_u32", t + 2, v(V_L), 4, 1)
    sand(T0, WV, 3); sshl(T4, T0, 11); sshl(T0, T0, 4)
    V("add_u32", t + 3, T0, v(t))
    V("bfe_u32", t + 4, v(t + 3), 1, 3); V("xor_b32", t + 4, v(t + 4), v(t + 1)); V("lshlrev_b32", t + 4, 4, v(t + 4))
    sshl(T1, GT, 16)
    V("lshl_add_u32", G_VX0, v(t + 3), 10, v(t + 4)); V("add_u32", G_VX0, T1, v(G_VX0)); V("xor_b32", G_VX1, 0x2040, v(G_VX0))
    V("mul_u32_u24", t + 5, 3072, v(t + 3)); sshl(T1, GQ, 7); V("add_u32", t + 5, T1, v(t + 5))
    V("lshlrev_b32", t + 6, 1, v(t + 2)); V("xor_b32", t + 6, v(t + 6), v(t + 1)); V("lshl_add_u32", G_VWQ, v(t + 6), 4, v(t + 5))
    V("xor_b32", t + 6, 4, v(t + 6)); V("lshl_add_u32", G_VWK, v(t + 6), 4, v(t + 5)); V("add_u32", G_VWK, 1024, v(G_VWK))
    V("lshlrev_b32", t + 6, 2, v(t + 2)); V("xor_b32", t + 6, v(t + 6), v(t + 1)); V("lshl_add_u32", G_VWV, v(t + 6), 4, v(t + 5)); V("add_u32", G_VWV, 2048, v(G_VWV))
    r = OPT["rot"]
    if r == 1: sshl(T5, GQ, 1); sadd(T5, T5, GT)
    else:
        sadd(T5, GQ, GT)
        if r == 3: sshl(T5, T5, 2)
        if r == 5: sand(T5, T5, 1)
        if r == 6: sshl(T5, T5, 1)

I0, I1, I2, I3 = "s20", "s21", "s22", "s23"
def issue_chunk(ci):
    base = (ci % 3) * 32768
    sadd(I0, T5, ci); sand(I0, I0, 7)
    sadd("m0", T4, base); sshl(I1, I0, 7)
    e("buffer_load_dwordx4 v%d, %s, %s offen lds" % (G_VX0, R_X, I1))
    sadd("m0", T4, base + 1024); smul(I2, I0, 196608)
    e("buffer_load_dwordx4 v%d, %s, %s offen lds" % (G_VX1, R_X, I1))
    for g, va in enumerate((G_VWQ, G_VWK, G_VWV)):
        for h in range(2):
            sadd("m0", T4, base + (g + 1) * 8192 + h * 1024)
            if g == 0 and h == 0: sadd(I3, I2, 24576)
            else: e("s_nop 0")
            e("buffer_load_dwordx4 v%d, %s, %s offen lds" % (va, R_W, I3 if h else I2))

def pi_tok(dst, src, t):
    V("and_b32", dst, 0x13, v(src)); V("bfe_u32", t, v(src), 2, 1); V("lshl_or_b32", dst, v(t), 3, v(dst))
    V("bfe_u32", t, v(src), 3, 1); V("lshl_or_b32", dst, v(t), 2, v(dst))

def gemm_read_addr():
    t = VT
    c("GEMM LDS fragment read addresses, publish addresses")
    pi_tok(t, V_L, t + 1)
    V("lshrrev_b32", t + 1, 5, v(V_L))
    V("lshlrev_b32", PV_QS, 4, v(t)); V("lshl_add_u32", PV_QS, v(t + 1), 9, v(PV_QS))
    sand(T0, WV, 1); sshl(T1, T0, 5); V("add_u32", t, T1, v(t))
    V("bfe_u32", t + 2, v(t), 1, 3); V("xor_b32", t + 2, v(t + 2), v(t + 1)); V("lshlrev_b32", t + 2, 4, v(t + 2))
    V("lshl_add_u32", G_XA, v(t), 7, v(t + 2))
    for s in range(1, 4): V("xor_b32", G_XA + s, 32 * s, v(G_XA))
    V("bfe_u32", t + 2, v(V_L), 2, 2); V("lshl_add_u32", t + 3, v(t + 1), 3, v(t + 2)); V("lshlrev_b32", t + 3, 7, v(t + 3))
    V("bfe_u32", t + 4, v(V_L), 4, 1); V("bfe_u32", t + 5, v(V_L), 3, 1); V("and_b32", t + 6, 1, v(V_L)); V("bfe_u32", t + 7, v(V_L), 1, 1)
    sand(T2, WV, 2); sshl(T1, T2, 1)
    V("or_b32", t + 8, T1, v(t + 6)); V("lshl_or_b32", t + 9, v(t + 4), 1, v(t + 5)); V("lshlrev_b32", t + 9, 1, v(t + 9))
    V("xor_b32", t + 8, v(t + 8), v(t + 9)); V("lshl_add_u32", t + 8, v(t + 8), 4, v(t + 3)); V("lshl_add_u32", t + 8, v(t + 7), 3, v(t + 8))
    V("lshl_add_u32", G_WA, v(t + 4), 13, v(t + 8)); V("add_u32", G_WA, 8192, v(G_WA)); V("xor_b32", G_WA + 1, 32, v(G_WA))
    V("lshl_or_b32", t + 8, v(t + 4), 1, v(t + 7)); V("or_b32", t + 8, T1, v(t + 8)); V("lshlrev_b32", t + 9, 2, v(t + 5))
    V("xor_b32", t + 8, v(t + 8), v(t + 9)); V("lshl_add_u32", t + 8, v(t + 8), 4, v(t + 3)); V("lshl_add_u32", t + 8, v(t + 6), 3, v(t + 8))
    V("add_u32", G_WA + 2, 24576, v(t + 8))
    for s in range(4): V("add_u32", G_XA + 4 + s, 0x10000, v(G_XA + s))
    for s in range(3): V("add_u32", G_WB + s, 0x10000, v(G_WA + s))
    V("and_b32", t + 2, 15, v(V_L)); V("lshlrev_b32", t + 2, 4, v(t + 2)); V("lshl_add_u32", t + 2, v(t + 1), 8, v(t + 2)); V("lshl_add_u32", PV_VS, v(t + 4), 16, v(t + 2))
    sshl(T1, GQ, 2); sadd(T1, T1, T2); sshl(T1, T1, 6); sshl(T3, GT, 1); sadd(T1, T1, T3); sadd(T1, T1, T0); sshl(sQKV, T1, 10)
    sshl(T0, T0, 8)
    e("s_bitcmp1_b32 %s, 1" % WV)
    csel(T1, L_TA + 14256, L_TA); csel(T2, L_TB + 16896, L_TB)
    sadd(T1, T1, T0); sadd(T2, T2, T0)
    V("lshl_add_u32", PV_TW, v(V_L), 2, T1); V("lshl_add_u32", 46, v(V_L), 2, T2)

G_UP = 29
def u_coop_loads():
    t = VT
    if OPT["umode"] == 0:
        e("s_bfe_u32 %s, %s, 0x10001" % (T1, WV)); sand(T0, WV, 1)
        V("and_b32", t, 7, v(V_L)); V("bfe_u32", t + 1, v(V_L), 3, 2)
        sshl(T0, T0, 2); V("add_u32", t + 1, T0, v(t + 1))
        sshl(T2, I5, 1); sadd(T1, T1, T2); sshl(T1, T1, 3); V("add_u32", t, T1, v(t))
        V("lshlrev_b32", t + 2, 4, v(t + 1)); V("lshl_add_u32", G_UA, v(t), 12, v(t + 2))
        V("lshlrev_b32", t, 4, v(t)); V("lshl_add_u32", G_US, v(t + 1), 15, v(t))
        sshl(T0, XQ, 7)
        e("s_mov_b32 exec_hi, 0")
        for k in range(4):
            e("buffer_load_dwordx4 %s, v%d, %s, %s offen offset:%d" % (vr(G_UL + 4 * k, 4), G_UA, R_U, T0, 1024 * k))
        e("s_mov_b32 exec_hi, -1")
        return
    sshl(T1, I5, 2); sadd(T1, T1, WV); sshl(T1, T1, 2)
    V("bfe_u32", t, v(V_L), 3, 2); V("add_u32", t, T1, v(t)); V("and_b32", t + 1, 7, v(V_L))
    V("lshlrev_b32", t + 1, 4, v(t + 1)); V("lshl_add_u32", G_UA, v(t), 12, v(t + 1))
    sshl(T0, XQ, 7)
    e("s_mov_b32 exec_hi, 0")
    for k in range(4):
        e("buffer_load_dwordx4 %s, v%d, %s, %s offen offset:%d" % (vr(G_UL + 4 * k, 4), G_UA, R_U, T0, 1024 * k))
    e("s_mov_b32 exec_hi, -1")
    V("and_b32", t, 3, v(V_L)); V("bfe_u32", t + 1, v(V_L), 2, 3)
    V("lshl_add_u32", G_UP, v(t), 3, v(t + 1)); V("lshlrev_b32", G_UP, 2, v(G_UP))
    V("add_u32", t, T1, v(t)); V("lshlrev_b32", t, 4, v(t)); V("lshl_add_u32", G_US, v(t + 1), 15, v(t))

def u_coop_perm():
    D = 240
    e("s_waitcnt vmcnt(0)")
    for i in range(4):
        for k in range(4):
            if OPT["umode"]: e("ds_bpermute_b32 v%d, v%d, v%d" % (D + 4 * i + k, G_UP, G_UL + 4 * k + i))
            else: V("mov_b32", D + 4 * i + k, v(G_UL + 4 * k + i))
def u_coop_stores():
    D = 240
    sshl(I0, XQ, 18); sadd(I0, I0, WS_U2)
    e("s_mov_b32 exec_hi, 0")
    for i in range(4):
        e("buffer_store_dwordx4 %s, v%d, %s, %s offen sc1" % (vr(D + 4 * i, 4), G_US, R_WS, I0))
        if i < 3: sadd(I0, I0, 8192)
    e("s_mov_b32 exec_hi, -1")

def flag_store(soff, t=VT):
    if OPT["fline"] and soff != "0":
        V("mov_b32", t + 1, TAG)
        V("lshlrev_b32", t, 2, v(V_L))
        e("s_mov_b32 exec_hi, 0")
        e("buffer_store_dword v%d, v%d, %s, %s offen sc1" % (t + 1, t, R_WS, soff))
        e("s_mov_b32 exec_hi, -1")
        return
    V("mov_b32", t, 0); V("mov_b32", t + 1, TAG)
    e("s_mov_b64 exec, 1")
    e("buffer_store_dword v%d, v%d, %s, %s offen sc1" % (t + 1, t, R_WS, soff))
    e("s_mov_b64 exec, -1")

def poll(label, soff, first_issued=None, t=VT, nwait=0):
    V("lshlrev_b32", t, 7, v(V_L))
    e("s_mov_b32 %s, 0" % CNT)
    e("s_mov_b32 exec_hi, 0")
    r = t + 1
    if first_issued is not None:
        r = first_issued
        e("s_waitcnt vmcnt(%d)" % nwait)
        e("s_branch %s_chk" % label)
    if OPT["psleep"] and first_issued is None: e("s_branch %s_go" % label)
    lab(label)
    if OPT["psleep"]: e("s_sleep %d" % OPT["psleep"])
    lab(label + "_go")
    e("buffer_load_dword v%d, v%d, %s, %s offen %s" % (r, t, R_WS, soff, OPT["ppol"].replace("+", " ")))
    sadd(CNT, CNT, 1)
    e("s_waitcnt vmcnt(0)")
    lab(label + "_chk")
    e("v_cmp_ne_u32 vcc, %s, v%d" % (TAG, r))
    e("s_cmp_gt_u32 %s, 0x4000" % CNT)
    e("s_cbranch_scc1 %s_done" % label)
    e("s_cmp_lg_u64 vcc, 0")
    e("s_cbranch_scc1 %s" % label)
    lab(label + "_done")
    e("s_mov_b32 exec_hi, -1")

def kgen_addr():
    t = VT
    c("SPLIT")
    V("bfe_u32", t, v(V_L), 4, 1); V("bfe_u32", t + 1, v(V_L), 2, 1); V("lshl_or_b32", t, v(t), 1, v(t + 1))
    V("bfe_u32", t + 1, v(V_L), 3, 1); V("and_b32", t + 2, 3, v(V_L)); V("lshl_or_b32", t + 1, v(t + 1), 2, v(t + 2))
    e("v_cmp_eq_u32 s[4:5], 0, v%d" % t)
    e("v_cmp_eq_u32 vcc, 1, v%d" % t)
    e("s_bitcmp1_b32 %s, 0" % WV)
    csel(T0, 0x11100000, 0x76543210); csel(T1, 0x11100000, 0x43222100); csel(T2, 0x11100000, 0x22111000); csel(T3, 0x19171513, 0x100d0800)
    V("mov_b32", t + 2, T2); V("mov_b32", t + 3, T1); V("cndmask_b32", t + 2, v(t + 2), v(t + 3), "vcc")
    V("mov_b32", t + 3, T0); V("cndmask_b32", t + 2, v(t + 2), v(t + 3), "s[4:5]")
    V("lshlrev_b32", t + 1, 2, v(t + 1)); V("bfe_u32", t + 2, v(t + 2), v(t + 1), 4)
    V("lshlrev_b32", t, 3, v(t)); V("bfe_u32", t, T3, v(t), 8); V("add_u32", t, v(t), v(t + 2))
    V("lshrrev_b32", t + 1, 5, v(V_L)); V("and_b32", t + 2, 31, v(V_L))
    e("s_cselect_b32 %s, 2048, 0" % T3)
    e("s_cselect_b32 %s, 0, -1" % CNT)
    e("s_bitcmp1_b32 %s, 1" % WV)
    csel(T0, L_TA + 14256, L_TA); csel(T1, L_TB + 16896, L_TB); csel(T2, L_KF + 4160 + 64, L_KF + 64)
    sadd(T2, T2, T3)
    V("mul_u32_u24", t, 528, v(t)); V("lshl_add_u32", t + 3, v(t + 1), 4, T0); V("add_u32", PV_GA, v(t), v(t + 3))
    V("mul_u32_u24", t, 528, v(t + 2)); V("lshl_add_u32", t + 3, v(t + 1), 4, T1); V("add_u32", PV_GB, v(t), v(t + 3))
    V("lshl_add_u32", t, v(t + 1), 9, T2); V("lshl_add_u32", PV_GW, v(t + 2), 4, v(t))
    e("s_waitcnt lgkmcnt(0)")
    sadd(TAG, TAG, 1)
    e("s_bitcmp1_b32 %s, 1" % WV)
    e("s_cselect_b32 %s, 0, 16" % T0)
    sshl(T0, DS2, T0); sand(T0, T0, 0xffff0000); sand(T0, T0, CNT)
    e("v_cmp_eq_u32 vcc, 0, v%d" % V_L)
    V("mov_b32", PV_GD, T0)
    sand(T1, WV, 3); sshl(T1, T1, 8); sadd(T1, T1, L_UP + 128)
    V("cndmask_b32", PV_GD, 0, v(PV_GD), "vcc")
    V("lshl_add_u32", PV_US, v(V_L), 1, T1)

def pads():
    t = VT
    c("SPLIT")
    for i in range(4): V("mov_b32", t + 4 + i, 0)
    V("lshrrev_b32", t, 3, v(V_L)); V("mul_u32_u24", t, 1152, v(t)); V("and_b32", t + 1, 7, v(V_L)); V("lshl_add_u32", t, v(t + 1), 4, v(t)); V("add_u32", t, L_UP, v(t))
    V("bfe_u32", t + 1, v(V_L), 2, 1); V("mul_u32_u24", t + 1, 4160, v(t + 1)); V("and_b32", t + 2, 3, v(V_L)); V("lshl_add_u32", t + 1, v(t + 2), 4, v(t + 1)); V("add_u32", t + 1, L_KF, v(t + 1))
    V("lshlrev_b32", t + 2, 4, v(t + 2)); V("add_u32", t + 2, L_FL, v(t + 2))
    for k in range(3): e("ds_write_b128 v%d, %s" % (t + k, vr(t + 4, 4)))

def loader_path():
    c("======== loader waves ========")
    if OPT["gprio"] == 2: e("s_setprio 1")
    loader_addr()
    e("s_waitcnt lgkmcnt(0)")
    stamp("karg")
    srd(R_X, S_X, 2048 * 1024); srd(R_W, S_W, 512 * 3072)
    scalar_loads()
    issue_chunk(0)
    if OPT["echo"]: stamp("i0")
    srd(R_WS, S_WS, WS_SIZE); srd(R_OUT, S_OUT, 2048 * 2048); srd(R_WO, S_WO, 512 * 1024)
    late = capture(lambda: (precompute_conv(), precompute(), kgen_addr(), pads()))
    def upto(n):
        while n < len(late) and "SPLIT" not in late[n]: n += 1
        SINK[0].extend(late[:n]); del late[:n]
    upto(OPT["npre"])
    if OPT["echo"]: stamp("pre")
    issue_chunk(1)
    if OPT["echo"]: stamp("i1")
    waits = [8, 8, 8, 8, 8, 8, 9, 1]
    for ci in range(8):
        c("loader chunk %d" % ci)
        e("s_waitcnt vmcnt(%d)" % waits[ci])
        if OPT["echo"] and ci in (0, 1, 2): stamp("ld%d" % ci)
        if OPT["ldst"] and ci in (0, 1, 2, 3, 4): e("s_memrealtime s[%d:%d]" % (80 + 4 * ci, 81 + 4 * ci))
        e("s_barrier")
        if OPT["ldst"] and ci in (0, 1, 2, 3, 4): e("s_memrealtime s[%d:%d]" % (82 + 4 * ci, 83 + 4 * ci))
        if ci in (0, 7): stamp("ch%d" % ci)
        if ci + 2 < 8: issue_chunk(ci + 2)
        if ci < 5 and OPT["lsp"]: upto(OPT["lsp"])
        if ci == 5:
            sshl(T5, XQ, 12); sadd(T5, T5, WS_F0)
            V("lshlrev_b32", 42, 7, v(V_L))
            e("s_mov_b32 exec_hi, 0")
            e("buffer_load_dword v%d, v42, %s, %s offen sc1" % (G_PL, R_WS, T5))
            e("s_mov_b32 exec_hi, -1")
            upto(len(late) // 2)
        if ci == 6: upto(9999)
    poll("L_poll0", T5, first_issued=G_PL, nwait=0)
    c("u of this WG's channel pair (transposed by the group)")
    sshl(T0, XQ, 5); sadd(T0, T0, I5); sshl(T0, T0, 13); sadd(T0, T0, T4); sadd(T0, T0, WS_U2)
    e("buffer_load_dwordx4 %s, v%d, %s, %s offen sc1" % (vr(U2R, 4), V_L16, R_WS, T0))
    e("buffer_load_dwordx4 %s, v%d, %s, %s offen offset:1024 sc1" % (vr(U2R + 4, 4), V_L16, R_WS, T0))
    e("s_barrier")
    stamp("K1")
    c("---- S4 kernel K = A-table x B-table (rows duplicated to realise bf16(l)) ----")
    FA, FB, AC = 96, 128, 160
    def rd(s):
        e("ds_read_b128 %s, v%d offset:%d" % (vr(FA + 4 * (s % 8), 4), PV_GA, 32 * s))
        e("ds_read_b128 %s, v%d offset:%d" % (vr(FB + 4 * (s % 8), 4), PV_GB, 32 * s))
    for s in range(7): rd(s)
    e("v_and_b32 v%d, 1, v%d" % (VT, V_L))
    e("v_cmp_eq_u32 vcc, 0, v%d" % VT)
    uw = []
    for h in range(2):
        for p in range(4):
            uw.append("    ds_write_b16 v%d, v%d offset:%d" % (PV_US, U2R + 4 * h + p, 1152 * p + 128 * h))
            uw.append("    ds_write_b16_d16_hi v%d, v%d offset:%d" % (PV_US, U2R + 4 * h + p, 4608 + 1152 * p + 128 * h))
    nw = 0
    for s in range(16):
        e("s_waitcnt lgkmcnt(%d)" % (2 * (min(s + 6, 15) - s) + nw))
        e("v_mfma_f32_32x32x16_bf16 %s, %s, %s, %s" % (vr(AC, 16), vr(FA + 4 * (s % 8), 4), vr(FB + 4 * (s % 8), 4), "0" if s == 0 else vr(AC, 16)))
        if s + 7 < 16: rd(s + 7)
        if s == 10:
            stamp("preU")
            e("s_waitcnt vmcnt(0)")
            stamp("gotU")
        if 10 <= s < 15:
            SINK[0].extend(uw[nw:nw + 3]); nw += 3
    SINK[0].extend(uw[15:])
    nop(11)
    V("add_f32", AC, v(AC), v(PV_GD))
    e("s_bitcmp1_b32 %s, 0" % WV)
    e("s_cbranch_scc0 L_kg_nofix")
    V("cndmask_b32", AC + 4, v(AC + 5), v(AC + 3), "vcc"); V("cndmask_b32", AC + 12, v(AC + 13), v(AC + 11), "vcc")
    lab("L_kg_nofix")
    for i in range(8): V("cvt_pk_bf16_f32", FA + i, v(AC + 2 * i), v(AC + 2 * i + 1))
    e("ds_write_b128 v%d, %s" % (PV_GW, vr(FA, 4)))
    e("ds_write_b128 v%d, %s offset:1024" % (PV_GW, vr(FA + 4, 4)))
    e("s_branch L_gemm_done")

def cmul_multi(lst):
    for d, a, b in lst:
        e("v_pk_mul_f32 %s, %s, %s op_sel:[0,0] op_sel_hi:[1,0]" % (vr(d, 2), vr(a, 2), vr(b, 2)))
    for d, a, b in lst:
        e("v_pk_fma_f32 %s, %s, %s, %s op_sel:[1,1,0] op_sel_hi:[0,1,1] neg_lo:[1,0,0]" % (vr(d, 2), vr(a, 2), vr(b, 2), vr(d, 2)))
def cexp_multi(lst, va, vb):
    for d, Lf, t, cj in lst:
        V("mul_f32", t, fl(Lf), v(va)); V("mul_f32", t + 1, fl(-Lf if cj else Lf), v(vb)); V("fract_f32", t + 1, v(t + 1))
    for d, Lf, t, cj in lst:
        V("exp_f32", t, v(t)); V("cos_f32", d, v(t + 1)); V("sin_f32", d + 1, v(t + 1))
    e("s_nop 0")
    for d, Lf, t, cj in lst:
        e("v_pk_mul_f32 %s, %s, %s op_sel:[0,0] op_sel_hi:[1,0]" % (vr(d, 2), vr(d, 2), vr(t, 2)))

KVA, KVB, KVD = 220, 221, 25
def kgen_b():
    c("---- S4 mode tables: B = exp(z*8j) -> LDS ----")
    va, vb, vdt, ta = KVA, KVB, KVD, VT + 4
    e("s_bitcmp1_b32 %s, 1" % WV)
    e("s_cselect_b32 %s, 0, 16" % T0)
    sshl(T0, LD2, T0); sand(T0, T0, 0xffff0000)
    V("mov_b32", vdt, fl(LOG2E)); V("mul_f32", vdt, T0, v(vdt)); V("exp_f32", vdt, v(vdt))
    for i in range(2): V("lshlrev_b32", V_PAR + i, 16, v(V_PAR + i))
    V("cvt_pk_bf16_f32", vdt, v(vdt), v(vdt)); V("and_b32", vdt, 0xffff0000, v(vdt))
    V("mul_f32", va, v(vdt), v(V_PAR)); V("mul_f32", vb, v(vdt), v(V_PAR + 1))
    V("mul_f32", va, fl(LOG2E), v(va)); V("mul_f32", vb, fl(1.0 / (2 * math.pi)), v(vb))
    P = lambda j: KB + 2 * j
    G = lambda k: KB + 16 + 2 * k
    X = KB + 24
    cv = [KB + 40 + i for i in range(8)]
    n = [0]
    def putb(row, pr):
        r = cv[n[0] % 8]; n[0] += 1
        V("cvt_pk_bf16_f32", r, v(pr), v(pr + 1))
        e("ds_write_b32 v46, v%d offset:%d" % (r, row * 528))
    cexp_multi([(P(1), 8.0, ta, 0), (G(1), 64.0, ta + 2, 0)], va, vb)
    V("mov_b32", cv[7], 0x3f80); e("ds_write_b32 v46, v%d" % cv[7])
    cmul_multi([(P(2), P(1), P(1)), (G(2), G(1), G(1))])
    putb(1, P(1)); putb(8, G(1))
    cmul_multi([(P(3), P(2), P(1)), (P(4), P(2), P(2)), (G(3), G(2), G(1))])
    putb(2, P(2)); putb(16, G(2))
    cmul_multi([(P(5), P(4), P(1)), (P(6), P(4), P(2)), (P(7), P(4), P(3))])
    for r, p in ((3, P(3)), (4, P(4)), (24, G(3)), (5, P(5)), (6, P(6)), (7, P(7))): putb(r, p)
    for k in range(1, 4):
        cmul_multi([(X + 2 * j, P(j), G(k)) for j in range(1, 8)])
        for j in range(1, 8): putb(8 * k + j, X + 2 * j)

def kgen_a():
    va, vb, vdt, ta = KVA, KVB, KVD, VT + 4
    E = lambda j: 224 + 2 * j - 2
    Q = lambda j: 160 + 2 * j
    H = lambda k: 176 + 2 * k
    X = 224
    def puta(row, pr): V("cvt_pk_bf16_f32", KR + row, v(pr), v(pr + 1))
    cexp_multi([(E(1), 1.0, ta, 1), (H(1), 256.0, ta + 2, 1)], va, vb)
    for i in range(2, 6): V("lshlrev_b32", V_PAR + i, 16, v(V_PAR + i))
    V("mul_f32", ta, v(vdt), v(V_PAR + 2)); e("v_mul_f32 v%d, -v%d, v%d" % (ta + 1, vdt, V_PAR + 3))
    V("mov_b32", ta + 2, v(V_PAR + 4)); V("mul_f32", ta + 3, "-1.0", v(V_PAR + 5))
    cmul_multi([(Q(0), ta, ta + 2), (E(2), E(1), E(1)), (H(2), H(1), H(1))])
    cmul_multi([(E(3), E(2), E(1)), (E(4), E(2), E(2)), (H(3), H(2), H(1)), (H(4), H(2), H(2))])
    puta(0, Q(0))
    cmul_multi([(E(5), E(4), E(1)), (E(6), E(4), E(2)), (E(7), E(4), E(3)), (E(8), E(4), E(4)), (H(5), H(4), H(1)), (H(6), H(4), H(2)), (H(7), H(4), H(3))])
    cmul_multi([(Q(j), Q(0), E(j)) for j in range(1, 9)])
    for j in range(1, 8): puta(j, Q(j))
    cmul_multi([(X + 2 * i, H(1), Q(2 * i)) for i in range(5)] + [(X + 10 + 2 * i, H(2), Q(4 * i)) for i in range(3)])
    for i in range(8): puta(8 + i, X + 2 * i)
    cmul_multi([(X + 2 * i, H(3), Q(4 * i)) for i in range(3)] + [(X + 6, H(4), Q(0)), (X + 8, H(4), Q(8)), (X + 10, H(5), Q(0)), (X + 12, H(5), Q(8))])
    for i in range(7): puta(16 + i, X + 2 * i)
    cmul_multi([(X, H(6), Q(0)), (X + 2, H(6), Q(8)), (X + 4, H(7), Q(0)), (X + 6, H(7), Q(8))])
    for i in range(4): puta(23 + i, X + 2 * i)

def compute_path():
    t = VT
    lab("L_compute")
    if OPT["gprio"] == 1: e("s_setprio 1")
    c("======== compute waves ========")
    e("s_bfe_u32 %s, %s, 0x10001" % (T0, WV)); sadd(T0, T0, C0); sshl(T0, T0, 8); sand(T1, WV, 1); sshl(T1, T1, 7); sadd(T0, T0, T1)
    V("lshl_add_u32", V_PA, v(V_L), 1, T0)
    e("s_waitcnt lgkmcnt(0)")
    stamp("karg")
    if OPT["pfx"]:
        c("touch this WG's 1/256 share of x and Wqkv so that HBM streams them in at once")
        V("lshlrev_b32", 252, 7, v(V_L)); V("min_u32", 253, 47 * 128, v(252))
        sshl(T0, "s2", 13); smul(T1, "s2", 6144)
        V("add_u32", 252, T0, v(252)); V("add_u32", 253, T1, v(253))
        e("s_cmp_eq_u32 %s, 0" % WV)
        e("s_cbranch_scc0 L_pfx1")
        e("global_load_dword v252, v252, %s" % sr(S_X, 2))
        lab("L_pfx1")
        e("s_cmp_eq_u32 %s, 1" % WV)
        e("s_cbranch_scc0 L_pfx2")
        e("global_load_dword v253, v253, %s" % sr(S_W, 2))
        lab("L_pfx2")
    for i, s in enumerate((S_ARE, S_AIM, S_BRE, S_BIM, S_CRE, S_CIM)):
        e("global_load_ushort v%d, v%d, %s" % (V_PAR + i, V_PA, sr(s, 2)))
    scalar_loads()
    srd(R_U, S_U, 2048 * 1024)
    u_coop_loads()
    if OPT["pfw"]:
        c("XCD slots 0..3 usually start first: warm the memory-side cache with the W columns of head quads 4..7")
        e("s_cmp_eq_u32 %s, 0" % WV); e("s_cbranch_scc0 L_pfw")
        e("s_cmp_lt_u32 %s, 4" % XQ); e("s_cbranch_scc0 L_pfw")
        sshl(T0, XQ, 5); sadd(T0, T0, I5); smul(T0, T0, 4 * 3072); sadd(T0, T0, 512)
        V("min_u32", 252, 47, v(V_L)); V("mul_u32_u24", 253, 0x1556, v(252)); V("lshrrev_b32", 253, 16, v(253))
        V("mul_u32_u24", 254, 12, v(253)); V("sub_u32", 252, v(252), v(254))
        V("mul_u32_u24", 253, 3072, v(253)); V("lshrrev_b32", 254, 2, v(252)); V("lshl_add_u32", 253, v(254), 10, v(253))
        V("and_b32", 252, 3, v(252)); V("lshl_add_u32", 253, v(252), 7, v(253)); V("add_u32", 253, T0, v(253))
        e("global_load_dword v253, v253, %s" % sr(S_W, 2))
        e("s_branch L_pfw2")
        lab("L_pfw")
        e("global_load_dword v253, v%d, %s" % (V_L16, sr(S_W, 2)))
        lab("L_pfw2")
    if OPT["pf"] == 1:
        c("pull this WG's 1/32 share of the code into L2")
        e("s_getpc_b64 s[4:5]")
        lab("L_pc")
        sshl(T0, I5, 3); V("add_u32", t, T0, v(V_L)); V("lshlrev_b32", t, 7, v(t))
        e("v_min_u32 v%d, L_end-L_pc-4, v%d" % (t, t))
        e("s_mov_b64 exec, 0xff")
        e("global_load_dword v47, v%d, s[4:5]" % t)
        e("s_mov_b64 exec, -1")
    srd(R_WS, S_WS, WS_SIZE); srd(R_OUT, S_OUT, 2048 * 2048); srd(R_WO, S_WO, 512 * 1024)
    gemm_read_addr()
    e("s_waitcnt vmcnt(%d) lgkmcnt(0)" % (8 + (OPT["pf"] == 1) + OPT["pfw"]))
    sadd(TAG, TAG, 1)
    if OPT["echo"]: stamp("par")
    kgen_b()
    pc = [x for x in capture(kgen_a) if not x.strip().startswith(";")]
    if OPT["apre"]:
        e("s_waitcnt vmcnt(%d)" % (4 + (OPT["pf"] == 1) + OPT["pfw"]))
        SINK[0].extend(pc[:OPT["apre"]]); del pc[:OPT["apre"]]
    if OPT["uat"] < 0:
        u_coop_perm(); e("s_waitcnt lgkmcnt(0)"); u_coop_stores()
    if OPT["echo"]: stamp("cp0")
    if "F" in OPT["abl"]: pc = pc[:20]
    if "U" in OPT["abl"]: pc = pc[20:]
    def f0flag():
        sshl(I0, XQ, 5); sadd(I0, I0, I5); sshl(I0, I0, 7); sadd(I0, I0, WS_F0)
        flag_store(I0, 26)
    def fill(n):
        for _ in range(n):
            if pc: SINK[0].append(pc.pop(0))
    def ml(s, first=False):
        cc = lambda k: "0" if first else vr(G_ACC[k], 16)
        return ["v_mfma_f32_32x32x16_bf16 %s, %s, %s, %s" % (vr(G_ACC[0], 16), vr(G_W0F + 4 * s, 4), vr(G_XF + 4 * s, 4), cc(0)),
                "v_mfma_f32_32x32x16_bf16 %s, %s, %s, %s" % (vr(G_ACC[1], 16), vr(G_W1F + 4 * s, 4), vr(G_XF + 4 * s, 4), cc(1)),
                "v_mfma_f32_32x32x16_bf16 %s, %s, %s, %s" % (vr(G_ACC[2], 16), vr(G_XF + 4 * s, 4), vr(G_VF + 4 * s, 4), cc(2))]
    def ilv(ms, rs, nf):
        k = 0
        for i, m in enumerate(ms):
            if "M" not in OPT["abl"] or m.endswith(", 0"): e(m)
            upto = (len(rs) * (i + 1) + len(ms) - 1) // len(ms)
            SINK[0].extend(rs[k:upto]); k = upto
            fill(nf)
    for ci in range(8):
        c("compute chunk %d" % ci)
        hi = (ci % 3) == 2
        ib = 32768 if ci % 3 == 1 else 0
        xa = G_XA + (4 if hi else 0)
        wa = G_WB if hi else G_WA
        if ci == 4: e("s_waitcnt vmcnt(0)")
        e("s_barrier")
        if ci in (0, 7): stamp("ch%d" % ci)
        if ci == 4: f0flag()
        def reads(s):
            if "R" in OPT["abl"]: return
            e("ds_read_b128 %s, v%d offset:%d" % (vr(G_XF + 4 * s, 4), xa + s, ib))
            for k, f in enumerate((G_W0F, G_W1F, G_VF)):
                for tt in range(2):
                    e("ds_read_b64_tr_b16 %s, v%d offset:%d" % (vr(f + 4 * s + 2 * tt, 2), wa + k, ib + (16 * s + 4 * tt) * 128))
        r0, r1 = capture(reads, 0), capture(reads, 1)
        nf = 1 if ci != OPT["uat"] and ci < 7 else 0
        if ci > 0:
            SINK[0].extend(r0[:3]); ilv(ml(3), r0[3:] + r1[:5], 0); SINK[0].extend(r1[5:])
        else: SINK[0].extend(r0 + r1)
        if ci == OPT["uat"] + 1 and OPT["ust2"]: u_coop_stores()
        fill(OPT["f0"] * nf)
        e("s_waitcnt lgkmcnt(7)"); ilv(ml(0, ci == 0), capture(reads, 2), nf)
        e("s_waitcnt lgkmcnt(7)"); ilv(ml(1), capture(reads, 3), nf)
        e("s_waitcnt lgkmcnt(7)")
        if ci < 7:
            if ci == OPT["uat"]: ilv(ml(2), capture(u_coop_perm), 0)
            else: ilv(ml(2), [], OPT["f2"] * nf)
            if ci == 6: fill(999)
            e("s_waitcnt lgkmcnt(0)")
            if ci == OPT["uat"] and not OPT["ust2"]: u_coop_stores()
    tw = ["    ds_write_b32 v%d, v%d offset:%d" % (PV_TW, KR + r, r * 528) for r in range(27)]
    ilv(ml(2), tw[:8], 0)
    e("s_waitcnt lgkmcnt(8)")
    ilv(ml(3), tw[8:], 0)
    sadd(T1, sQKV, WS_K); sadd(T2, sQKV, WS_K + 65536); sadd(T3, sQKV, WS_V); sadd(T4, sQKV, WS_Q + 65536); sadd(T0, sQKV, WS_Q)
    e("s_waitcnt lgkmcnt(0)")
    e("s_barrier")
    stamp("K1")
    c("GEMM epilogue: publish Q,K,V")
    P = G_XF
    def pk(dst, src):
        for i in range(4): V("cvt_pk_bf16_f32", dst + i, v(src + 2 * i), v(src + 1 + 2 * i))
    def st(r, va, so, off=0):
        e("buffer_store_dwordx4 %s, v%d, %s, %s offen%s sc1" % (vr(r, 4), va, R_WS, so, " offset:%d" % off if off else ""))
    pk(P, G_ACC[0] + 8); st(P, PV_QS, T1)
    pk(P + 4, G_ACC[1] + 8); st(P + 4, PV_QS, T2)
    pk(P + 8, G_ACC[2]); st(P + 8, PV_VS, T3)
    pk(P + 12, G_ACC[2] + 8); st(P + 12, PV_VS, T3, 512)
    for k, so in ((0, T0), (1, T4)):
        for i in range(8): V("mul_f32", G_ACC[k] + i, fl(0.25 * LOG2E), v(G_ACC[k] + i))
        pk(P + 16 + 4 * k, G_ACC[k]); st(P + 16 + 4 * k, PV_QS, so)
    stamp("pub")
    precompute_conv()
    if OPT["gsig"] < 0: signal("p", 16, 3, sF1)

C_LO, C_UP = 128, 144
C_A, C_X, C_Y = 160, 176, 192
def signal(tag, cnt_off, last, soff):
    t = VT + 4
    V("mov_b32", t + 2, L_FL + cnt_off); V("mov_b32", t + 3, 1)
    stamp("presig" + ("1" if cnt_off == 16 else "2"))
    e("s_waitcnt vmcnt(0)")
    stamp("acked" + ("1" if cnt_off == 16 else "2"))
    e("s_mov_b64 exec, 1")
    e("ds_add_rtn_u32 v%d, v%d, v%d" % (t + 3, t + 2, t + 3))
    e("s_mov_b64 exec, -1")
    e("s_waitcnt lgkmcnt(0)")
    e("v_readfirstlane_b32 %s, v%d" % (T0, t + 3))
    e("s_cmp_eq_u32 %s, %d" % (T0, last))
    e("s_cbranch_scc0 L_sig_%s" % tag)
    flag_store(soff, t)
    lab("L_sig_%s" % tag)

def attn_init():
    V("and_b32", 31, 31, v(V_L)); e("v_cmp_eq_u32 vcc, 16, v31"); V("mov_b32", 31, 0x3f803f80); V("mov_b32", 255, 0xdddddddd)
    e("s_mov_b32 s4, 0xffff"); e("s_mov_b32 s5, 0xffff")
    for i in range(16): V("cndmask_b32", 208 + i, 0, v(31), "vcc")
    for i in range(32): V("mov_b32", 72 + i, 0)

def conv_job(T, s0, nfull, tail, va, vb, sig=None, sig_after=1, fills=None, bar_after=-1, zw=None, row0=0):
    def rdA(k, sg):
        e("ds_read_b64_tr_b16 %s, v%d offset:%d" % (vr(C_A + 4 * k, 2), va, 128 * sg + 32))
        e("ds_read_b64_tr_b16 %s, v%d offset:%d" % (vr(C_A + 4 * k + 2, 2), va, 128 * sg))
    def rdB(dst, k, sg):
        e("ds_read_b128 %s, v%d offset:%d" % (vr(dst + 4 * k, 4), vb, 112 + 128 * T - 32 * sg))
    def mf(acc, k, b, first=False):
        e("v_mfma_f32_32x32x16_bf16 %s, %s, %s, %s" % (vr(acc, 16), vr(C_A + 4 * k, 4), vr(b + 4 * k, 4), "0" if first else vr(acc, 16)))
        for _ in range(OPT["cfill"]):
            if fl_: SINK[0].append(fl_.pop(0))
    fl_ = list(fills or [])
    pend = []
    def note(step, n): pend.extend([step] * n)
    def wait(step):
        n = sum(1 for x in pend if x > step)
        e("s_waitcnt lgkmcnt(%d)" % n)
        pend[:] = [x for x in pend if x > step]
    if sig and sig_after == -2: sig()
    for k in range(4):
        rdA(k, s0 + k); rdB(C_Y, k, s0 + k - 4); rdB(C_X, k, s0 + k); note(k, 4)
    cur, old = C_X, C_Y
    if sig and sig_after == 0: sig(); del pend[:]
    if bar_after == 0: e("s_barrier")
    for sec in range(nfull):
        for k in range(4):
            st = 4 * sec + k
            wait(st)
            mf(C_UP, k, old, st == 0)
            if sec + 1 < nfull: rdB(old, k, s0 + st + 4); note(st + 4, 1)
            mf(C_LO, k, cur, st == 0)
            if sec + 1 < nfull or tail: rdA(k, s0 + st + 4); note(st + 4, 2)
        cur, old = old, cur
        if sig and sec + 1 == sig_after: sig(); del pend[:]
        if sec + 1 == bar_after: e("s_barrier")
    wr = lambda acc, k, r: e("ds_write_b128 v%d, %s offset:%d" % (zw, vr(acc + 4 * k, 4), 144 * r + 32 * k))
    if tail:
        wait(4 * nfull); mf(C_UP, 0, old)
        e("s_waitcnt lgkmcnt(0)")
        nop(7)
        wr(C_LO, 0, row0); wr(C_LO, 1, row0); mf(C_UP, 1, old)
        wr(C_LO, 2, row0); wr(C_LO, 3, row0); mf(C_UP, 2, old); mf(C_UP, 3, old)
        nop(12)
        for k in range(4): wr(C_UP, k, row0 + 8)
    else:
        nop(11)
        for k in range(4): wr(C_UP, k, row0 + 8)
        for k in range(4): wr(C_LO, k, row0)

def conv():
    c("---- causal conv as Toeplitz MFMA, output tiles 0..5 ----")
    ini = capture(attn_init)
    e("s_cmp_ge_u32 %s, 4" % WV)
    e("s_cbranch_scc1 L_conv_hi")
    e("s_bitcmp1_b32 %s, 0" % WV)
    e("s_cbranch_scc1 L_conv_2a")
    if OPT["jprio"]: e("s_setprio 1")
    conv_job(0, 0, 1, True, PV_CA, PV_CB, lambda: signal("a", 16, 3, sF1), min(1, OPT["gsig"]), zw=PV_ZW, row0=0)
    e("s_branch L_conv_done")
    lab("L_conv_2a")
    conv_job(4, 0, 3, False, PV_CA, PV_CB, lambda: signal("b", 16, 3, sF1), OPT["gsig"], zw=PV_ZW, row0=32)
    e("s_branch L_conv_done")
    lab("L_conv_hi")
    e("s_bitcmp1_b32 %s, 0" % WV)
    e("s_cbranch_scc1 L_conv_2b")
    conv_job(2, 0, 3, True, PV_CA, PV_CB, zw=PV_ZW, row0=16)
    e("s_branch L_conv_done")
    lab("L_conv_2b")
    conv_job(4, 12, 2, True, PV_CA, PV_CB, zw=PV_ZW, row0=32 + 17)
    lab("L_conv_done")
    stamp("cend")

def kv_tiles(msrc, soff):
    e("s_mov_b32 m0, %s" % msrc)
    e("s_nop 0")
    for i in range(8):
        if i == 4: sadd("m0", "m0", 4096); sadd(soff, soff, 4096)
        e("buffer_load_dwordx4 v%d, %s, %s offen offset:%d sc1 lds" % (V_L16, R_WS, soff, 1024 * (i % 4)))

def q_loads():
    e("buffer_load_dwordx4 %s, v%d, %s, %s offen sc1" % (vr(64, 4), V_L16, R_WS, sQL))
    e("buffer_load_dwordx4 %s, v%d, %s, %s offen offset:1024 sc1" % (vr(68, 4), V_L16, R_WS, sQL))

def kv_early():
    t = VT
    e("s_cmp_ge_u32 %s, 4" % WV)
    e("s_cbranch_scc1 L_kve_done")
    e("s_bitcmp1_b32 %s, 0" % WV)
    e("s_cbranch_scc0 L_kve_poller")
    attn_init(); precompute(); precompute_tail(1)
    e("s_branch L_kve_done")
    lab("L_kve_poller")
    work = [x for x in capture(precompute) + capture(precompute_tail, 1) if "SPLIT" not in x]
    SINK[0].extend(work[:OPT["pat"]])
    V("lshlrev_b32", 28, 7, v(V_L))
    e("s_mov_b32 exec_hi, 0")
    e("buffer_load_dword v29, v28, %s, %s offen sc1" % (R_WS, sF1P))
    e("s_mov_b32 exec_hi, -1")
    SINK[0].extend(work[OPT["pat"]:])
    e("s_cmp_eq_u32 %s, 0" % WV)
    e("s_cbranch_scc0 L_kve_w2")
    for i in range(4): V("mov_b32", C_A + i, 0)
    V("and_b32", t + 2, 7, v(V_L)); V("mul_u32_u24", t + 2, ZS, v(t + 2)); V("bfe_u32", t + 3, v(V_L), 3, 1); V("mul_u32_u24", t + 3, 49 * 144, v(t + 3))
    V("add_u32", t + 2, v(t + 2), v(t + 3)); V("add_u32", t + 2, L_Z + 112, v(t + 2))
    e("ds_write_b128 v%d, %s" % (t + 2, vr(C_A, 4)))
    e("s_mov_b32 %s, 0" % T5); sadd(T3, sHB, WS_K)
    e("s_branch L_kve_go")
    lab("L_kve_w2")
    e("s_mov_b32 %s, 8192" % T5); sadd(T3, sHB, WS_V)
    lab("L_kve_go")
    poll("L_poll1", sF1P, first_issued=29, t=28)
    stamp("poll1")
    sshl(T0, JR, 13); sadd(T0, T0, T3)
    kv_tiles(T5, T0)
    if not OPT["b1late"]:
        sadd(T0, JR, 1); sand(T0, T0, 7); sshl(T0, T0, 13); sadd(T0, T0, T3); sadd(T5, T5, BLK)
        kv_tiles(T5, T0)
    attn_init()
    lab("L_kve_done")

A_Q = [64, 68]
A_S = [104, 120]
A_O = [72, 88]
A_KF = [136, 140]
A_VA = [208, 212]
A_VB = [216, 220]
A_IDX = 63 + 192
A_F = 164
A_NM = 120
WOR = 192
Y_R = 32
def conv_epilogue():
    c("y[t] = sum_p Z_p[t-p]")
    e("s_waitcnt lgkmcnt(0)")
    e("s_barrier")
    stamp("zbar")
    q_loads()
    order = [(0, 0), (0, 4 * ZS), (288, 0), (288, 4 * ZS), (0, 0), (17 * 144, 0), (0, 4 * ZS), (17 * 144, 4 * ZS)]
    def rd(n):
        if n == 4:
            for p in range(4): V("add_u32", PV_ZR + p, T0, v(PV_ZR + p))
        for p in range(4): e("ds_read_b32 v%d, v%d offset:%d" % (Y_R + 4 * n + p, PV_ZR + p, sum(order[n])))
    rd(0); rd(1); rd(2)
    smul(T0, WV, 288); e("s_sub_u32 %s, 4608, %s" % (T0, T0))
    e("s_cmp_eq_u32 %s, 6" % WV)
    e("s_cbranch_scc0 L_nocarry")
    c("carry: last rows of tile 5 (both partials) feed y[1536..1538], finished in the tail")
    t = VT
    for i in range(4): V("mov_b32", PV_CY + i, 0)
    V("and_b32", t, 7, v(V_L)); V("mul_u32_u24", t, ZS, v(t)); V("bfe_u32", t + 1, v(V_L), 3, 1); V("mul_u32_u24", t + 1, 17 * 144, v(t + 1))
    V("add_u32", t, v(t), v(t + 1)); V("add_u32", t, L_Z + 48 * 144 + 112, v(t))
    e("s_mov_b64 exec, 0xffff")
    e("ds_read_b128 %s, v%d" % (vr(PV_CY, 4), t))
    e("s_mov_b64 exec, -1")
    e("s_waitcnt lgkmcnt(0)")
    lab("L_nocarry")
    for n in range(8):
        r = Y_R + 4 * n
        e("s_waitcnt lgkmcnt(%d)" % (4 * (min(n + 2, 7) - n)))
        if n + 3 < 8: rd(n + 3)
        V("add_f32", r, v(r), v(r + 1)); V("add_f32", r + 2, v(r + 2), v(r + 3)); V("add_f32", r, v(r), v(r + 2))
        if n in (1, 3): V("cvt_pk_bf16_f32", V_Y + n // 2, v(r - 4), v(r))
        if n in (5, 7): V("add_f32", r, v(r), v(r - 4))
    V("cvt_pk_bf16_f32", V_Y + 2, v(Y_R + 20), v(Y_R + 28))

def kv_late():
    t = VT
    e("s_cmp_ge_u32 %s, 4" % WV)
    if OPT["b1late"]:
        e("s_cbranch_scc1 L_kvl")
        e("s_waitcnt vmcnt(0)")
        e("s_barrier")
        stamp("S")
        e("s_branch L_kvl_done")
        lab("L_kvl")
    else: e("s_cbranch_scc0 L_kvl_done")
    sand(T1, WV, 3); sshl(T0, T1, 2); sadd(T0, T0, L_FL)
    V("mov_b32", t, T0); V("mov_b32", t + 1, 2); V("mov_b32", t + 2, 3); V("mov_b32", t + 3, 1)
    sshl(T1, T1, 11); sadd(T0, sHB, T1)
    for b in range(1 if OPT["b1late"] else 2, 8):
        sadd(T2, JR, b); sand(T2, T2, 7); sshl(T2, T2, 13); sadd(T2, T2, T0)
        sadd("m0", T1, b * BLK); sadd(T3, T2, WS_K)
        e("buffer_load_dwordx4 v%d, %s, %s offen sc1 lds" % (V_L16, R_WS, T3))
        sadd(T4, T2, WS_V)
        e("buffer_load_dwordx4 v%d, %s, %s offen offset:1024 sc1 lds" % (V_L16, R_WS, T3))
        sadd("m0", T1, b * BLK + 8192); e("s_nop 0")
        e("buffer_load_dwordx4 v%d, %s, %s offen sc1 lds" % (V_L16, R_WS, T4))
        e("buffer_load_dwordx4 v%d, %s, %s offen offset:1024 sc1 lds" % (V_L16, R_WS, T4))
        if b == 1:
            e("s_waitcnt vmcnt(4)")
            e("s_barrier")
            stamp("S")
        if b == 2 and OPT["b1late"]:
            e("s_waitcnt vmcnt(4)")
            e("ds_write_b32 v%d, v%d" % (t, t + 3))
        if b == 5:
            e("s_waitcnt vmcnt(8)")
            e("ds_write_b32 v%d, v%d" % (t, t + 1))
    attn_init(); precompute_tail(1); precompute_tail(2)
    e("s_waitcnt vmcnt(0) lgkmcnt(0)")
    e("ds_write_b32 v%d, v%d" % (t, t + 2))
    lab("L_kvl_done")

def kv_check(stage):
    t = VT + 4
    lb = "L_kvchk%d" % stage
    V("mov_b32", t, L_FL)
    e("s_mov_b32 %s, 0" % T3)
    lab(lb)
    e("ds_read_b128 %s, v%d" % (vr(t + 2, 4), t))
    sadd(T3, T3, 1)
    e("s_waitcnt lgkmcnt(0)")
    V("min_u32", t + 2, v(t + 2), v(t + 3)); V("min3_u32", t + 2, v(t + 2), v(t + 4), v(t + 5))
    e("s_cmp_gt_u32 %s, 0x40000" % T3)
    e("s_cbranch_scc1 %s_done" % lb)
    e("v_readfirstlane_b32 %s, v%d" % (T4, t + 2))
    e("s_cmp_lt_u32 %s, %d" % (T4, stage))
    e("s_cbranch_scc1 %s" % lb)
    lab(lb + "_done")

def attn_main():
    c("---- attention main loop: wave = 2 q-tiles x 32 key tiles (parity w>>2), fully unrolled ----")
    base = [0]
    koff = lambda i: (i // 4 - base[0]) * BLK + (i % 4) * 2048
    def rdK(i):
        if i < 32: e("ds_read_b128 %s, v%d offset:%d" % (vr(A_KF[i & 1], 4), PV_KA, koff(i)))
    def rdV(i):
        if i < 32:
            e("s_mov_b64 exec, s[4:5]")
            e("ds_read_b128 %s, v%d offset:%d" % (vr(A_VA[i & 1], 4), PV_V0, koff(i)))
            e("ds_read_b128 %s, v%d offset:%d" % (vr(A_VB[i & 1], 4), PV_V0, koff(i) + 512))
            e("s_mov_b64 exec, -1")
    def qk(i, q):
        if i < 32: e("v_mfma_f32_32x32x16_bf16 %s, %s, %s, 0" % (vr(A_S[q], 16), vr(A_KF[i & 1], 4), vr(A_Q[q], 4)))
    def pv(i, q, half):
        if i < 0: return
        a = (A_VA if half == 0 else A_VB)[i & 1]
        e("v_smfmac_f32_32x32x32_bf16 %s, %s, %s, v%d" % (vr(A_O[q], 16), vr(a, 4), vr(A_S[q] + 8 * half, 8), A_IDX))
    def ex(q, lo, hi):
        for k in range(lo, hi): e("v_exp_f32 v%d, v%d" % (A_S[q] + k, A_S[q] + k))
    rdK(0); rdK(1); rdV(0)
    e("s_cmp_ge_u32 %s, 4" % WV)
    e("s_cbranch_scc1 L_prio1")
    e("s_setprio 2")
    e("s_branch L_prio_done")
    lab("L_prio1")
    e("s_setprio 1")
    lab("L_prio_done")
    e("s_waitcnt lgkmcnt(3)")
    qk(0, 0)
    nop(12)
    ytiles = OPT["yt"]; wtiles = OPT["wt"]
    for i in range(32):
        c("key tile %d" % i)
        if i in (OPT["flip1"], OPT["flip"], OPT["mid"]):
            if i == OPT["mid"]: e("s_barrier")
            e("s_cmp_ge_u32 %s, 4" % WV)
            e("s_cbranch_scc1 L_noflip%d" % i)
            e("s_setprio %d" % (2 if i == OPT["mid"] else 0))
            lab("L_noflip%d" % i)
        if i == 2 and OPT["b1late"]: kv_check(1)
        if i == 6: kv_check(2)
        if i == 14: kv_check(3)
        ex(0, 0, 2); pv(i - 1, 1, 1); ex(0, 2, 5); qk(i, 1)
        e("s_waitcnt lgkmcnt(0)")
        if i in (11, 23):
            for r in (PV_KA, PV_V0): V("add_u32", r, 3 * BLK, v(r))
            base[0] += 3
        rdK(i + 2); rdV(i + 1)
        if i in ytiles:
            n = ytiles.index(i)
            e("buffer_store_dword v%d, v%d, %s, %s offen %s" % (V_Y + n, PV_YA, R_OUT, sYS2 if n == 2 else sYS, OPT["ypol"]))
            if n == 0: sadd(sYS, sYS, 0x20000)
            if n == 2: sadd(sYS2, sYS2, 0x100000)
        if i in wtiles:
            sadd("m0", W10, L_WO + 8192 * wtiles.index(i))
            if wtiles.index(i): sadd(sWO, sWO, 0x10000)
            else: e("s_nop 0")
            e("buffer_load_dwordx4 v%d, %s, %s offen lds" % (PV_WA, R_WO, sWO))
        ex(0, 5, 11); pv(i, 0, 0); ex(0, 11, 16)
        ex(1, 0, 2); pv(i, 0, 1); ex(1, 2, 5); qk(i + 1, 0)
        ex(1, 5, 11); pv(i, 1, 0); ex(1, 11, 16)
    e("s_nop 1")
    pv(31, 1, 1)
    e("s_setprio 0")

A_G = 176
def combine():
    t = VT
    c("waves 4..7 hand their halves (odd key tiles) to waves 0..3, which finish and publish both q-tiles")
    stamp("loopend")
    e("s_waitcnt vmcnt(0)")
    e("s_barrier")
    stamp("attn")
    e("s_cmp_ge_u32 %s, 4" % WV)
    e("s_cbranch_scc0 L_cmb0")
    for q in range(2):
        e("ds_write_b32 v%d, v%d offset:%d" % (PV_CR, A_O[q] + 8, 4096 + 256 * q))
        for k in range(2): e("ds_write_b128 v%d, %s offset:%d" % (PV_CW, vr(A_O[q] + 4 * k, 4), 2048 * q + 1024 * k))
        if q == 0: nop(5)
    e("s_waitcnt lgkmcnt(0)")
    e("s_barrier")
    e("s_branch L_tail_hi")
    lab("L_cmb0")
    e("s_barrier")
    stamp("T1")
    FF = (A_F, A_G)
    for q in range(2): e("ds_read_b32 v%d, v%d offset:%d" % (FF[q] + 8, PV_CR, 4096 + 256 * q))
    for q in range(2):
        for k in range(2): e("ds_read_b128 %s, v%d offset:%d" % (vr(FF[q] + 4 * k, 4), PV_CW, 2048 * q + 1024 * k))
    e("s_waitcnt lgkmcnt(4)")
    for q in range(2): V("add_f32", FF[q] + 8, v(FF[q] + 8), v(A_O[q] + 8))
    for q in range(2): V("mov_b32", t + 1 + 2 * q, v(FF[q] + 8))
    e("s_nop 0")
    for q in range(2): e("v_permlane32_swap_b32 v%d, v%d" % (FF[q] + 8, t + 1 + 2 * q))
    for q in range(2): V("rcp_f32", t + 2 * q, v(FF[q] + 8))
    for q in range(2):
        F, P = FF[q], 32 + 4 * q
        e("s_waitcnt lgkmcnt(%d)" % (2 - 2 * q))
        if OPT["pk"]:
            for i in range(0, 8, 2): e("v_pk_add_f32 %s, %s, %s" % (vr(F + i, 2), vr(F + i, 2), vr(A_O[q] + i, 2)))
            for i in range(0, 8, 2): e("v_pk_mul_f32 %s, %s, %s op_sel_hi:[1,0]" % (vr(F + i, 2), vr(F + i, 2), vr(t + 2 * q, 2)))
        else:
            for i in range(8): V("add_f32", F + i, v(F + i), v(A_O[q] + i))
            for i in range(8): V("mul_f32", F + i, v(F + i), v(t + 2 * q))
        for i in (0, 2, 1, 3): V("cvt_pk_bf16_f32", P + i, v(F + 2 * i), v(F + 2 * i + 1))
        e("v_permlane32_swap_b32 v%d, v%d" % (P, P + 2))
        e("s_nop 0")
        e("v_permlane32_swap_b32 v%d, v%d" % (P + 1, P + 3))
        e("buffer_store_dwordx4 %s, v%d, %s, %s offen offset:%d sc1" % (vr(P, 4), V_L16, R_WS, sOST, 1024 * q))
    stamp("pubO")
    c("---- softmax guard: the fast path used shift 0; redo with the true row max if that was unsafe ----")
    V("mov_b32", t + 1, fl(2.0 ** 100))
    for q, F in ((0, A_F), (1, A_G)):
        V("mul_f32", t, 0, v(F))
        for i in range(1, 8): V("fma_f32", t, v(F + i), 0, v(t))
        e("v_cmp_nle_f32 vcc, %s, v%d" % (fl(2.0 ** -40), F + 8))
        e("v_cmp_nle_f32 s[4:5], v%d, v%d" % (F + 8, t + 1))
        e("v_cmp_neq_f32 s[6:7], 0, v%d" % t)
        e("s_or_b64 vcc, vcc, s[4:5]")
        e("s_or_b64 vcc, vcc, s[6:7]")
        if OPT["forceslow"]: e("s_mov_b64 vcc, -1")
        e("s_cmp_lg_u64 vcc, 0")
        e("s_cselect_b32 %s, 1, 0" % (T4 if q == 0 else T5))
    S("or_b32", T0, T4, T5)
    e("s_cbranch_scc1 L_slow")
    lab("L_attn_ok")

def slow_path():
    t = VT
    lab("L_slow")
    S_, KF, VA, VB = A_S[0], A_KF[0], A_VA[0], A_VB[0]
    e("s_cmp_eq_u32 %s, 0" % T4)
    e("s_cbranch_scc1 L_slow_next")
    lab("L_slow_go")
    c("slow path pass 1: true row max (K from the workspace)")
    sadd(T0, sHB, WS_K)
    V("mov_b32", t, 0xff800000)
    e("s_mov_b32 %s, 0" % CNT)
    lab("L_slow1")
    e("buffer_load_dwordx4 %s, v%d, %s, %s offen sc1" % (vr(KF, 4), V_L16, R_WS, T0))
    sadd(T0, T0, 1024)
    e("s_waitcnt vmcnt(0)")
    e("v_mfma_f32_32x32x16_bf16 %s, %s, %s, 0" % (vr(S_, 16), vr(KF, 4), vr(A_Q[0], 4)))
    nop(12)
    for k in range(0, 16, 2): V("max3_f32", t, v(t), v(S_ + k), v(S_ + k + 1))
    sadd(CNT, CNT, 1)
    e("s_cmp_lt_u32 %s, 64" % CNT)
    e("s_cbranch_scc1 L_slow1")
    V("mov_b32", t + 1, v(t))
    e("s_nop 1")
    e("v_permlane32_swap_b32 v%d, v%d" % (t, t + 1))
    e("s_nop 1")
    V("max_f32", t, v(t), v(t + 1))
    for k in range(16): V("mul_f32", A_NM + k, "-1.0", v(t))
    c("slow path pass 2")
    for k in range(16): V("mov_b32", A_F + k, 0)
    for k in range(4):
        V("mov_b32", VA + k, 0x3f803f80); V("mov_b32", VB + k, 0x3f803f80)
    V("and_b32", t, 15, v(V_L)); V("lshrrev_b32", t + 1, 5, v(V_L)); V("lshlrev_b32", t, 4, v(t)); V("lshl_add_u32", t, v(t + 1), 8, v(t))
    sadd(T0, sHB, WS_K); sadd(T1, sHB, WS_V)
    e("s_mov_b32 %s, 0" % CNT)
    lab("L_slow2")
    e("buffer_load_dwordx4 %s, v%d, %s, %s offen sc1" % (vr(KF, 4), V_L16, R_WS, T0))
    e("s_mov_b32 exec_lo, 0xffff")
    e("s_mov_b32 exec_hi, 0xffff")
    e("buffer_load_dwordx4 %s, v%d, %s, %s offen sc1" % (vr(VA, 4), t, R_WS, T1))
    e("buffer_load_dwordx4 %s, v%d, %s, %s offen offset:512 sc1" % (vr(VB, 4), t, R_WS, T1))
    e("s_mov_b64 exec, -1")
    sadd(T0, T0, 1024); sadd(T1, T1, 1024)
    e("s_waitcnt vmcnt(0)")
    e("v_mfma_f32_32x32x16_bf16 %s, %s, %s, %s" % (vr(S_, 16), vr(KF, 4), vr(A_Q[0], 4), vr(A_NM, 16)))
    nop(12)
    for k in range(16): e("v_exp_f32 v%d, v%d" % (S_ + k, S_ + k))
    e("s_nop 1")
    e("v_smfmac_f32_32x32x32_bf16 %s, %s, %s, v%d" % (vr(A_F, 16), vr(VA, 4), vr(S_, 8), A_IDX))
    e("v_smfmac_f32_32x32x32_bf16 %s, %s, %s, v%d" % (vr(A_F, 16), vr(VB, 4), vr(S_ + 8, 8), A_IDX))
    sadd(CNT, CNT, 1)
    e("s_cmp_lt_u32 %s, 64" % CNT)
    nop(4)
    e("s_cbranch_scc1 L_slow2")
    nop(12)
    attn_publish(A_F, 32, 0)
    lab("L_slow_next")
    e("s_cmp_eq_u32 %s, 0" % T5)
    e("s_cbranch_scc1 L_attn_ok")
    e("s_mov_b32 %s, 0" % T5)
    for i in range(4): V("mov_b32", A_Q[0] + i, v(A_Q[1] + i))
    sadd(sOST, sOST, 1024)
    e("s_branch L_slow_go")

def attn_publish(F, P, off):
    t = VT
    V("rcp_f32", t, v(F + 8))
    e("s_nop 0")
    for i in range(8): V("mul_f32", F + i, v(F + i), v(t))
    for i in range(4): V("cvt_pk_bf16_f32", P + i, v(F + 2 * i), v(F + 2 * i + 1))
    e("s_nop 1")
    e("v_permlane32_swap_b32 v%d, v%d" % (P, P + 2))
    e("v_permlane32_swap_b32 v%d, v%d" % (P + 1, P + 3))
    e("buffer_store_dwordx4 %s, v%d, %s, %s offen offset:%d sc1" % (vr(P, 4), V_L16, R_WS, sOST, off))

P_W, P_ACC, P_OF = 96, 32, 48
def tail():
    t = VT
    def early_poll():
        e("s_cmp_eq_u32 %s, 0" % WV)
        e("s_cbranch_scc0 L_nop2")
        V("lshlrev_b32", 30, 7, v(V_L))
        e("s_mov_b32 exec_hi, 0")
        e("buffer_load_dword v31, v30, %s, %s offen sc1" % (R_WS, sF2P))
        e("s_mov_b32 exec_hi, -1")
        lab("L_nop2")
    c("==== waves 0..3: Wo fragments, poll, O tiles, output projection ====")
    for hh in range(32):
        if hh == OPT["fsig"]: signal("c", 20, 3, sF2)
        if hh == OPT["p2at"]: early_poll()
        for tt in range(2):
            e("ds_read_b64_tr_b16 %s, v%d offset:%d" % (vr(P_W + 4 * hh + 2 * tt, 2), PV_WF, L_WO + hh * 2048 + tt * 512))
    if OPT["fsig"] >= 32: signal("c", 20, 3, sF2)
    else: e("s_waitcnt lgkmcnt(0)")
    if OPT["p2at"] == 32: early_poll()
    precompute_tail(2)
    e("s_barrier")
    stamp("W")
    V("mov_b32", t + 2, L_FL + 24); V("mov_b32", t + 3, 1)
    e("s_cmp_eq_u32 %s, 0" % WV)
    e("s_cbranch_scc0 L_spin2")
    if OPT["p2at"] <= 32: poll("L_poll2", sF2P, first_issued=31, t=30)
    else: poll("L_poll2", sF2P)
    e("ds_write_b32 v%d, v%d" % (t + 2, t + 3))
    e("s_branch L_seen2")
    lab("L_spin2")
    e("s_mov_b32 %s, 0" % CNT)
    lab("L_spin2l")
    e("ds_read_b32 v%d, v%d" % (t + 3, t + 2))
    sadd(CNT, CNT, 1)
    e("s_waitcnt lgkmcnt(0)")
    e("v_readfirstlane_b32 %s, v%d" % (T0, t + 3))
    e("s_cmp_gt_u32 %s, 0x200000" % CNT)
    e("s_cbranch_scc1 L_seen2")
    e("s_cmp_eq_u32 %s, 0" % T0)
    e("s_cbranch_scc1 L_spin2l")
    lab("L_seen2")
    stamp("poll2")
    sadd("m0", W10, L_O); e("s_nop 0")
    for n in range(16):
        e("buffer_load_dwordx4 v%d, %s, %s offen sc1 lds" % (V_L16, R_WS, sOLD))
        if n < 15:
            sadd("m0", "m0", 4096); sadd(sOLD, sOLD, 0x20000)
    e("s_barrier")
    def mm(st):
        for k in range(4):
            hh = 4 * st + k
            e("v_mfma_f32_32x32x16_bf16 %s, %s, %s, %s" % (vr(P_ACC, 16), vr(P_W + 4 * hh, 4), vr(P_OF + 16 * (st & 1) + 4 * k, 4), "0" if hh == 0 else vr(P_ACC, 16)))
    for st in range(8):
        if st % 2 == 0:
            e("s_waitcnt vmcnt(%d)" % (12 - 2 * st))
            e("s_barrier")
            if st == 0: stamp("O1")
        for k in range(4): e("ds_read_b128 %s, v%d offset:%d" % (vr(P_OF + 16 * (st & 1) + 4 * k, 4), PV_OR, (4 * st + k) * 2048))
        if st > 0:
            e("s_waitcnt lgkmcnt(4)")
            mm(st - 1)
    e("s_waitcnt lgkmcnt(0)")
    mm(7)
    nop(12)
    for i in range(8): V("cvt_pk_bf16_f32", P_OF + i, v(P_ACC + 2 * i), v(P_ACC + 2 * i + 1))
    e("ds_write_b128 v%d, %s" % (PV_OW, vr(P_OF, 4)))
    e("ds_write_b128 v%d, %s offset:16" % (PV_OW, vr(P_OF + 4, 4)))
    c("WG 0 advances the epoch word (every WG has read it: all of them have published)")
    e("s_cmp_eq_u32 s2, 0")
    e("s_cbranch_scc0 L_fin")
    e("s_cmp_eq_u32 %s, 0" % WV)
    e("s_cbranch_scc0 L_fin")
    flag_store("0")
    e("s_branch L_fin")
    lab("L_tail_hi")
    c("==== waves 4..7: causal conv of output tiles 6,7 (two lag halves per channel) ====")
    for p in range(4): V("add_u32", PV_ZR + p, (L_Z2 - L_Z - 4608 - 1152 + p * (ZS2 - ZS)) & 0xffffffff, v(PV_ZR + p))
    def sigw(tag):
        signal(tag, 20, 7, sF2)
    e("s_bitcmp1_b32 %s, 0" % WV)
    e("s_cbranch_scc1 L_ct_b")
    conv_job(6, 0, 4, False, PV_CA, PV_CB, None, bar_after=OPT["wbar"], zw=PV_ZW2)
    e("s_branch L_ct_done")
    lab("L_ct_b")
    conv_job(6, 16, 3, True, PV_CA, PV_CB, None, bar_after=OPT["wbar"], zw=PV_ZW2)
    lab("L_ct_done")
    e("s_cmp_eq_u32 %s, 6" % WV)
    e("s_cbranch_scc0 L_nocarry2")
    V("bfe_u32", t + 2, v(V_L), 2, 1); V("mul_u32_u24", t + 2, 8 * ZS2, v(t + 2)); V("bfe_u32", t + 1, v(V_L), 3, 1); V("lshlrev_b32", t + 1, 2, v(t + 1))
    V("and_b32", t + 3, 3, v(V_L)); V("add_u32", t + 1, v(t + 1), v(t + 3)); V("mul_u32_u24", t + 1, ZS2, v(t + 1))
    V("add_u32", t + 2, v(t + 2), v(t + 1)); V("add_u32", t + 2, L_Z2 + 112, v(t + 2))
    e("s_mov_b64 exec, 0xffff")
    e("ds_write_b128 v%d, %s" % (t + 2, vr(PV_CY, 4)))
    e("s_mov_b64 exec, -1")
    lab("L_nocarry2")
    e("s_waitcnt lgkmcnt(0)")
    stamp("cend2")
    e("s_barrier")
    c("y[1536 + 64w' + l] for w' = w-4 and w")
    order = [(g, cl, st) for g in range(2) for cl in range(2) for st in range(2)]
    def rd(n):
        g, cl, st = order[n]
        for p in range(4): e("ds_read_b32 v%d, v%d offset:%d" % (Y_R + 4 * n + p, PV_ZR + p, cl * 8 * ZS2 + st * 4 * ZS2 + g * 1152))
    rd(0); rd(1); rd(2)
    for n in range(8):
        r = Y_R + 4 * n
        e("s_waitcnt lgkmcnt(%d)" % (4 * (min(n + 2, 7) - n)))
        if n + 3 < 8: rd(n + 3)
        V("add_f32", r, v(r), v(r + 1)); V("add_f32", r + 2, v(r + 2), v(r + 3)); V("add_f32", r, v(r), v(r + 2))
        if n % 2: V("add_f32", r, v(r), v(r - 4))
        if n % 4 == 3: V("cvt_pk_bf16_f32", V_Y + n // 4, v(r - 8), v(r))
    S("sub_u32", sYS, sYS2, 0x80000)
    for st in range(4):
        if st == OPT["yat"]:
            e("buffer_store_dword v%d, v%d, %s, %s offen" % (V_Y, PV_YA, R_OUT, sYS))
            e("buffer_store_dword v%d, v%d, %s, %s offen" % (V_Y + 1, PV_YA, R_OUT, sYS2))
        e("s_barrier")
    if OPT["yat"] == 4:
        e("buffer_store_dword v%d, v%d, %s, %s offen" % (V_Y, PV_YA, R_OUT, sYS))
        e("buffer_store_dword v%d, v%d, %s, %s offen" % (V_Y + 1, PV_YA, R_OUT, sYS2))
    lab("L_fin")
    e("s_waitcnt lgkmcnt(0)")
    e("s_barrier")
    stamp("opdone")
    e("ds_read_b128 v[32:35], v%d" % PV_FR)
    e("s_waitcnt lgkmcnt(0)")
    e("buffer_store_dwordx4 v[32:35], v%d, %s, %s offen %s" % (PV_FS, R_OUT, sOUT, OPT["opol"]))

def dump_lds(base, nbytes, wsoff):
    t = VT + 10
    e("s_waitcnt lgkmcnt(0)"); e("s_barrier")
    V("lshlrev_b32", t, 4, v(0))
    sshl(T0, "s2", 18); sadd(T0, T0, WS_DBG + wsoff)
    for o in range(0, nbytes, 8192):
        V("add_u32", t + 1, base + o, v(t))
        e("ds_read_b128 %s, v%d" % (vr(t + 2, 4), t + 1))
        e("s_waitcnt lgkmcnt(0)")
        e("buffer_store_dwordx4 %s, v%d, %s, %s offen" % (vr(t + 2, 4), t, R_WS, T0))
        sadd(T0, T0, 8192)
        e("s_waitcnt vmcnt(0)")
    e("s_barrier")

def write_stamps():
    t = VT
    if OPT["ldst"]:
        e("s_waitcnt vmcnt(0) lgkmcnt(0)")
        sshl(T0, "s2", 3); sadd(T0, T0, WV); sshl(T0, T0, 7); sadd(T0, T0, WS_ST)
        e("s_mov_b64 exec, 1")
        V("mov_b32", t, 0)
        for i in range(10):
            V("mov_b32", t + 1, sr(80 + 2 * i))
            e("buffer_store_dword v%d, v%d, %s, %s offen offset:%d" % (t + 1, t, R_WS, T0, 4 * i))
            e("s_nop 1")
        e("s_mov_b64 exec, -1")
    if OPT["echo"]:
        a, b, m = OPT["echo"].split(",")
        e("s_cmp_eq_u32 %s, %d" % (WV, OPT["echowv"])); e("s_cbranch_scc0 L_end")
        e("s_cmp_eq_u32 s2, %d" % OPT["echowg"]); e("s_cbranch_scc0 L_end")
        e("s_waitcnt vmcnt(0)")
        stamp("end")
        if a == "start": e("s_mov_b32 s80, s100")
        e("s_sub_u32 s82, s81, s80"); e("s_mul_i32 s82, s82, %s" % m); e("s_min_u32 s82, s82, 20000")
        e("s_memrealtime s[84:85]"); e("s_waitcnt lgkmcnt(0)")
        lab("L_echo")
        e("s_memrealtime s[86:87]"); e("s_waitcnt lgkmcnt(0)")
        e("s_sub_u32 s83, s86, s84"); e("s_cmp_lt_u32 s83, s82"); e("s_cbranch_scc1 L_echo")
    if OPT["stamps"]:
        e("s_waitcnt vmcnt(0)")
        stamp("end")
        sshl(T0, "s2", 3); sadd(T0, T0, WV); sshl(T0, T0, 7); sadd(T0, T0, WS_ST)
        e("s_mov_b64 exec, 1")
        V("mov_b32", t, 0)
        for i in range(len(stamp_names)):
            V("mov_b32", t + 1, sr(S_ST + i))
            e("buffer_store_dword v%d, v%d, %s, %s offen offset:%d" % (t + 1, t, R_WS, T0, 4 * i))
            e("s_nop 1")
        V("mov_b32", t + 1, "s100")
        e("buffer_store_dword v%d, v%d, %s, %s offen offset:124" % (t + 1, t, R_WS, T0))
        e("s_memrealtime s[98:99]")
        e("s_waitcnt lgkmcnt(0)")
        V("mov_b32", t + 2, "s98")
        e("buffer_store_dword v%d, v%d, %s, %s offen offset:120" % (t + 2, t, R_WS, T0))
        e("s_mov_b64 exec, -1")
        L.insert(0, "; stamps: " + ",".join(stamp_names))
    if OPT["dbgspan"]:
        e("s_cmp_eq_u32 %s, 0" % WV); e("s_cbranch_scc0 L_end")
        sand(T0, "s2", 63); e("s_cmp_eq_u32 %s, 5" % T0); e("s_cbranch_scc0 L_end")
        e("s_waitcnt vmcnt(0)")
        e("s_memrealtime s[96:97]"); e("s_memtime s[94:95]")
        srd(R_X, S_DBG, 256)
        sshr(T0, "s2", 6); sshl(T0, T0, 4)
        e("s_waitcnt lgkmcnt(0)")
        e("s_mov_b64 exec, 1")
        V("mov_b32", t, 0)
        e("s_sub_u32 s94, s94, s98"); e("s_sub_u32 s96, s96, s100")
        V("mov_b32", t + 2, "s100"); V("mov_b32", t + 3, "s96"); V("mov_b32", t + 4, "s94"); V("mov_b32", t + 5, 0)
        e("buffer_store_dwordx4 %s, v%d, %s, %s offen" % (vr(t + 2, 4), t, R_X, T0))

def main():
    header()
    setup()
    loader_path()
    compute_path()
    lab("L_gemm_done")
    if OPT["gprio"]: e("s_setprio 0")
    e("s_waitcnt lgkmcnt(0)")
    e("s_barrier")
    stamp("K2")
    if OPT["dump"]: dump_lds(L_KF, 24576, 0)
    conv()
    kv_early()
    conv_epilogue()
    if not OPT["b1late"]:
        e("s_waitcnt vmcnt(0)")
        e("s_barrier")
        stamp("S")
    kv_late()
    attn_main()
    combine()
    tail()
    write_stamps()
    e("s_endpgm")
    slow_path()
    footer(256)
    open(sys.argv[1], "w").write("\n".join(L) + "\n")

main()
```

```python
import sys, struct, math

NAME = "concat_heads__ssm_conv_s4__softmax_full_mha__prompt"
OPT = dict(only="", ldst=0, ypol="", opol="", abl="", echo="", echowg=0, echowv=0, stamps=0, dump=0, forceslow=0, dbgspan=0, flip1=13, mid=16, flip=29, pf=2, wsb=0, sA=1, np=1, pgap=2, stg="b", apre=45, f0=5, f2=2, umode=0, uat=0, ust2=1, lsp=0, fline=0, psleep=0, ppol="sc1", gprio=0, kvrot=0, qearly=0, cfill=3, gsig=0, fsig=16, wbar=2, pfw=0, pfx=0, tsig=-2, b1late=0, rot=6, yat=0, npre=999,
           yt=[15, 20, 25], wt=[17, 18, 19, 21, 22, 23, 24, 26])
for a in sys.argv[2:]:
    k, v = a.split("=")
    OPT[k] = int(v) if v.lstrip("-").isdigit() else ([int(x) for x in v.split("/")] if "/" in v else v)

L = []
SINK = [L]
def e(s): SINK[0].append("    " + s)
def lab(s): SINK[0].append(s + ":")
def c(s): SINK[0].append("    ; " + s)
def f2u(x): return struct.unpack("<I", struct.pack("<f", x))[0]
def fl(x): return "0x%08x" % f2u(x)
def vr(a, n=1): return "v%d" % a if n == 1 else "v[%d:%d]" % (a, a + n - 1)
def sr(a, n=1): return "s%d" % a if n == 1 else "s[%d:%d]" % (a, a + n - 1)
def nop(n):
    while n > 0:
        k = min(n, 16); e("s_nop %d" % (k - 1)); n -= k
def capture(fn, *a):
    old = SINK[0]; out = []; SINK[0] = out; fn(*a); SINK[0] = old; return out

WS_F1 = 0x1000
WS_F2 = 0xa000
WS_F0 = 0x20000
WS_Q, WS_K, WS_V, WS_O, WS_U2 = 0x100000, 0x300000, 0x500000, 0x700000, 0x900000
WS_ST = 0xc00000
WS_DBG = 0x1000000
WS_SIZE = 0x10000000
LDS_TOTAL = 163840
BLK = 16384
L_TB = 98304
L_TA = 0
L_FL = 146240
L_KF = 146304
L_UP = 154624
ZS = 9504
L_Z = 70208
ZS2 = 2448
L_Z2 = 0
L_WO = 0
L_O = 65536
L_SC = 65536
L_OT = 131072
S_U, S_ARE, S_AIM, S_BRE, S_BIM, S_CRE, S_CIM, S_LDT = 8, 10, 12, 14, 16, 18, 20, 22
S_DSK, S_X, S_W, S_WO, S_OUT, S_DBG, S_WS = 24, 26, 28, 30, 32, 34, 36
R_X, R_W, R_WS, R_U, R_OUT, R_WO = "s[40:43]", "s[44:47]", "s[48:51]", "s[52:55]", "s[56:59]", "s[60:63]"
XQ, I5, WV, TAG, LD2, DS2, HH, JJ, C0 = "s64", "s65", "s66", "s67", "s68", "s69", "s70", "s71", "s72"
T0, T1, T2, T3, T4, T5, CNT = "s73", "s74", "s75", "s76", "s77", "s78", "s79"
CQ, CL, W10, GT, GQ = "s38", "s39", "s3", "s6", "s7"
JR = "s97"
sQKV, sF1, sF1P, sYS, sWO, sOST, sOLD, sOUT, sF2, sF2P, sHB, sQL = ["s%d" % i for i in range(8, 20)]
sYS2 = "s38"
S_ST = 80
stamp_names = []
def stamp(name):
    if OPT["only"] and name not in OPT["only"].split(",") + ["karg", "end"]: return
    if OPT["echo"]:
        a, b, m = OPT["echo"].split(",")
        if name in (a, b):
            e("s_waitcnt lgkmcnt(0)")
            e("s_memrealtime s[98:99]")
            e("s_waitcnt lgkmcnt(0)")
            e("s_mov_b32 %s, s98" % ("s80" if name == a else "s81"))
    if OPT["stamps"]:
        if name not in stamp_names: stamp_names.append(name)
        assert len(stamp_names) <= 18
        e("s_waitcnt lgkmcnt(0)")
        e("s_memrealtime s[98:99]" if OPT["stamps"] == 2 else "s_memtime s[98:99]")
        e("s_waitcnt lgkmcnt(0)")
        e("s_mov_b32 %s, s98" % sr(S_ST + stamp_names.index(name)))
def srd(r, base, size):
    r = int(r[2:r.index(":")])
    e("s_mov_b32 %s, %s" % (sr(r), sr(base)))
    e("s_and_b32 %s, %s, 0xffff" % (sr(r + 1), sr(base + 1)))
    e("s_mov_b32 %s, 0x%x" % (sr(r + 2), size))
    e("s_mov_b32 %s, 0x00020000" % sr(r + 3))
def csel(dst, a, b):
    e("s_mov_b32 %s, %d" % (dst, b))
    e("s_cselect_b32 %s, %d, %s" % (dst, a, dst))
def S(op, d, a, b): e("s_%s %s, %s, %s" % (op, d, a, b if isinstance(b, str) else ("0x%x" % b if b > 64 else str(b))))
def sadd(d, a, b): S("add_u32", d, a, b)
def sshl(d, a, b): S("lshl_b32", d, a, b)
def sshr(d, a, b): S("lshr_b32", d, a, b)
def sand(d, a, b): S("and_b32", d, a, b)
def smul(d, a, b): S("mul_i32", d, a, b)
def V(op, d, *a): e("v_%s v%d, %s" % (op, d, ", ".join(("v%d" % x[0] if isinstance(x, tuple) else (x if isinstance(x, str) else ("0x%x" % x if x > 64 else str(x)))) for x in a)))
def v(x): return (x,)
LOG2E = math.log2(math.e)

V_L, V_L16, V_PA = 1, 2, 3
V_PAR = 4
V_Y = 10
VT = 14
(PV_CA, PV_CB, PV_ZW, PV_ZR, _z1, _z2, _z3, PV_KA, PV_V0, PV_V1, PV_YA, PV_WA, PV_CW, PV_CR,
 PV_OR, PV_OW, PV_WF, PV_FR, PV_FS, PV_WS) = range(224, 244)
PV_ZW2 = PV_V1
PV_CY = 250
PV_QS, PV_VS, PV_TW = 222, 223, 219
PV_GA, PV_GB, PV_GW, PV_GD, PV_US = 244, 245, 246, 247, 248

def header():
    for x in """fused S4 long-conv (out[:, 0:512]) + 32-head attention with output projection (out[:, 512:1024])
one launch, 256 workgroups x 8 waves, one workgroup per CU (160 KB LDS); generated by my own script
 phase 1  QKV GEMM: WG = 64 tokens x 4 heads (q,k,v); waves 4-7 stream x/W into an LDS ring (LDS-DMA),
          waves 0-3 run the MFMAs and build the S4 mode tables; Q,K,V go to d_ws (sc1) + flag
 phase 2  S4: K[l] = Re sum_n C B dt exp(dt A bf16(l)) as a table matmul (rows duplicated to realise bf16(l)),
          causal conv as Toeplitz MFMAs on polyphase-4 u (tiles 0-5 here, tiles 6-7 in the tail); D folded into K[0]
 phase 3  attention: WG = 1 head x 256 queries, S^T = K Q^T (q pre-scaled by log2e/4), P = 2^S in place,
          O^T += V^T P with the sparse MFMA reading the high halves of the fp32 P; a ones row gives the row sum.
          The fast path uses shift 0; afterwards the row sum and O are range-checked and any wave for which
          that shift was unsafe recomputes its rows with the true row max (L_slow).
 phase 4  O goes to d_ws (sc1) + flag; WG = 64 x 64 tile of O @ Wo
hand-offs: sc1 stores -> vmcnt(0) -> flag (tag = d_ws[0] + 1, advanced by WG 0 at the end) -> sc1 poll -> sc1 loads""".split("\n"):
        L.append("; " + x)
    L.append("; @launch grid=(256,1,1) block=(512,1,1) lds=%d" % LDS_TOTAL)
    L.append('.amdgcn_target "amdgcn-amd-amdhsa--gfx950"')
    L.append(".text")
    L.append(".globl %s_kernel" % NAME)
    L.append(".p2align 8")
    L.append(".type %s_kernel,@function" % NAME)
    L.append("%s_kernel:" % NAME)
def footer(nv):
    lab("L_end")
    e("s_endpgm")
    L.append('.section .rodata,"a"')
    L.append(".p2align 6")
    L.append(".amdhsa_kernel %s_kernel" % NAME)
    L.append("  .amdhsa_next_free_vgpr %d" % nv)
    L.append("  .amdhsa_next_free_sgpr 102")
    L.append("  .amdhsa_accum_offset %d" % nv)
    L.append("  .amdhsa_group_segment_fixed_size 0")
    L.append("  .amdhsa_kernarg_size 120")
    L.append("  .amdhsa_user_sgpr_count 2")
    L.append("  .amdhsa_user_sgpr_kernarg_segment_ptr 1")
    L.append("  .amdhsa_system_sgpr_workgroup_id_x 1")
    L.append(".end_amdhsa_kernel")

def setup():
    c("---- setup ----")
    e("s_cmp_ge_u32 s2, 256")
    e("s_cbranch_scc1 L_end")
    e("s_load_dwordx8 s[24:31], s[0:1], 64")
    e("s_load_dwordx16 s[8:23], s[0:1], 0")
    e("s_load_dwordx4 s[32:35], s[0:1], 96")
    e("s_load_dwordx2 s[36:37], s[0:1], 112")
    if OPT["stamps"] or OPT["dbgspan"] or OPT["echo"]: e("s_memrealtime s[100:101]")
    if OPT["dbgspan"]: e("s_memtime s[98:99]")
    if OPT["pf"] == 2:
        c("pull this WG's 1/32 share of the code into L2 right away (thread t<8: line 8*(wg>>3)+t)")
        e("s_getpc_b64 s[4:5]")
        lab("L_pc")
        e("s_and_b32 s3, s2, 0xf8")
        V("add_u32", VT, "s3", v(0)); V("lshlrev_b32", VT, 7, v(VT))
        e("v_min_u32 v%d, L_end-L_pc-4, v%d" % (VT, VT))
        e("v_cmp_gt_u32 vcc, 8, v0")
        e("s_and_saveexec_b64 s[6:7], vcc")
        e("s_cbranch_execz L_nopf")
        e("global_load_dword v47, v%d, s[4:5]" % VT)
        lab("L_nopf")
        e("s_mov_b64 exec, -1")
    V("and_b32", V_L, 63, v(0))
    V("lshrrev_b32", VT, 6, v(0))
    V("lshlrev_b32", V_L16, 4, v(V_L))
    V("mov_b32", PV_FS, 0)
    e("v_readfirstlane_b32 %s, v%d" % (WV, VT))
    sand(XQ, "s2", 7)
    sshr(I5, "s2", 3)
    sand(GT, XQ, 3); sshl(GT, GT, 3); sshr(JJ, I5, 2); sadd(GT, GT, JJ)
    sand(GQ, XQ, 4); sand(T0, I5, 3); sadd(GQ, GQ, T0)
    sshl(HH, XQ, 2); sadd(HH, HH, T0)
    sshl(C0, XQ, 5); sadd(C0, C0, I5); sshl(C0, C0, 1)
    sshl(W10, WV, 10)
    e("s_cmp_ge_u32 %s, 4" % WV)
    e("s_cbranch_scc0 L_compute")

def scalar_loads():
    if OPT["wsb"]:
        e("s_add_u32 s36, s36, 0x%x" % (OPT["wsb"] << 20)); e("s_addc_u32 s37, s37, 0")
    sshl(T3, C0, 1)
    e("s_load_dword %s, %s, 0" % (TAG, sr(S_WS, 2)))
    e("s_load_dword %s, %s, %s" % (LD2, sr(S_LDT, 2), T3))
    e("s_load_dword %s, %s, %s" % (DS2, sr(S_DSK, 2), T3))

def lane_terms():
    t = VT
    hf, b7, p4, r4, g1, l15, l8 = t, t + 1, t + 2, t + 3, t + 4, t + 5, t + 6
    V("lshrrev_b32", hf, 5, v(V_L)); V("and_b32", b7, 7, v(V_L)); V("bfe_u32", p4, v(V_L), 3, 2)
    V("bfe_u32", r4, v(V_L), 2, 2); V("bfe_u32", g1, v(V_L), 4, 1); V("and_b32", l15, 15, v(V_L)); V("lshrrev_b32", l8, 3, v(V_L))
    return hf, b7, p4, r4, g1, l15, l8

def precompute_conv():
    t = VT
    c("---- conv addresses ----")
    e("s_bfe_u32 %s, %s, 0x10001" % (CL, WV))
    hf, b7, p4, r4, g1, l15, l8 = lane_terms()
    x, y, z = t + 8, t + 9, t + 10
    e("s_cmp_eq_u32 %s, 1" % CL)
    csel(T0, L_KF + 4160 + 96, L_KF + 96); csel(T1, L_UP + 4608, L_UP); csel(T2, L_Z + 4 * ZS + 144, L_Z + 144)
    V("and_b32", x, 3, v(V_L)); V("lshl_add_u32", x, v(g1), 2, v(x)); V("lshl_add_u32", y, v(hf), 3, v(r4))
    V("sub_u32", x, v(x), v(y)); V("lshlrev_b32", x, 3, v(x)); V("add_u32", PV_CA, T0, v(x))
    V("mul_u32_u24", x, 1152, v(p4)); V("add_u32", z, v(b7), v(hf)); V("lshl_add_u32", x, v(z), 4, v(x))
    V("add_u32", PV_CB, T1, v(x))
    V("mul_u32_u24", x, ZS, v(p4)); V("mul_u32_u24", z, 144, v(b7)); V("lshl_add_u32", z, v(hf), 4, v(z)); V("add3_u32", PV_ZW, v(x), v(z), T2)
    sshl(sF1, GQ, 5); sadd(sF1, sF1, GT); sshl(sF1, sF1, 7); sadd(sF1, sF1, WS_F1)
    sshl(T0, XQ, 12); sadd(sF1P, T0, WS_F1); sadd(sF2P, T0, WS_F2)
    sshl(sHB, HH, 16)
    if OPT["kvrot"] == 1: e("s_mov_b32 %s, %s" % (JR, JJ))
    elif OPT["kvrot"] == 0: e("s_mov_b32 %s, 0" % JR)
    else: sand(JR, JJ, OPT["kvrot"])

def precompute():
    t = VT
    c("SPLIT")
    e("s_cmp_ge_u32 %s, 4" % WV)
    e("s_cselect_b32 %s, 1024, 0" % T0)
    hf, b7, p4, r4, g1, l15, l8 = lane_terms()
    x, y, z = t + 8, t + 9, t + 10
    V("add_u32", PV_KA, T0, v(V_L16))
    V("lshlrev_b32", x, 4, v(l15)); V("lshl_add_u32", x, v(hf), 8, v(x)); sadd(T0, T0, 8192); V("add_u32", PV_V0, T0, v(x))
    V("lshlrev_b32", PV_YA, 11, v(V_L))
    V("lshlrev_b32", x, 2, v(g1)); V("xor_b32", x, v(x), v(b7)); V("lshlrev_b32", x, 4, v(x)); V("lshl_add_u32", PV_WA, v(l8), 10, v(x))
    c("SPLIT")
    sshl(T0, WV, 7); sadd(T0, T0, 32)
    for p in range(4):
        V("add_u32", x, T0, v(V_L))
        if p: V("subrev_u32", x, p, v(x))
        V("lshrrev_b32", z, 5, v(x)); V("lshlrev_b32", x, 2, v(x)); V("lshl_add_u32", x, v(z), 4, v(x))
        V("add_u32", PV_ZR + p, L_Z + p * ZS, v(x))
    c("SPLIT")
    sshl(T0, WV, 18); sshl(T1, C0, 1); sadd(sYS, T0, T1)
    sshr(T0, T0, 1); sadd(T0, T0, T1); sadd(sYS2, T0, 0x200000)
    sand(T0, I5, 7); sshl(T0, T0, 7); sshl(T1, WV, 13); sadd(sWO, T0, T1)
    sshl(T1, JJ, 13); sadd(T1, T1, sHB); sand(T2, WV, 3); sshl(T2, T2, 11); sadd(T1, T1, T2)
    sadd(sQL, T1, WS_Q)

def precompute_tail():
    t = VT + 4
    hf, b7, p4, r4, g1, l8 = t, t + 1, t + 2, t + 3, t + 4, t + 5
    V("lshrrev_b32", hf, 5, v(V_L)); V("and_b32", b7, 7, v(V_L)); V("bfe_u32", p4, v(V_L), 3, 2)
    V("bfe_u32", r4, v(V_L), 2, 2); V("bfe_u32", g1, v(V_L), 4, 1); V("lshrrev_b32", l8, 3, v(V_L))
    x, y, z = t + 6, t + 7, t + 8
    sand(T0, WV, 3); smul(T0, T0, 6144); sadd(T0, T0, L_SC)
    V("add_u32", PV_CW, T0, v(V_L16))
    sand(T0, WV, 1); smul(T0, T0, 4 * ZS2); smul(T1, CL, 8 * ZS2); sadd(T0, T0, T1); sadd(T0, T0, L_Z2 + 144)
    V("mul_u32_u24", x, ZS2, v(p4)); V("mul_u32_u24", z, 144, v(b7)); V("lshl_add_u32", z, v(hf), 4, v(z)); V("add3_u32", PV_ZW2, v(x), v(z), T0)
    V("lshl_add_u32", y, v(hf), 3, v(r4)); V("lshlrev_b32", PV_WF, 7, v(y))
    V("and_b32", x, 1, v(V_L)); V("lshl_or_b32", x, v(x), 1, v(g1))
    sand(T0, WV, 2); sshl(T0, T0, 1); V("or_b32", x, T0, v(x))
    V("bfe_u32", z, v(V_L), 3, 1); V("lshlrev_b32", z, 2, v(z)); V("xor_b32", x, v(x), v(z))
    V("lshl_add_u32", PV_WF, v(x), 4, v(PV_WF)); V("bfe_u32", z, v(V_L), 1, 1); V("lshl_add_u32", PV_WF, v(z), 3, v(PV_WF))
    sand(T1, WV, 1); sshl(T2, T1, 10); sadd(T2, T2, L_O); V("add_u32", PV_OR, T2, v(V_L16))
    smul(T1, T1, 4608); sshl(T0, T0, 4); sadd(T0, T0, T1); sadd(T0, T0, L_OT)
    V("and_b32", x, 31, v(V_L)); V("mul_u32_u24", x, 144, v(x)); V("lshl_add_u32", x, v(hf), 5, v(x)); V("add_u32", PV_OW, T0, v(x))
    smul(T0, WV, 1152); sadd(T0, T0, L_OT)
    V("lshlrev_b32", x, 4, v(b7)); V("mul_u32_u24", z, 144, v(l8)); V("add3_u32", PV_FR, v(z), v(x), T0); V("lshl_add_u32", PV_FS, v(l8), 11, v(x))
    sshl(sF2, JJ, 5); sadd(sF2, sF2, HH); sshl(sF2, sF2, 7); sadd(sF2, sF2, WS_F2)
    S("sub_u32", T1, sQL, WS_Q); sadd(sOST, T1, WS_O)
    sshr(T1, WV, 1); sshl(T1, T1, 6); sshl(T2, XQ, 3); sadd(T1, T1, T2); sshr(T3, I5, 3); sshl(T2, T3, 1); sadd(T1, T1, T2)
    sand(T2, WV, 1); sadd(T1, T1, T2); sshl(T1, T1, 10); sadd(sOLD, T1, WS_O)
    sand(T0, I5, 7); sshl(T0, T0, 7)
    sshl(T1, XQ, 2); sadd(T1, T1, T3); sshl(T1, T1, 3); sadd(T1, T1, WV); sshl(T1, T1, 14); sadd(T1, T1, T0); sadd(sOUT, T1, 1024)

G_VX0, G_VX1, G_VWQ, G_VWK, G_VWV, G_PL = 32, 33, 34, 35, 36, 39
G_UA, G_US = 30, 31
G_UL, U2R = 196, 80
G_XA, G_WA, G_WB = 32, 40, 43
G_ACC = [48, 64, 80]
G_XF, G_W0F, G_W1F, G_VF = 96, 112, 128, 144
KB = 48
KR = 192

def loader_addr():
    t = VT
    c("loader DMA voffsets (wave v=w-4 covers rows 16v..16v+15 of each chunk)")
    V("lshrrev_b32", t, 3, v(V_L)); V("and_b32", t + 1, 7, v(V_L)); V("bfe_u32", t + 2, v(V_L), 4, 1)
    sand(T0, WV, 3); sshl(T4, T0, 11); sshl(T0, T0, 4)
    V("add_u32", t + 3, T0, v(t))
    V("bfe_u32", t + 4, v(t + 3), 1, 3); V("xor_b32", t + 4, v(t + 4), v(t + 1)); V("lshlrev_b32", t + 4, 4, v(t + 4))
    sshl(T1, GT, 16)
    V("lshl_add_u32", G_VX0, v(t + 3), 10, v(t + 4)); V("add_u32", G_VX0, T1, v(G_VX0)); V("xor_b32", G_VX1, 0x2040, v(G_VX0))
    V("mul_u32_u24", t + 5, 3072, v(t + 3)); sshl(T1, GQ, 7); V("add_u32", t + 5, T1, v(t + 5))
    V("lshlrev_b32", t + 6, 1, v(t + 2)); V("xor_b32", t + 6, v(t + 6), v(t + 1)); V("lshl_add_u32", G_VWQ, v(t + 6), 4, v(t + 5))
    V("xor_b32", t + 6, 4, v(t + 6)); V("lshl_add_u32", G_VWK, v(t + 6), 4, v(t + 5)); V("add_u32", G_VWK, 1024, v(G_VWK))
    V("lshlrev_b32", t + 6, 2, v(t + 2)); V("xor_b32", t + 6, v(t + 6), v(t + 1)); V("lshl_add_u32", G_VWV, v(t + 6), 4, v(t + 5)); V("add_u32", G_VWV, 2048, v(G_VWV))
    r = OPT["rot"]
    if r == 1: sshl(T5, GQ, 1); sadd(T5, T5, GT)
    else:
        sadd(T5, GQ, GT)
        if r == 3: sshl(T5, T5, 2)
        if r == 5: sand(T5, T5, 1)
        if r == 6: sshl(T5, T5, 1)

I0, I1, I2, I3 = "s20", "s21", "s22", "s23"
def issue_chunk(ci):
    base = (ci % 3) * 32768
    sadd(I0, T5, ci); sand(I0, I0, 7)
    sadd("m0", T4, base); sshl(I1, I0, 7)
    e("buffer_load_dwordx4 v%d, %s, %s offen lds" % (G_VX0, R_X, I1))
    sadd("m0", T4, base + 1024); smul(I2, I0, 196608)
    e("buffer_load_dwordx4 v%d, %s, %s offen lds" % (G_VX1, R_X, I1))
    for g, va in enumerate((G_VWQ, G_VWK, G_VWV)):
        for h in range(2):
            sadd("m0", T4, base + (g + 1) * 8192 + h * 1024)
            if g == 0 and h == 0: sadd(I3, I2, 24576)
            else: e("s_nop 0")
            e("buffer_load_dwordx4 v%d, %s, %s offen lds" % (va, R_W, I3 if h else I2))

def pi_tok(dst, src, t):
    V("and_b32", dst, 0x13, v(src)); V("bfe_u32", t, v(src), 2, 1); V("lshl_or_b32", dst, v(t), 3, v(dst))
    V("bfe_u32", t, v(src), 3, 1); V("lshl_or_b32", dst, v(t), 2, v(dst))

def gemm_read_addr():
    t = VT
    c("GEMM LDS fragment read addresses, publish addresses")
    pi_tok(t, V_L, t + 1)
    V("lshrrev_b32", t + 1, 5, v(V_L))
    V("lshlrev_b32", PV_QS, 4, v(t)); V("lshl_add_u32", PV_QS, v(t + 1), 9, v(PV_QS))
    sand(T0, WV, 1); sshl(T1, T0, 5); V("add_u32", t, T1, v(t))
    V("bfe_u32", t + 2, v(t), 1, 3); V("xor_b32", t + 2, v(t + 2), v(t + 1)); V("lshlrev_b32", t + 2, 4, v(t + 2))
    V("lshl_add_u32", G_XA, v(t), 7, v(t + 2))
    for s in range(1, 4): V("xor_b32", G_XA + s, 32 * s, v(G_XA))
    V("bfe_u32", t + 2, v(V_L), 2, 2); V("lshl_add_u32", t + 3, v(t + 1), 3, v(t + 2)); V("lshlrev_b32", t + 3, 7, v(t + 3))
    V("bfe_u32", t + 4, v(V_L), 4, 1); V("bfe_u32", t + 5, v(V_L), 3, 1); V("and_b32", t + 6, 1, v(V_L)); V("bfe_u32", t + 7, v(V_L), 1, 1)
    sand(T2, WV, 2); sshl(T1, T2, 1)
    V("or_b32", t + 8, T1, v(t + 6)); V("lshl_or_b32", t + 9, v(t + 4), 1, v(t + 5)); V("lshlrev_b32", t + 9, 1, v(t + 9))
    V("xor_b32", t + 8, v(t + 8), v(t + 9)); V("lshl_add_u32", t + 8, v(t + 8), 4, v(t + 3)); V("lshl_add_u32", t + 8, v(t + 7), 3, v(t + 8))
    V("lshl_add_u32", G_WA, v(t + 4), 13, v(t + 8)); V("add_u32", G_WA, 8192, v(G_WA)); V("xor_b32", G_WA + 1, 32, v(G_WA))
    V("lshl_or_b32", t + 8, v(t + 4), 1, v(t + 7)); V("or_b32", t + 8, T1, v(t + 8)); V("lshlrev_b32", t + 9, 2, v(t + 5))
    V("xor_b32", t + 8, v(t + 8), v(t + 9)); V("lshl_add_u32", t + 8, v(t + 8), 4, v(t + 3)); V("lshl_add_u32", t + 8, v(t + 6), 3, v(t + 8))
    V("add_u32", G_WA + 2, 24576, v(t + 8))
    for s in range(4): V("add_u32", G_XA + 4 + s, 0x10000, v(G_XA + s))
    for s in range(3): V("add_u32", G_WB + s, 0x10000, v(G_WA + s))
    V("and_b32", t + 2, 15, v(V_L)); V("lshlrev_b32", t + 2, 4, v(t + 2)); V("lshl_add_u32", t + 2, v(t + 1), 8, v(t + 2)); V("lshl_add_u32", PV_VS, v(t + 4), 16, v(t + 2))
    sshl(T1, GQ, 2); sadd(T1, T1, T2); sshl(T1, T1, 6); sshl(T3, GT, 1); sadd(T1, T1, T3); sadd(T1, T1, T0); sshl(sQKV, T1, 10)
    sshl(T0, T0, 8)
    e("s_bitcmp1_b32 %s, 1" % WV)
    csel(T1, L_TA + 14256, L_TA); csel(T2, L_TB + 16896, L_TB)
    sadd(T1, T1, T0); sadd(T2, T2, T0)
    V("lshl_add_u32", PV_TW, v(V_L), 2, T1); V("lshl_add_u32", 46, v(V_L), 2, T2)

G_UP = 29
def u_coop_loads():
    t = VT
    if OPT["umode"] == 0:
        e("s_bfe_u32 %s, %s, 0x10001" % (T1, WV)); sand(T0, WV, 1)
        V("and_b32", t, 7, v(V_L)); V("bfe_u32", t + 1, v(V_L), 3, 2)
        sshl(T0, T0, 2); V("add_u32", t + 1, T0, v(t + 1))
        sshl(T2, I5, 1); sadd(T1, T1, T2); sshl(T1, T1, 3); V("add_u32", t, T1, v(t))
        V("lshlrev_b32", t + 2, 4, v(t + 1)); V("lshl_add_u32", G_UA, v(t), 12, v(t + 2))
        V("lshlrev_b32", t, 4, v(t)); V("lshl_add_u32", G_US, v(t + 1), 15, v(t))
        sshl(T0, XQ, 7)
        e("s_mov_b32 exec_hi, 0")
        for k in range(4):
            e("buffer_load_dwordx4 %s, v%d, %s, %s offen offset:%d" % (vr(G_UL + 4 * k, 4), G_UA, R_U, T0, 1024 * k))
        e("s_mov_b32 exec_hi, -1")
        return
    sshl(T1, I5, 2); sadd(T1, T1, WV); sshl(T1, T1, 2)
    V("bfe_u32", t, v(V_L), 3, 2); V("add_u32", t, T1, v(t)); V("and_b32", t + 1, 7, v(V_L))
    V("lshlrev_b32", t + 1, 4, v(t + 1)); V("lshl_add_u32", G_UA, v(t), 12, v(t + 1))
    sshl(T0, XQ, 7)
    e("s_mov_b32 exec_hi, 0")
    for k in range(4):
        e("buffer_load_dwordx4 %s, v%d, %s, %s offen offset:%d" % (vr(G_UL + 4 * k, 4), G_UA, R_U, T0, 1024 * k))
    e("s_mov_b32 exec_hi, -1")
    V("and_b32", t, 3, v(V_L)); V("bfe_u32", t + 1, v(V_L), 2, 3)
    V("lshl_add_u32", G_UP, v(t), 3, v(t + 1)); V("lshlrev_b32", G_UP, 2, v(G_UP))
    V("add_u32", t, T1, v(t)); V("lshlrev_b32", t, 4, v(t)); V("lshl_add_u32", G_US, v(t + 1), 15, v(t))

def u_coop_perm():
    D = 240
    e("s_waitcnt vmcnt(0)")
    for i in range(4):
        for k in range(4):
            if OPT["umode"]: e("ds_bpermute_b32 v%d, v%d, v%d" % (D + 4 * i + k, G_UP, G_UL + 4 * k + i))
            else: V("mov_b32", D + 4 * i + k, v(G_UL + 4 * k + i))
def u_coop_stores():
    D = 240
    sshl(I0, XQ, 18); sadd(I0, I0, WS_U2)
    e("s_mov_b32 exec_hi, 0")
    for i in range(4):
        e("buffer_store_dwordx4 %s, v%d, %s, %s offen sc1" % (vr(D + 4 * i, 4), G_US, R_WS, I0))
        if i < 3: sadd(I0, I0, 8192)
    e("s_mov_b32 exec_hi, -1")

def flag_store(soff, t=VT):
    if OPT["fline"] and soff != "0":
        V("mov_b32", t + 1, TAG)
        V("lshlrev_b32", t, 2, v(V_L))
        e("s_mov_b32 exec_hi, 0")
        e("buffer_store_dword v%d, v%d, %s, %s offen sc1" % (t + 1, t, R_WS, soff))
        e("s_mov_b32 exec_hi, -1")
        return
    V("mov_b32", t, 0); V("mov_b32", t + 1, TAG)
    e("s_mov_b64 exec, 1")
    e("buffer_store_dword v%d, v%d, %s, %s offen sc1" % (t + 1, t, R_WS, soff))
    e("s_mov_b64 exec, -1")

def poll(label, soff, first_issued=None, t=VT, nwait=0):
    V("lshlrev_b32", t, 7, v(V_L))
    e("s_mov_b32 %s, 0" % CNT)
    e("s_mov_b32 exec_hi, 0")
    r = t + 1
    if first_issued is not None:
        r = first_issued
        e("s_waitcnt vmcnt(%d)" % nwait)
        e("s_branch %s_chk" % label)
    if OPT["psleep"] and first_issued is None: e("s_branch %s_go" % label)
    lab(label)
    if OPT["psleep"]: e("s_sleep %d" % OPT["psleep"])
    lab(label + "_go")
    e("buffer_load_dword v%d, v%d, %s, %s offen %s" % (r, t, R_WS, soff, OPT["ppol"].replace("+", " ")))
    sadd(CNT, CNT, 1)
    e("s_waitcnt vmcnt(0)")
    lab(label + "_chk")
    e("v_cmp_ne_u32 vcc, %s, v%d" % (TAG, r))
    e("s_cmp_gt_u32 %s, 0x4000" % CNT)
    e("s_cbranch_scc1 %s_done" % label)
    e("s_cmp_lg_u64 vcc, 0")
    e("s_cbranch_scc1 %s" % label)
    lab(label + "_done")
    e("s_mov_b32 exec_hi, -1")

def poll_pipe(label, soff, t=VT):
    NP, gap = OPT["np"], OPT["pgap"]
    V("lshlrev_b32", t, 7, v(V_L))
    e("s_mov_b32 %s, 0" % CNT)
    e("s_mov_b32 exec_hi, 0")
    for k in range(NP - 1):
        e("buffer_load_dword v%d, v%d, %s, %s offen sc1" % (t + 8 + k, t, R_WS, soff))
        e("s_sleep %d" % gap)
    lab(label)
    for k in range(NP):
        e("buffer_load_dword v%d, v%d, %s, %s offen sc1" % (t + 8 + (k + NP - 1) % NP, t, R_WS, soff))
        e("s_waitcnt vmcnt(%d)" % (NP - 1))
        e("v_cmp_ne_u32 vcc, %s, v%d" % (TAG, t + 8 + k))
        e("s_cmp_eq_u64 vcc, 0")
        e("s_cbranch_scc1 %s_done" % label)
    sadd(CNT, CNT, 1)
    e("s_cmp_lt_u32 %s, 0x2000" % CNT)
    e("s_cbranch_scc1 %s" % label)
    lab(label + "_done")
    e("s_mov_b32 exec_hi, -1")

def kgen_addr():
    t = VT
    c("SPLIT")
    V("bfe_u32", t, v(V_L), 4, 1); V("bfe_u32", t + 1, v(V_L), 2, 1); V("lshl_or_b32", t, v(t), 1, v(t + 1))
    V("bfe_u32", t + 1, v(V_L), 3, 1); V("and_b32", t + 2, 3, v(V_L)); V("lshl_or_b32", t + 1, v(t + 1), 2, v(t + 2))
    e("v_cmp_eq_u32 s[4:5], 0, v%d" % t)
    e("v_cmp_eq_u32 vcc, 1, v%d" % t)
    e("s_bitcmp1_b32 %s, 0" % WV)
    csel(T0, 0x11100000, 0x76543210); csel(T1, 0x11100000, 0x43222100); csel(T2, 0x11100000, 0x22111000); csel(T3, 0x19171513, 0x100d0800)
    V("mov_b32", t + 2, T2); V("mov_b32", t + 3, T1); V("cndmask_b32", t + 2, v(t + 2), v(t + 3), "vcc")
    V("mov_b32", t + 3, T0); V("cndmask_b32", t + 2, v(t + 2), v(t + 3), "s[4:5]")
    V("lshlrev_b32", t + 1, 2, v(t + 1)); V("bfe_u32", t + 2, v(t + 2), v(t + 1), 4)
    V("lshlrev_b32", t, 3, v(t)); V("bfe_u32", t, T3, v(t), 8); V("add_u32", t, v(t), v(t + 2))
    V("lshrrev_b32", t + 1, 5, v(V_L)); V("and_b32", t + 2, 31, v(V_L))
    e("s_cselect_b32 %s, 2048, 0" % T3)
    e("s_cselect_b32 %s, 0, -1" % CNT)
    e("s_bitcmp1_b32 %s, 1" % WV)
    csel(T0, L_TA + 14256, L_TA); csel(T1, L_TB + 16896, L_TB); csel(T2, L_KF + 4160 + 64, L_KF + 64)
    sadd(T2, T2, T3)
    V("mul_u32_u24", t, 528, v(t)); V("lshl_add_u32", t + 3, v(t + 1), 4, T0); V("add_u32", PV_GA, v(t), v(t + 3))
    V("mul_u32_u24", t, 528, v(t + 2)); V("lshl_add_u32", t + 3, v(t + 1), 4, T1); V("add_u32", PV_GB, v(t), v(t + 3))
    V("lshl_add_u32", t, v(t + 1), 9, T2); V("lshl_add_u32", PV_GW, v(t + 2), 4, v(t))
    e("s_waitcnt lgkmcnt(0)")
    sadd(TAG, TAG, 1)
    e("s_bitcmp1_b32 %s, 1" % WV)
    e("s_cselect_b32 %s, 0, 16" % T0)
    sshl(T0, DS2, T0); sand(T0, T0, 0xffff0000); sand(T0, T0, CNT)
    e("v_cmp_eq_u32 vcc, 0, v%d" % V_L)
    V("mov_b32", PV_GD, T0)
    sand(T1, WV, 3); sshl(T1, T1, 8); sadd(T1, T1, L_UP + 128)
    V("cndmask_b32", PV_GD, 0, v(PV_GD), "vcc")
    V("lshl_add_u32", PV_US, v(V_L), 1, T1)

def pads():
    t = VT
    c("SPLIT")
    for i in range(4): V("mov_b32", t + 4 + i, 0)
    V("lshrrev_b32", t, 3, v(V_L)); V("mul_u32_u24", t, 1152, v(t)); V("and_b32", t + 1, 7, v(V_L)); V("lshl_add_u32", t, v(t + 1), 4, v(t)); V("add_u32", t, L_UP, v(t))
    V("bfe_u32", t + 1, v(V_L), 2, 1); V("mul_u32_u24", t + 1, 4160, v(t + 1)); V("and_b32", t + 2, 3, v(V_L)); V("lshl_add_u32", t + 1, v(t + 2), 4, v(t + 1)); V("add_u32", t + 1, L_KF, v(t + 1))
    V("lshlrev_b32", t + 2, 4, v(t + 2)); V("add_u32", t + 2, L_FL, v(t + 2))
    for k in range(3): e("ds_write_b128 v%d, %s" % (t + k, vr(t + 4, 4)))

def loader_path():
    c("======== loader waves ========")
    if OPT["gprio"] == 2: e("s_setprio 1")
    loader_addr()
    e("s_waitcnt lgkmcnt(0)")
    stamp("karg")
    srd(R_X, S_X, 2048 * 1024); srd(R_W, S_W, 512 * 3072)
    scalar_loads()
    issue_chunk(0)
    if OPT["echo"]: stamp("i0")
    srd(R_WS, S_WS, WS_SIZE - (OPT["wsb"] << 20)); srd(R_OUT, S_OUT, 2048 * 2048); srd(R_WO, S_WO, 512 * 1024)
    late = capture(lambda: (precompute_conv(), precompute(), kgen_addr(), pads()))
    def upto(n):
        while n < len(late) and "SPLIT" not in late[n]: n += 1
        SINK[0].extend(late[:n]); del late[:n]
    upto(OPT["npre"])
    if OPT["echo"]: stamp("pre")
    issue_chunk(1)
    if OPT["echo"]: stamp("i1")
    waits = [8, 8, 8, 8, 8, 8, 9, 1]
    for ci in range(8):
        c("loader chunk %d" % ci)
        e("s_waitcnt vmcnt(%d)" % waits[ci])
        if OPT["echo"] and ci in (0, 1, 2): stamp("ld%d" % ci)
        if OPT["ldst"] and ci in (0, 1, 2, 3, 4): e("s_memrealtime s[%d:%d]" % (80 + 4 * ci, 81 + 4 * ci))
        e("s_barrier")
        if OPT["ldst"] and ci in (0, 1, 2, 3, 4): e("s_memrealtime s[%d:%d]" % (82 + 4 * ci, 83 + 4 * ci))
        if ci in (0, 7): stamp("ch%d" % ci)
        if ci + 2 < 8: issue_chunk(ci + 2)
        if ci < 5 and OPT["lsp"]: upto(OPT["lsp"])
        if ci == 5:
            sshl(T5, XQ, 12); sadd(T5, T5, WS_F0)
            V("lshlrev_b32", 42, 7, v(V_L))
            e("s_mov_b32 exec_hi, 0")
            e("buffer_load_dword v%d, v42, %s, %s offen sc1" % (G_PL, R_WS, T5))
            e("s_mov_b32 exec_hi, -1")
            upto(len(late) // 2)
        if ci == 6: upto(9999)
    poll("L_poll0", T5, first_issued=G_PL, nwait=0)
    c("u of this WG's channel pair (transposed by the group)")
    sshl(T0, XQ, 5); sadd(T0, T0, I5); sshl(T0, T0, 13); sadd(T0, T0, T4); sadd(T0, T0, WS_U2)
    e("buffer_load_dwordx4 %s, v%d, %s, %s offen sc1" % (vr(U2R, 4), V_L16, R_WS, T0))
    e("buffer_load_dwordx4 %s, v%d, %s, %s offen offset:1024 sc1" % (vr(U2R + 4, 4), V_L16, R_WS, T0))
    e("s_barrier")
    stamp("K1")
    c("---- S4 kernel K = A-table x B-table (rows duplicated to realise bf16(l)) ----")
    FA, FB, AC = 96, 128, 160
    def rd(s):
        e("ds_read_b128 %s, v%d offset:%d" % (vr(FA + 4 * (s % 8), 4), PV_GA, 32 * s))
        e("ds_read_b128 %s, v%d offset:%d" % (vr(FB + 4 * (s % 8), 4), PV_GB, 32 * s))
    for s in range(7): rd(s)
    e("v_and_b32 v%d, 1, v%d" % (VT, V_L))
    e("v_cmp_eq_u32 vcc, 0, v%d" % VT)
    uw = []
    for h in range(2):
        for p in range(4):
            uw.append("    ds_write_b16 v%d, v%d offset:%d" % (PV_US, U2R + 4 * h + p, 1152 * p + 128 * h))
            uw.append("    ds_write_b16_d16_hi v%d, v%d offset:%d" % (PV_US, U2R + 4 * h + p, 4608 + 1152 * p + 128 * h))
    nw = 0
    for s in range(16):
        e("s_waitcnt lgkmcnt(%d)" % (2 * (min(s + 6, 15) - s) + nw))
        e("v_mfma_f32_32x32x16_bf16 %s, %s, %s, %s" % (vr(AC, 16), vr(FA + 4 * (s % 8), 4), vr(FB + 4 * (s % 8), 4), "0" if s == 0 else vr(AC, 16)))
        if s + 7 < 16: rd(s + 7)
        if s == 10:
            stamp("preU")
            e("s_waitcnt vmcnt(0)")
            stamp("gotU")
        if 10 <= s < 15:
            SINK[0].extend(uw[nw:nw + 3]); nw += 3
    SINK[0].extend(uw[15:])
    nop(11)
    V("add_f32", AC, v(AC), v(PV_GD))
    e("s_bitcmp1_b32 %s, 0" % WV)
    e("s_cbranch_scc0 L_kg_nofix")
    V("cndmask_b32", AC + 4, v(AC + 5), v(AC + 3), "vcc"); V("cndmask_b32", AC + 12, v(AC + 13), v(AC + 11), "vcc")
    lab("L_kg_nofix")
    for i in range(8): V("cvt_pk_bf16_f32", FA + i, v(AC + 2 * i), v(AC + 2 * i + 1))
    e("ds_write_b128 v%d, %s" % (PV_GW, vr(FA, 4)))
    e("ds_write_b128 v%d, %s offset:1024" % (PV_GW, vr(FA + 4, 4)))
    e("s_branch L_gemm_done")

def cmul_multi(lst):
    for d, a, b in lst:
        e("v_pk_mul_f32 %s, %s, %s op_sel:[0,0] op_sel_hi:[1,0]" % (vr(d, 2), vr(a, 2), vr(b, 2)))
    for d, a, b in lst:
        e("v_pk_fma_f32 %s, %s, %s, %s op_sel:[1,1,0] op_sel_hi:[0,1,1] neg_lo:[1,0,0]" % (vr(d, 2), vr(a, 2), vr(b, 2), vr(d, 2)))
def cexp_multi(lst, va, vb):
    for d, Lf, t, cj in lst:
        V("mul_f32", t, fl(Lf), v(va)); V("mul_f32", t + 1, fl(-Lf if cj else Lf), v(vb)); V("fract_f32", t + 1, v(t + 1))
    for d, Lf, t, cj in lst:
        V("exp_f32", t, v(t)); V("cos_f32", d, v(t + 1)); V("sin_f32", d + 1, v(t + 1))
    e("s_nop 0")
    for d, Lf, t, cj in lst:
        e("v_pk_mul_f32 %s, %s, %s op_sel:[0,0] op_sel_hi:[1,0]" % (vr(d, 2), vr(d, 2), vr(t, 2)))

KVA, KVB, KVD = 220, 221, 25
def kgen_b():
    c("---- S4 mode tables: B = exp(z*8j) -> LDS ----")
    va, vb, vdt, ta = KVA, KVB, KVD, VT + 4
    e("s_bitcmp1_b32 %s, 1" % WV)
    e("s_cselect_b32 %s, 0, 16" % T0)
    sshl(T0, LD2, T0); sand(T0, T0, 0xffff0000)
    V("mov_b32", vdt, fl(LOG2E)); V("mul_f32", vdt, T0, v(vdt)); V("exp_f32", vdt, v(vdt))
    for i in range(2): V("lshlrev_b32", V_PAR + i, 16, v(V_PAR + i))
    V("cvt_pk_bf16_f32", vdt, v(vdt), v(vdt)); V("and_b32", vdt, 0xffff0000, v(vdt))
    V("mul_f32", va, v(vdt), v(V_PAR)); V("mul_f32", vb, v(vdt), v(V_PAR + 1))
    V("mul_f32", va, fl(LOG2E), v(va)); V("mul_f32", vb, fl(1.0 / (2 * math.pi)), v(vb))
    P = lambda j: KB + 2 * j
    G = lambda k: KB + 16 + 2 * k
    X = KB + 24
    cv = [KB + 40 + i for i in range(8)]
    n = [0]
    def putb(row, pr):
        r = cv[n[0] % 8]; n[0] += 1
        V("cvt_pk_bf16_f32", r, v(pr), v(pr + 1))
        e("ds_write_b32 v46, v%d offset:%d" % (r, row * 528))
    cexp_multi([(P(1), 8.0, ta, 0), (G(1), 64.0, ta + 2, 0)], va, vb)
    V("mov_b32", cv[7], 0x3f80); e("ds_write_b32 v46, v%d" % cv[7])
    cmul_multi([(P(2), P(1), P(1)), (G(2), G(1), G(1))])
    putb(1, P(1)); putb(8, G(1))
    cmul_multi([(P(3), P(2), P(1)), (P(4), P(2), P(2)), (G(3), G(2), G(1))])
    putb(2, P(2)); putb(16, G(2))
    cmul_multi([(P(5), P(4), P(1)), (P(6), P(4), P(2)), (P(7), P(4), P(3))])
    for r, p in ((3, P(3)), (4, P(4)), (24, G(3)), (5, P(5)), (6, P(6)), (7, P(7))): putb(r, p)
    for k in range(1, 4):
        cmul_multi([(X + 2 * j, P(j), G(k)) for j in range(1, 8)])
        for j in range(1, 8): putb(8 * k + j, X + 2 * j)

def kgen_a():
    va, vb, vdt, ta = KVA, KVB, KVD, VT + 4
    E = lambda j: 224 + 2 * j - 2
    Q = lambda j: 160 + 2 * j
    H = lambda k: 176 + 2 * k
    X = 224
    def puta(row, pr): V("cvt_pk_bf16_f32", KR + row, v(pr), v(pr + 1))
    cexp_multi([(E(1), 1.0, ta, 1), (H(1), 256.0, ta + 2, 1)], va, vb)
    for i in range(2, 6): V("lshlrev_b32", V_PAR + i, 16, v(V_PAR + i))
    V("mul_f32", ta, v(vdt), v(V_PAR + 2)); e("v_mul_f32 v%d, -v%d, v%d" % (ta + 1, vdt, V_PAR + 3))
    V("mov_b32", ta + 2, v(V_PAR + 4)); V("mul_f32", ta + 3, "-1.0", v(V_PAR + 5))
    cmul_multi([(Q(0), ta, ta + 2), (E(2), E(1), E(1)), (H(2), H(1), H(1))])
    cmul_multi([(E(3), E(2), E(1)), (E(4), E(2), E(2)), (H(3), H(2), H(1)), (H(4), H(2), H(2))])
    puta(0, Q(0))
    cmul_multi([(E(5), E(4), E(1)), (E(6), E(4), E(2)), (E(7), E(4), E(3)), (E(8), E(4), E(4)), (H(5), H(4), H(1)), (H(6), H(4), H(2)), (H(7), H(4), H(3))])
    cmul_multi([(Q(j), Q(0), E(j)) for j in range(1, 9)])
    for j in range(1, 8): puta(j, Q(j))
    cmul_multi([(X + 2 * i, H(1), Q(2 * i)) for i in range(5)] + [(X + 10 + 2 * i, H(2), Q(4 * i)) for i in range(3)])
    for i in range(8): puta(8 + i, X + 2 * i)
    cmul_multi([(X + 2 * i, H(3), Q(4 * i)) for i in range(3)] + [(X + 6, H(4), Q(0)), (X + 8, H(4), Q(8)), (X + 10, H(5), Q(0)), (X + 12, H(5), Q(8))])
    for i in range(7): puta(16 + i, X + 2 * i)
    cmul_multi([(X, H(6), Q(0)), (X + 2, H(6), Q(8)), (X + 4, H(7), Q(0)), (X + 6, H(7), Q(8))])
    for i in range(4): puta(23 + i, X + 2 * i)

def compute_path():
    t = VT
    lab("L_compute")
    if OPT["gprio"] == 1: e("s_setprio 1")
    c("======== compute waves ========")
    e("s_bfe_u32 %s, %s, 0x10001" % (T0, WV)); sadd(T0, T0, C0); sshl(T0, T0, 8); sand(T1, WV, 1); sshl(T1, T1, 7); sadd(T0, T0, T1)
    V("lshl_add_u32", V_PA, v(V_L), 1, T0)
    e("s_waitcnt lgkmcnt(0)")
    stamp("karg")
    if OPT["pfx"]:
        c("touch this WG's 1/256 share of x and Wqkv so that HBM streams them in at once")
        V("lshlrev_b32", 252, 7, v(V_L)); V("min_u32", 253, 47 * 128, v(252))
        sshl(T0, "s2", 13); smul(T1, "s2", 6144)
        V("add_u32", 252, T0, v(252)); V("add_u32", 253, T1, v(253))
        e("s_cmp_eq_u32 %s, 0" % WV)
        e("s_cbranch_scc0 L_pfx1")
        e("global_load_dword v252, v252, %s" % sr(S_X, 2))
        lab("L_pfx1")
        e("s_cmp_eq_u32 %s, 1" % WV)
        e("s_cbranch_scc0 L_pfx2")
        e("global_load_dword v253, v253, %s" % sr(S_W, 2))
        lab("L_pfx2")
    for i, s in enumerate((S_ARE, S_AIM, S_BRE, S_BIM, S_CRE, S_CIM)):
        e("global_load_ushort v%d, v%d, %s" % (V_PAR + i, V_PA, sr(s, 2)))
    scalar_loads()
    srd(R_U, S_U, 2048 * 1024)
    u_coop_loads()
    if OPT["pfw"]:
        c("XCD slots 0..3 usually start first: warm the memory-side cache with the W columns of head quads 4..7")
        e("s_cmp_eq_u32 %s, 0" % WV); e("s_cbranch_scc0 L_pfw")
        e("s_cmp_lt_u32 %s, 4" % XQ); e("s_cbranch_scc0 L_pfw")
        sshl(T0, XQ, 5); sadd(T0, T0, I5); smul(T0, T0, 4 * 3072); sadd(T0, T0, 512)
        V("min_u32", 252, 47, v(V_L)); V("mul_u32_u24", 253, 0x1556, v(252)); V("lshrrev_b32", 253, 16, v(253))
        V("mul_u32_u24", 254, 12, v(253)); V("sub_u32", 252, v(252), v(254))
        V("mul_u32_u24", 253, 3072, v(253)); V("lshrrev_b32", 254, 2, v(252)); V("lshl_add_u32", 253, v(254), 10, v(253))
        V("and_b32", 252, 3, v(252)); V("lshl_add_u32", 253, v(252), 7, v(253)); V("add_u32", 253, T0, v(253))
        e("global_load_dword v253, v253, %s" % sr(S_W, 2))
        e("s_branch L_pfw2")
        lab("L_pfw")
        e("global_load_dword v253, v%d, %s" % (V_L16, sr(S_W, 2)))
        lab("L_pfw2")
    if OPT["pf"] == 1:
        c("pull this WG's 1/32 share of the code into L2")
        e("s_getpc_b64 s[4:5]")
        lab("L_pc")
        sshl(T0, I5, 3); V("add_u32", t, T0, v(V_L)); V("lshlrev_b32", t, 7, v(t))
        e("v_min_u32 v%d, L_end-L_pc-4, v%d" % (t, t))
        e("s_mov_b64 exec, 0xff")
        e("global_load_dword v47, v%d, s[4:5]" % t)
        e("s_mov_b64 exec, -1")
    srd(R_WS, S_WS, WS_SIZE - (OPT["wsb"] << 20)); srd(R_OUT, S_OUT, 2048 * 2048); srd(R_WO, S_WO, 512 * 1024)
    gemm_read_addr()
    e("s_waitcnt vmcnt(%d) lgkmcnt(0)" % (8 + (OPT["pf"] == 1) + OPT["pfw"]))
    sadd(TAG, TAG, 1)
    if OPT["echo"]: stamp("par")
    kgen_b()
    pc = [x for x in capture(kgen_a) if not x.strip().startswith(";")]
    if OPT["apre"]:
        e("s_waitcnt vmcnt(%d)" % (4 + (OPT["pf"] == 1) + OPT["pfw"]))
        SINK[0].extend(pc[:OPT["apre"]]); del pc[:OPT["apre"]]
    if OPT["uat"] < 0:
        u_coop_perm(); e("s_waitcnt lgkmcnt(0)"); u_coop_stores()
    if OPT["echo"]: stamp("cp0")
    if "F" in OPT["abl"]: pc = pc[:20]
    if "U" in OPT["abl"]: pc = pc[20:]
    def f0flag():
        sshl(I0, XQ, 5); sadd(I0, I0, I5); sshl(I0, I0, 7); sadd(I0, I0, WS_F0)
        flag_store(I0, 26)
    def fill(n):
        for _ in range(n):
            if pc: SINK[0].append(pc.pop(0))
    def ml(s, first=False):
        cc = lambda k: "0" if first else vr(G_ACC[k], 16)
        return ["v_mfma_f32_32x32x16_bf16 %s, %s, %s, %s" % (vr(G_ACC[0], 16), vr(G_W0F + 4 * s, 4), vr(G_XF + 4 * s, 4), cc(0)),
                "v_mfma_f32_32x32x16_bf16 %s, %s, %s, %s" % (vr(G_ACC[1], 16), vr(G_W1F + 4 * s, 4), vr(G_XF + 4 * s, 4), cc(1)),
                "v_mfma_f32_32x32x16_bf16 %s, %s, %s, %s" % (vr(G_ACC[2], 16), vr(G_XF + 4 * s, 4), vr(G_VF + 4 * s, 4), cc(2))]
    def ilv(ms, rs, nf):
        k = 0
        for i, m in enumerate(ms):
            if "M" not in OPT["abl"] or m.endswith(", 0"): e(m)
            upto = (len(rs) * (i + 1) + len(ms) - 1) // len(ms)
            SINK[0].extend(rs[k:upto]); k = upto
            fill(nf)
    for ci in range(8):
        c("compute chunk %d" % ci)
        hi = (ci % 3) == 2
        ib = 32768 if ci % 3 == 1 else 0
        xa = G_XA + (4 if hi else 0)
        wa = G_WB if hi else G_WA
        if ci == 4: e("s_waitcnt vmcnt(0)")
        e("s_barrier")
        if ci in (0, 7): stamp("ch%d" % ci)
        if ci == 4: f0flag()
        def reads(s):
            if "R" in OPT["abl"]: return
            e("ds_read_b128 %s, v%d offset:%d" % (vr(G_XF + 4 * s, 4), xa + s, ib))
            for k, f in enumerate((G_W0F, G_W1F, G_VF)):
                for tt in range(2):
                    e("ds_read_b64_tr_b16 %s, v%d offset:%d" % (vr(f + 4 * s + 2 * tt, 2), wa + k, ib + (16 * s + 4 * tt) * 128))
        r0, r1 = capture(reads, 0), capture(reads, 1)
        nf = 1 if ci != OPT["uat"] and ci < 7 else 0
        if ci > 0:
            SINK[0].extend(r0[:3]); ilv(ml(3), r0[3:] + r1[:5], 0); SINK[0].extend(r1[5:])
        else: SINK[0].extend(r0 + r1)
        if ci == OPT["uat"] + 1 and OPT["ust2"]: u_coop_stores()
        fill(OPT["f0"] * nf)
        e("s_waitcnt lgkmcnt(7)"); ilv(ml(0, ci == 0), capture(reads, 2), nf)
        e("s_waitcnt lgkmcnt(7)"); ilv(ml(1), capture(reads, 3), nf)
        e("s_waitcnt lgkmcnt(7)")
        if ci < 7:
            if ci == OPT["uat"]: ilv(ml(2), capture(u_coop_perm), 0)
            else: ilv(ml(2), [], OPT["f2"] * nf)
            if ci == 6: fill(999)
            e("s_waitcnt lgkmcnt(0)")
            if ci == OPT["uat"] and not OPT["ust2"]: u_coop_stores()
    tw = ["    ds_write_b32 v%d, v%d offset:%d" % (PV_TW, KR + r, r * 528) for r in range(27)]
    ilv(ml(2), tw[:8], 0)
    e("s_waitcnt lgkmcnt(8)")
    ilv(ml(3), tw[8:], 0)
    sadd(T1, sQKV, WS_K); sadd(T2, sQKV, WS_K + 65536); sadd(T3, sQKV, WS_V); sadd(T4, sQKV, WS_Q + 65536); sadd(T0, sQKV, WS_Q)
    e("s_waitcnt lgkmcnt(0)")
    e("s_barrier")
    stamp("K1")
    c("GEMM epilogue: publish Q,K,V")
    P = G_XF
    def pk(dst, src):
        for i in range(4): V("cvt_pk_bf16_f32", dst + i, v(src + 2 * i), v(src + 1 + 2 * i))
    def st(r, va, so, off=0):
        e("buffer_store_dwordx4 %s, v%d, %s, %s offen%s sc1" % (vr(r, 4), va, R_WS, so, " offset:%d" % off if off else ""))
    pk(P, G_ACC[0] + 8); st(P, PV_QS, T1)
    pk(P + 4, G_ACC[1] + 8); st(P + 4, PV_QS, T2)
    pk(P + 8, G_ACC[2]); st(P + 8, PV_VS, T3)
    pk(P + 12, G_ACC[2] + 8); st(P + 12, PV_VS, T3, 512)
    for k, so in ((0, T0), (1, T4)):
        for i in range(8): V("mul_f32", G_ACC[k] + i, fl(0.25 * LOG2E), v(G_ACC[k] + i))
        pk(P + 16 + 4 * k, G_ACC[k]); st(P + 16 + 4 * k, PV_QS, so)
    stamp("pub")
    precompute_conv()
    if OPT["gsig"] < 0: signal("p", 16, 3, sF1)

C_LO, C_UP = 128, 144
C_A, C_X, C_Y = 160, 176, 192
def signal(tag, cnt_off, last, soff):
    t = VT + 4
    V("mov_b32", t + 2, L_FL + cnt_off); V("mov_b32", t + 3, 1)
    stamp("presig" + ("1" if cnt_off == 16 else "2"))
    e("s_waitcnt vmcnt(0)")
    stamp("acked" + ("1" if cnt_off == 16 else "2"))
    e("s_mov_b64 exec, 1")
    e("ds_add_rtn_u32 v%d, v%d, v%d" % (t + 3, t + 2, t + 3))
    e("s_mov_b64 exec, -1")
    e("s_waitcnt lgkmcnt(0)")
    e("v_readfirstlane_b32 %s, v%d" % (T0, t + 3))
    e("s_cmp_eq_u32 %s, %d" % (T0, last))
    e("s_cbranch_scc0 L_sig_%s" % tag)
    flag_store(soff, t)
    lab("L_sig_%s" % tag)

def attn_init():
    V("and_b32", 31, 31, v(V_L)); e("v_cmp_eq_u32 vcc, 16, v31"); V("mov_b32", 31, 0x3f803f80); V("mov_b32", 255, 0xdddddddd)
    e("s_mov_b32 s4, 0xffff"); e("s_mov_b32 s5, 0xffff")
    for i in range(16): V("cndmask_b32", 208 + i, 0, v(31), "vcc")
    for i in range(32): V("mov_b32", 72 + i, 0)

def conv_job(T, s0, nfull, tail, va, vb, sig=None, sig_after=1, fills=None, bar_after=-1):
    def rdA(k, sg):
        e("ds_read_b64_tr_b16 %s, v%d offset:%d" % (vr(C_A + 4 * k, 2), va, 128 * sg + 32))
        e("ds_read_b64_tr_b16 %s, v%d offset:%d" % (vr(C_A + 4 * k + 2, 2), va, 128 * sg))
    def rdB(dst, k, sg):
        e("ds_read_b128 %s, v%d offset:%d" % (vr(dst + 4 * k, 4), vb, 112 + 128 * T - 32 * sg))
    def mf(acc, k, b, first=False):
        e("v_mfma_f32_32x32x16_bf16 %s, %s, %s, %s" % (vr(acc, 16), vr(C_A + 4 * k, 4), vr(b + 4 * k, 4), "0" if first else vr(acc, 16)))
        for _ in range(OPT["cfill"]):
            if fl_: SINK[0].append(fl_.pop(0))
    fl_ = list(fills or [])
    pend = []
    def note(step, n): pend.extend([step] * n)
    def wait(step):
        n = sum(1 for x in pend if x > step)
        e("s_waitcnt lgkmcnt(%d)" % n)
        pend[:] = [x for x in pend if x > step]
    if sig and sig_after == -2: sig()
    for k in range(4):
        rdA(k, s0 + k); rdB(C_Y, k, s0 + k - 4); rdB(C_X, k, s0 + k); note(k, 4)
    cur, old = C_X, C_Y
    if sig and sig_after == 0: sig(); del pend[:]
    if bar_after == 0: e("s_barrier")
    for sec in range(nfull):
        for k in range(4):
            st = 4 * sec + k
            wait(st)
            mf(C_UP, k, old, st == 0)
            if sec + 1 < nfull: rdB(old, k, s0 + st + 4); note(st + 4, 1)
            mf(C_LO, k, cur, st == 0)
            if sec + 1 < nfull or tail: rdA(k, s0 + st + 4); note(st + 4, 2)
        cur, old = old, cur
        if sig and sec + 1 == sig_after: sig(); del pend[:]
        if sec + 1 == bar_after: e("s_barrier")
    if tail:
        for k in range(4):
            wait(4 * nfull + k)
            mf(C_UP, k, old)
    n = len(fl_)
    SINK[0].extend(fl_)
    nop(max(0, (2 if tail else 12) - n))

def z_writes(va, row0):
    for k in range(4): e("ds_write_b128 v%d, %s offset:%d" % (va, vr(C_LO + 4 * k, 4), 144 * row0 + 32 * k))
    nop(8)
    for k in range(4): e("ds_write_b128 v%d, %s offset:%d" % (va, vr(C_UP + 4 * k, 4), 144 * (row0 + 8) + 32 * k))

def conv():
    c("---- causal conv as Toeplitz MFMA, output tiles 0..5 ----")
    ini = capture(attn_init)
    e("s_cmp_ge_u32 %s, 4" % WV)
    e("s_cbranch_scc1 L_conv_hi")
    e("s_bitcmp1_b32 %s, 0" % WV)
    e("s_cbranch_scc1 L_conv_2a")
    conv_job(0, 0, 1, True, PV_CA, PV_CB, lambda: signal("a", 16, 3, sF1), min(1, OPT["gsig"]), fills=ini); z_writes(PV_ZW, 0)
    e("s_branch L_conv_done")
    lab("L_conv_2a")
    conv_job(4, 0, 3, False, PV_CA, PV_CB, lambda: signal("b", 16, 3, sF1), OPT["gsig"], fills=ini); z_writes(PV_ZW, 32)
    e("s_branch L_conv_done")
    lab("L_conv_hi")
    e("s_bitcmp1_b32 %s, 0" % WV)
    e("s_cbranch_scc1 L_conv_2b")
    conv_job(2, 0, 3, True, PV_CA, PV_CB, fills=ini); z_writes(PV_ZW, 16)
    e("s_branch L_conv_done")
    lab("L_conv_2b")
    conv_job(4, 12, 2, True, PV_CA, PV_CB, fills=ini); z_writes(PV_ZW, 32 + 17)
    lab("L_conv_done")
    stamp("cend")

def kv_tiles(msrc, soff):
    e("s_mov_b32 m0, %s" % msrc)
    e("s_nop 0")
    for i in range(8):
        if i == 4: sadd("m0", "m0", 4096); sadd(soff, soff, 4096)
        e("buffer_load_dwordx4 v%d, %s, %s offen offset:%d sc1 lds" % (V_L16, R_WS, soff, 1024 * (i % 4)))

def q_loads():
    e("buffer_load_dwordx4 %s, v%d, %s, %s offen sc1" % (vr(64, 4), V_L16, R_WS, sQL))
    e("buffer_load_dwordx4 %s, v%d, %s, %s offen offset:1024 sc1" % (vr(68, 4), V_L16, R_WS, sQL))

def kv_early():
    t = VT
    e("s_cmp_ge_u32 %s, 4" % WV)
    e("s_cbranch_scc1 L_kve_done")
    precompute(); precompute_tail()
    e("s_bitcmp1_b32 %s, 0" % WV)
    e("s_cbranch_scc1 L_kve_done")
    e("s_cmp_eq_u32 %s, 0" % WV)
    e("s_cbranch_scc0 L_kve_w2")
    for i in range(4): V("mov_b32", C_A + i, 0)
    V("and_b32", t + 2, 7, v(V_L)); V("mul_u32_u24", t + 2, ZS, v(t + 2)); V("bfe_u32", t + 3, v(V_L), 3, 1); V("mul_u32_u24", t + 3, 49 * 144, v(t + 3))
    V("add_u32", t + 2, v(t + 2), v(t + 3)); V("add_u32", t + 2, L_Z + 112, v(t + 2))
    e("ds_write_b128 v%d, %s" % (t + 2, vr(C_A, 4)))
    e("s_mov_b32 %s, 0" % T5); sadd(T3, sHB, WS_K)
    e("s_branch L_kve_go")
    lab("L_kve_w2")
    e("s_mov_b32 %s, 8192" % T5); sadd(T3, sHB, WS_V)
    lab("L_kve_go")
    poll("L_poll1", sF1P, t=VT + 4)
    stamp("poll1")
    if OPT["qearly"]:
        V("mov_b32", t + 2, L_FL + 32); V("mov_b32", t + 3, 1)
        e("ds_write_b32 v%d, v%d" % (t + 2, t + 3))
        q_loads()
    sshl(T0, JR, 13); sadd(T0, T0, T3)
    kv_tiles(T5, T0)
    if not OPT["b1late"]:
        sadd(T0, JR, 1); sand(T0, T0, 7); sshl(T0, T0, 13); sadd(T0, T0, T3); sadd(T5, T5, BLK)
        kv_tiles(T5, T0)
    if OPT["qearly"]:
        e("s_branch L_kve_out")
        lab("L_kve_done")
        V("mov_b32", t + 2, L_FL + 32)
        e("s_mov_b32 %s, 0" % CNT)
        lab("L_qsp")
        e("ds_read_b32 v%d, v%d" % (t + 3, t + 2))
        sadd(CNT, CNT, 1)
        e("s_waitcnt lgkmcnt(0)")
        e("v_readfirstlane_b32 %s, v%d" % (T0, t + 3))
        e("s_cmp_gt_u32 %s, 0x200000" % CNT)
        e("s_cbranch_scc1 L_qsp_done")
        e("s_cmp_eq_u32 %s, 0" % T0)
        e("s_cbranch_scc1 L_qsp")
        lab("L_qsp_done")
        q_loads()
        lab("L_kve_out")
    else: lab("L_kve_done")

A_Q = [64, 68]
A_S = [104, 120]
A_O = [72, 88]
A_KF = [136, 140]
A_VA = [208, 212]
A_VB = [216, 220]
A_IDX = 63 + 192
A_F = 164
A_NM = 120
WOR = 192
Y_R = 32
def conv_epilogue():
    c("y[t] = sum_p Z_p[t-p]")
    e("s_waitcnt lgkmcnt(0)")
    e("s_barrier")
    stamp("zbar")
    if not OPT["qearly"]: q_loads()
    order = [(0, 0), (0, 4 * ZS), (288, 0), (288, 4 * ZS), (0, 0), (17 * 144, 0), (0, 4 * ZS), (17 * 144, 4 * ZS)]
    def rd(n):
        if n == 4:
            for p in range(4): V("add_u32", PV_ZR + p, T0, v(PV_ZR + p))
        for p in range(4): e("ds_read_b32 v%d, v%d offset:%d" % (Y_R + 4 * n + p, PV_ZR + p, sum(order[n])))
    rd(0); rd(1); rd(2)
    smul(T0, WV, 288); e("s_sub_u32 %s, 4608, %s" % (T0, T0))
    e("s_cmp_eq_u32 %s, 6" % WV)
    e("s_cbranch_scc0 L_nocarry")
    c("carry: last rows of tile 5 (both partials) feed y[1536..1538], finished in the tail")
    t = VT
    for i in range(4): V("mov_b32", PV_CY + i, 0)
    V("and_b32", t, 7, v(V_L)); V("mul_u32_u24", t, ZS, v(t)); V("bfe_u32", t + 1, v(V_L), 3, 1); V("mul_u32_u24", t + 1, 17 * 144, v(t + 1))
    V("add_u32", t, v(t), v(t + 1)); V("add_u32", t, L_Z + 48 * 144 + 112, v(t))
    e("s_mov_b64 exec, 0xffff")
    e("ds_read_b128 %s, v%d" % (vr(PV_CY, 4), t))
    e("s_mov_b64 exec, -1")
    e("s_waitcnt lgkmcnt(0)")
    lab("L_nocarry")
    for n in range(8):
        r = Y_R + 4 * n
        e("s_waitcnt lgkmcnt(%d)" % (4 * (min(n + 2, 7) - n)))
        if n + 3 < 8: rd(n + 3)
        V("add_f32", r, v(r), v(r + 1)); V("add_f32", r + 2, v(r + 2), v(r + 3)); V("add_f32", r, v(r), v(r + 2))
        if n in (1, 3): V("cvt_pk_bf16_f32", V_Y + n // 2, v(r - 4), v(r))
        if n in (5, 7): V("add_f32", r, v(r), v(r - 4))
    V("cvt_pk_bf16_f32", V_Y + 2, v(Y_R + 20), v(Y_R + 28))

def kv_late():
    t = VT
    e("s_cmp_ge_u32 %s, 4" % WV)
    if OPT["b1late"]:
        e("s_cbranch_scc1 L_kvl")
        e("s_waitcnt vmcnt(0)")
        e("s_barrier")
        stamp("S")
        e("s_branch L_kvl_done")
        lab("L_kvl")
    else: e("s_cbranch_scc0 L_kvl_done")
    sand(T1, WV, 3); sshl(T0, T1, 2); sadd(T0, T0, L_FL)
    V("mov_b32", t, T0); V("mov_b32", t + 1, 2); V("mov_b32", t + 2, 3); V("mov_b32", t + 3, 1)
    sshl(T1, T1, 11); sadd(T0, sHB, T1)
    for b in range(1 if OPT["b1late"] else 2, 8):
        sadd(T2, JR, b); sand(T2, T2, 7); sshl(T2, T2, 13); sadd(T2, T2, T0)
        sadd("m0", T1, b * BLK); sadd(T3, T2, WS_K)
        e("buffer_load_dwordx4 v%d, %s, %s offen sc1 lds" % (V_L16, R_WS, T3))
        sadd(T4, T2, WS_V)
        e("buffer_load_dwordx4 v%d, %s, %s offen offset:1024 sc1 lds" % (V_L16, R_WS, T3))
        sadd("m0", T1, b * BLK + 8192); e("s_nop 0")
        e("buffer_load_dwordx4 v%d, %s, %s offen sc1 lds" % (V_L16, R_WS, T4))
        e("buffer_load_dwordx4 v%d, %s, %s offen offset:1024 sc1 lds" % (V_L16, R_WS, T4))
        if b == 1:
            e("s_waitcnt vmcnt(4)")
            e("s_barrier")
            stamp("S")
        if b == 2 and OPT["b1late"]:
            e("s_waitcnt vmcnt(4)")
            e("ds_write_b32 v%d, v%d" % (t, t + 3))
        if b == 5:
            e("s_waitcnt vmcnt(8)")
            e("ds_write_b32 v%d, v%d" % (t, t + 1))
    precompute_tail()
    e("s_waitcnt vmcnt(0) lgkmcnt(0)")
    e("ds_write_b32 v%d, v%d" % (t, t + 2))
    lab("L_kvl_done")

def kv_check(stage):
    t = VT + 4
    lb = "L_kvchk%d" % stage
    V("mov_b32", t, L_FL)
    e("s_mov_b32 %s, 0" % T3)
    lab(lb)
    e("ds_read_b128 %s, v%d" % (vr(t + 2, 4), t))
    sadd(T3, T3, 1)
    e("s_waitcnt lgkmcnt(0)")
    V("min_u32", t + 2, v(t + 2), v(t + 3)); V("min3_u32", t + 2, v(t + 2), v(t + 4), v(t + 5))
    e("s_cmp_gt_u32 %s, 0x40000" % T3)
    e("s_cbranch_scc1 %s_done" % lb)
    e("v_readfirstlane_b32 %s, v%d" % (T4, t + 2))
    e("s_cmp_lt_u32 %s, %d" % (T4, stage))
    e("s_cbranch_scc1 %s" % lb)
    lab(lb + "_done")

def attn_main():
    c("---- attention main loop: wave = 2 q-tiles x 32 key tiles (parity w>>2), fully unrolled ----")
    base = [0]
    koff = lambda i: (i // 4 - base[0]) * BLK + (i % 4) * 2048
    def rdK(i):
        if i < 32: e("ds_read_b128 %s, v%d offset:%d" % (vr(A_KF[i & 1], 4), PV_KA, koff(i)))
    def rdV(i):
        if i < 32:
            e("s_mov_b64 exec, s[4:5]")
            e("ds_read_b128 %s, v%d offset:%d" % (vr(A_VA[i & 1], 4), PV_V0, koff(i)))
            e("ds_read_b128 %s, v%d offset:%d" % (vr(A_VB[i & 1], 4), PV_V0, koff(i) + 512))
            e("s_mov_b64 exec, -1")
    def qk(i, q):
        if i < 32: e("v_mfma_f32_32x32x16_bf16 %s, %s, %s, 0" % (vr(A_S[q], 16), vr(A_KF[i & 1], 4), vr(A_Q[q], 4)))
    def pv(i, q, half):
        if i < 0: return
        a = (A_VA if half == 0 else A_VB)[i & 1]
        e("v_smfmac_f32_32x32x32_bf16 %s, %s, %s, v%d" % (vr(A_O[q], 16), vr(a, 4), vr(A_S[q] + 8 * half, 8), A_IDX))
    def ex(q, lo, hi):
        for k in range(lo, hi): e("v_exp_f32 v%d, v%d" % (A_S[q] + k, A_S[q] + k))
    rdK(0); rdK(1); rdV(0)
    e("s_cmp_ge_u32 %s, 4" % WV)
    e("s_cbranch_scc1 L_prio1")
    e("s_setprio 2")
    e("s_branch L_prio_done")
    lab("L_prio1")
    e("s_setprio 1")
    lab("L_prio_done")
    e("s_waitcnt lgkmcnt(3)")
    qk(0, 0)
    nop(12)
    ytiles = OPT["yt"]; wtiles = OPT["wt"]
    for i in range(32):
        c("key tile %d" % i)
        if i in (OPT["flip1"], OPT["flip"], OPT["mid"]):
            if i == OPT["mid"]: e("s_barrier")
            e("s_cmp_ge_u32 %s, 4" % WV)
            e("s_cbranch_scc1 L_noflip%d" % i)
            e("s_setprio %d" % (2 if i == OPT["mid"] else 0))
            lab("L_noflip%d" % i)
        if i == 2 and OPT["b1late"]: kv_check(1)
        if i == 6: kv_check(2)
        if i == 14: kv_check(3)
        ex(0, 0, 2); pv(i - 1, 1, 1); ex(0, 2, 5); qk(i, 1)
        e("s_waitcnt lgkmcnt(0)")
        if i in (11, 23):
            for r in (PV_KA, PV_V0): V("add_u32", r, 3 * BLK, v(r))
            base[0] += 3
        rdK(i + 2)
        if not OPT["sA"]: rdV(i + 1)
        if i in ytiles:
            n = ytiles.index(i)
            e("buffer_store_dword v%d, v%d, %s, %s offen %s" % (V_Y + n, PV_YA, R_OUT, sYS2 if n == 2 else sYS, OPT["ypol"]))
            if n == 0: sadd(sYS, sYS, 0x20000)
            if n == 2: sadd(sYS2, sYS2, 0x100000)
        if i in wtiles:
            sadd("m0", W10, L_WO + 8192 * wtiles.index(i))
            if wtiles.index(i): sadd(sWO, sWO, 0x10000)
            else: e("s_nop 0")
            e("buffer_load_dwordx4 v%d, %s, %s offen lds" % (PV_WA, R_WO, sWO))
        ex(0, 5, 11); pv(i, 0, 0)
        if OPT["sA"]: rdV(i + 1)
        ex(0, 11, 16)
        ex(1, 0, 2); pv(i, 0, 1); ex(1, 2, 5); qk(i + 1, 0)
        ex(1, 5, 11); pv(i, 1, 0); ex(1, 11, 16)
    e("s_nop 1")
    pv(31, 1, 1)
    e("s_setprio 0")

A_G = 176
def combine():
    t = VT
    c("waves 4..7 hand their halves (odd key tiles) to waves 0..3, which finish and publish both q-tiles")
    stamp("loopend")
    e("s_waitcnt vmcnt(0)")
    e("s_barrier")
    stamp("attn")
    e("s_cmp_ge_u32 %s, 4" % WV)
    e("s_cbranch_scc0 L_cmb0")
    for k in range(3): e("ds_write_b128 v%d, %s offset:%d" % (PV_CW, vr(A_O[0] + 4 * k, 4), 1024 * k))
    nop(5)
    for k in range(3): e("ds_write_b128 v%d, %s offset:%d" % (PV_CW, vr(A_O[1] + 4 * k, 4), 3072 + 1024 * k))
    e("s_waitcnt lgkmcnt(0)")
    e("s_barrier")
    e("s_branch L_tail_hi")
    lab("L_cmb0")
    e("s_barrier")
    stamp("T1")
    for q, F in ((0, A_F), (1, A_G)):
        for k in (2, 0, 1): e("ds_read_b128 %s, v%d offset:%d" % (vr(F + 4 * k, 4), PV_CW, 3072 * q + 1024 * k))
    for q, F in ((0, A_F), (1, A_G)):
        e("s_waitcnt lgkmcnt(%d)" % (5 - 3 * q))
        V("add_f32", F + 8, v(F + 8), v(A_O[q] + 8))
        V("mov_b32", t + 1, v(F + 8))
        e("s_waitcnt lgkmcnt(%d)" % (3 - 3 * q))
        for i in range(8): V("add_f32", F + i, v(F + i), v(A_O[q] + i))
        e("v_permlane32_swap_b32 v%d, v%d" % (F + 8, t + 1))
        attn_publish(F, 32 + 4 * q, 1024 * q)
    stamp("pubO")
    c("---- softmax guard: the fast path used shift 0; redo with the true row max if that was unsafe ----")
    V("mov_b32", t + 1, fl(2.0 ** 100))
    for q, F in ((0, A_F), (1, A_G)):
        V("mul_f32", t, 0, v(F))
        for i in range(1, 8): V("fma_f32", t, v(F + i), 0, v(t))
        e("v_cmp_nle_f32 vcc, %s, v%d" % (fl(2.0 ** -40), F + 8))
        e("v_cmp_nle_f32 s[4:5], v%d, v%d" % (F + 8, t + 1))
        e("v_cmp_neq_f32 s[6:7], 0, v%d" % t)
        e("s_or_b64 vcc, vcc, s[4:5]")
        e("s_or_b64 vcc, vcc, s[6:7]")
        if OPT["forceslow"]: e("s_mov_b64 vcc, -1")
        e("s_cmp_lg_u64 vcc, 0")
        e("s_cselect_b32 %s, 1, 0" % (T4 if q == 0 else T5))
    S("or_b32", T0, T4, T5)
    e("s_cbranch_scc1 L_slow")
    lab("L_attn_ok")

def slow_path():
    t = VT
    lab("L_slow")
    S_, KF, VA, VB = A_S[0], A_KF[0], A_VA[0], A_VB[0]
    e("s_cmp_eq_u32 %s, 0" % T4)
    e("s_cbranch_scc1 L_slow_next")
    lab("L_slow_go")
    c("slow path pass 1: true row max (K from the workspace)")
    sadd(T0, sHB, WS_K)
    V("mov_b32", t, 0xff800000)
    e("s_mov_b32 %s, 0" % CNT)
    lab("L_slow1")
    e("buffer_load_dwordx4 %s, v%d, %s, %s offen sc1" % (vr(KF, 4), V_L16, R_WS, T0))
    sadd(T0, T0, 1024)
    e("s_waitcnt vmcnt(0)")
    e("v_mfma_f32_32x32x16_bf16 %s, %s, %s, 0" % (vr(S_, 16), vr(KF, 4), vr(A_Q[0], 4)))
    nop(12)
    for k in range(0, 16, 2): V("max3_f32", t, v(t), v(S_ + k), v(S_ + k + 1))
    sadd(CNT, CNT, 1)
    e("s_cmp_lt_u32 %s, 64" % CNT)
    e("s_cbranch_scc1 L_slow1")
    V("mov_b32", t + 1, v(t))
    e("s_nop 1")
    e("v_permlane32_swap_b32 v%d, v%d" % (t, t + 1))
    e("s_nop 1")
    V("max_f32", t, v(t), v(t + 1))
    for k in range(16): V("mul_f32", A_NM + k, "-1.0", v(t))
    c("slow path pass 2")
    for k in range(16): V("mov_b32", A_F + k, 0)
    for k in range(4):
        V("mov_b32", VA + k, 0x3f803f80); V("mov_b32", VB + k, 0x3f803f80)
    V("and_b32", t, 15, v(V_L)); V("lshrrev_b32", t + 1, 5, v(V_L)); V("lshlrev_b32", t, 4, v(t)); V("lshl_add_u32", t, v(t + 1), 8, v(t))
    sadd(T0, sHB, WS_K); sadd(T1, sHB, WS_V)
    e("s_mov_b32 %s, 0" % CNT)
    lab("L_slow2")
    e("buffer_load_dwordx4 %s, v%d, %s, %s offen sc1" % (vr(KF, 4), V_L16, R_WS, T0))
    e("s_mov_b32 exec_lo, 0xffff")
    e("s_mov_b32 exec_hi, 0xffff")
    e("buffer_load_dwordx4 %s, v%d, %s, %s offen sc1" % (vr(VA, 4), t, R_WS, T1))
    e("buffer_load_dwordx4 %s, v%d, %s, %s offen offset:512 sc1" % (vr(VB, 4), t, R_WS, T1))
    e("s_mov_b64 exec, -1")
    sadd(T0, T0, 1024); sadd(T1, T1, 1024)
    e("s_waitcnt vmcnt(0)")
    e("v_mfma_f32_32x32x16_bf16 %s, %s, %s, %s" % (vr(S_, 16), vr(KF, 4), vr(A_Q[0], 4), vr(A_NM, 16)))
    nop(12)
    for k in range(16): e("v_exp_f32 v%d, v%d" % (S_ + k, S_ + k))
    e("s_nop 1")
    e("v_smfmac_f32_32x32x32_bf16 %s, %s, %s, v%d" % (vr(A_F, 16), vr(VA, 4), vr(S_, 8), A_IDX))
    e("v_smfmac_f32_32x32x32_bf16 %s, %s, %s, v%d" % (vr(A_F, 16), vr(VB, 4), vr(S_ + 8, 8), A_IDX))
    sadd(CNT, CNT, 1)
    e("s_cmp_lt_u32 %s, 64" % CNT)
    nop(4)
    e("s_cbranch_scc1 L_slow2")
    nop(12)
    attn_publish(A_F, 32, 0)
    lab("L_slow_next")
    e("s_cmp_eq_u32 %s, 0" % T5)
    e("s_cbranch_scc1 L_attn_ok")
    e("s_mov_b32 %s, 0" % T5)
    for i in range(4): V("mov_b32", A_Q[0] + i, v(A_Q[1] + i))
    sadd(sOST, sOST, 1024)
    e("s_branch L_slow_go")

def attn_publish(F, P, off):
    t = VT
    V("rcp_f32", t, v(F + 8))
    e("s_nop 0")
    for i in range(8): V("mul_f32", F + i, v(F + i), v(t))
    for i in range(4): V("cvt_pk_bf16_f32", P + i, v(F + 2 * i), v(F + 2 * i + 1))
    e("s_nop 1")
    e("v_permlane32_swap_b32 v%d, v%d" % (P, P + 2))
    e("v_permlane32_swap_b32 v%d, v%d" % (P + 1, P + 3))
    e("buffer_store_dwordx4 %s, v%d, %s, %s offen offset:%d sc1" % (vr(P, 4), V_L16, R_WS, sOST, off))

P_W, P_ACC, P_OF = 96, 32, 48
def tail():
    t = VT
    c("==== waves 0..3: Wo fragments, poll, O tiles, output projection ====")
    for hh in range(32):
        if hh == OPT["fsig"]: signal("c", 20, 3, sF2)
        for tt in range(2):
            e("ds_read_b64_tr_b16 %s, v%d offset:%d" % (vr(P_W + 4 * hh + 2 * tt, 2), PV_WF, L_WO + hh * 2048 + tt * 512))
    if OPT["fsig"] >= 32: signal("c", 20, 3, sF2)
    else: e("s_waitcnt lgkmcnt(0)")
    e("s_barrier")
    stamp("W")
    V("mov_b32", t + 2, L_FL + 24); V("mov_b32", t + 3, 1)
    e("s_cmp_eq_u32 %s, 0" % WV)
    e("s_cbranch_scc0 L_spin2")
    (poll_pipe if OPT["np"] > 1 else poll)("L_poll2", sF2P)
    e("ds_write_b32 v%d, v%d" % (t + 2, t + 3))
    e("s_branch L_seen2")
    lab("L_spin2")
    e("s_mov_b32 %s, 0" % CNT)
    lab("L_spin2l")
    e("ds_read_b32 v%d, v%d" % (t + 3, t + 2))
    sadd(CNT, CNT, 1)
    e("s_waitcnt lgkmcnt(0)")
    e("v_readfirstlane_b32 %s, v%d" % (T0, t + 3))
    e("s_cmp_gt_u32 %s, 0x200000" % CNT)
    e("s_cbranch_scc1 L_seen2")
    e("s_cmp_eq_u32 %s, 0" % T0)
    e("s_cbranch_scc1 L_spin2l")
    lab("L_seen2")
    stamp("poll2")
    sadd("m0", W10, L_O); e("s_nop 0")
    for n in range(16):
        e("buffer_load_dwordx4 v%d, %s, %s offen sc1 lds" % (V_L16, R_WS, sOLD))
        if n < 15:
            sadd("m0", "m0", 4096); sadd(sOLD, sOLD, 0x20000)
    e("s_barrier")
    def mm(st):
        for k in range(4):
            hh = 4 * st + k
            e("v_mfma_f32_32x32x16_bf16 %s, %s, %s, %s" % (vr(P_ACC, 16), vr(P_W + 4 * hh, 4), vr(P_OF + 16 * (st & 1) + 4 * k, 4), "0" if hh == 0 else vr(P_ACC, 16)))
    for st in range(8):
        bnd = {"a": {0: 2, 2: 4, 4: 6, 6: 8}, "b": {0: 1, 1: 3, 3: 5, 5: 8}, "c": {0: 1, 1: 2, 2: 4, 4: 8}, "d": {0: 1, 1: 3, 3: 6, 6: 8}}[OPT["stg"]]
        if st in bnd:
            e("s_waitcnt vmcnt(%d)" % (16 - 2 * bnd[st]))
            e("s_barrier")
            if st == 0: stamp("O1")
        for k in range(4): e("ds_read_b128 %s, v%d offset:%d" % (vr(P_OF + 16 * (st & 1) + 4 * k, 4), PV_OR, (4 * st + k) * 2048))
        if st > 0:
            e("s_waitcnt lgkmcnt(4)")
            mm(st - 1)
    e("s_waitcnt lgkmcnt(0)")
    mm(7)
    nop(12)
    for i in range(8): V("cvt_pk_bf16_f32", P_OF + i, v(P_ACC + 2 * i), v(P_ACC + 2 * i + 1))
    e("ds_write_b128 v%d, %s" % (PV_OW, vr(P_OF, 4)))
    e("ds_write_b128 v%d, %s offset:16" % (PV_OW, vr(P_OF + 4, 4)))
    c("WG 0 advances the epoch word (every WG has read it: all of them have published)")
    e("s_cmp_eq_u32 s2, 0")
    e("s_cbranch_scc0 L_fin")
    e("s_cmp_eq_u32 %s, 0" % WV)
    e("s_cbranch_scc0 L_fin")
    flag_store("0")
    e("s_branch L_fin")
    lab("L_tail_hi")
    c("==== waves 4..7: causal conv of output tiles 6,7 (two lag halves per channel) ====")
    for p in range(4): V("add_u32", PV_ZR + p, (L_Z2 - L_Z - 4608 - 1152 + p * (ZS2 - ZS)) & 0xffffffff, v(PV_ZR + p))
    def sigw(tag):
        signal(tag, 20, 7, sF2)
    e("s_bitcmp1_b32 %s, 0" % WV)
    e("s_cbranch_scc1 L_ct_b")
    conv_job(6, 0, 4, False, PV_CA, PV_CB, None, bar_after=OPT["wbar"])
    e("s_branch L_ct_done")
    lab("L_ct_b")
    conv_job(6, 16, 3, True, PV_CA, PV_CB, None, bar_after=OPT["wbar"])
    lab("L_ct_done")
    z_writes(PV_ZW2, 0)
    e("s_cmp_eq_u32 %s, 6" % WV)
    e("s_cbranch_scc0 L_nocarry2")
    V("bfe_u32", t + 2, v(V_L), 2, 1); V("mul_u32_u24", t + 2, 8 * ZS2, v(t + 2)); V("bfe_u32", t + 1, v(V_L), 3, 1); V("lshlrev_b32", t + 1, 2, v(t + 1))
    V("and_b32", t + 3, 3, v(V_L)); V("add_u32", t + 1, v(t + 1), v(t + 3)); V("mul_u32_u24", t + 1, ZS2, v(t + 1))
    V("add_u32", t + 2, v(t + 2), v(t + 1)); V("add_u32", t + 2, L_Z2 + 112, v(t + 2))
    e("s_mov_b64 exec, 0xffff")
    e("ds_write_b128 v%d, %s" % (t + 2, vr(PV_CY, 4)))
    e("s_mov_b64 exec, -1")
    lab("L_nocarry2")
    e("s_waitcnt lgkmcnt(0)")
    stamp("cend2")
    e("s_barrier")
    c("y[1536 + 64w' + l] for w' = w-4 and w")
    order = [(g, cl, st) for g in range(2) for cl in range(2) for st in range(2)]
    def rd(n):
        g, cl, st = order[n]
        for p in range(4): e("ds_read_b32 v%d, v%d offset:%d" % (Y_R + 4 * n + p, PV_ZR + p, cl * 8 * ZS2 + st * 4 * ZS2 + g * 1152))
    rd(0); rd(1); rd(2)
    for n in range(8):
        r = Y_R + 4 * n
        e("s_waitcnt lgkmcnt(%d)" % (4 * (min(n + 2, 7) - n)))
        if n + 3 < 8: rd(n + 3)
        V("add_f32", r, v(r), v(r + 1)); V("add_f32", r + 2, v(r + 2), v(r + 3)); V("add_f32", r, v(r), v(r + 2))
        if n % 2: V("add_f32", r, v(r), v(r - 4))
        if n % 4 == 3: V("cvt_pk_bf16_f32", V_Y + n // 4, v(r - 8), v(r))
    S("sub_u32", sYS, sYS2, 0x80000)
    for st in range(4):
        if st == OPT["yat"]:
            e("buffer_store_dword v%d, v%d, %s, %s offen" % (V_Y, PV_YA, R_OUT, sYS))
            e("buffer_store_dword v%d, v%d, %s, %s offen" % (V_Y + 1, PV_YA, R_OUT, sYS2))
        e("s_barrier")
    if OPT["yat"] == 4:
        e("buffer_store_dword v%d, v%d, %s, %s offen" % (V_Y, PV_YA, R_OUT, sYS))
        e("buffer_store_dword v%d, v%d, %s, %s offen" % (V_Y + 1, PV_YA, R_OUT, sYS2))
    lab("L_fin")
    e("s_waitcnt lgkmcnt(0)")
    e("s_barrier")
    stamp("opdone")
    e("ds_read_b128 v[32:35], v%d" % PV_FR)
    e("s_waitcnt lgkmcnt(0)")
    e("buffer_store_dwordx4 v[32:35], v%d, %s, %s offen %s" % (PV_FS, R_OUT, sOUT, OPT["opol"]))

def dump_lds(base, nbytes, wsoff):
    t = VT + 10
    e("s_waitcnt lgkmcnt(0)"); e("s_barrier")
    V("lshlrev_b32", t, 4, v(0))
    sshl(T0, "s2", 18); sadd(T0, T0, WS_DBG + wsoff)
    for o in range(0, nbytes, 8192):
        V("add_u32", t + 1, base + o, v(t))
        e("ds_read_b128 %s, v%d" % (vr(t + 2, 4), t + 1))
        e("s_waitcnt lgkmcnt(0)")
        e("buffer_store_dwordx4 %s, v%d, %s, %s offen" % (vr(t + 2, 4), t, R_WS, T0))
        sadd(T0, T0, 8192)
        e("s_waitcnt vmcnt(0)")
    e("s_barrier")

def write_stamps():
    t = VT
    if OPT["ldst"]:
        e("s_waitcnt vmcnt(0) lgkmcnt(0)")
        sshl(T0, "s2", 3); sadd(T0, T0, WV); sshl(T0, T0, 7); sadd(T0, T0, WS_ST)
        e("s_mov_b64 exec, 1")
        V("mov_b32", t, 0)
        for i in range(10):
            V("mov_b32", t + 1, sr(80 + 2 * i))
            e("buffer_store_dword v%d, v%d, %s, %s offen offset:%d" % (t + 1, t, R_WS, T0, 4 * i))
            e("s_nop 1")
        e("s_mov_b64 exec, -1")
    if OPT["echo"]:
        a, b, m = OPT["echo"].split(",")
        e("s_cmp_eq_u32 %s, %d" % (WV, OPT["echowv"])); e("s_cbranch_scc0 L_end")
        e("s_cmp_eq_u32 s2, %d" % OPT["echowg"]); e("s_cbranch_scc0 L_end")
        e("s_waitcnt vmcnt(0)")
        stamp("end")
        if a == "start": e("s_mov_b32 s80, s100")
        e("s_sub_u32 s82, s81, s80"); e("s_mul_i32 s82, s82, %s" % m); e("s_min_u32 s82, s82, 20000")
        e("s_memrealtime s[84:85]"); e("s_waitcnt lgkmcnt(0)")
        lab("L_echo")
        e("s_memrealtime s[86:87]"); e("s_waitcnt lgkmcnt(0)")
        e("s_sub_u32 s83, s86, s84"); e("s_cmp_lt_u32 s83, s82"); e("s_cbranch_scc1 L_echo")
    if OPT["stamps"]:
        e("s_waitcnt vmcnt(0)")
        stamp("end")
        sshl(T0, "s2", 3); sadd(T0, T0, WV); sshl(T0, T0, 7); sadd(T0, T0, WS_ST)
        e("s_mov_b64 exec, 1")
        V("mov_b32", t, 0)
        for i in range(len(stamp_names)):
            V("mov_b32", t + 1, sr(S_ST + i))
            e("buffer_store_dword v%d, v%d, %s, %s offen offset:%d" % (t + 1, t, R_WS, T0, 4 * i))
            e("s_nop 1")
        V("mov_b32", t + 1, "s100")
        e("buffer_store_dword v%d, v%d, %s, %s offen offset:124" % (t + 1, t, R_WS, T0))
        e("s_memrealtime s[98:99]")
        e("s_waitcnt lgkmcnt(0)")
        V("mov_b32", t + 2, "s98")
        e("buffer_store_dword v%d, v%d, %s, %s offen offset:120" % (t + 2, t, R_WS, T0))
        e("s_mov_b64 exec, -1")
        L.insert(0, "; stamps: " + ",".join(stamp_names))
    if OPT["dbgspan"]:
        e("s_cmp_eq_u32 %s, 0" % WV); e("s_cbranch_scc0 L_end")
        sand(T0, "s2", 63); e("s_cmp_eq_u32 %s, 5" % T0); e("s_cbranch_scc0 L_end")
        e("s_waitcnt vmcnt(0)")
        e("s_memrealtime s[96:97]"); e("s_memtime s[94:95]")
        srd(R_X, S_DBG, 256)
        sshr(T0, "s2", 6); sshl(T0, T0, 4)
        e("s_waitcnt lgkmcnt(0)")
        e("s_mov_b64 exec, 1")
        V("mov_b32", t, 0)
        e("s_sub_u32 s94, s94, s98"); e("s_sub_u32 s96, s96, s100")
        V("mov_b32", t + 2, "s100"); V("mov_b32", t + 3, "s96"); V("mov_b32", t + 4, "s94"); V("mov_b32", t + 5, 0)
        e("buffer_store_dwordx4 %s, v%d, %s, %s offen" % (vr(t + 2, 4), t, R_X, T0))

def main():
    header()
    setup()
    loader_path()
    compute_path()
    lab("L_gemm_done")
    if OPT["gprio"]: e("s_setprio 0")
    e("s_waitcnt lgkmcnt(0)")
    e("s_barrier")
    stamp("K2")
    if OPT["dump"]: dump_lds(L_KF, 24576, 0)
    conv()
    kv_early()
    conv_epilogue()
    if not OPT["b1late"]:
        e("s_waitcnt vmcnt(0)")
        e("s_barrier")
        stamp("S")
    kv_late()
    attn_main()
    combine()
    tail()
    write_stamps()
    e("s_endpgm")
    slow_path()
    footer(256)
    open(sys.argv[1], "w").write("\n".join(L) + "\n")

main()
```

```python
import sys, struct, math

NAME = "concat_heads__ssm_conv_s4__softmax_full_mha__prompt"
OPT = dict(only="", ldst=0, ypol="", opol="", abl="", echo="", echowg=0, echowv=0, stamps=0, dump=0, forceslow=0, dbgspan=0, flip1=13, mid=16, flip=29, pf=2, tlb=0, wsb=0, sA=1, np=1, pgap=2, stg="b", apre=45, f0=5, f2=2, umode=0, uat=0, ust2=1, lsp=0, fline=0, psleep=0, ppol="sc1", gprio=0, kvrot=0, qearly=0, cfill=3, gsig=0, fsig=16, wbar=2, pfw=0, pfx=0, tsig=-2, b1late=0, rot=6, yat=0, npre=999,
           yt=[15, 20, 25], wt=[17, 18, 19, 21, 22, 23, 24, 26])
for a in sys.argv[2:]:
    k, v = a.split("=")
    OPT[k] = int(v) if v.lstrip("-").isdigit() else ([int(x) for x in v.split("/")] if "/" in v else v)

L = []
SINK = [L]
def e(s): SINK[0].append("    " + s)
def lab(s): SINK[0].append(s + ":")
def c(s): SINK[0].append("    ; " + s)
def f2u(x): return struct.unpack("<I", struct.pack("<f", x))[0]
def fl(x): return "0x%08x" % f2u(x)
def vr(a, n=1): return "v%d" % a if n == 1 else "v[%d:%d]" % (a, a + n - 1)
def sr(a, n=1): return "s%d" % a if n == 1 else "s[%d:%d]" % (a, a + n - 1)
def nop(n):
    while n > 0:
        k = min(n, 16); e("s_nop %d" % (k - 1)); n -= k
def capture(fn, *a):
    old = SINK[0]; out = []; SINK[0] = out; fn(*a); SINK[0] = old; return out

WS_F1 = 0x1000
WS_F2 = 0xa000
WS_F0 = 0x20000
WS_Q, WS_K, WS_V, WS_O, WS_U2 = (0x100000, 0x301000, 0x502000, 0x703000, 0x904000) if OPT["tlb"] else (0x100000, 0x300000, 0x500000, 0x700000, 0x900000)
WS_ST = 0xc00000
WS_DBG = 0x1000000
WS_SIZE = 0x10000000
LDS_TOTAL = 163840
BLK = 16384
L_TB = 98304
L_TA = 0
L_FL = 146240
L_KF = 146304
L_UP = 154624
ZS = 9504
L_Z = 70208
ZS2 = 2448
L_Z2 = 0
L_WO = 0
L_O = 65536
L_SC = 65536
L_OT = 131072
S_U, S_ARE, S_AIM, S_BRE, S_BIM, S_CRE, S_CIM, S_LDT = 8, 10, 12, 14, 16, 18, 20, 22
S_DSK, S_X, S_W, S_WO, S_OUT, S_DBG, S_WS = 24, 26, 28, 30, 32, 34, 36
R_X, R_W, R_WS, R_U, R_OUT, R_WO = "s[40:43]", "s[44:47]", "s[48:51]", "s[52:55]", "s[56:59]", "s[60:63]"
XQ, I5, WV, TAG, LD2, DS2, HH, JJ, C0 = "s64", "s65", "s66", "s67", "s68", "s69", "s70", "s71", "s72"
T0, T1, T2, T3, T4, T5, CNT = "s73", "s74", "s75", "s76", "s77", "s78", "s79"
CQ, CL, W10, GT, GQ = "s38", "s39", "s3", "s6", "s7"
JR = "s97"
sQKV, sF1, sF1P, sYS, sWO, sOST, sOLD, sOUT, sF2, sF2P, sHB, sQL = ["s%d" % i for i in range(8, 20)]
sYS2 = "s38"
S_ST = 80
stamp_names = []
def stamp(name):
    if OPT["only"] and name not in OPT["only"].split(",") + ["karg", "end"]: return
    if OPT["echo"]:
        a, b, m = OPT["echo"].split(",")
        if name in (a, b):
            e("s_waitcnt lgkmcnt(0)")
            e("s_memrealtime s[98:99]")
            e("s_waitcnt lgkmcnt(0)")
            e("s_mov_b32 %s, s98" % ("s80" if name == a else "s81"))
    if OPT["stamps"]:
        if name not in stamp_names: stamp_names.append(name)
        assert len(stamp_names) <= 18
        e("s_waitcnt lgkmcnt(0)")
        e("s_memrealtime s[98:99]" if OPT["stamps"] == 2 else "s_memtime s[98:99]")
        e("s_waitcnt lgkmcnt(0)")
        e("s_mov_b32 %s, s98" % sr(S_ST + stamp_names.index(name)))
def srd(r, base, size):
    r = int(r[2:r.index(":")])
    e("s_mov_b32 %s, %s" % (sr(r), sr(base)))
    e("s_and_b32 %s, %s, 0xffff" % (sr(r + 1), sr(base + 1)))
    e("s_mov_b32 %s, 0x%x" % (sr(r + 2), size))
    e("s_mov_b32 %s, 0x00020000" % sr(r + 3))
def csel(dst, a, b):
    e("s_mov_b32 %s, %d" % (dst, b))
    e("s_cselect_b32 %s, %d, %s" % (dst, a, dst))
def S(op, d, a, b): e("s_%s %s, %s, %s" % (op, d, a, b if isinstance(b, str) else ("0x%x" % b if b > 64 else str(b))))
def sadd(d, a, b): S("add_u32", d, a, b)
def sshl(d, a, b): S("lshl_b32", d, a, b)
def sshr(d, a, b): S("lshr_b32", d, a, b)
def sand(d, a, b): S("and_b32", d, a, b)
def smul(d, a, b): S("mul_i32", d, a, b)
def V(op, d, *a): e("v_%s v%d, %s" % (op, d, ", ".join(("v%d" % x[0] if isinstance(x, tuple) else (x if isinstance(x, str) else ("0x%x" % x if x > 64 else str(x)))) for x in a)))
def v(x): return (x,)
LOG2E = math.log2(math.e)

V_L, V_L16, V_PA = 1, 2, 3
V_PAR = 4
V_Y = 10
VT = 14
(PV_CA, PV_CB, PV_ZW, PV_ZR, _z1, _z2, _z3, PV_KA, PV_V0, PV_V1, PV_YA, PV_WA, PV_CW, PV_CR,
 PV_OR, PV_OW, PV_WF, PV_FR, PV_FS, PV_WS) = range(224, 244)
PV_ZW2 = PV_V1
PV_CY = 250
PV_QS, PV_VS, PV_TW = 222, 223, 219
PV_GA, PV_GB, PV_GW, PV_GD, PV_US = 244, 245, 246, 247, 248

def header():
    for x in """fused S4 long-conv (out[:, 0:512]) + 32-head attention with output projection (out[:, 512:1024])
one launch, 256 workgroups x 8 waves, one workgroup per CU (160 KB LDS); generated by my own script
 phase 1  QKV GEMM: WG = 64 tokens x 4 heads (q,k,v); waves 4-7 stream x/W into an LDS ring (LDS-DMA),
          waves 0-3 run the MFMAs and build the S4 mode tables; Q,K,V go to d_ws (sc1) + flag
 phase 2  S4: K[l] = Re sum_n C B dt exp(dt A bf16(l)) as a table matmul (rows duplicated to realise bf16(l)),
          causal conv as Toeplitz MFMAs on polyphase-4 u (tiles 0-5 here, tiles 6-7 in the tail); D folded into K[0]
 phase 3  attention: WG = 1 head x 256 queries, S^T = K Q^T (q pre-scaled by log2e/4), P = 2^S in place,
          O^T += V^T P with the sparse MFMA reading the high halves of the fp32 P; a ones row gives the row sum.
          The fast path uses shift 0; afterwards the row sum and O are range-checked and any wave for which
          that shift was unsafe recomputes its rows with the true row max (L_slow).
 phase 4  O goes to d_ws (sc1) + flag; WG = 64 x 64 tile of O @ Wo
hand-offs: sc1 stores -> vmcnt(0) -> flag (tag = d_ws[0] + 1, advanced by WG 0 at the end) -> sc1 poll -> sc1 loads""".split("\n"):
        L.append("; " + x)
    L.append("; @launch grid=(256,1,1) block=(512,1,1) lds=%d" % LDS_TOTAL)
    L.append('.amdgcn_target "amdgcn-amd-amdhsa--gfx950"')
    L.append(".text")
    L.append(".globl %s_kernel" % NAME)
    L.append(".p2align 8")
    L.append(".type %s_kernel,@function" % NAME)
    L.append("%s_kernel:" % NAME)
def footer(nv):
    lab("L_end")
    e("s_endpgm")
    L.append('.section .rodata,"a"')
    L.append(".p2align 6")
    L.append(".amdhsa_kernel %s_kernel" % NAME)
    L.append("  .amdhsa_next_free_vgpr %d" % nv)
    L.append("  .amdhsa_next_free_sgpr 102")
    L.append("  .amdhsa_accum_offset %d" % nv)
    L.append("  .amdhsa_group_segment_fixed_size 0")
    L.append("  .amdhsa_kernarg_size 120")
    L.append("  .amdhsa_user_sgpr_count 2")
    L.append("  .amdhsa_user_sgpr_kernarg_segment_ptr 1")
    L.append("  .amdhsa_system_sgpr_workgroup_id_x 1")
    L.append(".end_amdhsa_kernel")

def setup():
    c("---- setup ----")
    e("s_cmp_ge_u32 s2, 256")
    e("s_cbranch_scc1 L_end")
    e("s_load_dwordx8 s[24:31], s[0:1], 64")
    e("s_load_dwordx16 s[8:23], s[0:1], 0")
    e("s_load_dwordx4 s[32:35], s[0:1], 96")
    e("s_load_dwordx2 s[36:37], s[0:1], 112")
    if OPT["stamps"] or OPT["dbgspan"] or OPT["echo"]: e("s_memrealtime s[100:101]")
    if OPT["dbgspan"]: e("s_memtime s[98:99]")
    if OPT["pf"] == 2:
        c("pull this WG's 1/32 share of the code into L2 right away (thread t<8: line 8*(wg>>3)+t)")
        e("s_getpc_b64 s[4:5]")
        lab("L_pc")
        e("s_and_b32 s3, s2, 0xf8")
        V("add_u32", VT, "s3", v(0)); V("lshlrev_b32", VT, 7, v(VT))
        e("v_min_u32 v%d, L_end-L_pc-4, v%d" % (VT, VT))
        e("v_cmp_gt_u32 vcc, 8, v0")
        e("s_and_saveexec_b64 s[6:7], vcc")
        e("s_cbranch_execz L_nopf")
        e("global_load_dword v47, v%d, s[4:5]" % VT)
        lab("L_nopf")
        e("s_mov_b64 exec, -1")
    V("and_b32", V_L, 63, v(0))
    V("lshrrev_b32", VT, 6, v(0))
    V("lshlrev_b32", V_L16, 4, v(V_L))
    V("mov_b32", PV_FS, 0)
    e("v_readfirstlane_b32 %s, v%d" % (WV, VT))
    sand(XQ, "s2", 7)
    sshr(I5, "s2", 3)
    sand(GT, XQ, 3); sshl(GT, GT, 3); sshr(JJ, I5, 2); sadd(GT, GT, JJ)
    sand(GQ, XQ, 4); sand(T0, I5, 3); sadd(GQ, GQ, T0)
    sshl(HH, XQ, 2); sadd(HH, HH, T0)
    sshl(C0, XQ, 5); sadd(C0, C0, I5); sshl(C0, C0, 1)
    sshl(W10, WV, 10)
    e("s_cmp_ge_u32 %s, 4" % WV)
    e("s_cbranch_scc0 L_compute")

def scalar_loads():
    if OPT["wsb"]:
        e("s_add_u32 s36, s36, 0x%x" % (OPT["wsb"] << 20)); e("s_addc_u32 s37, s37, 0")
    sshl(T3, C0, 1)
    e("s_load_dword %s, %s, 0" % (TAG, sr(S_WS, 2)))
    e("s_load_dword %s, %s, %s" % (LD2, sr(S_LDT, 2), T3))
    e("s_load_dword %s, %s, %s" % (DS2, sr(S_DSK, 2), T3))

def lane_terms():
    t = VT
    hf, b7, p4, r4, g1, l15, l8 = t, t + 1, t + 2, t + 3, t + 4, t + 5, t + 6
    V("lshrrev_b32", hf, 5, v(V_L)); V("and_b32", b7, 7, v(V_L)); V("bfe_u32", p4, v(V_L), 3, 2)
    V("bfe_u32", r4, v(V_L), 2, 2); V("bfe_u32", g1, v(V_L), 4, 1); V("and_b32", l15, 15, v(V_L)); V("lshrrev_b32", l8, 3, v(V_L))
    return hf, b7, p4, r4, g1, l15, l8

def precompute_conv():
    t = VT
    c("---- conv addresses ----")
    e("s_bfe_u32 %s, %s, 0x10001" % (CL, WV))
    hf, b7, p4, r4, g1, l15, l8 = lane_terms()
    x, y, z = t + 8, t + 9, t + 10
    e("s_cmp_eq_u32 %s, 1" % CL)
    csel(T0, L_KF + 4160 + 96, L_KF + 96); csel(T1, L_UP + 4608, L_UP); csel(T2, L_Z + 4 * ZS + 144, L_Z + 144)
    V("and_b32", x, 3, v(V_L)); V("lshl_add_u32", x, v(g1), 2, v(x)); V("lshl_add_u32", y, v(hf), 3, v(r4))
    V("sub_u32", x, v(x), v(y)); V("lshlrev_b32", x, 3, v(x)); V("add_u32", PV_CA, T0, v(x))
    V("mul_u32_u24", x, 1152, v(p4)); V("add_u32", z, v(b7), v(hf)); V("lshl_add_u32", x, v(z), 4, v(x))
    V("add_u32", PV_CB, T1, v(x))
    V("mul_u32_u24", x, ZS, v(p4)); V("mul_u32_u24", z, 144, v(b7)); V("lshl_add_u32", z, v(hf), 4, v(z)); V("add3_u32", PV_ZW, v(x), v(z), T2)
    sshl(sF1, GQ, 5); sadd(sF1, sF1, GT); sshl(sF1, sF1, 7); sadd(sF1, sF1, WS_F1)
    sshl(T0, XQ, 12); sadd(sF1P, T0, WS_F1); sadd(sF2P, T0, WS_F2)
    sshl(sHB, HH, 16)
    if OPT["kvrot"] == 1: e("s_mov_b32 %s, %s" % (JR, JJ))
    elif OPT["kvrot"] == 0: e("s_mov_b32 %s, 0" % JR)
    else: sand(JR, JJ, OPT["kvrot"])

def precompute():
    t = VT
    c("SPLIT")
    e("s_cmp_ge_u32 %s, 4" % WV)
    e("s_cselect_b32 %s, 1024, 0" % T0)
    hf, b7, p4, r4, g1, l15, l8 = lane_terms()
    x, y, z = t + 8, t + 9, t + 10
    V("add_u32", PV_KA, T0, v(V_L16))
    V("lshlrev_b32", x, 4, v(l15)); V("lshl_add_u32", x, v(hf), 8, v(x)); sadd(T0, T0, 8192); V("add_u32", PV_V0, T0, v(x))
    V("lshlrev_b32", PV_YA, 11, v(V_L))
    V("lshlrev_b32", x, 2, v(g1)); V("xor_b32", x, v(x), v(b7)); V("lshlrev_b32", x, 4, v(x)); V("lshl_add_u32", PV_WA, v(l8), 10, v(x))
    c("SPLIT")
    sshl(T0, WV, 7); sadd(T0, T0, 32)
    for p in range(4):
        V("add_u32", x, T0, v(V_L))
        if p: V("subrev_u32", x, p, v(x))
        V("lshrrev_b32", z, 5, v(x)); V("lshlrev_b32", x, 2, v(x)); V("lshl_add_u32", x, v(z), 4, v(x))
        V("add_u32", PV_ZR + p, L_Z + p * ZS, v(x))
    c("SPLIT")
    sshl(T0, WV, 18); sshl(T1, C0, 1); sadd(sYS, T0, T1)
    sshr(T0, T0, 1); sadd(T0, T0, T1); sadd(sYS2, T0, 0x200000)
    sand(T0, I5, 7); sshl(T0, T0, 7); sshl(T1, WV, 13); sadd(sWO, T0, T1)
    sshl(T1, JJ, 13); sadd(T1, T1, sHB); sand(T2, WV, 3); sshl(T2, T2, 11); sadd(T1, T1, T2)
    sadd(sQL, T1, WS_Q)

def precompute_tail():
    t = VT + 4
    hf, b7, p4, r4, g1, l8 = t, t + 1, t + 2, t + 3, t + 4, t + 5
    V("lshrrev_b32", hf, 5, v(V_L)); V("and_b32", b7, 7, v(V_L)); V("bfe_u32", p4, v(V_L), 3, 2)
    V("bfe_u32", r4, v(V_L), 2, 2); V("bfe_u32", g1, v(V_L), 4, 1); V("lshrrev_b32", l8, 3, v(V_L))
    x, y, z = t + 6, t + 7, t + 8
    sand(T0, WV, 3); smul(T0, T0, 6144); sadd(T0, T0, L_SC)
    V("add_u32", PV_CW, T0, v(V_L16))
    sand(T0, WV, 1); smul(T0, T0, 4 * ZS2); smul(T1, CL, 8 * ZS2); sadd(T0, T0, T1); sadd(T0, T0, L_Z2 + 144)
    V("mul_u32_u24", x, ZS2, v(p4)); V("mul_u32_u24", z, 144, v(b7)); V("lshl_add_u32", z, v(hf), 4, v(z)); V("add3_u32", PV_ZW2, v(x), v(z), T0)
    V("lshl_add_u32", y, v(hf), 3, v(r4)); V("lshlrev_b32", PV_WF, 7, v(y))
    V("and_b32", x, 1, v(V_L)); V("lshl_or_b32", x, v(x), 1, v(g1))
    sand(T0, WV, 2); sshl(T0, T0, 1); V("or_b32", x, T0, v(x))
    V("bfe_u32", z, v(V_L), 3, 1); V("lshlrev_b32", z, 2, v(z)); V("xor_b32", x, v(x), v(z))
    V("lshl_add_u32", PV_WF, v(x), 4, v(PV_WF)); V("bfe_u32", z, v(V_L), 1, 1); V("lshl_add_u32", PV_WF, v(z), 3, v(PV_WF))
    sand(T1, WV, 1); sshl(T2, T1, 10); sadd(T2, T2, L_O); V("add_u32", PV_OR, T2, v(V_L16))
    smul(T1, T1, 4608); sshl(T0, T0, 4); sadd(T0, T0, T1); sadd(T0, T0, L_OT)
    V("and_b32", x, 31, v(V_L)); V("mul_u32_u24", x, 144, v(x)); V("lshl_add_u32", x, v(hf), 5, v(x)); V("add_u32", PV_OW, T0, v(x))
    smul(T0, WV, 1152); sadd(T0, T0, L_OT)
    V("lshlrev_b32", x, 4, v(b7)); V("mul_u32_u24", z, 144, v(l8)); V("add3_u32", PV_FR, v(z), v(x), T0); V("lshl_add_u32", PV_FS, v(l8), 11, v(x))
    sshl(sF2, JJ, 5); sadd(sF2, sF2, HH); sshl(sF2, sF2, 7); sadd(sF2, sF2, WS_F2)
    S("sub_u32", T1, sQL, WS_Q); sadd(sOST, T1, WS_O)
    sshr(T1, WV, 1); sshl(T1, T1, 6); sshl(T2, XQ, 3); sadd(T1, T1, T2); sshr(T3, I5, 3); sshl(T2, T3, 1); sadd(T1, T1, T2)
    sand(T2, WV, 1); sadd(T1, T1, T2); sshl(T1, T1, 10); sadd(sOLD, T1, WS_O)
    sand(T0, I5, 7); sshl(T0, T0, 7)
    sshl(T1, XQ, 2); sadd(T1, T1, T3); sshl(T1, T1, 3); sadd(T1, T1, WV); sshl(T1, T1, 14); sadd(T1, T1, T0); sadd(sOUT, T1, 1024)

G_VX0, G_VX1, G_VWQ, G_VWK, G_VWV, G_PL = 32, 33, 34, 35, 36, 39
G_UA, G_US = 30, 31
G_UL, U2R = 196, 80
G_XA, G_WA, G_WB = 32, 40, 43
G_ACC = [48, 64, 80]
G_XF, G_W0F, G_W1F, G_VF = 96, 112, 128, 144
KB = 48
KR = 192

def loader_addr():
    t = VT
    c("loader DMA voffsets (wave v=w-4 covers rows 16v..16v+15 of each chunk)")
    V("lshrrev_b32", t, 3, v(V_L)); V("and_b32", t + 1, 7, v(V_L)); V("bfe_u32", t + 2, v(V_L), 4, 1)
    sand(T0, WV, 3); sshl(T4, T0, 11); sshl(T0, T0, 4)
    V("add_u32", t + 3, T0, v(t))
    V("bfe_u32", t + 4, v(t + 3), 1, 3); V("xor_b32", t + 4, v(t + 4), v(t + 1)); V("lshlrev_b32", t + 4, 4, v(t + 4))
    sshl(T1, GT, 16)
    V("lshl_add_u32", G_VX0, v(t + 3), 10, v(t + 4)); V("add_u32", G_VX0, T1, v(G_VX0)); V("xor_b32", G_VX1, 0x2040, v(G_VX0))
    V("mul_u32_u24", t + 5, 3072, v(t + 3)); sshl(T1, GQ, 7); V("add_u32", t + 5, T1, v(t + 5))
    V("lshlrev_b32", t + 6, 1, v(t + 2)); V("xor_b32", t + 6, v(t + 6), v(t + 1)); V("lshl_add_u32", G_VWQ, v(t + 6), 4, v(t + 5))
    V("xor_b32", t + 6, 4, v(t + 6)); V("lshl_add_u32", G_VWK, v(t + 6), 4, v(t + 5)); V("add_u32", G_VWK, 1024, v(G_VWK))
    V("lshlrev_b32", t + 6, 2, v(t + 2)); V("xor_b32", t + 6, v(t + 6), v(t + 1)); V("lshl_add_u32", G_VWV, v(t + 6), 4, v(t + 5)); V("add_u32", G_VWV, 2048, v(G_VWV))
    r = OPT["rot"]
    if r == 1: sshl(T5, GQ, 1); sadd(T5, T5, GT)
    else:
        sadd(T5, GQ, GT)
        if r == 3: sshl(T5, T5, 2)
        if r == 5: sand(T5, T5, 1)
        if r == 6: sshl(T5, T5, 1)

I0, I1, I2, I3 = "s20", "s21", "s22", "s23"
def issue_chunk(ci):
    base = (ci % 3) * 32768
    sadd(I0, T5, ci); sand(I0, I0, 7)
    sadd("m0", T4, base); sshl(I1, I0, 7)
    e("buffer_load_dwordx4 v%d, %s, %s offen lds" % (G_VX0, R_X, I1))
    sadd("m0", T4, base + 1024); smul(I2, I0, 196608)
    e("buffer_load_dwordx4 v%d, %s, %s offen lds" % (G_VX1, R_X, I1))
    for g, va in enumerate((G_VWQ, G_VWK, G_VWV)):
        for h in range(2):
            sadd("m0", T4, base + (g + 1) * 8192 + h * 1024)
            if g == 0 and h == 0: sadd(I3, I2, 24576)
            else: e("s_nop 0")
            e("buffer_load_dwordx4 v%d, %s, %s offen lds" % (va, R_W, I3 if h else I2))

def pi_tok(dst, src, t):
    V("and_b32", dst, 0x13, v(src)); V("bfe_u32", t, v(src), 2, 1); V("lshl_or_b32", dst, v(t), 3, v(dst))
    V("bfe_u32", t, v(src), 3, 1); V("lshl_or_b32", dst, v(t), 2, v(dst))

def gemm_read_addr():
    t = VT
    c("GEMM LDS fragment read addresses, publish addresses")
    pi_tok(t, V_L, t + 1)
    V("lshrrev_b32", t + 1, 5, v(V_L))
    V("lshlrev_b32", PV_QS, 4, v(t)); V("lshl_add_u32", PV_QS, v(t + 1), 9, v(PV_QS))
    sand(T0, WV, 1); sshl(T1, T0, 5); V("add_u32", t, T1, v(t))
    V("bfe_u32", t + 2, v(t), 1, 3); V("xor_b32", t + 2, v(t + 2), v(t + 1)); V("lshlrev_b32", t + 2, 4, v(t + 2))
    V("lshl_add_u32", G_XA, v(t), 7, v(t + 2))
    for s in range(1, 4): V("xor_b32", G_XA + s, 32 * s, v(G_XA))
    V("bfe_u32", t + 2, v(V_L), 2, 2); V("lshl_add_u32", t + 3, v(t + 1), 3, v(t + 2)); V("lshlrev_b32", t + 3, 7, v(t + 3))
    V("bfe_u32", t + 4, v(V_L), 4, 1); V("bfe_u32", t + 5, v(V_L), 3, 1); V("and_b32", t + 6, 1, v(V_L)); V("bfe_u32", t + 7, v(V_L), 1, 1)
    sand(T2, WV, 2); sshl(T1, T2, 1)
    V("or_b32", t + 8, T1, v(t + 6)); V("lshl_or_b32", t + 9, v(t + 4), 1, v(t + 5)); V("lshlrev_b32", t + 9, 1, v(t + 9))
    V("xor_b32", t + 8, v(t + 8), v(t + 9)); V("lshl_add_u32", t + 8, v(t + 8), 4, v(t + 3)); V("lshl_add_u32", t + 8, v(t + 7), 3, v(t + 8))
    V("lshl_add_u32", G_WA, v(t + 4), 13, v(t + 8)); V("add_u32", G_WA, 8192, v(G_WA)); V("xor_b32", G_WA + 1, 32, v(G_WA))
    V("lshl_or_b32", t + 8, v(t + 4), 1, v(t + 7)); V("or_b32", t + 8, T1, v(t + 8)); V("lshlrev_b32", t + 9, 2, v(t + 5))
    V("xor_b32", t + 8, v(t + 8), v(t + 9)); V("lshl_add_u32", t + 8, v(t + 8), 4, v(t + 3)); V("lshl_add_u32", t + 8, v(t + 6), 3, v(t + 8))
    V("add_u32", G_WA + 2, 24576, v(t + 8))
    for s in range(4): V("add_u32", G_XA + 4 + s, 0x10000, v(G_XA + s))
    for s in range(3): V("add_u32", G_WB + s, 0x10000, v(G_WA + s))
    V("and_b32", t + 2, 15, v(V_L)); V("lshlrev_b32", t + 2, 4, v(t + 2)); V("lshl_add_u32", t + 2, v(t + 1), 8, v(t + 2)); V("lshl_add_u32", PV_VS, v(t + 4), 16, v(t + 2))
    sshl(T1, GQ, 2); sadd(T1, T1, T2); sshl(T1, T1, 6); sshl(T3, GT, 1); sadd(T1, T1, T3); sadd(T1, T1, T0); sshl(sQKV, T1, 10)
    sshl(T0, T0, 8)
    e("s_bitcmp1_b32 %s, 1" % WV)
    csel(T1, L_TA + 14256, L_TA); csel(T2, L_TB + 16896, L_TB)
    sadd(T1, T1, T0); sadd(T2, T2, T0)
    V("lshl_add_u32", PV_TW, v(V_L), 2, T1); V("lshl_add_u32", 46, v(V_L), 2, T2)

G_UP = 29
def u_coop_loads():
    t = VT
    if OPT["umode"] == 0:
        e("s_bfe_u32 %s, %s, 0x10001" % (T1, WV)); sand(T0, WV, 1)
        V("and_b32", t, 7, v(V_L)); V("bfe_u32", t + 1, v(V_L), 3, 2)
        sshl(T0, T0, 2); V("add_u32", t + 1, T0, v(t + 1))
        sshl(T2, I5, 1); sadd(T1, T1, T2); sshl(T1, T1, 3); V("add_u32", t, T1, v(t))
        V("lshlrev_b32", t + 2, 4, v(t + 1)); V("lshl_add_u32", G_UA, v(t), 12, v(t + 2))
        V("lshlrev_b32", t, 4, v(t)); V("lshl_add_u32", G_US, v(t + 1), 15, v(t))
        sshl(T0, XQ, 7)
        e("s_mov_b32 exec_hi, 0")
        for k in range(4):
            e("buffer_load_dwordx4 %s, v%d, %s, %s offen offset:%d" % (vr(G_UL + 4 * k, 4), G_UA, R_U, T0, 1024 * k))
        e("s_mov_b32 exec_hi, -1")
        return
    sshl(T1, I5, 2); sadd(T1, T1, WV); sshl(T1, T1, 2)
    V("bfe_u32", t, v(V_L), 3, 2); V("add_u32", t, T1, v(t)); V("and_b32", t + 1, 7, v(V_L))
    V("lshlrev_b32", t + 1, 4, v(t + 1)); V("lshl_add_u32", G_UA, v(t), 12, v(t + 1))
    sshl(T0, XQ, 7)
    e("s_mov_b32 exec_hi, 0")
    for k in range(4):
        e("buffer_load_dwordx4 %s, v%d, %s, %s offen offset:%d" % (vr(G_UL + 4 * k, 4), G_UA, R_U, T0, 1024 * k))
    e("s_mov_b32 exec_hi, -1")
    V("and_b32", t, 3, v(V_L)); V("bfe_u32", t + 1, v(V_L), 2, 3)
    V("lshl_add_u32", G_UP, v(t), 3, v(t + 1)); V("lshlrev_b32", G_UP, 2, v(G_UP))
    V("add_u32", t, T1, v(t)); V("lshlrev_b32", t, 4, v(t)); V("lshl_add_u32", G_US, v(t + 1), 15, v(t))

def u_coop_perm():
    D = 240
    e("s_waitcnt vmcnt(0)")
    for i in range(4):
        for k in range(4):
            if OPT["umode"]: e("ds_bpermute_b32 v%d, v%d, v%d" % (D + 4 * i + k, G_UP, G_UL + 4 * k + i))
            else: V("mov_b32", D + 4 * i + k, v(G_UL + 4 * k + i))
def u_coop_stores():
    D = 240
    sshl(I0, XQ, 18); sadd(I0, I0, WS_U2)
    e("s_mov_b32 exec_hi, 0")
    for i in range(4):
        e("buffer_store_dwordx4 %s, v%d, %s, %s offen sc1" % (vr(D + 4 * i, 4), G_US, R_WS, I0))
        if i < 3: sadd(I0, I0, 8192)
    e("s_mov_b32 exec_hi, -1")

def flag_store(soff, t=VT):
    if OPT["fline"] and soff != "0":
        V("mov_b32", t + 1, TAG)
        V("lshlrev_b32", t, 2, v(V_L))
        e("s_mov_b32 exec_hi, 0")
        e("buffer_store_dword v%d, v%d, %s, %s offen sc1" % (t + 1, t, R_WS, soff))
        e("s_mov_b32 exec_hi, -1")
        return
    V("mov_b32", t, 0); V("mov_b32", t + 1, TAG)
    e("s_mov_b64 exec, 1")
    e("buffer_store_dword v%d, v%d, %s, %s offen sc1" % (t + 1, t, R_WS, soff))
    e("s_mov_b64 exec, -1")

def poll(label, soff, first_issued=None, t=VT, nwait=0):
    V("lshlrev_b32", t, 7, v(V_L))
    e("s_mov_b32 %s, 0" % CNT)
    e("s_mov_b32 exec_hi, 0")
    r = t + 1
    if first_issued is not None:
        r = first_issued
        e("s_waitcnt vmcnt(%d)" % nwait)
        e("s_branch %s_chk" % label)
    if OPT["psleep"] and first_issued is None: e("s_branch %s_go" % label)
    lab(label)
    if OPT["psleep"]: e("s_sleep %d" % OPT["psleep"])
    lab(label + "_go")
    e("buffer_load_dword v%d, v%d, %s, %s offen %s" % (r, t, R_WS, soff, OPT["ppol"].replace("+", " ")))
    sadd(CNT, CNT, 1)
    e("s_waitcnt vmcnt(0)")
    lab(label + "_chk")
    e("v_cmp_ne_u32 vcc, %s, v%d" % (TAG, r))
    e("s_cmp_gt_u32 %s, 0x4000" % CNT)
    e("s_cbranch_scc1 %s_done" % label)
    e("s_cmp_lg_u64 vcc, 0")
    e("s_cbranch_scc1 %s" % label)
    lab(label + "_done")
    e("s_mov_b32 exec_hi, -1")

def poll_pipe(label, soff, t=VT):
    NP, gap = OPT["np"], OPT["pgap"]
    V("lshlrev_b32", t, 7, v(V_L))
    e("s_mov_b32 %s, 0" % CNT)
    e("s_mov_b32 exec_hi, 0")
    for k in range(NP - 1):
        e("buffer_load_dword v%d, v%d, %s, %s offen sc1" % (t + 8 + k, t, R_WS, soff))
        e("s_sleep %d" % gap)
    lab(label)
    for k in range(NP):
        e("buffer_load_dword v%d, v%d, %s, %s offen sc1" % (t + 8 + (k + NP - 1) % NP, t, R_WS, soff))
        e("s_waitcnt vmcnt(%d)" % (NP - 1))
        e("v_cmp_ne_u32 vcc, %s, v%d" % (TAG, t + 8 + k))
        e("s_cmp_eq_u64 vcc, 0")
        e("s_cbranch_scc1 %s_done" % label)
    sadd(CNT, CNT, 1)
    e("s_cmp_lt_u32 %s, 0x2000" % CNT)
    e("s_cbranch_scc1 %s" % label)
    lab(label + "_done")
    e("s_mov_b32 exec_hi, -1")

def kgen_addr():
    t = VT
    c("SPLIT")
    V("bfe_u32", t, v(V_L), 4, 1); V("bfe_u32", t + 1, v(V_L), 2, 1); V("lshl_or_b32", t, v(t), 1, v(t + 1))
    V("bfe_u32", t + 1, v(V_L), 3, 1); V("and_b32", t + 2, 3, v(V_L)); V("lshl_or_b32", t + 1, v(t + 1), 2, v(t + 2))
    e("v_cmp_eq_u32 s[4:5], 0, v%d" % t)
    e("v_cmp_eq_u32 vcc, 1, v%d" % t)
    e("s_bitcmp1_b32 %s, 0" % WV)
    csel(T0, 0x11100000, 0x76543210); csel(T1, 0x11100000, 0x43222100); csel(T2, 0x11100000, 0x22111000); csel(T3, 0x19171513, 0x100d0800)
    V("mov_b32", t + 2, T2); V("mov_b32", t + 3, T1); V("cndmask_b32", t + 2, v(t + 2), v(t + 3), "vcc")
    V("mov_b32", t + 3, T0); V("cndmask_b32", t + 2, v(t + 2), v(t + 3), "s[4:5]")
    V("lshlrev_b32", t + 1, 2, v(t + 1)); V("bfe_u32", t + 2, v(t + 2), v(t + 1), 4)
    V("lshlrev_b32", t, 3, v(t)); V("bfe_u32", t, T3, v(t), 8); V("add_u32", t, v(t), v(t + 2))
    V("lshrrev_b32", t + 1, 5, v(V_L)); V("and_b32", t + 2, 31, v(V_L))
    e("s_cselect_b32 %s, 2048, 0" % T3)
    e("s_cselect_b32 %s, 0, -1" % CNT)
    e("s_bitcmp1_b32 %s, 1" % WV)
    csel(T0, L_TA + 14256, L_TA); csel(T1, L_TB + 16896, L_TB); csel(T2, L_KF + 4160 + 64, L_KF + 64)
    sadd(T2, T2, T3)
    V("mul_u32_u24", t, 528, v(t)); V("lshl_add_u32", t + 3, v(t + 1), 4, T0); V("add_u32", PV_GA, v(t), v(t + 3))
    V("mul_u32_u24", t, 528, v(t + 2)); V("lshl_add_u32", t + 3, v(t + 1), 4, T1); V("add_u32", PV_GB, v(t), v(t + 3))
    V("lshl_add_u32", t, v(t + 1), 9, T2); V("lshl_add_u32", PV_GW, v(t + 2), 4, v(t))
    e("s_waitcnt lgkmcnt(0)")
    sadd(TAG, TAG, 1)
    e("s_bitcmp1_b32 %s, 1" % WV)
    e("s_cselect_b32 %s, 0, 16" % T0)
    sshl(T0, DS2, T0); sand(T0, T0, 0xffff0000); sand(T0, T0, CNT)
    e("v_cmp_eq_u32 vcc, 0, v%d" % V_L)
    V("mov_b32", PV_GD, T0)
    sand(T1, WV, 3); sshl(T1, T1, 8); sadd(T1, T1, L_UP + 128)
    V("cndmask_b32", PV_GD, 0, v(PV_GD), "vcc")
    V("lshl_add_u32", PV_US, v(V_L), 1, T1)

def pads():
    t = VT
    c("SPLIT")
    for i in range(4): V("mov_b32", t + 4 + i, 0)
    V("lshrrev_b32", t, 3, v(V_L)); V("mul_u32_u24", t, 1152, v(t)); V("and_b32", t + 1, 7, v(V_L)); V("lshl_add_u32", t, v(t + 1), 4, v(t)); V("add_u32", t, L_UP, v(t))
    V("bfe_u32", t + 1, v(V_L), 2, 1); V("mul_u32_u24", t + 1, 4160, v(t + 1)); V("and_b32", t + 2, 3, v(V_L)); V("lshl_add_u32", t + 1, v(t + 2), 4, v(t + 1)); V("add_u32", t + 1, L_KF, v(t + 1))
    V("lshlrev_b32", t + 2, 4, v(t + 2)); V("add_u32", t + 2, L_FL, v(t + 2))
    for k in range(3): e("ds_write_b128 v%d, %s" % (t + k, vr(t + 4, 4)))

def loader_path():
    c("======== loader waves ========")
    if OPT["gprio"] == 2: e("s_setprio 1")
    loader_addr()
    e("s_waitcnt lgkmcnt(0)")
    stamp("karg")
    srd(R_X, S_X, 2048 * 1024); srd(R_W, S_W, 512 * 3072)
    scalar_loads()
    issue_chunk(0)
    if OPT["echo"]: stamp("i0")
    srd(R_WS, S_WS, WS_SIZE - (OPT["wsb"] << 20)); srd(R_OUT, S_OUT, 2048 * 2048); srd(R_WO, S_WO, 512 * 1024)
    late = capture(lambda: (precompute_conv(), precompute(), kgen_addr(), pads()))
    def upto(n):
        while n < len(late) and "SPLIT" not in late[n]: n += 1
        SINK[0].extend(late[:n]); del late[:n]
    upto(OPT["npre"])
    if OPT["echo"]: stamp("pre")
    issue_chunk(1)
    if OPT["echo"]: stamp("i1")
    waits = [8, 8, 8, 8, 8, 8, 9, 1]
    for ci in range(8):
        c("loader chunk %d" % ci)
        e("s_waitcnt vmcnt(%d)" % waits[ci])
        if OPT["echo"] and ci in (0, 1, 2): stamp("ld%d" % ci)
        if OPT["ldst"] and ci in (0, 1, 2, 3, 4): e("s_memrealtime s[%d:%d]" % (80 + 4 * ci, 81 + 4 * ci))
        e("s_barrier")
        if OPT["ldst"] and ci in (0, 1, 2, 3, 4): e("s_memrealtime s[%d:%d]" % (82 + 4 * ci, 83 + 4 * ci))
        if ci in (0, 7): stamp("ch%d" % ci)
        if ci + 2 < 8: issue_chunk(ci + 2)
        if ci < 5 and OPT["lsp"]: upto(OPT["lsp"])
        if ci == 5:
            sshl(T5, XQ, 12); sadd(T5, T5, WS_F0)
            V("lshlrev_b32", 42, 7, v(V_L))
            e("s_mov_b32 exec_hi, 0")
            e("buffer_load_dword v%d, v42, %s, %s offen sc1" % (G_PL, R_WS, T5))
            e("s_mov_b32 exec_hi, -1")
            upto(len(late) // 2)
        if ci == 6: upto(9999)
    poll("L_poll0", T5, first_issued=G_PL, nwait=0)
    c("u of this WG's channel pair (transposed by the group)")
    sshl(T0, XQ, 5); sadd(T0, T0, I5); sshl(T0, T0, 13); sadd(T0, T0, T4); sadd(T0, T0, WS_U2)
    e("buffer_load_dwordx4 %s, v%d, %s, %s offen sc1" % (vr(U2R, 4), V_L16, R_WS, T0))
    e("buffer_load_dwordx4 %s, v%d, %s, %s offen offset:1024 sc1" % (vr(U2R + 4, 4), V_L16, R_WS, T0))
    e("s_barrier")
    stamp("K1")
    c("---- S4 kernel K = A-table x B-table (rows duplicated to realise bf16(l)) ----")
    FA, FB, AC = 96, 128, 160
    def rd(s):
        e("ds_read_b128 %s, v%d offset:%d" % (vr(FA + 4 * (s % 8), 4), PV_GA, 32 * s))
        e("ds_read_b128 %s, v%d offset:%d" % (vr(FB + 4 * (s % 8), 4), PV_GB, 32 * s))
    for s in range(7): rd(s)
    e("v_and_b32 v%d, 1, v%d" % (VT, V_L))
    e("v_cmp_eq_u32 vcc, 0, v%d" % VT)
    uw = []
    for h in range(2):
        for p in range(4):
            uw.append("    ds_write_b16 v%d, v%d offset:%d" % (PV_US, U2R + 4 * h + p, 1152 * p + 128 * h))
            uw.append("    ds_write_b16_d16_hi v%d, v%d offset:%d" % (PV_US, U2R + 4 * h + p, 4608 + 1152 * p + 128 * h))
    nw = 0
    for s in range(16):
        e("s_waitcnt lgkmcnt(%d)" % (2 * (min(s + 6, 15) - s) + nw))
        e("v_mfma_f32_32x32x16_bf16 %s, %s, %s, %s" % (vr(AC, 16), vr(FA + 4 * (s % 8), 4), vr(FB + 4 * (s % 8), 4), "0" if s == 0 else vr(AC, 16)))
        if s + 7 < 16: rd(s + 7)
        if s == 10:
            stamp("preU")
            e("s_waitcnt vmcnt(0)")
            stamp("gotU")
        if 10 <= s < 15:
            SINK[0].extend(uw[nw:nw + 3]); nw += 3
    SINK[0].extend(uw[15:])
    nop(11)
    V("add_f32", AC, v(AC), v(PV_GD))
    e("s_bitcmp1_b32 %s, 0" % WV)
    e("s_cbranch_scc0 L_kg_nofix")
    V("cndmask_b32", AC + 4, v(AC + 5), v(AC + 3), "vcc"); V("cndmask_b32", AC + 12, v(AC + 13), v(AC + 11), "vcc")
    lab("L_kg_nofix")
    for i in range(8): V("cvt_pk_bf16_f32", FA + i, v(AC + 2 * i), v(AC + 2 * i + 1))
    e("ds_write_b128 v%d, %s" % (PV_GW, vr(FA, 4)))
    e("ds_write_b128 v%d, %s offset:1024" % (PV_GW, vr(FA + 4, 4)))
    e("s_branch L_gemm_done")

def cmul_multi(lst):
    for d, a, b in lst:
        e("v_pk_mul_f32 %s, %s, %s op_sel:[0,0] op_sel_hi:[1,0]" % (vr(d, 2), vr(a, 2), vr(b, 2)))
    for d, a, b in lst:
        e("v_pk_fma_f32 %s, %s, %s, %s op_sel:[1,1,0] op_sel_hi:[0,1,1] neg_lo:[1,0,0]" % (vr(d, 2), vr(a, 2), vr(b, 2), vr(d, 2)))
def cexp_multi(lst, va, vb):
    for d, Lf, t, cj in lst:
        V("mul_f32", t, fl(Lf), v(va)); V("mul_f32", t + 1, fl(-Lf if cj else Lf), v(vb)); V("fract_f32", t + 1, v(t + 1))
    for d, Lf, t, cj in lst:
        V("exp_f32", t, v(t)); V("cos_f32", d, v(t + 1)); V("sin_f32", d + 1, v(t + 1))
    e("s_nop 0")
    for d, Lf, t, cj in lst:
        e("v_pk_mul_f32 %s, %s, %s op_sel:[0,0] op_sel_hi:[1,0]" % (vr(d, 2), vr(d, 2), vr(t, 2)))

KVA, KVB, KVD = 220, 221, 25
def kgen_b():
    c("---- S4 mode tables: B = exp(z*8j) -> LDS ----")
    va, vb, vdt, ta = KVA, KVB, KVD, VT + 4
    e("s_bitcmp1_b32 %s, 1" % WV)
    e("s_cselect_b32 %s, 0, 16" % T0)
    sshl(T0, LD2, T0); sand(T0, T0, 0xffff0000)
    V("mov_b32", vdt, fl(LOG2E)); V("mul_f32", vdt, T0, v(vdt)); V("exp_f32", vdt, v(vdt))
    for i in range(2): V("lshlrev_b32", V_PAR + i, 16, v(V_PAR + i))
    V("cvt_pk_bf16_f32", vdt, v(vdt), v(vdt)); V("and_b32", vdt, 0xffff0000, v(vdt))
    V("mul_f32", va, v(vdt), v(V_PAR)); V("mul_f32", vb, v(vdt), v(V_PAR + 1))
    V("mul_f32", va, fl(LOG2E), v(va)); V("mul_f32", vb, fl(1.0 / (2 * math.pi)), v(vb))
    P = lambda j: KB + 2 * j
    G = lambda k: KB + 16 + 2 * k
    X = KB + 24
    cv = [KB + 40 + i for i in range(8)]
    n = [0]
    def putb(row, pr):
        r = cv[n[0] % 8]; n[0] += 1
        V("cvt_pk_bf16_f32", r, v(pr), v(pr + 1))
        e("ds_write_b32 v46, v%d offset:%d" % (r, row * 528))
    cexp_multi([(P(1), 8.0, ta, 0), (G(1), 64.0, ta + 2, 0)], va, vb)
    V("mov_b32", cv[7], 0x3f80); e("ds_write_b32 v46, v%d" % cv[7])
    cmul_multi([(P(2), P(1), P(1)), (G(2), G(1), G(1))])
    putb(1, P(1)); putb(8, G(1))
    cmul_multi([(P(3), P(2), P(1)), (P(4), P(2), P(2)), (G(3), G(2), G(1))])
    putb(2, P(2)); putb(16, G(2))
    cmul_multi([(P(5), P(4), P(1)), (P(6), P(4), P(2)), (P(7), P(4), P(3))])
    for r, p in ((3, P(3)), (4, P(4)), (24, G(3)), (5, P(5)), (6, P(6)), (7, P(7))): putb(r, p)
    for k in range(1, 4):
        cmul_multi([(X + 2 * j, P(j), G(k)) for j in range(1, 8)])
        for j in range(1, 8): putb(8 * k + j, X + 2 * j)

def kgen_a():
    va, vb, vdt, ta = KVA, KVB, KVD, VT + 4
    E = lambda j: 224 + 2 * j - 2
    Q = lambda j: 160 + 2 * j
    H = lambda k: 176 + 2 * k
    X = 224
    def puta(row, pr): V("cvt_pk_bf16_f32", KR + row, v(pr), v(pr + 1))
    cexp_multi([(E(1), 1.0, ta, 1), (H(1), 256.0, ta + 2, 1)], va, vb)
    for i in range(2, 6): V("lshlrev_b32", V_PAR + i, 16, v(V_PAR + i))
    V("mul_f32", ta, v(vdt), v(V_PAR + 2)); e("v_mul_f32 v%d, -v%d, v%d" % (ta + 1, vdt, V_PAR + 3))
    V("mov_b32", ta + 2, v(V_PAR + 4)); V("mul_f32", ta + 3, "-1.0", v(V_PAR + 5))
    cmul_multi([(Q(0), ta, ta + 2), (E(2), E(1), E(1)), (H(2), H(1), H(1))])
    cmul_multi([(E(3), E(2), E(1)), (E(4), E(2), E(2)), (H(3), H(2), H(1)), (H(4), H(2), H(2))])
    puta(0, Q(0))
    cmul_multi([(E(5), E(4), E(1)), (E(6), E(4), E(2)), (E(7), E(4), E(3)), (E(8), E(4), E(4)), (H(5), H(4), H(1)), (H(6), H(4), H(2)), (H(7), H(4), H(3))])
    cmul_multi([(Q(j), Q(0), E(j)) for j in range(1, 9)])
    for j in range(1, 8): puta(j, Q(j))
    cmul_multi([(X + 2 * i, H(1), Q(2 * i)) for i in range(5)] + [(X + 10 + 2 * i, H(2), Q(4 * i)) for i in range(3)])
    for i in range(8): puta(8 + i, X + 2 * i)
    cmul_multi([(X + 2 * i, H(3), Q(4 * i)) for i in range(3)] + [(X + 6, H(4), Q(0)), (X + 8, H(4), Q(8)), (X + 10, H(5), Q(0)), (X + 12, H(5), Q(8))])
    for i in range(7): puta(16 + i, X + 2 * i)
    cmul_multi([(X, H(6), Q(0)), (X + 2, H(6), Q(8)), (X + 4, H(7), Q(0)), (X + 6, H(7), Q(8))])
    for i in range(4): puta(23 + i, X + 2 * i)

def compute_path():
    t = VT
    lab("L_compute")
    if OPT["gprio"] == 1: e("s_setprio 1")
    c("======== compute waves ========")
    e("s_bfe_u32 %s, %s, 0x10001" % (T0, WV)); sadd(T0, T0, C0); sshl(T0, T0, 8); sand(T1, WV, 1); sshl(T1, T1, 7); sadd(T0, T0, T1)
    V("lshl_add_u32", V_PA, v(V_L), 1, T0)
    e("s_waitcnt lgkmcnt(0)")
    stamp("karg")
    if OPT["pfx"]:
        c("touch this WG's 1/256 share of x and Wqkv so that HBM streams them in at once")
        V("lshlrev_b32", 252, 7, v(V_L)); V("min_u32", 253, 47 * 128, v(252))
        sshl(T0, "s2", 13); smul(T1, "s2", 6144)
        V("add_u32", 252, T0, v(252)); V("add_u32", 253, T1, v(253))
        e("s_cmp_eq_u32 %s, 0" % WV)
        e("s_cbranch_scc0 L_pfx1")
        e("global_load_dword v252, v252, %s" % sr(S_X, 2))
        lab("L_pfx1")
        e("s_cmp_eq_u32 %s, 1" % WV)
        e("s_cbranch_scc0 L_pfx2")
        e("global_load_dword v253, v253, %s" % sr(S_W, 2))
        lab("L_pfx2")
    for i, s in enumerate((S_ARE, S_AIM, S_BRE, S_BIM, S_CRE, S_CIM)):
        e("global_load_ushort v%d, v%d, %s" % (V_PAR + i, V_PA, sr(s, 2)))
    scalar_loads()
    srd(R_U, S_U, 2048 * 1024)
    u_coop_loads()
    if OPT["pfw"]:
        c("XCD slots 0..3 usually start first: warm the memory-side cache with the W columns of head quads 4..7")
        e("s_cmp_eq_u32 %s, 0" % WV); e("s_cbranch_scc0 L_pfw")
        e("s_cmp_lt_u32 %s, 4" % XQ); e("s_cbranch_scc0 L_pfw")
        sshl(T0, XQ, 5); sadd(T0, T0, I5); smul(T0, T0, 4 * 3072); sadd(T0, T0, 512)
        V("min_u32", 252, 47, v(V_L)); V("mul_u32_u24", 253, 0x1556, v(252)); V("lshrrev_b32", 253, 16, v(253))
        V("mul_u32_u24", 254, 12, v(253)); V("sub_u32", 252, v(252), v(254))
        V("mul_u32_u24", 253, 3072, v(253)); V("lshrrev_b32", 254, 2, v(252)); V("lshl_add_u32", 253, v(254), 10, v(253))
        V("and_b32", 252, 3, v(252)); V("lshl_add_u32", 253, v(252), 7, v(253)); V("add_u32", 253, T0, v(253))
        e("global_load_dword v253, v253, %s" % sr(S_W, 2))
        e("s_branch L_pfw2")
        lab("L_pfw")
        e("global_load_dword v253, v%d, %s" % (V_L16, sr(S_W, 2)))
        lab("L_pfw2")
    if OPT["pf"] == 1:
        c("pull this WG's 1/32 share of the code into L2")
        e("s_getpc_b64 s[4:5]")
        lab("L_pc")
        sshl(T0, I5, 3); V("add_u32", t, T0, v(V_L)); V("lshlrev_b32", t, 7, v(t))
        e("v_min_u32 v%d, L_end-L_pc-4, v%d" % (t, t))
        e("s_mov_b64 exec, 0xff")
        e("global_load_dword v47, v%d, s[4:5]" % t)
        e("s_mov_b64 exec, -1")
    srd(R_WS, S_WS, WS_SIZE - (OPT["wsb"] << 20)); srd(R_OUT, S_OUT, 2048 * 2048); srd(R_WO, S_WO, 512 * 1024)
    if OPT["tlb"]:
        c("touch an unused line in every 2 MB of the workspace, and out / Wo, to warm the address translation")
        V("min_u32", 252, 5, v(V_L)); V("mul_u32_u24", 252, 0x201000, v(252)); V("add_u32", 252, 0xff000, v(252))
        V("and_b32", 253, 1, v(V_L)); V("lshlrev_b32", 253, 21, v(253))
        e("s_mov_b64 exec, 0x3f")
        e("buffer_load_dword v252, v252, %s, 0 offen" % R_WS)
        e("buffer_load_dword v253, v253, %s, 0 offen" % R_OUT)
        e("buffer_load_dword v254, v%d, %s, 0 offen" % (V_L16, R_WO))
        e("s_mov_b64 exec, -1")
    gemm_read_addr()
    e("s_waitcnt vmcnt(%d) lgkmcnt(0)" % (8 + (OPT["pf"] == 1) + OPT["pfw"] + 3 * OPT["tlb"]))
    sadd(TAG, TAG, 1)
    if OPT["echo"]: stamp("par")
    kgen_b()
    pc = [x for x in capture(kgen_a) if not x.strip().startswith(";")]
    if OPT["apre"]:
        e("s_waitcnt vmcnt(%d)" % (4 + (OPT["pf"] == 1) + OPT["pfw"] + 3 * OPT["tlb"]))
        SINK[0].extend(pc[:OPT["apre"]]); del pc[:OPT["apre"]]
    if OPT["uat"] < 0:
        u_coop_perm(); e("s_waitcnt lgkmcnt(0)"); u_coop_stores()
    if OPT["echo"]: stamp("cp0")
    if "F" in OPT["abl"]: pc = pc[:20]
    if "U" in OPT["abl"]: pc = pc[20:]
    def f0flag():
        sshl(I0, XQ, 5); sadd(I0, I0, I5); sshl(I0, I0, 7); sadd(I0, I0, WS_F0)
        flag_store(I0, 26)
    def fill(n):
        for _ in range(n):
            if pc: SINK[0].append(pc.pop(0))
    def ml(s, first=False):
        cc = lambda k: "0" if first else vr(G_ACC[k], 16)
        return ["v_mfma_f32_32x32x16_bf16 %s, %s, %s, %s" % (vr(G_ACC[0], 16), vr(G_W0F + 4 * s, 4), vr(G_XF + 4 * s, 4), cc(0)),
                "v_mfma_f32_32x32x16_bf16 %s, %s, %s, %s" % (vr(G_ACC[1], 16), vr(G_W1F + 4 * s, 4), vr(G_XF + 4 * s, 4), cc(1)),
                "v_mfma_f32_32x32x16_bf16 %s, %s, %s, %s" % (vr(G_ACC[2], 16), vr(G_XF + 4 * s, 4), vr(G_VF + 4 * s, 4), cc(2))]
    def ilv(ms, rs, nf):
        k = 0
        for i, m in enumerate(ms):
            if "M" not in OPT["abl"] or m.endswith(", 0"): e(m)
            upto = (len(rs) * (i + 1) + len(ms) - 1) // len(ms)
            SINK[0].extend(rs[k:upto]); k = upto
            fill(nf)
    for ci in range(8):
        c("compute chunk %d" % ci)
        hi = (ci % 3) == 2
        ib = 32768 if ci % 3 == 1 else 0
        xa = G_XA + (4 if hi else 0)
        wa = G_WB if hi else G_WA
        if ci == 4: e("s_waitcnt vmcnt(0)")
        e("s_barrier")
        if ci in (0, 7): stamp("ch%d" % ci)
        if ci == 4: f0flag()
        def reads(s):
            if "R" in OPT["abl"]: return
            e("ds_read_b128 %s, v%d offset:%d" % (vr(G_XF + 4 * s, 4), xa + s, ib))
            for k, f in enumerate((G_W0F, G_W1F, G_VF)):
                for tt in range(2):
                    e("ds_read_b64_tr_b16 %s, v%d offset:%d" % (vr(f + 4 * s + 2 * tt, 2), wa + k, ib + (16 * s + 4 * tt) * 128))
        r0, r1 = capture(reads, 0), capture(reads, 1)
        nf = 1 if ci != OPT["uat"] and ci < 7 else 0
        if ci > 0:
            SINK[0].extend(r0[:3]); ilv(ml(3), r0[3:] + r1[:5], 0); SINK[0].extend(r1[5:])
        else: SINK[0].extend(r0 + r1)
        if ci == OPT["uat"] + 1 and OPT["ust2"]: u_coop_stores()
        fill(OPT["f0"] * nf)
        e("s_waitcnt lgkmcnt(7)"); ilv(ml(0, ci == 0), capture(reads, 2), nf)
        e("s_waitcnt lgkmcnt(7)"); ilv(ml(1), capture(reads, 3), nf)
        e("s_waitcnt lgkmcnt(7)")
        if ci < 7:
            if ci == OPT["uat"]: ilv(ml(2), capture(u_coop_perm), 0)
            else: ilv(ml(2), [], OPT["f2"] * nf)
            if ci == 6: fill(999)
            e("s_waitcnt lgkmcnt(0)")
            if ci == OPT["uat"] and not OPT["ust2"]: u_coop_stores()
    tw = ["    ds_write_b32 v%d, v%d offset:%d" % (PV_TW, KR + r, r * 528) for r in range(27)]
    ilv(ml(2), tw[:8], 0)
    e("s_waitcnt lgkmcnt(8)")
    ilv(ml(3), tw[8:], 0)
    sadd(T1, sQKV, WS_K); sadd(T2, sQKV, WS_K + 65536); sadd(T3, sQKV, WS_V); sadd(T4, sQKV, WS_Q + 65536); sadd(T0, sQKV, WS_Q)
    e("s_waitcnt lgkmcnt(0)")
    e("s_barrier")
    stamp("K1")
    c("GEMM epilogue: publish Q,K,V")
    P = G_XF
    def pk(dst, src):
        for i in range(4): V("cvt_pk_bf16_f32", dst + i, v(src + 2 * i), v(src + 1 + 2 * i))
    def st(r, va, so, off=0):
        e("buffer_store_dwordx4 %s, v%d, %s, %s offen%s sc1" % (vr(r, 4), va, R_WS, so, " offset:%d" % off if off else ""))
    pk(P, G_ACC[0] + 8); st(P, PV_QS, T1)
    pk(P + 4, G_ACC[1] + 8); st(P + 4, PV_QS, T2)
    pk(P + 8, G_ACC[2]); st(P + 8, PV_VS, T3)
    pk(P + 12, G_ACC[2] + 8); st(P + 12, PV_VS, T3, 512)
    for k, so in ((0, T0), (1, T4)):
        for i in range(8): V("mul_f32", G_ACC[k] + i, fl(0.25 * LOG2E), v(G_ACC[k] + i))
        pk(P + 16 + 4 * k, G_ACC[k]); st(P + 16 + 4 * k, PV_QS, so)
    stamp("pub")
    precompute_conv()
    if OPT["gsig"] < 0: signal("p", 16, 3, sF1)

C_LO, C_UP = 128, 144
C_A, C_X, C_Y = 160, 176, 192
def signal(tag, cnt_off, last, soff):
    t = VT + 4
    V("mov_b32", t + 2, L_FL + cnt_off); V("mov_b32", t + 3, 1)
    stamp("presig" + ("1" if cnt_off == 16 else "2"))
    e("s_waitcnt vmcnt(0)")
    stamp("acked" + ("1" if cnt_off == 16 else "2"))
    e("s_mov_b64 exec, 1")
    e("ds_add_rtn_u32 v%d, v%d, v%d" % (t + 3, t + 2, t + 3))
    e("s_mov_b64 exec, -1")
    e("s_waitcnt lgkmcnt(0)")
    e("v_readfirstlane_b32 %s, v%d" % (T0, t + 3))
    e("s_cmp_eq_u32 %s, %d" % (T0, last))
    e("s_cbranch_scc0 L_sig_%s" % tag)
    flag_store(soff, t)
    lab("L_sig_%s" % tag)

def attn_init():
    V("and_b32", 31, 31, v(V_L)); e("v_cmp_eq_u32 vcc, 16, v31"); V("mov_b32", 31, 0x3f803f80); V("mov_b32", 255, 0xdddddddd)
    e("s_mov_b32 s4, 0xffff"); e("s_mov_b32 s5, 0xffff")
    for i in range(16): V("cndmask_b32", 208 + i, 0, v(31), "vcc")
    for i in range(32): V("mov_b32", 72 + i, 0)

def conv_job(T, s0, nfull, tail, va, vb, sig=None, sig_after=1, fills=None, bar_after=-1):
    def rdA(k, sg):
        e("ds_read_b64_tr_b16 %s, v%d offset:%d" % (vr(C_A + 4 * k, 2), va, 128 * sg + 32))
        e("ds_read_b64_tr_b16 %s, v%d offset:%d" % (vr(C_A + 4 * k + 2, 2), va, 128 * sg))
    def rdB(dst, k, sg):
        e("ds_read_b128 %s, v%d offset:%d" % (vr(dst + 4 * k, 4), vb, 112 + 128 * T - 32 * sg))
    def mf(acc, k, b, first=False):
        e("v_mfma_f32_32x32x16_bf16 %s, %s, %s, %s" % (vr(acc, 16), vr(C_A + 4 * k, 4), vr(b + 4 * k, 4), "0" if first else vr(acc, 16)))
        for _ in range(OPT["cfill"]):
            if fl_: SINK[0].append(fl_.pop(0))
    fl_ = list(fills or [])
    pend = []
    def note(step, n): pend.extend([step] * n)
    def wait(step):
        n = sum(1 for x in pend if x > step)
        e("s_waitcnt lgkmcnt(%d)" % n)
        pend[:] = [x for x in pend if x > step]
    if sig and sig_after == -2: sig()
    for k in range(4):
        rdA(k, s0 + k); rdB(C_Y, k, s0 + k - 4); rdB(C_X, k, s0 + k); note(k, 4)
    cur, old = C_X, C_Y
    if sig and sig_after == 0: sig(); del pend[:]
    if bar_after == 0: e("s_barrier")
    for sec in range(nfull):
        for k in range(4):
            st = 4 * sec + k
            wait(st)
            mf(C_UP, k, old, st == 0)
            if sec + 1 < nfull: rdB(old, k, s0 + st + 4); note(st + 4, 1)
            mf(C_LO, k, cur, st == 0)
            if sec + 1 < nfull or tail: rdA(k, s0 + st + 4); note(st + 4, 2)
        cur, old = old, cur
        if sig and sec + 1 == sig_after: sig(); del pend[:]
        if sec + 1 == bar_after: e("s_barrier")
    if tail:
        for k in range(4):
            wait(4 * nfull + k)
            mf(C_UP, k, old)
    n = len(fl_)
    SINK[0].extend(fl_)
    nop(max(0, (2 if tail else 12) - n))

def z_writes(va, row0):
    for k in range(4): e("ds_write_b128 v%d, %s offset:%d" % (va, vr(C_LO + 4 * k, 4), 144 * row0 + 32 * k))
    nop(8)
    for k in range(4): e("ds_write_b128 v%d, %s offset:%d" % (va, vr(C_UP + 4 * k, 4), 144 * (row0 + 8) + 32 * k))

def conv():
    c("---- causal conv as Toeplitz MFMA, output tiles 0..5 ----")
    ini = capture(attn_init)
    e("s_cmp_ge_u32 %s, 4" % WV)
    e("s_cbranch_scc1 L_conv_hi")
    e("s_bitcmp1_b32 %s, 0" % WV)
    e("s_cbranch_scc1 L_conv_2a")
    conv_job(0, 0, 1, True, PV_CA, PV_CB, lambda: signal("a", 16, 3, sF1), min(1, OPT["gsig"]), fills=ini); z_writes(PV_ZW, 0)
    e("s_branch L_conv_done")
    lab("L_conv_2a")
    conv_job(4, 0, 3, False, PV_CA, PV_CB, lambda: signal("b", 16, 3, sF1), OPT["gsig"], fills=ini); z_writes(PV_ZW, 32)
    e("s_branch L_conv_done")
    lab("L_conv_hi")
    e("s_bitcmp1_b32 %s, 0" % WV)
    e("s_cbranch_scc1 L_conv_2b")
    conv_job(2, 0, 3, True, PV_CA, PV_CB, fills=ini); z_writes(PV_ZW, 16)
    e("s_branch L_conv_done")
    lab("L_conv_2b")
    conv_job(4, 12, 2, True, PV_CA, PV_CB, fills=ini); z_writes(PV_ZW, 32 + 17)
    lab("L_conv_done")
    stamp("cend")

def kv_tiles(msrc, soff):
    e("s_mov_b32 m0, %s" % msrc)
    e("s_nop 0")
    for i in range(8):
        if i == 4: sadd("m0", "m0", 4096); sadd(soff, soff, 4096)
        e("buffer_load_dwordx4 v%d, %s, %s offen offset:%d sc1 lds" % (V_L16, R_WS, soff, 1024 * (i % 4)))

def q_loads():
    e("buffer_load_dwordx4 %s, v%d, %s, %s offen sc1" % (vr(64, 4), V_L16, R_WS, sQL))
    e("buffer_load_dwordx4 %s, v%d, %s, %s offen offset:1024 sc1" % (vr(68, 4), V_L16, R_WS, sQL))

def kv_early():
    t = VT
    e("s_cmp_ge_u32 %s, 4" % WV)
    e("s_cbranch_scc1 L_kve_done")
    precompute(); precompute_tail()
    e("s_bitcmp1_b32 %s, 0" % WV)
    e("s_cbranch_scc1 L_kve_done")
    e("s_cmp_eq_u32 %s, 0" % WV)
    e("s_cbranch_scc0 L_kve_w2")
    for i in range(4): V("mov_b32", C_A + i, 0)
    V("and_b32", t + 2, 7, v(V_L)); V("mul_u32_u24", t + 2, ZS, v(t + 2)); V("bfe_u32", t + 3, v(V_L), 3, 1); V("mul_u32_u24", t + 3, 49 * 144, v(t + 3))
    V("add_u32", t + 2, v(t + 2), v(t + 3)); V("add_u32", t + 2, L_Z + 112, v(t + 2))
    e("ds_write_b128 v%d, %s" % (t + 2, vr(C_A, 4)))
    e("s_mov_b32 %s, 0" % T5); sadd(T3, sHB, WS_K)
    e("s_branch L_kve_go")
    lab("L_kve_w2")
    e("s_mov_b32 %s, 8192" % T5); sadd(T3, sHB, WS_V)
    lab("L_kve_go")
    poll("L_poll1", sF1P, t=VT + 4)
    stamp("poll1")
    if OPT["qearly"]:
        V("mov_b32", t + 2, L_FL + 32); V("mov_b32", t + 3, 1)
        e("ds_write_b32 v%d, v%d" % (t + 2, t + 3))
        q_loads()
    sshl(T0, JR, 13); sadd(T0, T0, T3)
    kv_tiles(T5, T0)
    if not OPT["b1late"]:
        sadd(T0, JR, 1); sand(T0, T0, 7); sshl(T0, T0, 13); sadd(T0, T0, T3); sadd(T5, T5, BLK)
        kv_tiles(T5, T0)
    if OPT["qearly"]:
        e("s_branch L_kve_out")
        lab("L_kve_done")
        V("mov_b32", t + 2, L_FL + 32)
        e("s_mov_b32 %s, 0" % CNT)
        lab("L_qsp")
        e("ds_read_b32 v%d, v%d" % (t + 3, t + 2))
        sadd(CNT, CNT, 1)
        e("s_waitcnt lgkmcnt(0)")
        e("v_readfirstlane_b32 %s, v%d" % (T0, t + 3))
        e("s_cmp_gt_u32 %s, 0x200000" % CNT)
        e("s_cbranch_scc1 L_qsp_done")
        e("s_cmp_eq_u32 %s, 0" % T0)
        e("s_cbranch_scc1 L_qsp")
        lab("L_qsp_done")
        q_loads()
        lab("L_kve_out")
    else: lab("L_kve_done")

A_Q = [64, 68]
A_S = [104, 120]
A_O = [72, 88]
A_KF = [136, 140]
A_VA = [208, 212]
A_VB = [216, 220]
A_IDX = 63 + 192
A_F = 164
A_NM = 120
WOR = 192
Y_R = 32
def conv_epilogue():
    c("y[t] = sum_p Z_p[t-p]")
    e("s_waitcnt lgkmcnt(0)")
    e("s_barrier")
    stamp("zbar")
    if not OPT["qearly"]: q_loads()
    order = [(0, 0), (0, 4 * ZS), (288, 0), (288, 4 * ZS), (0, 0), (17 * 144, 0), (0, 4 * ZS), (17 * 144, 4 * ZS)]
    def rd(n):
        if n == 4:
            for p in range(4): V("add_u32", PV_ZR + p, T0, v(PV_ZR + p))
        for p in range(4): e("ds_read_b32 v%d, v%d offset:%d" % (Y_R + 4 * n + p, PV_ZR + p, sum(order[n])))
    rd(0); rd(1); rd(2)
    smul(T0, WV, 288); e("s_sub_u32 %s, 4608, %s" % (T0, T0))
    e("s_cmp_eq_u32 %s, 6" % WV)
    e("s_cbranch_scc0 L_nocarry")
    c("carry: last rows of tile 5 (both partials) feed y[1536..1538], finished in the tail")
    t = VT
    for i in range(4): V("mov_b32", PV_CY + i, 0)
    V("and_b32", t, 7, v(V_L)); V("mul_u32_u24", t, ZS, v(t)); V("bfe_u32", t + 1, v(V_L), 3, 1); V("mul_u32_u24", t + 1, 17 * 144, v(t + 1))
    V("add_u32", t, v(t), v(t + 1)); V("add_u32", t, L_Z + 48 * 144 + 112, v(t))
    e("s_mov_b64 exec, 0xffff")
    e("ds_read_b128 %s, v%d" % (vr(PV_CY, 4), t))
    e("s_mov_b64 exec, -1")
    e("s_waitcnt lgkmcnt(0)")
    lab("L_nocarry")
    for n in range(8):
        r = Y_R + 4 * n
        e("s_waitcnt lgkmcnt(%d)" % (4 * (min(n + 2, 7) - n)))
        if n + 3 < 8: rd(n + 3)
        V("add_f32", r, v(r), v(r + 1)); V("add_f32", r + 2, v(r + 2), v(r + 3)); V("add_f32", r, v(r), v(r + 2))
        if n in (1, 3): V("cvt_pk_bf16_f32", V_Y + n // 2, v(r - 4), v(r))
        if n in (5, 7): V("add_f32", r, v(r), v(r - 4))
    V("cvt_pk_bf16_f32", V_Y + 2, v(Y_R + 20), v(Y_R + 28))

def kv_late():
    t = VT
    e("s_cmp_ge_u32 %s, 4" % WV)
    if OPT["b1late"]:
        e("s_cbranch_scc1 L_kvl")
        e("s_waitcnt vmcnt(0)")
        e("s_barrier")
        stamp("S")
        e("s_branch L_kvl_done")
        lab("L_kvl")
    else: e("s_cbranch_scc0 L_kvl_done")
    sand(T1, WV, 3); sshl(T0, T1, 2); sadd(T0, T0, L_FL)
    V("mov_b32", t, T0); V("mov_b32", t + 1, 2); V("mov_b32", t + 2, 3); V("mov_b32", t + 3, 1)
    sshl(T1, T1, 11); sadd(T0, sHB, T1)
    for b in range(1 if OPT["b1late"] else 2, 8):
        sadd(T2, JR, b); sand(T2, T2, 7); sshl(T2, T2, 13); sadd(T2, T2, T0)
        sadd("m0", T1, b * BLK); sadd(T3, T2, WS_K)
        e("buffer_load_dwordx4 v%d, %s, %s offen sc1 lds" % (V_L16, R_WS, T3))
        sadd(T4, T2, WS_V)
        e("buffer_load_dwordx4 v%d, %s, %s offen offset:1024 sc1 lds" % (V_L16, R_WS, T3))
        sadd("m0", T1, b * BLK + 8192); e("s_nop 0")
        e("buffer_load_dwordx4 v%d, %s, %s offen sc1 lds" % (V_L16, R_WS, T4))
        e("buffer_load_dwordx4 v%d, %s, %s offen offset:1024 sc1 lds" % (V_L16, R_WS, T4))
        if b == 1:
            e("s_waitcnt vmcnt(4)")
            e("s_barrier")
            stamp("S")
        if b == 2 and OPT["b1late"]:
            e("s_waitcnt vmcnt(4)")
            e("ds_write_b32 v%d, v%d" % (t, t + 3))
        if b == 5:
            e("s_waitcnt vmcnt(8)")
            e("ds_write_b32 v%d, v%d" % (t, t + 1))
    precompute_tail()
    e("s_waitcnt vmcnt(0) lgkmcnt(0)")
    e("ds_write_b32 v%d, v%d" % (t, t + 2))
    lab("L_kvl_done")

def kv_check(stage):
    t = VT + 4
    lb = "L_kvchk%d" % stage
    V("mov_b32", t, L_FL)
    e("s_mov_b32 %s, 0" % T3)
    lab(lb)
    e("ds_read_b128 %s, v%d" % (vr(t + 2, 4), t))
    sadd(T3, T3, 1)
    e("s_waitcnt lgkmcnt(0)")
    V("min_u32", t + 2, v(t + 2), v(t + 3)); V("min3_u32", t + 2, v(t + 2), v(t + 4), v(t + 5))
    e("s_cmp_gt_u32 %s, 0x40000" % T3)
    e("s_cbranch_scc1 %s_done" % lb)
    e("v_readfirstlane_b32 %s, v%d" % (T4, t + 2))
    e("s_cmp_lt_u32 %s, %d" % (T4, stage))
    e("s_cbranch_scc1 %s" % lb)
    lab(lb + "_done")

def attn_main():
    c("---- attention main loop: wave = 2 q-tiles x 32 key tiles (parity w>>2), fully unrolled ----")
    base = [0]
    koff = lambda i: (i // 4 - base[0]) * BLK + (i % 4) * 2048
    def rdK(i):
        if i < 32: e("ds_read_b128 %s, v%d offset:%d" % (vr(A_KF[i & 1], 4), PV_KA, koff(i)))
    def rdV(i):
        if i < 32:
            e("s_mov_b64 exec, s[4:5]")
            e("ds_read_b128 %s, v%d offset:%d" % (vr(A_VA[i & 1], 4), PV_V0, koff(i)))
            e("ds_read_b128 %s, v%d offset:%d" % (vr(A_VB[i & 1], 4), PV_V0, koff(i) + 512))
            e("s_mov_b64 exec, -1")
    def qk(i, q):
        if i < 32: e("v_mfma_f32_32x32x16_bf16 %s, %s, %s, 0" % (vr(A_S[q], 16), vr(A_KF[i & 1], 4), vr(A_Q[q], 4)))
    def pv(i, q, half):
        if i < 0: return
        a = (A_VA if half == 0 else A_VB)[i & 1]
        e("v_smfmac_f32_32x32x32_bf16 %s, %s, %s, v%d" % (vr(A_O[q], 16), vr(a, 4), vr(A_S[q] + 8 * half, 8), A_IDX))
    def ex(q, lo, hi):
        for k in range(lo, hi): e("v_exp_f32 v%d, v%d" % (A_S[q] + k, A_S[q] + k))
    rdK(0); rdK(1); rdV(0)
    e("s_cmp_ge_u32 %s, 4" % WV)
    e("s_cbranch_scc1 L_prio1")
    e("s_setprio 2")
    e("s_branch L_prio_done")
    lab("L_prio1")
    e("s_setprio 1")
    lab("L_prio_done")
    e("s_waitcnt lgkmcnt(3)")
    qk(0, 0)
    nop(12)
    ytiles = OPT["yt"]; wtiles = OPT["wt"]
    for i in range(32):
        c("key tile %d" % i)
        if i in (OPT["flip1"], OPT["flip"], OPT["mid"]):
            if i == OPT["mid"]: e("s_barrier")
            e("s_cmp_ge_u32 %s, 4" % WV)
            e("s_cbranch_scc1 L_noflip%d" % i)
            e("s_setprio %d" % (2 if i == OPT["mid"] else 0))
            lab("L_noflip%d" % i)
        if i == 2 and OPT["b1late"]: kv_check(1)
        if i == 6: kv_check(2)
        if i == 14: kv_check(3)
        ex(0, 0, 2); pv(i - 1, 1, 1); ex(0, 2, 5); qk(i, 1)
        e("s_waitcnt lgkmcnt(0)")
        if i in (11, 23):
            for r in (PV_KA, PV_V0): V("add_u32", r, 3 * BLK, v(r))
            base[0] += 3
        rdK(i + 2)
        if not OPT["sA"]: rdV(i + 1)
        if i in ytiles:
            n = ytiles.index(i)
            e("buffer_store_dword v%d, v%d, %s, %s offen %s" % (V_Y + n, PV_YA, R_OUT, sYS2 if n == 2 else sYS, OPT["ypol"]))
            if n == 0: sadd(sYS, sYS, 0x20000)
            if n == 2: sadd(sYS2, sYS2, 0x100000)
        if i in wtiles:
            sadd("m0", W10, L_WO + 8192 * wtiles.index(i))
            if wtiles.index(i): sadd(sWO, sWO, 0x10000)
            else: e("s_nop 0")
            e("buffer_load_dwordx4 v%d, %s, %s offen lds" % (PV_WA, R_WO, sWO))
        ex(0, 5, 11); pv(i, 0, 0)
        if OPT["sA"]: rdV(i + 1)
        ex(0, 11, 16)
        ex(1, 0, 2); pv(i, 0, 1); ex(1, 2, 5); qk(i + 1, 0)
        ex(1, 5, 11); pv(i, 1, 0); ex(1, 11, 16)
    e("s_nop 1")
    pv(31, 1, 1)
    e("s_setprio 0")

A_G = 176
def combine():
    t = VT
    c("waves 4..7 hand their halves (odd key tiles) to waves 0..3, which finish and publish both q-tiles")
    stamp("loopend")
    e("s_waitcnt vmcnt(0)")
    e("s_barrier")
    stamp("attn")
    e("s_cmp_ge_u32 %s, 4" % WV)
    e("s_cbranch_scc0 L_cmb0")
    for k in range(3): e("ds_write_b128 v%d, %s offset:%d" % (PV_CW, vr(A_O[0] + 4 * k, 4), 1024 * k))
    nop(5)
    for k in range(3): e("ds_write_b128 v%d, %s offset:%d" % (PV_CW, vr(A_O[1] + 4 * k, 4), 3072 + 1024 * k))
    e("s_waitcnt lgkmcnt(0)")
    e("s_barrier")
    e("s_branch L_tail_hi")
    lab("L_cmb0")
    e("s_barrier")
    stamp("T1")
    for q, F in ((0, A_F), (1, A_G)):
        for k in (2, 0, 1): e("ds_read_b128 %s, v%d offset:%d" % (vr(F + 4 * k, 4), PV_CW, 3072 * q + 1024 * k))
    for q, F in ((0, A_F), (1, A_G)):
        e("s_waitcnt lgkmcnt(%d)" % (5 - 3 * q))
        V("add_f32", F + 8, v(F + 8), v(A_O[q] + 8))
        V("mov_b32", t + 1, v(F + 8))
        e("s_waitcnt lgkmcnt(%d)" % (3 - 3 * q))
        for i in range(8): V("add_f32", F + i, v(F + i), v(A_O[q] + i))
        e("v_permlane32_swap_b32 v%d, v%d" % (F + 8, t + 1))
        attn_publish(F, 32 + 4 * q, 1024 * q)
    stamp("pubO")
    c("---- softmax guard: the fast path used shift 0; redo with the true row max if that was unsafe ----")
    V("mov_b32", t + 1, fl(2.0 ** 100))
    for q, F in ((0, A_F), (1, A_G)):
        V("mul_f32", t, 0, v(F))
        for i in range(1, 8): V("fma_f32", t, v(F + i), 0, v(t))
        e("v_cmp_nle_f32 vcc, %s, v%d" % (fl(2.0 ** -40), F + 8))
        e("v_cmp_nle_f32 s[4:5], v%d, v%d" % (F + 8, t + 1))
        e("v_cmp_neq_f32 s[6:7], 0, v%d" % t)
        e("s_or_b64 vcc, vcc, s[4:5]")
        e("s_or_b64 vcc, vcc, s[6:7]")
        if OPT["forceslow"]: e("s_mov_b64 vcc, -1")
        e("s_cmp_lg_u64 vcc, 0")
        e("s_cselect_b32 %s, 1, 0" % (T4 if q == 0 else T5))
    S("or_b32", T0, T4, T5)
    e("s_cbranch_scc1 L_slow")
    lab("L_attn_ok")

def slow_path():
    t = VT
    lab("L_slow")
    S_, KF, VA, VB = A_S[0], A_KF[0], A_VA[0], A_VB[0]
    e("s_cmp_eq_u32 %s, 0" % T4)
    e("s_cbranch_scc1 L_slow_next")
    lab("L_slow_go")
    c("slow path pass 1: true row max (K from the workspace)")
    sadd(T0, sHB, WS_K)
    V("mov_b32", t, 0xff800000)
    e("s_mov_b32 %s, 0" % CNT)
    lab("L_slow1")
    e("buffer_load_dwordx4 %s, v%d, %s, %s offen sc1" % (vr(KF, 4), V_L16, R_WS, T0))
    sadd(T0, T0, 1024)
    e("s_waitcnt vmcnt(0)")
    e("v_mfma_f32_32x32x16_bf16 %s, %s, %s, 0" % (vr(S_, 16), vr(KF, 4), vr(A_Q[0], 4)))
    nop(12)
    for k in range(0, 16, 2): V("max3_f32", t, v(t), v(S_ + k), v(S_ + k + 1))
    sadd(CNT, CNT, 1)
    e("s_cmp_lt_u32 %s, 64" % CNT)
    e("s_cbranch_scc1 L_slow1")
    V("mov_b32", t + 1, v(t))
    e("s_nop 1")
    e("v_permlane32_swap_b32 v%d, v%d" % (t, t + 1))
    e("s_nop 1")
    V("max_f32", t, v(t), v(t + 1))
    for k in range(16): V("mul_f32", A_NM + k, "-1.0", v(t))
    c("slow path pass 2")
    for k in range(16): V("mov_b32", A_F + k, 0)
    for k in range(4):
        V("mov_b32", VA + k, 0x3f803f80); V("mov_b32", VB + k, 0x3f803f80)
    V("and_b32", t, 15, v(V_L)); V("lshrrev_b32", t + 1, 5, v(V_L)); V("lshlrev_b32", t, 4, v(t)); V("lshl_add_u32", t, v(t + 1), 8, v(t))
    sadd(T0, sHB, WS_K); sadd(T1, sHB, WS_V)
    e("s_mov_b32 %s, 0" % CNT)
    lab("L_slow2")
    e("buffer_load_dwordx4 %s, v%d, %s, %s offen sc1" % (vr(KF, 4), V_L16, R_WS, T0))
    e("s_mov_b32 exec_lo, 0xffff")
    e("s_mov_b32 exec_hi, 0xffff")
    e("buffer_load_dwordx4 %s, v%d, %s, %s offen sc1" % (vr(VA, 4), t, R_WS, T1))
    e("buffer_load_dwordx4 %s, v%d, %s, %s offen offset:512 sc1" % (vr(VB, 4), t, R_WS, T1))
    e("s_mov_b64 exec, -1")
    sadd(T0, T0, 1024); sadd(T1, T1, 1024)
    e("s_waitcnt vmcnt(0)")
    e("v_mfma_f32_32x32x16_bf16 %s, %s, %s, %s" % (vr(S_, 16), vr(KF, 4), vr(A_Q[0], 4), vr(A_NM, 16)))
    nop(12)
    for k in range(16): e("v_exp_f32 v%d, v%d" % (S_ + k, S_ + k))
    e("s_nop 1")
    e("v_smfmac_f32_32x32x32_bf16 %s, %s, %s, v%d" % (vr(A_F, 16), vr(VA, 4), vr(S_, 8), A_IDX))
    e("v_smfmac_f32_32x32x32_bf16 %s, %s, %s, v%d" % (vr(A_F, 16), vr(VB, 4), vr(S_ + 8, 8), A_IDX))
    sadd(CNT, CNT, 1)
    e("s_cmp_lt_u32 %s, 64" % CNT)
    nop(4)
    e("s_cbranch_scc1 L_slow2")
    nop(12)
    attn_publish(A_F, 32, 0)
    lab("L_slow_next")
    e("s_cmp_eq_u32 %s, 0" % T5)
    e("s_cbranch_scc1 L_attn_ok")
    e("s_mov_b32 %s, 0" % T5)
    for i in range(4): V("mov_b32", A_Q[0] + i, v(A_Q[1] + i))
    sadd(sOST, sOST, 1024)
    e("s_branch L_slow_go")

def attn_publish(F, P, off):
    t = VT
    V("rcp_f32", t, v(F + 8))
    e("s_nop 0")
    for i in range(8): V("mul_f32", F + i, v(F + i), v(t))
    for i in range(4): V("cvt_pk_bf16_f32", P + i, v(F + 2 * i), v(F + 2 * i + 1))
    e("s_nop 1")
    e("v_permlane32_swap_b32 v%d, v%d" % (P, P + 2))
    e("v_permlane32_swap_b32 v%d, v%d" % (P + 1, P + 3))
    e("buffer_store_dwordx4 %s, v%d, %s, %s offen offset:%d sc1" % (vr(P, 4), V_L16, R_WS, sOST, off))

P_W, P_ACC, P_OF = 96, 32, 48
def tail():
    t = VT
    c("==== waves 0..3: Wo fragments, poll, O tiles, output projection ====")
    for hh in range(32):
        if hh == OPT["fsig"]: signal("c", 20, 3, sF2)
        for tt in range(2):
            e("ds_read_b64_tr_b16 %s, v%d offset:%d" % (vr(P_W + 4 * hh + 2 * tt, 2), PV_WF, L_WO + hh * 2048 + tt * 512))
    if OPT["fsig"] >= 32: signal("c", 20, 3, sF2)
    else: e("s_waitcnt lgkmcnt(0)")
    e("s_barrier")
    stamp("W")
    V("mov_b32", t + 2, L_FL + 24); V("mov_b32", t + 3, 1)
    e("s_cmp_eq_u32 %s, 0" % WV)
    e("s_cbranch_scc0 L_spin2")
    (poll_pipe if OPT["np"] > 1 else poll)("L_poll2", sF2P)
    e("ds_write_b32 v%d, v%d" % (t + 2, t + 3))
    e("s_branch L_seen2")
    lab("L_spin2")
    e("s_mov_b32 %s, 0" % CNT)
    lab("L_spin2l")
    e("ds_read_b32 v%d, v%d" % (t + 3, t + 2))
    sadd(CNT, CNT, 1)
    e("s_waitcnt lgkmcnt(0)")
    e("v_readfirstlane_b32 %s, v%d" % (T0, t + 3))
    e("s_cmp_gt_u32 %s, 0x200000" % CNT)
    e("s_cbranch_scc1 L_seen2")
    e("s_cmp_eq_u32 %s, 0" % T0)
    e("s_cbranch_scc1 L_spin2l")
    lab("L_seen2")
    stamp("poll2")
    sadd("m0", W10, L_O); e("s_nop 0")
    for n in range(16):
        e("buffer_load_dwordx4 v%d, %s, %s offen sc1 lds" % (V_L16, R_WS, sOLD))
        if n < 15:
            sadd("m0", "m0", 4096); sadd(sOLD, sOLD, 0x20000)
    e("s_barrier")
    def mm(st):
        for k in range(4):
            hh = 4 * st + k
            e("v_mfma_f32_32x32x16_bf16 %s, %s, %s, %s" % (vr(P_ACC, 16), vr(P_W + 4 * hh, 4), vr(P_OF + 16 * (st & 1) + 4 * k, 4), "0" if hh == 0 else vr(P_ACC, 16)))
    for st in range(8):
        bnd = {"a": {0: 2, 2: 4, 4: 6, 6: 8}, "b": {0: 1, 1: 3, 3: 5, 5: 8}, "c": {0: 1, 1: 2, 2: 4, 4: 8}, "d": {0: 1, 1: 3, 3: 6, 6: 8}}[OPT["stg"]]
        if st in bnd:
            e("s_waitcnt vmcnt(%d)" % (16 - 2 * bnd[st]))
            e("s_barrier")
            if st == 0: stamp("O1")
        for k in range(4): e("ds_read_b128 %s, v%d offset:%d" % (vr(P_OF + 16 * (st & 1) + 4 * k, 4), PV_OR, (4 * st + k) * 2048))
        if st > 0:
            e("s_waitcnt lgkmcnt(4)")
            mm(st - 1)
    e("s_waitcnt lgkmcnt(0)")
    mm(7)
    nop(12)
    for i in range(8): V("cvt_pk_bf16_f32", P_OF + i, v(P_ACC + 2 * i), v(P_ACC + 2 * i + 1))
    e("ds_write_b128 v%d, %s" % (PV_OW, vr(P_OF, 4)))
    e("ds_write_b128 v%d, %s offset:16" % (PV_OW, vr(P_OF + 4, 4)))
    c("WG 0 advances the epoch word (every WG has read it: all of them have published)")
    e("s_cmp_eq_u32 s2, 0")
    e("s_cbranch_scc0 L_fin")
    e("s_cmp_eq_u32 %s, 0" % WV)
    e("s_cbranch_scc0 L_fin")
    flag_store("0")
    e("s_branch L_fin")
    lab("L_tail_hi")
    c("==== waves 4..7: causal conv of output tiles 6,7 (two lag halves per channel) ====")
    for p in range(4): V("add_u32", PV_ZR + p, (L_Z2 - L_Z - 4608 - 1152 + p * (ZS2 - ZS)) & 0xffffffff, v(PV_ZR + p))
    def sigw(tag):
        signal(tag, 20, 7, sF2)
    e("s_bitcmp1_b32 %s, 0" % WV)
    e("s_cbranch_scc1 L_ct_b")
    conv_job(6, 0, 4, False, PV_CA, PV_CB, None, bar_after=OPT["wbar"])
    e("s_branch L_ct_done")
    lab("L_ct_b")
    conv_job(6, 16, 3, True, PV_CA, PV_CB, None, bar_after=OPT["wbar"])
    lab("L_ct_done")
    z_writes(PV_ZW2, 0)
    e("s_cmp_eq_u32 %s, 6" % WV)
    e("s_cbranch_scc0 L_nocarry2")
    V("bfe_u32", t + 2, v(V_L), 2, 1); V("mul_u32_u24", t + 2, 8 * ZS2, v(t + 2)); V("bfe_u32", t + 1, v(V_L), 3, 1); V("lshlrev_b32", t + 1, 2, v(t + 1))
    V("and_b32", t + 3, 3, v(V_L)); V("add_u32", t + 1, v(t + 1), v(t + 3)); V("mul_u32_u24", t + 1, ZS2, v(t + 1))
    V("add_u32", t + 2, v(t + 2), v(t + 1)); V("add_u32", t + 2, L_Z2 + 112, v(t + 2))
    e("s_mov_b64 exec, 0xffff")
    e("ds_write_b128 v%d, %s" % (t + 2, vr(PV_CY, 4)))
    e("s_mov_b64 exec, -1")
    lab("L_nocarry2")
    e("s_waitcnt lgkmcnt(0)")
    stamp("cend2")
    e("s_barrier")
    c("y[1536 + 64w' + l] for w' = w-4 and w")
    order = [(g, cl, st) for g in range(2) for cl in range(2) for st in range(2)]
    def rd(n):
        g, cl, st = order[n]
        for p in range(4): e("ds_read_b32 v%d, v%d offset:%d" % (Y_R + 4 * n + p, PV_ZR + p, cl * 8 * ZS2 + st * 4 * ZS2 + g * 1152))
    rd(0); rd(1); rd(2)
    for n in range(8):
        r = Y_R + 4 * n
        e("s_waitcnt lgkmcnt(%d)" % (4 * (min(n + 2, 7) - n)))
        if n + 3 < 8: rd(n + 3)
        V("add_f32", r, v(r), v(r + 1)); V("add_f32", r + 2, v(r + 2), v(r + 3)); V("add_f32", r, v(r), v(r + 2))
        if n % 2: V("add_f32", r, v(r), v(r - 4))
        if n % 4 == 3: V("cvt_pk_bf16_f32", V_Y + n // 4, v(r - 8), v(r))
    S("sub_u32", sYS, sYS2, 0x80000)
    for st in range(4):
        if st == OPT["yat"]:
            e("buffer_store_dword v%d, v%d, %s, %s offen" % (V_Y, PV_YA, R_OUT, sYS))
            e("buffer_store_dword v%d, v%d, %s, %s offen" % (V_Y + 1, PV_YA, R_OUT, sYS2))
        e("s_barrier")
    if OPT["yat"] == 4:
        e("buffer_store_dword v%d, v%d, %s, %s offen" % (V_Y, PV_YA, R_OUT, sYS))
        e("buffer_store_dword v%d, v%d, %s, %s offen" % (V_Y + 1, PV_YA, R_OUT, sYS2))
    lab("L_fin")
    e("s_waitcnt lgkmcnt(0)")
    e("s_barrier")
    stamp("opdone")
    e("ds_read_b128 v[32:35], v%d" % PV_FR)
    e("s_waitcnt lgkmcnt(0)")
    e("buffer_store_dwordx4 v[32:35], v%d, %s, %s offen %s" % (PV_FS, R_OUT, sOUT, OPT["opol"]))

def dump_lds(base, nbytes, wsoff):
    t = VT + 10
    e("s_waitcnt lgkmcnt(0)"); e("s_barrier")
    V("lshlrev_b32", t, 4, v(0))
    sshl(T0, "s2", 18); sadd(T0, T0, WS_DBG + wsoff)
    for o in range(0, nbytes, 8192):
        V("add_u32", t + 1, base + o, v(t))
        e("ds_read_b128 %s, v%d" % (vr(t + 2, 4), t + 1))
        e("s_waitcnt lgkmcnt(0)")
        e("buffer_store_dwordx4 %s, v%d, %s, %s offen" % (vr(t + 2, 4), t, R_WS, T0))
        sadd(T0, T0, 8192)
        e("s_waitcnt vmcnt(0)")
    e("s_barrier")

def write_stamps():
    t = VT
    if OPT["ldst"]:
        e("s_waitcnt vmcnt(0) lgkmcnt(0)")
        sshl(T0, "s2", 3); sadd(T0, T0, WV); sshl(T0, T0, 7); sadd(T0, T0, WS_ST)
        e("s_mov_b64 exec, 1")
        V("mov_b32", t, 0)
        for i in range(10):
            V("mov_b32", t + 1, sr(80 + 2 * i))
            e("buffer_store_dword v%d, v%d, %s, %s offen offset:%d" % (t + 1, t, R_WS, T0, 4 * i))
            e("s_nop 1")
        e("s_mov_b64 exec, -1")
    if OPT["echo"]:
        a, b, m = OPT["echo"].split(",")
        e("s_cmp_eq_u32 %s, %d" % (WV, OPT["echowv"])); e("s_cbranch_scc0 L_end")
        e("s_cmp_eq_u32 s2, %d" % OPT["echowg"]); e("s_cbranch_scc0 L_end")
        e("s_waitcnt vmcnt(0)")
        stamp("end")
        if a == "start": e("s_mov_b32 s80, s100")
        e("s_sub_u32 s82, s81, s80"); e("s_mul_i32 s82, s82, %s" % m); e("s_min_u32 s82, s82, 20000")
        e("s_memrealtime s[84:85]"); e("s_waitcnt lgkmcnt(0)")
        lab("L_echo")
        e("s_memrealtime s[86:87]"); e("s_waitcnt lgkmcnt(0)")
        e("s_sub_u32 s83, s86, s84"); e("s_cmp_lt_u32 s83, s82"); e("s_cbranch_scc1 L_echo")
    if OPT["stamps"]:
        e("s_waitcnt vmcnt(0)")
        stamp("end")
        sshl(T0, "s2", 3); sadd(T0, T0, WV); sshl(T0, T0, 7); sadd(T0, T0, WS_ST)
        e("s_mov_b64 exec, 1")
        V("mov_b32", t, 0)
        for i in range(len(stamp_names)):
            V("mov_b32", t + 1, sr(S_ST + i))
            e("buffer_store_dword v%d, v%d, %s, %s offen offset:%d" % (t + 1, t, R_WS, T0, 4 * i))
            e("s_nop 1")
        V("mov_b32", t + 1, "s100")
        e("buffer_store_dword v%d, v%d, %s, %s offen offset:124" % (t + 1, t, R_WS, T0))
        e("s_memrealtime s[98:99]")
        e("s_waitcnt lgkmcnt(0)")
        V("mov_b32", t + 2, "s98")
        e("buffer_store_dword v%d, v%d, %s, %s offen offset:120" % (t + 2, t, R_WS, T0))
        e("s_mov_b64 exec, -1")
        L.insert(0, "; stamps: " + ",".join(stamp_names))
    if OPT["dbgspan"]:
        e("s_cmp_eq_u32 %s, 0" % WV); e("s_cbranch_scc0 L_end")
        sand(T0, "s2", 63); e("s_cmp_eq_u32 %s, 5" % T0); e("s_cbranch_scc0 L_end")
        e("s_waitcnt vmcnt(0)")
        e("s_memrealtime s[96:97]"); e("s_memtime s[94:95]")
        srd(R_X, S_DBG, 256)
        sshr(T0, "s2", 6); sshl(T0, T0, 4)
        e("s_waitcnt lgkmcnt(0)")
        e("s_mov_b64 exec, 1")
        V("mov_b32", t, 0)
        e("s_sub_u32 s94, s94, s98"); e("s_sub_u32 s96, s96, s100")
        V("mov_b32", t + 2, "s100"); V("mov_b32", t + 3, "s96"); V("mov_b32", t + 4, "s94"); V("mov_b32", t + 5, 0)
        e("buffer_store_dwordx4 %s, v%d, %s, %s offen" % (vr(t + 2, 4), t, R_X, T0))

def main():
    header()
    setup()
    loader_path()
    compute_path()
    lab("L_gemm_done")
    if OPT["gprio"]: e("s_setprio 0")
    e("s_waitcnt lgkmcnt(0)")
    e("s_barrier")
    stamp("K2")
    if OPT["dump"]: dump_lds(L_KF, 24576, 0)
    conv()
    kv_early()
    conv_epilogue()
    if not OPT["b1late"]:
        e("s_waitcnt vmcnt(0)")
        e("s_barrier")
        stamp("S")
    kv_late()
    attn_main()
    combine()
    tail()
    write_stamps()
    e("s_endpgm")
    slow_path()
    footer(256)
    open(sys.argv[1], "w").write("\n".join(L) + "\n")

main()
```
